```python
import torch

def _softmax(x, axis=-1):
    return torch.softmax(x, dim=axis)
def _gelu(x):
    return torch.nn.functional.gelu(x, approximate="tanh")
def _silu(x):
    return torch.nn.functional.silu(x)
def _sigmoid(x):
    return torch.sigmoid(x)
def _layernorm(x, axis=-1, eps=1e-5):
    m = x.mean(dim=axis, keepdim=True)
    v = x.var(dim=axis, keepdim=True, unbiased=False)
    return (x - m) / torch.sqrt(v + eps)
def _scatter_add(tgt, idx, src, axis=0):
    return tgt.clone().index_add_(axis, idx, src)
def _segment_sum(src, seg, n):
    out = torch.zeros((n,) + src.shape[1:], dtype=src.dtype)
    return out.index_add_(0, seg, src)
def _pad(x, pw):
    flat = tuple(v for pair in reversed(pw) for v in pair)
    return torch.nn.functional.pad(x, flat)

kernel_name = 'interleave_layers__softmax_full_mha__moe_arch_mod__prompt'

def setup_inputs():

    _w = (lambda a: (lambda t: t.to(torch.bfloat16) if t.is_floating_point() else t)(torch.as_tensor(a)))
    def _A_setup():
        B, S, D = 1, 2048, 512
        return {
            "x": _w((lambda *s: torch.randn(*s, dtype=torch.bfloat16) * 0.05)(B, S, D)),
            "wqkv": _w((lambda *s: torch.randn(*s, dtype=torch.bfloat16) * 0.05)(D, 3 * D)),
            "wo": _w((lambda *s: torch.randn(*s, dtype=torch.bfloat16) * 0.05)(D, D)),
        }
    _A_in = _A_setup()

    def _B_setup():
        B, S, D, F, C = 1, 2048, 512, 1792, 1
        return {
            "x": _w((lambda *s: torch.randn(*s, dtype=torch.bfloat16) * 0.05)(B, S, D)),
            "w_r": _w((lambda *s: torch.randn(*s, dtype=torch.bfloat16) * 0.05)(D)),
            "w_gate": _w((lambda *s: torch.randn(*s, dtype=torch.bfloat16) * 0.05)(D, F)),
            "w_up": _w((lambda *s: torch.randn(*s, dtype=torch.bfloat16) * 0.05)(D, F)),
            "w_down": _w((lambda *s: torch.randn(*s, dtype=torch.bfloat16) * 0.05)(F, D)),
        }
    _B_in = _B_setup()

    return {
        "A_x": _A_in["x"],
        "A_wqkv": _A_in["wqkv"],
        "A_wo": _A_in["wo"],
        "B_x": _B_in["x"],
        "B_w_r": _B_in["w_r"],
        "B_w_gate": _B_in["w_gate"],
        "B_w_up": _B_in["w_up"],
        "B_w_down": _B_in["w_down"],
    }

def reference(A_x, A_wqkv, A_wo, B_x, B_w_r, B_w_gate, B_w_up, B_w_down):
    def _A_ref(x, wqkv, wo):
        B, S, D = x.shape
        H = 32; Dh = D // H
        qkv = (lambda x, *d: x.permute(*d))((x @ wqkv).reshape(B, S, 3, H, Dh), 2, 0, 3, 1, 4)
        q, k, v = qkv[0], qkv[1], qkv[2]
        scale = Dh ** -0.5
        scores = torch.einsum("bhqd,bhkd->bhqk", q, k) * scale
        p = _softmax(scores, axis=-1)
        o = torch.einsum("bhqk,bhkd->bhqd", p, v)
        return (lambda x, *d: x.permute(*d))(o, 0, 2, 1, 3).reshape(B, S, D) @ wo

    def _B_ref(x, w_r, w_gate, w_up, w_down):
        B, S, D = x.shape
        C = 1
        r = x @ w_r
        idx = torch.argsort(-r, axis=-1)[:, :C]
        idx_e = (lambda x, n, axis: torch.repeat_interleave(x, n, dim=axis))(idx.reshape(B, C, 1), D, axis=2)
        x_sel = (lambda x, i, axis: torch.take_along_dim(x, i, dim=axis))(x, idx_e, axis=1)
        g = _silu(x_sel @ w_gate)
        u = x_sel @ w_up
        y = (g * u) @ w_down
        r_sel = _sigmoid((lambda x, i, axis: torch.take_along_dim(x, i, dim=axis))(r, idx, axis=1))
        y = y * r_sel.reshape(B, C, 1)
        b_off = (torch.arange(B) * S).reshape(B, 1)
        flat_idx = (idx + b_off).reshape(B * C)
        zero = (x * 0.0).reshape(B * S, D)
        upd = _scatter_add(zero, flat_idx, y.reshape(B * C, D), axis=0)
        return x + upd.reshape(B, S, D)

    x = A_x
    x = x + _A_ref(_layernorm(x, axis=-1), A_wqkv, A_wo)
    x = x + _B_ref(_layernorm(x, axis=-1), B_w_r, B_w_gate, B_w_up, B_w_down)
    x = x + _A_ref(_layernorm(x, axis=-1), A_wqkv, A_wo)
    x = x + _B_ref(_layernorm(x, axis=-1), B_w_r, B_w_gate, B_w_up, B_w_down)
    return x
```

```python
import re

def v(i): return f"v{i}"
def vr(i, n): return f"v[{i}:{i+n-1}]" if n > 1 else f"v{i}"
def a(i): return f"a{i}"
def ar(i, n): return f"a[{i}:{i+n-1}]" if n > 1 else f"a{i}"
def s(i): return f"s{i}"
def sr(i, n): return f"s[{i}:{i+n-1}]" if n > 1 else f"s{i}"

class Kern:
    def __init__(self, name, grid, block, lds, nvgpr, nagpr=0, nsgpr=96):
        self.name = name; self.grid = grid; self.block = block; self.lds = lds
        self.nvgpr = nvgpr; self.nagpr = nagpr; self.nsgpr = nsgpr
        self.lines = []
        self.uid = 0
    def I(self, txt):
        for l in txt.strip().split("\n"):
            l = l.strip()
            if l: self.lines.append("    " + l)
    def L(self, lab): self.lines.append(f"{lab}:")
    def C(self, txt): self.lines.append(f"    ; {txt}")
    def lab(self, base):
        self.uid += 1
        return f"L_{self.name}_{base}_{self.uid}"
    def nop(self, n):
        while n > 0:
            k = min(n, 16)
            self.I(f"s_nop {k-1}")
            n -= k
    def text(self):
        return (f".globl {self.name}\n.p2align 8\n.type {self.name},@function\n{self.name}:\n" + "\n".join(self.lines) + "\n")
    def desc(self):
        acc = (self.nvgpr + 3) // 4 * 4
        nfv = acc + self.nagpr if self.nagpr else self.nvgpr
        return f""".p2align 6
.amdhsa_kernel {self.name}
  .amdhsa_next_free_vgpr {nfv}
  .amdhsa_next_free_sgpr {self.nsgpr}
  .amdhsa_accum_offset {acc}
  .amdhsa_group_segment_fixed_size 0
  .amdhsa_kernarg_size 88
  .amdhsa_user_sgpr_count 2
  .amdhsa_user_sgpr_kernarg_segment_ptr 1
  .amdhsa_system_sgpr_workgroup_id_x 1
.end_amdhsa_kernel
"""
    def launch(self):
        return f"; @launch kernel={self.name} grid=({self.grid},1,1) block=({self.block},1,1) lds={self.lds}"

def emit_file(header, kerns, order=None):
    order = order or kerns
    out = [header.rstrip()]
    for k in order: out.append(k.launch())
    out.append('.amdgcn_target "amdgcn-amd-amdhsa--gfx950"')
    out.append(".text")
    for k in kerns: out.append(k.text())
    out.append('.section .rodata,"a"')
    for k in kerns: out.append(k.desc())
    return "\n".join(out)

_REG = re.compile(r"\b([vas])(\d+)\b|\b([vas])\[(\d+):(\d+)\]|\b(vcc|exec|m0|scc)\b|\b(vcc_lo|vcc_hi|exec_lo|exec_hi)\b")
def regs_of(op):
    out = set()
    for m in _REG.finditer(op):
        if m.group(1): out.add((m.group(1), int(m.group(2))))
        elif m.group(3):
            for i in range(int(m.group(4)), int(m.group(5)) + 1): out.add((m.group(3), i))
        elif m.group(6): out.add((m.group(6), 0))
        else: out.add((m.group(7)[:-3], 0))
    return out

TRANS = ("v_exp_", "v_log_", "v_rcp_", "v_rsq_", "v_sqrt_", "v_sin_", "v_cos_")
class Ins:
    def __init__(self, txt, idx):
        self.txt = txt; self.idx = idx
        t = txt.split(";")[0].strip()
        parts = t.split(None, 1)
        self.op = parts[0]
        rest = parts[1] if len(parts) > 1 else ""
        ops = []; depth = 0; cur = ""
        for ch in rest:
            if ch == "[": depth += 1
            if ch == "]": depth -= 1
            if ch == "," and depth == 0: ops.append(cur.strip()); cur = ""
            else: cur += ch
        if cur.strip(): ops.append(cur.strip())
        self.mods = ""
        if ops:
            last = ops[-1].split(None, 1)
            if len(last) > 1 and not last[0].startswith("hwreg"):
                ops[-1] = last[0]; self.mods = last[1]
        self.ops = ops
        op = self.op
        self.mfma = op.startswith("v_mfma")
        self.valu = op.startswith("v_") and not self.mfma
        self.trans = op.startswith(TRANS)
        self.salu = op.startswith("s_")
        self.vmem = op.startswith(("global_", "buffer_", "flat_"))
        self.ds = op.startswith("ds_")
        self.dpp = "_dpp" in op or "quad_perm" in self.mods or "row_" in self.mods
        self.permlane = op.startswith("v_permlane")
        self.states = 1
        if op == "s_nop": self.states = int(ops[0], 0) + 1
        R = [regs_of(o) for o in ops]
        w = set(); r = set()
        if self.mfma:
            w = R[0]; r = R[1] | R[2] | R[3]
            self.A = R[1]; self.B = R[2]; self.Cc = R[3]
            self.passes = 8 if "32x32" in op else 4
        elif self.valu:
            if self.permlane and "swap" in op:
                w = R[0] | R[1]; r = R[0] | R[1]
            elif op.startswith(("v_add_co", "v_sub_co", "v_addc_co", "v_subb_co", "v_subrev_co")):
                w = R[0] | R[1]; r = set().union(*R[2:])
            elif op.startswith("v_cmpx"):
                w = R[0] | {("exec", 0)}; r = set().union(*R[1:])
            elif op in ("v_nop",):
                pass
            else:
                w = R[0]; r = set().union(*R[1:]) if len(R) > 1 else set()
                if op.startswith(("v_fmac", "v_mac", "v_dot2c", "v_writelane")) or "UNUSED_PRESERVE" in self.mods or self.dpp:
                    r |= R[0]
                if op.startswith("v_cndmask") and len(ops) == 3: r |= {("vcc", 0)}
        elif self.vmem:
            lds = "_lds_" in op or " lds" in (" " + self.mods)
            if "load" in op and not lds:
                w = R[0]; r = set().union(*R[1:])
            elif "atomic" in op and "sc0" in self.mods:
                w = R[0]; r = set().union(*R[1:])
            else:
                r = set().union(*R) if R else set()
            if lds: r |= {("m0", 0)}
            self.lds = lds
            self.store_data = set()
            if "store" in op and ("x4" in op or "x3" in op):
                self.store_data = R[1] if op.startswith("global") else R[0]
        elif self.ds:
            if op.startswith(("ds_read", "ds_bpermute", "ds_permute", "ds_swizzle")) or "_rtn" in op:
                w = R[0]; r = set().union(*R[1:]) if len(R) > 1 else set()
            else:
                r = set().union(*R)
        elif self.salu:
            if op.startswith(("s_cmp", "s_cbranch", "s_branch", "s_waitcnt", "s_barrier", "s_nop", "s_endpgm", "s_sleep", "s_setprio", "s_bitcmp")):
                r = set().union(*R) if R else set()
            else:
                w = R[0] if R else set(); r = set().union(*R[1:]) if len(R) > 1 else set()
                if "saveexec" in op: w = w | {("exec", 0)}
        self.w = w; self.r = r

def check_hazards(kern):
    ins = []; labels = {}
    for l in kern.lines:
        t = l.split(";")[0].strip()
        if not t: continue
        if t.endswith(":"): labels[t[:-1]] = len(ins); continue
        if t.startswith("."): continue
        ins.append(Ins(t, len(ins)))
    n = len(ins)
    preds = [[] for _ in range(n + 1)]
    for i, x in enumerate(ins):
        if x.op == "s_endpgm": continue
        if x.op == "s_branch":
            preds[labels[x.ops[0]]].append(i); continue
        if x.op.startswith("s_cbranch"):
            preds[labels[x.ops[0]]].append(i)
        preds[i + 1].append(i)
    errs = []
    def need(p, c):
        req = 0
        vw = {x for x in p.w if x[0] in "va"}
        sw = {x for x in p.w if x[0] in ("s", "vcc")}
        if p.valu:
            if c.mfma and vw & c.r: req = max(req, 2)
            if c.valu and c.dpp and vw & c.r: req = max(req, 2)
            if c.permlane and vw & c.r: req = max(req, 2)
            if c.op.startswith(("v_readlane", "v_readfirstlane")) and vw & c.r: req = max(req, 1)
            if p.trans and c.valu and not c.trans and vw & c.r: req = max(req, 1)
            if p.trans and c.mfma and vw & c.r: req = max(req, 2)
            if sw & c.r:
                if c.vmem: req = max(req, 5)
                if c.valu: req = max(req, 4 if c.op.startswith(("v_readlane", "v_writelane")) else 2)
            if ("exec", 0) in p.w:
                if c.mfma: req = max(req, 4)
                if c.dpp: req = max(req, 5)
                if c.permlane or c.op.startswith(("v_readlane", "v_readfirstlane", "v_writelane")): req = max(req, 4)
            if "sdwa" in p.op and c.valu and vw & c.r: req = max(req, 1)
        if p.mfma:
            big = 12 if p.passes == 8 else 8
            if c.mfma:
                if p.w & (c.A | c.B): req = max(req, big)
                if p.w & c.Cc and not (p.w == c.Cc and p.passes == c.passes): req = max(req, big - 2)
                if p.w & c.w and not (p.w == c.w and p.w == c.Cc): req = max(req, big - 2)
            elif (c.valu or c.vmem or c.ds) and (p.w & (c.r | c.w)): req = max(req, big)
            if c.valu and p.Cc & c.w: req = max(req, 7 if p.passes == 8 else 3)
        if p.salu and ("m0", 0) in p.w and c.vmem and c.lds: req = max(req, 1)
        if p.vmem and p.store_data and (p.store_data & c.w): req = max(req, 2 if c.valu else 1)
        return req
    for i, c in enumerate(ins):
        stack = [(p, 0) for p in preds[i]]
        seen = set()
        while stack:
            j, dist = stack.pop()
            if (j, dist) in seen: continue
            seen.add((j, dist))
            p = ins[j]
            q = need(p, c)
            if q > dist:
                errs.append(f"{kern.name}: need {q} have {dist}: [{p.txt}] -> [{c.txt}]")
            nd = dist + p.states
            if nd < 13:
                for pp in preds[j]: stack.append((pp, nd))
    return sorted(set(errs))
```

```python
import sys, struct
from asmlib import *

NAME = "interleave_layers__softmax_full_mha__moe_arch_mod__prompt"
HEADER = open("cdna_kernels/" + NAME + ".s.ref").read().split("; Override launch")[0]

XF = [0x000000, 0x200000, 0x400000]
QF, KF, VF, OF = 0x600000, 0x800000, 0xA00000, 0xC00000
SUMS = [0xE00000, 0xE08000]
TAB = [0xE10000, 0xE18000]
CS = 0xE20000
WSUM = CS + 0x1800
YB = [0xE30000, 0xE40000]
NREP = 16
EPS = 1e-5
def f2u(x): return struct.unpack("<I", struct.pack("<f", x))[0]
QSCALE = 0.25 * 1.4426950408889634
LOG2E = 1.4426950408889634

A_X0, A_WQKV, A_WO, A_WR, A_WG, A_WU, A_WD, A_OUT, A_DBG, A_WS = 0, 8, 16, 32, 40, 48, 56, 64, 72, 80

def sadd64(k, d, b, const):
    k.I(f"s_add_u32 {s(d)}, {s(b)}, {hex(const)}")
    k.I(f"s_addc_u32 {s(d+1)}, {s(b+1)}, 0")

def allreduce(k, op, x, t):
    for m in ("quad_perm:[1,0,3,2]", "quad_perm:[2,3,0,1]", "row_half_mirror", "row_mirror"):
        k.nop(2)
        k.I(f"{op}_dpp {v(x)}, {v(x)}, {v(x)} {m} row_mask:0xf bank_mask:0xf")
    for sw in ("v_permlane16_swap_b32", "v_permlane32_swap_b32"):
        k.I(f"v_mov_b32 {v(t)}, {v(x)}")
        k.nop(2)
        k.I(f"{sw} {v(x)}, {v(t)}")
        k.I(f"{op} {v(x)}, {v(x)}, {v(t)}")

def halfsum(k, op, x, t):
    k.I(f"v_mov_b32 {v(t)}, {v(x)}")
    k.nop(2)
    k.I(f"v_permlane32_swap_b32 {v(x)}, {v(t)}")
    k.I(f"{op} {v(x)}, {v(x)}, {v(t)}")

def unpack(k, dlo, dhi, src):
    k.I(f"v_lshlrev_b32 {v(dlo)}, 16, {v(src)}")
    k.I(f"v_and_b32 {v(dhi)}, 0xffff0000, {v(src)}")

def exit_guard(k, n):
    k.I(f"s_cmp_ge_u32 s2, {n}")
    k.I(f"s_cbranch_scc1 L_{k.name}_end")

def k_prep():
    k = Kern("prep_kernel", 90, 512, 16384 + 256, 64)
    exit_guard(k, 90)
    k.I(f"s_load_dwordx4 s[4:7], s[0:1], {A_X0}")
    k.I(f"s_load_dwordx2 s[8:9], s[0:1], {A_WR}")
    k.I(f"s_load_dwordx2 s[10:11], s[0:1], {A_WS}")
    k.I("v_and_b32 v1, 63, v0")
    k.I("v_lshrrev_b32 v2, 6, v0")
    k.I("s_waitcnt lgkmcnt(0)")
    k.I("s_cmp_ge_u32 s2, 88")
    k.I("s_cbranch_scc1 L_prep_zero")
    k.I("s_cmp_ge_u32 s2, 64")
    k.I("s_cbranch_scc1 L_prep_cs")
    k.I("v_and_b32 v3, 31, v1")
    k.I("v_lshrrev_b32 v4, 5, v1")
    k.I("s_lshl_b32 s12, s2, 15")
    k.I("v_lshlrev_b32 v5, 10, v3")
    k.I("v_lshl_add_u32 v5, v2, 7, v5")
    k.I("v_lshl_add_u32 v5, v4, 4, v5")
    k.I("v_add_u32 v5, s12, v5")
    for i in range(4):
        k.I(f"global_load_dwordx4 {vr(16+4*i,4)}, v5, s[4:5] offset:{32*i}")
    k.I("s_lshl_b32 s12, s2, 10")
    k.I("v_lshlrev_b32 v6, 18, v2")
    k.I("v_lshl_add_u32 v6, v1, 4, v6")
    k.I("v_add_u32 v6, s12, v6")
    k.I("s_waitcnt vmcnt(0)")
    for i in range(16):
        unpack(k, 32 + 2*i, 33 + 2*i, 16 + i)
    for i in range(4):
        b = 16 + 4*i
        k.I(f"v_permlane32_swap_b32 {v(b)}, {v(b+2)}")
        k.I(f"v_permlane32_swap_b32 {v(b+1)}, {v(b+3)}")
    for i in range(4):
        k.I(f"global_store_dwordx4 v6, {vr(16+4*i,4)}, s[10:11]")
        if i < 3: k.I("v_add_u32 v6, 0x10000, v6")
    k.I("v_add_f32 v7, v32, v33")
    for i in range(34, 64): k.I(f"v_add_f32 v7, v7, {v(i)}")
    halfsum(k, "v_add_f32", 7, 8)
    k.I("v_lshlrev_b32 v9, 2, v3")
    k.I("v_lshl_add_u32 v10, v2, 7, v9")
    k.I("ds_write_b32 v10, v7")
    k.I("s_waitcnt lgkmcnt(0)")
    k.I("s_barrier")
    for i in range(8): k.I(f"ds_read_b32 {v(16+i)}, v9 offset:{128*i}")
    k.I("s_waitcnt lgkmcnt(0)")
    for i in range(1, 8): k.I(f"v_add_f32 v16, v16, {v(16+i)}")
    k.I(f"v_mul_f32 v11, {hex(f2u(1/512))}, v16")
    for i in range(32, 64): k.I(f"v_sub_f32 {v(i)}, {v(i)}, v11")
    k.I("v_mul_f32 v7, v32, v32")
    for i in range(33, 64): k.I(f"v_fmac_f32 v7, {v(i)}, {v(i)}")
    halfsum(k, "v_add_f32", 7, 8)
    k.I("ds_write_b32 v10, v7 offset:1024")
    k.I("s_waitcnt lgkmcnt(0)")
    k.I("s_barrier")
    for i in range(8): k.I(f"ds_read_b32 {v(16+i)}, v9 offset:{1024+128*i}")
    k.I("s_waitcnt lgkmcnt(0)")
    for i in range(1, 8): k.I(f"v_add_f32 v16, v16, {v(16+i)}")
    k.I(f"v_mov_b32 v12, {hex(f2u(EPS))}")
    k.I(f"v_fmac_f32 v12, {hex(f2u(1/512))}, v16")
    k.I("v_rsq_f32 v12, v12")
    k.I("v_mov_b32 v13, 0")
    k.I("v_cmp_gt_u32 vcc, 32, v0")
    k.I("s_and_saveexec_b64 s[14:15], vcc")
    k.I("s_cbranch_execz L_prep_kernel_end")
    sadd64(k, 16, 10, TAB[0])
    k.I("s_lshl_b32 s12, s2, 7")
    k.I("v_add_u32 v9, s12, v9")
    k.I("global_store_dword v9, v11, s[16:17]")
    k.I("v_add_u32 v14, 0x2000, v9")
    k.I("global_store_dword v14, v12, s[16:17]")
    k.I("v_add_u32 v14, 0x4000, v9")
    k.I("global_store_dword v14, v13, s[16:17]")
    k.I("v_add_u32 v14, 0x6000, v9")
    k.I("global_store_dword v14, v13, s[16:17]")
    k.I("s_endpgm")
    k.L("L_prep_cs")
    k.I("s_sub_u32 s12, s2, 64")
    k.I("s_lshl_b32 s13, s12, 7")
    k.I("v_and_b32 v3, 7, v0")
    k.I("v_lshrrev_b32 v4, 3, v0")
    k.I(f"v_mul_u32_u24 v5, {8*3072}, v4")
    k.I("v_lshl_add_u32 v5, v3, 4, v5")
    k.I("v_add_u32 v5, s13, v5")
    for i in range(8):
        k.I(f"global_load_dwordx4 {vr(16+4*i,4)}, v5, s[6:7]")
        if i < 7: k.I("v_add_u32 v5, 3072, v5")
    k.I("s_waitcnt vmcnt(0)")
    for c in range(4):
        unpack(k, 48 + 2*c, 49 + 2*c, 16 + c)
    for i in range(1, 8):
        for c in range(4):
            unpack(k, 6, 7, 16 + 4*i + c)
            k.I(f"v_add_f32 {v(48+2*c)}, {v(48+2*c)}, v6")
            k.I(f"v_add_f32 {v(49+2*c)}, {v(49+2*c)}, v7")
    k.I("v_lshlrev_b32 v8, 8, v4")
    k.I("v_lshl_add_u32 v8, v3, 5, v8")
    k.I("ds_write_b128 v8, v[48:51]")
    k.I("ds_write_b128 v8, v[52:55] offset:16")
    k.I("s_waitcnt lgkmcnt(0)")
    k.I("s_barrier")
    k.I("v_lshlrev_b32 v9, 2, v1")
    k.I("v_lshl_add_u32 v10, v2, 11, v9")
    for i in range(8): k.I(f"ds_read_b32 {v(16+i)}, v10 offset:{256*i}")
    k.I("s_waitcnt lgkmcnt(0)")
    for i in range(1, 8): k.I(f"v_add_f32 v16, v16, {v(16+i)}")
    k.I("s_barrier")
    k.I("v_lshl_add_u32 v10, v2, 8, v9")
    k.I("ds_write_b32 v10, v16")
    k.I("s_waitcnt lgkmcnt(0)")
    k.I("s_barrier")
    for i in range(8): k.I(f"ds_read_b32 {v(16+i)}, v9 offset:{256*i}")
    k.I("s_waitcnt lgkmcnt(0)")
    for i in range(1, 8): k.I(f"v_add_f32 v16, v16, {v(16+i)}")
    k.I("v_cmp_gt_u32 vcc, 64, v0")
    k.I("s_and_saveexec_b64 s[14:15], vcc")
    k.I("s_cbranch_execz L_prep_kernel_end")
    sadd64(k, 16, 10, CS)
    k.I("s_lshl_b32 s13, s12, 8")
    k.I("v_add_u32 v9, s13, v9")
    k.I("global_store_dword v9, v16, s[16:17]")
    k.I("s_endpgm")
    k.L("L_prep_zero")
    for i in range(4): k.I(f"v_mov_b32 {v(16+i)}, 0")
    k.I("v_lshlrev_b32 v5, 4, v0")
    k.I("s_cmp_eq_u32 s2, 89")
    k.I("s_cbranch_scc1 L_prep_zero2")
    sadd64(k, 16, 10, SUMS[0])
    for i in range(8):
        k.I("global_store_dwordx4 v5, v[16:19], s[16:17]")
        if i < 7: k.I("v_add_u32 v5, 0x2000, v5")
    k.I("v_lshlrev_b32 v5, 4, v1")
    k.I("global_load_dwordx4 v[20:23], v5, s[8:9]")
    k.I("s_waitcnt vmcnt(0)")
    for c in range(4): unpack(k, 24 + 2*c, 25 + 2*c, 20 + c)
    for i in range(25, 32): k.I(f"v_add_f32 v24, v24, {v(i)}")
    allreduce(k, "v_add_f32", 24, 25)
    k.I("v_cmp_eq_u32 vcc, 0, v0")
    k.I("s_and_saveexec_b64 s[14:15], vcc")
    k.I("s_cbranch_execz L_prep_kernel_end")
    sadd64(k, 16, 10, WSUM)
    k.I("v_mov_b32 v5, 0")
    k.I("global_store_dword v5, v24, s[16:17]")
    k.I("s_endpgm")
    k.L("L_prep_zero2")
    sadd64(k, 16, 10, YB[0])
    for i in range(16):
        k.I("global_store_dwordx4 v5, v[16:19], s[16:17]")
        if i < 15: k.I("v_add_u32 v5, 0x2000, v5")
    k.L("L_prep_kernel_end")
    k.I("s_endpgm")
    return k

def gemm_main(k, ntile, wrow_bytes, tile_src_off, sW, sX, vW, vX, vT, ACC, WB, swap_tiles, early_loads, n_early):
    per = 2 * ntile + 8
    for c in range(4):
        for i in range(ntile):
            for u in range(2):
                sadd64(k, 40, sW, (128*c + 16*u) * wrow_bytes + tile_src_off[i])
                k.I(f"s_add_u32 m0, s42, {hex(i*32768 + (128*c + 16*u)*64)}")
                k.I("s_nop 0")
                k.I(f"global_load_lds_dwordx4 {v(vW)}, s[40:41]")
        for j in range(8):
            kg = 8*c + j
            sadd64(k, 40, sX, kg * 65536)
            k.I(f"global_load_dwordx4 {ar(4*kg,4)}, {v(vX)}, s[40:41]")
    def reads(ks):
        for i in range(ntile):
            base = vT + (1 if i == 2 else 0)
            off = (i % 2) * 32768 + ks * 1024
            b = WB + (ks & 1) * 4 * ntile + 4 * i
            k.I(f"ds_read_b64_tr_b16 {vr(b,2)}, {v(base)} offset:{off}")
            k.I(f"ds_read_b64_tr_b16 {vr(b+2,2)}, {v(base)} offset:{off+512}")
    k.I(f"s_waitcnt vmcnt({3*per})")
    k.I("s_barrier")
    reads(0)
    for ks in range(32):
        if ks % 8 == 7 and ks < 31:
            c = ks // 8 + 1
            left = (3 - c) * per + (n_early if c >= 2 else 0)
            k.I(f"s_waitcnt vmcnt({left})")
            k.I("s_barrier")
            if c == 1: early_loads()
        if ks < 31:
            reads(ks + 1)
            k.I(f"s_waitcnt lgkmcnt({2*ntile})")
        else:
            k.I("s_waitcnt lgkmcnt(0)")
        for i in range(ntile):
            b = WB + (ks & 1) * 4 * ntile + 4 * i
            cin = vr(ACC + 16*i, 16) if ks else "0"
            if swap_tiles[i]: k.I(f"v_mfma_f32_32x32x16_bf16 {vr(ACC+16*i,16)}, {ar(4*ks,4)}, {vr(b,4)}, {cin}")
            else:             k.I(f"v_mfma_f32_32x32x16_bf16 {vr(ACC+16*i,16)}, {vr(b,4)}, {ar(4*ks,4)}, {cin}")

def gemm_lane_setup(k, wrow_bytes):
    k.I("v_and_b32 v1, 63, v0")
    k.I("v_lshrrev_b32 v2, 6, v0")
    k.I("v_and_b32 v3, 31, v1")
    k.I("v_lshrrev_b32 v4, 5, v1")
    k.I("v_readfirstlane_b32 s43, v2")
    k.I("v_bfe_u32 v5, v1, 2, 2")
    k.I("v_lshl_add_u32 v5, v4, 2, v5")
    k.I("v_lshlrev_b32 v8, 6, v5")
    k.I("v_bfe_u32 v5, v1, 4, 1")
    k.I("v_lshl_add_u32 v8, v5, 5, v8")
    k.I("v_and_b32 v5, 3, v1")
    k.I("v_lshl_add_u32 v8, v5, 3, v8")
    k.I("v_add_u32 v9, 0x10000, v8")
    k.I("v_lshrrev_b32 v6, 2, v1")
    k.I("v_lshl_add_u32 v6, v2, 5, v6")
    k.I(f"v_mul_u32_u24 v6, {wrow_bytes}, v6")
    k.I("v_lshl_add_u32 v6, v5, 4, v6")
    k.I("s_lshl_b32 s42, s43, 11")

def k_qkv(layer):
    k = Kern(f"qkv{layer}_kernel", 256, 256, 98304, 168, nagpr=128)
    exit_guard(k, 256)
    k.I(f"s_load_dwordx2 s[4:5], s[0:1], {A_WQKV}")
    k.I(f"s_load_dwordx2 s[10:11], s[0:1], {A_WS}")
    gemm_lane_setup(k, 3072)
    k.I("s_and_b32 s12, s2, 7")
    k.I("s_lshl_b32 s12, s12, 1")
    k.I("s_bfe_u32 s13, s2, 0x10003")
    k.I("s_add_u32 s12, s12, s13")
    k.I("s_lshr_b32 s13, s2, 4")
    k.I("s_lshl_b32 s13, s13, 2")
    k.I("s_add_u32 s13, s13, s43")
    k.I("s_lshl_b32 s14, s12, 6")
    k.I("v_add_u32 v6, s14, v6")
    k.I("s_lshl_b32 s14, s13, 10")
    k.I("v_lshlrev_b32 v7, 4, v1")
    k.I("v_add_u32 v7, s14, v7")
    k.I("s_waitcnt lgkmcnt(0)")
    sadd64(k, 6, 10, XF[layer])
    ACC, WB = 16, 64
    CQ, CK, MV, AV, CV, MT, AT = 88, 104, 120, 136, 152, 153, 154
    def early():
        sadd64(k, 16, 10, CS)
        sadd64(k, 18, 10, TAB[layer])
        k.I("s_lshl_b32 s14, s12, 7")
        k.I("v_lshlrev_b32 v10, 4, v4")
        k.I("v_add_u32 v10, s14, v10")
        for g in range(4): k.I(f"global_load_dwordx4 {vr(CQ+4*g,4)}, v10, s[16:17] offset:{32*g}")
        for g in range(4): k.I(f"global_load_dwordx4 {vr(CK+4*g,4)}, v10, s[16:17] offset:{2048+32*g}")
        k.I("v_lshlrev_b32 v11, 2, v3")
        k.I("v_add_u32 v10, s14, v11")
        k.I("v_add_u32 v10, 0x1000, v10")
        k.I(f"global_load_dword {v(CV)}, v10, s[16:17]")
        k.I("s_lshl_b32 s14, s13, 7")
        k.I("v_add_u32 v10, s14, v11")
        k.I(f"global_load_dword {v(MT)}, v10, s[18:19]")
        k.I("v_add_u32 v10, 0x2000, v10")
        k.I(f"global_load_dword {v(AT)}, v10, s[18:19]")
        k.I("v_lshlrev_b32 v10, 4, v4")
        k.I("v_add_u32 v10, s14, v10")
        for g in range(4): k.I(f"global_load_dwordx4 {vr(MV+4*g,4)}, v10, s[18:19] offset:{32*g}")
        k.I("v_add_u32 v10, 0x2000, v10")
        for g in range(4): k.I(f"global_load_dwordx4 {vr(AV+4*g,4)}, v10, s[18:19] offset:{32*g}")
    gemm_main(k, 3, 3072, [0, 1024, 2048], 4, 6, 6, 7, 8, ACC, WB, [False, False, True], early, 19)
    k.I("s_waitcnt vmcnt(0)")
    k.I("s_lshl_b32 s14, s12, 17")
    k.I("v_add_u32 v7, s14, v7")
    k.I("v_add_u32 v10, 0x10000, v7")
    k.I("v_bfe_u32 v11, v1, 4, 1")
    k.I("v_lshlrev_b32 v11, 16, v11")
    k.I("v_lshl_add_u32 v11, v4, 8, v11")
    k.I("v_and_b32 v5, 15, v1")
    k.I("v_lshl_add_u32 v11, v5, 4, v11")
    k.I("s_lshl_b32 s15, s13, 10")
    k.I("s_add_u32 s14, s14, s15")
    k.I("v_add_u32 v11, s14, v11")
    sadd64(k, 20, 10, QF); sadd64(k, 22, 10, KF); sadd64(k, 24, 10, VF)
    k.I(f"v_mul_f32 v12, {hex(f2u(QSCALE))}, {v(AT)}")
    k.nop(4)
    T = WB
    for i, (cs, al, base) in enumerate(((CQ, 12, 20), (CK, AT, 22))):
        for r in range(16):
            k.I(f"v_fma_f32 {v(ACC+16*i+r)}, -{v(MT)}, {v(cs+r)}, {v(ACC+16*i+r)}")
        for r in range(16):
            k.I(f"v_mul_f32 {v(ACC+16*i+r)}, {v(al)}, {v(ACC+16*i+r)}")
        for r in range(8):
            k.I(f"v_cvt_pk_bf16_f32 {v(T+8*i+r)}, {v(ACC+16*i+2*r)}, {v(ACC+16*i+2*r+1)}")
        k.I(f"global_store_dwordx4 v7, {vr(T+8*i,4)}, {sr(base,2)}")
        k.I(f"global_store_dwordx4 v10, {vr(T+8*i+4,4)}, {sr(base,2)}")
    for r in range(16):
        k.I(f"v_fma_f32 {v(ACC+32+r)}, -{v(MV+r)}, {v(CV)}, {v(ACC+32+r)}")
    for r in range(16):
        k.I(f"v_mul_f32 {v(ACC+32+r)}, {v(AV+r)}, {v(ACC+32+r)}")
    for r in range(8):
        k.I(f"v_cvt_pk_bf16_f32 {v(T+16+r)}, {v(ACC+32+2*r)}, {v(ACC+32+2*r+1)}")
    k.I(f"global_store_dwordx4 v11, {vr(T+16,4)}, s[24:25]")
    k.I(f"global_store_dwordx4 v11, {vr(T+20,4)}, s[24:25] offset:512")
    k.L(f"L_{k.name}_end")
    k.I("s_endpgm")
    return k

def k_oproj(layer):
    k = Kern(f"oproj{layer}_kernel", 256, 256, 32768, 128, nagpr=128)
    exit_guard(k, 256)
    k.I(f"s_load_dwordx2 s[4:5], s[0:1], {A_WO}")
    k.I(f"s_load_dwordx2 s[8:9], s[0:1], {A_WR}")
    k.I(f"s_load_dwordx2 s[10:11], s[0:1], {A_WS}")
    gemm_lane_setup(k, 1024)
    k.I("s_and_b32 s13, s2, 7")
    k.I("s_lshl_b32 s13, s13, 1")
    k.I("s_bfe_u32 s12, s2, 0x10003")
    k.I("s_add_u32 s13, s13, s12")
    k.I("s_lshl_b32 s13, s13, 2")
    k.I("s_add_u32 s13, s13, s43")
    k.I("s_lshr_b32 s12, s2, 4")
    k.I("s_lshl_b32 s14, s12, 6")
    k.I("v_add_u32 v6, s14, v6")
    k.I("s_lshl_b32 s14, s13, 10")
    k.I("v_lshlrev_b32 v7, 4, v1")
    k.I("v_add_u32 v7, s14, v7")
    k.I("s_waitcnt lgkmcnt(0)")
    sadd64(k, 6, 10, OF)
    ACC, WB = 16, 32
    R, WR, MT, RT = 40, 48, 56, 57
    X, Y = 64, 80
    def early():
        sadd64(k, 16, 10, XF[layer])
        sadd64(k, 18, 10, TAB[layer] + 0x4000)
        k.I("s_lshl_b32 s14, s12, 17")
        k.I("v_add_u32 v10, s14, v7")
        k.I("v_add_u32 v11, 0x10000, v10")
        k.I(f"global_load_dwordx4 {vr(R,4)}, v10, s[16:17]")
        k.I(f"global_load_dwordx4 {vr(R+4,4)}, v11, s[16:17]")
        k.I("s_lshl_b32 s14, s12, 6")
        k.I("v_lshlrev_b32 v12, 3, v4")
        k.I("v_add_u32 v12, s14, v12")
        for g in range(4): k.I(f"global_load_dwordx2 {vr(WR+2*g,2)}, v12, s[8:9] offset:{16*g}")
        k.I("s_lshl_b32 s14, s13, 7")
        k.I("v_lshlrev_b32 v13, 2, v3")
        k.I("v_add_u32 v13, s14, v13")
        k.I(f"global_load_dword {v(MT)}, v13, s[18:19]")
        k.I("v_add_u32 v12, 0x2000, v13")
        k.I(f"global_load_dword {v(RT)}, v12, s[18:19]")
    gemm_main(k, 1, 1024, [0], 4, 6, 6, 7, 8, ACC, WB, [False], early, 8)
    k.I("s_waitcnt vmcnt(0)")
    sadd64(k, 20, 10, XF[layer + 1])
    sadd64(k, 22, 10, SUMS[layer])
    for i in range(8): unpack(k, X + 2*i, X + 2*i + 1, R + i)
    if layer == 1:
        for r in range(16): k.I(f"v_sub_f32 {v(Y+r)}, {v(X+r)}, {v(MT)}")
        for r in range(16): k.I(f"v_mul_f32 {v(Y+r)}, {v(Y+r)}, {v(RT)}")
        for i in range(8): k.I(f"v_cvt_pk_bf16_f32 {v(R+i)}, {v(Y+2*i)}, {v(Y+2*i+1)}")
        for i in range(8): unpack(k, Y + 2*i, Y + 2*i + 1, R + i)
        for r in range(16): k.I(f"v_add_f32 {v(X+r)}, {v(X+r)}, {v(Y+r)}")
        for i in range(8): k.I(f"v_cvt_pk_bf16_f32 {v(R+i)}, {v(X+2*i)}, {v(X+2*i+1)}")
        for i in range(8): unpack(k, X + 2*i, X + 2*i + 1, R + i)
    else:
        k.nop(4)
    for i in range(8): k.I(f"v_cvt_pk_bf16_f32 {v(R+i)}, {v(ACC+2*i)}, {v(ACC+2*i+1)}")
    for i in range(8): unpack(k, Y + 2*i, Y + 2*i + 1, R + i)
    for r in range(16): k.I(f"v_add_f32 {v(X+r)}, {v(X+r)}, {v(Y+r)}")
    for i in range(8): k.I(f"v_cvt_pk_bf16_f32 {v(R+i)}, {v(X+2*i)}, {v(X+2*i+1)}")
    k.I(f"global_store_dwordx4 v10, {vr(R,4)}, s[20:21]")
    k.I(f"global_store_dwordx4 v11, {vr(R+4,4)}, s[20:21]")
    for i in range(8): unpack(k, X + 2*i, X + 2*i + 1, R + i)
    for i in range(8): unpack(k, Y + 2*i, Y + 2*i + 1, WR + i)
    k.I(f"v_add_f32 v14, {v(X)}, {v(X+1)}")
    k.I(f"v_mul_f32 v15, {v(X)}, {v(X)}")
    k.I(f"v_mul_f32 v16, {v(X)}, {v(Y)}")
    for r in range(1, 16):
        if r > 1: k.I(f"v_add_f32 v14, v14, {v(X+r)}")
        k.I(f"v_fmac_f32 v15, {v(X+r)}, {v(X+r)}")
        k.I(f"v_fmac_f32 v16, {v(X+r)}, {v(Y+r)}")
    k.nop(2)
    k.I("v_permlane32_swap_b32 v14, v15")
    k.I("v_add_f32 v14, v14, v15")
    halfsum(k, "v_add_f32", 16, 17)
    k.I("v_lshl_add_u32 v12, v4, 13, v13")
    k.I("global_atomic_add_f32 v12, v14, s[22:23]")
    k.I("v_add_u32 v12, 0x4000, v13")
    k.I("v_cmp_gt_u32 vcc, 32, v1")
    k.I("s_and_saveexec_b64 s[14:15], vcc")
    k.I("global_atomic_add_f32 v12, v16, s[22:23]")
    k.L(f"L_{k.name}_end")
    k.I("s_endpgm")
    return k

def k_attn(layer):
    k = Kern(f"attn{layer}_kernel", 256, 512, 131072 + 2048, 112)
    n = k.name
    exit_guard(k, 256)
    k.I(f"s_load_dwordx2 s[10:11], s[0:1], {A_WS}")
    Q, KB, V0, V1, P0, P1 = 8, 12, 16, 20, 24, 28
    NEG, S0, S1, O = 32, 48, 64, 80
    k.I("v_and_b32 v1, 63, v0")
    k.I("v_lshrrev_b32 v2, 6, v0")
    k.I("v_lshlrev_b32 v3, 4, v1")
    k.I("v_readfirstlane_b32 s43, v2")
    k.I("s_and_b32 s12, s2, 7")
    k.I("s_lshl_b32 s12, s12, 2")
    k.I("s_bfe_u32 s13, s2, 0x20003")
    k.I("s_add_u32 s12, s12, s13")
    k.I("s_lshr_b32 s13, s2, 5")
    k.I("s_lshl_b32 s13, s13, 3")
    k.I("s_add_u32 s13, s13, s43")
    k.I("s_lshl_b32 s14, s12, 16")
    k.I("s_lshl_b32 s15, s13, 10")
    k.I("s_add_u32 s15, s15, s14")
    k.I("s_lshl_b32 s42, s43, 10")
    k.I("s_add_u32 s14, s14, s42")
    k.I("v_add_u32 v4, s15, v3")
    k.I("v_add_u32 v5, s14, v3")
    k.I("s_waitcnt lgkmcnt(0)")
    sadd64(k, 16, 10, QF); sadd64(k, 18, 10, KF); sadd64(k, 20, 10, VF); sadd64(k, 22, 10, OF)
    k.I(f"global_load_dwordx4 {vr(Q,4)}, v4, s[16:17]")
    for c in range(8):
        k.I(f"s_add_u32 m0, s42, {hex(c*8192)}")
        k.I("s_nop 0")
        k.I("global_load_lds_dwordx4 v5, s[18:19]")
        k.I(f"s_add_u32 m0, s42, {hex(65536 + c*8192)}")
        k.I("s_nop 0")
        k.I("global_load_lds_dwordx4 v5, s[20:21]")
        if c < 7: k.I("v_add_u32 v5, 0x2000, v5")
    k.I("v_and_b32 v6, 31, v1")
    k.I("v_and_b32 v7, 27, v1")
    k.I("v_mov_b32 v2, 0x3f803f80")
    k.I("v_cmp_eq_u32 vcc, 16, v7")
    k.nop(2)
    k.I("v_cndmask_b32 v7, 0, v2, vcc")
    for r in range(8): k.I(f"v_mov_b32 {v(V0+r)}, v7")
    k.I("v_cmp_gt_u32 vcc, 16, v6")
    k.I("s_mov_b64 s[24:25], vcc")
    k.I("v_lshrrev_b32 v7, 5, v1")
    k.I("v_lshlrev_b32 v6, 4, v6")
    k.I("v_lshl_add_u32 v6, v7, 8, v6")
    k.I("v_add_u32 v6, 0x10000, v6")
    k.I("s_mov_b32 s26, 0")
    k.I(f"s_mov_b32 s27, {hex(f2u(2.0**30))}")
    k.I("s_waitcnt vmcnt(14)")
    k.I("s_barrier")
    k.I(f"ds_read_b128 {vr(KB,4)}, v3")
    k.I("s_waitcnt lgkmcnt(0)")
    k.I(f"v_mfma_f32_32x32x16_bf16 {vr(S0,16)}, {vr(KB,4)}, {vr(Q,4)}, 0")
    k.nop(12)
    def max16(dst, S, first):
        if first:
            k.I(f"v_max3_f32 {v(dst)}, {v(S)}, {v(S+1)}, {v(S+2)}")
            rest = list(range(3, 16))
        else:
            rest = list(range(16))
        while rest:
            if len(rest) >= 2:
                k.I(f"v_max3_f32 {v(dst)}, {v(dst)}, {v(S+rest[0])}, {v(S+rest[1])}"); rest = rest[2:]
            else:
                k.I(f"v_max_f32 {v(dst)}, {v(dst)}, {v(S+rest[0])}"); rest = rest[1:]
    max16(2, S0, True)
    k.L(f"L_{n}_setshift")
    halfsum(k, "v_max_f32", 2, 7)
    for r in range(16): k.I(f"v_sub_f32 {v(NEG+r)}, 0, v2")
    for r in range(16): k.I(f"v_mov_b32 {v(O+r)}, 0")
    k.I("v_mov_b32 v96, v3")
    k.I("v_mov_b32 v97, v6")
    k.I(f"ds_read_b128 {vr(KB,4)}, v96")
    k.I("s_waitcnt lgkmcnt(0)")
    k.I(f"v_mfma_f32_32x32x16_bf16 {vr(S0,16)}, {vr(KB,4)}, {vr(Q,4)}, {vr(NEG,16)}")
    k.I(f"ds_read_b128 {vr(KB,4)}, v96 offset:1024")
    k.I("s_mov_b64 exec, s[24:25]")
    k.I(f"ds_read_b128 {vr(V0,4)}, v97")
    k.I(f"ds_read_b128 {vr(V1,4)}, v97 offset:512")
    k.I("s_mov_b64 exec, -1")
    k.I("s_mov_b32 s28, 0")
    k.nop(6)
    k.lines.append(".p2align 6")
    k.L(f"L_{n}_loop")
    for u in range(8):
        Sc, Sn = (S0, S1) if u % 2 == 0 else (S1, S0)
        if u == 6:
            k.I("s_cmp_lg_u32 s26, 0")
            k.I(f"s_cbranch_scc1 L_{n}_nobar")
            k.I("s_cmp_ge_u32 s28, 3")
            k.I(f"s_cbranch_scc1 L_{n}_nobar")
            k.I("s_cmp_eq_u32 s28, 0")
            k.I(f"s_cbranch_scc0 L_{n}_w1")
            k.I("s_waitcnt vmcnt(12)")
            k.I(f"s_branch L_{n}_bar")
            k.L(f"L_{n}_w1")
            k.I("s_cmp_eq_u32 s28, 1")
            k.I(f"s_cbranch_scc0 L_{n}_w2")
            k.I("s_waitcnt vmcnt(8)")
            k.I(f"s_branch L_{n}_bar")
            k.L(f"L_{n}_w2")
            k.I("s_waitcnt vmcnt(0)")
            k.L(f"L_{n}_bar")
            k.I("s_barrier")
            k.L(f"L_{n}_nobar")
        k.I("s_waitcnt lgkmcnt(2)")
        k.I(f"v_mfma_f32_32x32x16_bf16 {vr(Sn,16)}, {vr(KB,4)}, {vr(Q,4)}, {vr(NEG,16)}")
        k.I(f"ds_read_b128 {vr(KB,4)}, v96 offset:{(u+2)*1024}")
        for hh, (P, VV) in enumerate(((P0, V0), (P1, V1))):
            b = Sc + 8*hh
            for r in range(8): k.I(f"v_exp_f32 {v(b+r)}, {v(b+r)}")
            for r in range(4): k.I(f"v_cvt_pk_bf16_f32 {v(P+r)}, {v(b+2*r)}, {v(b+2*r+1)}")
            k.I("s_waitcnt lgkmcnt(2)")
            k.I("s_nop 0")
            k.I(f"v_mfma_f32_32x32x16_bf16 {vr(O,16)}, {vr(VV,4)}, {vr(P,4)}, {vr(O,16)}")
            k.I("s_mov_b64 exec, s[24:25]")
            k.I(f"ds_read_b128 {vr(VV,4)}, v97 offset:{(u+1)*1024 + 512*hh}")
            k.I("s_mov_b64 exec, -1")
    k.I("v_add_u32 v96, 0x2000, v96")
    k.I("v_add_u32 v97, 0x2000, v97")
    k.I("s_add_u32 s28, s28, 1")
    k.I("s_cmp_lt_u32 s28, 8")
    k.I(f"s_cbranch_scc1 L_{n}_loop")
    k.I("s_waitcnt lgkmcnt(0)")
    k.nop(12)
    k.I("s_cmp_lg_u32 s26, 0")
    k.I(f"s_cbranch_scc1 L_{n}_fin")
    k.I(f"v_cmp_nge_f32 vcc, s27, {v(O+8)}")
    k.nop(2)
    k.I(f"s_cbranch_vccz L_{n}_fin")
    k.I("s_mov_b32 s26, 1")
    k.I("v_mov_b32 v96, v3")
    k.I("v_mov_b32 v2, 0xff800000")
    k.I("s_mov_b32 s28, 0")
    k.L(f"L_{n}_maxloop")
    k.I(f"ds_read_b128 {vr(KB,4)}, v96")
    k.I("s_waitcnt lgkmcnt(0)")
    k.I(f"v_mfma_f32_32x32x16_bf16 {vr(S0,16)}, {vr(KB,4)}, {vr(Q,4)}, 0")
    k.I("v_add_u32 v96, 0x400, v96")
    k.nop(12)
    max16(2, S0, False)
    k.I("s_add_u32 s28, s28, 1")
    k.I("s_cmp_lt_u32 s28, 64")
    k.I(f"s_cbranch_scc1 L_{n}_maxloop")
    k.I(f"s_branch L_{n}_setshift")
    k.L(f"L_{n}_fin")
    k.I(f"v_rcp_f32 v2, {v(O+8)}")
    k.I("s_nop 0")
    for r in range(8): k.I(f"v_mul_f32 {v(O+r)}, {v(O+r)}, v2")
    for r in range(4): k.I(f"v_cvt_pk_bf16_f32 {v(P0+r)}, {v(O+2*r)}, {v(O+2*r+1)}")
    k.I(f"global_store_dwordx4 v4, {vr(P0,4)}, s[22:23]")
    k.L(f"L_{n}_end")
    k.I("s_endpgm")
    return k

def bf16r(k, x, t=None):
    k.I(f"v_cvt_pk_bf16_f32 {v(x)}, {v(x)}, {v(x)}")
    k.I(f"v_and_b32 {v(x)}, 0xffff0000, {v(x)}")

def k_ffn(layer):
    LM, LR, LS, LV, LRED, LP = 0, 8192, 16384, 24576, 32768, 32768 + 1024
    PITCH = 80
    k = Kern(f"ffn{layer}_kernel", 256, 256, LP + 256 * PITCH, 128)
    n = k.name
    exit_guard(k, 256)
    k.I(f"s_load_dwordx4 s[4:7], s[0:1], {A_WG}")
    k.I(f"s_load_dwordx4 s[12:15], s[0:1], {A_WD}")
    k.I(f"s_load_dwordx4 s[8:11], s[0:1], {A_DBG}")
    k.I("v_and_b32 v1, 63, v0")
    k.I("v_lshrrev_b32 v2, 6, v0")
    k.I("v_lshlrev_b32 v3, 5, v0")
    k.I("s_waitcnt lgkmcnt(0)")
    sadd64(k, 16, 10, SUMS[layer])
    sadd64(k, 18, 10, WSUM)
    k.I("s_load_dword s20, s[18:19], 0")
    S1, S2, S3 = 16, 24, 32
    G, D = 64, 80
    for i, b in enumerate((S1, S2, S3)):
        k.I(f"global_load_dwordx4 {vr(b,4)}, v3, s[16:17]")
        k.I(f"global_load_dwordx4 {vr(b+4,4)}, v3, s[16:17] offset:16")
        if i < 2: k.I("v_add_u32 v3, 0x2000, v3")
    k.I("s_cmp_ge_u32 s2, 224")
    k.I(f"s_cbranch_scc1 L_{n}_now")
    k.I("s_and_b32 s21, s2, 7")
    k.I("s_mul_i32 s21, s21, 28")
    k.I("s_lshr_b32 s22, s2, 3")
    k.I("s_add_u32 s21, s21, s22")
    k.I("s_lshl_b32 s22, s21, 4")
    k.I(f"v_mul_u32_u24 v4, {2*3584}, v0")
    k.I("v_add_u32 v4, s22, v4")
    k.I(f"global_load_dwordx4 {vr(G,4)}, v4, s[4:5]")
    k.I(f"global_load_dwordx4 {vr(G+4,4)}, v4, s[4:5] offset:3584")
    k.I(f"global_load_dwordx4 {vr(G+8,4)}, v4, s[6:7]")
    k.I(f"global_load_dwordx4 {vr(G+12,4)}, v4, s[6:7] offset:3584")
    k.I("s_lshl_b32 s22, s21, 13")
    k.I("v_lshlrev_b32 v4, 2, v0")
    k.I("v_add_u32 v4, s22, v4")
    k.I("v_add_u32 v5, 0x1000, v4")
    for f in range(8):
        k.I(f"global_load_dword {v(D+f)}, {v(4 if f < 4 else 5)}, s[12:13] offset:{1024*(f%4)}")
    k.I("s_waitcnt vmcnt(12)")
    k.I(f"s_branch L_{n}_stats")
    k.L(f"L_{n}_now")
    k.I("s_waitcnt vmcnt(0)")
    k.L(f"L_{n}_stats")
    k.I("s_waitcnt lgkmcnt(0)")
    k.I(f"s_mov_b32 s23, {hex(f2u(1/512))}")
    k.I(f"s_mov_b32 s24, {hex(f2u(EPS))}")
    k.I("v_lshlrev_b32 v3, 3, v0")
    k.I("v_sub_u32 v3, 2047, v3")
    for i in range(8):
        m, q, d = S1 + i, S2 + i, S3 + i
        k.I(f"v_mul_f32 {v(m)}, s23, {v(m)}")
        k.I(f"v_mul_f32 {v(q)}, s23, {v(q)}")
        k.I(f"v_fma_f32 {v(q)}, -{v(m)}, {v(m)}, {v(q)}")
        k.I(f"v_max_f32 {v(q)}, 0, {v(q)}")
        k.I(f"v_mov_b32 {v(40+i)}, {v(q)}")
        k.I(f"v_add_f32 {v(q)}, s24, {v(q)}")
        k.I(f"v_rsq_f32 {v(q)}, {v(q)}")
        k.I(f"v_fma_f32 {v(d)}, -{v(m)}, s20, {v(d)}")
        k.I(f"v_mul_f32 {v(d)}, {v(d)}, {v(q)}")
        k.I(f"v_ashrrev_i32 v6, 31, {v(d)}")
        k.I("v_or_b32 v6, 0x80000000, v6")
        k.I(f"v_xor_b32 v6, v6, {v(d)}")
        k.I("v_and_b32 v6, 0xfffff800, v6")
        k.I(f"v_subrev_u32 v7, {i}, v3")
        k.I("v_or_b32 v6, v6, v7")
        if i == 0: k.I("v_mov_b32 v8, v6")
        else: k.I("v_max_u32 v8, v8, v6")
    k.I("v_lshlrev_b32 v3, 5, v0")
    for b, off in ((S1, LM), (S2, LR), (S3, LS), (40, LV)):
        k.I(f"ds_write_b128 v3, {vr(b,4)} offset:{off}")
        k.I(f"ds_write_b128 v3, {vr(b+4,4)} offset:{off+16}")
    allreduce(k, "v_max_u32", 8, 9)
    k.I("v_lshlrev_b32 v9, 2, v2")
    k.I(f"ds_write_b32 v9, v8 offset:{LRED}")
    k.I("s_waitcnt lgkmcnt(0)")
    k.I("s_barrier")
    k.I("v_mov_b32 v9, 0")
    k.I(f"ds_read_b128 v[48:51], v9 offset:{LRED}")
    k.I("s_waitcnt lgkmcnt(0)")
    k.I("v_max_u32 v48, v48, v49")
    k.I("v_max3_u32 v48, v48, v50, v51")
    k.I("v_and_b32 v48, 0x7ff, v48")
    k.I("v_sub_u32 v48, 2047, v48")
    k.I("s_nop 0")
    k.I("v_readfirstlane_b32 s25, v48")
    k.I("v_lshlrev_b32 v9, 2, v48")
    k.I(f"ds_read_b32 v50, v9 offset:{LM}")
    k.I(f"ds_read_b32 v51, v9 offset:{LR}")
    k.I(f"ds_read_b32 v52, v9 offset:{LS}")
    sadd64(k, 26, 10, XF[layer + 1])
    k.I("v_lshrrev_b32 v10, 3, v0")
    k.I("v_lshlrev_b32 v10, 16, v10")
    k.I("v_bfe_u32 v11, v0, 1, 1")
    k.I("v_lshl_add_u32 v10, v11, 9, v10")
    k.I("v_bfe_u32 v11, v0, 2, 1")
    k.I("v_lshl_add_u32 v10, v11, 3, v10")
    k.I("v_and_b32 v11, 1, v0")
    k.I("v_lshl_add_u32 v10, v11, 2, v10")
    k.I("s_lshr_b32 s28, s25, 5")
    k.I("s_lshl_b32 s28, s28, 10")
    k.I("s_and_b32 s29, s25, 31")
    k.I("s_lshl_b32 s29, s29, 4")
    k.I("s_add_u32 s28, s28, s29")
    k.I("v_add_u32 v10, s28, v10")
    k.I("global_load_dword v53, v10, s[26:27]")
    if layer == 0:
        sadd64(k, 30, 10, TAB[1])
        k.I("s_lshl_b32 s28, s2, 3")
        k.I("v_add_u32 v11, s28, v0")
        k.I("v_lshlrev_b32 v12, 2, v11")
        k.I("v_cmp_gt_u32 vcc, 8, v0")
        k.I("v_cmp_ne_u32 s[32:33], s25, v11")
        k.nop(1)
        k.I("s_and_b64 vcc, vcc, s[32:33]")
        k.I("s_and_saveexec_b64 s[32:33], vcc")
        k.I(f"s_cbranch_execz L_{n}_side_done")
        k.I(f"ds_read_b32 v13, v12 offset:{LM}")
        k.I(f"ds_read_b32 v14, v12 offset:{LR}")
        k.I(f"ds_read_b32 v15, v12 offset:{LV}")
        k.I("s_waitcnt lgkmcnt(0)")
        k.I("v_add_f32 v54, 1.0, v14")
        k.I("v_mul_f32 v15, v15, v54")
        k.I("v_mov_b32 v55, s24")
        k.I("v_fmac_f32 v55, v15, v54")
        k.I("v_rsq_f32 v55, v55")
        k.I("s_nop 0")
        k.I("v_mul_f32 v55, v55, v54")
        k.I("global_store_dword v12, v13, s[30:31]")
        k.I("v_add_u32 v12, 0x2000, v12")
        k.I("global_store_dword v12, v55, s[30:31]")
        k.I("v_add_u32 v12, 0x2000, v12")
        k.I("global_store_dword v12, v13, s[30:31]")
        k.I("v_add_u32 v12, 0x2000, v12")
        k.I("global_store_dword v12, v14, s[30:31]")
        k.L(f"L_{n}_side_done")
        k.I("s_mov_b64 exec, -1")
    else:
        X, Y, R = 88, 104, 120
        k.I("s_lshr_b32 s28, s2, 2")
        k.I("s_and_b32 s29, s2, 3")
        k.I("s_lshl_b32 s34, s29, 19")
        k.I("s_lshl_b32 s35, s28, 10")
        k.I("s_add_u32 s34, s34, s35")
        k.I("v_lshlrev_b32 v11, 17, v2")
        k.I("v_lshl_add_u32 v11, v1, 4, v11")
        k.I("v_add_u32 v11, s34, v11")
        k.I("v_add_u32 v12, 0x10000, v11")
        k.I(f"global_load_dwordx4 {vr(R,4)}, v11, s[26:27]")
        k.I(f"global_load_dwordx4 {vr(R+4,4)}, v12, s[26:27]")
        k.I("v_and_b32 v13, 31, v1")
        k.I("s_lshl_b32 s35, s28, 5")
        k.I("v_add_u32 v13, s35, v13")
        k.I("v_lshlrev_b32 v14, 2, v13")
        k.I(f"ds_read_b32 v54, v14 offset:{LM}")
        k.I(f"ds_read_b32 v55, v14 offset:{LR}")
        k.I("v_lshlrev_b32 v14, 10, v13")
        k.I("v_lshl_add_u32 v14, v2, 6, v14")
        k.I("v_lshrrev_b32 v15, 5, v1")
        k.I("v_lshl_add_u32 v14, v15, 4, v14")
        k.I("s_lshl_b32 s35, s29, 8")
        k.I("v_add_u32 v14, s35, v14")
        k.I("s_waitcnt vmcnt(0) lgkmcnt(0)")
        for i in range(8): unpack(k, X + 2*i, X + 2*i + 1, R + i)
        for r in range(16): k.I(f"v_sub_f32 {v(Y+r)}, {v(X+r)}, v54")
        for r in range(16): k.I(f"v_mul_f32 {v(Y+r)}, {v(Y+r)}, v55")
        for i in range(8): k.I(f"v_cvt_pk_bf16_f32 {v(R+i)}, {v(Y+2*i)}, {v(Y+2*i+1)}")
        for i in range(8): unpack(k, Y + 2*i, Y + 2*i + 1, R + i)
        for r in range(16): k.I(f"v_add_f32 {v(X+r)}, {v(X+r)}, {v(Y+r)}")
        for i in range(8): k.I(f"v_cvt_pk_bf16_f32 {v(R+i)}, {v(X+2*i)}, {v(X+2*i+1)}")
        k.nop(1)
        for b in (R, R + 4):
            k.I(f"v_permlane32_swap_b32 {v(b)}, {v(b+2)}")
            k.I(f"v_permlane32_swap_b32 {v(b+1)}, {v(b+3)}")
        k.I("v_cmp_ne_u32 vcc, s25, v13")
        k.I("s_and_saveexec_b64 s[32:33], vcc")
        k.I(f"global_store_dwordx4 v14, {vr(R,4)}, s[14:15]")
        k.I(f"global_store_dwordx4 v14, {vr(R+4,4)}, s[14:15] offset:32")
        k.I("s_mov_b64 exec, -1")
    k.I("s_cmp_ge_u32 s2, 224")
    k.I(f"s_cbranch_scc1 L_{n}_end")
    k.I("s_waitcnt vmcnt(0) lgkmcnt(0)")
    unpack(k, 56, 57, 53)
    k.I("v_sub_f32 v58, v56, v50")
    k.I("v_sub_f32 v59, v57, v50")
    k.I("v_mul_f32 v58, v58, v51")
    k.I("v_mul_f32 v59, v59, v51")
    k.I("v_cvt_pk_bf16_f32 v59, v58, v59")
    unpack(k, 58, 59, 59)
    PA = 16
    for mtx in range(2):
        for c in range(4):
            unpack(k, 6, 7, G + 8*mtx + c)
            k.I(f"v_mul_f32 {v(PA+8*mtx+2*c)}, v58, v6")
            k.I(f"v_mul_f32 {v(PA+8*mtx+2*c+1)}, v58, v7")
            unpack(k, 6, 7, G + 8*mtx + 4 + c)
            k.I(f"v_fmac_f32 {v(PA+8*mtx+2*c)}, v59, v6")
            k.I(f"v_fmac_f32 {v(PA+8*mtx+2*c+1)}, v59, v7")
    k.I(f"v_mul_u32_u24 v9, {PITCH}, v0")
    for i in range(4): k.I(f"ds_write_b128 v9, {vr(PA+4*i,4)} offset:{LP+16*i}")
    k.I("s_waitcnt lgkmcnt(0)")
    k.I("s_barrier")
    k.I("v_lshrrev_b32 v9, 4, v0")
    k.I(f"v_mul_u32_u24 v9, {16*PITCH}, v9")
    k.I("v_and_b32 v11, 15, v0")
    k.I("v_lshl_add_u32 v9, v11, 2, v9")
    for i in range(16): k.I(f"ds_read_b32 {v(PA+i)}, v9 offset:{LP+PITCH*i}")
    k.I("s_waitcnt lgkmcnt(0)")
    for i in range(1, 16): k.I(f"v_add_f32 {v(PA)}, {v(PA)}, {v(PA+i)}")
    for sw in ("v_permlane16_swap_b32", "v_permlane32_swap_b32"):
        k.I(f"v_mov_b32 v6, {v(PA)}")
        k.nop(2)
        k.I(f"{sw} {v(PA)}, v6")
        k.I(f"v_add_f32 {v(PA)}, {v(PA)}, v6")
    k.I("v_lshlrev_b32 v9, 2, v11")
    k.I("v_lshl_add_u32 v12, v2, 6, v9")
    k.I(f"ds_write_b32 v12, {v(PA)} offset:{LRED+64}")
    k.I("s_waitcnt lgkmcnt(0)")
    k.I("s_barrier")
    for i in range(4): k.I(f"ds_read_b32 {v(PA+i)}, v9 offset:{LRED+64+64*i}")
    k.I("s_waitcnt lgkmcnt(0)")
    k.I(f"v_add_f32 {v(PA)}, {v(PA)}, {v(PA+1)}")
    k.I(f"v_add_f32 {v(PA+2)}, {v(PA+2)}, {v(PA+3)}")
    k.I(f"v_add_f32 {v(PA)}, {v(PA)}, {v(PA+2)}")
    bf16r(k, PA)
    k.I(f"v_mul_f32 v6, {hex(f2u(-LOG2E))}, {v(PA)}")
    k.I("v_exp_f32 v6, v6")
    k.I("s_nop 0")
    k.I("v_add_f32 v6, 1.0, v6")
    k.I("v_rcp_f32 v6, v6")
    k.I("s_nop 0")
    k.I(f"v_mul_f32 v6, v6, {v(PA)}")
    bf16r(k, 6)
    k.nop(2)
    k.I(f"v_mul_f32_dpp v6, {v(PA)}, v6 row_ror:8 row_mask:0xf bank_mask:0xf")
    bf16r(k, 6)
    k.nop(1)
    for f in range(8): k.I(f"v_readlane_b32 {s(36+f)}, v6, {f}")
    k.nop(2)
    for f in range(8):
        unpack(k, 6, 7, D + f)
        if f == 0:
            k.I(f"v_mul_f32 v60, {s(36+f)}, v6")
            k.I(f"v_mul_f32 v61, {s(36+f)}, v7")
        else:
            k.I(f"v_fmac_f32 v60, {s(36+f)}, v6")
            k.I(f"v_fmac_f32 v61, {s(36+f)}, v7")
    sadd64(k, 30, 10, YB[layer])
    k.I(f"s_and_b32 s28, s2, {NREP-1}")
    k.I("s_lshl_b32 s28, s28, 12")
    k.I("v_lshlrev_b32 v12, 2, v0")
    k.I("v_add_u32 v9, s28, v12")
    k.I("global_atomic_add_f32 v9, v60, s[30:31]")
    k.I("global_atomic_add_f32 v9, v61, s[30:31] offset:1024")
    k.I("s_waitcnt vmcnt(0)")
    k.I("s_barrier")
    k.I("v_cmp_eq_u32 vcc, 0, v0")
    k.I("s_and_saveexec_b64 s[32:33], vcc")
    k.I(f"s_cbranch_execz L_{n}_noatom")
    k.I("v_mov_b32 v9, 0")
    k.I("v_mov_b32 v6, 1")
    k.I("global_atomic_add v7, v9, v6, s[8:9] sc0 sc1")
    k.I("s_waitcnt vmcnt(0)")
    k.I(f"ds_write_b32 v9, v7 offset:{LRED+512}")
    k.I("s_waitcnt lgkmcnt(0)")
    k.L(f"L_{n}_noatom")
    k.I("s_mov_b64 exec, -1")
    k.I("s_barrier")
    k.I("v_mov_b32 v9, 0")
    k.I(f"ds_read_b32 v7, v9 offset:{LRED+512}")
    k.I("s_waitcnt lgkmcnt(0)")
    k.I("v_readfirstlane_b32 s28, v7")
    k.nop(1)
    k.I("s_cmp_eq_u32 s28, 223")
    k.I(f"s_cbranch_scc0 L_{n}_end")
    for r in range(NREP):
        k.I(f"global_load_dword {v(16+2*r)}, v12, s[30:31] sc1")
        k.I(f"global_load_dword {v(17+2*r)}, v12, s[30:31] offset:1024 sc1")
        if r < NREP - 1: k.I("v_add_u32 v12, 0x1000, v12")
    bf16r(k, 52)
    k.I(f"v_mul_f32 v6, {hex(f2u(-LOG2E))}, v52")
    k.I("v_exp_f32 v6, v6")
    k.I("s_nop 0")
    k.I("v_add_f32 v6, 1.0, v6")
    k.I("v_rcp_f32 v6, v6")
    k.I("s_nop 0")
    bf16r(k, 6)
    k.I("s_waitcnt vmcnt(0)")
    for r in range(1, NREP):
        k.I(f"v_add_f32 v16, v16, {v(16+2*r)}")
        k.I(f"v_add_f32 v17, v17, {v(17+2*r)}")
    def round2(a_, b_):
        k.I(f"v_cvt_pk_bf16_f32 v18, {v(a_)}, {v(b_)}")
        unpack(k, a_, b_, 18)
    round2(16, 17)
    k.I("v_mul_f32 v16, v16, v6"); k.I("v_mul_f32 v17, v17, v6")
    round2(16, 17)
    k.I("v_add_f32 v16, v16, v58"); k.I("v_add_f32 v17, v17, v59")
    round2(16, 17)
    k.I("v_add_f32 v16, v16, v56"); k.I("v_add_f32 v17, v17, v57")
    round2(16, 17)
    if layer == 1:
        k.I("s_lshl_b32 s28, s25, 10")
        k.I("v_lshlrev_b32 v12, 2, v0")
        k.I("v_add_u32 v12, s28, v12")
        k.I("global_store_dword v12, v18, s[14:15]")
    else:
        k.I("global_store_dword v10, v18, s[26:27]")
        k.I("v_lshlrev_b32 v9, 2, v2")
        k.I("v_mov_b32 v13, 0")
        def wgsum(x, off):
            allreduce(k, "v_add_f32", x, 7)
            k.I(f"ds_write_b32 v9, {v(x)} offset:{off}")
            k.I("s_waitcnt lgkmcnt(0)")
            k.I("s_barrier")
            k.I(f"ds_read_b128 v[24:27], v13 offset:{off}")
            k.I("s_waitcnt lgkmcnt(0)")
            k.I("v_add_f32 v24, v24, v25")
            k.I("v_add_f32 v26, v26, v27")
            k.I(f"v_add_f32 {v(x)}, v24, v26")
        k.I("v_add_f32 v20, v16, v17")
        wgsum(20, LRED + 576)
        k.I("v_mul_f32 v20, s23, v20")
        k.I("v_sub_f32 v16, v16, v20"); k.I("v_sub_f32 v17, v17, v20")
        k.I("v_mul_f32 v21, v16, v16")
        k.I("v_fmac_f32 v21, v17, v17")
        wgsum(21, LRED + 640)
        k.I("v_mov_b32 v22, s24")
        k.I("v_fmac_f32 v22, s23, v21")
        k.I("v_rsq_f32 v22, v22")
        sadd64(k, 30, 10, TAB[1])
        k.I("s_lshl_b32 s28, s25, 2")
        k.I("v_mov_b32 v12, s28")
        k.I("v_cmp_eq_u32 vcc, 0, v0")
        k.I("s_and_saveexec_b64 s[32:33], vcc")
        k.I(f"s_cbranch_execz L_{n}_end")
        k.I("global_store_dword v12, v20, s[30:31]")
        k.I("v_add_u32 v12, 0x2000, v12")
        k.I("global_store_dword v12, v22, s[30:31]")
        k.I("v_add_u32 v12, 0x2000, v12")
        k.I("global_store_dword v12, v13, s[30:31]")
        k.I("v_add_u32 v12, 0x2000, v12")
        k.I("global_store_dword v12, v13, s[30:31]")
    k.L(f"L_{n}_end")
    k.I("s_endpgm")
    return k

def build():
    ks = [k_prep(), k_qkv(0), k_attn(0), k_oproj(0), k_ffn(0), k_qkv(1), k_attn(1), k_oproj(1), k_ffn(1)]
    bad = []
    for k in ks: bad += check_hazards(k)
    for b in bad: print("HAZARD", b, file=sys.stderr)
    return emit_file(HEADER, ks), len(bad)

if __name__ == "__main__":
    txt, nbad = build()
    out = sys.argv[1] if len(sys.argv) > 1 else "cdna_kernels/" + NAME + ".s"
    open(out, "w").write(txt)
    print("written", out, len(txt), "bytes; hazards:", nbad)
```

```python
import sys
from gen import *
nextra = int(sys.argv[1])
ks = [k_prep(), k_qkv(0), k_attn(0), k_oproj(0), k_ffn(0), k_qkv(1), k_attn(1), k_oproj(1), k_ffn(1)]
e = Kern("empty_kernel", 256, 256, 0, 8)
e.I("s_endpgm")
order = ks + [e] * nextra
open(sys.argv[2], "w").write(emit_file(HEADER, ks + [e], order))
```

```python
import re, os
PROFILE = bool(os.environ.get('PROFILE'))

def v(i): return f"v{i}"
def vr(i, n): return f"v[{i}:{i+n-1}]" if n > 1 else f"v{i}"
def a(i): return f"a{i}"
def ar(i, n): return f"a[{i}:{i+n-1}]" if n > 1 else f"a{i}"
def s(i): return f"s{i}"
def sr(i, n): return f"s[{i}:{i+n-1}]" if n > 1 else f"s{i}"

class Kern:
    def __init__(self, name, grid, block, lds, nvgpr, nagpr=0, nsgpr=100):
        self.name = name; self.grid = grid; self.block = block; self.lds = lds
        self.nvgpr = nvgpr; self.nagpr = nagpr; self.nsgpr = nsgpr
        self.lines = []
        self.uid = 0
        self.nstamp = 0
    def I(self, txt):
        for l in txt.strip().split("\n"):
            l = l.strip()
            if l: self.lines.append("    " + l)
    def L(self, lab): self.lines.append(f"{lab}:")
    def C(self, txt): self.lines.append(f"    ; {txt}")
    def lab(self, base):
        self.uid += 1
        return f"L_{self.name}_{base}_{self.uid}"
    def nop(self, n):
        while n > 0:
            k = min(n, 16)
            self.I(f"s_nop {k-1}")
            n -= k
    def stamp(self, real=False):
        if not PROFILE: return
        i = self.nstamp; self.nstamp += 1
        assert i < 12
        self.I(f"{'s_memrealtime' if real else 's_memtime'} s[{72+2*i}:{73+2*i}]")
        self.I("s_waitcnt lgkmcnt(0)")
    def stamp_begin(self):
        if not PROFILE: return
        self.I("v_lshrrev_b32 v1, 6, v0")
        self.I("s_nop 0")
        self.I("v_readfirstlane_b32 s70, v1")
        self.I("s_load_dwordx2 s[68:69], s[0:1], 80")
        for i in range(24): self.I(f"s_mov_b32 s{72+i}, 0")
        self.stamp(True); self.stamp()
    def stamp_end(self, kidx):
        if not PROFILE: return
        save = self.nstamp
        self.nstamp = 10
        self.I("s_waitcnt vmcnt(0)")
        self.stamp(); self.stamp(True)
        self.nstamp = save
        self.I("s_mov_b64 exec, 1")
        self.I("s_lshl_b32 s71, s2, 4")
        self.I("s_add_u32 s71, s71, s70")
        self.I("s_lshl_b32 s71, s71, 7")
        self.I(f"s_add_u32 s71, s71, {hex(0x1800000 + kidx * 0x80000)}")
        self.I("v_mov_b32 v0, s71")
        for q in range(6):
            for j in range(4): self.I(f"v_mov_b32 v{4+j}, s{72+4*q+j}")
            self.I(f"global_store_dwordx4 v0, v[4:7], s[68:69] offset:{16*q}")
            self.I("s_nop 1")
    def text(self):
        return (f".globl {self.name}\n.p2align 8\n.type {self.name},@function\n{self.name}:\n" + "\n".join(self.lines) + "\n")
    def desc(self):
        acc = (self.nvgpr + 3) // 4 * 4
        nfv = acc + self.nagpr if self.nagpr else self.nvgpr
        return f""".p2align 6
.amdhsa_kernel {self.name}
  .amdhsa_next_free_vgpr {nfv}
  .amdhsa_next_free_sgpr {self.nsgpr}
  .amdhsa_accum_offset {acc}
  .amdhsa_group_segment_fixed_size 0
  .amdhsa_kernarg_size 88
  .amdhsa_user_sgpr_count 2
  .amdhsa_user_sgpr_kernarg_segment_ptr 1
  .amdhsa_system_sgpr_workgroup_id_x 1
.end_amdhsa_kernel
"""
    def launch(self):
        return f"; @launch kernel={self.name} grid=({self.grid},1,1) block=({self.block},1,1) lds={self.lds}"

def emit_file(header, kerns, order=None):
    order = order or kerns
    out = [header.rstrip()]
    for k in order: out.append(k.launch())
    out.append('.amdgcn_target "amdgcn-amd-amdhsa--gfx950"')
    out.append(".text")
    for k in kerns: out.append(k.text())
    out.append('.section .rodata,"a"')
    for k in kerns: out.append(k.desc())
    return "\n".join(out)

_REG = re.compile(r"\b([vas])(\d+)\b|\b([vas])\[(\d+):(\d+)\]|\b(vcc|exec|m0|scc)\b|\b(vcc_lo|vcc_hi|exec_lo|exec_hi)\b")
def regs_of(op):
    out = set()
    for m in _REG.finditer(op):
        if m.group(1): out.add((m.group(1), int(m.group(2))))
        elif m.group(3):
            for i in range(int(m.group(4)), int(m.group(5)) + 1): out.add((m.group(3), i))
        elif m.group(6): out.add((m.group(6), 0))
        else: out.add((m.group(7)[:-3], 0))
    return out

TRANS = ("v_exp_", "v_log_", "v_rcp_", "v_rsq_", "v_sqrt_", "v_sin_", "v_cos_")
class Ins:
    def __init__(self, txt, idx):
        self.txt = txt; self.idx = idx
        t = txt.split(";")[0].strip()
        parts = t.split(None, 1)
        self.op = parts[0]
        rest = parts[1] if len(parts) > 1 else ""
        ops = []; depth = 0; cur = ""
        for ch in rest:
            if ch == "[": depth += 1
            if ch == "]": depth -= 1
            if ch == "," and depth == 0: ops.append(cur.strip()); cur = ""
            else: cur += ch
        if cur.strip(): ops.append(cur.strip())
        self.mods = ""
        if ops:
            last = ops[-1].split(None, 1)
            if len(last) > 1 and not last[0].startswith("hwreg"):
                ops[-1] = last[0]; self.mods = last[1]
        self.ops = ops
        op = self.op
        self.mfma = op.startswith("v_mfma")
        self.valu = op.startswith("v_") and not self.mfma
        self.trans = op.startswith(TRANS)
        self.salu = op.startswith("s_")
        self.vmem = op.startswith(("global_", "buffer_", "flat_"))
        self.ds = op.startswith("ds_")
        self.dpp = "_dpp" in op or "quad_perm" in self.mods or "row_" in self.mods
        self.permlane = op.startswith("v_permlane")
        self.states = 1
        if op == "s_nop": self.states = int(ops[0], 0) + 1
        R = [regs_of(o) for o in ops]
        w = set(); r = set()
        if self.mfma:
            w = R[0]; r = R[1] | R[2] | R[3]
            self.A = R[1]; self.B = R[2]; self.Cc = R[3]
            self.passes = 8 if "32x32" in op else 4
        elif self.valu:
            if self.permlane and "swap" in op:
                w = R[0] | R[1]; r = R[0] | R[1]
            elif op.startswith(("v_add_co", "v_sub_co", "v_addc_co", "v_subb_co", "v_subrev_co")):
                w = R[0] | R[1]; r = set().union(*R[2:])
            elif op.startswith("v_cmpx"):
                w = R[0] | {("exec", 0)}; r = set().union(*R[1:])
            elif op in ("v_nop",):
                pass
            else:
                w = R[0]; r = set().union(*R[1:]) if len(R) > 1 else set()
                if op.startswith(("v_fmac", "v_mac", "v_dot2c", "v_writelane")) or "UNUSED_PRESERVE" in self.mods or self.dpp:
                    r |= R[0]
                if op.startswith("v_cndmask") and len(ops) == 3: r |= {("vcc", 0)}
        elif self.vmem:
            lds = "_lds_" in op or " lds" in (" " + self.mods)
            if "load" in op and not lds:
                w = R[0]; r = set().union(*R[1:])
            elif "atomic" in op and "sc0" in self.mods:
                w = R[0]; r = set().union(*R[1:])
            else:
                r = set().union(*R) if R else set()
            if lds: r |= {("m0", 0)}
            self.lds = lds
            self.store_data = set()
            if "store" in op and ("x4" in op or "x3" in op):
                self.store_data = R[1] if op.startswith("global") else R[0]
        elif self.ds:
            if op.startswith(("ds_read", "ds_bpermute", "ds_permute", "ds_swizzle")) or "_rtn" in op:
                w = R[0]; r = set().union(*R[1:]) if len(R) > 1 else set()
            else:
                r = set().union(*R)
        elif self.salu:
            if op.startswith(("s_cmp", "s_cbranch", "s_branch", "s_waitcnt", "s_barrier", "s_nop", "s_endpgm", "s_sleep", "s_setprio", "s_bitcmp")):
                r = set().union(*R) if R else set()
            else:
                w = R[0] if R else set(); r = set().union(*R[1:]) if len(R) > 1 else set()
                if "saveexec" in op: w = w | {("exec", 0)}
        self.w = w; self.r = r

def check_hazards(kern):
    ins = []; labels = {}
    for l in kern.lines:
        t = l.split(";")[0].strip()
        if not t: continue
        if t.endswith(":"): labels[t[:-1]] = len(ins); continue
        if t.startswith("."): continue
        ins.append(Ins(t, len(ins)))
    n = len(ins)
    preds = [[] for _ in range(n + 1)]
    for i, x in enumerate(ins):
        if x.op == "s_endpgm": continue
        if x.op == "s_branch":
            preds[labels[x.ops[0]]].append(i); continue
        if x.op.startswith("s_cbranch"):
            preds[labels[x.ops[0]]].append(i)
        preds[i + 1].append(i)
    errs = []
    def need(p, c):
        req = 0
        vw = {x for x in p.w if x[0] in "va"}
        sw = {x for x in p.w if x[0] in ("s", "vcc")}
        if p.valu:
            if c.mfma and vw & c.r: req = max(req, 2)
            if c.valu and c.dpp and vw & c.r: req = max(req, 2)
            if c.permlane and vw & c.r: req = max(req, 2)
            if c.op.startswith(("v_readlane", "v_readfirstlane")) and vw & c.r: req = max(req, 1)
            if p.trans and c.valu and not c.trans and vw & c.r: req = max(req, 1)
            if p.trans and c.mfma and vw & c.r: req = max(req, 2)
            if sw & c.r:
                if c.vmem: req = max(req, 5)
                if c.valu: req = max(req, 4 if c.op.startswith(("v_readlane", "v_writelane")) else 2)
            if ("exec", 0) in p.w:
                if c.mfma: req = max(req, 4)
                if c.dpp: req = max(req, 5)
                if c.permlane or c.op.startswith(("v_readlane", "v_readfirstlane", "v_writelane")): req = max(req, 4)
            if "sdwa" in p.op and c.valu and vw & c.r: req = max(req, 1)
        if p.mfma:
            big = 12 if p.passes == 8 else 8
            if c.mfma:
                if p.w & (c.A | c.B): req = max(req, big)
                if p.w & c.Cc and not (p.w == c.Cc and p.passes == c.passes): req = max(req, big - 2)
                if p.w & c.w and not (p.w == c.w and p.w == c.Cc): req = max(req, big - 2)
            elif (c.valu or c.vmem or c.ds) and (p.w & (c.r | c.w)): req = max(req, big)
            if c.valu and p.Cc & c.w: req = max(req, 7 if p.passes == 8 else 3)
        if p.salu and ("m0", 0) in p.w and c.vmem and c.lds: req = max(req, 1)
        if p.vmem and p.store_data and (p.store_data & c.w): req = max(req, 2 if c.valu else 1)
        return req
    for i, c in enumerate(ins):
        stack = [(p, 0) for p in preds[i]]
        seen = set()
        while stack:
            j, dist = stack.pop()
            if (j, dist) in seen: continue
            seen.add((j, dist))
            p = ins[j]
            q = need(p, c)
            if q > dist:
                errs.append(f"{kern.name}: need {q} have {dist}: [{p.txt}] -> [{c.txt}]")
            nd = dist + p.states
            if nd < 13:
                for pp in preds[j]: stack.append((pp, nd))
    return sorted(set(errs))
```

```python
import sys, struct, os
from asmlib import *

NAME = "interleave_layers__softmax_full_mha__moe_arch_mod__prompt"
HEADER = open("cdna_kernels/" + NAME + ".s.ref").read().split("; Override launch")[0]

XF = [0x000000, 0x200000, 0x400000]
KF, VF, OF = 0x600000, 0x800000, 0xA00000
WF = 0xC00000
WOF = 0xD80000
WGF = 0xE00000
ZB = 0x1200000
SUMS = [ZB, ZB + 0x8000]
FLK = [ZB + 0x10000, ZB + 0x18000]
FLO = [ZB + 0x20000, ZB + 0x28000]
ZBYTES = 0x30000
TAB = [0x1240000, 0x1248000]
CS = 0x1250000
WSUM = CS + 0x1800
IDXW = CS + 0x1880
YP = [0x1280000, 0x1300000]
YPBYTES = 224 * 2048
STAMP = 0x1800000
EPS = 1e-5
def f2u(x): return struct.unpack("<I", struct.pack("<f", x))[0]
QSCALE = 0.25 * 1.4426950408889634
LOG2E = 1.4426950408889634
SPIN_MAX = 1 << 18
A_X0, A_WQKV, A_WO, A_WR, A_WG, A_WU, A_WD, A_OUT, A_DBG, A_WS = 0, 8, 16, 32, 40, 48, 56, 64, 72, 80

def sadd64(k, d, b, const):
    k.I(f"s_add_u32 {s(d)}, {s(b)}, {hex(const)}")
    k.I(f"s_addc_u32 {s(d+1)}, {s(b+1)}, 0")

def allreduce(k, op, x, t):
    for m in ("quad_perm:[1,0,3,2]", "quad_perm:[2,3,0,1]", "row_half_mirror", "row_mirror"):
        k.nop(2)
        k.I(f"{op}_dpp {v(x)}, {v(x)}, {v(x)} {m} row_mask:0xf bank_mask:0xf")
    rowreduce(k, op, x, t)

def rowreduce(k, op, x, t):
    for sw in ("v_permlane16_swap_b32", "v_permlane32_swap_b32"):
        k.I(f"v_mov_b32 {v(t)}, {v(x)}")
        k.nop(2)
        k.I(f"{sw} {v(x)}, {v(t)}")
        k.I(f"{op} {v(x)}, {v(x)}, {v(t)}")

def halfsum(k, op, x, t):
    k.I(f"v_mov_b32 {v(t)}, {v(x)}")
    k.nop(2)
    k.I(f"v_permlane32_swap_b32 {v(x)}, {v(t)}")
    k.I(f"{op} {v(x)}, {v(x)}, {v(t)}")

def unpack(k, dlo, dhi, src):
    k.I(f"v_lshlrev_b32 {v(dlo)}, 16, {v(src)}")
    k.I(f"v_and_b32 {v(dhi)}, 0xffff0000, {v(src)}")

def bf16r(k, x):
    k.I(f"v_cvt_pk_bf16_f32 {v(x)}, {v(x)}, {v(x)}")
    k.I(f"v_and_b32 {v(x)}, 0xffff0000, {v(x)}")

KIDX = {}
def exit_guard(k, n):
    k.I(f"s_cmp_ge_u32 s2, {n}")
    k.I(f"s_cbranch_scc1 L_{k.name}_exit")
    KIDX[k.name] = len(KIDX)
    k.stamp_begin()

def finish(k):
    k.L(f"L_{k.name}_end")
    k.stamp_end(KIDX[k.name])
    k.L(f"L_{k.name}_exit")
    k.I("s_endpgm")

class VM:
    def __init__(self, k): self.k = k; self.q = []
    def issue(self, txt, tag=None):
        self.k.I(txt); self.q.append(tag)
    def wait(self, tag, extra=""):
        i = max(j for j, t in enumerate(self.q) if t == tag)
        n = len(self.q) - 1 - i
        assert n <= 63
        self.k.I(f"s_waitcnt vmcnt({n}){extra}")
    def drain(self, extra=""):
        self.k.I(f"s_waitcnt vmcnt(0){extra}"); self.q = []

N_X, N_CS, N_WF, N_WO, N_WG, N_Z = 64, 24, 32, 8, 56, 8
def k_prep():
    tot = N_X + N_CS + N_WF + N_WO + N_WG + N_Z
    k = Kern("prep_kernel", tot, 512, 65536, 64)
    exit_guard(k, tot)
    k.I(f"s_load_dwordx4 s[4:7], s[0:1], {A_X0}")
    k.I(f"s_load_dwordx2 s[16:17], s[0:1], {A_WO}")
    k.I(f"s_load_dwordx2 s[8:9], s[0:1], {A_WR}")
    k.I(f"s_load_dwordx4 s[20:23], s[0:1], {A_WG}")
    k.I(f"s_load_dwordx2 s[10:11], s[0:1], {A_WS}")
    k.I("v_and_b32 v1, 63, v0")
    k.I("v_lshrrev_b32 v2, 6, v0")
    k.I("s_nop 0")
    k.I("v_readfirstlane_b32 s43, v2")
    k.I("s_waitcnt lgkmcnt(0)")
    b = 0
    order = [("wg", N_WG), ("x", N_X), ("wf", N_WF), ("cs", N_CS), ("wo", N_WO), ("z", N_Z)]
    for nm, cnt in order:
        k.I(f"s_sub_u32 s12, s2, {b}")
        b += cnt
        k.I(f"s_cmp_lt_u32 s2, {b}")
        k.I(f"s_cbranch_scc1 L_prep_{nm}")
    k.I("s_branch L_prep_kernel_end")
    E = "s_branch L_prep_kernel_end"
    k.L("L_prep_x")
    k.I("s_and_b32 s13, s12, 7")
    k.I("s_lshl_b32 s13, s13, 3")
    k.I("s_lshr_b32 s12, s12, 3")
    k.I("s_add_u32 s12, s12, s13")
    k.I("v_and_b32 v3, 31, v1")
    k.I("v_lshrrev_b32 v4, 5, v1")
    k.I("s_lshl_b32 s13, s12, 15")
    k.I("v_lshlrev_b32 v5, 10, v3")
    k.I("v_lshl_add_u32 v5, v2, 7, v5")
    k.I("v_lshl_add_u32 v5, v4, 4, v5")
    k.I("v_add_u32 v5, s13, v5")
    for i in range(4): k.I(f"global_load_dwordx4 {vr(16+4*i,4)}, v5, s[4:5] offset:{32*i}")
    k.I("s_lshl_b32 s13, s12, 10")
    k.I("v_lshlrev_b32 v6, 18, v2")
    k.I("v_lshl_add_u32 v6, v1, 4, v6")
    k.I("v_add_u32 v6, s13, v6")
    k.I("s_waitcnt vmcnt(0)")
    for i in range(16): unpack(k, 32 + 2*i, 33 + 2*i, 16 + i)
    for i in range(4):
        bb = 16 + 4*i
        k.I(f"v_permlane32_swap_b32 {v(bb)}, {v(bb+2)}")
        k.I(f"v_permlane32_swap_b32 {v(bb+1)}, {v(bb+3)}")
    for i in range(4):
        k.I(f"global_store_dwordx4 v6, {vr(16+4*i,4)}, s[10:11]")
        if i < 3: k.I("v_add_u32 v6, 0x10000, v6")
    k.I("v_add_f32 v7, v32, v33")
    for i in range(34, 64): k.I(f"v_add_f32 v7, v7, {v(i)}")
    halfsum(k, "v_add_f32", 7, 8)
    k.I("v_lshlrev_b32 v9, 2, v3")
    k.I("v_lshl_add_u32 v10, v2, 7, v9")
    k.I("ds_write_b32 v10, v7")
    k.I("s_waitcnt lgkmcnt(0)")
    k.I("s_barrier")
    for i in range(8): k.I(f"ds_read_b32 {v(16+i)}, v9 offset:{128*i}")
    k.I("s_waitcnt lgkmcnt(0)")
    for i in range(1, 8): k.I(f"v_add_f32 v16, v16, {v(16+i)}")
    k.I(f"v_mul_f32 v11, {hex(f2u(1/512))}, v16")
    for i in range(32, 64): k.I(f"v_sub_f32 {v(i)}, {v(i)}, v11")
    k.I("v_mul_f32 v7, v32, v32")
    for i in range(33, 64): k.I(f"v_fmac_f32 v7, {v(i)}, {v(i)}")
    halfsum(k, "v_add_f32", 7, 8)
    k.I("ds_write_b32 v10, v7 offset:1024")
    k.I("s_waitcnt lgkmcnt(0)")
    k.I("s_barrier")
    for i in range(8): k.I(f"ds_read_b32 {v(16+i)}, v9 offset:{1024+128*i}")
    k.I("s_waitcnt lgkmcnt(0)")
    for i in range(1, 8): k.I(f"v_add_f32 v16, v16, {v(16+i)}")
    k.I(f"v_mov_b32 v12, {hex(f2u(EPS))}")
    k.I(f"v_fmac_f32 v12, {hex(f2u(1/512))}, v16")
    k.I("v_rsq_f32 v12, v12")
    k.I("v_mov_b32 v13, 0")
    k.I("v_cmp_gt_u32 vcc, 32, v0")
    k.I("s_and_saveexec_b64 s[14:15], vcc")
    k.I("s_cbranch_execz L_prep_kernel_end")
    sadd64(k, 18, 10, TAB[0])
    k.I("s_lshl_b32 s13, s12, 7")
    k.I("v_add_u32 v9, s13, v9")
    k.I("global_store_dword v9, v11, s[18:19]")
    k.I("v_add_u32 v14, 0x2000, v9")
    k.I("global_store_dword v14, v12, s[18:19]")
    k.I(E)
    k.L("L_prep_cs")
    k.I("s_lshl_b32 s13, s12, 7")
    k.I("v_and_b32 v3, 7, v0")
    k.I("v_lshrrev_b32 v4, 3, v0")
    k.I(f"v_mul_u32_u24 v5, {8*3072}, v4")
    k.I("v_lshl_add_u32 v5, v3, 4, v5")
    k.I("v_add_u32 v5, s13, v5")
    for i in range(8):
        k.I(f"global_load_dwordx4 {vr(16+4*i,4)}, v5, s[6:7]")
        if i < 7: k.I("v_add_u32 v5, 3072, v5")
    k.I("s_waitcnt vmcnt(0)")
    for c in range(4): unpack(k, 48 + 2*c, 49 + 2*c, 16 + c)
    for i in range(1, 8):
        for c in range(4):
            unpack(k, 6, 7, 16 + 4*i + c)
            k.I(f"v_add_f32 {v(48+2*c)}, {v(48+2*c)}, v6")
            k.I(f"v_add_f32 {v(49+2*c)}, {v(49+2*c)}, v7")
    k.I("v_lshlrev_b32 v8, 8, v4")
    k.I("v_lshl_add_u32 v8, v3, 5, v8")
    k.I("ds_write_b128 v8, v[48:51]")
    k.I("ds_write_b128 v8, v[52:55] offset:16")
    k.I("s_waitcnt lgkmcnt(0)")
    k.I("s_barrier")
    k.I("v_lshlrev_b32 v9, 2, v1")
    k.I("v_lshl_add_u32 v10, v2, 11, v9")
    for i in range(8): k.I(f"ds_read_b32 {v(16+i)}, v10 offset:{256*i}")
    k.I("s_waitcnt lgkmcnt(0)")
    for i in range(1, 8): k.I(f"v_add_f32 v16, v16, {v(16+i)}")
    k.I("s_barrier")
    k.I("v_lshl_add_u32 v10, v2, 8, v9")
    k.I("ds_write_b32 v10, v16")
    k.I("s_waitcnt lgkmcnt(0)")
    k.I("s_barrier")
    for i in range(8): k.I(f"ds_read_b32 {v(16+i)}, v9 offset:{256*i}")
    k.I("s_waitcnt lgkmcnt(0)")
    for i in range(1, 8): k.I(f"v_add_f32 v16, v16, {v(16+i)}")
    k.I("v_cmp_gt_u32 vcc, 64, v0")
    k.I("s_and_saveexec_b64 s[14:15], vcc")
    k.I("s_cbranch_execz L_prep_kernel_end")
    sadd64(k, 18, 10, CS)
    k.I("s_lshl_b32 s13, s12, 8")
    k.I("v_add_u32 v9, s13, v9")
    k.I("global_store_dword v9, v16, s[18:19]")
    k.I(E)
    def relayout_common(row_bytes):
        k.I("s_lshl_b32 s42, s43, 13")
        k.I("v_lshrrev_b32 v3, 3, v1")
        k.I(f"v_mul_u32_u24 v3, {row_bytes}, v3")
        k.I("v_and_b32 v4, 7, v1")
        k.I("v_lshl_add_u32 v3, v4, 4, v3")
        k.I("v_bfe_u32 v5, v1, 2, 2")
        k.I("v_and_b32 v6, 3, v1")
        k.I("v_bfe_u32 v7, v1, 4, 1")
        k.I("v_lshrrev_b32 v8, 5, v1")
        k.I("v_lshlrev_b32 v9, 4, v1")
    def dma(base, src_const_sgpr, lds_off):
        k.I(f"s_add_u32 m0, s42, {hex(lds_off)}")
        k.I(f"v_add_u32 v10, {src_const_sgpr}, v3")
        k.I(f"global_load_lds_dwordx4 v10, {base}")
    k.L("L_prep_wf")
    relayout_common(3072)
    k.I(f"s_mul_i32 s13, s12, {16*3072}")
    k.I("s_lshl_b32 s14, s43, 7")
    k.I("s_add_u32 s13, s13, s14")
    for sec in range(3):
        for u in range(2):
            k.I(f"s_add_u32 s14, s13, {sec*1024 + u*8*3072}")
            dma("s[6:7]", "s14", sec*2048 + u*1024)
    k.I("v_lshl_add_u32 v11, v8, 2, v5")
    k.I("v_lshlrev_b32 v11, 7, v11")
    k.I("v_lshl_add_u32 v11, v6, 3, v11")
    k.I("v_add_u32 v11, s42, v11")
    k.I("v_lshl_add_u32 v12, v7, 11, v11")
    k.I("v_lshl_add_u32 v13, v7, 2, v5")
    k.I("v_lshlrev_b32 v13, 7, v13")
    k.I("v_lshl_add_u32 v13, v6, 3, v13")
    k.I("v_lshl_add_u32 v13, v8, 5, v13")
    k.I("v_add_u32 v13, s42, v13")
    k.I(f"s_mul_i32 s13, s43, {4*49152}")
    k.I(f"s_mul_i32 s14, s12, 1536")
    k.I("s_add_u32 s13, s13, s14")
    k.I(f"s_add_u32 s13, s13, {hex(WF)}")
    k.I("v_add_u32 v14, s13, v9")
    k.I("v_and_b32 v15, 31, v1")
    k.I("v_lshlrev_b32 v15, 4, v15")
    k.I(f"v_mul_u32_u24 v16, 49152, v8")
    k.I("v_add3_u32 v15, v15, v16, s13")
    k.I("v_add_u32 v15, 1024, v15")
    k.I("s_waitcnt vmcnt(0)")
    for hh in range(4):
        k.I(f"ds_read_b64_tr_b16 {vr(20+4*hh,2)}, v12 offset:{32*hh}")
        k.I(f"ds_read_b64_tr_b16 {vr(22+4*hh,2)}, v12 offset:{32*hh+1024}")
    for hp in range(2):
        k.I(f"ds_read_b64_tr_b16 {vr(36+4*hp,2)}, v13 offset:{4096+64*hp}")
        k.I(f"ds_read_b64_tr_b16 {vr(38+4*hp,2)}, v13 offset:{4096+64*hp+1024}")
    k.I("s_waitcnt lgkmcnt(0)")
    for hh in range(4):
        k.I(f"global_store_dwordx4 v14, {vr(20+4*hh,4)}, s[10:11]")
        if hh < 3: k.I("v_add_u32 v14, 49152, v14")
    for hp in range(2):
        k.I(f"global_store_dwordx4 v15, {vr(36+4*hp,4)}, s[10:11]")
        if hp < 1: k.I(f"v_add_u32 v15, {2*49152}, v15")
    k.I(E)
    k.L("L_prep_wo")
    relayout_common(1024)
    k.I("s_lshl_b32 s13, s43, 16")
    k.I("s_lshl_b32 s14, s12, 7")
    k.I("s_add_u32 s13, s13, s14")
    for u in range(8):
        k.I(f"s_add_u32 s14, s13, {u*8*1024}")
        dma("s[16:17]", "s14", u*1024)
    k.I("v_lshl_add_u32 v11, v8, 2, v5")
    k.I("v_lshlrev_b32 v11, 7, v11")
    k.I("v_lshl_add_u32 v11, v6, 3, v11")
    k.I("v_lshl_add_u32 v11, v7, 5, v11")
    k.I("v_add_u32 v11, s42, v11")
    k.I("s_lshl_b32 s13, s12, 16")
    k.I("s_lshl_b32 s14, s43, 13")
    k.I("s_add_u32 s13, s13, s14")
    k.I(f"s_add_u32 s13, s13, {hex(WOF)}")
    k.I("v_add_u32 v14, s13, v9")
    k.I("s_waitcnt vmcnt(0)")
    for q in range(4):
        for bb in range(2):
            r0 = 20 + 8*q + 4*bb
            k.I(f"ds_read_b64_tr_b16 {vr(r0,2)}, v11 offset:{2048*q+64*bb}")
            k.I(f"ds_read_b64_tr_b16 {vr(r0+2,2)}, v11 offset:{2048*q+64*bb+1024}")
    k.I("s_waitcnt lgkmcnt(0)")
    for i in range(8):
        k.I(f"global_store_dwordx4 v14, {vr(20+4*i,4)}, s[10:11] offset:{1024*(i%4)}")
        if i == 3: k.I("v_add_u32 v14, 4096, v14")
    k.I(E)
    k.L("L_prep_wg")
    relayout_common(3584)
    k.I("s_lshl_b32 s13, s12, 3")
    k.I("s_add_u32 s13, s13, s43")
    k.I("s_and_b32 s24, s13, 15")
    k.I("s_lshr_b32 s25, s13, 4")
    k.I(f"s_mul_i32 s13, s24, {32*3584}")
    k.I("s_lshl_b32 s14, s25, 7")
    k.I("s_add_u32 s13, s13, s14")
    for mtx in range(2):
        for u in range(4):
            k.I(f"s_add_u32 s14, s13, {u*8*3584}")
            dma(f"s[{20+2*mtx}:{21+2*mtx}]", "s14", mtx*4096 + u*1024)
    k.I("v_lshl_add_u32 v11, v7, 2, v5")
    k.I("v_lshl_add_u32 v11, v8, 4, v11")
    k.I("v_lshlrev_b32 v11, 7, v11")
    k.I("v_lshrrev_b32 v12, 1, v6")
    k.I("v_lshl_add_u32 v11, v12, 12, v11")
    k.I("v_and_b32 v12, 1, v6")
    k.I("v_lshl_add_u32 v11, v12, 3, v11")
    k.I("v_add_u32 v11, s42, v11")
    k.I("s_lshl_b32 s13, s25, 17")
    k.I("s_lshl_b32 s14, s24, 10")
    k.I("s_add_u32 s13, s13, s14")
    k.I(f"s_add_u32 s13, s13, {hex(WGF)}")
    k.I("v_add_u32 v14, s13, v9")
    k.I("s_waitcnt vmcnt(0)")
    for c in range(8):
        k.I(f"ds_read_b64_tr_b16 {vr(20+4*c,2)}, v11 offset:{16*c}")
        k.I(f"ds_read_b64_tr_b16 {vr(22+4*c,2)}, v11 offset:{16*c+1024}")
    k.I("s_waitcnt lgkmcnt(0)")
    for c in range(8):
        k.I(f"global_store_dwordx4 v14, {vr(20+4*c,4)}, s[10:11]")
        if c < 7: k.I("v_add_u32 v14, 16384, v14")
    k.I(E)
    k.L("L_prep_z")
    for i in range(4): k.I(f"v_mov_b32 {v(16+i)}, 0")
    for i in range(4): k.I(f"v_mov_b32 {v(20+i)}, -1")
    k.I("v_lshlrev_b32 v5, 4, v0")
    k.I(f"s_mul_i32 s13, s12, {ZBYTES // N_Z}")
    k.I(f"s_add_u32 s13, s13, {hex(ZB)}")
    k.I("v_add_u32 v6, s13, v5")
    for i in range(ZBYTES // N_Z // 8192):
        k.I("global_store_dwordx4 v6, v[16:19], s[10:11]")
        k.I("v_add_u32 v6, 0x2000, v6")
    for l in range(2):
        k.I(f"s_mul_i32 s13, s12, {YPBYTES // N_Z}")
        k.I(f"s_add_u32 s13, s13, {hex(YP[l])}")
        k.I("v_add_u32 v6, s13, v5")
        for i in range(YPBYTES // N_Z // 8192):
            k.I("global_store_dwordx4 v6, v[20:23], s[10:11]")
            k.I("v_add_u32 v6, 0x2000, v6")
    k.I("s_cmp_lg_u32 s12, 0")
    k.I("s_cbranch_scc1 L_prep_kernel_end")
    k.I("v_lshlrev_b32 v5, 4, v1")
    k.I("global_load_dwordx4 v[24:27], v5, s[8:9]")
    k.I("s_waitcnt vmcnt(0)")
    for c in range(4): unpack(k, 28 + 2*c, 29 + 2*c, 24 + c)
    for i in range(29, 36): k.I(f"v_add_f32 v28, v28, {v(i)}")
    allreduce(k, "v_add_f32", 28, 29)
    k.I("v_cmp_eq_u32 vcc, 0, v0")
    k.I("s_and_saveexec_b64 s[14:15], vcc")
    k.I("s_cbranch_execz L_prep_kernel_end")
    k.I(f"v_mov_b32 v5, {hex(WSUM)}")
    k.I("global_store_dword v5, v28, s[10:11]")
    finish(k)
    return k

CB = 131072
CBN = 20
LW = 8192
LST = CB + CBN*512
def spin(k, lab, load, check_sgpr_ok):
    pass

def k_layer(layer):
    k = Kern(f"layer{layer}_kernel", 256, 512, LST + 4096, 128, nagpr=128)
    n = k.name
    vm = VM(k)
    exit_guard(k, 256)
    k.I(f"s_load_dwordx2 s[4:5], s[0:1], {A_WR}")
    k.I(f"s_load_dwordx2 s[6:7], s[0:1], {A_WD}")
    k.I(f"s_load_dwordx2 s[10:11], s[0:1], {A_WS}")
    k.I("v_and_b32 v1, 63, v0")
    k.I("v_lshrrev_b32 v2, 6, v0")
    k.I("v_lshlrev_b32 v3, 4, v1")
    k.I("v_readfirstlane_b32 s43, v2")
    k.I("s_and_b32 s44, s2, 7")
    k.I("s_lshr_b32 s12, s2, 3")
    k.I("s_lshr_b32 s45, s12, 2")
    k.I("s_and_b32 s46, s12, 3")
    k.I("s_lshl_b32 s13, s44, 2")
    k.I("s_add_u32 s46, s46, s13")
    k.I("s_lshl_b32 s13, s44, 3")
    k.I("s_add_u32 s13, s13, s43")
    k.I("s_lshl_b32 s42, s43, 10")
    k.I("s_lshl_b32 s14, s13, 10")
    k.I("v_add_u32 v4, s14, v3")
    k.I(f"s_mul_i32 s14, s12, 49152")
    k.I("s_add_u32 s14, s14, s42")
    k.I(f"s_add_u32 s14, s14, {hex(WF)}")
    k.I("v_add_u32 v5, s14, v3")
    k.I("s_waitcnt lgkmcnt(0)")
    if layer == 1:
        sadd64(k, 16, 10, IDXW)
        k.I("s_load_dword s47, s[16:17], 0")
    k.I("s_cmp_ge_u32 s43, 2")
    k.I(f"s_cbranch_scc1 L_{n}_pc")
    k.I("s_lshl_b32 s14, s44, 10")
    k.I("s_lshl_b32 s15, s43, 13")
    k.I("s_add_u32 s14, s14, s15")
    k.I(f"s_add_u32 s14, s14, {hex(TAB[layer])}")
    k.I(f"s_add_u32 m0, s42, {LST}")
    k.I("v_add_u32 v6, s14, v3")
    k.I("global_load_lds_dwordx4 v6, s[10:11]")
    k.I(f"s_branch L_{n}_pd")
    k.L(f"L_{n}_pc")
    k.I("s_cmp_lg_u32 s43, 2")
    k.I(f"s_cbranch_scc1 L_{n}_pd")
    k.I("s_lshl_b32 s14, s12, 6")
    k.I(f"s_add_u32 s14, s14, {hex(CS)}")
    k.I("v_lshrrev_b32 v6, 2, v1")
    k.I("v_lshlrev_b32 v6, 11, v6")
    k.I("v_and_b32 v7, 3, v1")
    k.I("v_lshl_add_u32 v6, v7, 4, v6")
    k.I("v_add_u32 v6, s14, v6")
    k.I(f"s_mov_b32 m0, {LST + 2048}")
    k.I("s_mov_b64 exec, 0xfff")
    k.I("global_load_lds_dwordx4 v6, s[10:11]")
    k.I("s_mov_b64 exec, -1")
    k.L(f"L_{n}_pd")
    for r in range(6):
        k.I(f"s_add_u32 m0, s42, {hex(LW + r*8192)}")
        if r: k.I("v_add_u32 v5, 0x2000, v5")
        else: k.I("s_nop 0")
        vm.issue("global_load_lds_dwordx4 v5, s[10:11]", "W")
    def xload(kg):
        sadd64(k, 16, 10, XF[layer] + kg * 65536)
        vm.issue(f"global_load_dwordx4 {ar(4*kg,4)}, v4, s[16:17]", f"x{kg}")
    LOOK = int(os.environ.get("LOOK", "6"))
    for kg in range(LOOK): xload(kg)
    k.I("v_and_b32 v6, 31, v1")
    k.I("v_lshrrev_b32 v7, 5, v1")
    k.I("v_and_b32 v8, 15, v1")
    k.I("v_bfe_u32 v9, v1, 4, 1")
    k.I("v_lshlrev_b32 v10, 4, v8")
    k.I("v_lshl_add_u32 v10, v7, 8, v10")
    k.I(f"v_add_u32 v11, {LW}, v3")
    k.I(f"v_add_u32 v12, {LW + 1024}, v10")
    k.I("v_and_b32 v13, 11, v0")
    k.I("v_mov_b32 v14, 0x3f803f80")
    k.I("v_cmp_eq_u32 vcc, 0, v13")
    k.I("v_lshlrev_b32 v13, 4, v0")
    k.I(f"v_add_u32 v13, {CB}, v13")
    k.I("v_cndmask_b32 v16, 0, v14, vcc")
    for r in range(1, 4): k.I(f"v_mov_b32 {v(16+r)}, v16")
    k.I("ds_write_b128 v13, v[16:19]")
    k.I(f"v_cmp_gt_u32 vcc, {(CBN*512 - 8192)//16}, v0")
    k.I("s_and_saveexec_b64 s[24:25], vcc")
    k.I("ds_write_b128 v13, v[16:19] offset:8192")
    k.I("s_mov_b64 exec, -1")
    AQ, AVv, WB = 16, 32, 48
    CQ, MV, AL, CV, MT, AT, RW = 64, 80, 96, 112, 113, 114, 116
    def params():
        k.I("s_lshr_b32 s14, s42, 3")
        k.I(f"s_add_u32 s14, s14, {LST}")
        k.I(f"v_lshlrev_b32 v13, 4, v7")
        k.I(f"v_add_u32 v14, {LST + 2048}, v13")
        for g in range(4): k.I(f"ds_read_b128 {vr(CQ+4*g,4)}, v14 offset:{64*(g>>1)+32*(g&1)}")
        k.I(f"v_lshlrev_b32 v14, 2, v8")
        k.I(f"ds_read_b32 {v(CV)}, v14 offset:{LST + 2048 + 128 - 0x20000}") if False else None
        k.I(f"v_add_u32 v14, {LST + 2048 + 128}, v14")
        k.I(f"ds_read_b32 {v(CV)}, v14")
        k.I("v_lshl_add_u32 v14, v6, 2, s14")
        k.I(f"ds_read_b32 {v(MT)}, v14")
        k.I(f"ds_read_b32 {v(AT)}, v14 offset:1024")
        k.I("v_add_u32 v14, s14, v13")
        for g in range(4): k.I(f"ds_read_b128 {vr(MV+4*g,4)}, v14 offset:{32*g}")
        for g in range(4): k.I(f"ds_read_b128 {vr(AL+4*g,4)}, v14 offset:{1024+32*g}")
    def early():
        if layer == 1:
            sadd64(k, 16, 10, XF[1])
            k.I("s_lshr_b32 s14, s47, 5")
            k.I("s_lshl_b32 s14, s14, 10")
            k.I("s_and_b32 s15, s47, 31")
            k.I("s_lshl_b32 s15, s15, 4")
            k.I("s_add_u32 s14, s14, s15")
            k.I("v_lshrrev_b32 v14, 1, v1")
            k.I("v_lshlrev_b32 v14, 16, v14")
            k.I("v_and_b32 v15, 1, v1")
            k.I("v_lshl_add_u32 v14, v15, 9, v14")
            k.I("v_add_u32 v14, s14, v14")
            vm.issue(f"global_load_dwordx4 {vr(RW,4)}, v14, s[16:17]", "e")
    def wreads(ks):
        b = WB + (ks & 1) * 8
        k.I(f"ds_read_b128 {vr(b,4)}, v11 offset:{ks*1536}")
        k.I(f"ds_read_b128 {vr(b+4,4)}, v12 offset:{ks*1536}")
    k.stamp()
    vm.wait("W", " lgkmcnt(0)")
    k.I("s_barrier")
    wreads(0)
    for ks in range(32):
        if ks + LOOK < 32: xload(ks + LOOK)
        if ks + LOOK == 32 and layer == 1: early()
        if ks < 31: wreads(ks + 1)
        vm.wait(f"x{ks}", f" lgkmcnt({2 if ks < 31 else 0})")
        if ks == 31: params()
        b = WB + (ks & 1) * 8
        k.I(f"v_mfma_f32_32x32x16_bf16 {vr(AQ,16)}, {vr(b,4)}, {ar(4*ks,4)}, {vr(AQ,16) if ks else 0}")
        k.I(f"v_mfma_f32_32x32x16_bf16 {vr(AVv,16)}, {ar(4*ks,4)}, {vr(b+4,4)}, {vr(AVv,16) if ks else 0}")
    k.stamp()
    vm.drain(" lgkmcnt(0)")
    if layer == 1:
        k.I("s_lshr_b32 s14, s47, 5")
        k.I("s_cmp_lg_u32 s14, s13")
        k.I(f"s_cbranch_scc1 L_{n}_nopatch")
        T = WB
        for i in range(4): unpack(k, T + 2*i, T + 2*i + 1, RW + i)
        k.I(f"v_add_f32 v14, {v(T)}, {v(T+1)}")
        for i in range(2, 8): k.I(f"v_add_f32 v14, v14, {v(T+i)}")
        allreduce(k, "v_add_f32", 14, 15)
        k.I(f"v_mul_f32 v14, {hex(f2u(1/512))}, v14")
        for i in range(8): k.I(f"v_sub_f32 {v(T+i)}, {v(T+i)}, v14")
        k.I(f"v_mul_f32 v13, {v(T)}, {v(T)}")
        for i in range(1, 8): k.I(f"v_fmac_f32 v13, {v(T+i)}, {v(T+i)}")
        allreduce(k, "v_add_f32", 13, 15)
        k.I(f"v_mov_b32 v15, {hex(f2u(EPS))}")
        k.I(f"v_fmac_f32 v15, {hex(f2u(1/512))}, v13")
        k.I("v_rsq_f32 v15, v15")
        k.I("s_and_b32 s14, s47, 31")
        k.I("v_cmp_eq_u32 vcc, s14, v6")
        k.I("v_lshlrev_b32 v13, 2, v7")
        k.I(f"v_subrev_u32 v13, v13, s14") if False else k.I("v_sub_u32 v13, s14, v13")
        k.I(f"v_cndmask_b32 {v(MT)}, {v(MT)}, v14, vcc")
        k.I(f"v_cndmask_b32 {v(AT)}, {v(AT)}, v15, vcc")
        for r in range(16):
            k.I(f"v_cmp_eq_u32 vcc, {8*(r>>2)+(r&3)}, v13")
            k.nop(2)
            k.I(f"v_cndmask_b32 {v(MV+r)}, {v(MV+r)}, v14, vcc")
            k.I(f"v_cndmask_b32 {v(AL+r)}, {v(AL+r)}, v15, vcc")
        k.L(f"L_{n}_nopatch")
    Q, KB, P0, P1 = 120, 124, 48, 52
    VA = [56, 64]
    NEG, S0, S1, O = 72, 16, 32, 88
    AK, AV, AVS = 104, 105, 106
    TK, TV = 108, 112
    k.I(f"v_mul_f32 v13, {hex(f2u(QSCALE))}, {v(AT)}")
    k.I("s_lshl_b32 s14, s12, 16")
    k.I("v_add_u32 v4, s14, v4")
    k.I("v_lshl_add_u32 v5, v9, 9, v10")
    k.I("s_lshl_b32 s15, s13, 10")
    k.I("s_add_u32 s14, s14, s15")
    k.I("v_add_u32 v15, s14, v5")
    sadd64(k, 18, 10, KF); sadd64(k, 20, 10, VF); sadd64(k, 22, 10, OF)
    k.nop(3)
    for r in range(16): k.I(f"v_fma_f32 {v(AQ+r)}, -{v(MT)}, {v(CQ+r)}, {v(AQ+r)}")
    for r in range(16): k.I(f"v_mul_f32 {v(AQ+r)}, {v(13 if r < 8 else AT)}, {v(AQ+r)}")
    for r in range(16): k.I(f"v_fma_f32 {v(AVv+r)}, -{v(MV+r)}, {v(CV)}, {v(AVv+r)}")
    for r in range(16): k.I(f"v_mul_f32 {v(AVv+r)}, {v(AL+r)}, {v(AVv+r)}")
    for r in range(4): k.I(f"v_cvt_pk_bf16_f32 {v(Q+r)}, {v(AQ+2*r)}, {v(AQ+2*r+1)}")
    for r in range(4): k.I(f"v_cvt_pk_bf16_f32 {v(TK+r)}, {v(AQ+8+2*r)}, {v(AQ+8+2*r+1)}")
    for r in range(8): k.I(f"v_cvt_pk_bf16_f32 {v(WB+r)}, {v(AVv+2*r)}, {v(AVv+2*r+1)}")
    k.I("v_cmp_eq_u32 vcc, 1, v9")
    k.I("v_add_u32 v13, s42, v3")
    k.I("v_add_u32 v14, s42, v5")
    for r in range(4): k.I(f"v_cndmask_b32 {v(TV+r)}, {v(WB+r)}, {v(WB+4+r)}, vcc")
    vm.issue(f"global_store_dwordx4 v4, {vr(TK,4)}, s[18:19] sc1")
    k.I(f"ds_write_b128 v13, {vr(TK,4)}")
    vm.issue(f"global_store_dwordx4 v15, {vr(TV,4)}, s[20:21] sc1")
    k.I("v_add_u32 v14, 0x10000, v14")
    k.I(f"ds_write_b128 v14, {vr(TV,4)}")
    k.I("v_lshl_add_u32 v6, v9, 16, v10")
    k.I("v_add_u32 v6, 0x10000, v6")
    k.I("v_xor_b32 v9, 1, v9")
    k.I(f"v_lshlrev_b32 {v(AVS)}, 13, v9")
    k.I("s_mov_b32 s26, 0")
    k.I(f"s_mov_b32 s27, {hex(f2u(2.0**30))}")
    k.I("s_lshl_b32 s14, s12, 10")
    k.I(f"s_add_u32 s14, s14, {hex(FLK[layer])}")
    k.I("v_lshl_add_u32 v8, v1, 7, s14")
    k.I("s_lshl_b32 s15, s44, 7")
    k.I("s_add_u32 s48, s14, s15")
    k.I("s_waitcnt lgkmcnt(0)")
    k.I("s_barrier")
    k.stamp()
    k.I(f"ds_read_b128 {vr(KB,4)}, v3")
    k.I("s_waitcnt lgkmcnt(0)")
    k.I(f"v_mfma_f32_32x32x16_bf16 {vr(S0,16)}, {vr(KB,4)}, {vr(Q,4)}, 0")
    k.nop(12)
    def max16(dst, S, first):
        if first:
            k.I(f"v_max3_f32 {v(dst)}, {v(S)}, {v(S+1)}, {v(S+2)}")
            rest = list(range(3, 16))
        else:
            rest = list(range(16))
        while rest:
            if len(rest) >= 2:
                k.I(f"v_max3_f32 {v(dst)}, {v(dst)}, {v(S+rest[0])}, {v(S+rest[1])}"); rest = rest[2:]
            else:
                k.I(f"v_max_f32 {v(dst)}, {v(dst)}, {v(S+rest[0])}"); rest = rest[1:]
    max16(2, S0, True)
    def prime(Sd, Vd):
        k.I(f"ds_read_b128 {vr(KB,4)}, {v(AK)}")
        k.I(f"ds_read_b128 {vr(Vd,4)}, {v(AV)}")
        k.I(f"ds_read_b128 {vr(Vd+4,4)}, {v(AV)} offset:512")
        k.I("s_waitcnt lgkmcnt(0)")
        k.I(f"v_mfma_f32_32x32x16_bf16 {vr(Sd,16)}, {vr(KB,4)}, {vr(Q,4)}, {vr(NEG,16)}")
        k.I(f"ds_read_b128 {vr(KB,4)}, {v(AK)} offset:1024")
        k.nop(11)
    def setup():
        halfsum(k, "v_max_f32", 2, 7)
        for r in range(16): k.I(f"v_sub_f32 {v(NEG+r)}, 0, v2")
        k.I(f"v_mov_b32 {v(AK)}, v3")
        k.I(f"v_mov_b32 {v(AV)}, v6")
        for r in range(16): k.I(f"v_mov_b32 {v(O+r)}, 0")
        for r in range(4): k.I(f"v_mov_b32 {v(P1+r)}, 0")
        for r in range(4): k.I(f"v_mov_b32 {v(VA[1]+4+r)}, 0")
        prime(S0, VA[0])
    def tile(u, extra=None, nokread=False, noqk=False, novread=False):
        extra = extra or {}
        Sc, Sn = (S0, S1) if u % 2 == 0 else (S1, S0)
        Vc, Vo = VA[u % 2], VA[1 - u % 2]
        E = lambda r: k.I(f"v_exp_f32 {v(Sc+r)}, {v(Sc+r)}")
        Cv = lambda P, r, b: k.I(f"v_cvt_pk_bf16_f32 {v(P+r)}, {v(Sc+b+2*r)}, {v(Sc+b+2*r+1)}")
        E(0); E(1)
        k.I(f"v_mfma_f32_32x32x16_bf16 {vr(O,16)}, {vr(Vo+4,4)}, {vr(P1,4)}, {vr(O,16)}")
        if 0 in extra: extra[0]()
        E(2); E(3); E(4)
        k.I("s_waitcnt lgkmcnt(0)")
        E(5)
        if not noqk: k.I(f"v_mfma_f32_32x32x16_bf16 {vr(Sn,16)}, {vr(KB,4)}, {vr(Q,4)}, {vr(NEG,16)}")
        E(6)
        if not nokread: k.I(f"ds_read_b128 {vr(KB,4)}, {v(AK)} offset:{(u+2)*1024}")
        E(7)
        if not novread: k.I(f"ds_read_b128 {vr(Vo,4)}, {v(AV)} offset:{(u+1)*1024}")
        Cv(P0, 0, 0); Cv(P0, 1, 0); Cv(P0, 2, 0); Cv(P0, 3, 0)
        E(8)
        if not novread: k.I(f"ds_read_b128 {vr(Vo+4,4)}, {v(AV)} offset:{(u+1)*1024+512}")
        E(9)
        k.I(f"v_mfma_f32_32x32x16_bf16 {vr(O,16)}, {vr(Vc,4)}, {vr(P0,4)}, {vr(O,16)}")
        if 1 in extra: extra[1]()
        for r in range(10, 16): E(r)
        Cv(P1, 0, 8); Cv(P1, 1, 8); Cv(P1, 2, 8); Cv(P1, 3, 8)
    def bump():
        k.I(f"v_add_u32 {v(AK)}, 0x2000, {v(AK)}")
        k.I(f"v_add_u32 {v(AV)}, {v(AVS)}, {v(AV)}")
    setup()
    k.I("s_setprio 3")
    def publish_kv():
        vm.drain()
        k.I("s_barrier")
        k.I("s_cmp_lg_u32 s43, 0")
        k.I(f"s_cbranch_scc1 L_{n}_noflag")
        k.I("v_mov_b32 v13, s48")
        k.I("v_mov_b32 v14, 1")
        k.I("s_mov_b64 exec, 1")
        k.I("global_store_dword v13, v14, s[10:11] sc1")
        k.I("s_mov_b64 exec, -1")
        k.L(f"L_{n}_noflag")
    def poll_issue():
        k.I("s_mov_b64 exec, 0xff")
        k.I("global_load_dword v14, v8, s[10:11] sc1")
        k.I("s_mov_b64 exec, -1")
    def poll_check():
        k.I(f"s_mov_b32 s29, {SPIN_MAX}")
        k.I("s_mov_b64 exec, 0xff")
        k.L(f"L_{n}_pk")
        k.I("s_waitcnt vmcnt(0)")
        k.I("v_cmp_ne_u32 vcc, 1, v14")
        k.I("s_sub_u32 s29, s29, 1")
        k.I(f"s_cbranch_vccz L_{n}_pkok")
        k.I(f"s_cbranch_scc1 L_{n}_pkok")
        k.I("global_load_dword v14, v8, s[10:11] sc1")
        k.I(f"s_branch L_{n}_pk")
        k.L(f"L_{n}_pkok")
        k.I("s_mov_b64 exec, -1")
        vm.q = []
    RS = 64
    def rload(sl):
        k.I(f"s_add_u32 s14, s44, {sl}")
        k.I("s_and_b32 s14, s14, 7")
        k.I("s_sub_u32 s14, s14, s44")
        k.I("s_lshl_b32 s14, s14, 13")
        k.I("v_add_u32 v13, s14, v4")
        vm.issue(f"global_load_dwordx4 {ar(RS+8*(sl-1),4)}, v13, s[18:19] sc1", f"r{sl}")
        vm.issue(f"global_load_dwordx4 {ar(RS+8*(sl-1)+4,4)}, v13, s[20:21] sc1", f"r{sl}")
    def rwrite(sl):
        vm.wait(f"r{sl}")
        k.I(f"ds_write_b128 v15, {ar(RS+8*(sl-1),4)} offset:{sl*8192}")
        k.I(f"ds_write_b128 v5, {ar(RS+8*(sl-1)+4,4)} offset:{sl*8192}")
    k.I("v_add_u32 v15, s42, v3")
    k.I("v_add_u32 v5, 0x10000, v15")
    PUB, PI, PC = [int(x) for x in os.environ.get("POLL", "1,4,5").split(",")]
    for u in range(8):
        ex = {}
        if u == PUB: ex[0] = publish_kv
        if u == PI: ex[0] = poll_issue
        if u == PC: ex[0] = lambda: (poll_check(), rload(1), rload(2))
        tile(u, ex, nokread=(u >= 6), noqk=(u == 7), novread=(u == 7))
    bump()
    rwrite(1)
    k.I("s_waitcnt lgkmcnt(0)")
    k.I("s_barrier")
    k.stamp()
    prime(S0, VA[0])
    R, WR, MT2, RT2 = 108, 112, 116, 117
    def wo_load(i):
        vm.issue(f"global_load_dwordx4 {ar(4*i,4)}, v2, s[10:11] offset:{1024*(i%4)}", "wo")
        if i % 4 == 3: k.I("v_add_u32 v2, 0x1000, v2")
    def oproj_pre():
        k.I("s_lshl_b32 s14, s45, 16")
        k.I("s_lshr_b32 s49, s43, 1")
        k.I("s_lshl_b32 s15, s49, 14")
        k.I("s_add_u32 s14, s14, s15")
        k.I(f"s_add_u32 s14, s14, {hex(WOF)}")
        k.I("v_add_u32 v2, s14, v3")
        k.I("s_and_b32 s50, s43, 1")
        k.I("s_lshl_b32 s51, s46, 1")
        k.I("s_add_u32 s51, s51, s50")
        k.I("s_lshl_b32 s14, s45, 2")
        k.I("s_add_u32 s52, s14, s49")
        k.I("s_lshl_b32 s14, s52, 16")
        k.I("s_lshl_b32 s15, s51, 10")
        k.I("s_add_u32 s14, s14, s15")
        k.I("v_add_u32 v12, s14, v3")
        sadd64(k, 16, 10, XF[layer])
        vm.issue(f"global_load_dwordx4 {vr(R,4)}, v12, s[16:17]")
        k.I("v_lshrrev_b32 v9, 5, v1")
        k.I("v_and_b32 v10, 31, v1")
        k.I("s_lshl_b32 s14, s52, 5")
        k.I("v_lshl_add_u32 v14, v9, 3, s14")
        vm.issue(f"global_load_dwordx2 {vr(WR,2)}, v14, s[4:5]")
        vm.issue(f"global_load_dwordx2 {vr(WR+2,2)}, v14, s[4:5] offset:16")
        k.I("s_lshl_b32 s14, s51, 7")
        k.I("v_lshl_add_u32 v11, v10, 2, s14")
        if layer == 1:
            sadd64(k, 16, 10, TAB[1] + 0x4000)
            vm.issue(f"global_load_dword {v(MT2)}, v11, s[16:17]")
            k.I("v_add_u32 v14, 0x2000, v11")
            vm.issue(f"global_load_dword {v(RT2)}, v14, s[16:17]")

    def bar(): k.I("s_waitcnt lgkmcnt(0)"); k.I("s_barrier")
    sched = {
        1: {(0,0): lambda: rload(3), (3,0): lambda: rload(4), (4,0): lambda: rwrite(2), (6,0): bar},
        2: {(0,0): lambda: rload(5), (3,0): lambda: rload(6), (4,0): lambda: rwrite(3), (5,0): lambda: rwrite(4), (6,0): bar},
        3: dict([((0,0), lambda: (rload(7), oproj_pre()))] + [((1 + i//3, (i%3)%2), None) for i in range(0)]),
        4: {(0,0): lambda: rwrite(5), (1,0): lambda: rwrite(6), (2,0): lambda: rwrite(7), (6,0): bar},
    }
    for i in range(14): sched[3][(1 + i//2, i%2)] = (lambda i=i: wo_load(i))
    sched[4][(3,0)] = lambda: wo_load(14)
    sched[4][(4,0)] = lambda: wo_load(15)
    def warm():
        if layer == 0:
            k.I("s_mul_i32 s14, s12, 49152")
            k.I("s_add_u32 s14, s14, s42")
            k.I(f"s_add_u32 s14, s14, {hex(WF)}")
            k.I("v_add_u32 v14, s14, v3")
            for r in range(6):
                vm.issue(f"global_load_dwordx4 {ar(RS+4*r,4)}, v14, s[10:11]")
                if r < 5: k.I("v_add_u32 v14, 0x2000, v14")
        k.I("s_min_u32 s14, s2, 223")
        k.I("s_lshl_b32 s15, s14, 14")
        k.I("s_add_u32 s15, s15, s42")
        k.I(f"s_add_u32 s15, s15, {hex(WGF)}")
        k.I("v_add_u32 v14, s15, v3")
        vm.issue(f"global_load_dwordx4 {ar(RS+24,4)}, v14, s[10:11]")
        k.I("v_add_u32 v14, 0x2000, v14")
        vm.issue(f"global_load_dwordx4 {ar(RS+28,4)}, v14, s[10:11]")
        k.I("s_lshl_b32 s15, s14, 13")
        k.I("s_add_u32 s15, s15, s42")
        k.I("v_add_u32 v14, s15, v3")
        vm.issue(f"global_load_dwordx4 {ar(RS+32,4)}, v14, s[6:7]")
    if os.environ.get("WARM", "1") == "1": sched[4][(7,0)] = warm
    for c in range(1, 5):
        for u in range(8):
            tile(u, {sl: f for (uu, sl), f in sched[c].items() if uu == u})
        bump()
    k.I("s_mov_b32 s28, 5")
    k.lines.append(".p2align 6")
    k.L(f"L_{n}_loop")
    k.I("s_cmp_lt_u32 s28, 5"); k.I(f"s_cbranch_scc1 L_{n}_pdone")
    k.I("s_setprio 2")
    k.I("s_cmp_lt_u32 s28, 6"); k.I(f"s_cbranch_scc1 L_{n}_pdone")
    k.I("s_setprio 1")
    k.I("s_cmp_lt_u32 s28, 7"); k.I(f"s_cbranch_scc1 L_{n}_pdone")
    k.I("s_setprio 0")
    k.L(f"L_{n}_pdone")
    for u in range(8): tile(u)
    bump()
    k.I("s_add_u32 s28, s28, 1")
    k.I("s_cmp_lt_u32 s28, 8")
    k.I(f"s_cbranch_scc1 L_{n}_loop")
    k.I(f"v_mfma_f32_32x32x16_bf16 {vr(O,16)}, {vr(VA[1]+4,4)}, {vr(P1,4)}, {vr(O,16)}")
    k.I("s_waitcnt lgkmcnt(0)")
    k.stamp()
    k.nop(12)
    k.I("s_cmp_lg_u32 s26, 0")
    k.I(f"s_cbranch_scc1 L_{n}_fin")
    k.I(f"v_cmp_nge_f32 vcc, s27, {v(O+8)}")
    k.nop(2)
    k.I(f"s_cbranch_vccz L_{n}_fin")
    k.I("s_mov_b32 s26, 1")
    k.I(f"v_mov_b32 {v(AK)}, v3")
    k.I("v_mov_b32 v2, 0xff800000")
    k.I("s_mov_b32 s28, 0")
    k.L(f"L_{n}_maxloop")
    k.I(f"ds_read_b128 {vr(KB,4)}, {v(AK)}")
    k.I("s_waitcnt lgkmcnt(0)")
    k.I(f"v_mfma_f32_32x32x16_bf16 {vr(S0,16)}, {vr(KB,4)}, {vr(Q,4)}, 0")
    k.I(f"v_add_u32 {v(AK)}, 0x400, {v(AK)}")
    k.nop(12)
    max16(2, S0, False)
    k.I("s_add_u32 s28, s28, 1")
    k.I("s_cmp_lt_u32 s28, 64")
    k.I(f"s_cbranch_scc1 L_{n}_maxloop")
    setup()
    k.I("s_mov_b32 s28, 0")
    k.I(f"s_branch L_{n}_loop")
    k.L(f"L_{n}_fin")
    k.I(f"v_rcp_f32 v2, {v(O+8)}")
    k.I("s_nop 0")
    for r in range(8): k.I(f"v_mul_f32 {v(O+r)}, {v(O+r)}, v2")
    for r in range(4): k.I(f"v_cvt_pk_bf16_f32 {v(P0+r)}, {v(O+2*r)}, {v(O+2*r+1)}")
    k.I(f"global_store_dwordx4 v4, {vr(P0,4)}, s[22:23] sc1")
    OB = 64
    AC = 32
    k.I("v_lshrrev_b32 v7, 5, v1")
    k.I("v_and_b32 v6, 31, v1")
    k.I("s_lshl_b32 s15, s51, 10")
    k.I("s_lshl_b32 s14, s49, 19")
    k.I("s_add_u32 s14, s14, s15")
    k.I("v_add_u32 v10, s14, v3")
    k.I("s_waitcnt vmcnt(0)")
    k.I("s_barrier")
    k.stamp()
    k.I("s_cmp_lg_u32 s43, 0")
    k.I(f"s_cbranch_scc1 L_{n}_owait")
    k.I("s_lshl_b32 s14, s44, 12")
    k.I(f"s_add_u32 s14, s14, {hex(FLO[layer])}")
    k.I("v_lshl_add_u32 v8, v6, 7, s14")
    k.I("s_lshl_b32 s15, s12, 7")
    k.I("s_add_u32 s14, s14, s15")
    k.I("v_mov_b32 v13, s14")
    k.I("v_mov_b32 v14, 1")
    k.I("s_mov_b64 exec, 1")
    k.I("global_store_dword v13, v14, s[10:11] sc1")
    k.I("s_mov_b32 exec_lo, -1"); k.I("s_mov_b32 exec_hi, 0")
    k.I(f"s_mov_b32 s29, {SPIN_MAX}")
    k.L(f"L_{n}_po")
    k.I("global_load_dword v14, v8, s[10:11] sc1")
    k.I("s_waitcnt vmcnt(0)")
    k.I("v_cmp_ne_u32 vcc, 1, v14")
    k.I("s_sub_u32 s29, s29, 1")
    k.I(f"s_cbranch_vccz L_{n}_pook")
    k.I(f"s_cbranch_scc0 L_{n}_po")
    k.L(f"L_{n}_pook")
    k.I("s_mov_b64 exec, -1")
    k.L(f"L_{n}_owait")
    k.I("s_barrier")
    k.stamp()
    for i in range(8):
        k.I(f"global_load_dwordx4 {vr(OB+4*i,4)}, v10, s[22:23] sc1")
        if i < 7: k.I("v_add_u32 v10, 0x10000, v10")
    k.I("s_lshl_b32 s14, s50, 15")
    k.I("s_lshl_b32 s15, s49, 11")
    k.I("s_add_u32 s15, s15, s14")
    k.I("v_add_u32 v9, s15, v3")
    k.I("s_lshl_b32 s15, s49, 13")
    k.I("s_add_u32 s15, s15, s14")
    k.I("v_add_u32 v8, s15, v3")
    for i in range(8):
        k.I(f"s_waitcnt vmcnt({7-i})")
        for b in range(2):
            k.I(f"v_mfma_f32_32x32x16_bf16 {vr(AC+16*b,16)}, {ar(8*i+4*b,4)}, {vr(OB+4*i,4)}, {vr(AC+16*b,16) if i else 0}")
    k.stamp()
    X, Y = 96, 16
    for i in range(4): unpack(k, X + 2*i, X + 2*i + 1, R + i)
    if layer == 1:
        for r in range(8): k.I(f"v_sub_f32 {v(Y+r)}, {v(X+r)}, {v(MT2)}")
        for r in range(8): k.I(f"v_mul_f32 {v(Y+r)}, {v(Y+r)}, {v(RT2)}")
        for i in range(4): k.I(f"v_cvt_pk_bf16_f32 {v(R+i)}, {v(Y+2*i)}, {v(Y+2*i+1)}")
        for i in range(4): unpack(k, Y + 2*i, Y + 2*i + 1, R + i)
        for r in range(8): k.I(f"v_add_f32 {v(X+r)}, {v(X+r)}, {v(Y+r)}")
        for i in range(4): k.I(f"v_cvt_pk_bf16_f32 {v(R+i)}, {v(X+2*i)}, {v(X+2*i+1)}")
        for i in range(4): unpack(k, X + 2*i, X + 2*i + 1, R + i)
    else:
        k.nop(4)
    for q in range(4):
        for hf in range(2):
            k.I(f"ds_write_b128 v9, {vr(AC+8*q+4*hf,4)} offset:{8192*q+1024*hf}")
    k.I("s_waitcnt lgkmcnt(0)")
    k.I("s_barrier")
    for sr_ in range(4):
        for hf in range(2):
            k.I(f"ds_read_b128 {vr(AC+8*sr_+4*hf,4)}, v8 offset:{2048*sr_+1024*hf}")
    for i in range(4): unpack(k, 120 + 2*i, 121 + 2*i, WR + i)
    k.I("s_waitcnt lgkmcnt(0)")
    for r in range(8):
        k.I(f"v_add_f32 {v(AC+r)}, {v(AC+r)}, {v(AC+8+r)}")
        k.I(f"v_add_f32 {v(AC+16+r)}, {v(AC+16+r)}, {v(AC+24+r)}")
    for r in range(8): k.I(f"v_add_f32 {v(AC+r)}, {v(AC+r)}, {v(AC+16+r)}")
    for i in range(4): k.I(f"v_cvt_pk_bf16_f32 {v(R+i)}, {v(AC+2*i)}, {v(AC+2*i+1)}")
    for i in range(4): unpack(k, Y + 2*i, Y + 2*i + 1, R + i)
    for r in range(8): k.I(f"v_add_f32 {v(X+r)}, {v(X+r)}, {v(Y+r)}")
    for i in range(4): k.I(f"v_cvt_pk_bf16_f32 {v(R+i)}, {v(X+2*i)}, {v(X+2*i+1)}")
    sadd64(k, 16, 10, XF[layer + 1])
    k.I(f"global_store_dwordx4 v12, {vr(R,4)}, s[16:17]")
    for i in range(4): unpack(k, X + 2*i, X + 2*i + 1, R + i)
    k.I(f"v_add_f32 v14, {v(X)}, {v(X+1)}")
    k.I(f"v_mul_f32 v15, {v(X)}, {v(X)}")
    k.I(f"v_mul_f32 v16, {v(X)}, v120")
    for r in range(1, 8):
        if r > 1: k.I(f"v_add_f32 v14, v14, {v(X+r)}")
        k.I(f"v_fmac_f32 v15, {v(X+r)}, {v(X+r)}")
        k.I(f"v_fmac_f32 v16, {v(X+r)}, {v(120+r)}")
    k.nop(2)
    k.I("v_permlane32_swap_b32 v14, v15")
    k.I("v_add_f32 v14, v14, v15")
    halfsum(k, "v_add_f32", 16, 17)
    k.I("s_lshl_b32 s14, s50, 10")
    k.I("s_lshl_b32 s15, s49, 8")
    k.I("s_add_u32 s15, s15, s14")
    k.I(f"s_add_u32 s15, s15, {LST}")
    k.I("v_lshl_add_u32 v13, v1, 2, s15")
    k.I("ds_write_b32 v13, v14")
    k.I("ds_write_b32 v13, v16 offset:2048")
    k.I("s_waitcnt lgkmcnt(0)")
    k.I("s_barrier")
    k.I("s_cmp_lg_u32 s49, 0")
    k.I(f"s_cbranch_scc1 L_{n}_end")
    for q in range(1, 4):
        k.I(f"ds_read_b32 {v(16+2*q)}, v13 offset:{256*q}")
        k.I(f"ds_read_b32 {v(17+2*q)}, v13 offset:{2048+256*q}")
    sadd64(k, 16, 10, SUMS[layer])
    k.I("v_lshl_add_u32 v12, v7, 13, v11")
    k.I("v_add_u32 v13, 0x4000, v11")
    k.I("s_waitcnt lgkmcnt(0)")
    for q in range(1, 4):
        k.I(f"v_add_f32 v14, v14, {v(16+2*q)}")
        k.I(f"v_add_f32 v16, v16, {v(17+2*q)}")
    k.I("global_atomic_add_f32 v12, v14, s[16:17]")
    k.I("s_mov_b32 exec_lo, -1"); k.I("s_mov_b32 exec_hi, 0")
    k.I("global_atomic_add_f32 v13, v16, s[16:17]")
    finish(k)
    return k

def k_ffn(layer):
    LM, LR, LS, LV, LRED = 0, 8192, 16384, 24576, 32768
    PF = "pf" if layer == 0 and os.environ.get("WPF", "0") == "1" else "end"
    k = Kern(f"ffn{layer}_kernel", 256, 512, LRED + 2048, 96)
    n = k.name
    exit_guard(k, 256)
    k.I(f"s_load_dwordx4 s[12:15], s[0:1], {A_WD}")
    k.I(f"s_load_dwordx2 s[10:11], s[0:1], {A_WS}")
    k.I("v_and_b32 v1, 63, v0")
    k.I("v_lshrrev_b32 v2, 6, v0")
    k.I("v_lshlrev_b32 v3, 4, v0")
    k.I("v_readfirstlane_b32 s43, v2")
    S1, S2, S3, VV = 16, 20, 24, 28
    G, D = 32, 40
    for f in range(8): k.I(f"v_mov_b32 {v(D+f)}, 0")
    k.I("s_waitcnt lgkmcnt(0)")
    sadd64(k, 16, 10, SUMS[layer])
    sadd64(k, 18, 10, WSUM)
    k.I("s_load_dword s20, s[18:19], 0")
    k.I(f"global_load_dwordx4 {vr(S1,4)}, v3, s[16:17]")
    k.I("v_add_u32 v4, 0x2000, v3")
    k.I(f"global_load_dwordx4 {vr(S2,4)}, v4, s[16:17]")
    k.I("v_add_u32 v4, 0x4000, v3")
    k.I(f"global_load_dwordx4 {vr(S3,4)}, v4, s[16:17]")
    sadd64(k, 26, 10, XF[layer + 1])
    R = 72
    if layer == 1:
        k.I("s_lshr_b32 s28, s2, 2")
        k.I("s_and_b32 s29, s2, 3")
        k.I("s_lshl_b32 s34, s29, 3")
        k.I("s_add_u32 s34, s34, s43")
        k.I("s_lshl_b32 s35, s34, 16")
        k.I("s_lshl_b32 s36, s28, 10")
        k.I("s_add_u32 s35, s35, s36")
        k.I("v_lshl_add_u32 v11, v1, 4, s35")
        k.I(f"global_load_dwordx4 {vr(R,4)}, v11, s[26:27]")
    nside = 1 if layer == 1 else 0
    k.I("s_cmp_ge_u32 s2, 224")
    k.I(f"s_cbranch_scc1 L_{n}_now")
    k.I("s_lshl_b32 s22, s2, 14")
    k.I("s_lshl_b32 s23, s43, 11")
    k.I("s_add_u32 s22, s22, s23")
    k.I(f"s_add_u32 s22, s22, {hex(WGF)}")
    k.I("v_lshl_add_u32 v4, v1, 4, s22")
    k.I(f"global_load_dwordx4 {vr(G,4)}, v4, s[10:11]")
    k.I(f"global_load_dwordx4 {vr(G+4,4)}, v4, s[10:11] offset:1024")
    k.I("s_lshl_b32 s22, s2, 13")
    k.I("v_lshl_add_u32 v4, v0, 1, s22")
    k.I("v_add_u32 v5, 0x1000, v4")
    for f in range(8):
        k.I(f"global_load_short_d16_hi {v(D+f)}, {v(4 if f < 4 else 5)}, s[12:13] offset:{1024*(f%4)}")
    k.I(f"s_waitcnt vmcnt({10+nside})")
    k.I(f"s_branch L_{n}_stats")
    k.L(f"L_{n}_now")
    k.I(f"s_waitcnt vmcnt({nside})")
    k.L(f"L_{n}_stats")
    k.I("s_waitcnt lgkmcnt(0)")
    k.stamp()
    k.I(f"s_mov_b32 s23, {hex(f2u(1/512))}")
    k.I(f"s_mov_b32 s24, {hex(f2u(EPS))}")
    k.I("v_lshlrev_b32 v4, 2, v0")
    k.I("v_sub_u32 v4, 2047, v4")
    for i in range(4):
        m, q, d = S1 + i, S2 + i, S3 + i
        k.I(f"v_mul_f32 {v(m)}, s23, {v(m)}")
        k.I(f"v_mul_f32 {v(q)}, s23, {v(q)}")
        k.I(f"v_fma_f32 {v(q)}, -{v(m)}, {v(m)}, {v(q)}")
        k.I(f"v_max_f32 {v(VV+i)}, 0, {v(q)}")
        k.I(f"v_add_f32 {v(q)}, s24, {v(VV+i)}")
        k.I(f"v_rsq_f32 {v(q)}, {v(q)}")
        k.I(f"v_fma_f32 {v(d)}, -{v(m)}, s20, {v(d)}")
        k.I(f"v_mul_f32 {v(d)}, {v(d)}, {v(q)}")
        k.I(f"v_ashrrev_i32 v6, 31, {v(d)}")
        k.I("v_or_b32 v6, 0x80000000, v6")
        k.I(f"v_xor_b32 v6, v6, {v(d)}")
        k.I("v_and_b32 v6, 0xfffff800, v6")
        k.I(f"v_subrev_u32 v7, {i}, v4")
        if i == 0: k.I("v_or_b32 v8, v6, v7")
        else:
            k.I("v_or_b32 v6, v6, v7")
            k.I("v_max_u32 v8, v8, v6")
    for b, off in ((S1, LM), (S2, LR), (S3, LS), (VV, LV)):
        k.I(f"ds_write_b128 v3, {vr(b,4)} offset:{off}")
    allreduce(k, "v_max_u32", 8, 9)
    k.I("v_lshlrev_b32 v9, 2, v2")
    k.I(f"ds_write_b32 v9, v8 offset:{LRED}")
    k.I("s_waitcnt lgkmcnt(0)")
    k.I("s_barrier")
    k.I("v_mov_b32 v9, 0")
    k.I(f"ds_read_b128 v[48:51], v9 offset:{LRED}")
    k.I(f"ds_read_b128 v[52:55], v9 offset:{LRED+16}")
    k.I("s_waitcnt lgkmcnt(0)")
    k.I("v_max3_u32 v48, v48, v49, v50")
    k.I("v_max3_u32 v52, v52, v53, v54")
    k.I("v_max3_u32 v48, v48, v51, v55")
    k.I("v_max_u32 v48, v48, v52")
    k.I("v_and_b32 v48, 0x7ff, v48")
    k.I("v_sub_u32 v48, 2047, v48")
    k.I("s_nop 0")
    k.I("v_readfirstlane_b32 s25, v48")
    k.I("v_lshlrev_b32 v9, 2, v48")
    k.I(f"ds_read_b32 v50, v9 offset:{LM}")
    k.I(f"ds_read_b32 v51, v9 offset:{LR}")
    k.I(f"ds_read_b32 v52, v9 offset:{LS}")
    k.I("s_lshr_b32 s30, s25, 5")
    k.I("s_lshl_b32 s30, s30, 10")
    k.I("s_and_b32 s31, s25, 31")
    k.I("s_lshl_b32 s31, s31, 4")
    k.I("s_add_u32 s30, s30, s31")
    XR = 56
    k.I("s_cmp_ge_u32 s2, 224")
    k.I(f"s_cbranch_scc1 L_{n}_frow")
    k.I("s_lshl_b32 s31, s43, 18")
    k.I("s_add_u32 s31, s31, s30")
    k.I("v_lshrrev_b32 v10, 5, v1")
    k.I("v_lshlrev_b32 v10, 16, v10")
    k.I("v_bfe_u32 v12, v1, 4, 1")
    k.I("v_lshl_add_u32 v10, v12, 9, v10")
    k.I("v_add_u32 v10, s31, v10")
    k.I(f"global_load_dwordx4 {vr(XR,4)}, v10, s[26:27]")
    k.I("v_add_u32 v10, 0x20000, v10")
    k.I(f"global_load_dwordx4 {vr(XR+4,4)}, v10, s[26:27]")
    k.I(f"s_branch L_{n}_side")
    k.L(f"L_{n}_frow")
    k.I("s_sub_u32 s21, s2, 224")
    k.I("s_lshl_b32 s31, s21, 16")
    k.I("s_add_u32 s31, s31, s30")
    k.I("v_bfe_u32 v10, v0, 2, 1")
    k.I("v_lshlrev_b32 v10, 9, v10")
    k.I("v_bfe_u32 v12, v0, 3, 1")
    k.I("v_lshl_add_u32 v10, v12, 3, v10")
    k.I("v_and_b32 v12, 3, v0")
    k.I("v_lshl_add_u32 v10, v12, 1, v10")
    k.I("v_add_u32 v10, s31, v10")
    k.I(f"v_mov_b32 {v(XR)}, 0")
    k.I(f"global_load_short_d16_hi {v(XR)}, v10, s[26:27]")
    k.L(f"L_{n}_side")
    if layer == 0:
        sadd64(k, 32, 10, TAB[1])
        k.I("s_lshl_b32 s28, s2, 3")
        k.I("v_add_u32 v11, s28, v0")
        k.I("v_lshlrev_b32 v12, 2, v11")
        k.I("v_cmp_gt_u32 vcc, 8, v0")
        k.I("s_and_saveexec_b64 s[34:35], vcc")
        k.I(f"s_cbranch_execz L_{n}_side_done")
        k.I(f"ds_read_b32 v13, v12 offset:{LM}")
        k.I(f"ds_read_b32 v14, v12 offset:{LR}")
        k.I(f"ds_read_b32 v15, v12 offset:{LV}")
        k.I("v_cmp_ne_u32 vcc, s25, v11")
        k.I("s_waitcnt lgkmcnt(0)")
        k.I("v_add_f32 v16, 1.0, v14")
        k.I("v_mul_f32 v15, v15, v16")
        k.I("v_mov_b32 v17, s24")
        k.I("v_fmac_f32 v17, v15, v16")
        k.I("v_rsq_f32 v17, v17")
        k.I("v_cndmask_b32 v14, 0, v14, vcc")
        k.I("v_mul_f32 v17, v17, v16")
        k.I("global_store_dword v12, v13, s[32:33]")
        k.I("v_add_u32 v12, 0x2000, v12")
        k.I("global_store_dword v12, v17, s[32:33]")
        k.I("v_add_u32 v12, 0x2000, v12")
        k.I("global_store_dword v12, v13, s[32:33]")
        k.I("v_add_u32 v12, 0x2000, v12")
        k.I("global_store_dword v12, v14, s[32:33]")
        k.I(f"v_mov_b32 v12, {hex(IDXW)}")
        k.I("v_mov_b32 v13, s25")
        k.I("s_cmp_lg_u32 s2, 0")
        k.I(f"s_cbranch_scc1 L_{n}_side_done")
        k.I("s_mov_b64 exec, 1")
        k.I("global_store_dword v12, v13, s[10:11]")
        k.L(f"L_{n}_side_done")
        k.I("s_mov_b64 exec, -1")
    else:
        X, Y = 76, 84
        k.I("v_and_b32 v13, 31, v1")
        k.I("s_lshl_b32 s35, s28, 5")
        k.I("v_add_u32 v13, s35, v13")
        k.I("v_lshlrev_b32 v14, 2, v13")
        k.I(f"ds_read_b32 v16, v14 offset:{LM}")
        k.I(f"ds_read_b32 v17, v14 offset:{LR}")
        k.I("v_lshlrev_b32 v14, 10, v13")
        k.I("v_lshrrev_b32 v15, 5, v1")
        k.I("v_lshl_add_u32 v14, v15, 4, v14")
        k.I("s_lshl_b32 s35, s34, 5")
        k.I("v_add_u32 v14, s35, v14")
        k.I("s_waitcnt vmcnt(2) lgkmcnt(0)")
        k.I("s_cmp_lt_u32 s2, 224")
        k.I(f"s_cbranch_scc1 L_{n}_rok")
        k.I("s_waitcnt vmcnt(1)")
        k.L(f"L_{n}_rok")
        for i in range(4): unpack(k, X + 2*i, X + 2*i + 1, R + i)
        for r in range(8): k.I(f"v_sub_f32 {v(Y+r)}, {v(X+r)}, v16")
        for r in range(8): k.I(f"v_mul_f32 {v(Y+r)}, {v(Y+r)}, v17")
        for i in range(4): k.I(f"v_cvt_pk_bf16_f32 {v(R+i)}, {v(Y+2*i)}, {v(Y+2*i+1)}")
        for i in range(4): unpack(k, Y + 2*i, Y + 2*i + 1, R + i)
        for r in range(8): k.I(f"v_add_f32 {v(X+r)}, {v(X+r)}, {v(Y+r)}")
        for i in range(4): k.I(f"v_cvt_pk_bf16_f32 {v(R+i)}, {v(X+2*i)}, {v(X+2*i+1)}")
        k.I("v_cmp_ne_u32 vcc, s25, v13")
        k.I("s_nop 0")
        k.I(f"v_permlane32_swap_b32 {v(R)}, {v(R+2)}")
        k.I(f"v_permlane32_swap_b32 {v(R+1)}, {v(R+3)}")
        k.I("s_and_saveexec_b64 s[32:33], vcc")
        k.I(f"global_store_dwordx4 v14, {vr(R,4)}, s[14:15]")
        k.I("s_mov_b64 exec, -1")
    k.stamp()
    sadd64(k, 32, 10, YP[layer])
    k.I("s_cmp_ge_u32 s2, 224")
    k.I(f"s_cbranch_scc1 L_{n}_final")
    k.I("s_waitcnt vmcnt(0) lgkmcnt(0)")
    k.stamp()
    T = 16
    for i in range(8):
        unpack(k, T, T + 1, XR + i)
        k.I(f"v_sub_f32 {v(T)}, {v(T)}, v50")
        k.I(f"v_sub_f32 {v(T+1)}, {v(T+1)}, v50")
        k.I(f"v_mul_f32 {v(T)}, {v(T)}, v51")
        k.I(f"v_mul_f32 {v(T+1)}, {v(T+1)}, v51")
        k.I(f"v_cvt_pk_bf16_f32 {v(XR+i)}, {v(T)}, {v(T+1)}")
    k.I("v_lshrrev_b32 v9, 4, v1")
    k.I("v_lshlrev_b32 v9, 4, v9")
    k.I(f"v_mfma_f32_16x16x32_bf16 v[20:23], {vr(G,4)}, {vr(XR,4)}, 0")
    k.I(f"v_mfma_f32_16x16x32_bf16 v[20:23], {vr(G+4,4)}, {vr(XR+4,4)}, v[20:23]")
    k.I("v_lshl_add_u32 v9, v2, 6, v9")
    k.I("v_and_b32 v11, 15, v1")
    k.I("v_lshlrev_b32 v11, 2, v11")
    k.I("s_mov_b32 exec_lo, 0x00010001")
    k.I("s_mov_b32 exec_hi, 0x00010001")
    k.nop(3)
    k.I(f"ds_write_b128 v9, v[20:23] offset:{LRED+64}")
    k.I("s_mov_b64 exec, -1")
    k.I("s_waitcnt lgkmcnt(0)")
    k.I("s_barrier")
    for i in range(8): k.I(f"ds_read_b32 {v(24+i)}, v11 offset:{LRED+64+64*i}")
    k.I("s_waitcnt lgkmcnt(0)")
    k.I("v_add_f32 v24, v24, v25"); k.I("v_add_f32 v26, v26, v27"); k.I("v_add_f32 v28, v28, v29"); k.I("v_add_f32 v30, v30, v31")
    k.I("v_add_f32 v24, v24, v26"); k.I("v_add_f32 v28, v28, v30")
    k.I("v_add_f32 v24, v24, v28")
    bf16r(k, 24)
    k.I(f"v_mul_f32 v6, {hex(f2u(-LOG2E))}, v24")
    k.I("v_exp_f32 v6, v6")
    k.I("s_nop 0")
    k.I("v_add_f32 v6, 1.0, v6")
    k.I("v_rcp_f32 v6, v6")
    k.I("s_nop 0")
    k.I("v_mul_f32 v6, v6, v24")
    bf16r(k, 6)
    k.nop(2)
    k.I("v_mul_f32_dpp v6, v24, v6 row_ror:8 row_mask:0xf bank_mask:0xf")
    bf16r(k, 6)
    k.nop(1)
    for f in range(8): k.I(f"v_readlane_b32 {s(36+f)}, v6, {f}")
    k.I("s_lshl_b32 s28, s2, 11")
    k.I("v_lshl_add_u32 v9, v0, 2, s28")
    k.I(f"v_mul_f32 v7, s36, {v(D)}")
    for f in range(1, 8): k.I(f"v_fmac_f32 v7, {s(36+f)}, {v(D+f)}")
    k.I("v_cmp_eq_u32 vcc, -1, v7")
    k.I("v_mov_b32 v6, 0x7fc00000")
    k.I("s_nop 0")
    k.I("v_cndmask_b32 v7, v7, v6, vcc")
    k.I("global_store_dword v9, v7, s[32:33] sc1")
    k.I(f"s_branch L_{n}_{PF}")
    k.L(f"L_{n}_final")
    k.I("v_lshrrev_b32 v9, 4, v0")
    k.I(f"v_mul_u32_u24 v9, {7*2048}, v9")
    k.I("v_and_b32 v11, 15, v0")
    k.I("v_lshl_add_u32 v9, v11, 2, v9")
    k.I("s_lshl_b32 s28, s21, 6")
    k.I("v_add_u32 v9, s28, v9")
    k.I("v_add_u32 v12, 0x1000, v9")
    k.I("v_add_u32 v13, 0x2000, v9")
    k.I("v_add_u32 v14, 0x3000, v9")
    k.I(f"s_mov_b32 s29, {SPIN_MAX}")
    k.L(f"L_{n}_poll")
    for i in range(7):
        k.I(f"global_load_dword {v(16+i)}, {v((9,12,13,14)[i//2])}, s[32:33] offset:{2048*(i%2)} sc1")
    k.I("s_waitcnt vmcnt(0)")
    k.I("v_cmp_eq_u32 vcc, -1, v16")
    for i in range(1, 7):
        k.I(f"v_cmp_eq_u32 s[34:35], -1, {v(16+i)}")
        k.I("s_or_b64 vcc, vcc, s[34:35]")
    k.I("s_sub_u32 s29, s29, 1")
    k.I(f"s_cbranch_vccz L_{n}_got")
    k.I(f"s_cbranch_scc0 L_{n}_poll")
    k.L(f"L_{n}_got")
    k.stamp()
    for i in range(1, 7): k.I(f"v_add_f32 v16, v16, {v(16+i)}")
    rowreduce(k, "v_add_f32", 16, 6)
    k.I("v_lshlrev_b32 v11, 2, v11")
    k.I("v_lshl_add_u32 v12, v2, 6, v11")
    k.I(f"ds_write_b32 v12, v16 offset:{LRED+64}")
    k.I("s_waitcnt lgkmcnt(0)")
    k.I("s_barrier")
    for i in range(8): k.I(f"ds_read_b32 {v(24+i)}, v11 offset:{LRED+64+64*i}")
    bf16r(k, 52)
    k.I(f"v_mul_f32 v6, {hex(f2u(-LOG2E))}, v52")
    k.I("v_exp_f32 v6, v6")
    k.I(f"v_sub_f32 v7, {v(XR)}, v50")
    k.I("v_add_f32 v6, 1.0, v6")
    k.I("v_rcp_f32 v6, v6")
    k.I("v_mul_f32 v7, v7, v51")
    bf16r(k, 6)
    bf16r(k, 7)
    k.I("s_waitcnt lgkmcnt(0)")
    for i in range(1, 8): k.I(f"v_add_f32 v24, v24, {v(24+i)}")
    bf16r(k, 24)
    k.I("v_mul_f32 v24, v24, v6")
    bf16r(k, 24)
    k.I("v_add_f32 v24, v24, v7")
    bf16r(k, 24)
    k.I(f"v_add_f32 v24, v24, {v(XR)}")
    k.I("v_cvt_pk_bf16_f32 v24, v24, v24")
    k.I("v_cmp_gt_u32 vcc, 16, v0")
    k.I("s_and_saveexec_b64 s[34:35], vcc")
    k.I(f"s_cbranch_execz L_{n}_{PF}")
    if layer == 1:
        k.I("s_lshl_b32 s28, s25, 10")
        k.I("s_lshl_b32 s29, s21, 5")
        k.I("s_add_u32 s28, s28, s29")
        k.I("v_lshl_add_u32 v12, v0, 1, s28")
        k.I("global_store_short v12, v24, s[14:15]")
    else:
        k.I("global_store_short v10, v24, s[26:27]")
    if layer == 0 and os.environ.get("WPF", "0") == "1":
        k.L(f"L_{n}_pf")
        k.I("s_mov_b64 exec, -1")
        k.I("s_lshr_b32 s28, s2, 3")
        k.I("s_mul_i32 s28, s28, 49152")
        k.I(f"s_add_u32 s28, s28, {hex(WF)}")
        k.I("v_add_u32 v4, s28, v3")
        for r in range(6):
            k.I(f"global_load_dwordx4 {vr(16+4*r,4)}, v4, s[10:11]")
            if r < 5: k.I("v_add_u32 v4, 0x2000, v4")
    finish(k)
    return k

def build():
    ks = [k_prep(), k_layer(0), k_ffn(0), k_layer(1), k_ffn(1)]
    bad = []
    for k in ks: bad += check_hazards(k)
    for b in bad: print("HAZARD", b, file=sys.stderr)
    return emit_file(HEADER, ks), len(bad)

if __name__ == "__main__":
    txt, nbad = build()
    out = sys.argv[1] if len(sys.argv) > 1 else "cdna_kernels/" + NAME + ".s"
    open(out, "w").write(txt)
    print("written", out, len(txt), "bytes; hazards:", nbad)
```

```python
import re, os
PROFILE = bool(os.environ.get('PROFILE'))

def v(i): return f"v{i}"
def vr(i, n): return f"v[{i}:{i+n-1}]" if n > 1 else f"v{i}"
def a(i): return f"a{i}"
def ar(i, n): return f"a[{i}:{i+n-1}]" if n > 1 else f"a{i}"
def s(i): return f"s{i}"
def sr(i, n): return f"s[{i}:{i+n-1}]" if n > 1 else f"s{i}"

class Kern:
    def __init__(self, name, grid, block, lds, nvgpr, nagpr=0, nsgpr=102):
        self.name = name; self.grid = grid; self.block = block; self.lds = lds
        self.nvgpr = nvgpr; self.nagpr = nagpr; self.nsgpr = nsgpr
        self.lines = []
        self.uid = 0
        self.nstamp = 0
        self.stamp_names = {}
    def I(self, txt):
        for l in txt.strip().split("\n"):
            l = l.strip()
            if l: self.lines.append("    " + l)
    def L(self, lab): self.lines.append(f"{lab}:")
    def C(self, txt): self.lines.append(f"    ; {txt}")
    def lab(self, base):
        self.uid += 1
        return f"L_{self.name}_{base}_{self.uid}"
    def nop(self, n):
        while n > 0:
            k = min(n, 16)
            self.I(f"s_nop {k-1}")
            n -= k
    def stamp(self, real=False, name=None):
        if not PROFILE: return
        if name and not re.search(os.environ.get("STAMPRE", "^[^x]"), name): return
        i = self.nstamp; self.nstamp += 1
        assert i < 28
        if name: self.stamp_names[i] = name
        self.I(f"{'s_memrealtime' if real else 's_memtime'} s[66:67]")
        self.I("s_waitcnt lgkmcnt(0)")
        self.I(f"s_mov_b32 s{72+i}, s66")
    def stampval(self, sreg, name):
        if not PROFILE or not re.search(os.environ.get("STAMPRE", "^[^x]"), name): return
        i = self.nstamp; self.nstamp += 1
        self.stamp_names[i] = "#" + name
        self.I(f"s_mov_b32 s{72+i}, s{sreg}")
    def stamp_begin(self):
        if not PROFILE: return
        self.I("v_lshrrev_b32 v1, 6, v0")
        self.I("s_nop 0")
        self.I("v_readfirstlane_b32 s70, v1")
        self.I("s_load_dwordx2 s[68:69], s[0:1], 80")
        for i in range(28): self.I(f"s_mov_b32 s{72+i}, 0")
        self.stamp(True); self.stamp()
    def stamp_end(self, kidx):
        if not PROFILE: return
        save = self.nstamp
        self.nstamp = 26
        self.I("s_waitcnt vmcnt(0)")
        self.stamp(); self.stamp(True)
        self.nstamp = save
        self.I("s_mov_b64 exec, 1")
        self.I("s_lshl_b32 s71, s2, 4")
        self.I("s_add_u32 s71, s71, s70")
        self.I("s_lshl_b32 s71, s71, 7")
        self.I(f"s_add_u32 s71, s71, {hex(0x1800000 + kidx * 0x80000)}")
        self.I("v_mov_b32 v0, s71")
        for q in range(7):
            for j in range(4): self.I(f"v_mov_b32 v{4+j}, s{72+4*q+j}")
            self.I(f"global_store_dwordx4 v0, v[4:7], s[68:69] offset:{16*q}")
            self.I("s_nop 1")
    def text(self):
        return (f".globl {self.name}\n.p2align 8\n.type {self.name},@function\n{self.name}:\n" + "\n".join(self.lines) + "\n")
    def desc(self):
        acc = (self.nvgpr + 3) // 4 * 4
        nfv = acc + self.nagpr if self.nagpr else self.nvgpr
        return f""".p2align 6
.amdhsa_kernel {self.name}
  .amdhsa_next_free_vgpr {nfv}
  .amdhsa_next_free_sgpr {self.nsgpr}
  .amdhsa_accum_offset {acc}
  .amdhsa_group_segment_fixed_size 0
  .amdhsa_kernarg_size 88
  .amdhsa_user_sgpr_count 2
  .amdhsa_user_sgpr_kernarg_segment_ptr 1
  .amdhsa_system_sgpr_workgroup_id_x 1
.end_amdhsa_kernel
"""
    def launch(self):
        return f"; @launch kernel={self.name} grid=({self.grid},1,1) block=({self.block},1,1) lds={self.lds}"

def emit_file(header, kerns, order=None, single=False):
    order = order or kerns
    out = [header.rstrip()]
    if single:
        k = kerns[0]
        out.append(f"; @launch grid=({k.grid},1,1) block=({k.block},1,1) lds={k.lds}")
    else:
        for k in order: out.append(k.launch())
    for k in kerns:
        if k.stamp_names: out.append("; stamps " + k.name + " " + ",".join(f"{i}:{n}" for i, n in sorted(k.stamp_names.items())))
    out.append('.amdgcn_target "amdgcn-amd-amdhsa--gfx950"')
    out.append(".text")
    for k in kerns: out.append(k.text())
    out.append('.section .rodata,"a"')
    for k in kerns: out.append(k.desc())
    return "\n".join(out)

_REG = re.compile(r"\b([vas])(\d+)\b|\b([vas])\[(\d+):(\d+)\]|\b(vcc|exec|m0|scc)\b|\b(vcc_lo|vcc_hi|exec_lo|exec_hi)\b")
def regs_of(op):
    out = set()
    for m in _REG.finditer(op):
        if m.group(1): out.add((m.group(1), int(m.group(2))))
        elif m.group(3):
            for i in range(int(m.group(4)), int(m.group(5)) + 1): out.add((m.group(3), i))
        elif m.group(6): out.add((m.group(6), 0))
        else: out.add((m.group(7)[:-3], 0))
    return out

TRANS = ("v_exp_", "v_log_", "v_rcp_", "v_rsq_", "v_sqrt_", "v_sin_", "v_cos_")
class Ins:
    def __init__(self, txt, idx):
        self.txt = txt; self.idx = idx
        t = txt.split(";")[0].strip()
        parts = t.split(None, 1)
        self.op = parts[0]
        rest = parts[1] if len(parts) > 1 else ""
        ops = []; depth = 0; cur = ""
        for ch in rest:
            if ch == "[": depth += 1
            if ch == "]": depth -= 1
            if ch == "," and depth == 0: ops.append(cur.strip()); cur = ""
            else: cur += ch
        if cur.strip(): ops.append(cur.strip())
        self.mods = ""
        if ops:
            last = ops[-1].split(None, 1)
            if len(last) > 1 and not last[0].startswith("hwreg"):
                ops[-1] = last[0]; self.mods = last[1]
        self.ops = ops
        op = self.op
        self.mfma = op.startswith("v_mfma")
        self.valu = op.startswith("v_") and not self.mfma
        self.trans = op.startswith(TRANS)
        self.salu = op.startswith("s_")
        self.vmem = op.startswith(("global_", "buffer_", "flat_"))
        self.ds = op.startswith("ds_")
        self.dpp = "_dpp" in op or "quad_perm" in self.mods or "row_" in self.mods
        self.permlane = op.startswith("v_permlane")
        self.states = 1
        if op == "s_nop": self.states = int(ops[0], 0) + 1
        R = [regs_of(o) for o in ops]
        w = set(); r = set()
        if self.mfma:
            w = R[0]; r = R[1] | R[2] | R[3]
            self.A = R[1]; self.B = R[2]; self.Cc = R[3]
            self.passes = 8 if "32x32" in op else 4
        elif self.valu:
            if self.permlane and "swap" in op:
                w = R[0] | R[1]; r = R[0] | R[1]
            elif op.startswith(("v_add_co", "v_sub_co", "v_addc_co", "v_subb_co", "v_subrev_co")):
                w = R[0] | R[1]; r = set().union(*R[2:])
            elif op.startswith("v_cmpx"):
                w = R[0] | {("exec", 0)}; r = set().union(*R[1:])
            elif op in ("v_nop",):
                pass
            else:
                w = R[0]; r = set().union(*R[1:]) if len(R) > 1 else set()
                if op.startswith(("v_fmac", "v_mac", "v_dot2c", "v_writelane")) or "UNUSED_PRESERVE" in self.mods or self.dpp:
                    r |= R[0]
                if op.startswith("v_cndmask") and len(ops) == 3: r |= {("vcc", 0)}
        elif self.vmem:
            lds = "_lds_" in op or " lds" in (" " + self.mods)
            if "load" in op and not lds:
                w = R[0]; r = set().union(*R[1:])
            elif "atomic" in op and "sc0" in self.mods:
                w = R[0]; r = set().union(*R[1:])
            else:
                r = set().union(*R) if R else set()
            if lds: r |= {("m0", 0)}
            self.lds = lds
            self.store_data = set()
            if "store" in op and ("x4" in op or "x3" in op):
                self.store_data = R[1] if op.startswith("global") else R[0]
        elif self.ds:
            if op.startswith(("ds_read", "ds_bpermute", "ds_permute", "ds_swizzle")) or "_rtn" in op:
                w = R[0]; r = set().union(*R[1:]) if len(R) > 1 else set()
            else:
                r = set().union(*R)
        elif self.salu:
            if op.startswith(("s_cmp", "s_cbranch", "s_branch", "s_waitcnt", "s_barrier", "s_nop", "s_endpgm", "s_sleep", "s_setprio", "s_bitcmp")):
                r = set().union(*R) if R else set()
            else:
                w = R[0] if R else set(); r = set().union(*R[1:]) if len(R) > 1 else set()
                if "saveexec" in op: w = w | {("exec", 0)}
        self.w = w; self.r = r

def check_hazards(kern):
    ins = []; labels = {}
    for l in kern.lines:
        t = l.split(";")[0].strip()
        if not t: continue
        if t.endswith(":"): labels[t[:-1]] = len(ins); continue
        if t.startswith("."): continue
        ins.append(Ins(t, len(ins)))
    n = len(ins)
    preds = [[] for _ in range(n + 1)]
    for i, x in enumerate(ins):
        if x.op == "s_endpgm": continue
        if x.op == "s_branch":
            preds[labels[x.ops[0]]].append(i); continue
        if x.op.startswith("s_cbranch"):
            preds[labels[x.ops[0]]].append(i)
        preds[i + 1].append(i)
    errs = []
    def need(p, c):
        req = 0
        vw = {x for x in p.w if x[0] in "va"}
        sw = {x for x in p.w if x[0] in ("s", "vcc")}
        if p.valu:
            if c.mfma and vw & c.r: req = max(req, 2)
            if c.valu and c.dpp and vw & c.r: req = max(req, 2)
            if c.permlane and vw & c.r: req = max(req, 2)
            if c.op.startswith(("v_readlane", "v_readfirstlane")) and vw & c.r: req = max(req, 1)
            if p.trans and c.valu and not c.trans and vw & c.r: req = max(req, 1)
            if p.trans and c.mfma and vw & c.r: req = max(req, 2)
            if sw & c.r:
                if c.vmem: req = max(req, 5)
                if c.valu: req = max(req, 4 if c.op.startswith(("v_readlane", "v_writelane")) else 2)
            if ("exec", 0) in p.w:
                if c.mfma: req = max(req, 4)
                if c.dpp: req = max(req, 5)
                if c.permlane or c.op.startswith(("v_readlane", "v_readfirstlane", "v_writelane")): req = max(req, 4)
            if "sdwa" in p.op and c.valu and vw & c.r: req = max(req, 1)
        if p.mfma:
            big = 12 if p.passes == 8 else 8
            if c.mfma:
                if p.w & (c.A | c.B): req = max(req, big)
                if p.w & c.Cc and not (p.w == c.Cc and p.passes == c.passes): req = max(req, big - 2)
                if p.w & c.w and not (p.w == c.w and p.w == c.Cc): req = max(req, big - 2)
            elif (c.valu or c.vmem or c.ds) and (p.w & (c.r | c.w)): req = max(req, big)
            if c.valu and p.Cc & c.w: req = max(req, 7 if p.passes == 8 else 3)
        if p.op.startswith("v_dot2") and (vw & (c.r | c.w)):
            if not (c.op == p.op and len(c.ops) > 3 and not (vw & (regs_of(c.ops[1]) | regs_of(c.ops[2])))): req = max(req, 3)
        if p.salu and ("m0", 0) in p.w and c.vmem and c.lds: req = max(req, 1)
        if p.vmem and p.store_data and (p.store_data & c.w): req = max(req, 2 if c.valu else 1)
        return req
    for i, c in enumerate(ins):
        stack = [(p, 0) for p in preds[i]]
        seen = set()
        while stack:
            j, dist = stack.pop()
            if (j, dist) in seen: continue
            seen.add((j, dist))
            p = ins[j]
            q = need(p, c)
            if q > dist:
                errs.append(f"{kern.name}: need {q} have {dist}: [{p.txt}] -> [{c.txt}]")
            nd = dist + p.states
            if nd < 13:
                for pp in preds[j]: stack.append((pp, nd))
    return sorted(set(errs))
```

```python
import sys, struct, os
from asmlib import *

NAME = "interleave_layers__softmax_full_mha__moe_arch_mod__prompt"
HEADER = open("cdna_kernels/" + NAME + ".s.ref").read().split("; Override launch")[0]
ENV = os.environ.get

XF = [0x000000, 0x200000]
KF = [0x400000, 0x800000]
VF = [0x600000, 0xA00000]
OF = [0xC00000, 0xE00000]
ST = [0x1000000, 0x1040000]
YP = [0x1080000, 0x1180000]
FLK = [0x1280000, 0x1288000]
FLO = [0x1290000, 0x1298000]
KEY = [0x12A4000, 0x12A6000]
X2R = 0x12A0000
NONCE = 0x12A2000
EPS = 1e-5
def f2u(x): return struct.unpack("<I", struct.pack("<f", x))[0]
QSCALE = 0.25 * 1.4426950408889634
LOG2E = 1.4426950408889634
SPIN_MAX = 1 << 18

CB, CBN = 131072, 20
LWQ = 8192
LST = CB + CBN * 512
LSA = LST
LPC = LST + 8192
LFX = LST + 8448
LVB = LST + 8704
LRD = LST + 10752
LFF = LST + 14848
LDS_BYTES = LFF + 1024

X0P, WQP, WOP, WSP, WRP, WGP, WUP, WDP, OUTP = 4, 6, 8, 10, 12, 14, 16, 18, 20
HEAD, QB, WAVE, TT, W1K, THR, CTR, SPIN, PASS, TAG, CG, TB, OA, KQ, OT, KG, IDX, WSUM = range(22, 40)
T0, T2 = 40, 42
A0 = 44
KB_, VB_, OB_, XB_ = 52, 54, 56, 58
RM, RR, RS_, ONES, C512, CEPS = 60, 61, 62, 63, 64, 65
CGP = 3

def sp(i): return f"s[{i}:{i+1}]"

class VM:
    def __init__(self, k): self.k = k; self.q = []
    def issue(self, txt, tag=None):
        self.k.I(txt); self.q.append(tag)
    def wait(self, tag, extra=""):
        i = max(j for j, t in enumerate(self.q) if t == tag)
        n = len(self.q) - 1 - i
        assert n <= 63
        self.k.I(f"s_waitcnt vmcnt({n}){extra}")
    def drain(self, extra=""):
        self.k.I(f"s_waitcnt vmcnt(0){extra}"); self.q = []

def build_kernel():
    k = Kern(NAME + "_kernel", 256, 512, LDS_BYTES, 128, nagpr=128)
    I = k.I
    vm = VM(k)
    def lab(x): return f"L_{x}"
    def sadd64(d, b, const):
        I(f"s_add_u32 s{d}, s{b}, {hex(const)}"); I(f"s_addc_u32 s{d+1}, s{b+1}, 0")
    def swapop(sw, op, x, t):
        I(f"v_mov_b32 v{t}, v{x}"); k.nop(2); I(f"{sw} v{x}, v{t}"); I(f"{op} v{x}, v{x}, v{t}")
    def halfsum(op, x, t): swapop("v_permlane32_swap_b32", op, x, t)
    def rowreduce(op, x, t):
        swapop("v_permlane16_swap_b32", op, x, t); swapop("v_permlane32_swap_b32", op, x, t)
    def dppred(op, x, modes):
        for m in modes:
            k.nop(2); I(f"{op}_dpp v{x}, v{x}, v{x} {m} row_mask:0xf bank_mask:0xf")
    Q4 = ("quad_perm:[1,0,3,2]", "quad_perm:[2,3,0,1]")
    def allreduce(op, x, t):
        dppred(op, x, Q4 + ("row_half_mirror", "row_mirror")); rowreduce(op, x, t)
    def unpack(dlo, dhi, src):
        I(f"v_lshlrev_b32 v{dlo}, 16, v{src}"); I(f"v_and_b32 v{dhi}, 0xffff0000, v{src}")
    def bf16r(x):
        I(f"v_cvt_pk_bf16_f32 v{x}, v{x}, v{x}"); I(f"v_and_b32 v{x}, 0xffff0000, v{x}")
    def exec_lo(mask):
        I(f"s_mov_b32 exec_lo, {mask}"); I("s_mov_b32 exec_hi, 0")
    def exec_all(): I("s_mov_b64 exec, -1")
    def bar(lg=True):
        if lg: I("s_waitcnt lgkmcnt(0)")
        I("s_barrier")
    def poll(name, loads, tagregs, first_issued=False):
        I(f"s_mov_b32 s{SPIN}, {SPIN_MAX}")
        SL = int(ENV("SLEEP", "0"))
        if first_issued: I(f"s_branch {lab(name+'_w')}")
        elif SL: I(f"s_branch {lab(name+'_l')}")
        k.L(lab(name))
        if SL: I(f"s_sleep {SL}")
        k.L(lab(name + "_l"))
        for l in loads: I(l)
        k.L(lab(name + "_w"))
        I("s_waitcnt vmcnt(0)")
        I(f"v_cmp_ne_u32 vcc, s{TAG}, v{tagregs[0]}")
        for r in tagregs[1:]:
            I(f"v_cmp_ne_u32 {sp(T2)}, s{TAG}, v{r}")
            I(f"s_or_b64 vcc, vcc, {sp(T2)}")
        I(f"s_sub_u32 s{SPIN}, s{SPIN}, 1")
        I(f"s_cbranch_vccz {lab(name+'_ok')}")
        I(f"s_cbranch_scc0 {lab(name)}")
        k.L(lab(name + "_ok"))
        k.stampval(SPIN, "x" + name + "_spin")
        k.stamp(name="x" + name + "_ok")
        vm.q = []
    def mfma(d, a_, b_, c): I(f"v_mfma_f32_32x32x16_bf16 {vr(d,16)}, {a_}, {b_}, {vr(c,16) if c is not None else 0}")
    def rowstats(s1, s2, m, var, rstd):
        I(f"v_mul_f32 v{m}, s{C512}, v{s1}")
        I(f"v_mul_f32 v{var}, s{C512}, v{s2}")
        I(f"v_fma_f32 v{var}, -v{m}, v{m}, v{var}")
        I(f"v_max_f32 v{var}, 0, v{var}")
        I(f"v_add_f32 v{rstd}, s{CEPS}, v{var}")
        I(f"v_rsq_f32 v{rstd}, v{rstd}")

    ACC, WB = 16, 40
    CQ, CV, MV, AL = 64, 72, 76, 84
    MT, AT = [112, 114], [113, 115]
    S0, S1, P0, P1, VA, NEG, O, Q, KB = 16, 32, 48, 52, [56, 64], 72, 88, 104, 108
    AK, AV, AVS, VBASE = 112, 113, 114, 115
    XG, WR, VXO, VTK, RESM, RESR = 116, 120, 124, 125, 126, 127
    TK, TV = 96, 100
    def mfma16(d, a_, b_, first): I(f"v_mfma_f32_16x16x32_bf16 {vr(d,4)}, {a_}, {b_}, {0 if first else vr(d,4)}")
    AWO, ARS, AWS, AGU, ADN = 0, 32, 88, 112, 120

    I("s_cmp_ge_u32 s2, 256")
    I(f"s_cbranch_scc1 {lab('exit')}")
    k.stamp_begin()
    I(f"s_load_dwordx4 s[4:7], s[0:1], 0")
    I(f"s_load_dwordx2 s[8:9], s[0:1], 16")
    I(f"s_load_dwordx2 s[10:11], s[0:1], 80")
    I(f"s_load_dwordx8 s[12:19], s[0:1], 32")
    I(f"s_load_dwordx2 s[20:21], s[0:1], 64")
    I("v_and_b32 v1, 63, v0")
    I("v_lshrrev_b32 v2, 6, v0")
    I("v_lshlrev_b32 v3, 4, v1")
    I(f"v_readfirstlane_b32 s{WAVE}, v2")
    I(f"s_and_b32 s{QB}, s2, 7")
    I(f"s_lshr_b32 s{HEAD}, s2, 3")
    if ENV("HX"):
        I(f"s_cmp_lt_u32 s{HEAD}, 16")
        I(f"s_cselect_b32 s{A0}, 8, 0")
        I(f"s_xor_b32 s{HEAD}, s{HEAD}, s{A0}")
    I(f"s_lshl_b32 s{TT}, s{QB}, 3")
    I(f"s_add_u32 s{TT}, s{TT}, s{WAVE}")
    I(f"s_lshl_b32 s{W1K}, s{WAVE}, 10")
    I("v_lshrrev_b32 v5, 1, v1")
    I("v_mul_u32_u24 v5, 3072, v5")
    I("v_and_b32 v6, 1, v1")
    I("v_lshl_add_u32 v5, v6, 4, v5")
    I(f"s_mul_i32 s{A0}, s{WAVE}, {32*3072}")
    I(f"s_lshl_b32 s{A0+1}, s{HEAD}, 5")
    I(f"s_add_u32 s{A0}, s{A0}, s{A0+1}")
    I(f"v_add_u32 v5, s{A0}, v5")
    I("v_lshrrev_b32 v8, 4, v1")
    I("v_and_b32 v9, 7, v1")
    I("v_xor_b32 v8, v8, v9")
    I("v_lshlrev_b32 v8, 4, v8")
    I("v_lshrrev_b32 v9, 3, v1")
    I("v_lshl_add_u32 v8, v9, 10, v8")
    I(f"s_lshl_b32 s{A0}, s{TT}, 15")
    I(f"v_add_u32 v8, s{A0}, v8")
    I("v_xor_b32 v9, 64, v8")
    I("v_add_u32 v9, 0x2000, v9")
    XBUF, ROT = A0 + 3, A0 + 4
    I(f"s_lshl_b32 s{XBUF}, s{WAVE}, 13")
    I(f"s_add_u32 s{XBUF}, s{XBUF}, {72*1024}")
    I(f"s_cmp_eq_u32 s{WAVE}, 7")
    I(f"s_cselect_b32 s{XBUF}, {56*1024}, s{XBUF}")
    I(f"s_lshl_b32 s{ROT}, s{HEAD}, 1")
    I("s_waitcnt lgkmcnt(0)")
    def xstage(st):
        I(f"s_add_u32 s{A0}, s{ROT}, {2*st}")
        I(f"s_and_b32 s{A0}, s{A0}, 7")
        I(f"s_lshl_b32 s{A0}, s{A0}, 6")
        if st >= 4: I(f"s_add_u32 s{A0}, s{A0}, 512")
        I(f"s_add_u32 s{T0}, s{X0P}, s{A0}")
        I(f"s_addc_u32 s{T0+1}, s{X0P+1}, 0")
        for i in range(4):
            if i == 2: sadd64(T0, T0, 16384)
            I(f"s_add_u32 m0, s{XBUF}, {(st&1)*4096 + i*1024}")
            I("s_nop 0")
            vm.issue(f"global_load_lds_dwordx4 v{8 + (i&1)}, {sp(T0)}", f"x{st}")
    def wdma(i):
        for sec in range(3):
            sadd64(T0, WQP, sec*1024 + i*256*3072)
            I(f"s_add_u32 m0, s{W1K}, {LWQ + sec*16384 + i*8192}")
            I("s_nop 0")
            vm.issue(f"global_load_lds_dwordx4 v5, {sp(T0)}", f"W{i}")
    xstage(0); wdma(0); xstage(1)
    sadd64(T2, WSP, NONCE)
    I(f"s_load_dword s{TAG}, {sp(T2)}, 0")
    I(f"s_lshr_b32 s{CG}, s{HEAD}, 2")
    I(f"s_and_b32 s{TB}, s{HEAD}, 3")
    I(f"s_lshl_b32 s{A0}, s{QB}, 2")
    I(f"s_add_u32 s{TB}, s{TB}, s{A0}")
    I(f"s_and_b32 s{OA}, s{WAVE}, 1")
    I(f"s_lshr_b32 s{KQ}, s{WAVE}, 1")
    I(f"s_lshl_b32 s{OT}, s{TB}, 1")
    I(f"s_add_u32 s{OT}, s{OT}, s{OA}")
    I(f"s_lshl_b32 s{KG}, s{CG}, 2")
    I(f"s_add_u32 s{KG}, s{KG}, s{KQ}")
    I(f"s_mul_i32 s{CGP}, s{QB}, 28")
    I(f"s_min_u32 s{A0}, s{HEAD}, 27")
    I(f"s_add_u32 s{CGP}, s{CGP}, s{A0}")
    I(f"s_mov_b32 s{THR}, {hex(f2u(2.0**30))}")
    I(f"s_mov_b32 s{ONES}, 0x3f803f80")
    I(f"s_mov_b32 s{C512}, {hex(f2u(1/512))}")
    I(f"s_mov_b32 s{CEPS}, {hex(f2u(EPS))}")
    I("v_and_b32 v13, 11, v0")
    I(f"v_mov_b32 v14, s{ONES}")
    I("v_cmp_eq_u32 vcc, 0, v13")
    I("v_lshlrev_b32 v13, 4, v0")
    I(f"v_add_u32 v13, {CB}, v13")
    I("v_cndmask_b32 v16, 0, v14, vcc")
    for r in range(1, 4): I(f"v_mov_b32 v{16+r}, v16")
    I("ds_write_b128 v13, v[16:19]")
    I(f"v_cmp_gt_u32 vcc, {(CBN*512 - 8192)//16}, v0")
    I(f"s_and_saveexec_b64 {sp(T2)}, vcc")
    I("ds_write_b128 v13, v[16:19] offset:8192")
    exec_all()
    def lane_terms():
        I("v_and_b32 v6, 31, v1")
        I("v_lshrrev_b32 v7, 5, v1")
    lane_terms()
    def w_addr(natural):
        I("v_bfe_u32 v12, v1, 2, 2")
        I("v_lshrrev_b32 v13, 4, v1")
        if natural:
            I("v_lshl_add_u32 v12, v13, 3, v12")
        else:
            I("v_lshl_add_u32 v12, v7, 4, v12")
            I("v_and_b32 v13, 1, v13")
            I("v_lshl_add_u32 v12, v13, 2, v12")
        I("v_and_b32 v13, 3, v1")
        I("v_lshlrev_b32 v13, 3, v13")
        I("v_lshl_add_u32 v10, v12, 5, v13")
        I(f"v_add_u32 v10, {LWQ}, v10")
    w_addr(True)
    def wreads(dst, ad, ks, natural):
        second = 128 if natural else 256
        for sec in range(3):
            I(f"ds_read_b64_tr_b16 {vr(dst+4*sec,2)}, v{ad} offset:{sec*16384+ks*1024}")
            I(f"ds_read_b64_tr_b16 {vr(dst+4*sec+2,2)}, v{ad} offset:{sec*16384+ks*1024+second}")
    def qmfmas(wb, xa, xb, first, between=None):
        for i, (d, A_, B_) in enumerate(((ACC, vr(wb,4), xa), (ACC+4, vr(wb,4), xb), (ACC+8, vr(wb+4,4), xa),
                                         (ACC+12, vr(wb+4,4), xb), (ACC+16, xa, vr(wb+8,4)), (ACC+20, xb, vr(wb+8,4)))):
            mfma16(d, A_, B_, first)
            if between: between(i)
    I("v_bfe_u32 v12, v1, 1, 3")
    I("v_and_b32 v13, 15, v1")
    I(f"v_lshl_add_u32 v13, v13, 7, s{XBUF}")
    I("v_lshrrev_b32 v14, 4, v1")
    I("v_xor_b32 v14, v14, v12")
    I("v_lshl_add_u32 v100, v14, 4, v13")
    I("v_xor_b32 v101, 64, v100")
    def xfrags(st):
        vm.wait(f"x{st}")
        for h in range(2):
            for t in range(2): I(f"ds_read_b128 {ar(16*st+8*h+4*t,4)}, v{100+h} offset:{(st&1)*4096+2048*t}")
    k.stamp(name="q0_issue")
    for st in range(2):
        xfrags(st)
        I("s_waitcnt lgkmcnt(0)")
        xstage(st + 2)
    wdma(1)
    I("s_barrier")
    I(f"s_mul_i32 s{TAG}, s{TAG}, 0x9E3779B1")
    I(f"s_add_u32 s{TAG}, s{TAG}, 0x7F4A7C15")
    k.stamp(name="q0_W")
    CSA = 84
    def colsum_part(i):
        I(f"v_add_u32 v13, s{W1K}, v10")
        wreads(88, 13, 8*i, True)
        if i == 0:
            for sec in range(3): I(f"v_mov_b32 v{CSA+sec}, 0")
        I("s_waitcnt lgkmcnt(0)")
        for sec in range(3):
            for r in range(4): I(f"v_dot2_f32_bf16 v{CSA+sec}, v{88+4*sec+r}, s{ONES}, v{CSA+sec}")
        if i == 1:
            k.nop(2)
            for sec in range(3): rowreduce("v_add_f32", CSA + sec, 13)
            I(f"s_lshl_b32 s{A0}, s{WAVE}, 8")
            I(f"s_add_u32 s{A0}, s{A0}, {LRD}")
            I("v_and_b32 v13, 15, v1")
            I(f"v_lshl_add_u32 v13, v13, 2, s{A0}")
            for sec in range(3): I(f"ds_write_b32 v13, v{CSA+sec} offset:{64*sec}")
    def sum8(src, dst):
        I("v_lshlrev_b32 v13, 2, v1")
        I(f"v_add_u32 v14, {src}, v13")
        for w in range(8): I(f"ds_read_b32 v{104+w}, v14 offset:{256*w}")
        I(f"v_add_u32 v13, {dst}, v13")
        I("s_waitcnt lgkmcnt(0)")
        for a_, b_ in ((0,1),(2,3),(4,5),(6,7),(0,2),(4,6),(0,4)): I(f"v_add_f32 v{104+a_}, v{104+a_}, v{104+b_}")
        I("ds_write_b32 v13, v104")
    GU, ON = 64, 80
    for r in range(4): I(f"v_mov_b32 v{ON+r}, s{ONES}")
    def wbase(ks):
        I(f"s_add_u32 s{A0}, s{ROT}, {ks}")
        I(f"s_and_b32 s{A0}, s{A0}, 7")
        I(f"s_lshl_b32 s{A0}, s{A0}, 10")
        I(f"v_add_u32 v12, s{A0}, v10")
    def wsave():
        I(f"s_mul_i32 s{A0}, s{WAVE}, 6144")
        I(f"s_add_u32 s{A0}, s{A0}, {LWQ}")
        I(f"v_add_u32 v13, s{A0}, v3")
        for i in range(6): I(f"ds_read_b128 {ar(AWS+4*i,4)}, v13 offset:{1024*i}")
    wbase(0)
    wreads(WB, 12, 0, True)
    for ks in range(16):
        st = ks // 2
        pre = 0
        if ks == 3: colsum_part(0)
        if ks == 7:
            vm.wait("W1")
            I("s_barrier")
        if ks == 9: colsum_part(1)
        if ks == 12: bar()
        if ks == 13: sum8(LRD, LPC)
        if ks == 14: wsave(); pre = 6
        if ks % 2 == 0 and st + 2 < 8:
            xfrags(st + 2); pre = 4
        if ks < 15:
            wbase(ks + 1)
            wreads(WB + 12*((ks+1)&1), 12, 8*((ks+1)//8), True)
        I(f"s_waitcnt lgkmcnt({(6 if ks < 15 else 0) + pre})")
        if ks % 2 == 1 and st + 4 < 8: xstage(st + 4)
        xa, xb = ar(8*ks,4), ar(8*ks+4,4)
        mfma16(GU, xa, xa, ks == 0); mfma16(GU + 4, xb, xb, ks == 0)
        qmfmas(WB + 12*(ks&1), xa, xb, ks == 0)
        mfma16(GU + 8, vr(ON,4), xa, ks == 0); mfma16(GU + 12, vr(ON,4), xb, ks == 0)
    for f in range(8): I(f"v_accvgpr_write_b32 a{ADN+f}, 0")
    k.stamp(name="q0_loop")
    I("v_lshrrev_b32 v12, 4, v1")
    I("v_lshlrev_b32 v12, 2, v12")
    I("v_and_b32 v13, 15, v1")
    I("v_sub_u32 v12, v13, v12")
    for t in range(2): I(f"v_mov_b32 v{ON+t}, 0")
    for r in range(4):
        I(f"v_cmp_eq_u32 vcc, {r}, v12")
        k.nop(2)
        for t in range(2): I(f"v_cndmask_b32 v{ON+t}, v{ON+t}, v{GU+4*t+r}, vcc")
    for t in range(2): rowreduce("v_add_f32", ON + t, 12)
    for t in range(2): rowstats(GU + 8 + 4*t, ON + t, MT[t], 12, AT[t])

    def bounce_params():
        I(f"s_lshl_b32 s{A0}, s{WAVE}, 8")
        I(f"s_add_u32 s{A0}, s{A0}, {LVB}")
        I("v_and_b32 v13, 15, v1")
        I(f"v_lshl_add_u32 v12, v13, 2, s{A0}")
        for t in range(2):
            I(f"ds_write_b32 v12, v{MT[t]} offset:{64*t}")
            I(f"ds_write_b32 v12, v{AT[t]} offset:{128+64*t}")
        I("v_and_b32 v14, 48, v1")
        I(f"v_add_u32 v12, s{A0}, v14")
        for t in range(2):
            I(f"ds_read_b128 {vr(MV+4*t,4)}, v12 offset:{64*t}")
            I(f"ds_read_b128 {vr(AL+4*t,4)}, v12 offset:{128+64*t}")
        I(f"v_add_u32 v12, {LPC}, v14")
        for sec in range(2): I(f"ds_read_b128 {vr(CQ+4*sec,4)}, v12 offset:{64*sec}")
        I("v_lshlrev_b32 v12, 2, v13")
        I(f"v_add_u32 v12, {LPC + 128}, v12")
        I(f"ds_read_b32 v{CV}, v12")
    bounce_params()

    def q_epilogue(L):
        n = f"l{L}"
        sadd64(KB_, WSP, KF[L]); sadd64(VB_, WSP, VF[L]); sadd64(OB_, WSP, OF[L])
        for t in range(2): I(f"v_mul_f32 v{13+t}, {hex(f2u(QSCALE))}, v{AT[t]}")
        I(f"s_lshl_b32 s{A0}, s{HEAD}, 16")
        I(f"s_lshl_b32 s{A0+1}, s{TT}, 10")
        I(f"s_add_u32 s{A0}, s{A0}, s{A0+1}")
        I(f"v_add_u32 v4, s{A0}, v3")
        I(f"v_add_u32 v15, s{W1K}, v3")
        I("v_add_u32 v5, 0x10000, v15")
        I("s_waitcnt lgkmcnt(0)")
        for sec in (1, 0):
            for t in range(2):
                for r in range(4): I(f"v_fma_f32 v{ACC+8*sec+4*t+r}, -v{MT[t]}, v{CQ+4*sec+r}, v{ACC+8*sec+4*t+r}")
            for t in range(2):
                for r in range(4): I(f"v_mul_f32 v{ACC+8*sec+4*t+r}, v{AT[t] if sec else 13+t}, v{ACC+8*sec+4*t+r}")
            d = TK if sec else Q
            for i in range(4): I(f"v_cvt_pk_bf16_f32 v{d+i}, v{ACC+8*sec+2*i}, v{ACC+8*sec+2*i+1}")
        for r in range(8): I(f"v_fma_f32 v{ACC+16+r}, -v{MV+r}, v{CV}, v{ACC+16+r}")
        I(f"v_permlane16_swap_b32 v{TK}, v{TK+2}")
        I(f"v_permlane16_swap_b32 v{TK+1}, v{TK+3}")
        for r in range(8): I(f"v_mul_f32 v{ACC+16+r}, v{AL+r}, v{ACC+16+r}")
        vm.issue(f"global_store_dwordx4 v4, {vr(TK,4)}, {sp(KB_)} sc1")
        I(f"ds_write_b128 v15, {vr(TK,4)}")
        for i in range(4): I(f"v_cvt_pk_bf16_f32 v{TV+i}, v{ACC+16+2*i}, v{ACC+16+2*i+1}")
        I(f"v_permlane16_swap_b32 v{Q}, v{Q+2}")
        I(f"v_permlane16_swap_b32 v{Q+1}, v{Q+3}")
        I(f"v_permlane32_swap_b32 v{TV}, v{TV+2}")
        I(f"v_permlane32_swap_b32 v{TV+1}, v{TV+3}")
        vm.issue(f"global_store_dwordx4 v4, {vr(TV,4)}, {sp(VB_)} sc1")
        I(f"ds_write_b128 v5, {vr(TV,4)}")
        I("v_and_b32 v8, 15, v1")
        I("v_bfe_u32 v9, v1, 4, 1")
        I("v_lshlrev_b32 v10, 4, v8")
        I("v_lshl_add_u32 v10, v7, 8, v10")
        I(f"v_lshl_add_u32 v{VBASE}, v9, 16, v10")
        I(f"v_add_u32 v{VBASE}, 0x10000, v{VBASE}")
        I("v_xor_b32 v9, 1, v9")
        I(f"v_lshlrev_b32 v{AVS}, 13, v9")
        I(f"s_mov_b32 s{PASS}, 0")
        I(f"s_lshl_b32 s{A0}, s{HEAD}, 10")
        I(f"s_add_u32 s{A0}, s{A0}, {hex(FLK[L])}")
        I(f"v_lshl_add_u32 v8, v1, 7, s{A0}")
        I(f"s_lshl_b32 s{A0+1}, s{QB}, 7")
        I(f"s_add_u32 s{A0}, s{A0}, s{A0+1}")
        I(f"v_mov_b32 v9, s{A0}")
        bar()

    def attention(L):
        n = f"l{L}"
        I(f"ds_read_b128 {vr(KB,4)}, v3")
        I("s_waitcnt lgkmcnt(0)")
        mfma(S0, vr(KB,4), vr(Q,4), None)
        k.nop(12)
        def max16(dst, S, first):
            if first:
                I(f"v_max3_f32 v{dst}, v{S}, v{S+1}, v{S+2}"); rest = list(range(3, 16))
            else: rest = list(range(16))
            while rest:
                if len(rest) >= 2:
                    I(f"v_max3_f32 v{dst}, v{dst}, v{S+rest[0]}, v{S+rest[1]}"); rest = rest[2:]
                else:
                    I(f"v_max_f32 v{dst}, v{dst}, v{S+rest[0]}"); rest = rest[1:]
        max16(2, S0, True)
        def prime():
            I(f"ds_read_b128 {vr(KB,4)}, v{AK}")
            I(f"ds_read_b128 {vr(VA[0],4)}, v{AV}")
            I(f"ds_read_b128 {vr(VA[0]+4,4)}, v{AV} offset:512")
            I("s_waitcnt lgkmcnt(0)")
            mfma(S0, vr(KB,4), vr(Q,4), NEG)
            I(f"ds_read_b128 {vr(KB,4)}, v{AK} offset:1024")
            k.nop(11)
        def setup():
            halfsum("v_max_f32", 2, 7)
            for r in range(16): I(f"v_sub_f32 v{NEG+r}, 0, v2")
            I(f"v_mov_b32 v{AK}, v3")
            I(f"v_mov_b32 v{AV}, v{VBASE}")
            for r in range(16): I(f"v_mov_b32 v{O+r}, 0")
            for r in range(4): I(f"v_mov_b32 v{P1+r}, 0")
            for r in range(4): I(f"v_mov_b32 v{VA[1]+4+r}, 0")
            prime()
        def tile(u, extra=None, nokread=False, noqk=False, novread=False):
            extra = extra or {}
            Sc, Sn = (S0, S1) if u % 2 == 0 else (S1, S0)
            Vc, Vo = VA[u % 2], VA[1 - u % 2]
            E = lambda r: I(f"v_exp_f32 v{Sc+r}, v{Sc+r}")
            Cv = lambda P, r, b: I(f"v_cvt_pk_bf16_f32 v{P+r}, v{Sc+b+2*r}, v{Sc+b+2*r+1}")
            E(0); E(1)
            mfma(O, vr(Vo+4,4), vr(P1,4), O)
            if 0 in extra: extra[0]()
            E(2); E(3); E(4)
            I("s_waitcnt lgkmcnt(0)")
            E(5)
            if not noqk: mfma(Sn, vr(KB,4), vr(Q,4), NEG)
            E(6)
            if not nokread: I(f"ds_read_b128 {vr(KB,4)}, v{AK} offset:{(u+2)*1024}")
            E(7)
            if not novread: I(f"ds_read_b128 {vr(Vo,4)}, v{AV} offset:{(u+1)*1024}")
            for r in range(4): Cv(P0, r, 0)
            E(8)
            if not novread: I(f"ds_read_b128 {vr(Vo+4,4)}, v{AV} offset:{(u+1)*1024+512}")
            E(9)
            mfma(O, vr(Vc,4), vr(P0,4), O)
            if 1 in extra: extra[1]()
            for r in range(10, 16): E(r)
            for r in range(4): Cv(P1, r, 8)
        def bump():
            I(f"v_add_u32 v{AK}, 0x2000, v{AK}")
            I(f"v_add_u32 v{AV}, v{AVS}, v{AV}")
        setup()
        I("s_setprio 3")
        def publish_kv():
            vm.drain()
            I("s_barrier")
            I(f"s_cmp_lg_u32 s{WAVE}, 0")
            I(f"s_cbranch_scc1 {lab(n+'_noflag')}")
            I(f"v_mov_b32 v14, s{TAG}")
            I("s_mov_b64 exec, 1")
            I(f"global_store_dword v9, v14, {sp(WSP)} sc1")
            exec_all()
            k.L(lab(n + "_noflag"))
        pl = f"global_load_dword v14, v8, {sp(WSP)} sc1"
        def poll_issue():
            I("s_mov_b64 exec, 0xff"); I(pl); exec_all()
        def poll_check():
            I("s_mov_b64 exec, 0xff")
            if L == 1:
                I(f"s_lshr_b32 s{A0}, s{IDX}, 8")
                I(f"s_bitset0_b32 exec_lo, s{A0}")
            poll(n + "_pk", [pl], [14], first_issued=True)
            exec_all()
        def rload(sl):
            if L == 1:
                I(f"s_lshr_b32 s{A0+1}, s{IDX}, 8")
                I(f"s_sub_u32 s{A0+1}, s{A0+1}, s{QB}")
                I(f"s_and_b32 s{A0+1}, s{A0+1}, 7")
                if sl == 7:
                    I(f"s_cmp_eq_u32 s{A0+1}, 0")
                    I(f"s_cselect_b32 s{A0}, 7, s{A0+1}")
                    I("s_mov_b64 exec, 0xff")
                    poll(n + "_pk7", [pl], [14])
                    exec_all()
                else:
                    I(f"s_sub_u32 s{A0+1}, s{A0+1}, 1")
                    I(f"s_cmp_lt_u32 s{A0+1}, {sl}")
                    I(f"s_cselect_b32 s{A0}, {sl+1}, {sl}")
                I(f"s_add_u32 s{A0}, s{QB}, s{A0}")
            else:
                I(f"s_add_u32 s{A0}, s{QB}, {sl}")
            I(f"s_and_b32 s{A0}, s{A0}, 7")
            I(f"s_sub_u32 s{A0}, s{A0}, s{QB}")
            I(f"s_lshl_b32 s{A0}, s{A0}, 13")
            I(f"v_add_u32 v13, s{A0}, v4")
            vm.issue(f"global_load_dwordx4 {ar(ARS+8*(sl-1),4)}, v13, {sp(KB_)} sc1", f"r{sl}")
            vm.issue(f"global_load_dwordx4 {ar(ARS+8*(sl-1)+4,4)}, v13, {sp(VB_)} sc1", f"r{sl}")
        def rwrite(sl):
            if f"r{sl}" in vm.q: vm.wait(f"r{sl}")
            I(f"ds_write_b128 v15, {ar(ARS+8*(sl-1),4)} offset:{sl*8192}")
            I(f"ds_write_b128 v5, {ar(ARS+8*(sl-1)+4,4)} offset:{sl*8192}")
        PUB, PI, PC = [int(x) for x in ENV("POLL", "1,4,5").split(",")]
        for u in range(8):
            ex = {}
            if u == PUB: ex[0] = publish_kv
            if u == PI: ex[0] = poll_issue
            if u == PC: ex[0] = lambda: (poll_check(), rload(1), rload(2))
            tile(u, ex, nokread=(u >= 6), noqk=(u == 7), novread=(u == 7))
        bump()
        rwrite(1)
        bar()
        k.stamp(name=n + "_c0")
        prime()
        def wo_addr():
            I(f"s_lshl_b32 s{A0}, s{WAVE}, 16")
            I(f"s_lshl_b32 s{A0+1}, s{CG}, 7")
            I(f"s_add_u32 s{A0}, s{A0}, s{A0+1}")
            I("v_lshrrev_b32 v2, 3, v1")
            I(f"v_lshl_add_u32 v2, v2, 10, s{A0}")
            I("v_and_b32 v14, 7, v1")
            I("v_lshl_add_u32 v2, v14, 4, v2")
        def wo_load(i):
            vm.issue(f"global_load_dwordx4 {ar(AWO+4*i,4)}, v2, {sp(WOP)}", "wo")
            if i < 7: I("v_add_u32 v2, 0x2000, v2")
        def misc_loads():
            I(f"s_lshl_b32 s{A0}, s{KG}, 9")
            I(f"s_lshl_b32 s{A0+1}, s{OT}, 15")
            I(f"s_add_u32 s{A0}, s{A0}, s{A0+1}")
            I("v_and_b32 v10, 15, v1")
            I(f"v_lshl_add_u32 v{VXO}, v10, 4, s{A0}")
            I("v_lshrrev_b32 v10, 5, v1")
            I(f"v_lshl_add_u32 v{VXO}, v10, 8, v{VXO}")
            I("v_bfe_u32 v10, v1, 4, 1")
            I(f"v_lshl_add_u32 v{VXO}, v10, 14, v{VXO}")
            I("v_and_b32 v10, 31, v1")
            I(f"s_lshl_b32 s{A0}, s{OT}, 5")
            I(f"v_add_u32 v{VTK}, s{A0}, v10")
            I("v_lshrrev_b32 v10, 5, v1")
            I(f"s_lshl_b32 s{A0}, s{KG}, 5")
            I(f"v_lshl_add_u32 v14, v10, 3, s{A0}")
            vm.issue(f"global_load_dwordx2 {vr(WR,2)}, v14, {sp(WRP)}")
            vm.issue(f"global_load_dwordx2 {vr(WR+2,2)}, v14, {sp(WRP)} offset:16")
            I(f"v_lshl_add_u32 v14, v{VTK}, 10, v14")
            vm.issue(f"global_load_dwordx2 {vr(XG,2)}, v14, {sp(X0P)}")
            vm.issue(f"global_load_dwordx2 {vr(XG+2,2)}, v14, {sp(X0P)} offset:16")
        def ffn_gu(m_):
            I(f"s_lshl_b32 s{A0+1}, s{CGP}, 4")
            I(f"v_mul_u32_u24 v14, 3584, v0")
            I(f"v_add_u32 v14, s{A0+1}, v14")
            vm.issue(f"global_load_dwordx4 {ar(AGU+4*m_,4)}, v14, {sp(WUP if m_ else WGP)}")
        def ffn_dn(hf):
            I(f"s_lshl_b32 s{A0+1}, s{CGP}, 13")
            I(f"s_add_u32 s{A0+1}, s{A0+1}, {4096*hf}")
            I(f"v_lshl_add_u32 v14, v0, 1, s{A0+1}")
            for f in range(4):
                vm.issue(f"global_load_short_d16_hi a{ADN+4*hf+f}, v14, {sp(WDP)} offset:{1024*f}")
        sched = {
            1: {(0,0): lambda: rload(3), (3,0): lambda: rload(4), (4,0): lambda: rwrite(2), (6,0): bar},
            2: {(0,0): lambda: rload(5), (3,0): lambda: rload(6), (4,0): lambda: rwrite(3), (5,0): lambda: rwrite(4), (6,0): bar},
            3: {(0,0): lambda: (rload(7), wo_addr())},
            4: {(0,0): lambda: rwrite(5), (1,0): lambda: rwrite(6), (2,0): lambda: rwrite(7), (6,0): bar},
        }
        for i in range(8): sched[3][(1 + i//2, i%2)] = (lambda i=i: wo_load(i))
        if L == 0:
            sched[3][(5,0)] = misc_loads
            sched[3][(6,0)] = lambda: ffn_dn(0)
            sched[3][(7,0)] = lambda: ffn_dn(1)
            sched[4][(3,0)] = lambda: ffn_gu(0)
            sched[4][(5,0)] = lambda: ffn_gu(1)
        for c in range(1, 5):
            for u in range(8):
                tile(u, {sl: f for (uu, sl), f in sched[c].items() if uu == u})
            bump()
        I(f"s_mov_b32 s{CTR}, 5")
        k.lines.append(".p2align 6")
        k.L(lab(n + "_loop"))
        I(f"s_cmp_lt_u32 s{CTR}, 5"); I(f"s_cbranch_scc1 {lab(n+'_pd')}")
        I("s_setprio 2")
        I(f"s_cmp_lt_u32 s{CTR}, 6"); I(f"s_cbranch_scc1 {lab(n+'_pd')}")
        I("s_setprio 1")
        I(f"s_cmp_lt_u32 s{CTR}, 7"); I(f"s_cbranch_scc1 {lab(n+'_pd')}")
        I("s_setprio 0")
        k.L(lab(n + "_pd"))
        for u in range(8): tile(u)
        bump()
        I(f"s_add_u32 s{CTR}, s{CTR}, 1")
        I(f"s_cmp_lt_u32 s{CTR}, 8")
        I(f"s_cbranch_scc1 {lab(n+'_loop')}")
        mfma(O, vr(VA[1]+4,4), vr(P1,4), O)
        I("s_waitcnt lgkmcnt(0)")
        k.stamp(name=n + "_attn")
        k.nop(12)
        I(f"s_cmp_lg_u32 s{PASS}, 0")
        I(f"s_cbranch_scc1 {lab(n+'_fin')}")
        I(f"v_cmp_nge_f32 vcc, s{THR}, v{O+8}")
        k.nop(2)
        I(f"s_cbranch_vccz {lab(n+'_fin')}")
        I(f"s_mov_b32 s{PASS}, 1")
        I(f"v_mov_b32 v{AK}, v3")
        I("v_mov_b32 v2, 0xff800000")
        I(f"s_mov_b32 s{CTR}, 0")
        k.L(lab(n + "_maxloop"))
        I(f"ds_read_b128 {vr(KB,4)}, v{AK}")
        I("s_waitcnt lgkmcnt(0)")
        mfma(S0, vr(KB,4), vr(Q,4), None)
        I(f"v_add_u32 v{AK}, 0x400, v{AK}")
        k.nop(12)
        max16(2, S0, False)
        I(f"s_add_u32 s{CTR}, s{CTR}, 1")
        I(f"s_cmp_lt_u32 s{CTR}, 64")
        I(f"s_cbranch_scc1 {lab(n+'_maxloop')}")
        setup()
        I(f"s_mov_b32 s{CTR}, 0")
        I(f"s_branch {lab(n+'_loop')}")
        k.L(lab(n + "_fin"))
        I(f"v_rcp_f32 v2, v{O+8}")
        I("s_nop 0")
        for r in range(8): I(f"v_mul_f32 v{O+r}, v{O+r}, v2")
        for r in range(4): I(f"v_cvt_pk_bf16_f32 v{P0+r}, v{O+2*r}, v{O+2*r+1}")
        I(f"global_store_dwordx4 v4, {vr(P0,4)}, {sp(OB_)} sc1")

    def oproj(L):
        n = f"l{L}"
        OBf, AC, X, Y = 64, 32, 96, 16
        lane_terms()
        I(f"s_lshl_b32 s{A0}, s{KQ}, 19")
        I(f"s_lshl_b32 s{A0+1}, s{OT}, 10")
        I(f"s_add_u32 s{A0}, s{A0}, s{A0+1}")
        I(f"v_add_u32 v10, s{A0}, v3")
        I(f"s_lshl_b32 s{A0}, s{WAVE}, 13")
        I(f"s_add_u32 s{A0}, s{A0}, 0x10000")
        I(f"v_add_u32 v12, s{A0}, v3")
        vm.drain()
        I("s_barrier")
        k.stamp(name=n + "_odrain")
        I(f"s_cmp_lg_u32 s{WAVE}, 0")
        I(f"s_cbranch_scc1 {lab(n+'_nof')}")
        I(f"s_lshl_b32 s{A0}, s{QB}, 12")
        I(f"s_add_u32 s{A0}, s{A0}, {hex(FLO[L])}")
        I(f"v_lshl_add_u32 v8, v6, 7, s{A0}")
        I(f"s_lshl_b32 s{A0+1}, s{HEAD}, 7")
        I(f"s_add_u32 s{A0}, s{A0}, s{A0+1}")
        I(f"v_mov_b32 v13, s{A0}")
        I(f"v_mov_b32 v14, s{TAG}")
        I("s_mov_b64 exec, 1")
        I(f"global_store_dword v13, v14, {sp(WSP)} sc1")
        exec_all()
        k.L(lab(n + "_nof"))
        for i in range(8): I(f"ds_write_b128 v12, {ar(AWO+4*i,4)} offset:{1024*i}")
        if L == 0:
            I(f"s_lshl_b32 s{A0}, s{WAVE}, 11")
            I(f"v_lshl_add_u32 v13, v1, 5, s{A0}")
            I(f"ds_write_b128 v13, {ar(AGU,4)}")
            I(f"ds_write_b128 v13, {ar(AGU+4,4)} offset:16")
            I(f"global_load_dwordx4 v[16:19], v3, {sp(WRP)}")
        I("v_bfe_u32 v13, v1, 2, 2")
        I("v_and_b32 v14, 3, v1")
        I("v_lshl_add_u32 v12, v7, 2, v13")
        I("v_lshlrev_b32 v12, 7, v12")
        I("v_lshl_add_u32 v12, v14, 3, v12")
        I("v_bfe_u32 v15, v1, 4, 1")
        I("v_lshl_add_u32 v12, v15, 5, v12")
        I(f"s_lshl_b32 s{A0+1}, s{KQ}, 14")
        I(f"s_add_u32 s{A0+1}, s{A0+1}, 0x10000")
        I(f"v_add_u32 v12, s{A0+1}, v12")
        bar()
        for i in range(8):
            for b in range(2):
                I(f"ds_read_b64_tr_b16 {ar(AWO+8*i+4*b,2)}, v12 offset:{2048*i+64*b}")
                I(f"ds_read_b64_tr_b16 {ar(AWO+8*i+4*b+2,2)}, v12 offset:{2048*i+64*b+1024}")
            if i % 2 == 1: I("s_waitcnt lgkmcnt(0)")
        if L == 0:
            I("v_lshl_add_u32 v13, v15, 2, v13")
            I("v_lshl_add_u32 v13, v7, 4, v13")
            I("v_lshlrev_b32 v13, 5, v13")
            I("v_lshl_add_u32 v13, v14, 3, v13")
            I(f"v_add_u32 v13, s{A0}, v13")
            for i in range(2):
                I(f"ds_read_b64_tr_b16 {ar(AGU+4*i,2)}, v13 offset:{1024*i}")
                I(f"ds_read_b64_tr_b16 {ar(AGU+4*i+2,2)}, v13 offset:{1024*i+256}")
            I("v_mov_b32 v20, 0")
            I("s_waitcnt vmcnt(0)")
            for r in range(4): I(f"v_dot2_f32_bf16 v20, v{16+r}, s{ONES}, v20")
            k.nop(1)
            allreduce("v_add_f32", 20, 21)
            I("s_nop 0")
            I(f"v_readfirstlane_b32 s{WSUM}, v20")
        I(f"s_cmp_lg_u32 s{WAVE}, 0")
        I(f"s_cbranch_scc1 {lab(n+'_owait')}")
        exec_lo(-1)
        poll(n + "_po", [f"global_load_dword v14, v8, {sp(WSP)} sc1"], [14])
        exec_all()
        k.L(lab(n + "_owait"))
        bar()
        k.stamp(name=n + "_opoll")
        for i in range(8):
            I(f"global_load_dwordx4 {vr(OBf+4*i,4)}, v10, {sp(OB_)} sc1")
            if i < 7: I("v_add_u32 v10, 0x10000, v10")
        I(f"s_lshl_b32 s{A0}, s{OA}, 15")
        I(f"s_lshl_b32 s{A0+1}, s{KQ}, 11")
        I(f"s_add_u32 s{A0+1}, s{A0+1}, s{A0}")
        I(f"v_add_u32 v9, s{A0+1}, v3")
        I(f"s_lshl_b32 s{A0+1}, s{KQ}, 13")
        I(f"s_add_u32 s{A0+1}, s{A0+1}, s{A0}")
        I(f"v_add_u32 v8, s{A0+1}, v3")
        for i in range(4): unpack(X + 2*i, X + 2*i + 1, XG + i)
        if L == 1:
            for r in range(8): I(f"v_sub_f32 v{Y+r}, v{X+r}, v{RESM}")
            for r in range(8): I(f"v_mul_f32 v{Y+r}, v{Y+r}, v{RESR}")
            for i in range(4): I(f"v_cvt_pk_bf16_f32 v{XG+i}, v{Y+2*i}, v{Y+2*i+1}")
            for i in range(4): unpack(Y + 2*i, Y + 2*i + 1, XG + i)
            for r in range(8): I(f"v_add_f32 v{X+r}, v{X+r}, v{Y+r}")
            for i in range(4): I(f"v_cvt_pk_bf16_f32 v{XG+i}, v{X+2*i}, v{X+2*i+1}")
            for i in range(4): unpack(X + 2*i, X + 2*i + 1, XG + i)
        for i in range(4): unpack(104 + 2*i, 105 + 2*i, WR + i)
        for i in range(8):
            I(f"s_waitcnt vmcnt({7-i})")
            for b in range(2): mfma(AC + 16*b, ar(AWO+8*i+4*b,4), vr(OBf+4*i,4), AC + 16*b if i else None)
        k.stamp(name=n + "_omm")
        k.nop(12)
        for q in range(4):
            for hf in range(2): I(f"ds_write_b128 v9, {vr(AC+8*q+4*hf,4)} offset:{8192*q+1024*hf}")
        bar()
        k.stamp(name="x" + n + "_red")
        for s_ in range(4):
            for hf in range(2): I(f"ds_read_b128 {vr(AC+8*s_+4*hf,4)}, v8 offset:{2048*s_+1024*hf}")
        sadd64(XB_, WSP, XF[L])
        I("s_waitcnt lgkmcnt(0)")
        for r in range(8):
            I(f"v_add_f32 v{AC+r}, v{AC+r}, v{AC+8+r}")
            I(f"v_add_f32 v{AC+16+r}, v{AC+16+r}, v{AC+24+r}")
        for r in range(8): I(f"v_add_f32 v{AC+r}, v{AC+r}, v{AC+16+r}")
        for i in range(4): I(f"v_cvt_pk_bf16_f32 v{XG+i}, v{AC+2*i}, v{AC+2*i+1}")
        for i in range(4): unpack(Y + 2*i, Y + 2*i + 1, XG + i)
        for r in range(8): I(f"v_add_f32 v{X+r}, v{X+r}, v{Y+r}")
        for i in range(4): I(f"v_cvt_pk_bf16_f32 v{XG+i}, v{X+2*i}, v{X+2*i+1}")
        I(f"global_store_dwordx4 v{VXO}, {vr(XG,4)}, {sp(XB_)} sc1")
        for i in range(4): unpack(X + 2*i, X + 2*i + 1, XG + i)
        I(f"v_add_f32 v16, v{X}, v{X+1}")
        I(f"v_mul_f32 v17, v{X}, v{X}")
        I(f"v_mul_f32 v18, v{X}, v104")
        for r in range(1, 8):
            if r > 1: I(f"v_add_f32 v16, v16, v{X+r}")
            I(f"v_fmac_f32 v17, v{X+r}, v{X+r}")
            I(f"v_fmac_f32 v18, v{X+r}, v{104+r}")
        I(f"s_lshl_b32 s{A0}, s{OA}, 12")
        I(f"s_lshl_b32 s{A0+1}, s{KQ}, 10")
        I(f"s_add_u32 s{A0}, s{A0}, s{A0+1}")
        I(f"s_add_u32 s{A0}, s{A0}, {LSA}")
        I(f"v_add_u32 v13, s{A0}, v3")
        I("ds_write_b96 v13, v[16:18]")
        k.stamp(name="x" + n + "_epi")
        I("s_waitcnt vmcnt(0) lgkmcnt(0)")
        k.stamp(name="x" + n + "_xdrain")
        I("s_waitcnt vmcnt(0) lgkmcnt(0)")
        I("s_barrier")
        I(f"s_cmp_lg_u32 s{WAVE}, 0")
        I(f"s_cbranch_scc1 {lab(n+'_nost')}")
        I("v_lshlrev_b32 v13, 4, v6")
        I("v_lshl_add_u32 v13, v7, 12, v13")
        I(f"v_add_u32 v13, {LSA}, v13")
        for j in range(8): I(f"ds_read_b96 {vr(32+4*j,3)}, v13 offset:{512*j}")
        I(f"s_lshl_b32 s{A0}, s{TB}, 3")
        I(f"s_add_u32 s{A0}, s{A0}, s{CG}")
        I(f"s_lshl_b32 s{A0}, s{A0}, 10")
        I(f"s_add_u32 s{A0}, s{A0}, {hex(ST[L])}")
        I(f"v_add_u32 v13, s{A0}, v3")
        I(f"v_mov_b32 v35, s{TAG}")
        I("s_waitcnt lgkmcnt(0)")
        for j in range(1, 8):
            for c in range(3): I(f"v_add_f32 v{32+c}, v{32+c}, v{32+4*j+c}")
        I(f"global_store_dwordx4 v13, v[32:35], {sp(WSP)} sc1")
        k.L(lab(n + "_nost"))
        k.stamp(name=n + "_stpub")

    def hop_a(L, after_poll=None):
        n = f"l{L}"
        I(f"s_lshl_b32 s{A0}, s{TB}, 13")
        I(f"s_add_u32 s{A0}, s{A0}, {hex(ST[L])}")
        I(f"v_lshl_add_u32 v12, v0, 4, s{A0}")
        loads = [f"global_load_dwordx4 v[32:35], v12, {sp(WSP)} sc1"]; tags = [35]
        if L == 0:
            I(f"s_lshr_b32 s{A0}, s{TT}, 1")
            I(f"s_lshl_b32 s{A0}, s{A0}, 13")
            I(f"s_add_u32 s{A0}, s{A0}, {hex(ST[L] + 12)}")
            I("v_and_b32 v13, 7, v1")
            I(f"v_lshl_add_u32 v13, v13, 10, s{A0}")
            loads.append(f"global_load_dword v36, v13, {sp(WSP)} sc1"); tags.append(36)
        poll(n + "_pa", loads, tags)
        I("v_lshlrev_b32 v13, 4, v0")
        I("ds_write_b96 v13, v[32:34]")
        if after_poll: after_poll()
        I(f"s_lshl_b32 s{A0}, s{OA}, 9")
        I(f"v_lshl_add_u32 v13, v6, 4, s{A0}")
        bar()
        k.stamp(name=n + "_hopa")
        for c in range(8): I(f"ds_read_b96 {vr(16+4*c,3)}, v13 offset:{1024*c}")
        I("s_waitcnt lgkmcnt(0)")
        for a_, b_ in ((0,1),(2,3),(4,5),(6,7),(0,2),(4,6),(0,4)):
            for c in range(3): I(f"v_add_f32 v{16+4*a_+c}, v{16+4*a_+c}, v{16+4*b_+c}")
        rowstats(16, 17, RESM, 20, RESR)
        I(f"s_or_b32 s{A0}, s{CG}, s{KQ}")
        I(f"s_cmp_lg_u32 s{A0}, 0")
        I(f"s_cbranch_scc1 {lab(n+'_nokey')}")
        I(f"v_fma_f32 v18, -v{RESM}, s{WSUM}, v18")
        I(f"v_mul_f32 v18, v18, v{RESR}")
        bf16r(18)
        I("v_ashrrev_i32 v19, 31, v18")
        I("v_or_b32 v19, 0x80000000, v19")
        I("v_xor_b32 v19, v19, v18")
        I("v_and_b32 v19, 0xffff0000, v19")
        I(f"v_sub_u32 v20, 2047, v{VTK}")
        I("v_or_b32 v20, v19, v20")
        I("v_mov_b32 v24, v20")
        I(f"v_mov_b32 v21, v{RESM}")
        dppred("v_max_u32", 24, Q4 + ("row_half_mirror", "row_mirror"))
        swapop("v_permlane16_swap_b32", "v_max_u32", 24, 25)
        I("v_cmp_eq_u32 vcc, v24, v20")
        I(f"v_mov_b32 v22, v{RESR}")
        I(f"v_mov_b32 v23, s{TAG}")
        I(f"s_lshl_b32 s{A0}, s{OT}, 7")
        I(f"s_add_u32 s{A0}, s{A0}, {hex(KEY[L])}")
        I(f"v_mov_b32 v13, s{A0}")
        I("s_mov_b32 exec_lo, vcc_lo")
        I("s_mov_b32 exec_hi, 0")
        I(f"global_store_dwordx4 v13, v[20:23], {sp(WSP)} sc1")
        exec_all()
        k.L(lab(n + "_nokey"))
        k.stamp(name="x" + n + "_key")

    FT = 64
    SR = 96
    stat_loads = [f"global_load_dwordx4 {vr(SR+4*i,4)}, v11, {sp(WSP)} offset:{1024*i} sc1" for i in range(4)]
    stat_tags = [SR + 4*i + 3 for i in range(4)]
    def own_stats():
        for i in range(1, 4):
            for c in range(2): I(f"v_add_f32 v{SR+c}, v{SR+c}, v{SR+4*i+c}")
        halfsum("v_add_f32", SR, SR + 2)
        halfsum("v_add_f32", SR + 1, SR + 2)
        rowstats(SR, SR + 1, MT[0], SR + 2, SR + 3)
        I(f"v_mov_b32 v{AT[0]}, s{CEPS}")
        I(f"v_add_f32 v{SR+3}, 1.0, v{SR+3}")
        I(f"v_mul_f32 v{SR+2}, v{SR+2}, v{SR+3}")
        I(f"v_fmac_f32 v{AT[0]}, v{SR+2}, v{SR+3}")
        I(f"v_rsq_f32 v{AT[0]}, v{AT[0]}")
        I(f"v_mov_b32 v{MT[1]}, v{MT[0]}")
        I(f"v_mul_f32 v{AT[0]}, v{AT[0]}, v{SR+3}")
        I(f"v_mov_b32 v{AT[1]}, v{AT[0]}")
        I(f"v_permlane16_swap_b32 v{MT[0]}, v{MT[1]}")
        I("s_nop 0")
        I(f"v_permlane16_swap_b32 v{AT[0]}, v{AT[1]}")
    def key_load(L):
        return f"global_load_dwordx4 {vr(FT,4)}, v{FT+4}, {sp(WSP)} sc1"
    def hop_b_issue(L):
        I(f"v_lshlrev_b32 v{FT+4}, 7, v1")
        I(f"v_add_u32 v{FT+4}, {hex(KEY[L])}, v{FT+4}")
        I(f"s_cmp_lg_u32 s{WAVE}, 0")
        I(f"s_cbranch_scc1 {lab(f'l{L}_nki')}")
        I(key_load(L))
        k.L(lab(f"l{L}_nki"))
    def hop_b(L, extra_after_idx=None):
        n = f"l{L}"
        I(f"v_mov_b32 v{FT+6}, {LFF}")
        I(f"s_cmp_lg_u32 s{WAVE}, 0")
        I(f"s_cbranch_scc1 {lab(n+'_kw')}")
        keepq = list(vm.q)
        poll(n + "_pb", [key_load(L)], [FT + 3], first_issued=True)
        vm.q = keepq
        I(f"v_mov_b32 v{FT+5}, v{FT}")
        allreduce("v_max_u32", FT + 5, FT + 7)
        I(f"v_cmp_eq_u32 vcc, v{FT+5}, v{FT}")
        I("s_mov_b64 exec, vcc")
        I(f"ds_write_b96 v{FT+6}, {vr(FT,3)}")
        exec_all()
        k.L(lab(n + "_kw"))
        bar()
        I(f"ds_read_b96 {vr(FT,3)}, v{FT+6}")
        I("s_waitcnt lgkmcnt(0)")
        I(f"v_readfirstlane_b32 s{IDX}, v{FT}")
        I(f"v_readfirstlane_b32 s{RM}, v{FT+1}")
        I(f"v_readfirstlane_b32 s{RR}, v{FT+2}")
        I(f"s_and_b32 s{RS_}, s{IDX}, 0xffff0000")
        I(f"s_and_b32 s{IDX}, s{IDX}, 0x7ff")
        I(f"s_sub_u32 s{IDX}, 2047, s{IDX}")
        I(f"s_ashr_i32 s{A0}, s{RS_}, 31")
        I(f"s_not_b32 s{A0}, s{A0}")
        I(f"s_or_b32 s{A0}, s{A0}, 0x80000000")
        I(f"s_xor_b32 s{RS_}, s{RS_}, s{A0}")
        I(f"s_and_b32 s{RS_}, s{RS_}, 0xffff0000")
        I(f"s_lshr_b32 s{A0}, s{IDX}, 4")
        I(f"s_lshl_b32 s{A0}, s{A0}, 14")
        I(f"s_and_b32 s{A0+1}, s{IDX}, 15")
        I(f"s_lshl_b32 s{A0+1}, s{A0+1}, 4")
        I(f"s_add_u32 s{A0}, s{A0}, s{A0+1}")
        I("s_cmp_ge_u32 s2, 224")
        I(f"s_cbranch_scc1 {lab(n+'_frow')}")
        I(f"s_lshl_b32 s{A0+1}, s{WAVE}, 11")
        I(f"s_add_u32 s{A0}, s{A0}, s{A0+1}")
        I(f"v_and_b32 v{FT+4}, 48, v1")
        I(f"v_lshl_add_u32 v{FT+4}, v{FT+4}, 4, s{A0}")
        I(f"v_add_u32 v{FT+5}, 0x400, v{FT+4}")
        I(f"s_branch {lab(n+'_rowld')}")
        k.L(lab(n + "_frow"))
        I(f"s_sub_u32 s{A0+1}, s2, 224")
        I(f"s_lshl_b32 s{A0+1}, s{A0+1}, 9")
        I(f"s_add_u32 s{A0}, s{A0}, s{A0+1}")
        I(f"v_bfe_u32 v{FT+4}, v1, 2, 1")
        I(f"v_lshl_add_u32 v{FT+4}, v{FT+4}, 8, s{A0}")
        I(f"v_mov_b32 v{FT+5}, v{FT+4}")
        k.L(lab(n + "_rowld"))
        vm.issue(f"global_load_dwordx4 {vr(FT+8,4)}, v{FT+4}, {sp(XB_)} sc1", "row")
        vm.issue(f"global_load_dwordx4 {vr(FT+12,4)}, v{FT+5}, {sp(XB_)} sc1", "row")
    def slice1(L):
        n = f"l{L}"
        XR = FT + 8
        vm.wait("row")
        k.stamp(name="x" + n + "_row")
        I("s_cmp_ge_u32 s2, 224")
        I(f"s_cbranch_scc1 {lab(n+'_s1skip')}")
        for i in range(8):
            unpack(FT, FT + 1, XR + i)
            I(f"v_subrev_f32 v{FT}, s{RM}, v{FT}")
            I(f"v_subrev_f32 v{FT+1}, s{RM}, v{FT+1}")
            I(f"v_mul_f32 v{FT}, s{RR}, v{FT}")
            I(f"v_mul_f32 v{FT+1}, s{RR}, v{FT+1}")
            I(f"v_cvt_pk_bf16_f32 v{XR+i}, v{FT}, v{FT+1}")
        I(f"v_lshrrev_b32 v{FT+4}, 4, v1")
        I(f"v_lshlrev_b32 v{FT+4}, 4, v{FT+4}")
        I(f"v_mfma_f32_16x16x32_bf16 {vr(FT+16,4)}, {ar(AGU,4)}, {vr(XR,4)}, 0")
        I(f"v_mfma_f32_16x16x32_bf16 {vr(FT+16,4)}, {ar(AGU+4,4)}, {vr(XR+4,4)}, {vr(FT+16,4)}")
        I(f"s_lshl_b32 s{A0}, s{WAVE}, 6")
        I(f"s_add_u32 s{A0}, s{A0}, {LFF + 256}")
        I(f"v_add_u32 v{FT+4}, s{A0}, v{FT+4}")
        I("s_mov_b32 exec_lo, 0x00010001")
        I("s_mov_b32 exec_hi, 0x00010001")
        k.nop(3)
        I(f"ds_write_b128 v{FT+4}, {vr(FT+16,4)}")
        exec_all()
        bar()
        k.L(lab(n + "_s1skip"))
    def slice2(L):
        n = f"l{L}"
        I("s_cmp_ge_u32 s2, 224")
        I(f"s_cbranch_scc1 {lab(n+'_s2skip')}")
        I(f"v_and_b32 v{FT+4}, 15, v1")
        I(f"v_lshlrev_b32 v{FT+4}, 2, v{FT+4}")
        I(f"v_add_u32 v{FT+4}, {LFF + 256}, v{FT+4}")
        for i in range(8): I(f"ds_read_b32 v{FT+8+i}, v{FT+4} offset:{64*i}")
        for f in range(8): I(f"v_accvgpr_read_b32 v{FT+16+f}, a{ADN+f}")
        I("s_waitcnt lgkmcnt(0)")
        g = FT + 8
        for a_, b_ in ((0,1),(2,3),(4,5),(6,7),(0,2),(4,6),(0,4)): I(f"v_add_f32 v{g+a_}, v{g+a_}, v{g+b_}")
        bf16r(g)
        t = FT
        I(f"v_mul_f32 v{t}, {hex(f2u(-LOG2E))}, v{g}")
        I(f"v_exp_f32 v{t}, v{t}")
        I("s_nop 0")
        I(f"v_add_f32 v{t}, 1.0, v{t}")
        I(f"v_rcp_f32 v{t}, v{t}")
        I("s_nop 0")
        I(f"v_mul_f32 v{t}, v{t}, v{g}")
        bf16r(t)
        k.nop(2)
        I(f"v_mul_f32_dpp v{t}, v{g}, v{t} row_ror:8 row_mask:0xf bank_mask:0xf")
        bf16r(t)
        k.nop(1)
        for f in range(8): I(f"v_readlane_b32 s{A0+f}, v{t}, {f}")
        I(f"s_lshl_b32 s{T2}, s{CGP}, 12")
        I(f"s_add_u32 s{T2}, s{T2}, {hex(YP[L])}")
        I(f"v_lshl_add_u32 v{FT+4}, v0, 3, s{T2}")
        I(f"v_mul_f32 v{FT+2}, s{A0}, v{FT+16}")
        for f in range(1, 8): I(f"v_fmac_f32 v{FT+2}, s{A0+f}, v{FT+16+f}")
        I(f"v_mov_b32 v{FT+3}, s{TAG}")
        I(f"global_store_dwordx2 v{FT+4}, {vr(FT+2,2)}, {sp(WSP)} sc1")
        k.L(lab(n + "_s2skip"))
    def finalize(L):
        n = f"l{L}"
        I("s_cmp_lt_u32 s2, 224")
        I(f"s_cbranch_scc1 {lab(n+'_fskip')}")
        XR = FT + 8
        I(f"v_lshrrev_b32 v{FT+4}, 4, v0")
        I(f"v_mul_u32_u24 v{FT+4}, {7*4096}, v{FT+4}")
        I(f"v_and_b32 v{FT+5}, 15, v0")
        I(f"v_lshl_add_u32 v{FT+4}, v{FT+5}, 3, v{FT+4}")
        I(f"s_sub_u32 s{A0}, s2, 224")
        I(f"s_lshl_b32 s{A0+1}, s{A0}, 7")
        I(f"s_add_u32 s{A0+1}, s{A0+1}, {hex(YP[L])}")
        I(f"v_add_u32 v{FT+4}, s{A0+1}, v{FT+4}")
        for i in range(1, 4): I(f"v_add_u32 v{FT+i-1}, {8192*i}, v{FT+4}")
        I(f"v_bfe_u32 v{FT+6}, v1, 1, 1")
        I(f"v_cmp_eq_u32 vcc, 1, v{FT+6}")
        I(f"v_bfe_u32 v{FT+6}, v1, 3, 1")
        I("s_nop 0")
        I(f"v_cndmask_b32 v{XR}, v{XR}, v{XR+1}, vcc")
        I(f"v_cndmask_b32 v{XR+2}, v{XR+2}, v{XR+3}, vcc")
        I(f"v_cmp_eq_u32 vcc, 1, v{FT+6}")
        I(f"v_and_b32 v{FT+6}, 1, v1")
        I("s_nop 0")
        I(f"v_cndmask_b32 v{XR}, v{XR}, v{XR+2}, vcc")
        I(f"v_cmp_eq_u32 vcc, 1, v{FT+6}")
        unpack(XR + 1, XR + 2, XR)
        I(f"v_cndmask_b32 v{XR}, v{XR+1}, v{XR+2}, vcc")
        Y_ = FT + 16
        ad = [FT + 4, FT, FT + 1, FT + 2]
        keepq = list(vm.q)
        poll(n + "_pf", [f"global_load_dwordx2 {vr(Y_+2*i,2)}, v{ad[i//2]}, {sp(WSP)} offset:{4096*(i%2) - (4096 if False else 0)} sc1" if False else
                         f"global_load_dwordx2 {vr(Y_+2*i,2)}, v{ad[(i+1)//2]}, {sp(WSP)} offset:{-4096 if i % 2 else 0} sc1" for i in range(7)],
             [Y_ + 2*i + 1 for i in range(7)])
        for i in range(1, 7): I(f"v_add_f32 v{Y_}, v{Y_}, v{Y_+2*i}")
        rowreduce("v_add_f32", Y_, FT + 6)
        I(f"v_lshlrev_b32 v{FT+5}, 2, v{FT+5}")
        I(f"v_add_u32 v{FT+5}, {LFF + 256}, v{FT+5}")
        I(f"s_lshl_b32 s{A0+1}, s{WAVE}, 6")
        I(f"v_add_u32 v{FT+6}, s{A0+1}, v{FT+5}")
        I(f"ds_write_b32 v{FT+6}, v{Y_}")
        bar()
        for i in range(8): I(f"ds_read_b32 v{Y_+i}, v{FT+5} offset:{64*i}")
        t = FT
        I(f"v_mov_b32 v{t}, {hex(f2u(-LOG2E))}")
        I(f"v_mul_f32 v{t}, s{RS_}, v{t}")
        I(f"v_exp_f32 v{t}, v{t}")
        I(f"v_subrev_f32 v{t+1}, s{RM}, v{XR}")
        I(f"v_add_f32 v{t}, 1.0, v{t}")
        I(f"v_rcp_f32 v{t}, v{t}")
        I(f"v_mul_f32 v{t+1}, s{RR}, v{t+1}")
        bf16r(t); bf16r(t + 1)
        I("s_waitcnt lgkmcnt(0)")
        for i in range(1, 8): I(f"v_add_f32 v{Y_}, v{Y_}, v{Y_+i}")
        bf16r(Y_)
        I(f"v_mul_f32 v{Y_}, v{Y_}, v{t}")
        bf16r(Y_)
        I(f"v_add_f32 v{Y_}, v{Y_}, v{t+1}")
        bf16r(Y_)
        I(f"v_add_f32 v{Y_}, v{Y_}, v{XR}")
        I(f"v_cvt_pk_bf16_f32 v{Y_}, v{Y_}, v{Y_}")
        I(f"s_cmp_lg_u32 s{WAVE}, 0")
        I(f"s_cbranch_scc1 {lab(n+'_fskip')}")
        if L == 1:
            I(f"s_lshl_b32 s{A0+1}, s{IDX}, 10")
            I(f"s_lshl_b32 s{A0}, s{A0}, 5")
            I(f"s_add_u32 s{A0}, s{A0}, s{A0+1}")
            I(f"v_lshl_add_u32 v{FT+4}, v1, 1, s{A0}")
            exec_lo("0xffff")
            I(f"global_store_short v{FT+4}, v{Y_}, {sp(OUTP)}")
        else:
            I(f"v_and_b32 v{Y_}, 0xffff, v{Y_}")
            k.nop(2)
            for j, qp in ((1, 1), (2, 2), (3, 3)):
                I(f"v_mov_b32_dpp v{Y_+j}, v{Y_} quad_perm:[{qp},{qp},{qp},{qp}] row_mask:0xf bank_mask:0xf")
            I(f"v_lshl_or_b32 v{Y_}, v{Y_+1}, 16, v{Y_}")
            I(f"v_lshl_or_b32 v{Y_+1}, v{Y_+3}, 16, v{Y_+2}")
            I(f"v_mov_b32 v{Y_+2}, s{TAG}")
            I(f"s_lshl_b32 s{A0}, s{A0}, 7")
            I(f"s_add_u32 s{A0}, s{A0}, {hex(X2R)}")
            I(f"v_lshl_add_u32 v{FT+4}, v1, 2, s{A0}")
            exec_lo("0x1111")
            I(f"global_store_dwordx4 v{FT+4}, {vr(Y_,4)}, {sp(WSP)} sc1")
        exec_all()
        k.L(lab(n + "_fskip"))
        vm.q = keepq

    q_epilogue(0)
    k.stamp(name="l0_qepi")
    attention(0)
    oproj(0)
    I(f"s_mul_i32 s{A0}, s{WAVE}, 6144")
    I(f"s_add_u32 s{A0}, s{A0}, {LWQ}")
    I(f"v_add_u32 v12, s{A0}, v3")
    for i in range(6): I(f"ds_write_b128 v12, {ar(AWS+4*i,4)} offset:{1024*i}")
    I(f"s_lshl_b32 s{A0}, s{TT}, 15")
    I(f"v_add_u32 v8, s{A0}, v3")
    I("v_add_u32 v9, 0x4000, v8")
    I(f"s_lshr_b32 s{A0}, s{TT}, 1")
    I(f"s_lshl_b32 s{A0}, s{A0}, 13")
    I(f"s_and_b32 s{A0+1}, s{TT}, 1")
    I(f"s_lshl_b32 s{A0+1}, s{A0+1}, 9")
    I(f"s_add_u32 s{A0}, s{A0}, s{A0+1}")
    I(f"s_add_u32 s{A0}, s{A0}, {hex(ST[0])}")
    I(f"v_lshl_add_u32 v11, v6, 4, s{A0}")
    I("v_lshl_add_u32 v11, v7, 12, v11")
    RING = 6
    LOOK = int(ENV("LOOK", "4"))
    ROT1 = 67 if not PROFILE else 101
    I(f"s_lshr_b32 s{ROT1}, s{HEAD}, 1")
    def xload(ks):
        I(f"s_add_u32 s{T0}, s{ROT1}, {ks}")
        I(f"s_and_b32 s{T0}, s{T0}, 15")
        I(f"s_lshl_b32 s{T0}, s{T0}, 10")
        I(f"s_add_u32 s{T0}, s{XB_}, s{T0}")
        I(f"s_addc_u32 s{T0+1}, s{XB_+1}, 0")
        for t in range(2):
            vm.issue(f"global_load_dwordx4 {ar(8*(ks % RING)+4*t,4)}, v{8+t}, {sp(T0)} sc1", f"x{ks}")
    def wbase1(ks):
        I(f"s_add_u32 s{T0}, s{ROT1}, {ks}")
        I(f"s_and_b32 s{T0}, s{T0}, 15")
        I(f"s_lshl_b32 s{T0}, s{T0}, 10")
        I(f"v_add_u32 v12, s{T0}, v10")
    def first_x():
        for ks in range(LOOK): xload(ks)
    hop_a(0, first_x)
    for l in stat_loads: vm.issue(l, "st")
    w_addr(False)
    HB, SL1, SL2, FN = [int(x) for x in ENV("FSCH", "0,1,2,9").split(",")]
    hop_b_issue(0)
    wbase1(0)
    wreads(WB, 12, 0, False)
    for ks in range(16):
        if ks == HB:
            hop_b(0)
        if ks == SL1: slice1(0)
        if ks == SL2: slice2(0)
        if ks == FN: finalize(0)
        if ks + LOOK < 16: xload(ks + LOOK)
        if ks < 15:
            wbase1(ks + 1)
            wreads(WB + 12*((ks+1)&1), 12, 0, False)
        vm.wait(f"x{ks}", f" lgkmcnt({6 if ks < 15 else 0})")
        qmfmas(WB + 12*(ks&1), ar(8*(ks % RING),4), ar(8*(ks % RING)+4,4), ks == 0)
    k.stamp(name="q1_loop")
    poll("ps", stat_loads, stat_tags, first_issued=True)
    own_stats()
    if FN >= 16: finalize(0)
    k.stamp(name="q1_fin")
    I(f"s_lshr_b32 s{A0}, s{IDX}, 8")
    I(f"s_cmp_lg_u32 s{A0}, s{QB}")
    I(f"s_cbranch_scc1 {lab('nofix')}")
    F0, FX = 80, 64
    I(f"s_lshl_b32 s{A0}, s{WAVE}, 9")
    I(f"s_add_u32 s{A0}, s{A0}, {hex(X2R)}")
    I(f"v_lshl_add_u32 v12, v7, 7, s{A0}")
    I("v_bfe_u32 v13, v1, 4, 1")
    I("v_lshl_add_u32 v12, v13, 4, v12")
    poll("px", [f"global_load_dwordx3 {vr(F0+4*i,3)}, v12, {sp(WSP)} offset:{256*(i>>1)+32*(i&1)} sc1" for i in range(4)], [F0 + 4*i + 2 for i in range(4)])
    I(f"s_lshl_b32 s{A0}, s{WAVE}, 11")
    I(f"v_add_u32 v12, s{A0}, v10")
    for q in range(2): wreads(WB + 12*q, 12, q, False)
    for i in range(4):
        I(f"v_mov_b32 v{FX+2*i}, v{F0+4*i}")
        I(f"v_mov_b32 v{FX+2*i+1}, v{F0+4*i+1}")
    I("v_mov_b32 v14, 0"); I("v_mov_b32 v15, 0")
    for r in range(8):
        I(f"v_dot2_f32_bf16 v14, v{FX+r}, s{ONES}, v14")
        I(f"v_dot2_f32_bf16 v15, v{FX+r}, v{FX+r}, v15")
    I("s_waitcnt lgkmcnt(0)")
    for q in range(2):
        for sec in range(3): mfma16(F0 + 4*sec, vr(WB+12*q+4*sec,4), vr(FX+4*q,4), q == 0)
    rowreduce("v_add_f32", 14, 13)
    rowreduce("v_add_f32", 15, 13)
    I(f"s_lshl_b32 s{A0}, s{WAVE}, 8")
    I(f"s_add_u32 s{A0}, s{A0}, {LRD}")
    I("v_and_b32 v12, 48, v1")
    I(f"v_add_u32 v12, s{A0}, v12")
    I(f"v_mov_b32 v13, s{A0}")
    I("s_mov_b32 exec_lo, 0x00010001"); I("s_mov_b32 exec_hi, 0x00010001")
    for sec in range(3): I(f"ds_write_b128 v12, {vr(F0+4*sec,4)} offset:{64*sec}")
    I("ds_write_b64 v13, v[14:15] offset:192")
    exec_all()
    bar()
    I(f"s_lshr_b32 s{A0}, s{IDX}, 5")
    I(f"s_cmp_lg_u32 s{A0}, s{OT}")
    I(f"s_cbranch_scc1 {lab('nores')}")
    I(f"s_lshl_b32 s{A0}, s{KG}, 7")
    I(f"s_add_u32 s{A0}, s{A0}, {hex(X2R)}")
    I(f"v_lshl_add_u32 v14, v7, 4, s{A0}")
    I(f"v_cmp_eq_u32 vcc, s{IDX}, v{VTK}")
    I(f"s_and_saveexec_b64 {sp(T2)}, vcc")
    I(f"global_load_dwordx2 {vr(XG,2)}, v14, {sp(WSP)} sc1")
    I(f"global_load_dwordx2 {vr(XG+2,2)}, v14, {sp(WSP)} offset:32 sc1")
    I(f"v_mov_b32 v{RESR}, 0")
    exec_all()
    k.L(lab("nores"))
    I(f"s_lshr_b32 s{A0}, s{IDX}, 5")
    I(f"s_cmp_lg_u32 s{A0}, s{TT}")
    I(f"s_cbranch_scc1 {lab('nofix')}")
    sum8(LRD, LFX)
    I("v_and_b32 v12, 48, v1")
    I(f"v_add_u32 v12, {LFX}, v12")
    I(f"v_mov_b32 v13, {LFX + 192}")
    for sec in range(2): I(f"ds_read_b128 {vr(F0+4*sec,4)}, v12 offset:{64*sec}")
    I("ds_read_b64 v[64:65], v13")
    I("v_and_b32 v15, 15, v1")
    I("v_lshlrev_b32 v14, 2, v15")
    I(f"v_add_u32 v14, {LFX + 128}, v14")
    I("ds_read_b32 v66, v14")
    I(f"s_and_b32 s{A0}, s{IDX}, 31")
    I("v_lshrrev_b32 v13, 4, v1")
    I("v_lshlrev_b32 v13, 2, v13")
    I(f"v_sub_u32 v13, s{A0}, v13")
    I(f"v_sub_u32 v15, s{A0}, v15")
    I("s_waitcnt lgkmcnt(0)")
    rowstats(64, 65, 67, 68, 69)
    for t in range(2):
        I(f"v_cmp_eq_u32 vcc, {16*t}, v15")
        k.nop(2)
        I(f"v_cndmask_b32 v{MT[t]}, v{MT[t]}, v67, vcc")
        I(f"v_cndmask_b32 v{AT[t]}, v{AT[t]}, v69, vcc")
        for sec in range(2):
            for r in range(4): I(f"v_cndmask_b32 v{ACC+8*sec+4*t+r}, v{ACC+8*sec+4*t+r}, v{F0+4*sec+r}, vcc")
        for r in range(4):
            I(f"v_cmp_eq_u32 vcc, {16*t+r}, v13")
            k.nop(2)
            I(f"v_cndmask_b32 v{ACC+16+4*t+r}, v{ACC+16+4*t+r}, v66, vcc")
    k.L(lab("nofix"))
    vm.drain()
    k.stamp(name="q1_fix")
    bounce_params()
    q_epilogue(1)
    k.stamp(name="l1_qepi")
    attention(1)
    oproj(1)
    hop_a(1)
    hop_b_issue(1)
    X, Y = 96, 16
    for i in range(4): unpack(X + 2*i, X + 2*i + 1, XG + i)
    for r in range(8): I(f"v_sub_f32 v{Y+r}, v{X+r}, v{RESM}")
    for r in range(8): I(f"v_mul_f32 v{Y+r}, v{Y+r}, v{RESR}")
    for i in range(4): I(f"v_cvt_pk_bf16_f32 v{XG+i}, v{Y+2*i}, v{Y+2*i+1}")
    for i in range(4): unpack(Y + 2*i, Y + 2*i + 1, XG + i)
    for r in range(8): I(f"v_add_f32 v{X+r}, v{X+r}, v{Y+r}")
    for i in range(4): I(f"v_cvt_pk_bf16_f32 v{XG+i}, v{X+2*i}, v{X+2*i+1}")
    I(f"s_lshl_b32 s{A0}, s{KG}, 5")
    I(f"v_lshl_add_u32 v12, v7, 4, s{A0}")
    I(f"v_lshl_add_u32 v12, v{VTK}, 10, v12")
    I(f"v_permlane32_swap_b32 v{XG}, v{XG+2}")
    I(f"v_permlane32_swap_b32 v{XG+1}, v{XG+3}")
    hop_b(1)
    k.stamp(name="t_hopb")
    I(f"v_cmp_ne_u32 vcc, s{IDX}, v{VTK}")
    I(f"s_and_saveexec_b64 {sp(T2)}, vcc")
    vm.issue(f"global_store_dwordx4 v12, {vr(XG,4)}, {sp(OUTP)}")
    exec_all()
    slice1(1)
    slice2(1)
    k.stamp(name="t_slice")
    finalize(1)
    I("s_cmp_lg_u32 s2, 0")
    I(f"s_cbranch_scc1 {lab('end')}")
    I(f"v_mov_b32 v12, {hex(NONCE)}")
    I(f"v_mov_b32 v13, s{TAG}")
    I("v_cmp_eq_u32 vcc, 0, v0")
    I(f"s_and_saveexec_b64 {sp(T2)}, vcc")
    I(f"s_cbranch_execz {lab('end')}")
    I(f"global_store_dword v12, v13, {sp(WSP)}")
    k.L(lab("end"))
    k.stamp_end(0)
    k.L(lab("exit"))
    I("s_endpgm")
    return k

if __name__ == "__main__":
    k = build_kernel()
    bad = check_hazards(k)
    for b in bad: print("HAZARD", b, file=sys.stderr)
    out = sys.argv[1] if len(sys.argv) > 1 else "cdna_kernels/" + NAME + ".s"
    txt = emit_file(HEADER, [k], single=(ENV("SINGLE", "0") == "1"))
    open(out, "w").write(txt)
    print("written", out, len(txt), "bytes; hazards:", len(bad))
```

```python
import sys, struct, os
from asmlib import *

NAME = "interleave_layers__softmax_full_mha__moe_arch_mod__prompt"
HEADER = open("cdna_kernels/" + NAME + ".s.ref").read().split("; Override launch")[0]
ENV = os.environ.get

XF = [0x000000, 0x200000]
KF = [0x400000, 0x800000]
VF = [0x600000, 0xA00000]
OF = [0xC00000, 0xE00000]
ST = [0x1000000, 0x1040000]
YP = [0x1080000, 0x1180000]
FLK = [0x1280000, 0x1288000]
FLO = [0x1290000, 0x1298000]
KEY = [0x12A4000, 0x12A6000]
X2R = 0x12A0000
NONCE = 0x12A2000
EPS = 1e-5
def f2u(x): return struct.unpack("<I", struct.pack("<f", x))[0]
QSCALE = 0.25 * 1.4426950408889634
LOG2E = 1.4426950408889634
SPIN_MAX = 1 << 18

CB, CBN = 131072, 20
LWQ = 8192
LST = CB + CBN * 512
LSA = LST
LPC = LST + 8192
LFX = LST + 8448
LVB = LST + 8704
LRD = LST + 10752
LFF = LST + 14848
LDS_BYTES = LFF + 1024

X0P, WQP, WOP, WSP, WRP, WGP, WUP, WDP, OUTP = 4, 6, 8, 10, 12, 14, 16, 18, 20
HEAD, QB, WAVE, TT, W1K, THR, CTR, SPIN, PASS, TAG, CG, TB, OA, KQ, OT, KG, IDX, WSUM = range(22, 40)
T0, T2 = 40, 42
A0 = 44
KB_, VB_, OB_, XB_ = 52, 54, 56, 58
RM, RR, RS_, ONES, C512, CEPS = 60, 61, 62, 63, 64, 65
CGP = 3

def sp(i): return f"s[{i}:{i+1}]"

class VM:
    def __init__(self, k): self.k = k; self.q = []
    def issue(self, txt, tag=None):
        self.k.I(txt); self.q.append(tag)
    def wait(self, tag, extra=""):
        i = max(j for j, t in enumerate(self.q) if t == tag)
        n = len(self.q) - 1 - i
        assert n <= 63
        self.k.I(f"s_waitcnt vmcnt({n}){extra}")
    def drain(self, extra=""):
        self.k.I(f"s_waitcnt vmcnt(0){extra}"); self.q = []

def build_kernel():
    k = Kern(NAME + "_kernel", 256, 512, LDS_BYTES, 128, nagpr=128)
    I = k.I
    vm = VM(k)
    def lab(x): return f"L_{x}"
    def sadd64(d, b, const):
        I(f"s_add_u32 s{d}, s{b}, {hex(const)}"); I(f"s_addc_u32 s{d+1}, s{b+1}, 0")
    def swapop(sw, op, x, t):
        I(f"v_mov_b32 v{t}, v{x}"); k.nop(2); I(f"{sw} v{x}, v{t}"); I(f"{op} v{x}, v{x}, v{t}")
    def halfsum(op, x, t): swapop("v_permlane32_swap_b32", op, x, t)
    def rowreduce(op, x, t):
        swapop("v_permlane16_swap_b32", op, x, t); swapop("v_permlane32_swap_b32", op, x, t)
    def dppred(op, x, modes):
        for m in modes:
            k.nop(2); I(f"{op}_dpp v{x}, v{x}, v{x} {m} row_mask:0xf bank_mask:0xf")
    Q4 = ("quad_perm:[1,0,3,2]", "quad_perm:[2,3,0,1]")
    def allreduce(op, x, t):
        dppred(op, x, Q4 + ("row_half_mirror", "row_mirror")); rowreduce(op, x, t)
    def unpack(dlo, dhi, src):
        I(f"v_lshlrev_b32 v{dlo}, 16, v{src}"); I(f"v_and_b32 v{dhi}, 0xffff0000, v{src}")
    def bf16r(x):
        I(f"v_cvt_pk_bf16_f32 v{x}, v{x}, v{x}"); I(f"v_and_b32 v{x}, 0xffff0000, v{x}")
    def exec_lo(mask):
        I(f"s_mov_b32 exec_lo, {mask}"); I("s_mov_b32 exec_hi, 0")
    def exec_all(): I("s_mov_b64 exec, -1")
    def bar(lg=True):
        if lg: I("s_waitcnt lgkmcnt(0)")
        I("s_barrier")
    def poll(name, loads, tagregs, first_issued=False):
        I(f"s_mov_b32 s{SPIN}, {SPIN_MAX}")
        SL = int(ENV("SLEEP", "0"))
        if first_issued: I(f"s_branch {lab(name+'_w')}")
        elif SL: I(f"s_branch {lab(name+'_l')}")
        k.L(lab(name))
        if SL: I(f"s_sleep {SL}")
        k.L(lab(name + "_l"))
        for l in loads: I(l)
        k.L(lab(name + "_w"))
        I("s_waitcnt vmcnt(0)")
        I(f"v_cmp_ne_u32 vcc, s{TAG}, v{tagregs[0]}")
        for r in tagregs[1:]:
            I(f"v_cmp_ne_u32 {sp(T2)}, s{TAG}, v{r}")
            I(f"s_or_b64 vcc, vcc, {sp(T2)}")
        I(f"s_sub_u32 s{SPIN}, s{SPIN}, 1")
        I(f"s_cbranch_vccz {lab(name+'_ok')}")
        I(f"s_cbranch_scc0 {lab(name)}")
        k.L(lab(name + "_ok"))
        k.stampval(SPIN, "x" + name + "_spin")
        k.stamp(name="x" + name + "_ok")
        vm.q = []
    def mfma(d, a_, b_, c): I(f"v_mfma_f32_32x32x16_bf16 {vr(d,16)}, {a_}, {b_}, {vr(c,16) if c is not None else 0}")
    def rowstats(s1, s2, m, var, rstd):
        I(f"v_mul_f32 v{m}, s{C512}, v{s1}")
        I(f"v_mul_f32 v{var}, s{C512}, v{s2}")
        I(f"v_fma_f32 v{var}, -v{m}, v{m}, v{var}")
        I(f"v_max_f32 v{var}, 0, v{var}")
        I(f"v_add_f32 v{rstd}, s{CEPS}, v{var}")
        I(f"v_rsq_f32 v{rstd}, v{rstd}")

    ACC, WB = 16, 40
    CQ, CV, MV, AL = 64, 72, 76, 84
    MT, AT = [112, 114], [113, 115]
    S0, S1, P0, P1, VA, NEG, O, Q, KB = 16, 32, 48, 52, [56, 64], 72, 88, 104, 108
    AK, AV, AVS, VBASE = 112, 113, 114, 115
    XG, WR, VXO, VTK, RESM, RESR = 116, 120, 124, 125, 126, 127
    TK, TV = 96, 100
    def mfma16(d, a_, b_, first): I(f"v_mfma_f32_16x16x32_bf16 {vr(d,4)}, {a_}, {b_}, {0 if first else vr(d,4)}")
    AWO, ARS, AWS, AGU, ADN = 0, 32, 88, 112, 120

    I("s_cmp_ge_u32 s2, 256")
    I(f"s_cbranch_scc1 {lab('exit')}")
    k.stamp_begin()
    I(f"s_load_dwordx4 s[4:7], s[0:1], 0")
    I(f"s_load_dwordx2 s[8:9], s[0:1], 16")
    I(f"s_load_dwordx2 s[10:11], s[0:1], 80")
    I(f"s_load_dwordx8 s[12:19], s[0:1], 32")
    I(f"s_load_dwordx2 s[20:21], s[0:1], 64")
    I("v_and_b32 v1, 63, v0")
    I("v_lshrrev_b32 v2, 6, v0")
    I("v_lshlrev_b32 v3, 4, v1")
    I(f"v_readfirstlane_b32 s{WAVE}, v2")
    I(f"s_and_b32 s{QB}, s2, 7")
    I(f"s_lshr_b32 s{HEAD}, s2, 3")
    if ENV("HX"):
        I(f"s_cmp_lt_u32 s{HEAD}, 16")
        I(f"s_cselect_b32 s{A0}, 8, 0")
        I(f"s_xor_b32 s{HEAD}, s{HEAD}, s{A0}")
    I(f"s_lshl_b32 s{TT}, s{QB}, 3")
    I(f"s_add_u32 s{TT}, s{TT}, s{WAVE}")
    I(f"s_lshl_b32 s{W1K}, s{WAVE}, 10")
    I("v_lshrrev_b32 v5, 1, v1")
    I("v_mul_u32_u24 v5, 3072, v5")
    I("v_and_b32 v6, 1, v1")
    I("v_lshl_add_u32 v5, v6, 4, v5")
    I(f"s_mul_i32 s{A0}, s{WAVE}, {32*3072}")
    I(f"s_lshl_b32 s{A0+1}, s{HEAD}, 5")
    I(f"s_add_u32 s{A0}, s{A0}, s{A0+1}")
    I(f"v_add_u32 v5, s{A0}, v5")
    I("v_lshrrev_b32 v8, 4, v1")
    I("v_and_b32 v9, 7, v1")
    I("v_xor_b32 v8, v8, v9")
    I("v_lshlrev_b32 v8, 4, v8")
    I("v_lshrrev_b32 v9, 3, v1")
    I("v_lshl_add_u32 v8, v9, 10, v8")
    I(f"s_lshl_b32 s{A0}, s{TT}, 15")
    I(f"v_add_u32 v8, s{A0}, v8")
    I("v_xor_b32 v9, 64, v8")
    I("v_add_u32 v9, 0x2000, v9")
    XBUF, ROT = A0 + 3, A0 + 4
    I(f"s_lshl_b32 s{XBUF}, s{WAVE}, 13")
    I(f"s_add_u32 s{XBUF}, s{XBUF}, {72*1024}")
    I(f"s_cmp_eq_u32 s{WAVE}, 7")
    I(f"s_cselect_b32 s{XBUF}, {56*1024}, s{XBUF}")
    I(f"s_lshl_b32 s{ROT}, s{HEAD}, 1")
    I("s_waitcnt lgkmcnt(0)")
    def xstage(st):
        I(f"s_add_u32 s{A0}, s{ROT}, {2*st}")
        I(f"s_and_b32 s{A0}, s{A0}, 7")
        I(f"s_lshl_b32 s{A0}, s{A0}, 6")
        if st >= 4: I(f"s_add_u32 s{A0}, s{A0}, 512")
        I(f"s_add_u32 s{T0}, s{X0P}, s{A0}")
        I(f"s_addc_u32 s{T0+1}, s{X0P+1}, 0")
        for i in range(4):
            if i == 2: sadd64(T0, T0, 16384)
            I(f"s_add_u32 m0, s{XBUF}, {(st&1)*4096 + i*1024}")
            I("s_nop 0")
            vm.issue(f"global_load_lds_dwordx4 v{8 + (i&1)}, {sp(T0)}", f"x{st}")
    def wdma(i):
        for sec in range(3):
            sadd64(T0, WQP, sec*1024 + i*256*3072)
            I(f"s_add_u32 m0, s{W1K}, {LWQ + sec*16384 + i*8192}")
            I("s_nop 0")
            vm.issue(f"global_load_lds_dwordx4 v5, {sp(T0)}", f"W{i}")
    if ENV("CPF", "1") == "1":
        I(f"s_cmp_lg_u32 s{WAVE}, 7")
        I(f"s_cbranch_scc1 {lab('nocpf')}")
        I(f"s_lshl_b32 s{A0}, s{HEAD}, 13")
        I(f"v_lshl_add_u32 v12, v1, 7, s{A0}")
        I(f"v_cmp_gt_u32 vcc, {lab('exit')}-{lab('pc0')}, v12")
        I(f"s_getpc_b64 {sp(T0)}")
        k.L(lab("pc0"))
        I(f"s_and_saveexec_b64 {sp(T2)}, vcc")
        I(f"s_cbranch_execz {lab('cpf2')}")
        I(f"global_load_dword v13, v12, {sp(T0)}")
        k.L(lab("cpf2"))
        exec_all()
        k.L(lab("nocpf"))
    xstage(0); wdma(0); xstage(1)
    sadd64(T2, WSP, NONCE)
    I(f"s_load_dword s{TAG}, {sp(T2)}, 0")
    I(f"s_lshr_b32 s{CG}, s{HEAD}, 2")
    I(f"s_and_b32 s{TB}, s{HEAD}, 3")
    I(f"s_lshl_b32 s{A0}, s{QB}, 2")
    I(f"s_add_u32 s{TB}, s{TB}, s{A0}")
    I(f"s_and_b32 s{OA}, s{WAVE}, 1")
    I(f"s_lshr_b32 s{KQ}, s{WAVE}, 1")
    I(f"s_lshl_b32 s{OT}, s{TB}, 1")
    I(f"s_add_u32 s{OT}, s{OT}, s{OA}")
    I(f"s_lshl_b32 s{KG}, s{CG}, 2")
    I(f"s_add_u32 s{KG}, s{KG}, s{KQ}")
    I(f"s_mul_i32 s{CGP}, s{QB}, 28")
    I(f"s_min_u32 s{A0}, s{HEAD}, 27")
    I(f"s_add_u32 s{CGP}, s{CGP}, s{A0}")
    I(f"s_mov_b32 s{THR}, {hex(f2u(2.0**30))}")
    I(f"s_mov_b32 s{ONES}, 0x3f803f80")
    I(f"s_mov_b32 s{C512}, {hex(f2u(1/512))}")
    I(f"s_mov_b32 s{CEPS}, {hex(f2u(EPS))}")
    I("v_and_b32 v13, 11, v0")
    I(f"v_mov_b32 v14, s{ONES}")
    I("v_cmp_eq_u32 vcc, 0, v13")
    I("v_lshlrev_b32 v13, 4, v0")
    I(f"v_add_u32 v13, {CB}, v13")
    I("v_cndmask_b32 v16, 0, v14, vcc")
    for r in range(1, 4): I(f"v_mov_b32 v{16+r}, v16")
    I("ds_write_b128 v13, v[16:19]")
    I(f"v_cmp_gt_u32 vcc, {(CBN*512 - 8192)//16}, v0")
    I(f"s_and_saveexec_b64 {sp(T2)}, vcc")
    I("ds_write_b128 v13, v[16:19] offset:8192")
    exec_all()
    def lane_terms():
        I("v_and_b32 v6, 31, v1")
        I("v_lshrrev_b32 v7, 5, v1")
    lane_terms()
    def w_addr(natural):
        I("v_bfe_u32 v12, v1, 2, 2")
        I("v_lshrrev_b32 v13, 4, v1")
        if natural:
            I("v_lshl_add_u32 v12, v13, 3, v12")
        else:
            I("v_lshl_add_u32 v12, v7, 4, v12")
            I("v_and_b32 v13, 1, v13")
            I("v_lshl_add_u32 v12, v13, 2, v12")
        I("v_and_b32 v13, 3, v1")
        I("v_lshlrev_b32 v13, 3, v13")
        I("v_lshl_add_u32 v10, v12, 5, v13")
        I(f"v_add_u32 v10, {LWQ}, v10")
    w_addr(True)
    def wreads(dst, ad, ks, natural):
        second = 128 if natural else 256
        for sec in range(3):
            I(f"ds_read_b64_tr_b16 {vr(dst+4*sec,2)}, v{ad} offset:{sec*16384+ks*1024}")
            I(f"ds_read_b64_tr_b16 {vr(dst+4*sec+2,2)}, v{ad} offset:{sec*16384+ks*1024+second}")
    def qmfmas(wb, xa, xb, first, between=None):
        for i, (d, A_, B_) in enumerate(((ACC, vr(wb,4), xa), (ACC+4, vr(wb,4), xb), (ACC+8, vr(wb+4,4), xa),
                                         (ACC+12, vr(wb+4,4), xb), (ACC+16, xa, vr(wb+8,4)), (ACC+20, xb, vr(wb+8,4)))):
            mfma16(d, A_, B_, first)
            if between: between(i)
    I("v_bfe_u32 v12, v1, 1, 3")
    I("v_and_b32 v13, 15, v1")
    I(f"v_lshl_add_u32 v13, v13, 7, s{XBUF}")
    I("v_lshrrev_b32 v14, 4, v1")
    I("v_xor_b32 v14, v14, v12")
    I("v_lshl_add_u32 v100, v14, 4, v13")
    I("v_xor_b32 v101, 64, v100")
    def xfrags(st):
        vm.wait(f"x{st}")
        for h in range(2):
            for t in range(2): I(f"ds_read_b128 {ar(16*st+8*h+4*t,4)}, v{100+h} offset:{(st&1)*4096+2048*t}")
    k.stamp(name="q0_issue")
    for st in range(2):
        xfrags(st)
        I("s_waitcnt lgkmcnt(0)")
        xstage(st + 2)
    wdma(1)
    I("s_barrier")
    I(f"s_mul_i32 s{TAG}, s{TAG}, 0x9E3779B1")
    I(f"s_add_u32 s{TAG}, s{TAG}, 0x7F4A7C15")
    k.stamp(name="q0_W")
    CSA = 84
    def colsum_part(i):
        I(f"v_add_u32 v13, s{W1K}, v10")
        wreads(88, 13, 8*i, True)
        if i == 0:
            for sec in range(3): I(f"v_mov_b32 v{CSA+sec}, 0")
        I("s_waitcnt lgkmcnt(0)")
        for sec in range(3):
            for r in range(4): I(f"v_dot2_f32_bf16 v{CSA+sec}, v{88+4*sec+r}, s{ONES}, v{CSA+sec}")
        if i == 1:
            k.nop(2)
            for sec in range(3): rowreduce("v_add_f32", CSA + sec, 13)
            I(f"s_lshl_b32 s{A0}, s{WAVE}, 8")
            I(f"s_add_u32 s{A0}, s{A0}, {LRD}")
            I("v_and_b32 v13, 15, v1")
            I(f"v_lshl_add_u32 v13, v13, 2, s{A0}")
            for sec in range(3): I(f"ds_write_b32 v13, v{CSA+sec} offset:{64*sec}")
    def sum8(src, dst):
        I("v_lshlrev_b32 v13, 2, v1")
        I(f"v_add_u32 v14, {src}, v13")
        for w in range(8): I(f"ds_read_b32 v{104+w}, v14 offset:{256*w}")
        I(f"v_add_u32 v13, {dst}, v13")
        I("s_waitcnt lgkmcnt(0)")
        for a_, b_ in ((0,1),(2,3),(4,5),(6,7),(0,2),(4,6),(0,4)): I(f"v_add_f32 v{104+a_}, v{104+a_}, v{104+b_}")
        I("ds_write_b32 v13, v104")
    GU, ON = 64, 80
    for r in range(4): I(f"v_mov_b32 v{ON+r}, s{ONES}")
    def wbase(ks):
        I(f"s_add_u32 s{A0}, s{ROT}, {ks}")
        I(f"s_and_b32 s{A0}, s{A0}, 7")
        I(f"s_lshl_b32 s{A0}, s{A0}, 10")
        I(f"v_add_u32 v12, s{A0}, v10")
    def wsave():
        I(f"s_mul_i32 s{A0}, s{WAVE}, 6144")
        I(f"s_add_u32 s{A0}, s{A0}, {LWQ}")
        I(f"v_add_u32 v13, s{A0}, v3")
        for i in range(6): I(f"ds_read_b128 {ar(AWS+4*i,4)}, v13 offset:{1024*i}")
    wbase(0)
    wreads(WB, 12, 0, True)
    for ks in range(16):
        st = ks // 2
        pre = 0
        if ks == 3: colsum_part(0)
        if ks == 7:
            vm.wait("W1")
            I("s_barrier")
        if ks == 9: colsum_part(1)
        if ks == 12: bar()
        if ks == 13: sum8(LRD, LPC)
        if ks == 14: wsave(); pre = 6
        if ks % 2 == 0 and st + 2 < 8:
            xfrags(st + 2); pre = 4
        if ks < 15:
            wbase(ks + 1)
            wreads(WB + 12*((ks+1)&1), 12, 8*((ks+1)//8), True)
        I(f"s_waitcnt lgkmcnt({(6 if ks < 15 else 0) + pre})")
        if ks % 2 == 1 and st + 4 < 8: xstage(st + 4)
        xa, xb = ar(8*ks,4), ar(8*ks+4,4)
        mfma16(GU, xa, xa, ks == 0); mfma16(GU + 4, xb, xb, ks == 0)
        qmfmas(WB + 12*(ks&1), xa, xb, ks == 0)
        mfma16(GU + 8, vr(ON,4), xa, ks == 0); mfma16(GU + 12, vr(ON,4), xb, ks == 0)
    for f in range(8): I(f"v_accvgpr_write_b32 a{ADN+f}, 0")
    k.stamp(name="q0_loop")
    I("v_lshrrev_b32 v12, 4, v1")
    I("v_lshlrev_b32 v12, 2, v12")
    I("v_and_b32 v13, 15, v1")
    I("v_sub_u32 v12, v13, v12")
    for t in range(2): I(f"v_mov_b32 v{ON+t}, 0")
    for r in range(4):
        I(f"v_cmp_eq_u32 vcc, {r}, v12")
        k.nop(2)
        for t in range(2): I(f"v_cndmask_b32 v{ON+t}, v{ON+t}, v{GU+4*t+r}, vcc")
    for t in range(2): rowreduce("v_add_f32", ON + t, 12)
    for t in range(2): rowstats(GU + 8 + 4*t, ON + t, MT[t], 12, AT[t])

    def bounce_params():
        I(f"s_lshl_b32 s{A0}, s{WAVE}, 8")
        I(f"s_add_u32 s{A0}, s{A0}, {LVB}")
        I("v_and_b32 v13, 15, v1")
        I(f"v_lshl_add_u32 v12, v13, 2, s{A0}")
        for t in range(2):
            I(f"ds_write_b32 v12, v{MT[t]} offset:{64*t}")
            I(f"ds_write_b32 v12, v{AT[t]} offset:{128+64*t}")
        I("v_and_b32 v14, 48, v1")
        I(f"v_add_u32 v12, s{A0}, v14")
        for t in range(2):
            I(f"ds_read_b128 {vr(MV+4*t,4)}, v12 offset:{64*t}")
            I(f"ds_read_b128 {vr(AL+4*t,4)}, v12 offset:{128+64*t}")
        I(f"v_add_u32 v12, {LPC}, v14")
        for sec in range(2): I(f"ds_read_b128 {vr(CQ+4*sec,4)}, v12 offset:{64*sec}")
        I("v_lshlrev_b32 v12, 2, v13")
        I(f"v_add_u32 v12, {LPC + 128}, v12")
        I(f"ds_read_b32 v{CV}, v12")
    bounce_params()

    def q_epilogue(L):
        n = f"l{L}"
        sadd64(KB_, WSP, KF[L]); sadd64(VB_, WSP, VF[L]); sadd64(OB_, WSP, OF[L])
        for t in range(2): I(f"v_mul_f32 v{13+t}, {hex(f2u(QSCALE))}, v{AT[t]}")
        I(f"s_lshl_b32 s{A0}, s{HEAD}, 16")
        I(f"s_lshl_b32 s{A0+1}, s{TT}, 10")
        I(f"s_add_u32 s{A0}, s{A0}, s{A0+1}")
        I(f"v_add_u32 v4, s{A0}, v3")
        I(f"v_add_u32 v15, s{W1K}, v3")
        I("v_add_u32 v5, 0x10000, v15")
        I("s_waitcnt lgkmcnt(0)")
        for sec in (1, 0):
            for t in range(2):
                for r in range(4): I(f"v_fma_f32 v{ACC+8*sec+4*t+r}, -v{MT[t]}, v{CQ+4*sec+r}, v{ACC+8*sec+4*t+r}")
            for t in range(2):
                for r in range(4): I(f"v_mul_f32 v{ACC+8*sec+4*t+r}, v{AT[t] if sec else 13+t}, v{ACC+8*sec+4*t+r}")
            d = TK if sec else Q
            for i in range(4): I(f"v_cvt_pk_bf16_f32 v{d+i}, v{ACC+8*sec+2*i}, v{ACC+8*sec+2*i+1}")
        for r in range(8): I(f"v_fma_f32 v{ACC+16+r}, -v{MV+r}, v{CV}, v{ACC+16+r}")
        I(f"v_permlane16_swap_b32 v{TK}, v{TK+2}")
        I(f"v_permlane16_swap_b32 v{TK+1}, v{TK+3}")
        for r in range(8): I(f"v_mul_f32 v{ACC+16+r}, v{AL+r}, v{ACC+16+r}")
        vm.issue(f"global_store_dwordx4 v4, {vr(TK,4)}, {sp(KB_)} sc1")
        I(f"ds_write_b128 v15, {vr(TK,4)}")
        for i in range(4): I(f"v_cvt_pk_bf16_f32 v{TV+i}, v{ACC+16+2*i}, v{ACC+16+2*i+1}")
        I(f"v_permlane16_swap_b32 v{Q}, v{Q+2}")
        I(f"v_permlane16_swap_b32 v{Q+1}, v{Q+3}")
        I(f"v_permlane32_swap_b32 v{TV}, v{TV+2}")
        I(f"v_permlane32_swap_b32 v{TV+1}, v{TV+3}")
        vm.issue(f"global_store_dwordx4 v4, {vr(TV,4)}, {sp(VB_)} sc1")
        I(f"ds_write_b128 v5, {vr(TV,4)}")
        I("v_and_b32 v8, 15, v1")
        I("v_bfe_u32 v9, v1, 4, 1")
        I("v_lshlrev_b32 v10, 4, v8")
        I("v_lshl_add_u32 v10, v7, 8, v10")
        I(f"v_lshl_add_u32 v{VBASE}, v9, 16, v10")
        I(f"v_add_u32 v{VBASE}, 0x10000, v{VBASE}")
        I("v_xor_b32 v9, 1, v9")
        I(f"v_lshlrev_b32 v{AVS}, 13, v9")
        I(f"s_mov_b32 s{PASS}, 0")
        I(f"s_lshl_b32 s{A0}, s{HEAD}, 10")
        I(f"s_add_u32 s{A0}, s{A0}, {hex(FLK[L])}")
        I(f"v_lshl_add_u32 v8, v1, 7, s{A0}")
        I(f"s_lshl_b32 s{A0+1}, s{QB}, 7")
        I(f"s_add_u32 s{A0}, s{A0}, s{A0+1}")
        I(f"v_mov_b32 v9, s{A0}")
        bar()

    def attention(L):
        n = f"l{L}"
        I(f"ds_read_b128 {vr(KB,4)}, v3")
        I("s_waitcnt lgkmcnt(0)")
        mfma(S0, vr(KB,4), vr(Q,4), None)
        k.nop(12)
        def max16(dst, S, first):
            if first:
                I(f"v_max3_f32 v{dst}, v{S}, v{S+1}, v{S+2}"); rest = list(range(3, 16))
            else: rest = list(range(16))
            while rest:
                if len(rest) >= 2:
                    I(f"v_max3_f32 v{dst}, v{dst}, v{S+rest[0]}, v{S+rest[1]}"); rest = rest[2:]
                else:
                    I(f"v_max_f32 v{dst}, v{dst}, v{S+rest[0]}"); rest = rest[1:]
        max16(2, S0, True)
        def prime():
            I(f"ds_read_b128 {vr(KB,4)}, v{AK}")
            I(f"ds_read_b128 {vr(VA[0],4)}, v{AV}")
            I(f"ds_read_b128 {vr(VA[0]+4,4)}, v{AV} offset:512")
            I("s_waitcnt lgkmcnt(0)")
            mfma(S0, vr(KB,4), vr(Q,4), NEG)
            I(f"ds_read_b128 {vr(KB,4)}, v{AK} offset:1024")
            k.nop(11)
        def setup():
            halfsum("v_max_f32", 2, 7)
            for r in range(16): I(f"v_sub_f32 v{NEG+r}, 0, v2")
            I(f"v_mov_b32 v{AK}, v3")
            I(f"v_mov_b32 v{AV}, v{VBASE}")
            for r in range(16): I(f"v_mov_b32 v{O+r}, 0")
            for r in range(4): I(f"v_mov_b32 v{P1+r}, 0")
            for r in range(4): I(f"v_mov_b32 v{VA[1]+4+r}, 0")
            prime()
        def tile(u, extra=None, nokread=False, noqk=False, novread=False):
            extra = extra or {}
            Sc, Sn = (S0, S1) if u % 2 == 0 else (S1, S0)
            Vc, Vo = VA[u % 2], VA[1 - u % 2]
            E = lambda r: I(f"v_exp_f32 v{Sc+r}, v{Sc+r}")
            Cv = lambda P, r, b: I(f"v_cvt_pk_bf16_f32 v{P+r}, v{Sc+b+2*r}, v{Sc+b+2*r+1}")
            E(0); E(1)
            mfma(O, vr(Vo+4,4), vr(P1,4), O)
            if 0 in extra: extra[0]()
            E(2); E(3); E(4)
            I("s_waitcnt lgkmcnt(0)")
            E(5)
            if not noqk: mfma(Sn, vr(KB,4), vr(Q,4), NEG)
            E(6)
            if not nokread: I(f"ds_read_b128 {vr(KB,4)}, v{AK} offset:{(u+2)*1024}")
            E(7)
            if not novread: I(f"ds_read_b128 {vr(Vo,4)}, v{AV} offset:{(u+1)*1024}")
            for r in range(4): Cv(P0, r, 0)
            E(8)
            if not novread: I(f"ds_read_b128 {vr(Vo+4,4)}, v{AV} offset:{(u+1)*1024+512}")
            E(9)
            mfma(O, vr(Vc,4), vr(P0,4), O)
            if 1 in extra: extra[1]()
            for r in range(10, 16): E(r)
            for r in range(4): Cv(P1, r, 8)
        def bump():
            I(f"v_add_u32 v{AK}, 0x2000, v{AK}")
            I(f"v_add_u32 v{AV}, v{AVS}, v{AV}")
        setup()
        I("s_setprio 3")
        def publish_kv():
            vm.drain()
            I("s_barrier")
            I(f"s_cmp_lg_u32 s{WAVE}, 0")
            I(f"s_cbranch_scc1 {lab(n+'_noflag')}")
            I(f"v_mov_b32 v14, s{TAG}")
            I("s_mov_b64 exec, 1")
            I(f"global_store_dword v9, v14, {sp(WSP)} sc1")
            exec_all()
            k.L(lab(n + "_noflag"))
        pl = f"global_load_dword v14, v8, {sp(WSP)} sc1"
        def poll_issue():
            I("s_mov_b64 exec, 0xff"); I(pl); exec_all()
        def poll_check():
            I("s_mov_b64 exec, 0xff")
            if L == 1:
                I(f"s_lshr_b32 s{A0}, s{IDX}, 8")
                I(f"s_bitset0_b32 exec_lo, s{A0}")
            poll(n + "_pk", [pl], [14], first_issued=True)
            exec_all()
        def rload(sl):
            if L == 1:
                I(f"s_lshr_b32 s{A0+1}, s{IDX}, 8")
                I(f"s_sub_u32 s{A0+1}, s{A0+1}, s{QB}")
                I(f"s_and_b32 s{A0+1}, s{A0+1}, 7")
                if sl == 7:
                    I(f"s_cmp_eq_u32 s{A0+1}, 0")
                    I(f"s_cselect_b32 s{A0}, 7, s{A0+1}")
                    I("s_mov_b64 exec, 0xff")
                    poll(n + "_pk7", [pl], [14])
                    exec_all()
                else:
                    I(f"s_sub_u32 s{A0+1}, s{A0+1}, 1")
                    I(f"s_cmp_lt_u32 s{A0+1}, {sl}")
                    I(f"s_cselect_b32 s{A0}, {sl+1}, {sl}")
                I(f"s_add_u32 s{A0}, s{QB}, s{A0}")
            else:
                I(f"s_add_u32 s{A0}, s{QB}, {sl}")
            I(f"s_and_b32 s{A0}, s{A0}, 7")
            I(f"s_sub_u32 s{A0}, s{A0}, s{QB}")
            I(f"s_lshl_b32 s{A0}, s{A0}, 13")
            I(f"v_add_u32 v13, s{A0}, v4")
            vm.issue(f"global_load_dwordx4 {ar(ARS+8*(sl-1),4)}, v13, {sp(KB_)} sc1", f"r{sl}")
            vm.issue(f"global_load_dwordx4 {ar(ARS+8*(sl-1)+4,4)}, v13, {sp(VB_)} sc1", f"r{sl}")
        def rwrite(sl):
            if f"r{sl}" in vm.q: vm.wait(f"r{sl}")
            I(f"ds_write_b128 v15, {ar(ARS+8*(sl-1),4)} offset:{sl*8192}")
            I(f"ds_write_b128 v5, {ar(ARS+8*(sl-1)+4,4)} offset:{sl*8192}")
        PUB, PI, PC = [int(x) for x in ENV("POLL", "1,4,5").split(",")]
        for u in range(8):
            ex = {}
            if u == PUB: ex[0] = publish_kv
            if u == PI: ex[0] = poll_issue
            if u == PC: ex[0] = lambda: (poll_check(), rload(1), rload(2))
            tile(u, ex, nokread=(u >= 6), noqk=(u == 7), novread=(u == 7))
        bump()
        rwrite(1)
        bar()
        k.stamp(name=n + "_c0")
        prime()
        def wo_addr():
            I(f"s_lshl_b32 s{A0}, s{WAVE}, 16")
            I(f"s_lshl_b32 s{A0+1}, s{CG}, 7")
            I(f"s_add_u32 s{A0}, s{A0}, s{A0+1}")
            I("v_lshrrev_b32 v2, 3, v1")
            I(f"v_lshl_add_u32 v2, v2, 10, s{A0}")
            I("v_and_b32 v14, 7, v1")
            I("v_lshl_add_u32 v2, v14, 4, v2")
        def wo_load(i):
            vm.issue(f"global_load_dwordx4 {ar(AWO+4*i,4)}, v2, {sp(WOP)}", "wo")
            if i < 7: I("v_add_u32 v2, 0x2000, v2")
        def misc_loads():
            I(f"s_lshl_b32 s{A0}, s{KG}, 9")
            I(f"s_lshl_b32 s{A0+1}, s{OT}, 15")
            I(f"s_add_u32 s{A0}, s{A0}, s{A0+1}")
            I("v_and_b32 v10, 15, v1")
            I(f"v_lshl_add_u32 v{VXO}, v10, 4, s{A0}")
            I("v_lshrrev_b32 v10, 5, v1")
            I(f"v_lshl_add_u32 v{VXO}, v10, 8, v{VXO}")
            I("v_bfe_u32 v10, v1, 4, 1")
            I(f"v_lshl_add_u32 v{VXO}, v10, 14, v{VXO}")
            I("v_and_b32 v10, 31, v1")
            I(f"s_lshl_b32 s{A0}, s{OT}, 5")
            I(f"v_add_u32 v{VTK}, s{A0}, v10")
            I("v_lshrrev_b32 v10, 5, v1")
            I(f"s_lshl_b32 s{A0}, s{KG}, 5")
            I(f"v_lshl_add_u32 v14, v10, 3, s{A0}")
            vm.issue(f"global_load_dwordx2 {vr(WR,2)}, v14, {sp(WRP)}")
            vm.issue(f"global_load_dwordx2 {vr(WR+2,2)}, v14, {sp(WRP)} offset:16")
            I(f"v_lshl_add_u32 v14, v{VTK}, 10, v14")
            vm.issue(f"global_load_dwordx2 {vr(XG,2)}, v14, {sp(X0P)}")
            vm.issue(f"global_load_dwordx2 {vr(XG+2,2)}, v14, {sp(X0P)} offset:16")
        def ffn_gu(m_):
            I(f"s_lshl_b32 s{A0+1}, s{CGP}, 4")
            I(f"v_mul_u32_u24 v14, 3584, v0")
            I(f"v_add_u32 v14, s{A0+1}, v14")
            vm.issue(f"global_load_dwordx4 {ar(AGU+4*m_,4)}, v14, {sp(WUP if m_ else WGP)}")
        def ffn_dn(hf):
            I(f"s_lshl_b32 s{A0+1}, s{CGP}, 13")
            I(f"s_add_u32 s{A0+1}, s{A0+1}, {4096*hf}")
            I(f"v_lshl_add_u32 v14, v0, 1, s{A0+1}")
            for f in range(4):
                vm.issue(f"global_load_short_d16_hi a{ADN+4*hf+f}, v14, {sp(WDP)} offset:{1024*f}")
        sched = {
            1: {(0,0): lambda: rload(3), (3,0): lambda: rload(4), (4,0): lambda: rwrite(2), (6,0): bar},
            2: {(0,0): lambda: rload(5), (3,0): lambda: rload(6), (4,0): lambda: rwrite(3), (5,0): lambda: rwrite(4), (6,0): bar},
            3: {(0,0): lambda: (rload(7), wo_addr())},
            4: {(0,0): lambda: rwrite(5), (1,0): lambda: rwrite(6), (2,0): lambda: rwrite(7), (6,0): bar},
        }
        for i in range(8): sched[3][(1 + i//2, i%2)] = (lambda i=i: wo_load(i))
        if L == 0:
            sched[3][(5,0)] = misc_loads
            sched[3][(6,0)] = lambda: ffn_dn(0)
            sched[3][(7,0)] = lambda: ffn_dn(1)
            sched[4][(3,0)] = lambda: ffn_gu(0)
            sched[4][(5,0)] = lambda: ffn_gu(1)
        for c in range(1, 5):
            for u in range(8):
                tile(u, {sl: f for (uu, sl), f in sched[c].items() if uu == u})
            bump()
        I(f"s_mov_b32 s{CTR}, 5")
        k.lines.append(".p2align 6")
        k.L(lab(n + "_loop"))
        I(f"s_cmp_lt_u32 s{CTR}, 5"); I(f"s_cbranch_scc1 {lab(n+'_pd')}")
        I("s_setprio 2")
        I(f"s_cmp_lt_u32 s{CTR}, 6"); I(f"s_cbranch_scc1 {lab(n+'_pd')}")
        I("s_setprio 1")
        I(f"s_cmp_lt_u32 s{CTR}, 7"); I(f"s_cbranch_scc1 {lab(n+'_pd')}")
        I("s_setprio 0")
        k.L(lab(n + "_pd"))
        for u in range(8): tile(u)
        bump()
        I(f"s_add_u32 s{CTR}, s{CTR}, 1")
        I(f"s_cmp_lt_u32 s{CTR}, 8")
        I(f"s_cbranch_scc1 {lab(n+'_loop')}")
        mfma(O, vr(VA[1]+4,4), vr(P1,4), O)
        I("s_waitcnt lgkmcnt(0)")
        k.stamp(name=n + "_attn")
        k.nop(12)
        I(f"s_cmp_lg_u32 s{PASS}, 0")
        I(f"s_cbranch_scc1 {lab(n+'_fin')}")
        I(f"v_cmp_nge_f32 vcc, s{THR}, v{O+8}")
        k.nop(2)
        I(f"s_cbranch_vccz {lab(n+'_fin')}")
        I(f"s_mov_b32 s{PASS}, 1")
        I(f"v_mov_b32 v{AK}, v3")
        I("v_mov_b32 v2, 0xff800000")
        I(f"s_mov_b32 s{CTR}, 0")
        k.L(lab(n + "_maxloop"))
        I(f"ds_read_b128 {vr(KB,4)}, v{AK}")
        I("s_waitcnt lgkmcnt(0)")
        mfma(S0, vr(KB,4), vr(Q,4), None)
        I(f"v_add_u32 v{AK}, 0x400, v{AK}")
        k.nop(12)
        max16(2, S0, False)
        I(f"s_add_u32 s{CTR}, s{CTR}, 1")
        I(f"s_cmp_lt_u32 s{CTR}, 64")
        I(f"s_cbranch_scc1 {lab(n+'_maxloop')}")
        setup()
        I(f"s_mov_b32 s{CTR}, 0")
        I(f"s_branch {lab(n+'_loop')}")
        k.L(lab(n + "_fin"))
        I(f"v_rcp_f32 v2, v{O+8}")
        I("s_nop 0")
        for r in range(8): I(f"v_mul_f32 v{O+r}, v{O+r}, v2")
        for r in range(4): I(f"v_cvt_pk_bf16_f32 v{P0+r}, v{O+2*r}, v{O+2*r+1}")
        I(f"global_store_dwordx4 v4, {vr(P0,4)}, {sp(OB_)} sc1")

    def oproj(L):
        n = f"l{L}"
        OBf, AC, X, Y = 64, 32, 96, 16
        lane_terms()
        I(f"s_lshl_b32 s{A0}, s{KQ}, 19")
        I(f"s_lshl_b32 s{A0+1}, s{OT}, 10")
        I(f"s_add_u32 s{A0}, s{A0}, s{A0+1}")
        I(f"v_add_u32 v10, s{A0}, v3")
        I(f"s_lshl_b32 s{A0}, s{WAVE}, 13")
        I(f"s_add_u32 s{A0}, s{A0}, 0x10000")
        I(f"v_add_u32 v12, s{A0}, v3")
        vm.drain()
        I("s_barrier")
        k.stamp(name=n + "_odrain")
        I(f"s_cmp_lg_u32 s{WAVE}, 0")
        I(f"s_cbranch_scc1 {lab(n+'_nof')}")
        I(f"s_lshl_b32 s{A0}, s{QB}, 12")
        I(f"s_add_u32 s{A0}, s{A0}, {hex(FLO[L])}")
        I(f"v_lshl_add_u32 v8, v6, 7, s{A0}")
        I(f"s_lshl_b32 s{A0+1}, s{HEAD}, 7")
        I(f"s_add_u32 s{A0}, s{A0}, s{A0+1}")
        I(f"v_mov_b32 v13, s{A0}")
        I(f"v_mov_b32 v14, s{TAG}")
        I("s_mov_b64 exec, 1")
        I(f"global_store_dword v13, v14, {sp(WSP)} sc1")
        exec_all()
        k.L(lab(n + "_nof"))
        for i in range(8): I(f"ds_write_b128 v12, {ar(AWO+4*i,4)} offset:{1024*i}")
        if L == 0:
            I(f"s_lshl_b32 s{A0}, s{WAVE}, 11")
            I(f"v_lshl_add_u32 v13, v1, 5, s{A0}")
            I(f"ds_write_b128 v13, {ar(AGU,4)}")
            I(f"ds_write_b128 v13, {ar(AGU+4,4)} offset:16")
            I(f"global_load_dwordx4 v[16:19], v3, {sp(WRP)}")
        I("v_bfe_u32 v13, v1, 2, 2")
        I("v_and_b32 v14, 3, v1")
        I("v_lshl_add_u32 v12, v7, 2, v13")
        I("v_lshlrev_b32 v12, 7, v12")
        I("v_lshl_add_u32 v12, v14, 3, v12")
        I("v_bfe_u32 v15, v1, 4, 1")
        I("v_lshl_add_u32 v12, v15, 5, v12")
        I(f"s_lshl_b32 s{A0+1}, s{KQ}, 14")
        I(f"s_add_u32 s{A0+1}, s{A0+1}, 0x10000")
        I(f"v_add_u32 v12, s{A0+1}, v12")
        bar()
        for i in range(8):
            for b in range(2):
                I(f"ds_read_b64_tr_b16 {ar(AWO+8*i+4*b,2)}, v12 offset:{2048*i+64*b}")
                I(f"ds_read_b64_tr_b16 {ar(AWO+8*i+4*b+2,2)}, v12 offset:{2048*i+64*b+1024}")
            if i % 2 == 1: I("s_waitcnt lgkmcnt(0)")
        if L == 0:
            I("v_lshl_add_u32 v13, v15, 2, v13")
            I("v_lshl_add_u32 v13, v7, 4, v13")
            I("v_lshlrev_b32 v13, 5, v13")
            I("v_lshl_add_u32 v13, v14, 3, v13")
            I(f"v_add_u32 v13, s{A0}, v13")
            for i in range(2):
                I(f"ds_read_b64_tr_b16 {ar(AGU+4*i,2)}, v13 offset:{1024*i}")
                I(f"ds_read_b64_tr_b16 {ar(AGU+4*i+2,2)}, v13 offset:{1024*i+256}")
            I("v_mov_b32 v20, 0")
            I("s_waitcnt vmcnt(0)")
            for r in range(4): I(f"v_dot2_f32_bf16 v20, v{16+r}, s{ONES}, v20")
            k.nop(1)
            allreduce("v_add_f32", 20, 21)
            I("s_nop 0")
            I(f"v_readfirstlane_b32 s{WSUM}, v20")
        I(f"s_cmp_lg_u32 s{WAVE}, 0")
        I(f"s_cbranch_scc1 {lab(n+'_owait')}")
        exec_lo(-1)
        poll(n + "_po", [f"global_load_dword v14, v8, {sp(WSP)} sc1"], [14])
        exec_all()
        k.L(lab(n + "_owait"))
        bar()
        k.stamp(name=n + "_opoll")
        for i in range(8):
            I(f"global_load_dwordx4 {vr(OBf+4*i,4)}, v10, {sp(OB_)} sc1")
            if i < 7: I("v_add_u32 v10, 0x10000, v10")
        I(f"s_lshl_b32 s{A0}, s{OA}, 15")
        I(f"s_lshl_b32 s{A0+1}, s{KQ}, 11")
        I(f"s_add_u32 s{A0+1}, s{A0+1}, s{A0}")
        I(f"v_add_u32 v9, s{A0+1}, v3")
        I(f"s_lshl_b32 s{A0+1}, s{KQ}, 13")
        I(f"s_add_u32 s{A0+1}, s{A0+1}, s{A0}")
        I(f"v_add_u32 v8, s{A0+1}, v3")
        for i in range(4): unpack(X + 2*i, X + 2*i + 1, XG + i)
        if L == 1:
            for r in range(8): I(f"v_sub_f32 v{Y+r}, v{X+r}, v{RESM}")
            for r in range(8): I(f"v_mul_f32 v{Y+r}, v{Y+r}, v{RESR}")
            for i in range(4): I(f"v_cvt_pk_bf16_f32 v{XG+i}, v{Y+2*i}, v{Y+2*i+1}")
            for i in range(4): unpack(Y + 2*i, Y + 2*i + 1, XG + i)
            for r in range(8): I(f"v_add_f32 v{X+r}, v{X+r}, v{Y+r}")
            for i in range(4): I(f"v_cvt_pk_bf16_f32 v{XG+i}, v{X+2*i}, v{X+2*i+1}")
            for i in range(4): unpack(X + 2*i, X + 2*i + 1, XG + i)
        for i in range(4): unpack(104 + 2*i, 105 + 2*i, WR + i)
        for i in range(8):
            I(f"s_waitcnt vmcnt({7-i})")
            for b in range(2): mfma(AC + 16*b, ar(AWO+8*i+4*b,4), vr(OBf+4*i,4), AC + 16*b if i else None)
        k.stamp(name=n + "_omm")
        k.nop(12)
        for q in range(4):
            for hf in range(2): I(f"ds_write_b128 v9, {vr(AC+8*q+4*hf,4)} offset:{8192*q+1024*hf}")
        bar()
        k.stamp(name="x" + n + "_red")
        for s_ in range(4):
            for hf in range(2): I(f"ds_read_b128 {vr(AC+8*s_+4*hf,4)}, v8 offset:{2048*s_+1024*hf}")
        sadd64(XB_, WSP, XF[L])
        I("s_waitcnt lgkmcnt(0)")
        for r in range(8):
            I(f"v_add_f32 v{AC+r}, v{AC+r}, v{AC+8+r}")
            I(f"v_add_f32 v{AC+16+r}, v{AC+16+r}, v{AC+24+r}")
        for r in range(8): I(f"v_add_f32 v{AC+r}, v{AC+r}, v{AC+16+r}")
        for i in range(4): I(f"v_cvt_pk_bf16_f32 v{XG+i}, v{AC+2*i}, v{AC+2*i+1}")
        for i in range(4): unpack(Y + 2*i, Y + 2*i + 1, XG + i)
        for r in range(8): I(f"v_add_f32 v{X+r}, v{X+r}, v{Y+r}")
        for i in range(4): I(f"v_cvt_pk_bf16_f32 v{XG+i}, v{X+2*i}, v{X+2*i+1}")
        I(f"global_store_dwordx4 v{VXO}, {vr(XG,4)}, {sp(XB_)} sc1")
        for i in range(4): unpack(X + 2*i, X + 2*i + 1, XG + i)
        I(f"v_add_f32 v16, v{X}, v{X+1}")
        I(f"v_mul_f32 v17, v{X}, v{X}")
        I(f"v_mul_f32 v18, v{X}, v104")
        for r in range(1, 8):
            if r > 1: I(f"v_add_f32 v16, v16, v{X+r}")
            I(f"v_fmac_f32 v17, v{X+r}, v{X+r}")
            I(f"v_fmac_f32 v18, v{X+r}, v{104+r}")
        I(f"s_lshl_b32 s{A0}, s{OA}, 12")
        I(f"s_lshl_b32 s{A0+1}, s{KQ}, 10")
        I(f"s_add_u32 s{A0}, s{A0}, s{A0+1}")
        I(f"s_add_u32 s{A0}, s{A0}, {LSA}")
        I(f"v_add_u32 v13, s{A0}, v3")
        I("ds_write_b96 v13, v[16:18]")
        k.stamp(name="x" + n + "_epi")
        I("s_waitcnt vmcnt(0) lgkmcnt(0)")
        k.stamp(name="x" + n + "_xdrain")
        I("s_waitcnt vmcnt(0) lgkmcnt(0)")
        I("s_barrier")
        I(f"s_cmp_lg_u32 s{WAVE}, 0")
        I(f"s_cbranch_scc1 {lab(n+'_nost')}")
        I("v_lshlrev_b32 v13, 4, v6")
        I("v_lshl_add_u32 v13, v7, 12, v13")
        I(f"v_add_u32 v13, {LSA}, v13")
        for j in range(8): I(f"ds_read_b96 {vr(32+4*j,3)}, v13 offset:{512*j}")
        I(f"s_lshl_b32 s{A0}, s{TB}, 3")
        I(f"s_add_u32 s{A0}, s{A0}, s{CG}")
        I(f"s_lshl_b32 s{A0}, s{A0}, 10")
        I(f"s_add_u32 s{A0}, s{A0}, {hex(ST[L])}")
        I(f"v_add_u32 v13, s{A0}, v3")
        I(f"v_mov_b32 v35, s{TAG}")
        I("s_waitcnt lgkmcnt(0)")
        for j in range(1, 8):
            for c in range(3): I(f"v_add_f32 v{32+c}, v{32+c}, v{32+4*j+c}")
        I(f"global_store_dwordx4 v13, v[32:35], {sp(WSP)} sc1")
        k.L(lab(n + "_nost"))
        k.stamp(name=n + "_stpub")

    def hop_a(L, after_poll=None):
        n = f"l{L}"
        I(f"s_lshl_b32 s{A0}, s{TB}, 13")
        I(f"s_add_u32 s{A0}, s{A0}, {hex(ST[L])}")
        I(f"v_lshl_add_u32 v12, v0, 4, s{A0}")
        loads = [f"global_load_dwordx4 v[32:35], v12, {sp(WSP)} sc1"]; tags = [35]
        if L == 0:
            I(f"s_lshr_b32 s{A0}, s{TT}, 1")
            I(f"s_lshl_b32 s{A0}, s{A0}, 13")
            I(f"s_add_u32 s{A0}, s{A0}, {hex(ST[L] + 12)}")
            I("v_and_b32 v13, 7, v1")
            I(f"v_lshl_add_u32 v13, v13, 10, s{A0}")
            loads.append(f"global_load_dword v36, v13, {sp(WSP)} sc1"); tags.append(36)
        poll(n + "_pa", loads, tags)
        I("v_lshlrev_b32 v13, 4, v0")
        I("ds_write_b96 v13, v[32:34]")
        if after_poll: after_poll()
        I(f"s_lshl_b32 s{A0}, s{OA}, 9")
        I(f"v_lshl_add_u32 v13, v6, 4, s{A0}")
        bar()
        k.stamp(name=n + "_hopa")
        for c in range(8): I(f"ds_read_b96 {vr(16+4*c,3)}, v13 offset:{1024*c}")
        I("s_waitcnt lgkmcnt(0)")
        for a_, b_ in ((0,1),(2,3),(4,5),(6,7),(0,2),(4,6),(0,4)):
            for c in range(3): I(f"v_add_f32 v{16+4*a_+c}, v{16+4*a_+c}, v{16+4*b_+c}")
        rowstats(16, 17, RESM, 20, RESR)
        I(f"s_or_b32 s{A0}, s{CG}, s{KQ}")
        I(f"s_cmp_lg_u32 s{A0}, 0")
        I(f"s_cbranch_scc1 {lab(n+'_nokey')}")
        I(f"v_fma_f32 v18, -v{RESM}, s{WSUM}, v18")
        I(f"v_mul_f32 v18, v18, v{RESR}")
        bf16r(18)
        I("v_ashrrev_i32 v19, 31, v18")
        I("v_or_b32 v19, 0x80000000, v19")
        I("v_xor_b32 v19, v19, v18")
        I("v_and_b32 v19, 0xffff0000, v19")
        I(f"v_sub_u32 v20, 2047, v{VTK}")
        I("v_or_b32 v20, v19, v20")
        I("v_mov_b32 v24, v20")
        I(f"v_mov_b32 v21, v{RESM}")
        dppred("v_max_u32", 24, Q4 + ("row_half_mirror", "row_mirror"))
        swapop("v_permlane16_swap_b32", "v_max_u32", 24, 25)
        I("v_cmp_eq_u32 vcc, v24, v20")
        I(f"v_mov_b32 v22, v{RESR}")
        I(f"v_mov_b32 v23, s{TAG}")
        I(f"s_lshl_b32 s{A0}, s{OT}, 7")
        I(f"s_add_u32 s{A0}, s{A0}, {hex(KEY[L])}")
        I(f"v_mov_b32 v13, s{A0}")
        I("s_mov_b32 exec_lo, vcc_lo")
        I("s_mov_b32 exec_hi, 0")
        I(f"global_store_dwordx4 v13, v[20:23], {sp(WSP)} sc1")
        exec_all()
        k.L(lab(n + "_nokey"))
        k.stamp(name="x" + n + "_key")

    FT = 64
    SR = 96
    stat_loads = [f"global_load_dwordx4 {vr(SR+4*i,4)}, v11, {sp(WSP)} offset:{1024*i} sc1" for i in range(4)]
    stat_tags = [SR + 4*i + 3 for i in range(4)]
    def own_stats():
        for i in range(1, 4):
            for c in range(2): I(f"v_add_f32 v{SR+c}, v{SR+c}, v{SR+4*i+c}")
        halfsum("v_add_f32", SR, SR + 2)
        halfsum("v_add_f32", SR + 1, SR + 2)
        rowstats(SR, SR + 1, MT[0], SR + 2, SR + 3)
        I(f"v_mov_b32 v{AT[0]}, s{CEPS}")
        I(f"v_add_f32 v{SR+3}, 1.0, v{SR+3}")
        I(f"v_mul_f32 v{SR+2}, v{SR+2}, v{SR+3}")
        I(f"v_fmac_f32 v{AT[0]}, v{SR+2}, v{SR+3}")
        I(f"v_rsq_f32 v{AT[0]}, v{AT[0]}")
        I(f"v_mov_b32 v{MT[1]}, v{MT[0]}")
        I(f"v_mul_f32 v{AT[0]}, v{AT[0]}, v{SR+3}")
        I(f"v_mov_b32 v{AT[1]}, v{AT[0]}")
        I(f"v_permlane16_swap_b32 v{MT[0]}, v{MT[1]}")
        I("s_nop 0")
        I(f"v_permlane16_swap_b32 v{AT[0]}, v{AT[1]}")
    def key_load(L):
        return f"global_load_dwordx4 {vr(FT,4)}, v{FT+4}, {sp(WSP)} sc1"
    def hop_b_issue(L):
        I(f"v_lshlrev_b32 v{FT+4}, 7, v1")
        I(f"v_add_u32 v{FT+4}, {hex(KEY[L])}, v{FT+4}")
        I(f"s_cmp_lg_u32 s{WAVE}, 0")
        I(f"s_cbranch_scc1 {lab(f'l{L}_nki')}")
        I(key_load(L))
        k.L(lab(f"l{L}_nki"))
    def hop_b(L, extra_after_idx=None):
        n = f"l{L}"
        I(f"v_mov_b32 v{FT+6}, {LFF}")
        I(f"s_cmp_lg_u32 s{WAVE}, 0")
        I(f"s_cbranch_scc1 {lab(n+'_kw')}")
        keepq = list(vm.q)
        poll(n + "_pb", [key_load(L)], [FT + 3], first_issued=True)
        vm.q = keepq
        I(f"v_mov_b32 v{FT+5}, v{FT}")
        allreduce("v_max_u32", FT + 5, FT + 7)
        I(f"v_cmp_eq_u32 vcc, v{FT+5}, v{FT}")
        I("s_mov_b64 exec, vcc")
        I(f"ds_write_b96 v{FT+6}, {vr(FT,3)}")
        exec_all()
        k.L(lab(n + "_kw"))
        bar()
        I(f"ds_read_b96 {vr(FT,3)}, v{FT+6}")
        I("s_waitcnt lgkmcnt(0)")
        I(f"v_readfirstlane_b32 s{IDX}, v{FT}")
        I(f"v_readfirstlane_b32 s{RM}, v{FT+1}")
        I(f"v_readfirstlane_b32 s{RR}, v{FT+2}")
        I(f"s_and_b32 s{RS_}, s{IDX}, 0xffff0000")
        I(f"s_and_b32 s{IDX}, s{IDX}, 0x7ff")
        I(f"s_sub_u32 s{IDX}, 2047, s{IDX}")
        I(f"s_ashr_i32 s{A0}, s{RS_}, 31")
        I(f"s_not_b32 s{A0}, s{A0}")
        I(f"s_or_b32 s{A0}, s{A0}, 0x80000000")
        I(f"s_xor_b32 s{RS_}, s{RS_}, s{A0}")
        I(f"s_and_b32 s{RS_}, s{RS_}, 0xffff0000")
        I(f"s_lshr_b32 s{A0}, s{IDX}, 4")
        I(f"s_lshl_b32 s{A0}, s{A0}, 14")
        I(f"s_and_b32 s{A0+1}, s{IDX}, 15")
        I(f"s_lshl_b32 s{A0+1}, s{A0+1}, 4")
        I(f"s_add_u32 s{A0}, s{A0}, s{A0+1}")
        I("s_cmp_ge_u32 s2, 224")
        I(f"s_cbranch_scc1 {lab(n+'_frow')}")
        I(f"s_lshl_b32 s{A0+1}, s{WAVE}, 11")
        I(f"s_add_u32 s{A0}, s{A0}, s{A0+1}")
        I(f"v_and_b32 v{FT+4}, 48, v1")
        I(f"v_lshl_add_u32 v{FT+4}, v{FT+4}, 4, s{A0}")
        I(f"v_add_u32 v{FT+5}, 0x400, v{FT+4}")
        I(f"s_branch {lab(n+'_rowld')}")
        k.L(lab(n + "_frow"))
        I(f"s_sub_u32 s{A0+1}, s2, 224")
        I(f"s_lshl_b32 s{A0+1}, s{A0+1}, 9")
        I(f"s_add_u32 s{A0}, s{A0}, s{A0+1}")
        I(f"v_bfe_u32 v{FT+4}, v1, 2, 1")
        I(f"v_lshl_add_u32 v{FT+4}, v{FT+4}, 8, s{A0}")
        I(f"v_mov_b32 v{FT+5}, v{FT+4}")
        k.L(lab(n + "_rowld"))
        vm.issue(f"global_load_dwordx4 {vr(FT+8,4)}, v{FT+4}, {sp(XB_)} sc1", "row")
        vm.issue(f"global_load_dwordx4 {vr(FT+12,4)}, v{FT+5}, {sp(XB_)} sc1", "row")
    def slice1(L):
        n = f"l{L}"
        XR = FT + 8
        vm.wait("row")
        k.stamp(name="x" + n + "_row")
        I("s_cmp_ge_u32 s2, 224")
        I(f"s_cbranch_scc1 {lab(n+'_s1skip')}")
        for i in range(8):
            unpack(FT, FT + 1, XR + i)
            I(f"v_subrev_f32 v{FT}, s{RM}, v{FT}")
            I(f"v_subrev_f32 v{FT+1}, s{RM}, v{FT+1}")
            I(f"v_mul_f32 v{FT}, s{RR}, v{FT}")
            I(f"v_mul_f32 v{FT+1}, s{RR}, v{FT+1}")
            I(f"v_cvt_pk_bf16_f32 v{XR+i}, v{FT}, v{FT+1}")
        I(f"v_lshrrev_b32 v{FT+4}, 4, v1")
        I(f"v_lshlrev_b32 v{FT+4}, 4, v{FT+4}")
        I(f"v_mfma_f32_16x16x32_bf16 {vr(FT+16,4)}, {ar(AGU,4)}, {vr(XR,4)}, 0")
        I(f"v_mfma_f32_16x16x32_bf16 {vr(FT+16,4)}, {ar(AGU+4,4)}, {vr(XR+4,4)}, {vr(FT+16,4)}")
        I(f"s_lshl_b32 s{A0}, s{WAVE}, 6")
        I(f"s_add_u32 s{A0}, s{A0}, {LFF + 256}")
        I(f"v_add_u32 v{FT+4}, s{A0}, v{FT+4}")
        I("s_mov_b32 exec_lo, 0x00010001")
        I("s_mov_b32 exec_hi, 0x00010001")
        k.nop(3)
        I(f"ds_write_b128 v{FT+4}, {vr(FT+16,4)}")
        exec_all()
        bar()
        k.L(lab(n + "_s1skip"))
    def slice2(L):
        n = f"l{L}"
        I("s_cmp_ge_u32 s2, 224")
        I(f"s_cbranch_scc1 {lab(n+'_s2skip')}")
        I(f"v_and_b32 v{FT+4}, 15, v1")
        I(f"v_lshlrev_b32 v{FT+4}, 2, v{FT+4}")
        I(f"v_add_u32 v{FT+4}, {LFF + 256}, v{FT+4}")
        for i in range(8): I(f"ds_read_b32 v{FT+8+i}, v{FT+4} offset:{64*i}")
        for f in range(8): I(f"v_accvgpr_read_b32 v{FT+16+f}, a{ADN+f}")
        I("s_waitcnt lgkmcnt(0)")
        g = FT + 8
        for a_, b_ in ((0,1),(2,3),(4,5),(6,7),(0,2),(4,6),(0,4)): I(f"v_add_f32 v{g+a_}, v{g+a_}, v{g+b_}")
        bf16r(g)
        t = FT
        I(f"v_mul_f32 v{t}, {hex(f2u(-LOG2E))}, v{g}")
        I(f"v_exp_f32 v{t}, v{t}")
        I("s_nop 0")
        I(f"v_add_f32 v{t}, 1.0, v{t}")
        I(f"v_rcp_f32 v{t}, v{t}")
        I("s_nop 0")
        I(f"v_mul_f32 v{t}, v{t}, v{g}")
        bf16r(t)
        k.nop(2)
        I(f"v_mul_f32_dpp v{t}, v{g}, v{t} row_ror:8 row_mask:0xf bank_mask:0xf")
        bf16r(t)
        k.nop(1)
        for f in range(8): I(f"v_readlane_b32 s{A0+f}, v{t}, {f}")
        I(f"s_lshl_b32 s{T2}, s{CGP}, 12")
        I(f"s_add_u32 s{T2}, s{T2}, {hex(YP[L])}")
        I(f"v_lshl_add_u32 v{FT+4}, v0, 3, s{T2}")
        I(f"v_mul_f32 v{FT+2}, s{A0}, v{FT+16}")
        for f in range(1, 8): I(f"v_fmac_f32 v{FT+2}, s{A0+f}, v{FT+16+f}")
        I(f"v_mov_b32 v{FT+3}, s{TAG}")
        I(f"global_store_dwordx2 v{FT+4}, {vr(FT+2,2)}, {sp(WSP)} sc1")
        k.L(lab(n + "_s2skip"))
    def finalize(L):
        n = f"l{L}"
        I("s_cmp_lt_u32 s2, 224")
        I(f"s_cbranch_scc1 {lab(n+'_fskip')}")
        XR = FT + 8
        I(f"v_lshrrev_b32 v{FT+4}, 4, v0")
        I(f"v_mul_u32_u24 v{FT+4}, {7*4096}, v{FT+4}")
        I(f"v_and_b32 v{FT+5}, 15, v0")
        I(f"v_lshl_add_u32 v{FT+4}, v{FT+5}, 3, v{FT+4}")
        I(f"s_sub_u32 s{A0}, s2, 224")
        I(f"s_lshl_b32 s{A0+1}, s{A0}, 7")
        I(f"s_add_u32 s{A0+1}, s{A0+1}, {hex(YP[L])}")
        I(f"v_add_u32 v{FT+4}, s{A0+1}, v{FT+4}")
        for i in range(1, 4): I(f"v_add_u32 v{FT+i-1}, {8192*i}, v{FT+4}")
        I(f"v_bfe_u32 v{FT+6}, v1, 1, 1")
        I(f"v_cmp_eq_u32 vcc, 1, v{FT+6}")
        I(f"v_bfe_u32 v{FT+6}, v1, 3, 1")
        I("s_nop 0")
        I(f"v_cndmask_b32 v{XR}, v{XR}, v{XR+1}, vcc")
        I(f"v_cndmask_b32 v{XR+2}, v{XR+2}, v{XR+3}, vcc")
        I(f"v_cmp_eq_u32 vcc, 1, v{FT+6}")
        I(f"v_and_b32 v{FT+6}, 1, v1")
        I("s_nop 0")
        I(f"v_cndmask_b32 v{XR}, v{XR}, v{XR+2}, vcc")
        I(f"v_cmp_eq_u32 vcc, 1, v{FT+6}")
        unpack(XR + 1, XR + 2, XR)
        I(f"v_cndmask_b32 v{XR}, v{XR+1}, v{XR+2}, vcc")
        Y_ = FT + 16
        ad = [FT + 4, FT, FT + 1, FT + 2]
        keepq = list(vm.q)
        poll(n + "_pf", [f"global_load_dwordx2 {vr(Y_+2*i,2)}, v{ad[i//2]}, {sp(WSP)} offset:{4096*(i%2) - (4096 if False else 0)} sc1" if False else
                         f"global_load_dwordx2 {vr(Y_+2*i,2)}, v{ad[(i+1)//2]}, {sp(WSP)} offset:{-4096 if i % 2 else 0} sc1" for i in range(7)],
             [Y_ + 2*i + 1 for i in range(7)])
        for i in range(1, 7): I(f"v_add_f32 v{Y_}, v{Y_}, v{Y_+2*i}")
        rowreduce("v_add_f32", Y_, FT + 6)
        I(f"v_lshlrev_b32 v{FT+5}, 2, v{FT+5}")
        I(f"v_add_u32 v{FT+5}, {LFF + 256}, v{FT+5}")
        I(f"s_lshl_b32 s{A0+1}, s{WAVE}, 6")
        I(f"v_add_u32 v{FT+6}, s{A0+1}, v{FT+5}")
        I(f"ds_write_b32 v{FT+6}, v{Y_}")
        bar()
        for i in range(8): I(f"ds_read_b32 v{Y_+i}, v{FT+5} offset:{64*i}")
        t = FT
        I(f"v_mov_b32 v{t}, {hex(f2u(-LOG2E))}")
        I(f"v_mul_f32 v{t}, s{RS_}, v{t}")
        I(f"v_exp_f32 v{t}, v{t}")
        I(f"v_subrev_f32 v{t+1}, s{RM}, v{XR}")
        I(f"v_add_f32 v{t}, 1.0, v{t}")
        I(f"v_rcp_f32 v{t}, v{t}")
        I(f"v_mul_f32 v{t+1}, s{RR}, v{t+1}")
        bf16r(t); bf16r(t + 1)
        I("s_waitcnt lgkmcnt(0)")
        for i in range(1, 8): I(f"v_add_f32 v{Y_}, v{Y_}, v{Y_+i}")
        bf16r(Y_)
        I(f"v_mul_f32 v{Y_}, v{Y_}, v{t}")
        bf16r(Y_)
        I(f"v_add_f32 v{Y_}, v{Y_}, v{t+1}")
        bf16r(Y_)
        I(f"v_add_f32 v{Y_}, v{Y_}, v{XR}")
        I(f"v_cvt_pk_bf16_f32 v{Y_}, v{Y_}, v{Y_}")
        I(f"s_cmp_lg_u32 s{WAVE}, 0")
        I(f"s_cbranch_scc1 {lab(n+'_fskip')}")
        if L == 1:
            I(f"s_lshl_b32 s{A0+1}, s{IDX}, 10")
            I(f"s_lshl_b32 s{A0}, s{A0}, 5")
            I(f"s_add_u32 s{A0}, s{A0}, s{A0+1}")
            I(f"v_lshl_add_u32 v{FT+4}, v1, 1, s{A0}")
            exec_lo("0xffff")
            I(f"global_store_short v{FT+4}, v{Y_}, {sp(OUTP)}")
        else:
            I(f"v_and_b32 v{Y_}, 0xffff, v{Y_}")
            k.nop(2)
            for j, qp in ((1, 1), (2, 2), (3, 3)):
                I(f"v_mov_b32_dpp v{Y_+j}, v{Y_} quad_perm:[{qp},{qp},{qp},{qp}] row_mask:0xf bank_mask:0xf")
            I(f"v_lshl_or_b32 v{Y_}, v{Y_+1}, 16, v{Y_}")
            I(f"v_lshl_or_b32 v{Y_+1}, v{Y_+3}, 16, v{Y_+2}")
            I(f"v_mov_b32 v{Y_+2}, s{TAG}")
            I(f"s_lshl_b32 s{A0}, s{A0}, 7")
            I(f"s_add_u32 s{A0}, s{A0}, {hex(X2R)}")
            I(f"v_lshl_add_u32 v{FT+4}, v1, 2, s{A0}")
            exec_lo("0x1111")
            I(f"global_store_dwordx4 v{FT+4}, {vr(Y_,4)}, {sp(WSP)} sc1")
        exec_all()
        k.L(lab(n + "_fskip"))
        vm.q = keepq

    q_epilogue(0)
    k.stamp(name="l0_qepi")
    attention(0)
    oproj(0)
    I(f"s_mul_i32 s{A0}, s{WAVE}, 6144")
    I(f"s_add_u32 s{A0}, s{A0}, {LWQ}")
    I(f"v_add_u32 v12, s{A0}, v3")
    for i in range(6): I(f"ds_write_b128 v12, {ar(AWS+4*i,4)} offset:{1024*i}")
    I(f"s_lshl_b32 s{A0}, s{TT}, 15")
    I(f"v_add_u32 v8, s{A0}, v3")
    I("v_add_u32 v9, 0x4000, v8")
    I(f"s_lshr_b32 s{A0}, s{TT}, 1")
    I(f"s_lshl_b32 s{A0}, s{A0}, 13")
    I(f"s_and_b32 s{A0+1}, s{TT}, 1")
    I(f"s_lshl_b32 s{A0+1}, s{A0+1}, 9")
    I(f"s_add_u32 s{A0}, s{A0}, s{A0+1}")
    I(f"s_add_u32 s{A0}, s{A0}, {hex(ST[0])}")
    I(f"v_lshl_add_u32 v11, v6, 4, s{A0}")
    I("v_lshl_add_u32 v11, v7, 12, v11")
    RING = 6
    LOOK = int(ENV("LOOK", "4"))
    ROT1 = 67 if not PROFILE else 101
    I(f"s_lshr_b32 s{ROT1}, s{HEAD}, 1")
    def xload(ks):
        I(f"s_add_u32 s{T0}, s{ROT1}, {ks}")
        I(f"s_and_b32 s{T0}, s{T0}, 15")
        I(f"s_lshl_b32 s{T0}, s{T0}, 10")
        I(f"s_add_u32 s{T0}, s{XB_}, s{T0}")
        I(f"s_addc_u32 s{T0+1}, s{XB_+1}, 0")
        for t in range(2):
            vm.issue(f"global_load_dwordx4 {ar(8*(ks % RING)+4*t,4)}, v{8+t}, {sp(T0)} sc1", f"x{ks}")
    def wbase1(ks):
        I(f"s_add_u32 s{T0}, s{ROT1}, {ks}")
        I(f"s_and_b32 s{T0}, s{T0}, 15")
        I(f"s_lshl_b32 s{T0}, s{T0}, 10")
        I(f"v_add_u32 v12, s{T0}, v10")
    def first_x():
        for ks in range(LOOK): xload(ks)
    hop_a(0, first_x)
    for l in stat_loads: vm.issue(l, "st")
    w_addr(False)
    HB, SL1, SL2, FN = [int(x) for x in ENV("FSCH", "0,1,2,9").split(",")]
    hop_b_issue(0)
    wbase1(0)
    wreads(WB, 12, 0, False)
    for ks in range(16):
        if ks == HB:
            hop_b(0)
        if ks == SL1: slice1(0)
        if ks == SL2: slice2(0)
        if ks == FN: finalize(0)
        if ks + LOOK < 16: xload(ks + LOOK)
        if ks < 15:
            wbase1(ks + 1)
            wreads(WB + 12*((ks+1)&1), 12, 0, False)
        vm.wait(f"x{ks}", f" lgkmcnt({6 if ks < 15 else 0})")
        qmfmas(WB + 12*(ks&1), ar(8*(ks % RING),4), ar(8*(ks % RING)+4,4), ks == 0)
    k.stamp(name="q1_loop")
    poll("ps", stat_loads, stat_tags, first_issued=True)
    own_stats()
    if FN >= 16: finalize(0)
    k.stamp(name="q1_fin")
    I(f"s_lshr_b32 s{A0}, s{IDX}, 8")
    I(f"s_cmp_lg_u32 s{A0}, s{QB}")
    I(f"s_cbranch_scc1 {lab('nofix')}")
    F0, FX = 80, 64
    I(f"s_lshl_b32 s{A0}, s{WAVE}, 9")
    I(f"s_add_u32 s{A0}, s{A0}, {hex(X2R)}")
    I(f"v_lshl_add_u32 v12, v7, 7, s{A0}")
    I("v_bfe_u32 v13, v1, 4, 1")
    I("v_lshl_add_u32 v12, v13, 4, v12")
    poll("px", [f"global_load_dwordx3 {vr(F0+4*i,3)}, v12, {sp(WSP)} offset:{256*(i>>1)+32*(i&1)} sc1" for i in range(4)], [F0 + 4*i + 2 for i in range(4)])
    I(f"s_lshl_b32 s{A0}, s{WAVE}, 11")
    I(f"v_add_u32 v12, s{A0}, v10")
    for q in range(2): wreads(WB + 12*q, 12, q, False)
    for i in range(4):
        I(f"v_mov_b32 v{FX+2*i}, v{F0+4*i}")
        I(f"v_mov_b32 v{FX+2*i+1}, v{F0+4*i+1}")
    I("v_mov_b32 v14, 0"); I("v_mov_b32 v15, 0")
    for r in range(8):
        I(f"v_dot2_f32_bf16 v14, v{FX+r}, s{ONES}, v14")
        I(f"v_dot2_f32_bf16 v15, v{FX+r}, v{FX+r}, v15")
    I("s_waitcnt lgkmcnt(0)")
    for q in range(2):
        for sec in range(3): mfma16(F0 + 4*sec, vr(WB+12*q+4*sec,4), vr(FX+4*q,4), q == 0)
    rowreduce("v_add_f32", 14, 13)
    rowreduce("v_add_f32", 15, 13)
    I(f"s_lshl_b32 s{A0}, s{WAVE}, 8")
    I(f"s_add_u32 s{A0}, s{A0}, {LRD}")
    I("v_and_b32 v12, 48, v1")
    I(f"v_add_u32 v12, s{A0}, v12")
    I(f"v_mov_b32 v13, s{A0}")
    I("s_mov_b32 exec_lo, 0x00010001"); I("s_mov_b32 exec_hi, 0x00010001")
    for sec in range(3): I(f"ds_write_b128 v12, {vr(F0+4*sec,4)} offset:{64*sec}")
    I("ds_write_b64 v13, v[14:15] offset:192")
    exec_all()
    bar()
    I(f"s_lshr_b32 s{A0}, s{IDX}, 5")
    I(f"s_cmp_lg_u32 s{A0}, s{OT}")
    I(f"s_cbranch_scc1 {lab('nores')}")
    I(f"s_lshl_b32 s{A0}, s{KG}, 7")
    I(f"s_add_u32 s{A0}, s{A0}, {hex(X2R)}")
    I(f"v_lshl_add_u32 v14, v7, 4, s{A0}")
    I(f"v_cmp_eq_u32 vcc, s{IDX}, v{VTK}")
    I(f"s_and_saveexec_b64 {sp(T2)}, vcc")
    I(f"global_load_dwordx2 {vr(XG,2)}, v14, {sp(WSP)} sc1")
    I(f"global_load_dwordx2 {vr(XG+2,2)}, v14, {sp(WSP)} offset:32 sc1")
    I(f"v_mov_b32 v{RESR}, 0")
    exec_all()
    k.L(lab("nores"))
    I(f"s_lshr_b32 s{A0}, s{IDX}, 5")
    I(f"s_cmp_lg_u32 s{A0}, s{TT}")
    I(f"s_cbranch_scc1 {lab('nofix')}")
    sum8(LRD, LFX)
    I("v_and_b32 v12, 48, v1")
    I(f"v_add_u32 v12, {LFX}, v12")
    I(f"v_mov_b32 v13, {LFX + 192}")
    for sec in range(2): I(f"ds_read_b128 {vr(F0+4*sec,4)}, v12 offset:{64*sec}")
    I("ds_read_b64 v[64:65], v13")
    I("v_and_b32 v15, 15, v1")
    I("v_lshlrev_b32 v14, 2, v15")
    I(f"v_add_u32 v14, {LFX + 128}, v14")
    I("ds_read_b32 v66, v14")
    I(f"s_and_b32 s{A0}, s{IDX}, 31")
    I("v_lshrrev_b32 v13, 4, v1")
    I("v_lshlrev_b32 v13, 2, v13")
    I(f"v_sub_u32 v13, s{A0}, v13")
    I(f"v_sub_u32 v15, s{A0}, v15")
    I("s_waitcnt lgkmcnt(0)")
    rowstats(64, 65, 67, 68, 69)
    for t in range(2):
        I(f"v_cmp_eq_u32 vcc, {16*t}, v15")
        k.nop(2)
        I(f"v_cndmask_b32 v{MT[t]}, v{MT[t]}, v67, vcc")
        I(f"v_cndmask_b32 v{AT[t]}, v{AT[t]}, v69, vcc")
        for sec in range(2):
            for r in range(4): I(f"v_cndmask_b32 v{ACC+8*sec+4*t+r}, v{ACC+8*sec+4*t+r}, v{F0+4*sec+r}, vcc")
        for r in range(4):
            I(f"v_cmp_eq_u32 vcc, {16*t+r}, v13")
            k.nop(2)
            I(f"v_cndmask_b32 v{ACC+16+4*t+r}, v{ACC+16+4*t+r}, v66, vcc")
    k.L(lab("nofix"))
    vm.drain()
    k.stamp(name="q1_fix")
    bounce_params()
    q_epilogue(1)
    k.stamp(name="l1_qepi")
    attention(1)
    oproj(1)
    hop_a(1)
    hop_b_issue(1)
    X, Y = 96, 16
    for i in range(4): unpack(X + 2*i, X + 2*i + 1, XG + i)
    for r in range(8): I(f"v_sub_f32 v{Y+r}, v{X+r}, v{RESM}")
    for r in range(8): I(f"v_mul_f32 v{Y+r}, v{Y+r}, v{RESR}")
    for i in range(4): I(f"v_cvt_pk_bf16_f32 v{XG+i}, v{Y+2*i}, v{Y+2*i+1}")
    for i in range(4): unpack(Y + 2*i, Y + 2*i + 1, XG + i)
    for r in range(8): I(f"v_add_f32 v{X+r}, v{X+r}, v{Y+r}")
    for i in range(4): I(f"v_cvt_pk_bf16_f32 v{XG+i}, v{X+2*i}, v{X+2*i+1}")
    I(f"s_lshl_b32 s{A0}, s{KG}, 5")
    I(f"v_lshl_add_u32 v12, v7, 4, s{A0}")
    I(f"v_lshl_add_u32 v12, v{VTK}, 10, v12")
    I(f"v_permlane32_swap_b32 v{XG}, v{XG+2}")
    I(f"v_permlane32_swap_b32 v{XG+1}, v{XG+3}")
    hop_b(1)
    k.stamp(name="t_hopb")
    I(f"v_cmp_ne_u32 vcc, s{IDX}, v{VTK}")
    I(f"s_and_saveexec_b64 {sp(T2)}, vcc")
    vm.issue(f"global_store_dwordx4 v12, {vr(XG,4)}, {sp(OUTP)}")
    exec_all()
    slice1(1)
    slice2(1)
    k.stamp(name="t_slice")
    finalize(1)
    I("s_cmp_lg_u32 s2, 0")
    I(f"s_cbranch_scc1 {lab('end')}")
    I(f"v_mov_b32 v12, {hex(NONCE)}")
    I(f"v_mov_b32 v13, s{TAG}")
    I("v_cmp_eq_u32 vcc, 0, v0")
    I(f"s_and_saveexec_b64 {sp(T2)}, vcc")
    I(f"s_cbranch_execz {lab('end')}")
    I(f"global_store_dword v12, v13, {sp(WSP)}")
    k.L(lab("end"))
    k.stamp_end(0)
    k.L(lab("exit"))
    I("s_endpgm")
    return k

if __name__ == "__main__":
    k = build_kernel()
    bad = check_hazards(k)
    for b in bad: print("HAZARD", b, file=sys.stderr)
    out = sys.argv[1] if len(sys.argv) > 1 else "cdna_kernels/" + NAME + ".s"
    txt = emit_file(HEADER, [k], single=(ENV("SINGLE", "0") == "1"))
    open(out, "w").write(txt)
    print("written", out, len(txt), "bytes; hazards:", len(bad))
```

```python
import sys, struct, os
from asmlib import *

NAME = "interleave_layers__softmax_full_mha__moe_arch_mod__prompt"
HEADER = open("cdna_kernels/" + NAME + ".s.ref").read().split("; Override launch")[0]
ENV = os.environ.get

XF = [0x000000, 0x200000]
KF = [0x400000, 0x800000]
VF = [0x600000, 0xA00000]
OF = [0xC00000, 0xE00000]
ST = [0x1000000, 0x1040000]
YP = [0x1080000, 0x1180000]
FLK = [0x1280000, 0x1288000]
FLO = [0x1290000, 0x1298000]
KEY = [0x12A4000, 0x12A6000]
X2R = 0x12A0000
NONCE = 0x12A2000
EPS = 1e-5
def f2u(x): return struct.unpack("<I", struct.pack("<f", x))[0]
QSCALE = 0.25 * 1.4426950408889634
LOG2E = 1.4426950408889634
SPIN_MAX = 1 << 18

CB, CBN = 131072, 20
LWQ = 8192
LST = CB + CBN * 512
LSA = LST
LPC = LST + 8192
LFX = LST + 8448
LVB = LST + 8704
LRD = LST + 10752
LFF = LST + 14848
LDS_BYTES = LFF + 1024

X0P, WQP, WOP, WSP, WRP, WGP, WUP, WDP, OUTP = 4, 6, 8, 10, 12, 14, 16, 18, 20
HEAD, QB, WAVE, TT, W1K, THR, CTR, SPIN, PASS, TAG, CG, TB, OA, KQ, OT, KG, IDX, WSUM = range(22, 40)
T0, T2 = 40, 42
A0 = 44
KB_, VB_, OB_, XB_ = 52, 54, 56, 58
RM, RR, RS_, ONES, C512, CEPS = 60, 61, 62, 63, 64, 65
CGP = 3

def sp(i): return f"s[{i}:{i+1}]"

class VM:
    def __init__(self, k): self.k = k; self.q = []
    def issue(self, txt, tag=None):
        self.k.I(txt); self.q.append(tag)
    def wait(self, tag, extra=""):
        i = max(j for j, t in enumerate(self.q) if t == tag)
        n = len(self.q) - 1 - i
        assert n <= 63
        self.k.I(f"s_waitcnt vmcnt({n}){extra}")
    def drain(self, extra=""):
        self.k.I(f"s_waitcnt vmcnt(0){extra}"); self.q = []

def build_kernel():
    k = Kern(NAME + "_kernel", 256, 512, LDS_BYTES, 128, nagpr=128)
    I = k.I
    vm = VM(k)
    def lab(x): return f"L_{x}"
    def sadd64(d, b, const):
        I(f"s_add_u32 s{d}, s{b}, {hex(const)}"); I(f"s_addc_u32 s{d+1}, s{b+1}, 0")
    def swapop(sw, op, x, t):
        I(f"v_mov_b32 v{t}, v{x}"); k.nop(2); I(f"{sw} v{x}, v{t}"); I(f"{op} v{x}, v{x}, v{t}")
    def halfsum(op, x, t): swapop("v_permlane32_swap_b32", op, x, t)
    def rowreduce(op, x, t):
        swapop("v_permlane16_swap_b32", op, x, t); swapop("v_permlane32_swap_b32", op, x, t)
    def dppred(op, x, modes):
        for m in modes:
            k.nop(2); I(f"{op}_dpp v{x}, v{x}, v{x} {m} row_mask:0xf bank_mask:0xf")
    Q4 = ("quad_perm:[1,0,3,2]", "quad_perm:[2,3,0,1]")
    def allreduce(op, x, t):
        dppred(op, x, Q4 + ("row_half_mirror", "row_mirror")); rowreduce(op, x, t)
    def unpack(dlo, dhi, src):
        I(f"v_lshlrev_b32 v{dlo}, 16, v{src}"); I(f"v_and_b32 v{dhi}, 0xffff0000, v{src}")
    def bf16r(x):
        I(f"v_cvt_pk_bf16_f32 v{x}, v{x}, v{x}"); I(f"v_and_b32 v{x}, 0xffff0000, v{x}")
    def exec_lo(mask):
        I(f"s_mov_b32 exec_lo, {mask}"); I("s_mov_b32 exec_hi, 0")
    def exec_all(): I("s_mov_b64 exec, -1")
    def bar(lg=True):
        if lg: I("s_waitcnt lgkmcnt(0)")
        I("s_barrier")
    def poll(name, loads, tagregs, first_issued=False):
        I(f"s_mov_b32 s{SPIN}, {SPIN_MAX}")
        SL = int(ENV("SLEEP", "0"))
        if first_issued: I(f"s_branch {lab(name+'_w')}")
        elif SL: I(f"s_branch {lab(name+'_l')}")
        k.L(lab(name))
        if SL: I(f"s_sleep {SL}")
        k.L(lab(name + "_l"))
        for l in loads: I(l)
        k.L(lab(name + "_w"))
        I("s_waitcnt vmcnt(0)")
        I(f"v_cmp_ne_u32 vcc, s{TAG}, v{tagregs[0]}")
        for r in tagregs[1:]:
            I(f"v_cmp_ne_u32 {sp(T2)}, s{TAG}, v{r}")
            I(f"s_or_b64 vcc, vcc, {sp(T2)}")
        I(f"s_sub_u32 s{SPIN}, s{SPIN}, 1")
        I(f"s_cbranch_vccz {lab(name+'_ok')}")
        I(f"s_cbranch_scc0 {lab(name)}")
        k.L(lab(name + "_ok"))
        k.stampval(SPIN, "x" + name + "_spin")
        k.stamp(name="x" + name + "_ok")
        vm.q = []
    def mfma(d, a_, b_, c): I(f"v_mfma_f32_32x32x16_bf16 {vr(d,16)}, {a_}, {b_}, {vr(c,16) if c is not None else 0}")
    def rowstats(s1, s2, m, var, rstd):
        I(f"v_mul_f32 v{m}, s{C512}, v{s1}")
        I(f"v_mul_f32 v{var}, s{C512}, v{s2}")
        I(f"v_fma_f32 v{var}, -v{m}, v{m}, v{var}")
        I(f"v_max_f32 v{var}, 0, v{var}")
        I(f"v_add_f32 v{rstd}, s{CEPS}, v{var}")
        I(f"v_rsq_f32 v{rstd}, v{rstd}")

    ACC, WB = 16, 40
    CQ, CV, MV, AL = 64, 72, 76, 84
    MT, AT = [112, 114], [113, 115]
    S0, S1, P0, P1, VA, NEG, O, Q, KB = 16, 32, 48, 52, [56, 64], 72, 88, 104, 108
    AK, AV, AVS, VBASE = 112, 113, 114, 115
    XG, WR, VXO, VTK, RESM, RESR = 116, 120, 124, 125, 126, 127
    TK, TV = 96, 100
    def mfma16(d, a_, b_, first): I(f"v_mfma_f32_16x16x32_bf16 {vr(d,4)}, {a_}, {b_}, {0 if first else vr(d,4)}")
    AWO, ARS, AWS, AGU, ADN = 0, 32, 88, 112, 120

    I("s_cmp_ge_u32 s2, 256")
    I(f"s_cbranch_scc1 {lab('exit')}")
    k.stamp_begin()
    I(f"s_load_dwordx4 s[4:7], s[0:1], 0")
    I(f"s_load_dwordx2 s[8:9], s[0:1], 16")
    I(f"s_load_dwordx2 s[10:11], s[0:1], 80")
    I(f"s_load_dwordx8 s[12:19], s[0:1], 32")
    I(f"s_load_dwordx2 s[20:21], s[0:1], 64")
    I("v_and_b32 v1, 63, v0")
    I("v_lshrrev_b32 v2, 6, v0")
    I("v_lshlrev_b32 v3, 4, v1")
    I(f"v_readfirstlane_b32 s{WAVE}, v2")
    I(f"s_and_b32 s{QB}, s2, 7")
    I(f"s_lshr_b32 s{HEAD}, s2, 3")
    if ENV("HX"):
        I(f"s_cmp_lt_u32 s{HEAD}, 16")
        I(f"s_cselect_b32 s{A0}, 8, 0")
        I(f"s_xor_b32 s{HEAD}, s{HEAD}, s{A0}")
    I(f"s_lshl_b32 s{TT}, s{QB}, 3")
    I(f"s_add_u32 s{TT}, s{TT}, s{WAVE}")
    I(f"s_lshl_b32 s{W1K}, s{WAVE}, 10")
    I("v_bfe_u32 v5, v1, 1, 2")
    I("v_bfe_u32 v6, v1, 3, 1")
    I("v_lshl_add_u32 v5, v6, 3, v5")
    I("v_bfe_u32 v6, v1, 4, 1")
    I("v_lshl_add_u32 v5, v6, 2, v5")
    I("v_bfe_u32 v6, v1, 5, 1")
    I("v_lshl_add_u32 v5, v6, 4, v5")
    I("v_mul_u32_u24 v5, 3072, v5")
    I("v_and_b32 v6, 1, v1")
    I("v_lshl_add_u32 v5, v6, 4, v5")
    I(f"s_lshl_b32 s{A0+1}, s{HEAD}, 5")
    I(f"v_add_u32 v5, s{A0+1}, v5")
    I("v_lshrrev_b32 v8, 4, v1")
    I("v_and_b32 v9, 7, v1")
    I("v_xor_b32 v8, v8, v9")
    I("v_lshlrev_b32 v8, 4, v8")
    I("v_lshrrev_b32 v9, 3, v1")
    I("v_lshl_add_u32 v8, v9, 10, v8")
    I(f"s_lshl_b32 s{A0}, s{TT}, 15")
    I(f"v_add_u32 v8, s{A0}, v8")
    I("v_xor_b32 v9, 64, v8")
    I("v_add_u32 v9, 0x2000, v9")
    XB3 = [A0 + 3, A0 + 4, A0 + 5]
    for b_ in range(3):
        I(f"s_mul_i32 s{XB3[b_]}, s{WAVE}, 12288")
        I(f"s_add_u32 s{XB3[b_]}, s{XB3[b_]}, {56*1024 + 4096*b_}")
        if b_:
            I(f"s_cmp_eq_u32 s{WAVE}, 7")
            I(f"s_cselect_b32 s{XB3[b_]}, {4096*(b_-1)}, s{XB3[b_]}")
    ROT = A0 + 6
    I(f"s_and_b32 s{ROT}, s{HEAD}, 3")
    I("s_waitcnt lgkmcnt(0)")
    def xstage(st):
        I(f"s_add_u32 s{A0}, s{ROT}, {st//2}")
        I(f"s_and_b32 s{A0}, s{A0}, 3")
        I(f"s_lshl_b32 s{A0}, s{A0}, 8")
        if st & 1: I(f"s_add_u32 s{A0}, s{A0}, 128")
        I(f"s_add_u32 s{T0}, s{X0P}, s{A0}")
        I(f"s_addc_u32 s{T0+1}, s{X0P+1}, 0")
        for i in range(4):
            if i == 2: sadd64(T0, T0, 16384)
            I(f"s_add_u32 m0, s{XB3[st % 3]}, {i*1024}")
            I("s_nop 0")
            vm.issue(f"global_load_lds_dwordx4 v{8 + (i&1)}, {sp(T0)}", f"x{st}")
    def wdma(j):
        I(f"s_mul_i32 s{A0}, s{ROT}, 12")
        I(f"s_add_u32 s{A0}, s{A0}, s{WAVE}")
        I(f"s_add_u32 s{A0}, s{A0}, {8*j}")
        I(f"s_sub_u32 s{A0+1}, s{A0}, 48")
        I(f"s_cmp_ge_u32 s{A0}, 48")
        I(f"s_cselect_b32 s{A0}, s{A0+1}, s{A0}")
        I(f"s_mul_i32 s{A0+1}, s{A0}, 21846")
        I(f"s_lshr_b32 s{A0+1}, s{A0+1}, 16")
        I(f"s_mul_i32 s{A0+2}, s{A0+1}, 3")
        I(f"s_sub_u32 s{A0}, s{A0}, s{A0+2}")
        I(f"s_mul_i32 s{A0+2}, s{A0+1}, {32*3072}")
        I(f"s_lshl_b32 s{T0}, s{A0}, 10")
        I(f"s_add_u32 s{A0+2}, s{A0+2}, s{T0}")
        I(f"s_add_u32 s{T0}, s{WQP}, s{A0+2}")
        I(f"s_addc_u32 s{T0+1}, s{WQP+1}, 0")
        I(f"s_lshl_b32 s{A0}, s{A0}, 14")
        I(f"s_lshl_b32 s{A0+1}, s{A0+1}, 10")
        I(f"s_add_u32 s{A0}, s{A0}, s{A0+1}")
        I(f"s_add_u32 m0, s{A0}, {LWQ}")
        I("s_nop 0")
        vm.issue(f"global_load_lds_dwordx4 v5, {sp(T0)}", f"W{j}")
    if ENV("CPF", "0") == "1":
        I(f"s_cmp_lg_u32 s{WAVE}, 7")
        I(f"s_cbranch_scc1 {lab('nocpf')}")
        I(f"s_lshl_b32 s{A0}, s{HEAD}, 13")
        I(f"v_lshl_add_u32 v12, v1, 7, s{A0}")
        I(f"v_cmp_gt_u32 vcc, {lab('exit')}-{lab('pc0')}, v12")
        I(f"s_getpc_b64 {sp(T0)}")
        k.L(lab("pc0"))
        I(f"s_and_saveexec_b64 {sp(T2)}, vcc")
        I(f"s_cbranch_execz {lab('cpf2')}")
        I(f"global_load_dword v127, v12, {sp(T0)}")
        k.L(lab("cpf2"))
        exec_all()
        k.L(lab("nocpf"))
    if ENV("ALLUP"):
        for j in range(8):
            if j < 6 and ENV("ALLUP") != "x": wdma(j)
            if ENV("ALLUP") != "w": xstage(j)
        k.stamp(name="a_issue")
        I("s_waitcnt vmcnt(0)")
        k.stamp(name="a_done")
        I("s_barrier")
        k.stamp(name="a_bar")
        I(f"s_branch {lab('end')}")
    UPW = int(ENV("UPW", "4"))
    wdma(0); xstage(0); wdma(1); xstage(1); wdma(2); xstage(2)
    for j in range(3, UPW): wdma(j)
    sadd64(T2, WSP, NONCE)
    I(f"s_load_dword s{TAG}, {sp(T2)}, 0")
    I(f"s_lshr_b32 s{CG}, s{HEAD}, 2")
    I(f"s_and_b32 s{TB}, s{HEAD}, 3")
    I(f"s_lshl_b32 s{A0}, s{QB}, 2")
    I(f"s_add_u32 s{TB}, s{TB}, s{A0}")
    I(f"s_and_b32 s{OA}, s{WAVE}, 1")
    I(f"s_lshr_b32 s{KQ}, s{WAVE}, 1")
    I(f"s_lshl_b32 s{OT}, s{TB}, 1")
    I(f"s_add_u32 s{OT}, s{OT}, s{OA}")
    I(f"s_lshl_b32 s{KG}, s{CG}, 2")
    I(f"s_add_u32 s{KG}, s{KG}, s{KQ}")
    I(f"s_mul_i32 s{CGP}, s{QB}, 28")
    I(f"s_min_u32 s{A0}, s{HEAD}, 27")
    I(f"s_add_u32 s{CGP}, s{CGP}, s{A0}")
    I(f"s_mov_b32 s{THR}, {hex(f2u(2.0**30))}")
    I(f"s_mov_b32 s{ONES}, 0x3f803f80")
    I(f"s_mov_b32 s{C512}, {hex(f2u(1/512))}")
    I(f"s_mov_b32 s{CEPS}, {hex(f2u(EPS))}")
    def lane_terms():
        I("v_and_b32 v6, 31, v1")
        I("v_lshrrev_b32 v7, 5, v1")
    lane_terms()
    def w_addr():
        I("v_bfe_u32 v12, v1, 2, 2")
        I("v_lshl_add_u32 v12, v7, 4, v12")
        I("v_bfe_u32 v13, v1, 4, 1")
        I("v_lshl_add_u32 v12, v13, 2, v12")
        I("v_and_b32 v13, 3, v1")
        I("v_lshlrev_b32 v13, 3, v13")
        I("v_lshl_add_u32 v10, v12, 5, v13")
        I(f"v_add_u32 v10, {LWQ}, v10")
    w_addr()
    def wreads(dst, ad, ks):
        for sec in range(3):
            I(f"ds_read_b64_tr_b16 {vr(dst+4*sec,2)}, v{ad} offset:{sec*16384+ks*1024}")
            I(f"ds_read_b64_tr_b16 {vr(dst+4*sec+2,2)}, v{ad} offset:{sec*16384+ks*1024+256}")
    def qmfmas(wb, xa, xb, first, between=None):
        for i, (d, A_, B_) in enumerate(((ACC, vr(wb,4), xa), (ACC+4, vr(wb,4), xb), (ACC+8, vr(wb+4,4), xa),
                                         (ACC+12, vr(wb+4,4), xb), (ACC+16, xa, vr(wb+8,4)), (ACC+20, xb, vr(wb+8,4)))):
            mfma16(d, A_, B_, first)
            if between: between(i)
    I("v_bfe_u32 v12, v1, 1, 3")
    I("v_and_b32 v13, 15, v1")
    I("v_lshlrev_b32 v13, 7, v13")
    I("v_lshrrev_b32 v14, 4, v1")
    I("v_xor_b32 v14, v14, v12")
    I("v_lshl_add_u32 v2, v14, 4, v13")
    I("v_xor_b32 v4, 64, v2")
    def xfrags(st):
        I(f"v_add_u32 v14, s{XB3[st % 3]}, v2")
        I(f"v_add_u32 v15, s{XB3[st % 3]}, v4")
        vm.wait(f"x{st}")
        for h in range(2):
            for t in range(2): I(f"ds_read_b128 {ar(16*st+8*h+4*t,4)}, v{14+h} offset:{2048*t}")
    k.stamp(name="q0_issue")
    I("s_waitcnt lgkmcnt(0)")
    I(f"s_mul_i32 s{TAG}, s{TAG}, 0x9E3779B1")
    I(f"s_add_u32 s{TAG}, s{TAG}, 0x7F4A7C15")
    GU, ON = 76, 92
    for r in range(4): I(f"v_mov_b32 v{ON+r}, s{ONES}")
    xfrags(0)
    I("s_barrier")
    k.stamp(name="q0_W")
    CSA = 96
    def colsum_part(i):
        I(f"v_add_u32 v13, s{W1K}, v10")
        wreads(100, 13, 8*i)
        if i == 0:
            for sec in range(3): I(f"v_mov_b32 v{CSA+sec}, 0")
        I("s_waitcnt lgkmcnt(0)")
        for sec in range(3):
            for r in range(4): I(f"v_dot2_f32_bf16 v{CSA+sec}, v{100+4*sec+r}, s{ONES}, v{CSA+sec}")
        if i == 1:
            k.nop(2)
            for sec in range(3): rowreduce("v_add_f32", CSA + sec, 13)
            I(f"s_lshl_b32 s{A0}, s{WAVE}, 8")
            I(f"s_add_u32 s{A0}, s{A0}, {LRD}")
            I("v_and_b32 v13, 15, v1")
            I(f"v_lshl_add_u32 v13, v13, 2, s{A0}")
            for sec in range(3): I(f"ds_write_b32 v13, v{CSA+sec} offset:{64*sec}")
    def sum8(src, dst):
        I("v_lshlrev_b32 v13, 2, v1")
        I(f"v_add_u32 v14, {src}, v13")
        for w in range(8): I(f"ds_read_b32 v{104+w}, v14 offset:{256*w}")
        I(f"v_add_u32 v13, {dst}, v13")
        I("s_waitcnt lgkmcnt(0)")
        for a_, b_ in ((0,1),(2,3),(4,5),(6,7),(0,2),(4,6),(0,4)): I(f"v_add_f32 v{104+a_}, v{104+a_}, v{104+b_}")
        I("ds_write_b32 v13, v104")
    def wsave():
        I(f"s_mul_i32 s{A0}, s{WAVE}, 6144")
        I(f"s_add_u32 s{A0}, s{A0}, {LWQ}")
        I(f"v_add_u32 v13, s{A0}, v3")
        for i in range(6): I(f"ds_read_b128 {ar(AWS+4*i,4)}, v13 offset:{1024*i}")
    def wbase(q):
        I(f"s_add_u32 s{A0}, s{ROT}, {q}")
        I(f"s_and_b32 s{A0}, s{A0}, 3")
        I(f"s_lshl_b32 s{A0}, s{A0}, 12")
        I(f"v_add_u32 v11, s{A0}, v10")
    wbase(0)
    wreads(WB, 11, 0)
    wreads(WB + 12, 11, 1)
    ready = {2: 1, 5: 2, 8: 3, 10: 4, 13: 5}
    def stats0():
        I("v_and_b32 v13, 11, v0")
        I(f"v_mov_b32 v14, s{ONES}")
        I("v_cmp_eq_u32 vcc, 0, v13")
        I("v_lshlrev_b32 v13, 4, v0")
        I(f"v_add_u32 v13, {CB}, v13")
        I("v_cndmask_b32 v100, 0, v14, vcc")
        for r in range(1, 4): I(f"v_mov_b32 v{100+r}, v100")
        I("ds_write_b128 v13, v[100:103]")
        I(f"v_cmp_gt_u32 vcc, {(CBN*512 - 8192)//16}, v0")
        I(f"s_and_saveexec_b64 {sp(T2)}, vcc")
        I("ds_write_b128 v13, v[100:103] offset:8192")
        exec_all()
        I("v_lshrrev_b32 v12, 4, v1")
        I("v_lshlrev_b32 v12, 2, v12")
        I("v_and_b32 v13, 15, v1")
        I("v_sub_u32 v12, v13, v12")
        for t in range(2): I(f"v_mov_b32 v{ON+t}, 0")
        for r in range(4):
            I(f"v_cmp_eq_u32 vcc, {r}, v12")
            k.nop(2)
            for t in range(2): I(f"v_cndmask_b32 v{ON+t}, v{ON+t}, v{GU+4*t+r}, vcc")
        for t in range(2): rowreduce("v_add_f32", ON + t, 12)
        for t in range(2): rowstats(GU + 8 + 4*t, ON + t, MT[t], 12, AT[t])
    for ks in range(16):
        st = ks // 2
        pre = 0
        if ks % 2 == 0 and st + 1 < 8:
            xfrags(st + 1); pre = 4
        if ks + 2 in ready:
            vm.wait(f"W{ready[ks+2]}")
            I("s_barrier")
        if ks == 12:
            colsum_part(0); colsum_part(1); pre = -6
        if ks == 14:
            bar()
            sum8(LRD, LPC); wsave()
        if ks < 14:
            if (ks + 2) % 4 == 0: wbase((ks + 2)//4)
            wreads(WB + 12*((ks+2)%3), 11, (ks + 2) % 4)
            I(f"s_waitcnt lgkmcnt({min(15, 12 + pre) if ks % 2 == 0 else 12})")
        if ks == 0: xstage(3)
        if ks % 2 == 1 and st + 4 < 8: xstage(st + 4)
        if ks % 2 == 0 and UPW + ks//2 < 6: wdma(UPW + ks//2)
        xa, xb = ar(8*ks,4), ar(8*ks+4,4)
        mfma16(GU, xa, xa, ks == 0); mfma16(GU + 4, xb, xb, ks == 0)
        qmfmas(WB + 12*(ks%3), xa, xb, ks == 0)
        mfma16(GU + 8, vr(ON,4), xa, ks == 0); mfma16(GU + 12, vr(ON,4), xb, ks == 0)
    k.stamp(name="q0_loop")
    stats0()
    def bounce_params():
        I(f"s_lshl_b32 s{A0}, s{WAVE}, 8")
        I(f"s_add_u32 s{A0}, s{A0}, {LVB}")
        I("v_and_b32 v13, 15, v1")
        I(f"v_lshl_add_u32 v12, v13, 2, s{A0}")
        for t in range(2):
            I(f"ds_write_b32 v12, v{MT[t]} offset:{64*t}")
            I(f"ds_write_b32 v12, v{AT[t]} offset:{128+64*t}")
        I("v_and_b32 v14, 48, v1")
        I(f"v_add_u32 v12, s{A0}, v14")
        for t in range(2):
            I(f"ds_read_b128 {vr(MV+4*t,4)}, v12 offset:{64*t}")
            I(f"ds_read_b128 {vr(AL+4*t,4)}, v12 offset:{128+64*t}")
        I(f"v_add_u32 v12, {LPC}, v14")
        for sec in range(2): I(f"ds_read_b128 {vr(CQ+4*sec,4)}, v12 offset:{64*sec}")
        I("v_lshlrev_b32 v12, 2, v13")
        I(f"v_add_u32 v12, {LPC + 128}, v12")
        I(f"ds_read_b32 v{CV}, v12")
    bounce_params()

    def q_epilogue(L):
        n = f"l{L}"
        sadd64(KB_, WSP, KF[L]); sadd64(VB_, WSP, VF[L]); sadd64(OB_, WSP, OF[L])
        for t in range(2): I(f"v_mul_f32 v{13+t}, {hex(f2u(QSCALE))}, v{AT[t]}")
        I(f"s_lshl_b32 s{A0}, s{HEAD}, 16")
        I(f"s_lshl_b32 s{A0+1}, s{TT}, 10")
        I(f"s_add_u32 s{A0}, s{A0}, s{A0+1}")
        I(f"v_add_u32 v4, s{A0}, v3")
        I(f"v_add_u32 v15, s{W1K}, v3")
        I("v_add_u32 v5, 0x10000, v15")
        I("s_waitcnt lgkmcnt(0)")
        for sec in (1, 0):
            for t in range(2):
                for r in range(4): I(f"v_fma_f32 v{ACC+8*sec+4*t+r}, -v{MT[t]}, v{CQ+4*sec+r}, v{ACC+8*sec+4*t+r}")
            for t in range(2):
                for r in range(4): I(f"v_mul_f32 v{ACC+8*sec+4*t+r}, v{AT[t] if sec else 13+t}, v{ACC+8*sec+4*t+r}")
            d = TK if sec else Q
            for i in range(4): I(f"v_cvt_pk_bf16_f32 v{d+i}, v{ACC+8*sec+2*i}, v{ACC+8*sec+2*i+1}")
        for r in range(8): I(f"v_fma_f32 v{ACC+16+r}, -v{MV+r}, v{CV}, v{ACC+16+r}")
        I(f"v_permlane16_swap_b32 v{TK}, v{TK+2}")
        I(f"v_permlane16_swap_b32 v{TK+1}, v{TK+3}")
        for r in range(8): I(f"v_mul_f32 v{ACC+16+r}, v{AL+r}, v{ACC+16+r}")
        vm.issue(f"global_store_dwordx4 v4, {vr(TK,4)}, {sp(KB_)} sc1")
        I(f"ds_write_b128 v15, {vr(TK,4)}")
        for i in range(4): I(f"v_cvt_pk_bf16_f32 v{TV+i}, v{ACC+16+2*i}, v{ACC+16+2*i+1}")
        I(f"v_permlane16_swap_b32 v{Q}, v{Q+2}")
        I(f"v_permlane16_swap_b32 v{Q+1}, v{Q+3}")
        I(f"v_permlane32_swap_b32 v{TV}, v{TV+2}")
        I(f"v_permlane32_swap_b32 v{TV+1}, v{TV+3}")
        vm.issue(f"global_store_dwordx4 v4, {vr(TV,4)}, {sp(VB_)} sc1")
        I(f"ds_write_b128 v5, {vr(TV,4)}")
        I("v_and_b32 v8, 15, v1")
        I("v_bfe_u32 v9, v1, 4, 1")
        I("v_lshlrev_b32 v10, 4, v8")
        I("v_lshl_add_u32 v10, v7, 8, v10")
        I(f"v_lshl_add_u32 v{VBASE}, v9, 16, v10")
        I(f"v_add_u32 v{VBASE}, 0x10000, v{VBASE}")
        I("v_xor_b32 v9, 1, v9")
        I(f"v_lshlrev_b32 v{AVS}, 13, v9")
        I(f"s_mov_b32 s{PASS}, 0")
        I(f"s_lshl_b32 s{A0}, s{HEAD}, 10")
        I(f"s_add_u32 s{A0}, s{A0}, {hex(FLK[L])}")
        I(f"v_lshl_add_u32 v8, v1, 7, s{A0}")
        I(f"s_lshl_b32 s{A0+1}, s{QB}, 7")
        I(f"s_add_u32 s{A0}, s{A0}, s{A0+1}")
        I(f"v_mov_b32 v9, s{A0}")
        bar()

    def ffn_gu(m_):
        I(f"s_lshl_b32 s{A0+1}, s{CGP}, 4")
        I(f"v_mul_u32_u24 v14, 3584, v0")
        I(f"v_add_u32 v14, s{A0+1}, v14")
        vm.issue(f"global_load_dwordx4 {ar(AGU+4*m_,4)}, v14, {sp(WUP if m_ else WGP)}")
    def ffn_dn():
        I(f"s_lshl_b32 s{A0+1}, s{CGP}, 13")
        I(f"s_add_u32 s{A0+1}, s{A0+1}, s{W1K}")
        I(f"v_add_u32 v14, s{A0+1}, v3")
        vm.issue(f"global_load_dwordx4 {ar(ADN,4)}, v14, {sp(WDP)}")
    def attention(L):
        n = f"l{L}"
        I(f"ds_read_b128 {vr(KB,4)}, v3")
        I("s_waitcnt lgkmcnt(0)")
        mfma(S0, vr(KB,4), vr(Q,4), None)
        k.nop(12)
        def max16(dst, S, first):
            if first:
                I(f"v_max3_f32 v{dst}, v{S}, v{S+1}, v{S+2}"); rest = list(range(3, 16))
            else: rest = list(range(16))
            while rest:
                if len(rest) >= 2:
                    I(f"v_max3_f32 v{dst}, v{dst}, v{S+rest[0]}, v{S+rest[1]}"); rest = rest[2:]
                else:
                    I(f"v_max_f32 v{dst}, v{dst}, v{S+rest[0]}"); rest = rest[1:]
        max16(2, S0, True)
        def prime():
            I(f"ds_read_b128 {vr(KB,4)}, v{AK}")
            I(f"ds_read_b128 {vr(VA[0],4)}, v{AV}")
            I(f"ds_read_b128 {vr(VA[0]+4,4)}, v{AV} offset:512")
            I("s_waitcnt lgkmcnt(0)")
            mfma(S0, vr(KB,4), vr(Q,4), NEG)
            I(f"ds_read_b128 {vr(KB,4)}, v{AK} offset:1024")
            k.nop(11)
        def setup():
            halfsum("v_max_f32", 2, 7)
            for r in range(16): I(f"v_sub_f32 v{NEG+r}, 0, v2")
            I(f"v_mov_b32 v{AK}, v3")
            I(f"v_mov_b32 v{AV}, v{VBASE}")
            for r in range(16): I(f"v_mov_b32 v{O+r}, 0")
            for r in range(4): I(f"v_mov_b32 v{P1+r}, 0")
            for r in range(4): I(f"v_mov_b32 v{VA[1]+4+r}, 0")
            prime()
        def tile(u, extra=None, nokread=False, noqk=False, novread=False):
            extra = extra or {}
            if "p" in extra: I(f"s_setprio {extra['p']}")
            Sc, Sn = (S0, S1) if u % 2 == 0 else (S1, S0)
            Vc, Vo = VA[u % 2], VA[1 - u % 2]
            E = lambda r: I(f"v_exp_f32 v{Sc+r}, v{Sc+r}")
            Cv = lambda P, r, b: I(f"v_cvt_pk_bf16_f32 v{P+r}, v{Sc+b+2*r}, v{Sc+b+2*r+1}")
            E(0); E(1)
            mfma(O, vr(Vo+4,4), vr(P1,4), O)
            if 0 in extra: extra[0]()
            E(2); E(3); E(4)
            I("s_waitcnt lgkmcnt(0)")
            E(5)
            if not noqk: mfma(Sn, vr(KB,4), vr(Q,4), NEG)
            E(6)
            if not nokread: I(f"ds_read_b128 {vr(KB,4)}, v{AK} offset:{(u+2)*1024}")
            E(7)
            if not novread: I(f"ds_read_b128 {vr(Vo,4)}, v{AV} offset:{(u+1)*1024}")
            for r in range(4): Cv(P0, r, 0)
            E(8)
            if not novread: I(f"ds_read_b128 {vr(Vo+4,4)}, v{AV} offset:{(u+1)*1024+512}")
            E(9)
            mfma(O, vr(Vc,4), vr(P0,4), O)
            if 1 in extra: extra[1]()
            for r in range(10, 16): E(r)
            for r in range(4): Cv(P1, r, 8)
        def bump():
            I(f"v_add_u32 v{AK}, 0x2000, v{AK}")
            I(f"v_add_u32 v{AV}, v{AVS}, v{AV}")
        setup()
        k.stamp(name=f"x{n}_setup")
        I("s_setprio 3")
        def publish_kv():
            vm.drain()
            I("s_barrier")
            I(f"s_cmp_lg_u32 s{WAVE}, 0")
            I(f"s_cbranch_scc1 {lab(n+'_noflag')}")
            I(f"v_mov_b32 v14, s{TAG}")
            I("s_mov_b64 exec, 1")
            I(f"global_store_dword v9, v14, {sp(WSP)} sc1")
            exec_all()
            k.L(lab(n + "_noflag"))
        pl = f"global_load_dword v14, v8, {sp(WSP)} sc1"
        def poll_issue():
            I("s_mov_b64 exec, 0xff"); I(pl); exec_all()
        def poll_check():
            I("s_mov_b64 exec, 0xff")
            if L == 1:
                I(f"s_lshr_b32 s{A0}, s{IDX}, 8")
                I(f"s_bitset0_b32 exec_lo, s{A0}")
            poll(n + "_pk", [pl], [14], first_issued=True)
            exec_all()
        def stg(sl): return ARS + 8*(sl-1) if L == 0 else 64 + 8*((sl-1) % 6)
        def rload(sl):
            if L == 1:
                I(f"s_lshr_b32 s{A0+1}, s{IDX}, 8")
                I(f"s_sub_u32 s{A0+1}, s{A0+1}, s{QB}")
                I(f"s_and_b32 s{A0+1}, s{A0+1}, 7")
                if sl == 7:
                    I(f"s_cmp_eq_u32 s{A0+1}, 0")
                    I(f"s_cselect_b32 s{A0}, 7, s{A0+1}")
                    I("s_mov_b64 exec, 0xff")
                    poll(n + "_pk7", [pl], [14], first_issued=True)
                    exec_all()
                else:
                    I(f"s_sub_u32 s{A0+1}, s{A0+1}, 1")
                    I(f"s_cmp_lt_u32 s{A0+1}, {sl}")
                    I(f"s_cselect_b32 s{A0}, {sl+1}, {sl}")
                I(f"s_add_u32 s{A0}, s{QB}, s{A0}")
            else:
                I(f"s_add_u32 s{A0}, s{QB}, {sl}")
            I(f"s_and_b32 s{A0}, s{A0}, 7")
            I(f"s_sub_u32 s{A0}, s{A0}, s{QB}")
            I(f"s_lshl_b32 s{A0}, s{A0}, 13")
            I(f"v_add_u32 v13, s{A0}, v4")
            vm.issue(f"global_load_dwordx4 {ar(stg(sl),4)}, v13, {sp(KB_)} sc1", f"r{sl}")
            vm.issue(f"global_load_dwordx4 {ar(stg(sl)+4,4)}, v13, {sp(VB_)} sc1", f"r{sl}")
        def rwrite(sl):
            if f"r{sl}" in vm.q: vm.wait(f"r{sl}")
            I(f"ds_write_b128 v15, {ar(stg(sl),4)} offset:{sl*8192}")
            I(f"ds_write_b128 v5, {ar(stg(sl)+4,4)} offset:{sl*8192}")
        PUB, PI, PC = [int(x) for x in ENV("POLL", "1,4,5").split(",")]
        PR = {}
        if ENV("PBAL", "1") == "1":
            PR = {4: 2, 6: 1, 7: 0, 8: 3, 11: 2, 12: 1, 13: 0, 14: 3, 18: 2, 20: 1, 21: 0, 22: 3, 30: 2, 34: 1, 36: 0, 38: 3}
        for u in range(8):
            ex = {}
            if u == PUB: ex[0] = publish_kv
            if u == PI: ex[0] = poll_issue
            if u == PC: ex[0] = lambda: (poll_check(), rload(1), rload(2))
            if u in PR: ex["p"] = PR[u]
            tile(u, ex, nokread=(u >= 6), noqk=(u == 7), novread=(u == 7))
        bump()
        k.stamp(name=f"x{n}_ch0a")
        rwrite(1)
        bar()
        k.stamp(name=n + "_c0")
        prime()
        def wo_addr():
            I(f"s_lshl_b32 s{A0}, s{WAVE}, 16")
            I(f"s_lshl_b32 s{A0+1}, s{CG}, 7")
            I(f"s_add_u32 s{A0}, s{A0}, s{A0+1}")
            I("v_lshrrev_b32 v2, 3, v1")
            I(f"v_lshl_add_u32 v2, v2, 10, s{A0}")
            I("v_and_b32 v14, 7, v1")
            I("v_lshl_add_u32 v2, v14, 4, v2")
        def wo_load(i):
            vm.issue(f"global_load_dwordx4 {ar(AWO+4*i,4)}, v2, {sp(WOP)}", "wo")
            if i < 7: I("v_add_u32 v2, 0x2000, v2")
        def misc_loads():
            I(f"s_lshl_b32 s{A0}, s{KG}, 9")
            I(f"s_lshl_b32 s{A0+1}, s{OT}, 15")
            I(f"s_add_u32 s{A0}, s{A0}, s{A0+1}")
            I("v_and_b32 v10, 15, v1")
            I(f"v_lshl_add_u32 v{VXO}, v10, 4, s{A0}")
            I("v_lshrrev_b32 v10, 5, v1")
            I(f"v_lshl_add_u32 v{VXO}, v10, 8, v{VXO}")
            I("v_bfe_u32 v10, v1, 4, 1")
            I(f"v_lshl_add_u32 v{VXO}, v10, 14, v{VXO}")
            I("v_and_b32 v10, 31, v1")
            I(f"s_lshl_b32 s{A0}, s{OT}, 5")
            I(f"v_add_u32 v{VTK}, s{A0}, v10")
            I("v_lshrrev_b32 v10, 5, v1")
            I(f"s_lshl_b32 s{A0}, s{KG}, 5")
            I(f"v_lshl_add_u32 v14, v10, 3, s{A0}")
            vm.issue(f"global_load_dwordx2 {vr(WR,2)}, v14, {sp(WRP)}")
            vm.issue(f"global_load_dwordx2 {vr(WR+2,2)}, v14, {sp(WRP)} offset:16")
            I(f"v_lshl_add_u32 v14, v{VTK}, 10, v14")
            vm.issue(f"global_load_dwordx2 {vr(XG,2)}, v14, {sp(X0P)}")
            vm.issue(f"global_load_dwordx2 {vr(XG+2,2)}, v14, {sp(X0P)} offset:16")
        sched = {
            1: {(0,0): lambda: rload(3), (3,0): lambda: rload(4), (4,0): lambda: rwrite(2), (6,0): bar},
            2: {(0,0): lambda: rload(5), (3,0): lambda: rload(6), (4,0): lambda: rwrite(3), (5,0): lambda: rwrite(4), (6,0): bar},
            3: {(0,0): lambda: rload(7)},
            4: {(0,0): lambda: rwrite(5), (1,0): lambda: rwrite(6), (2,0): lambda: rwrite(7), (6,0): bar},
        }
        def touches():
            I(f"s_cmp_ge_u32 s{WAVE}, 5")
            I(f"s_cbranch_scc1 {lab('t_done')}")
            I(f"s_cmp_ge_u32 s{WAVE}, 2")
            I(f"s_cbranch_scc1 {lab('t_lin')}")
            I(f"s_mul_i32 s{A0}, s{QB}, 7")
            I(f"s_lshr_b32 s{A0}, s{A0}, 1")
            I(f"s_lshl_b32 s{A0}, s{A0}, 7")
            I(f"s_mul_i32 s{A0+1}, s{HEAD}, {16*3584}")
            I(f"s_add_u32 s{A0}, s{A0}, s{A0+1}")
            I("v_lshrrev_b32 v14, 2, v1")
            I("v_mul_u32_u24 v14, 3584, v14")
            I("v_and_b32 v10, 3, v1")
            I("v_lshl_add_u32 v14, v10, 7, v14")
            I(f"v_add_u32 v14, s{A0}, v14")
            I(f"s_cmp_eq_u32 s{WAVE}, 0")
            I(f"s_cselect_b32 s{T0}, s{WGP}, s{WUP}")
            I(f"s_cselect_b32 s{T0+1}, s{WGP+1}, s{WUP+1}")
            I(f"s_branch {lab('t_go')}")
            k.L(lab("t_lin"))
            I(f"s_lshl_b32 s{A0}, s{CGP}, 13")
            I(f"s_lshl_b32 s{A0+1}, s{HEAD}, 14")
            I(f"s_and_b32 s{A0+2}, s{WAVE}, 1")
            I(f"s_lshl_b32 s{A0+2}, s{A0+2}, 13")
            I(f"s_add_u32 s{A0+1}, s{A0+1}, s{A0+2}")
            I(f"s_cmp_eq_u32 s{WAVE}, 2")
            I(f"s_cselect_b32 s{A0}, s{A0}, s{A0+1}")
            I(f"s_cselect_b32 s{T0}, s{WDP}, s{WOP}")
            I(f"s_cselect_b32 s{T0+1}, s{WDP+1}, s{WOP+1}")
            I(f"v_lshl_add_u32 v14, v1, 7, s{A0}")
            k.L(lab("t_go"))
            I(f"global_load_dword v11, v14, {sp(T0)}")
            k.L(lab("t_done"))
        NU = 5
        if L == 0:
            NU = 6
            sched[2][(6,1)] = touches
            sched[3][(3,0)] = wo_addr
            for i in range(4): sched[3][(4 + i, 0)] = (lambda i=i: wo_load(i))
            for i, u in enumerate((3, 4, 5, 7)): sched[4][(u, 0)] = (lambda i=i: wo_load(4 + i))
            sched[5] = {(0,0): lambda: ffn_gu(0), (2,0): misc_loads, (4,0): lambda: ffn_gu(1), (6,0): ffn_dn}
            PR[40] = 3
        else:
            sched[2][(7,0)] = poll_issue
        for c in range(1, NU):
            for u in range(8):
                ex = {sl: f for (uu, sl), f in sched[c].items() if uu == u}
                if 8*c + u in PR: ex["p"] = PR[8*c + u]
                tile(u, ex)
            bump()
            k.stamp(name=f"x{n}_ch{c}")
        I(f"s_mov_b32 s{CTR}, {NU}")
        k.lines.append(".p2align 6")
        k.L(lab(n + "_loop"))
        if ENV("PEND", "1") == "0":
            I(f"s_cmp_lt_u32 s{CTR}, 5"); I(f"s_cbranch_scc1 {lab(n+'_pd')}")
            I("s_setprio 2")
            I(f"s_cmp_lt_u32 s{CTR}, 6"); I(f"s_cbranch_scc1 {lab(n+'_pd')}")
            I("s_setprio 1")
            I(f"s_cmp_lt_u32 s{CTR}, 7"); I(f"s_cbranch_scc1 {lab(n+'_pd')}")
            I("s_setprio 0")
            k.L(lab(n + "_pd"))
            for u in range(8): tile(u)
        else:
            I(f"s_cmp_lt_u32 s{CTR}, 6"); I(f"s_cbranch_scc1 {lab(n+'_pd')}")
            I("s_setprio 2")
            I(f"s_cmp_lt_u32 s{CTR}, 7"); I(f"s_cbranch_scc1 {lab(n+'_pd')}")
            I("s_setprio 1")
            k.L(lab(n + "_pd"))
            for u in range(8):
                if u == 5:
                    I(f"s_cmp_lt_u32 s{CTR}, 7"); I(f"s_cbranch_scc1 {lab(n+'_pe')}")
                    I("s_setprio 0")
                    k.L(lab(n + "_pe"))
                tile(u)
        bump()
        I(f"s_add_u32 s{CTR}, s{CTR}, 1")
        I(f"s_cmp_lt_u32 s{CTR}, 8")
        I(f"s_cbranch_scc1 {lab(n+'_loop')}")
        mfma(O, vr(VA[1]+4,4), vr(P1,4), O)
        I("s_waitcnt lgkmcnt(0)")
        k.stamp(name=n + "_attn")
        k.nop(12)
        I(f"s_cmp_lg_u32 s{PASS}, 0")
        I(f"s_cbranch_scc1 {lab(n+'_fin')}")
        I(f"v_cmp_nge_f32 vcc, s{THR}, v{O+8}")
        k.nop(2)
        I(f"s_cbranch_vccz {lab(n+'_fin')}")
        I(f"s_mov_b32 s{PASS}, 1")
        I(f"v_mov_b32 v{AK}, v3")
        I("v_mov_b32 v2, 0xff800000")
        I(f"s_mov_b32 s{CTR}, 0")
        k.L(lab(n + "_maxloop"))
        I(f"ds_read_b128 {vr(KB,4)}, v{AK}")
        I("s_waitcnt lgkmcnt(0)")
        mfma(S0, vr(KB,4), vr(Q,4), None)
        I(f"v_add_u32 v{AK}, 0x400, v{AK}")
        k.nop(12)
        max16(2, S0, False)
        I(f"s_add_u32 s{CTR}, s{CTR}, 1")
        I(f"s_cmp_lt_u32 s{CTR}, 64")
        I(f"s_cbranch_scc1 {lab(n+'_maxloop')}")
        setup()
        I(f"s_mov_b32 s{CTR}, 0")
        I(f"s_branch {lab(n+'_loop')}")
        k.L(lab(n + "_fin"))
        I(f"v_rcp_f32 v2, v{O+8}")
        I("s_nop 0")
        for r in range(8): I(f"v_mul_f32 v{O+r}, v{O+r}, v2")
        for r in range(4): I(f"v_cvt_pk_bf16_f32 v{P0+r}, v{O+2*r}, v{O+2*r+1}")
        I(f"global_store_dwordx4 v4, {vr(P0,4)}, {sp(OB_)} sc1")

    def oproj(L):
        n = f"l{L}"
        OBf, AC, X, Y = 64, 32, 96, 16
        lane_terms()
        I(f"s_lshl_b32 s{A0}, s{KQ}, 19")
        I(f"s_lshl_b32 s{A0+1}, s{OT}, 10")
        I(f"s_add_u32 s{A0}, s{A0}, s{A0+1}")
        I(f"v_add_u32 v10, s{A0}, v3")
        I(f"s_lshl_b32 s{A0}, s{WAVE}, 13")
        I(f"s_add_u32 s{A0}, s{A0}, 0x10000")
        I(f"v_add_u32 v12, s{A0}, v3")
        vm.drain()
        I("s_barrier")
        k.stamp(name=n + "_odrain")
        I(f"s_cmp_lg_u32 s{WAVE}, 0")
        I(f"s_cbranch_scc1 {lab(n+'_nof')}")
        I(f"s_lshl_b32 s{A0}, s{QB}, 12")
        I(f"s_add_u32 s{A0}, s{A0}, {hex(FLO[L])}")
        I(f"v_lshl_add_u32 v8, v6, 7, s{A0}")
        I(f"s_lshl_b32 s{A0+1}, s{HEAD}, 7")
        I(f"s_add_u32 s{A0}, s{A0}, s{A0+1}")
        I(f"v_mov_b32 v13, s{A0}")
        I(f"v_mov_b32 v14, s{TAG}")
        I("s_mov_b64 exec, 1")
        I(f"global_store_dword v13, v14, {sp(WSP)} sc1")
        exec_all()
        k.L(lab(n + "_nof"))
        if L == 0:
            for i in range(8): I(f"ds_write_b128 v12, {ar(AWO+4*i,4)} offset:{1024*i}")
            I(f"global_load_dwordx4 v[16:19], v3, {sp(WRP)}")
            I(f"s_lshl_b32 s{A0}, s{WAVE}, 11")
            I(f"v_lshl_add_u32 v13, v1, 5, s{A0}")
            I(f"ds_write_b128 v13, {ar(AGU,4)}")
            I(f"ds_write_b128 v13, {ar(AGU+4,4)} offset:16")
            I(f"v_add_u32 v13, s{W1K}, v3")
            I(f"ds_write_b128 v13, {ar(ADN,4)} offset:16384")
            I("v_bfe_u32 v13, v1, 2, 2")
            I("v_and_b32 v14, 3, v1")
            I("v_lshl_add_u32 v12, v7, 2, v13")
            I("v_lshlrev_b32 v12, 7, v12")
            I("v_lshl_add_u32 v12, v14, 3, v12")
            I("v_bfe_u32 v15, v1, 4, 1")
            I("v_lshl_add_u32 v12, v15, 5, v12")
            I(f"s_lshl_b32 s{A0+1}, s{KQ}, 14")
            I(f"s_add_u32 s{A0+1}, s{A0+1}, 0x10000")
            I(f"v_add_u32 v12, s{A0+1}, v12")
            bar()
            for i in range(8):
                for b in range(2):
                    I(f"ds_read_b64_tr_b16 {ar(AWO+8*i+4*b,2)}, v12 offset:{2048*i+64*b}")
                    I(f"ds_read_b64_tr_b16 {ar(AWO+8*i+4*b+2,2)}, v12 offset:{2048*i+64*b+1024}")
                if i % 2 == 1: I("s_waitcnt lgkmcnt(0)")
            I("v_lshrrev_b32 v15, 4, v1")
            I("v_lshl_add_u32 v13, v15, 3, v13")
            I("v_lshlrev_b32 v13, 5, v13")
            I("v_lshl_add_u32 v13, v14, 3, v13")
            I(f"v_add_u32 v13, s{A0}, v13")
            for i in range(2):
                I(f"ds_read_b64_tr_b16 {ar(AGU+4*i,2)}, v13 offset:{1024*i}")
                I(f"ds_read_b64_tr_b16 {ar(AGU+4*i+2,2)}, v13 offset:{1024*i+128}")
            I("v_lshlrev_b32 v13, 1, v0")
            for f in range(8): I(f"ds_read_u16 a{ADN+f}, v13 offset:{16384+1024*f}")
            I("v_mov_b32 v20, 0")
            I("s_waitcnt vmcnt(0)")
            for r in range(4): I(f"v_dot2_f32_bf16 v20, v{16+r}, s{ONES}, v20")
            k.nop(1)
            allreduce("v_add_f32", 20, 21)
            I("s_nop 0")
            I(f"v_readfirstlane_b32 s{WSUM}, v20")
        I(f"s_cmp_lg_u32 s{WAVE}, 0")
        I(f"s_cbranch_scc1 {lab(n+'_owait')}")
        exec_lo(-1)
        poll(n + "_po", [f"global_load_dword v14, v8, {sp(WSP)} sc1"], [14])
        exec_all()
        k.L(lab(n + "_owait"))
        bar()
        k.stamp(name=n + "_opoll")
        for i in range(8):
            I(f"global_load_dwordx4 {vr(OBf+4*i,4)}, v10, {sp(OB_)} sc1")
            if i < 7: I("v_add_u32 v10, 0x10000, v10")
        NF = 0
        I(f"s_lshl_b32 s{A0}, s{OA}, 15")
        I(f"s_lshl_b32 s{A0+1}, s{KQ}, 11")
        I(f"s_add_u32 s{A0+1}, s{A0+1}, s{A0}")
        I(f"v_add_u32 v9, s{A0+1}, v3")
        I(f"s_lshl_b32 s{A0+1}, s{KQ}, 13")
        I(f"s_add_u32 s{A0+1}, s{A0+1}, s{A0}")
        I(f"v_add_u32 v8, s{A0+1}, v3")
        for i in range(4): unpack(X + 2*i, X + 2*i + 1, XG + i)
        if L == 1:
            for r in range(8): I(f"v_sub_f32 v{Y+r}, v{X+r}, v{RESM}")
            for r in range(8): I(f"v_mul_f32 v{Y+r}, v{Y+r}, v{RESR}")
            for i in range(4): I(f"v_cvt_pk_bf16_f32 v{XG+i}, v{Y+2*i}, v{Y+2*i+1}")
            for i in range(4): unpack(Y + 2*i, Y + 2*i + 1, XG + i)
            for r in range(8): I(f"v_add_f32 v{X+r}, v{X+r}, v{Y+r}")
            for i in range(4): I(f"v_cvt_pk_bf16_f32 v{XG+i}, v{X+2*i}, v{X+2*i+1}")
            for i in range(4): unpack(X + 2*i, X + 2*i + 1, XG + i)
        for i in range(4): unpack(104 + 2*i, 105 + 2*i, WR + i)
        for i in range(8):
            I(f"s_waitcnt vmcnt({7-i+NF})")
            for b in range(2): mfma(AC + 16*b, ar(AWO+8*i+4*b,4), vr(OBf+4*i,4), AC + 16*b if i else None)
        k.stamp(name=n + "_omm")
        k.nop(12)
        for q in range(4):
            for hf in range(2): I(f"ds_write_b128 v9, {vr(AC+8*q+4*hf,4)} offset:{8192*q+1024*hf}")
        bar()
        k.stamp(name="x" + n + "_red")
        for s_ in range(4):
            for hf in range(2): I(f"ds_read_b128 {vr(AC+8*s_+4*hf,4)}, v8 offset:{2048*s_+1024*hf}")
        sadd64(XB_, WSP, XF[L])
        I("s_waitcnt lgkmcnt(0)")
        for r in range(8):
            I(f"v_add_f32 v{AC+r}, v{AC+r}, v{AC+8+r}")
            I(f"v_add_f32 v{AC+16+r}, v{AC+16+r}, v{AC+24+r}")
        for r in range(8): I(f"v_add_f32 v{AC+r}, v{AC+r}, v{AC+16+r}")
        for i in range(4): I(f"v_cvt_pk_bf16_f32 v{XG+i}, v{AC+2*i}, v{AC+2*i+1}")
        for i in range(4): unpack(Y + 2*i, Y + 2*i + 1, XG + i)
        for r in range(8): I(f"v_add_f32 v{X+r}, v{X+r}, v{Y+r}")
        for i in range(4): I(f"v_cvt_pk_bf16_f32 v{XG+i}, v{X+2*i}, v{X+2*i+1}")
        for i in range(4): I(f"v_mov_b32 v{24+i}, v{XG+i}")
        k.nop(1)
        I("v_permlane32_swap_b32 v24, v26")
        I("v_permlane32_swap_b32 v25, v27")
        I(f"global_store_dwordx4 v{VXO}, v[24:27], {sp(XB_)} sc1")
        for i in range(4): unpack(X + 2*i, X + 2*i + 1, XG + i)
        I(f"v_add_f32 v16, v{X}, v{X+1}")
        I(f"v_mul_f32 v17, v{X}, v{X}")
        I(f"v_mul_f32 v18, v{X}, v104")
        for r in range(1, 8):
            if r > 1: I(f"v_add_f32 v16, v16, v{X+r}")
            I(f"v_fmac_f32 v17, v{X+r}, v{X+r}")
            I(f"v_fmac_f32 v18, v{X+r}, v{104+r}")
        I(f"s_lshl_b32 s{A0}, s{OA}, 12")
        I(f"s_lshl_b32 s{A0+1}, s{KQ}, 10")
        I(f"s_add_u32 s{A0}, s{A0}, s{A0+1}")
        I(f"s_add_u32 s{A0}, s{A0}, {LSA}")
        I(f"v_add_u32 v13, s{A0}, v3")
        I("ds_write_b96 v13, v[16:18]")
        k.stamp(name="x" + n + "_epi")
        I("s_waitcnt vmcnt(0) lgkmcnt(0)")
        k.stamp(name="x" + n + "_xdrain")
        I("s_waitcnt vmcnt(0) lgkmcnt(0)")
        I("s_barrier")
        I(f"s_cmp_lg_u32 s{WAVE}, 0")
        I(f"s_cbranch_scc1 {lab(n+'_nost')}")
        I("v_lshlrev_b32 v13, 4, v6")
        I("v_lshl_add_u32 v13, v7, 12, v13")
        I(f"v_add_u32 v13, {LSA}, v13")
        for j in range(8): I(f"ds_read_b96 {vr(32+4*j,3)}, v13 offset:{512*j}")
        I(f"s_lshl_b32 s{A0}, s{TB}, 3")
        I(f"s_add_u32 s{A0}, s{A0}, s{CG}")
        I(f"s_lshl_b32 s{A0}, s{A0}, 10")
        I(f"s_add_u32 s{A0}, s{A0}, {hex(ST[L])}")
        I(f"v_add_u32 v13, s{A0}, v3")
        I(f"v_mov_b32 v35, s{TAG}")
        I("s_waitcnt lgkmcnt(0)")
        for j in range(1, 8):
            for c in range(3): I(f"v_add_f32 v{32+c}, v{32+c}, v{32+4*j+c}")
        I(f"global_store_dwordx4 v13, v[32:35], {sp(WSP)} sc1")
        k.L(lab(n + "_nost"))
        k.stamp(name=n + "_stpub")

    def hop_a(L, after_poll=None):
        n = f"l{L}"
        I(f"s_lshl_b32 s{A0}, s{TB}, 13")
        I(f"s_add_u32 s{A0}, s{A0}, {hex(ST[L])}")
        I(f"v_lshl_add_u32 v12, v0, 4, s{A0}")
        loads = [f"global_load_dwordx4 v[32:35], v12, {sp(WSP)} sc1"]; tags = [35]
        if L == 0:
            I(f"s_lshr_b32 s{A0}, s{TT}, 1")
            I(f"s_lshl_b32 s{A0}, s{A0}, 13")
            I(f"s_add_u32 s{A0}, s{A0}, {hex(ST[L] + 12)}")
            I("v_and_b32 v13, 7, v1")
            I(f"v_lshl_add_u32 v13, v13, 10, s{A0}")
            loads.append(f"global_load_dword v36, v13, {sp(WSP)} sc1"); tags.append(36)
        poll(n + "_pa", loads, tags)
        I("v_lshlrev_b32 v13, 4, v0")
        I("ds_write_b96 v13, v[32:34]")
        if after_poll: after_poll()
        I(f"s_lshl_b32 s{A0}, s{OA}, 9")
        I(f"v_lshl_add_u32 v13, v6, 4, s{A0}")
        bar()
        k.stamp(name=n + "_hopa")
        for c in range(8): I(f"ds_read_b96 {vr(16+4*c,3)}, v13 offset:{1024*c}")
        I("s_waitcnt lgkmcnt(0)")
        for a_, b_ in ((0,1),(2,3),(4,5),(6,7),(0,2),(4,6),(0,4)):
            for c in range(3): I(f"v_add_f32 v{16+4*a_+c}, v{16+4*a_+c}, v{16+4*b_+c}")
        rowstats(16, 17, RESM, 20, RESR)
        I(f"s_or_b32 s{A0}, s{CG}, s{KQ}")
        I(f"s_cmp_lg_u32 s{A0}, 0")
        I(f"s_cbranch_scc1 {lab(n+'_nokey')}")
        I(f"v_fma_f32 v18, -v{RESM}, s{WSUM}, v18")
        I(f"v_mul_f32 v18, v18, v{RESR}")
        bf16r(18)
        I("v_ashrrev_i32 v19, 31, v18")
        I("v_or_b32 v19, 0x80000000, v19")
        I("v_xor_b32 v19, v19, v18")
        I("v_and_b32 v19, 0xffff0000, v19")
        I(f"v_sub_u32 v20, 2047, v{VTK}")
        I("v_or_b32 v20, v19, v20")
        I("v_mov_b32 v24, v20")
        I(f"v_mov_b32 v21, v{RESM}")
        dppred("v_max_u32", 24, Q4 + ("row_half_mirror", "row_mirror"))
        swapop("v_permlane16_swap_b32", "v_max_u32", 24, 25)
        I("v_cmp_eq_u32 vcc, v24, v20")
        I(f"v_mov_b32 v22, v{RESR}")
        I(f"v_mov_b32 v23, s{TAG}")
        I(f"s_lshl_b32 s{A0}, s{OT}, 7")
        I(f"s_add_u32 s{A0}, s{A0}, {hex(KEY[L])}")
        I(f"v_mov_b32 v13, s{A0}")
        I("s_mov_b32 exec_lo, vcc_lo")
        I("s_mov_b32 exec_hi, 0")
        I(f"global_store_dwordx4 v13, v[20:23], {sp(WSP)} sc1")
        exec_all()
        k.L(lab(n + "_nokey"))
        k.stamp(name="x" + n + "_key")

    FT = 76
    SR = 96
    stat_loads = [f"global_load_dwordx4 {vr(SR+4*i,4)}, v11, {sp(WSP)} offset:{1024*i} sc1" for i in range(4)]
    stat_tags = [SR + 4*i + 3 for i in range(4)]
    def own_stats():
        for i in range(1, 4):
            for c in range(2): I(f"v_add_f32 v{SR+c}, v{SR+c}, v{SR+4*i+c}")
        halfsum("v_add_f32", SR, SR + 2)
        halfsum("v_add_f32", SR + 1, SR + 2)
        rowstats(SR, SR + 1, MT[0], SR + 2, SR + 3)
        I(f"v_mov_b32 v{AT[0]}, s{CEPS}")
        I(f"v_add_f32 v{SR+3}, 1.0, v{SR+3}")
        I(f"v_mul_f32 v{SR+2}, v{SR+2}, v{SR+3}")
        I(f"v_fmac_f32 v{AT[0]}, v{SR+2}, v{SR+3}")
        I(f"v_rsq_f32 v{AT[0]}, v{AT[0]}")
        I(f"v_mov_b32 v{MT[1]}, v{MT[0]}")
        I(f"v_mul_f32 v{AT[0]}, v{AT[0]}, v{SR+3}")
        I(f"v_mov_b32 v{AT[1]}, v{AT[0]}")
        I(f"v_permlane16_swap_b32 v{MT[0]}, v{MT[1]}")
        I("s_nop 0")
        I(f"v_permlane16_swap_b32 v{AT[0]}, v{AT[1]}")
    def key_load(L):
        return f"global_load_dwordx4 {vr(FT,4)}, v{FT+4}, {sp(WSP)} sc1"
    def hop_b_issue(L, sfx=""):
        I(f"v_lshlrev_b32 v{FT+4}, 7, v1")
        I(f"v_add_u32 v{FT+4}, {hex(KEY[L])}, v{FT+4}")
        I(f"s_cmp_lg_u32 s{WAVE}, 0")
        I(f"s_cbranch_scc1 {lab(f'l{L}_nki{sfx}')}")
        I(key_load(L))
        k.L(lab(f"l{L}_nki{sfx}"))
    def hop_b(L, role=""):
        n = f"l{L}{role}"
        I(f"v_mov_b32 v{FT+6}, {LFF}")
        I(f"s_cmp_lg_u32 s{WAVE}, 0")
        I(f"s_cbranch_scc1 {lab(n+'_kw')}")
        keepq = list(vm.q)
        poll(n + "_pb", [key_load(L)], [FT + 3], first_issued=True)
        vm.q = keepq
        I(f"v_mov_b32 v{FT+5}, v{FT}")
        allreduce("v_max_u32", FT + 5, FT + 7)
        I(f"v_cmp_eq_u32 vcc, v{FT+5}, v{FT}")
        I("s_mov_b64 exec, vcc")
        I(f"ds_write_b96 v{FT+6}, {vr(FT,3)}")
        exec_all()
        k.L(lab(n + "_kw"))
        bar()
        I(f"ds_read_b96 {vr(FT,3)}, v{FT+6}")
        I("s_waitcnt lgkmcnt(0)")
        I(f"v_readfirstlane_b32 s{IDX}, v{FT}")
        I(f"v_readfirstlane_b32 s{RM}, v{FT+1}")
        I(f"v_readfirstlane_b32 s{RR}, v{FT+2}")
        I(f"s_and_b32 s{RS_}, s{IDX}, 0xffff0000")
        I(f"s_and_b32 s{IDX}, s{IDX}, 0x7ff")
        I(f"s_sub_u32 s{IDX}, 2047, s{IDX}")
        I(f"s_ashr_i32 s{A0}, s{RS_}, 31")
        I(f"s_not_b32 s{A0}, s{A0}")
        I(f"s_or_b32 s{A0}, s{A0}, 0x80000000")
        I(f"s_xor_b32 s{RS_}, s{RS_}, s{A0}")
        I(f"s_and_b32 s{RS_}, s{RS_}, 0xffff0000")
        I(f"s_lshr_b32 s{A0}, s{IDX}, 4")
        I(f"s_lshl_b32 s{A0}, s{A0}, 14")
        I(f"s_and_b32 s{A0+1}, s{IDX}, 15")
        I(f"s_lshl_b32 s{A0+1}, s{A0+1}, 4")
        I(f"s_add_u32 s{A0}, s{A0}, s{A0+1}")
        I("s_cmp_ge_u32 s2, 224")
        I(f"s_cbranch_scc1 {lab(n+'_frow')}")
        I(f"s_lshl_b32 s{A0+1}, s{WAVE}, 11")
        I(f"s_add_u32 s{A0}, s{A0}, s{A0+1}")
        I(f"v_and_b32 v{FT+4}, 48, v1")
        I(f"v_lshl_add_u32 v{FT+4}, v{FT+4}, 4, s{A0}")
        I(f"v_add_u32 v{FT+5}, 0x400, v{FT+4}")
        I(f"s_branch {lab(n+'_rowld')}")
        k.L(lab(n + "_frow"))
        I(f"s_sub_u32 s{A0+1}, s2, 224")
        I(f"s_lshl_b32 s{A0+1}, s{A0+1}, 9")
        I(f"s_add_u32 s{A0}, s{A0}, s{A0+1}")
        I(f"v_bfe_u32 v{FT+4}, v1, 3, 1")
        I(f"v_lshl_add_u32 v{FT+4}, v{FT+4}, 8, s{A0}")
        I(f"v_mov_b32 v{FT+5}, v{FT+4}")
        k.L(lab(n + "_rowld"))
        vm.issue(f"global_load_dwordx4 {vr(FT+8,4)}, v{FT+4}, {sp(XB_)} sc1", "row")
        vm.issue(f"global_load_dwordx4 {vr(FT+12,4)}, v{FT+5}, {sp(XB_)} sc1", "row")
    def slice1(L):
        n = f"l{L}"
        XR = FT + 8
        vm.wait("row")
        k.stamp(name="x" + n + "_row")
        I("s_cmp_ge_u32 s2, 224")
        I(f"s_cbranch_scc1 {lab(n+'_s1skip')}")
        for i in range(8):
            unpack(FT, FT + 1, XR + i)
            I(f"v_subrev_f32 v{FT}, s{RM}, v{FT}")
            I(f"v_subrev_f32 v{FT+1}, s{RM}, v{FT+1}")
            I(f"v_mul_f32 v{FT}, s{RR}, v{FT}")
            I(f"v_mul_f32 v{FT+1}, s{RR}, v{FT+1}")
            I(f"v_cvt_pk_bf16_f32 v{XR+i}, v{FT}, v{FT+1}")
        I(f"v_lshrrev_b32 v{FT+4}, 4, v1")
        I(f"v_lshlrev_b32 v{FT+4}, 4, v{FT+4}")
        I(f"v_mfma_f32_16x16x32_bf16 {vr(FT+16,4)}, {ar(AGU,4)}, {vr(XR,4)}, 0")
        I(f"v_mfma_f32_16x16x32_bf16 {vr(FT+16,4)}, {ar(AGU+4,4)}, {vr(XR+4,4)}, {vr(FT+16,4)}")
        I(f"s_lshl_b32 s{A0}, s{WAVE}, 6")
        I(f"s_add_u32 s{A0}, s{A0}, {LFF + 256}")
        I(f"v_add_u32 v{FT+4}, s{A0}, v{FT+4}")
        I("s_mov_b32 exec_lo, 0x00010001")
        I("s_mov_b32 exec_hi, 0x00010001")
        k.nop(3)
        I(f"ds_write_b128 v{FT+4}, {vr(FT+16,4)}")
        exec_all()
        bar()
        k.L(lab(n + "_s1skip"))
    def slice2(L):
        n = f"l{L}"
        I("s_cmp_ge_u32 s2, 224")
        I(f"s_cbranch_scc1 {lab(n+'_s2skip')}")
        I(f"v_and_b32 v{FT+4}, 15, v1")
        I(f"v_lshlrev_b32 v{FT+4}, 2, v{FT+4}")
        I(f"v_add_u32 v{FT+4}, {LFF + 256}, v{FT+4}")
        for i in range(8): I(f"ds_read_b32 v{FT+8+i}, v{FT+4} offset:{64*i}")
        for f in range(8): I(f"v_accvgpr_read_b32 v{FT+16+f}, a{ADN+f}")
        for f in range(8): I(f"v_lshlrev_b32 v{FT+16+f}, 16, v{FT+16+f}")
        I("s_waitcnt lgkmcnt(0)")
        g = FT + 8
        for a_, b_ in ((0,1),(2,3),(4,5),(6,7),(0,2),(4,6),(0,4)): I(f"v_add_f32 v{g+a_}, v{g+a_}, v{g+b_}")
        bf16r(g)
        t = FT
        I(f"v_mul_f32 v{t}, {hex(f2u(-LOG2E))}, v{g}")
        I(f"v_exp_f32 v{t}, v{t}")
        I("s_nop 0")
        I(f"v_add_f32 v{t}, 1.0, v{t}")
        I(f"v_rcp_f32 v{t}, v{t}")
        I("s_nop 0")
        I(f"v_mul_f32 v{t}, v{t}, v{g}")
        bf16r(t)
        k.nop(2)
        I(f"v_mul_f32_dpp v{t}, v{g}, v{t} row_ror:8 row_mask:0xf bank_mask:0xf")
        bf16r(t)
        k.nop(1)
        for f in range(8): I(f"v_readlane_b32 s{A0+f}, v{t}, {f}")
        I(f"s_lshl_b32 s{T2}, s{CGP}, 12")
        I(f"s_add_u32 s{T2}, s{T2}, {hex(YP[L])}")
        I(f"v_lshl_add_u32 v{FT+4}, v0, 3, s{T2}")
        I(f"v_mul_f32 v{FT+2}, s{A0}, v{FT+16}")
        for f in range(1, 8): I(f"v_fmac_f32 v{FT+2}, s{A0+f}, v{FT+16+f}")
        I(f"v_mov_b32 v{FT+3}, s{TAG}")
        I(f"global_store_dwordx2 v{FT+4}, {vr(FT+2,2)}, {sp(WSP)} sc1")
        k.L(lab(n + "_s2skip"))
    def finalize(L):
        n = f"l{L}"
        I("s_cmp_lt_u32 s2, 224")
        I(f"s_cbranch_scc1 {lab(n+'_fskip')}")
        XR = FT + 8
        I(f"v_lshrrev_b32 v{FT+4}, 4, v0")
        I(f"v_mul_u32_u24 v{FT+4}, {7*4096}, v{FT+4}")
        I(f"v_and_b32 v{FT+5}, 15, v0")
        I(f"v_lshl_add_u32 v{FT+4}, v{FT+5}, 3, v{FT+4}")
        I(f"s_sub_u32 s{A0}, s2, 224")
        I(f"s_lshl_b32 s{A0+1}, s{A0}, 7")
        I(f"s_add_u32 s{A0+1}, s{A0+1}, {hex(YP[L])}")
        I(f"v_add_u32 v{FT+4}, s{A0+1}, v{FT+4}")
        for i in range(1, 4): I(f"v_add_u32 v{FT+i-1}, {8192*i}, v{FT+4}")
        I(f"v_bfe_u32 v{FT+6}, v1, 1, 1")
        I(f"v_cmp_eq_u32 vcc, 1, v{FT+6}")
        I(f"v_bfe_u32 v{FT+6}, v1, 2, 1")
        I("s_nop 0")
        I(f"v_cndmask_b32 v{XR}, v{XR}, v{XR+1}, vcc")
        I(f"v_cndmask_b32 v{XR+2}, v{XR+2}, v{XR+3}, vcc")
        I(f"v_cmp_eq_u32 vcc, 1, v{FT+6}")
        I(f"v_and_b32 v{FT+6}, 1, v1")
        I("s_nop 0")
        I(f"v_cndmask_b32 v{XR}, v{XR}, v{XR+2}, vcc")
        I(f"v_cmp_eq_u32 vcc, 1, v{FT+6}")
        unpack(XR + 1, XR + 2, XR)
        I(f"v_cndmask_b32 v{XR}, v{XR+1}, v{XR+2}, vcc")
        Y_ = FT + 16
        ad = [FT + 4, FT, FT + 1, FT + 2]
        keepq = list(vm.q)
        poll(n + "_pl", [f"global_load_dwordx2 {vr(Y_+12,2)}, v{ad[3]}, {sp(WSP)} sc1"], [Y_ + 13])
        poll(n + "_pf", [f"global_load_dwordx2 {vr(Y_+2*i,2)}, v{ad[i//2]}, {sp(WSP)} offset:{4096*(i%2) - (4096 if False else 0)} sc1" if False else
                         f"global_load_dwordx2 {vr(Y_+2*i,2)}, v{ad[(i+1)//2]}, {sp(WSP)} offset:{-4096 if i % 2 else 0} sc1" for i in range(7)],
             [Y_ + 2*i + 1 for i in range(7)])
        for i in range(1, 7): I(f"v_add_f32 v{Y_}, v{Y_}, v{Y_+2*i}")
        rowreduce("v_add_f32", Y_, FT + 6)
        I(f"v_lshlrev_b32 v{FT+5}, 2, v{FT+5}")
        I(f"v_add_u32 v{FT+5}, {LFF + 256}, v{FT+5}")
        I(f"s_lshl_b32 s{A0+1}, s{WAVE}, 6")
        I(f"v_add_u32 v{FT+6}, s{A0+1}, v{FT+5}")
        I(f"ds_write_b32 v{FT+6}, v{Y_}")
        bar()
        for i in range(8): I(f"ds_read_b32 v{Y_+i}, v{FT+5} offset:{64*i}")
        t = FT
        I(f"v_mov_b32 v{t}, {hex(f2u(-LOG2E))}")
        I(f"v_mul_f32 v{t}, s{RS_}, v{t}")
        I(f"v_exp_f32 v{t}, v{t}")
        I(f"v_subrev_f32 v{t+1}, s{RM}, v{XR}")
        I(f"v_add_f32 v{t}, 1.0, v{t}")
        I(f"v_rcp_f32 v{t}, v{t}")
        I(f"v_mul_f32 v{t+1}, s{RR}, v{t+1}")
        bf16r(t); bf16r(t + 1)
        I("s_waitcnt lgkmcnt(0)")
        for i in range(1, 8): I(f"v_add_f32 v{Y_}, v{Y_}, v{Y_+i}")
        bf16r(Y_)
        I(f"v_mul_f32 v{Y_}, v{Y_}, v{t}")
        bf16r(Y_)
        I(f"v_add_f32 v{Y_}, v{Y_}, v{t+1}")
        bf16r(Y_)
        I(f"v_add_f32 v{Y_}, v{Y_}, v{XR}")
        I(f"v_cvt_pk_bf16_f32 v{Y_}, v{Y_}, v{Y_}")
        I(f"s_cmp_lg_u32 s{WAVE}, 0")
        I(f"s_cbranch_scc1 {lab(n+'_fskip')}")
        if L == 1:
            I(f"s_lshl_b32 s{A0+1}, s{IDX}, 10")
            I(f"s_lshl_b32 s{A0}, s{A0}, 5")
            I(f"s_add_u32 s{A0}, s{A0}, s{A0+1}")
            I(f"v_lshl_add_u32 v{FT+4}, v1, 1, s{A0}")
            exec_lo("0xffff")
            I(f"global_store_short v{FT+4}, v{Y_}, {sp(OUTP)}")
        else:
            I(f"v_and_b32 v{Y_}, 0xffff, v{Y_}")
            k.nop(2)
            for j, qp in ((1, 1), (2, 2), (3, 3)):
                I(f"v_mov_b32_dpp v{Y_+j}, v{Y_} quad_perm:[{qp},{qp},{qp},{qp}] row_mask:0xf bank_mask:0xf")
            I(f"v_lshl_or_b32 v{Y_}, v{Y_+1}, 16, v{Y_}")
            I(f"v_lshl_or_b32 v{Y_+1}, v{Y_+3}, 16, v{Y_+2}")
            I(f"v_mov_b32 v{Y_+2}, s{TAG}")
            I(f"s_lshl_b32 s{A0}, s{A0}, 7")
            I(f"s_add_u32 s{A0}, s{A0}, {hex(X2R)}")
            I(f"v_lshl_add_u32 v{FT+4}, v1, 2, s{A0}")
            exec_lo("0x1111")
            I(f"global_store_dwordx4 v{FT+4}, {vr(Y_,4)}, {sp(WSP)} sc1")
        exec_all()
        k.L(lab(n + "_fskip"))
        vm.q = keepq

    q_epilogue(0)
    k.stamp(name="l0_qepi")
    attention(0)
    oproj(0)
    I(f"s_mul_i32 s{A0}, s{WAVE}, 6144")
    I(f"s_add_u32 s{A0}, s{A0}, {LWQ}")
    I(f"v_add_u32 v12, s{A0}, v3")
    for i in range(6): I(f"ds_write_b128 v12, {ar(AWS+4*i,4)} offset:{1024*i}")
    I(f"s_lshl_b32 s{A0}, s{TT}, 15")
    I(f"v_add_u32 v8, s{A0}, v3")
    I("v_add_u32 v9, 0x4000, v8")
    I(f"s_lshr_b32 s{A0}, s{TT}, 1")
    I(f"s_lshl_b32 s{A0}, s{A0}, 13")
    I(f"s_and_b32 s{A0+1}, s{TT}, 1")
    I(f"s_lshl_b32 s{A0+1}, s{A0+1}, 9")
    I(f"s_add_u32 s{A0}, s{A0}, s{A0+1}")
    I(f"s_add_u32 s{A0}, s{A0}, {hex(ST[0])}")
    I(f"v_lshl_add_u32 v11, v6, 4, s{A0}")
    I("v_lshl_add_u32 v11, v7, 12, v11")
    RING = 6
    LOOK = int(ENV("LOOK", "4"))
    ROT1 = 67 if not PROFILE else 101
    I(f"s_lshr_b32 s{ROT1}, s{HEAD}, 1")
    def xload(ks):
        I(f"s_add_u32 s{T0}, s{ROT1}, {ks}")
        I(f"s_and_b32 s{T0}, s{T0}, 15")
        I(f"s_lshl_b32 s{T0}, s{T0}, 10")
        I(f"s_add_u32 s{T0}, s{XB_}, s{T0}")
        I(f"s_addc_u32 s{T0+1}, s{XB_+1}, 0")
        for t in range(2):
            vm.issue(f"global_load_dwordx4 {ar(64+8*(ks % RING)+4*t,4)}, v{8+t}, {sp(T0)} sc1", f"x{ks}")
    def wbase1(ks):
        I(f"s_add_u32 s{T0}, s{ROT1}, {ks}")
        I(f"s_and_b32 s{T0}, s{T0}, 15")
        I(f"s_lshl_b32 s{T0}, s{T0}, 10")
        I(f"v_add_u32 v12, s{T0}, v10")
    def first_x():
        for ks in range(LOOK): xload(ks)
    hop_a(0)
    w_addr()
    def bg_loads():
        first_x()
        for l in stat_loads: vm.issue(l, "st")
    I("s_cmp_ge_u32 s2, 224")
    I(f"s_cbranch_scc1 {lab('fin_a')}")
    hop_b_issue(0)
    hop_b(0, role="s")
    slice1(0)
    slice2(0)
    bg_loads()
    I(f"s_branch {lab('q1_go')}")
    k.L(lab("fin_a"))
    vm.q = []
    bg_loads()
    k.L(lab("q1_go"))
    k.stamp(name="q1_ffn")
    wbase1(0)
    wreads(WB, 12, 0)
    wbase1(1)
    wreads(WB + 12, 12, 0)
    for ks in range(16):
        if ks + LOOK < 16: xload(ks + LOOK)
        if ks < 14:
            wbase1(ks + 2)
            wreads(WB + 12*((ks+2)%3), 12, 0)
        vm.wait(f"x{ks}", f" lgkmcnt({12 if ks < 14 else 6 if ks == 14 else 0})")
        qmfmas(WB + 12*(ks%3), ar(64+8*(ks % RING),4), ar(64+8*(ks % RING)+4,4), ks == 0)
    k.stamp(name="q1_loop")
    poll("ps", stat_loads, stat_tags, first_issued=True)
    own_stats()
    I("s_cmp_lt_u32 s2, 224")
    I(f"s_cbranch_scc1 {lab('fin_b')}")
    hop_b_issue(0, "f")
    hop_b(0, role="f")
    vm.drain()
    finalize(0)
    k.L(lab("fin_b"))
    k.stamp(name="q1_fin")
    I(f"s_lshr_b32 s{A0}, s{IDX}, 8")
    I(f"s_cmp_lg_u32 s{A0}, s{QB}")
    I(f"s_cbranch_scc1 {lab('nofix')}")
    F0, FX = 80, 64
    I(f"s_lshl_b32 s{A0}, s{WAVE}, 9")
    I(f"s_add_u32 s{A0}, s{A0}, {hex(X2R)}")
    I(f"v_lshl_add_u32 v12, v7, 7, s{A0}")
    I("v_bfe_u32 v13, v1, 4, 1")
    I("v_lshl_add_u32 v12, v13, 5, v12")
    poll("px", [f"global_load_dwordx3 {vr(F0+4*i,3)}, v12, {sp(WSP)} offset:{256*(i>>1)+16*(i&1)} sc1" for i in range(4)], [F0 + 4*i + 2 for i in range(4)])
    I(f"s_lshl_b32 s{A0}, s{WAVE}, 11")
    I(f"v_add_u32 v12, s{A0}, v10")
    for q in range(2): wreads(WB + 12*q, 12, q)
    for i in range(4):
        I(f"v_mov_b32 v{FX+2*i}, v{F0+4*i}")
        I(f"v_mov_b32 v{FX+2*i+1}, v{F0+4*i+1}")
    I("v_mov_b32 v14, 0"); I("v_mov_b32 v15, 0")
    for r in range(8):
        I(f"v_dot2_f32_bf16 v14, v{FX+r}, s{ONES}, v14")
        I(f"v_dot2_f32_bf16 v15, v{FX+r}, v{FX+r}, v15")
    I("s_waitcnt lgkmcnt(0)")
    for q in range(2):
        for sec in range(3): mfma16(F0 + 4*sec, vr(WB+12*q+4*sec,4), vr(FX+4*q,4), q == 0)
    rowreduce("v_add_f32", 14, 13)
    rowreduce("v_add_f32", 15, 13)
    I(f"s_lshl_b32 s{A0}, s{WAVE}, 8")
    I(f"s_add_u32 s{A0}, s{A0}, {LRD}")
    I("v_and_b32 v12, 48, v1")
    I(f"v_add_u32 v12, s{A0}, v12")
    I(f"v_mov_b32 v13, s{A0}")
    I("s_mov_b32 exec_lo, 0x00010001"); I("s_mov_b32 exec_hi, 0x00010001")
    for sec in range(3): I(f"ds_write_b128 v12, {vr(F0+4*sec,4)} offset:{64*sec}")
    I("ds_write_b64 v13, v[14:15] offset:192")
    exec_all()
    bar()
    I(f"s_lshr_b32 s{A0}, s{IDX}, 5")
    I(f"s_cmp_lg_u32 s{A0}, s{OT}")
    I(f"s_cbranch_scc1 {lab('nores')}")
    I(f"s_lshl_b32 s{A0}, s{KG}, 7")
    I(f"s_add_u32 s{A0}, s{A0}, {hex(X2R)}")
    I(f"v_lshl_add_u32 v14, v7, 4, s{A0}")
    I(f"v_cmp_eq_u32 vcc, s{IDX}, v{VTK}")
    I(f"s_and_saveexec_b64 {sp(T2)}, vcc")
    I(f"global_load_dwordx2 {vr(XG,2)}, v14, {sp(WSP)} sc1")
    I(f"global_load_dwordx2 {vr(XG+2,2)}, v14, {sp(WSP)} offset:32 sc1")
    I(f"v_mov_b32 v{RESR}, 0")
    exec_all()
    k.L(lab("nores"))
    I(f"s_lshr_b32 s{A0}, s{IDX}, 5")
    I(f"s_cmp_lg_u32 s{A0}, s{TT}")
    I(f"s_cbranch_scc1 {lab('nofix')}")
    sum8(LRD, LFX)
    I("v_and_b32 v12, 48, v1")
    I(f"v_add_u32 v12, {LFX}, v12")
    I(f"v_mov_b32 v13, {LFX + 192}")
    for sec in range(2): I(f"ds_read_b128 {vr(F0+4*sec,4)}, v12 offset:{64*sec}")
    I("ds_read_b64 v[64:65], v13")
    I("v_and_b32 v15, 15, v1")
    I("v_lshlrev_b32 v14, 2, v15")
    I(f"v_add_u32 v14, {LFX + 128}, v14")
    I("ds_read_b32 v66, v14")
    I(f"s_and_b32 s{A0}, s{IDX}, 31")
    I("v_lshrrev_b32 v13, 4, v1")
    I("v_lshlrev_b32 v13, 2, v13")
    I(f"v_sub_u32 v13, s{A0}, v13")
    I(f"v_sub_u32 v15, s{A0}, v15")
    I("s_waitcnt lgkmcnt(0)")
    rowstats(64, 65, 67, 68, 69)
    for t in range(2):
        I(f"v_cmp_eq_u32 vcc, {16*t}, v15")
        k.nop(2)
        I(f"v_cndmask_b32 v{MT[t]}, v{MT[t]}, v67, vcc")
        I(f"v_cndmask_b32 v{AT[t]}, v{AT[t]}, v69, vcc")
        for sec in range(2):
            for r in range(4): I(f"v_cndmask_b32 v{ACC+8*sec+4*t+r}, v{ACC+8*sec+4*t+r}, v{F0+4*sec+r}, vcc")
        for r in range(4):
            I(f"v_cmp_eq_u32 vcc, {16*t+r}, v13")
            k.nop(2)
            I(f"v_cndmask_b32 v{ACC+16+4*t+r}, v{ACC+16+4*t+r}, v66, vcc")
    k.L(lab("nofix"))
    vm.drain()
    k.stamp(name="q1_fix")
    bounce_params()
    q_epilogue(1)
    k.stamp(name="l1_qepi")
    attention(1)
    oproj(1)
    hop_a(1)
    hop_b_issue(1)
    X, Y = 96, 16
    for i in range(4): unpack(X + 2*i, X + 2*i + 1, XG + i)
    for r in range(8): I(f"v_sub_f32 v{Y+r}, v{X+r}, v{RESM}")
    for r in range(8): I(f"v_mul_f32 v{Y+r}, v{Y+r}, v{RESR}")
    for i in range(4): I(f"v_cvt_pk_bf16_f32 v{XG+i}, v{Y+2*i}, v{Y+2*i+1}")
    for i in range(4): unpack(Y + 2*i, Y + 2*i + 1, XG + i)
    for r in range(8): I(f"v_add_f32 v{X+r}, v{X+r}, v{Y+r}")
    for i in range(4): I(f"v_cvt_pk_bf16_f32 v{XG+i}, v{X+2*i}, v{X+2*i+1}")
    I(f"s_lshl_b32 s{A0}, s{KG}, 5")
    I(f"v_lshl_add_u32 v12, v7, 4, s{A0}")
    I(f"v_lshl_add_u32 v12, v{VTK}, 10, v12")
    I(f"v_permlane32_swap_b32 v{XG}, v{XG+2}")
    I(f"v_permlane32_swap_b32 v{XG+1}, v{XG+3}")
    hop_b(1)
    k.stamp(name="t_hopb")
    I(f"v_cmp_ne_u32 vcc, s{IDX}, v{VTK}")
    I(f"s_and_saveexec_b64 {sp(T2)}, vcc")
    vm.issue(f"global_store_dwordx4 v12, {vr(XG,4)}, {sp(OUTP)} {ENV('OUTF', '')}")
    exec_all()
    slice1(1)
    slice2(1)
    k.stamp(name="t_slice")
    finalize(1)
    I("s_cmp_lg_u32 s2, 0")
    I(f"s_cbranch_scc1 {lab('end')}")
    I(f"v_mov_b32 v12, {hex(NONCE)}")
    I(f"v_mov_b32 v13, s{TAG}")
    I("v_cmp_eq_u32 vcc, 0, v0")
    I(f"s_and_saveexec_b64 {sp(T2)}, vcc")
    I(f"s_cbranch_execz {lab('end')}")
    I(f"global_store_dword v12, v13, {sp(WSP)}")
    k.L(lab("end"))
    k.stamp_end(0)
    k.L(lab("exit"))
    I("s_endpgm")
    return k

if __name__ == "__main__":
    k = build_kernel()
    bad = check_hazards(k)
    for b in bad: print("HAZARD", b, file=sys.stderr)
    out = sys.argv[1] if len(sys.argv) > 1 else "cdna_kernels/" + NAME + ".s"
    txt = emit_file(HEADER, [k], single=(ENV("SINGLE", "0") == "1"))
    open(out, "w").write(txt)
    print("written", out, len(txt), "bytes; hazards:", len(bad))
```

```python
import sys, struct, os
from asmlib import *

NAME = "interleave_layers__softmax_full_mha__moe_arch_mod__prompt"
HEADER = open("cdna_kernels/" + NAME + ".s.ref").read().split("; Override launch")[0]
ENV = os.environ.get

XF = [0x000000, 0x200000]
KF = [0x400000, 0x800000]
VF = [0x600000, 0xA00000]
OF = [0xC00000, 0xE00000]
ST = [0x1000000, 0x1040000]
YP = [0x1080000, 0x1180000]
FLK = [0x1280000, 0x1288000]
FLO = [0x1290000, 0x1298000]
KEY = [0x12A4000, 0x12A6000]
X2R = 0x12A0000
NONCE = 0x12A2000
EPS = 1e-5
def f2u(x): return struct.unpack("<I", struct.pack("<f", x))[0]
QSCALE = 0.25 * 1.4426950408889634
LOG2E = 1.4426950408889634
SPIN_MAX = 1 << 18

CB, CBN = 131072, 20
LWQ = 8192
LST = CB + CBN * 512
LSA = LST
LPC = LST + 8192
LFX = LST + 8448
LVB = LST + 8704
LRD = LST + 10752
LFF = LST + 14848
LDS_BYTES = LFF + 1024

X0P, WQP, WOP, WSP, WRP, WGP, WUP, WDP, OUTP = 4, 6, 8, 10, 12, 14, 16, 18, 20
HEAD, QB, WAVE, TT, W1K, THR, CTR, SPIN, PASS, TAG, CG, TB, OA, KQ, OT, KG, IDX, WSUM = range(22, 40)
T0, T2 = 40, 42
A0 = 44
KB_, VB_, OB_, XB_ = 52, 54, 56, 58
RM, RR, RS_, ONES, C512, CEPS = 60, 61, 62, 63, 64, 65
CGP = 3

def sp(i): return f"s[{i}:{i+1}]"

class VM:
    def __init__(self, k): self.k = k; self.q = []
    def issue(self, txt, tag=None):
        self.k.I(txt); self.q.append(tag)
    def wait(self, tag, extra=""):
        i = max(j for j, t in enumerate(self.q) if t == tag)
        n = len(self.q) - 1 - i
        assert n <= 63
        self.k.I(f"s_waitcnt vmcnt({n}){extra}")
    def drain(self, extra=""):
        self.k.I(f"s_waitcnt vmcnt(0){extra}"); self.q = []

def build_kernel():
    k = Kern(NAME + "_kernel", 256, 512, LDS_BYTES, 128, nagpr=128)
    I = k.I
    vm = VM(k)
    def lab(x): return f"L_{x}"
    def sadd64(d, b, const):
        I(f"s_add_u32 s{d}, s{b}, {hex(const)}"); I(f"s_addc_u32 s{d+1}, s{b+1}, 0")
    def swapop(sw, op, x, t):
        I(f"v_mov_b32 v{t}, v{x}"); k.nop(2); I(f"{sw} v{x}, v{t}"); I(f"{op} v{x}, v{x}, v{t}")
    def halfsum(op, x, t): swapop("v_permlane32_swap_b32", op, x, t)
    def rowreduce(op, x, t):
        swapop("v_permlane16_swap_b32", op, x, t); swapop("v_permlane32_swap_b32", op, x, t)
    def dppred(op, x, modes):
        for m in modes:
            k.nop(2); I(f"{op}_dpp v{x}, v{x}, v{x} {m} row_mask:0xf bank_mask:0xf")
    Q4 = ("quad_perm:[1,0,3,2]", "quad_perm:[2,3,0,1]")
    def allreduce(op, x, t):
        dppred(op, x, Q4 + ("row_half_mirror", "row_mirror")); rowreduce(op, x, t)
    def unpack(dlo, dhi, src):
        I(f"v_lshlrev_b32 v{dlo}, 16, v{src}"); I(f"v_and_b32 v{dhi}, 0xffff0000, v{src}")
    def bf16r(x):
        I(f"v_cvt_pk_bf16_f32 v{x}, v{x}, v{x}"); I(f"v_and_b32 v{x}, 0xffff0000, v{x}")
    def exec_lo(mask):
        I(f"s_mov_b32 exec_lo, {mask}"); I("s_mov_b32 exec_hi, 0")
    def exec_all(): I("s_mov_b64 exec, -1")
    def bar(lg=True):
        if lg: I("s_waitcnt lgkmcnt(0)")
        I("s_barrier")
    def poll(name, loads, tagregs, first_issued=False):
        I(f"s_mov_b32 s{SPIN}, {SPIN_MAX}")
        SL = int(ENV("SLEEP", "0"))
        if first_issued: I(f"s_branch {lab(name+'_w')}")
        elif SL: I(f"s_branch {lab(name+'_l')}")
        k.L(lab(name))
        if SL: I(f"s_sleep {SL}")
        k.L(lab(name + "_l"))
        for l in loads: I(l)
        k.L(lab(name + "_w"))
        I("s_waitcnt vmcnt(0)")
        I(f"v_cmp_ne_u32 vcc, s{TAG}, v{tagregs[0]}")
        for r in tagregs[1:]:
            I(f"v_cmp_ne_u32 {sp(T2)}, s{TAG}, v{r}")
            I(f"s_or_b64 vcc, vcc, {sp(T2)}")
        I(f"s_sub_u32 s{SPIN}, s{SPIN}, 1")
        I(f"s_cbranch_vccz {lab(name+'_ok')}")
        I(f"s_cbranch_scc0 {lab(name)}")
        k.L(lab(name + "_ok"))
        k.stampval(SPIN, "x" + name + "_spin")
        k.stamp(name="x" + name + "_ok")
        vm.q = []
    def mfma(d, a_, b_, c): I(f"v_mfma_f32_32x32x16_bf16 {vr(d,16)}, {a_}, {b_}, {vr(c,16) if c is not None else 0}")
    def rowstats(s1, s2, m, var, rstd):
        I(f"v_mul_f32 v{m}, s{C512}, v{s1}")
        I(f"v_mul_f32 v{var}, s{C512}, v{s2}")
        I(f"v_fma_f32 v{var}, -v{m}, v{m}, v{var}")
        I(f"v_max_f32 v{var}, 0, v{var}")
        I(f"v_add_f32 v{rstd}, s{CEPS}, v{var}")
        I(f"v_rsq_f32 v{rstd}, v{rstd}")

    ACC, WB = 16, 40
    CQ, CV, MV, AL = 64, 72, 76, 84
    MT, AT = [112, 114], [113, 115]
    S0, S1, P0, P1, VA, NEG, O, Q, KB = 16, 32, 48, 52, [56, 64], 72, 88, 104, 108
    AK, AV, AVS, VBASE = 112, 113, 114, 115
    XG, WR, VXO, VTK, RESM, RESR = 116, 120, 124, 125, 126, 127
    TK, TV = 96, 100
    def mfma16(d, a_, b_, first): I(f"v_mfma_f32_16x16x32_bf16 {vr(d,4)}, {a_}, {b_}, {0 if first else vr(d,4)}")
    AWO, ARS, AWS, AGU, ADN = 0, 32, 88, 112, 120

    I("s_cmp_ge_u32 s2, 256")
    I(f"s_cbranch_scc1 {lab('exit')}")
    k.stamp_begin()
    if ENV("DBGT"):
        I("s_memrealtime s[96:97]")
        I("s_memtime s[98:99]")
    I(f"s_load_dwordx4 s[4:7], s[0:1], 0")
    I(f"s_load_dwordx2 s[8:9], s[0:1], 16")
    I(f"s_load_dwordx2 s[10:11], s[0:1], 80")
    I(f"s_load_dwordx8 s[12:19], s[0:1], 32")
    I(f"s_load_dwordx2 s[20:21], s[0:1], 64")
    I("v_and_b32 v1, 63, v0")
    I("v_lshrrev_b32 v2, 6, v0")
    I("v_lshlrev_b32 v3, 4, v1")
    I(f"v_readfirstlane_b32 s{WAVE}, v2")
    I(f"s_and_b32 s{QB}, s2, 7")
    I(f"s_lshr_b32 s{HEAD}, s2, 3")
    if ENV("HX"):
        I(f"s_cmp_lt_u32 s{HEAD}, 16")
        I(f"s_cselect_b32 s{A0}, 8, 0")
        I(f"s_xor_b32 s{HEAD}, s{HEAD}, s{A0}")
    I(f"s_lshl_b32 s{TT}, s{QB}, 3")
    I(f"s_add_u32 s{TT}, s{TT}, s{WAVE}")
    I(f"s_lshl_b32 s{W1K}, s{WAVE}, 10")
    I("v_bfe_u32 v5, v1, 1, 2")
    I("v_bfe_u32 v6, v1, 3, 1")
    I("v_lshl_add_u32 v5, v6, 3, v5")
    I("v_bfe_u32 v6, v1, 4, 1")
    I("v_lshl_add_u32 v5, v6, 2, v5")
    I("v_bfe_u32 v6, v1, 5, 1")
    I("v_lshl_add_u32 v5, v6, 4, v5")
    I("v_mul_u32_u24 v5, 3072, v5")
    I("v_and_b32 v6, 1, v1")
    I("v_lshl_add_u32 v5, v6, 4, v5")
    I(f"s_lshl_b32 s{A0+1}, s{HEAD}, 5")
    I(f"v_add_u32 v5, s{A0+1}, v5")
    I("v_lshrrev_b32 v8, 4, v1")
    I("v_and_b32 v9, 7, v1")
    I("v_xor_b32 v8, v8, v9")
    I("v_lshlrev_b32 v8, 4, v8")
    I("v_lshrrev_b32 v9, 3, v1")
    I("v_lshl_add_u32 v8, v9, 10, v8")
    I(f"s_lshl_b32 s{A0}, s{TT}, 15")
    I(f"v_add_u32 v8, s{A0}, v8")
    I("v_xor_b32 v9, 64, v8")
    I("v_add_u32 v9, 0x2000, v9")
    XB3 = [A0 + 3, A0 + 4, A0 + 5]
    for b_ in range(3):
        I(f"s_mul_i32 s{XB3[b_]}, s{WAVE}, 12288")
        I(f"s_add_u32 s{XB3[b_]}, s{XB3[b_]}, {56*1024 + 4096*b_}")
        if b_:
            I(f"s_cmp_eq_u32 s{WAVE}, 7")
            I(f"s_cselect_b32 s{XB3[b_]}, {4096*(b_-1)}, s{XB3[b_]}")
    ROT = A0 + 6
    I(f"s_and_b32 s{ROT}, s{HEAD}, 3")
    I("s_waitcnt lgkmcnt(0)")
    def xstage(st):
        I(f"s_add_u32 s{A0}, s{ROT}, {st//2}")
        I(f"s_and_b32 s{A0}, s{A0}, 3")
        I(f"s_lshl_b32 s{A0}, s{A0}, 8")
        if st & 1: I(f"s_add_u32 s{A0}, s{A0}, 128")
        I(f"s_add_u32 s{T0}, s{X0P}, s{A0}")
        I(f"s_addc_u32 s{T0+1}, s{X0P+1}, 0")
        for i in range(4):
            if i == 2: sadd64(T0, T0, 16384)
            I(f"s_add_u32 m0, s{XB3[st % 3]}, {i*1024}")
            I("s_nop 0")
            vm.issue(f"global_load_lds_dwordx4 v{8 + (i&1)}, {sp(T0)}", f"x{st}")
    def wdma(j):
        I(f"s_mul_i32 s{A0}, s{ROT}, 12")
        I(f"s_add_u32 s{A0}, s{A0}, s{WAVE}")
        I(f"s_add_u32 s{A0}, s{A0}, {8*j}")
        I(f"s_sub_u32 s{A0+1}, s{A0}, 48")
        I(f"s_cmp_ge_u32 s{A0}, 48")
        I(f"s_cselect_b32 s{A0}, s{A0+1}, s{A0}")
        I(f"s_mul_i32 s{A0+1}, s{A0}, 21846")
        I(f"s_lshr_b32 s{A0+1}, s{A0+1}, 16")
        I(f"s_mul_i32 s{A0+2}, s{A0+1}, 3")
        I(f"s_sub_u32 s{A0}, s{A0}, s{A0+2}")
        I(f"s_mul_i32 s{A0+2}, s{A0+1}, {32*3072}")
        I(f"s_lshl_b32 s{T0}, s{A0}, 10")
        I(f"s_add_u32 s{A0+2}, s{A0+2}, s{T0}")
        I(f"s_add_u32 s{T0}, s{WQP}, s{A0+2}")
        I(f"s_addc_u32 s{T0+1}, s{WQP+1}, 0")
        I(f"s_lshl_b32 s{A0}, s{A0}, 14")
        I(f"s_lshl_b32 s{A0+1}, s{A0+1}, 10")
        I(f"s_add_u32 s{A0}, s{A0}, s{A0+1}")
        I(f"s_add_u32 m0, s{A0}, {LWQ}")
        I("s_nop 0")
        vm.issue(f"global_load_lds_dwordx4 v5, {sp(T0)}", f"W{j}")
    if ENV("CPF", "0") == "1":
        I(f"s_cmp_lg_u32 s{WAVE}, 7")
        I(f"s_cbranch_scc1 {lab('nocpf')}")
        I(f"s_lshl_b32 s{A0}, s{HEAD}, 13")
        I(f"v_lshl_add_u32 v12, v1, 7, s{A0}")
        I(f"v_cmp_gt_u32 vcc, {lab('exit')}-{lab('pc0')}, v12")
        I(f"s_getpc_b64 {sp(T0)}")
        k.L(lab("pc0"))
        I(f"s_and_saveexec_b64 {sp(T2)}, vcc")
        I(f"s_cbranch_execz {lab('cpf2')}")
        I(f"global_load_dword v127, v12, {sp(T0)}")
        k.L(lab("cpf2"))
        exec_all()
        k.L(lab("nocpf"))
    if ENV("ALLUP"):
        for j in range(8):
            if j < 6 and ENV("ALLUP") != "x": wdma(j)
            if ENV("ALLUP") != "w": xstage(j)
        k.stamp(name="a_issue")
        I("s_waitcnt vmcnt(0)")
        k.stamp(name="a_done")
        I("s_barrier")
        k.stamp(name="a_bar")
        I(f"s_branch {lab('end')}")
    UPW = int(ENV("UPW", "4"))
    wdma(0); xstage(0); wdma(1); xstage(1); wdma(2); xstage(2)
    for j in range(3, UPW): wdma(j)
    sadd64(T2, WSP, NONCE)
    I(f"s_load_dword s{TAG}, {sp(T2)}, 0")
    I(f"s_lshr_b32 s{CG}, s{HEAD}, 2")
    I(f"s_and_b32 s{TB}, s{HEAD}, 3")
    I(f"s_lshl_b32 s{A0}, s{QB}, 2")
    I(f"s_add_u32 s{TB}, s{TB}, s{A0}")
    I(f"s_and_b32 s{OA}, s{WAVE}, 1")
    I(f"s_lshr_b32 s{KQ}, s{WAVE}, 1")
    I(f"s_lshl_b32 s{OT}, s{TB}, 1")
    I(f"s_add_u32 s{OT}, s{OT}, s{OA}")
    I(f"s_lshl_b32 s{KG}, s{CG}, 2")
    I(f"s_add_u32 s{KG}, s{KG}, s{KQ}")
    I(f"s_mul_i32 s{CGP}, s{QB}, 28")
    I(f"s_min_u32 s{A0}, s{HEAD}, 27")
    I(f"s_add_u32 s{CGP}, s{CGP}, s{A0}")
    I(f"s_mov_b32 s{THR}, {hex(f2u(2.0**30))}")
    I(f"s_mov_b32 s{ONES}, 0x3f803f80")
    I(f"s_mov_b32 s{C512}, {hex(f2u(1/512))}")
    I(f"s_mov_b32 s{CEPS}, {hex(f2u(EPS))}")
    def lane_terms():
        I("v_and_b32 v6, 31, v1")
        I("v_lshrrev_b32 v7, 5, v1")
    lane_terms()
    def w_addr():
        I("v_bfe_u32 v12, v1, 2, 2")
        I("v_lshl_add_u32 v12, v7, 4, v12")
        I("v_bfe_u32 v13, v1, 4, 1")
        I("v_lshl_add_u32 v12, v13, 2, v12")
        I("v_and_b32 v13, 3, v1")
        I("v_lshlrev_b32 v13, 3, v13")
        I("v_lshl_add_u32 v10, v12, 5, v13")
        I(f"v_add_u32 v10, {LWQ}, v10")
    w_addr()
    def wreads(dst, ad, ks):
        for sec in range(3):
            I(f"ds_read_b64_tr_b16 {vr(dst+4*sec,2)}, v{ad} offset:{sec*16384+ks*1024}")
            I(f"ds_read_b64_tr_b16 {vr(dst+4*sec+2,2)}, v{ad} offset:{sec*16384+ks*1024+256}")
    def qmfmas(wb, xa, xb, first, between=None):
        for i, (d, A_, B_) in enumerate(((ACC, vr(wb,4), xa), (ACC+4, vr(wb,4), xb), (ACC+8, vr(wb+4,4), xa),
                                         (ACC+12, vr(wb+4,4), xb), (ACC+16, xa, vr(wb+8,4)), (ACC+20, xb, vr(wb+8,4)))):
            mfma16(d, A_, B_, first)
            if between: between(i)
    I("v_bfe_u32 v12, v1, 1, 3")
    I("v_and_b32 v13, 15, v1")
    I("v_lshlrev_b32 v13, 7, v13")
    I("v_lshrrev_b32 v14, 4, v1")
    I("v_xor_b32 v14, v14, v12")
    I("v_lshl_add_u32 v2, v14, 4, v13")
    I("v_xor_b32 v4, 64, v2")
    def xfrags(st):
        I(f"v_add_u32 v14, s{XB3[st % 3]}, v2")
        I(f"v_add_u32 v15, s{XB3[st % 3]}, v4")
        vm.wait(f"x{st}")
        for h in range(2):
            for t in range(2): I(f"ds_read_b128 {ar(16*st+8*h+4*t,4)}, v{14+h} offset:{2048*t}")
    k.stamp(name="q0_issue")
    I("s_waitcnt lgkmcnt(0)")
    I(f"s_mul_i32 s{TAG}, s{TAG}, 0x9E3779B1")
    I(f"s_add_u32 s{TAG}, s{TAG}, 0x7F4A7C15")
    GU, ON = 76, 92
    for r in range(4): I(f"v_mov_b32 v{ON+r}, s{ONES}")
    xfrags(0)
    I("s_barrier")
    k.stamp(name="q0_W")
    CSA = 96
    def colsum_part(i):
        I(f"v_add_u32 v13, s{W1K}, v10")
        wreads(100, 13, 8*i)
        if i == 0:
            for sec in range(3): I(f"v_mov_b32 v{CSA+sec}, 0")
        I("s_waitcnt lgkmcnt(0)")
        for sec in range(3):
            for r in range(4): I(f"v_dot2_f32_bf16 v{CSA+sec}, v{100+4*sec+r}, s{ONES}, v{CSA+sec}")
        if i == 1:
            k.nop(2)
            for sec in range(3): rowreduce("v_add_f32", CSA + sec, 13)
            I(f"s_lshl_b32 s{A0}, s{WAVE}, 8")
            I(f"s_add_u32 s{A0}, s{A0}, {LRD}")
            I("v_and_b32 v13, 15, v1")
            I(f"v_lshl_add_u32 v13, v13, 2, s{A0}")
            for sec in range(3): I(f"ds_write_b32 v13, v{CSA+sec} offset:{64*sec}")
    def sum8(src, dst):
        I("v_lshlrev_b32 v13, 2, v1")
        I(f"v_add_u32 v14, {src}, v13")
        for w in range(8): I(f"ds_read_b32 v{104+w}, v14 offset:{256*w}")
        I(f"v_add_u32 v13, {dst}, v13")
        I("s_waitcnt lgkmcnt(0)")
        for a_, b_ in ((0,1),(2,3),(4,5),(6,7),(0,2),(4,6),(0,4)): I(f"v_add_f32 v{104+a_}, v{104+a_}, v{104+b_}")
        I("ds_write_b32 v13, v104")
    def wsave():
        I(f"s_mul_i32 s{A0}, s{WAVE}, 6144")
        I(f"s_add_u32 s{A0}, s{A0}, {LWQ}")
        I(f"v_add_u32 v13, s{A0}, v3")
        for i in range(6): I(f"ds_read_b128 {ar(AWS+4*i,4)}, v13 offset:{1024*i}")
    def wbase(q):
        I(f"s_add_u32 s{A0}, s{ROT}, {q}")
        I(f"s_and_b32 s{A0}, s{A0}, 3")
        I(f"s_lshl_b32 s{A0}, s{A0}, 12")
        I(f"v_add_u32 v11, s{A0}, v10")
    wbase(0)
    wreads(WB, 11, 0)
    wreads(WB + 12, 11, 1)
    ready = {2: 1, 5: 2, 8: 3, 10: 4, 13: 5}
    def stats0():
        I("v_and_b32 v13, 11, v0")
        I(f"v_mov_b32 v14, s{ONES}")
        I("v_cmp_eq_u32 vcc, 0, v13")
        I("v_lshlrev_b32 v13, 4, v0")
        I(f"v_add_u32 v13, {CB}, v13")
        I("v_cndmask_b32 v100, 0, v14, vcc")
        for r in range(1, 4): I(f"v_mov_b32 v{100+r}, v100")
        I("ds_write_b128 v13, v[100:103]")
        I(f"v_cmp_gt_u32 vcc, {(CBN*512 - 8192)//16}, v0")
        I(f"s_and_saveexec_b64 {sp(T2)}, vcc")
        I("ds_write_b128 v13, v[100:103] offset:8192")
        exec_all()
        I("v_lshrrev_b32 v12, 4, v1")
        I("v_lshlrev_b32 v12, 2, v12")
        I("v_and_b32 v13, 15, v1")
        I("v_sub_u32 v12, v13, v12")
        for t in range(2): I(f"v_mov_b32 v{ON+t}, 0")
        for r in range(4):
            I(f"v_cmp_eq_u32 vcc, {r}, v12")
            k.nop(2)
            for t in range(2): I(f"v_cndmask_b32 v{ON+t}, v{ON+t}, v{GU+4*t+r}, vcc")
        for t in range(2): rowreduce("v_add_f32", ON + t, 12)
        for t in range(2): rowstats(GU + 8 + 4*t, ON + t, MT[t], 12, AT[t])
    for ks in range(16):
        st = ks // 2
        pre = 0
        if ks % 2 == 0 and st + 1 < 8:
            xfrags(st + 1); pre = 4
        if ks + 2 in ready:
            vm.wait(f"W{ready[ks+2]}")
            I("s_barrier")
        if ks == 12:
            colsum_part(0); colsum_part(1); pre = -6
        if ks == 14:
            bar()
            sum8(LRD, LPC); wsave()
        if ks < 14:
            if (ks + 2) % 4 == 0: wbase((ks + 2)//4)
            wreads(WB + 12*((ks+2)%3), 11, (ks + 2) % 4)
            I(f"s_waitcnt lgkmcnt({min(15, 12 + pre) if ks % 2 == 0 else 12})")
        if ks == 0: xstage(3)
        if ks % 2 == 1 and st + 4 < 8: xstage(st + 4)
        if ks % 2 == 0 and UPW + ks//2 < 6: wdma(UPW + ks//2)
        xa, xb = ar(8*ks,4), ar(8*ks+4,4)
        mfma16(GU, xa, xa, ks == 0); mfma16(GU + 4, xb, xb, ks == 0)
        qmfmas(WB + 12*(ks%3), xa, xb, ks == 0)
        mfma16(GU + 8, vr(ON,4), xa, ks == 0); mfma16(GU + 12, vr(ON,4), xb, ks == 0)
    k.stamp(name="q0_loop")
    stats0()
    def bounce_params():
        I(f"s_lshl_b32 s{A0}, s{WAVE}, 8")
        I(f"s_add_u32 s{A0}, s{A0}, {LVB}")
        I("v_and_b32 v13, 15, v1")
        I(f"v_lshl_add_u32 v12, v13, 2, s{A0}")
        for t in range(2):
            I(f"ds_write_b32 v12, v{MT[t]} offset:{64*t}")
            I(f"ds_write_b32 v12, v{AT[t]} offset:{128+64*t}")
        I("v_and_b32 v14, 48, v1")
        I(f"v_add_u32 v12, s{A0}, v14")
        for t in range(2):
            I(f"ds_read_b128 {vr(MV+4*t,4)}, v12 offset:{64*t}")
            I(f"ds_read_b128 {vr(AL+4*t,4)}, v12 offset:{128+64*t}")
        I(f"v_add_u32 v12, {LPC}, v14")
        for sec in range(2): I(f"ds_read_b128 {vr(CQ+4*sec,4)}, v12 offset:{64*sec}")
        I("v_lshlrev_b32 v12, 2, v13")
        I(f"v_add_u32 v12, {LPC + 128}, v12")
        I(f"ds_read_b32 v{CV}, v12")
    bounce_params()

    def q_epilogue(L):
        n = f"l{L}"
        sadd64(KB_, WSP, KF[L]); sadd64(VB_, WSP, VF[L]); sadd64(OB_, WSP, OF[L])
        for t in range(2): I(f"v_mul_f32 v{13+t}, {hex(f2u(QSCALE))}, v{AT[t]}")
        I(f"s_lshl_b32 s{A0}, s{HEAD}, 16")
        I(f"s_lshl_b32 s{A0+1}, s{TT}, 10")
        I(f"s_add_u32 s{A0}, s{A0}, s{A0+1}")
        I(f"v_add_u32 v4, s{A0}, v3")
        I(f"v_add_u32 v15, s{W1K}, v3")
        I("v_add_u32 v5, 0x10000, v15")
        I("s_waitcnt lgkmcnt(0)")
        for sec in (1, 0):
            for t in range(2):
                for r in range(4): I(f"v_fma_f32 v{ACC+8*sec+4*t+r}, -v{MT[t]}, v{CQ+4*sec+r}, v{ACC+8*sec+4*t+r}")
            for t in range(2):
                for r in range(4): I(f"v_mul_f32 v{ACC+8*sec+4*t+r}, v{AT[t] if sec else 13+t}, v{ACC+8*sec+4*t+r}")
            d = TK if sec else Q
            for i in range(4): I(f"v_cvt_pk_bf16_f32 v{d+i}, v{ACC+8*sec+2*i}, v{ACC+8*sec+2*i+1}")
        for r in range(8): I(f"v_fma_f32 v{ACC+16+r}, -v{MV+r}, v{CV}, v{ACC+16+r}")
        I(f"v_permlane16_swap_b32 v{TK}, v{TK+2}")
        I(f"v_permlane16_swap_b32 v{TK+1}, v{TK+3}")
        for r in range(8): I(f"v_mul_f32 v{ACC+16+r}, v{AL+r}, v{ACC+16+r}")
        vm.issue(f"global_store_dwordx4 v4, {vr(TK,4)}, {sp(KB_)} sc1")
        I(f"ds_write_b128 v15, {vr(TK,4)}")
        for i in range(4): I(f"v_cvt_pk_bf16_f32 v{TV+i}, v{ACC+16+2*i}, v{ACC+16+2*i+1}")
        I(f"v_permlane16_swap_b32 v{Q}, v{Q+2}")
        I(f"v_permlane16_swap_b32 v{Q+1}, v{Q+3}")
        I(f"v_permlane32_swap_b32 v{TV}, v{TV+2}")
        I(f"v_permlane32_swap_b32 v{TV+1}, v{TV+3}")
        vm.issue(f"global_store_dwordx4 v4, {vr(TV,4)}, {sp(VB_)} sc1")
        I(f"ds_write_b128 v5, {vr(TV,4)}")
        I("v_and_b32 v8, 15, v1")
        I("v_bfe_u32 v9, v1, 4, 1")
        I("v_lshlrev_b32 v10, 4, v8")
        I("v_lshl_add_u32 v10, v7, 8, v10")
        I(f"v_lshl_add_u32 v{VBASE}, v9, 16, v10")
        I(f"v_add_u32 v{VBASE}, 0x10000, v{VBASE}")
        I("v_xor_b32 v9, 1, v9")
        I(f"v_lshlrev_b32 v{AVS}, 13, v9")
        I(f"s_mov_b32 s{PASS}, 0")
        I(f"s_lshl_b32 s{A0}, s{HEAD}, 10")
        I(f"s_add_u32 s{A0}, s{A0}, {hex(FLK[L])}")
        I(f"v_lshl_add_u32 v8, v1, 7, s{A0}")
        I(f"s_lshl_b32 s{A0+1}, s{QB}, 7")
        I(f"s_add_u32 s{A0}, s{A0}, s{A0+1}")
        I(f"v_mov_b32 v9, s{A0}")
        bar()

    def ffn_gu(m_):
        I(f"s_lshl_b32 s{A0+1}, s{CGP}, 4")
        I(f"v_mul_u32_u24 v14, 3584, v0")
        I(f"v_add_u32 v14, s{A0+1}, v14")
        vm.issue(f"global_load_dwordx4 {ar(AGU+4*m_,4)}, v14, {sp(WUP if m_ else WGP)}")
    def ffn_dn():
        I(f"s_lshl_b32 s{A0+1}, s{CGP}, 13")
        I(f"s_add_u32 s{A0+1}, s{A0+1}, s{W1K}")
        I(f"v_add_u32 v14, s{A0+1}, v3")
        vm.issue(f"global_load_dwordx4 {ar(ADN,4)}, v14, {sp(WDP)}")
    def attention(L):
        n = f"l{L}"
        I(f"ds_read_b128 {vr(KB,4)}, v3")
        I("s_waitcnt lgkmcnt(0)")
        mfma(S0, vr(KB,4), vr(Q,4), None)
        k.nop(12)
        def max16(dst, S, first):
            if first:
                I(f"v_max3_f32 v{dst}, v{S}, v{S+1}, v{S+2}"); rest = list(range(3, 16))
            else: rest = list(range(16))
            while rest:
                if len(rest) >= 2:
                    I(f"v_max3_f32 v{dst}, v{dst}, v{S+rest[0]}, v{S+rest[1]}"); rest = rest[2:]
                else:
                    I(f"v_max_f32 v{dst}, v{dst}, v{S+rest[0]}"); rest = rest[1:]
        max16(2, S0, True)
        def prime():
            I(f"ds_read_b128 {vr(KB,4)}, v{AK}")
            I(f"ds_read_b128 {vr(VA[0],4)}, v{AV}")
            I(f"ds_read_b128 {vr(VA[0]+4,4)}, v{AV} offset:512")
            I("s_waitcnt lgkmcnt(0)")
            mfma(S0, vr(KB,4), vr(Q,4), NEG)
            I(f"ds_read_b128 {vr(KB,4)}, v{AK} offset:1024")
            k.nop(11)
        def setup():
            halfsum("v_max_f32", 2, 7)
            for r in range(16): I(f"v_sub_f32 v{NEG+r}, 0, v2")
            I(f"v_mov_b32 v{AK}, v3")
            I(f"v_mov_b32 v{AV}, v{VBASE}")
            for r in range(16): I(f"v_mov_b32 v{O+r}, 0")
            for r in range(4): I(f"v_mov_b32 v{P1+r}, 0")
            for r in range(4): I(f"v_mov_b32 v{VA[1]+4+r}, 0")
            prime()
        def tile(u, extra=None, nokread=False, noqk=False, novread=False):
            extra = extra or {}
            if "p" in extra: I(f"s_setprio {extra['p']}")
            Sc, Sn = (S0, S1) if u % 2 == 0 else (S1, S0)
            Vc, Vo = VA[u % 2], VA[1 - u % 2]
            E = lambda r: I(f"v_exp_f32 v{Sc+r}, v{Sc+r}")
            Cv = lambda P, r, b: I(f"v_cvt_pk_bf16_f32 v{P+r}, v{Sc+b+2*r}, v{Sc+b+2*r+1}")
            E(0); E(1)
            mfma(O, vr(Vo+4,4), vr(P1,4), O)
            if 0 in extra: extra[0]()
            E(2); E(3); E(4)
            I("s_waitcnt lgkmcnt(0)")
            E(5)
            if not noqk: mfma(Sn, vr(KB,4), vr(Q,4), NEG)
            E(6)
            if not nokread: I(f"ds_read_b128 {vr(KB,4)}, v{AK} offset:{(u+2)*1024}")
            E(7)
            if not novread: I(f"ds_read_b128 {vr(Vo,4)}, v{AV} offset:{(u+1)*1024}")
            for r in range(4): Cv(P0, r, 0)
            E(8)
            if not novread: I(f"ds_read_b128 {vr(Vo+4,4)}, v{AV} offset:{(u+1)*1024+512}")
            E(9)
            mfma(O, vr(Vc,4), vr(P0,4), O)
            if 1 in extra: extra[1]()
            for r in range(10, 16): E(r)
            for r in range(4): Cv(P1, r, 8)
        def bump():
            I(f"v_add_u32 v{AK}, 0x2000, v{AK}")
            I(f"v_add_u32 v{AV}, v{AVS}, v{AV}")
        setup()
        k.stamp(name=f"x{n}_setup")
        I("s_setprio 3")
        def publish_kv():
            vm.drain()
            I("s_barrier")
            I(f"s_cmp_lg_u32 s{WAVE}, 0")
            I(f"s_cbranch_scc1 {lab(n+'_noflag')}")
            I(f"v_mov_b32 v14, s{TAG}")
            I("s_mov_b64 exec, 1")
            I(f"global_store_dword v9, v14, {sp(WSP)} sc1")
            exec_all()
            k.L(lab(n + "_noflag"))
        pl = f"global_load_dword v14, v8, {sp(WSP)} sc1"
        def poll_issue():
            I("s_mov_b64 exec, 0xff"); I(pl); exec_all()
        def poll_check():
            I("s_mov_b64 exec, 0xff")
            if L == 1:
                I(f"s_lshr_b32 s{A0}, s{IDX}, 8")
                I(f"s_bitset0_b32 exec_lo, s{A0}")
            poll(n + "_pk", [pl], [14], first_issued=True)
            exec_all()
        def stg(sl): return ARS + 8*(sl-1) if L == 0 else 64 + 8*((sl-1) % 6)
        def rload(sl):
            if L == 1:
                I(f"s_lshr_b32 s{A0+1}, s{IDX}, 8")
                I(f"s_sub_u32 s{A0+1}, s{A0+1}, s{QB}")
                I(f"s_and_b32 s{A0+1}, s{A0+1}, 7")
                if sl == 7:
                    I(f"s_cmp_eq_u32 s{A0+1}, 0")
                    I(f"s_cselect_b32 s{A0}, 7, s{A0+1}")
                    I("s_mov_b64 exec, 0xff")
                    poll(n + "_pk7", [pl], [14], first_issued=True)
                    exec_all()
                else:
                    I(f"s_sub_u32 s{A0+1}, s{A0+1}, 1")
                    I(f"s_cmp_lt_u32 s{A0+1}, {sl}")
                    I(f"s_cselect_b32 s{A0}, {sl+1}, {sl}")
                I(f"s_add_u32 s{A0}, s{QB}, s{A0}")
            else:
                I(f"s_add_u32 s{A0}, s{QB}, {sl}")
            I(f"s_and_b32 s{A0}, s{A0}, 7")
            I(f"s_sub_u32 s{A0}, s{A0}, s{QB}")
            I(f"s_lshl_b32 s{A0}, s{A0}, 13")
            I(f"v_add_u32 v13, s{A0}, v4")
            vm.issue(f"global_load_dwordx4 {ar(stg(sl),4)}, v13, {sp(KB_)} sc1", f"r{sl}")
            vm.issue(f"global_load_dwordx4 {ar(stg(sl)+4,4)}, v13, {sp(VB_)} sc1", f"r{sl}")
        def rwrite(sl):
            if f"r{sl}" in vm.q: vm.wait(f"r{sl}")
            I(f"ds_write_b128 v15, {ar(stg(sl),4)} offset:{sl*8192}")
            I(f"ds_write_b128 v5, {ar(stg(sl)+4,4)} offset:{sl*8192}")
        PUB, PI, PC = [int(x) for x in ENV("POLL", "1,4,5").split(",")]
        PR = {}
        if ENV("PBAL", "1") == "1":
            PR = {4: 2, 6: 1, 7: 0, 8: 3, 11: 2, 12: 1, 13: 0, 14: 3, 18: 2, 20: 1, 21: 0, 22: 3, 30: 2, 34: 1, 36: 0, 38: 3}
        for u in range(8):
            ex = {}
            if u == PUB: ex[0] = publish_kv
            if u == PI: ex[0] = poll_issue
            if u == PC: ex[0] = lambda: (poll_check(), rload(1), rload(2))
            if u in PR: ex["p"] = PR[u]
            tile(u, ex, nokread=(u >= 6), noqk=(u == 7), novread=(u == 7))
        bump()
        k.stamp(name=f"x{n}_ch0a")
        rwrite(1)
        bar()
        k.stamp(name=n + "_c0")
        prime()
        def wo_addr():
            I(f"s_lshl_b32 s{A0}, s{WAVE}, 16")
            I(f"s_lshl_b32 s{A0+1}, s{CG}, 7")
            I(f"s_add_u32 s{A0}, s{A0}, s{A0+1}")
            I("v_lshrrev_b32 v2, 3, v1")
            I(f"v_lshl_add_u32 v2, v2, 10, s{A0}")
            I("v_and_b32 v14, 7, v1")
            I("v_lshl_add_u32 v2, v14, 4, v2")
        def wo_load(i):
            vm.issue(f"global_load_dwordx4 {ar(AWO+4*i,4)}, v2, {sp(WOP)}", "wo")
            if i < 7: I("v_add_u32 v2, 0x2000, v2")
        def misc_loads():
            I(f"s_lshl_b32 s{A0}, s{KG}, 9")
            I(f"s_lshl_b32 s{A0+1}, s{OT}, 15")
            I(f"s_add_u32 s{A0}, s{A0}, s{A0+1}")
            I("v_and_b32 v10, 15, v1")
            I(f"v_lshl_add_u32 v{VXO}, v10, 4, s{A0}")
            I("v_lshrrev_b32 v10, 5, v1")
            I(f"v_lshl_add_u32 v{VXO}, v10, 8, v{VXO}")
            I("v_bfe_u32 v10, v1, 4, 1")
            I(f"v_lshl_add_u32 v{VXO}, v10, 14, v{VXO}")
            I("v_and_b32 v10, 31, v1")
            I(f"s_lshl_b32 s{A0}, s{OT}, 5")
            I(f"v_add_u32 v{VTK}, s{A0}, v10")
            I("v_lshrrev_b32 v10, 5, v1")
            I(f"s_lshl_b32 s{A0}, s{KG}, 5")
            I(f"v_lshl_add_u32 v14, v10, 3, s{A0}")
            vm.issue(f"global_load_dwordx2 {vr(WR,2)}, v14, {sp(WRP)}")
            vm.issue(f"global_load_dwordx2 {vr(WR+2,2)}, v14, {sp(WRP)} offset:16")
            I(f"v_lshl_add_u32 v14, v{VTK}, 10, v14")
            vm.issue(f"global_load_dwordx2 {vr(XG,2)}, v14, {sp(X0P)}")
            vm.issue(f"global_load_dwordx2 {vr(XG+2,2)}, v14, {sp(X0P)} offset:16")
        sched = {
            1: {(0,0): lambda: rload(3), (3,0): lambda: rload(4), (4,0): lambda: rwrite(2), (6,0): bar},
            2: {(0,0): lambda: rload(5), (3,0): lambda: rload(6), (4,0): lambda: rwrite(3), (5,0): lambda: rwrite(4), (6,0): bar},
            3: {(0,0): lambda: rload(7)},
            4: {(0,0): lambda: rwrite(5), (1,0): lambda: rwrite(6), (2,0): lambda: rwrite(7), (6,0): bar},
        }
        def touches():
            I(f"s_cmp_ge_u32 s{WAVE}, 5")
            I(f"s_cbranch_scc1 {lab('t_done')}")
            I(f"s_cmp_ge_u32 s{WAVE}, 2")
            I(f"s_cbranch_scc1 {lab('t_lin')}")
            I(f"s_mul_i32 s{A0}, s{QB}, 7")
            I(f"s_lshr_b32 s{A0}, s{A0}, 1")
            I(f"s_lshl_b32 s{A0}, s{A0}, 7")
            I(f"s_mul_i32 s{A0+1}, s{HEAD}, {16*3584}")
            I(f"s_add_u32 s{A0}, s{A0}, s{A0+1}")
            I("v_lshrrev_b32 v14, 2, v1")
            I("v_mul_u32_u24 v14, 3584, v14")
            I("v_and_b32 v10, 3, v1")
            I("v_lshl_add_u32 v14, v10, 7, v14")
            I(f"v_add_u32 v14, s{A0}, v14")
            I(f"s_cmp_eq_u32 s{WAVE}, 0")
            I(f"s_cselect_b32 s{T0}, s{WGP}, s{WUP}")
            I(f"s_cselect_b32 s{T0+1}, s{WGP+1}, s{WUP+1}")
            I(f"s_branch {lab('t_go')}")
            k.L(lab("t_lin"))
            I(f"s_lshl_b32 s{A0}, s{CGP}, 13")
            I(f"s_lshl_b32 s{A0+1}, s{HEAD}, 14")
            I(f"s_and_b32 s{A0+2}, s{WAVE}, 1")
            I(f"s_lshl_b32 s{A0+2}, s{A0+2}, 13")
            I(f"s_add_u32 s{A0+1}, s{A0+1}, s{A0+2}")
            I(f"s_cmp_eq_u32 s{WAVE}, 2")
            I(f"s_cselect_b32 s{A0}, s{A0}, s{A0+1}")
            I(f"s_cselect_b32 s{T0}, s{WDP}, s{WOP}")
            I(f"s_cselect_b32 s{T0+1}, s{WDP+1}, s{WOP+1}")
            I(f"v_lshl_add_u32 v14, v1, 7, s{A0}")
            k.L(lab("t_go"))
            I(f"global_load_dword v11, v14, {sp(T0)}")
            k.L(lab("t_done"))
        NU = 5
        if L == 0:
            NU = 6
            sched[2][(6,1)] = touches
            sched[3][(3,0)] = wo_addr
            for i in range(4): sched[3][(4 + i, 0)] = (lambda i=i: wo_load(i))
            for i, u in enumerate((3, 4, 5, 7)): sched[4][(u, 0)] = (lambda i=i: wo_load(4 + i))
            sched[5] = {(0,0): lambda: ffn_gu(0), (2,0): misc_loads, (4,0): lambda: ffn_gu(1), (6,0): ffn_dn}
            PR[40] = 3
        else:
            sched[2][(7,0)] = poll_issue
        for c in range(1, NU):
            for u in range(8):
                ex = {sl: f for (uu, sl), f in sched[c].items() if uu == u}
                if 8*c + u in PR: ex["p"] = PR[8*c + u]
                tile(u, ex)
            bump()
            k.stamp(name=f"x{n}_ch{c}")
        I(f"s_mov_b32 s{CTR}, {NU}")
        k.lines.append(".p2align 6")
        k.L(lab(n + "_loop"))
        if ENV("PEND", "1") == "0":
            I(f"s_cmp_lt_u32 s{CTR}, 5"); I(f"s_cbranch_scc1 {lab(n+'_pd')}")
            I("s_setprio 2")
            I(f"s_cmp_lt_u32 s{CTR}, 6"); I(f"s_cbranch_scc1 {lab(n+'_pd')}")
            I("s_setprio 1")
            I(f"s_cmp_lt_u32 s{CTR}, 7"); I(f"s_cbranch_scc1 {lab(n+'_pd')}")
            I("s_setprio 0")
            k.L(lab(n + "_pd"))
            for u in range(8): tile(u)
        else:
            I(f"s_cmp_lt_u32 s{CTR}, 6"); I(f"s_cbranch_scc1 {lab(n+'_pd')}")
            I("s_setprio 2")
            I(f"s_cmp_lt_u32 s{CTR}, 7"); I(f"s_cbranch_scc1 {lab(n+'_pd')}")
            I("s_setprio 1")
            k.L(lab(n + "_pd"))
            for u in range(8):
                if u == 5:
                    I(f"s_cmp_lt_u32 s{CTR}, 7"); I(f"s_cbranch_scc1 {lab(n+'_pe')}")
                    I("s_setprio 0")
                    k.L(lab(n + "_pe"))
                tile(u)
        bump()
        I(f"s_add_u32 s{CTR}, s{CTR}, 1")
        I(f"s_cmp_lt_u32 s{CTR}, 8")
        I(f"s_cbranch_scc1 {lab(n+'_loop')}")
        mfma(O, vr(VA[1]+4,4), vr(P1,4), O)
        I("s_waitcnt lgkmcnt(0)")
        k.stamp(name=n + "_attn")
        k.nop(12)
        I(f"s_cmp_lg_u32 s{PASS}, 0")
        I(f"s_cbranch_scc1 {lab(n+'_fin')}")
        I(f"v_cmp_nge_f32 vcc, s{THR}, v{O+8}")
        k.nop(2)
        I(f"s_cbranch_vccz {lab(n+'_fin')}")
        I(f"s_mov_b32 s{PASS}, 1")
        I(f"v_mov_b32 v{AK}, v3")
        I("v_mov_b32 v2, 0xff800000")
        I(f"s_mov_b32 s{CTR}, 0")
        k.L(lab(n + "_maxloop"))
        I(f"ds_read_b128 {vr(KB,4)}, v{AK}")
        I("s_waitcnt lgkmcnt(0)")
        mfma(S0, vr(KB,4), vr(Q,4), None)
        I(f"v_add_u32 v{AK}, 0x400, v{AK}")
        k.nop(12)
        max16(2, S0, False)
        I(f"s_add_u32 s{CTR}, s{CTR}, 1")
        I(f"s_cmp_lt_u32 s{CTR}, 64")
        I(f"s_cbranch_scc1 {lab(n+'_maxloop')}")
        setup()
        I(f"s_mov_b32 s{CTR}, 0")
        I(f"s_branch {lab(n+'_loop')}")
        k.L(lab(n + "_fin"))
        I(f"v_rcp_f32 v2, v{O+8}")
        I("s_nop 0")
        for r in range(8): I(f"v_mul_f32 v{O+r}, v{O+r}, v2")
        for r in range(4): I(f"v_cvt_pk_bf16_f32 v{P0+r}, v{O+2*r}, v{O+2*r+1}")
        I(f"global_store_dwordx4 v4, {vr(P0,4)}, {sp(OB_)} sc1")

    def oproj(L):
        n = f"l{L}"
        OBf, AC, X, Y = 64, 32, 96, 16
        lane_terms()
        I(f"s_lshl_b32 s{A0}, s{KQ}, 19")
        I(f"s_lshl_b32 s{A0+1}, s{OT}, 10")
        I(f"s_add_u32 s{A0}, s{A0}, s{A0+1}")
        I(f"v_add_u32 v10, s{A0}, v3")
        I(f"s_lshl_b32 s{A0}, s{WAVE}, 13")
        I(f"s_add_u32 s{A0}, s{A0}, 0x10000")
        I(f"v_add_u32 v12, s{A0}, v3")
        vm.drain()
        I("s_barrier")
        k.stamp(name=n + "_odrain")
        I(f"s_cmp_lg_u32 s{WAVE}, 0")
        I(f"s_cbranch_scc1 {lab(n+'_nof')}")
        I(f"s_lshl_b32 s{A0}, s{QB}, 12")
        I(f"s_add_u32 s{A0}, s{A0}, {hex(FLO[L])}")
        I(f"v_lshl_add_u32 v8, v6, 7, s{A0}")
        I(f"s_lshl_b32 s{A0+1}, s{HEAD}, 7")
        I(f"s_add_u32 s{A0}, s{A0}, s{A0+1}")
        I(f"v_mov_b32 v13, s{A0}")
        I(f"v_mov_b32 v14, s{TAG}")
        I("s_mov_b64 exec, 1")
        I(f"global_store_dword v13, v14, {sp(WSP)} sc1")
        exec_all()
        k.L(lab(n + "_nof"))
        if L == 0:
            for i in range(8): I(f"ds_write_b128 v12, {ar(AWO+4*i,4)} offset:{1024*i}")
            I(f"global_load_dwordx4 v[16:19], v3, {sp(WRP)}")
            I(f"s_lshl_b32 s{A0}, s{WAVE}, 11")
            I(f"v_lshl_add_u32 v13, v1, 5, s{A0}")
            I(f"ds_write_b128 v13, {ar(AGU,4)}")
            I(f"ds_write_b128 v13, {ar(AGU+4,4)} offset:16")
            I(f"v_add_u32 v13, s{W1K}, v3")
            I(f"ds_write_b128 v13, {ar(ADN,4)} offset:16384")
            I("v_bfe_u32 v13, v1, 2, 2")
            I("v_and_b32 v14, 3, v1")
            I("v_lshl_add_u32 v12, v7, 2, v13")
            I("v_lshlrev_b32 v12, 7, v12")
            I("v_lshl_add_u32 v12, v14, 3, v12")
            I("v_bfe_u32 v15, v1, 4, 1")
            I("v_lshl_add_u32 v12, v15, 5, v12")
            I(f"s_lshl_b32 s{A0+1}, s{KQ}, 14")
            I(f"s_add_u32 s{A0+1}, s{A0+1}, 0x10000")
            I(f"v_add_u32 v12, s{A0+1}, v12")
            bar()
            for i in range(8):
                for b in range(2):
                    I(f"ds_read_b64_tr_b16 {ar(AWO+8*i+4*b,2)}, v12 offset:{2048*i+64*b}")
                    I(f"ds_read_b64_tr_b16 {ar(AWO+8*i+4*b+2,2)}, v12 offset:{2048*i+64*b+1024}")
                if i % 2 == 1: I("s_waitcnt lgkmcnt(0)")
            I("v_lshrrev_b32 v15, 4, v1")
            I("v_lshl_add_u32 v13, v15, 3, v13")
            I("v_lshlrev_b32 v13, 5, v13")
            I("v_lshl_add_u32 v13, v14, 3, v13")
            I(f"v_add_u32 v13, s{A0}, v13")
            for i in range(2):
                I(f"ds_read_b64_tr_b16 {ar(AGU+4*i,2)}, v13 offset:{1024*i}")
                I(f"ds_read_b64_tr_b16 {ar(AGU+4*i+2,2)}, v13 offset:{1024*i+128}")
            I("v_lshlrev_b32 v13, 1, v0")
            for f in range(8): I(f"ds_read_u16 a{ADN+f}, v13 offset:{16384+1024*f}")
            I("v_mov_b32 v20, 0")
            I("s_waitcnt vmcnt(0)")
            for r in range(4): I(f"v_dot2_f32_bf16 v20, v{16+r}, s{ONES}, v20")
            k.nop(1)
            allreduce("v_add_f32", 20, 21)
            I("s_nop 0")
            I(f"v_readfirstlane_b32 s{WSUM}, v20")
        I(f"s_cmp_lg_u32 s{WAVE}, 0")
        I(f"s_cbranch_scc1 {lab(n+'_owait')}")
        exec_lo(-1)
        poll(n + "_po", [f"global_load_dword v14, v8, {sp(WSP)} sc1"], [14])
        exec_all()
        k.L(lab(n + "_owait"))
        bar()
        k.stamp(name=n + "_opoll")
        for i in range(8):
            I(f"global_load_dwordx4 {vr(OBf+4*i,4)}, v10, {sp(OB_)} sc1")
            if i < 7: I("v_add_u32 v10, 0x10000, v10")
        NF = 0
        I(f"s_lshl_b32 s{A0}, s{OA}, 15")
        I(f"s_lshl_b32 s{A0+1}, s{KQ}, 11")
        I(f"s_add_u32 s{A0+1}, s{A0+1}, s{A0}")
        I(f"v_add_u32 v9, s{A0+1}, v3")
        I(f"s_lshl_b32 s{A0+1}, s{KQ}, 13")
        I(f"s_add_u32 s{A0+1}, s{A0+1}, s{A0}")
        I(f"v_add_u32 v8, s{A0+1}, v3")
        for i in range(4): unpack(X + 2*i, X + 2*i + 1, XG + i)
        if L == 1:
            for r in range(8): I(f"v_sub_f32 v{Y+r}, v{X+r}, v{RESM}")
            for r in range(8): I(f"v_mul_f32 v{Y+r}, v{Y+r}, v{RESR}")
            for i in range(4): I(f"v_cvt_pk_bf16_f32 v{XG+i}, v{Y+2*i}, v{Y+2*i+1}")
            for i in range(4): unpack(Y + 2*i, Y + 2*i + 1, XG + i)
            for r in range(8): I(f"v_add_f32 v{X+r}, v{X+r}, v{Y+r}")
            for i in range(4): I(f"v_cvt_pk_bf16_f32 v{XG+i}, v{X+2*i}, v{X+2*i+1}")
            for i in range(4): unpack(X + 2*i, X + 2*i + 1, XG + i)
        for i in range(4): unpack(104 + 2*i, 105 + 2*i, WR + i)
        for i in range(8):
            I(f"s_waitcnt vmcnt({7-i+NF})")
            for b in range(2): mfma(AC + 16*b, ar(AWO+8*i+4*b,4), vr(OBf+4*i,4), AC + 16*b if i else None)
        k.stamp(name=n + "_omm")
        k.nop(12)
        for q in range(4):
            for hf in range(2): I(f"ds_write_b128 v9, {vr(AC+8*q+4*hf,4)} offset:{8192*q+1024*hf}")
        bar()
        k.stamp(name="x" + n + "_red")
        for s_ in range(4):
            for hf in range(2): I(f"ds_read_b128 {vr(AC+8*s_+4*hf,4)}, v8 offset:{2048*s_+1024*hf}")
        sadd64(XB_, WSP, XF[L])
        I("s_waitcnt lgkmcnt(0)")
        for r in range(8):
            I(f"v_add_f32 v{AC+r}, v{AC+r}, v{AC+8+r}")
            I(f"v_add_f32 v{AC+16+r}, v{AC+16+r}, v{AC+24+r}")
        for r in range(8): I(f"v_add_f32 v{AC+r}, v{AC+r}, v{AC+16+r}")
        for i in range(4): I(f"v_cvt_pk_bf16_f32 v{XG+i}, v{AC+2*i}, v{AC+2*i+1}")
        for i in range(4): unpack(Y + 2*i, Y + 2*i + 1, XG + i)
        for r in range(8): I(f"v_add_f32 v{X+r}, v{X+r}, v{Y+r}")
        for i in range(4): I(f"v_cvt_pk_bf16_f32 v{XG+i}, v{X+2*i}, v{X+2*i+1}")
        for i in range(4): I(f"v_mov_b32 v{24+i}, v{XG+i}")
        k.nop(1)
        I("v_permlane32_swap_b32 v24, v26")
        I("v_permlane32_swap_b32 v25, v27")
        I(f"global_store_dwordx4 v{VXO}, v[24:27], {sp(XB_)} sc1")
        for i in range(4): unpack(X + 2*i, X + 2*i + 1, XG + i)
        I(f"v_add_f32 v16, v{X}, v{X+1}")
        I(f"v_mul_f32 v17, v{X}, v{X}")
        I(f"v_mul_f32 v18, v{X}, v104")
        for r in range(1, 8):
            if r > 1: I(f"v_add_f32 v16, v16, v{X+r}")
            I(f"v_fmac_f32 v17, v{X+r}, v{X+r}")
            I(f"v_fmac_f32 v18, v{X+r}, v{104+r}")
        I(f"s_lshl_b32 s{A0}, s{OA}, 12")
        I(f"s_lshl_b32 s{A0+1}, s{KQ}, 10")
        I(f"s_add_u32 s{A0}, s{A0}, s{A0+1}")
        I(f"s_add_u32 s{A0}, s{A0}, {LSA}")
        I(f"v_add_u32 v13, s{A0}, v3")
        I("ds_write_b96 v13, v[16:18]")
        k.stamp(name="x" + n + "_epi")
        I("s_waitcnt vmcnt(0) lgkmcnt(0)")
        k.stamp(name="x" + n + "_xdrain")
        I("s_waitcnt vmcnt(0) lgkmcnt(0)")
        I("s_barrier")
        I(f"s_cmp_lg_u32 s{WAVE}, 0")
        I(f"s_cbranch_scc1 {lab(n+'_nost')}")
        I("v_lshlrev_b32 v13, 4, v6")
        I("v_lshl_add_u32 v13, v7, 12, v13")
        I(f"v_add_u32 v13, {LSA}, v13")
        for j in range(8): I(f"ds_read_b96 {vr(32+4*j,3)}, v13 offset:{512*j}")
        I(f"s_lshl_b32 s{A0}, s{TB}, 3")
        I(f"s_add_u32 s{A0}, s{A0}, s{CG}")
        I(f"s_lshl_b32 s{A0}, s{A0}, 10")
        I(f"s_add_u32 s{A0}, s{A0}, {hex(ST[L])}")
        I(f"v_add_u32 v13, s{A0}, v3")
        I(f"v_mov_b32 v35, s{TAG}")
        I("s_waitcnt lgkmcnt(0)")
        for j in range(1, 8):
            for c in range(3): I(f"v_add_f32 v{32+c}, v{32+c}, v{32+4*j+c}")
        I(f"global_store_dwordx4 v13, v[32:35], {sp(WSP)} sc1")
        k.L(lab(n + "_nost"))
        k.stamp(name=n + "_stpub")

    def hop_a(L, after_poll=None):
        n = f"l{L}"
        I(f"s_lshl_b32 s{A0}, s{TB}, 13")
        I(f"s_add_u32 s{A0}, s{A0}, {hex(ST[L])}")
        I(f"v_lshl_add_u32 v12, v0, 4, s{A0}")
        loads = [f"global_load_dwordx4 v[32:35], v12, {sp(WSP)} sc1"]; tags = [35]
        if L == 0:
            I(f"s_lshr_b32 s{A0}, s{TT}, 1")
            I(f"s_lshl_b32 s{A0}, s{A0}, 13")
            I(f"s_add_u32 s{A0}, s{A0}, {hex(ST[L] + 12)}")
            I("v_and_b32 v13, 7, v1")
            I(f"v_lshl_add_u32 v13, v13, 10, s{A0}")
            loads.append(f"global_load_dword v36, v13, {sp(WSP)} sc1"); tags.append(36)
        poll(n + "_pa", loads, tags)
        I("v_lshlrev_b32 v13, 4, v0")
        I("ds_write_b96 v13, v[32:34]")
        if after_poll: after_poll()
        I(f"s_lshl_b32 s{A0}, s{OA}, 9")
        I(f"v_lshl_add_u32 v13, v6, 4, s{A0}")
        bar()
        k.stamp(name=n + "_hopa")
        for c in range(8): I(f"ds_read_b96 {vr(16+4*c,3)}, v13 offset:{1024*c}")
        I("s_waitcnt lgkmcnt(0)")
        for a_, b_ in ((0,1),(2,3),(4,5),(6,7),(0,2),(4,6),(0,4)):
            for c in range(3): I(f"v_add_f32 v{16+4*a_+c}, v{16+4*a_+c}, v{16+4*b_+c}")
        rowstats(16, 17, RESM, 20, RESR)
        I(f"s_or_b32 s{A0}, s{CG}, s{KQ}")
        I(f"s_cmp_lg_u32 s{A0}, 0")
        I(f"s_cbranch_scc1 {lab(n+'_nokey')}")
        I(f"v_fma_f32 v18, -v{RESM}, s{WSUM}, v18")
        I(f"v_mul_f32 v18, v18, v{RESR}")
        bf16r(18)
        I("v_ashrrev_i32 v19, 31, v18")
        I("v_or_b32 v19, 0x80000000, v19")
        I("v_xor_b32 v19, v19, v18")
        I("v_and_b32 v19, 0xffff0000, v19")
        I(f"v_sub_u32 v20, 2047, v{VTK}")
        I("v_or_b32 v20, v19, v20")
        I("v_mov_b32 v24, v20")
        I(f"v_mov_b32 v21, v{RESM}")
        dppred("v_max_u32", 24, Q4 + ("row_half_mirror", "row_mirror"))
        swapop("v_permlane16_swap_b32", "v_max_u32", 24, 25)
        I("v_cmp_eq_u32 vcc, v24, v20")
        I(f"v_mov_b32 v22, v{RESR}")
        I(f"v_mov_b32 v23, s{TAG}")
        I(f"s_lshl_b32 s{A0}, s{OT}, 7")
        I(f"s_add_u32 s{A0}, s{A0}, {hex(KEY[L])}")
        I(f"v_mov_b32 v13, s{A0}")
        I("s_mov_b32 exec_lo, vcc_lo")
        I("s_mov_b32 exec_hi, 0")
        I(f"global_store_dwordx4 v13, v[20:23], {sp(WSP)} sc1")
        exec_all()
        k.L(lab(n + "_nokey"))
        k.stamp(name="x" + n + "_key")

    FT = 76
    SR = 96
    stat_loads = [f"global_load_dwordx4 {vr(SR+4*i,4)}, v11, {sp(WSP)} offset:{1024*i} sc1" for i in range(4)]
    stat_tags = [SR + 4*i + 3 for i in range(4)]
    def own_stats():
        for i in range(1, 4):
            for c in range(2): I(f"v_add_f32 v{SR+c}, v{SR+c}, v{SR+4*i+c}")
        halfsum("v_add_f32", SR, SR + 2)
        halfsum("v_add_f32", SR + 1, SR + 2)
        rowstats(SR, SR + 1, MT[0], SR + 2, SR + 3)
        I(f"v_mov_b32 v{AT[0]}, s{CEPS}")
        I(f"v_add_f32 v{SR+3}, 1.0, v{SR+3}")
        I(f"v_mul_f32 v{SR+2}, v{SR+2}, v{SR+3}")
        I(f"v_fmac_f32 v{AT[0]}, v{SR+2}, v{SR+3}")
        I(f"v_rsq_f32 v{AT[0]}, v{AT[0]}")
        I(f"v_mov_b32 v{MT[1]}, v{MT[0]}")
        I(f"v_mul_f32 v{AT[0]}, v{AT[0]}, v{SR+3}")
        I(f"v_mov_b32 v{AT[1]}, v{AT[0]}")
        I(f"v_permlane16_swap_b32 v{MT[0]}, v{MT[1]}")
        I("s_nop 0")
        I(f"v_permlane16_swap_b32 v{AT[0]}, v{AT[1]}")
    def key_load(L):
        return f"global_load_dwordx4 {vr(FT,4)}, v{FT+4}, {sp(WSP)} sc1"
    def hop_b_issue(L, sfx=""):
        I(f"v_lshlrev_b32 v{FT+4}, 7, v1")
        I(f"v_add_u32 v{FT+4}, {hex(KEY[L])}, v{FT+4}")
        I(f"s_cmp_lg_u32 s{WAVE}, 0")
        I(f"s_cbranch_scc1 {lab(f'l{L}_nki{sfx}')}")
        I(key_load(L))
        k.L(lab(f"l{L}_nki{sfx}"))
    def hop_b(L, role=""):
        n = f"l{L}{role}"
        I(f"v_mov_b32 v{FT+6}, {LFF}")
        I(f"s_cmp_lg_u32 s{WAVE}, 0")
        I(f"s_cbranch_scc1 {lab(n+'_kw')}")
        keepq = list(vm.q)
        poll(n + "_pb", [key_load(L)], [FT + 3], first_issued=True)
        vm.q = keepq
        I(f"v_mov_b32 v{FT+5}, v{FT}")
        allreduce("v_max_u32", FT + 5, FT + 7)
        I(f"v_cmp_eq_u32 vcc, v{FT+5}, v{FT}")
        I("s_mov_b64 exec, vcc")
        I(f"ds_write_b96 v{FT+6}, {vr(FT,3)}")
        exec_all()
        k.L(lab(n + "_kw"))
        bar()
        I(f"ds_read_b96 {vr(FT,3)}, v{FT+6}")
        I("s_waitcnt lgkmcnt(0)")
        I(f"v_readfirstlane_b32 s{IDX}, v{FT}")
        I(f"v_readfirstlane_b32 s{RM}, v{FT+1}")
        I(f"v_readfirstlane_b32 s{RR}, v{FT+2}")
        I(f"s_and_b32 s{RS_}, s{IDX}, 0xffff0000")
        I(f"s_and_b32 s{IDX}, s{IDX}, 0x7ff")
        I(f"s_sub_u32 s{IDX}, 2047, s{IDX}")
        I(f"s_ashr_i32 s{A0}, s{RS_}, 31")
        I(f"s_not_b32 s{A0}, s{A0}")
        I(f"s_or_b32 s{A0}, s{A0}, 0x80000000")
        I(f"s_xor_b32 s{RS_}, s{RS_}, s{A0}")
        I(f"s_and_b32 s{RS_}, s{RS_}, 0xffff0000")
        I(f"s_lshr_b32 s{A0}, s{IDX}, 4")
        I(f"s_lshl_b32 s{A0}, s{A0}, 14")
        I(f"s_and_b32 s{A0+1}, s{IDX}, 15")
        I(f"s_lshl_b32 s{A0+1}, s{A0+1}, 4")
        I(f"s_add_u32 s{A0}, s{A0}, s{A0+1}")
        I("s_cmp_ge_u32 s2, 224")
        I(f"s_cbranch_scc1 {lab(n+'_frow')}")
        I(f"s_lshl_b32 s{A0+1}, s{WAVE}, 11")
        I(f"s_add_u32 s{A0}, s{A0}, s{A0+1}")
        I(f"v_and_b32 v{FT+4}, 48, v1")
        I(f"v_lshl_add_u32 v{FT+4}, v{FT+4}, 4, s{A0}")
        I(f"v_add_u32 v{FT+5}, 0x400, v{FT+4}")
        I(f"s_branch {lab(n+'_rowld')}")
        k.L(lab(n + "_frow"))
        I(f"s_sub_u32 s{A0+1}, s2, 224")
        I(f"s_lshl_b32 s{A0+1}, s{A0+1}, 9")
        I(f"s_add_u32 s{A0}, s{A0}, s{A0+1}")
        I(f"v_bfe_u32 v{FT+4}, v1, 3, 1")
        I(f"v_lshl_add_u32 v{FT+4}, v{FT+4}, 8, s{A0}")
        I(f"v_mov_b32 v{FT+5}, v{FT+4}")
        k.L(lab(n + "_rowld"))
        vm.issue(f"global_load_dwordx4 {vr(FT+8,4)}, v{FT+4}, {sp(XB_)} sc1", "row")
        vm.issue(f"global_load_dwordx4 {vr(FT+12,4)}, v{FT+5}, {sp(XB_)} sc1", "row")
    def slice1(L):
        n = f"l{L}"
        XR = FT + 8
        vm.wait("row")
        k.stamp(name="x" + n + "_row")
        I("s_cmp_ge_u32 s2, 224")
        I(f"s_cbranch_scc1 {lab(n+'_s1skip')}")
        for i in range(8):
            unpack(FT, FT + 1, XR + i)
            I(f"v_subrev_f32 v{FT}, s{RM}, v{FT}")
            I(f"v_subrev_f32 v{FT+1}, s{RM}, v{FT+1}")
            I(f"v_mul_f32 v{FT}, s{RR}, v{FT}")
            I(f"v_mul_f32 v{FT+1}, s{RR}, v{FT+1}")
            I(f"v_cvt_pk_bf16_f32 v{XR+i}, v{FT}, v{FT+1}")
        I(f"v_lshrrev_b32 v{FT+4}, 4, v1")
        I(f"v_lshlrev_b32 v{FT+4}, 4, v{FT+4}")
        I(f"v_mfma_f32_16x16x32_bf16 {vr(FT+16,4)}, {ar(AGU,4)}, {vr(XR,4)}, 0")
        I(f"v_mfma_f32_16x16x32_bf16 {vr(FT+16,4)}, {ar(AGU+4,4)}, {vr(XR+4,4)}, {vr(FT+16,4)}")
        I(f"s_lshl_b32 s{A0}, s{WAVE}, 6")
        I(f"s_add_u32 s{A0}, s{A0}, {LFF + 256}")
        I(f"v_add_u32 v{FT+4}, s{A0}, v{FT+4}")
        I("s_mov_b32 exec_lo, 0x00010001")
        I("s_mov_b32 exec_hi, 0x00010001")
        k.nop(3)
        I(f"ds_write_b128 v{FT+4}, {vr(FT+16,4)}")
        exec_all()
        bar()
        k.L(lab(n + "_s1skip"))
    def slice2(L):
        n = f"l{L}"
        I("s_cmp_ge_u32 s2, 224")
        I(f"s_cbranch_scc1 {lab(n+'_s2skip')}")
        I(f"v_and_b32 v{FT+4}, 15, v1")
        I(f"v_lshlrev_b32 v{FT+4}, 2, v{FT+4}")
        I(f"v_add_u32 v{FT+4}, {LFF + 256}, v{FT+4}")
        for i in range(8): I(f"ds_read_b32 v{FT+8+i}, v{FT+4} offset:{64*i}")
        for f in range(8): I(f"v_accvgpr_read_b32 v{FT+16+f}, a{ADN+f}")
        for f in range(8): I(f"v_lshlrev_b32 v{FT+16+f}, 16, v{FT+16+f}")
        I("s_waitcnt lgkmcnt(0)")
        g = FT + 8
        for a_, b_ in ((0,1),(2,3),(4,5),(6,7),(0,2),(4,6),(0,4)): I(f"v_add_f32 v{g+a_}, v{g+a_}, v{g+b_}")
        bf16r(g)
        t = FT
        I(f"v_mul_f32 v{t}, {hex(f2u(-LOG2E))}, v{g}")
        I(f"v_exp_f32 v{t}, v{t}")
        I("s_nop 0")
        I(f"v_add_f32 v{t}, 1.0, v{t}")
        I(f"v_rcp_f32 v{t}, v{t}")
        I("s_nop 0")
        I(f"v_mul_f32 v{t}, v{t}, v{g}")
        bf16r(t)
        k.nop(2)
        I(f"v_mul_f32_dpp v{t}, v{g}, v{t} row_ror:8 row_mask:0xf bank_mask:0xf")
        bf16r(t)
        k.nop(1)
        for f in range(8): I(f"v_readlane_b32 s{A0+f}, v{t}, {f}")
        I(f"s_lshl_b32 s{T2}, s{CGP}, 12")
        I(f"s_add_u32 s{T2}, s{T2}, {hex(YP[L])}")
        I(f"v_lshl_add_u32 v{FT+4}, v0, 3, s{T2}")
        I(f"v_mul_f32 v{FT+2}, s{A0}, v{FT+16}")
        for f in range(1, 8): I(f"v_fmac_f32 v{FT+2}, s{A0+f}, v{FT+16+f}")
        I(f"v_mov_b32 v{FT+3}, s{TAG}")
        I(f"global_store_dwordx2 v{FT+4}, {vr(FT+2,2)}, {sp(WSP)} sc1")
        k.L(lab(n + "_s2skip"))
    def finalize(L):
        n = f"l{L}"
        I("s_cmp_lt_u32 s2, 224")
        I(f"s_cbranch_scc1 {lab(n+'_fskip')}")
        XR = FT + 8
        I(f"v_lshrrev_b32 v{FT+4}, 4, v0")
        I(f"v_mul_u32_u24 v{FT+4}, {7*4096}, v{FT+4}")
        I(f"v_and_b32 v{FT+5}, 15, v0")
        I(f"v_lshl_add_u32 v{FT+4}, v{FT+5}, 3, v{FT+4}")
        I(f"s_sub_u32 s{A0}, s2, 224")
        I(f"s_lshl_b32 s{A0+1}, s{A0}, 7")
        I(f"s_add_u32 s{A0+1}, s{A0+1}, {hex(YP[L])}")
        I(f"v_add_u32 v{FT+4}, s{A0+1}, v{FT+4}")
        for i in range(1, 4): I(f"v_add_u32 v{FT+i-1}, {8192*i}, v{FT+4}")
        I(f"v_bfe_u32 v{FT+6}, v1, 1, 1")
        I(f"v_cmp_eq_u32 vcc, 1, v{FT+6}")
        I(f"v_bfe_u32 v{FT+6}, v1, 2, 1")
        I("s_nop 0")
        I(f"v_cndmask_b32 v{XR}, v{XR}, v{XR+1}, vcc")
        I(f"v_cndmask_b32 v{XR+2}, v{XR+2}, v{XR+3}, vcc")
        I(f"v_cmp_eq_u32 vcc, 1, v{FT+6}")
        I(f"v_and_b32 v{FT+6}, 1, v1")
        I("s_nop 0")
        I(f"v_cndmask_b32 v{XR}, v{XR}, v{XR+2}, vcc")
        I(f"v_cmp_eq_u32 vcc, 1, v{FT+6}")
        unpack(XR + 1, XR + 2, XR)
        I(f"v_cndmask_b32 v{XR}, v{XR+1}, v{XR+2}, vcc")
        Y_ = FT + 16
        ad = [FT + 4, FT, FT + 1, FT + 2]
        keepq = list(vm.q)
        poll(n + "_pl", [f"global_load_dwordx2 {vr(Y_+12,2)}, v{ad[3]}, {sp(WSP)} sc1"], [Y_ + 13])
        poll(n + "_pf", [f"global_load_dwordx2 {vr(Y_+2*i,2)}, v{ad[i//2]}, {sp(WSP)} offset:{4096*(i%2) - (4096 if False else 0)} sc1" if False else
                         f"global_load_dwordx2 {vr(Y_+2*i,2)}, v{ad[(i+1)//2]}, {sp(WSP)} offset:{-4096 if i % 2 else 0} sc1" for i in range(7)],
             [Y_ + 2*i + 1 for i in range(7)])
        for i in range(1, 7): I(f"v_add_f32 v{Y_}, v{Y_}, v{Y_+2*i}")
        rowreduce("v_add_f32", Y_, FT + 6)
        I(f"v_lshlrev_b32 v{FT+5}, 2, v{FT+5}")
        I(f"v_add_u32 v{FT+5}, {LFF + 256}, v{FT+5}")
        I(f"s_lshl_b32 s{A0+1}, s{WAVE}, 6")
        I(f"v_add_u32 v{FT+6}, s{A0+1}, v{FT+5}")
        I(f"ds_write_b32 v{FT+6}, v{Y_}")
        bar()
        for i in range(8): I(f"ds_read_b32 v{Y_+i}, v{FT+5} offset:{64*i}")
        t = FT
        I(f"v_mov_b32 v{t}, {hex(f2u(-LOG2E))}")
        I(f"v_mul_f32 v{t}, s{RS_}, v{t}")
        I(f"v_exp_f32 v{t}, v{t}")
        I(f"v_subrev_f32 v{t+1}, s{RM}, v{XR}")
        I(f"v_add_f32 v{t}, 1.0, v{t}")
        I(f"v_rcp_f32 v{t}, v{t}")
        I(f"v_mul_f32 v{t+1}, s{RR}, v{t+1}")
        bf16r(t); bf16r(t + 1)
        I("s_waitcnt lgkmcnt(0)")
        for i in range(1, 8): I(f"v_add_f32 v{Y_}, v{Y_}, v{Y_+i}")
        bf16r(Y_)
        I(f"v_mul_f32 v{Y_}, v{Y_}, v{t}")
        bf16r(Y_)
        I(f"v_add_f32 v{Y_}, v{Y_}, v{t+1}")
        bf16r(Y_)
        I(f"v_add_f32 v{Y_}, v{Y_}, v{XR}")
        I(f"v_cvt_pk_bf16_f32 v{Y_}, v{Y_}, v{Y_}")
        I(f"s_cmp_lg_u32 s{WAVE}, 0")
        I(f"s_cbranch_scc1 {lab(n+'_fskip')}")
        if L == 1:
            I(f"s_lshl_b32 s{A0+1}, s{IDX}, 10")
            I(f"s_lshl_b32 s{A0}, s{A0}, 5")
            I(f"s_add_u32 s{A0}, s{A0}, s{A0+1}")
            I(f"v_lshl_add_u32 v{FT+4}, v1, 1, s{A0}")
            exec_lo("0xffff")
            I(f"global_store_short v{FT+4}, v{Y_}, {sp(OUTP)}")
        else:
            I(f"v_and_b32 v{Y_}, 0xffff, v{Y_}")
            k.nop(2)
            for j, qp in ((1, 1), (2, 2), (3, 3)):
                I(f"v_mov_b32_dpp v{Y_+j}, v{Y_} quad_perm:[{qp},{qp},{qp},{qp}] row_mask:0xf bank_mask:0xf")
            I(f"v_lshl_or_b32 v{Y_}, v{Y_+1}, 16, v{Y_}")
            I(f"v_lshl_or_b32 v{Y_+1}, v{Y_+3}, 16, v{Y_+2}")
            I(f"v_mov_b32 v{Y_+2}, s{TAG}")
            I(f"s_lshl_b32 s{A0}, s{A0}, 7")
            I(f"s_add_u32 s{A0}, s{A0}, {hex(X2R)}")
            I(f"v_lshl_add_u32 v{FT+4}, v1, 2, s{A0}")
            exec_lo("0x1111")
            I(f"global_store_dwordx4 v{FT+4}, {vr(Y_,4)}, {sp(WSP)} sc1")
        exec_all()
        k.L(lab(n + "_fskip"))
        vm.q = keepq

    q_epilogue(0)
    k.stamp(name="l0_qepi")
    attention(0)
    oproj(0)
    I(f"s_mul_i32 s{A0}, s{WAVE}, 6144")
    I(f"s_add_u32 s{A0}, s{A0}, {LWQ}")
    I(f"v_add_u32 v12, s{A0}, v3")
    for i in range(6): I(f"ds_write_b128 v12, {ar(AWS+4*i,4)} offset:{1024*i}")
    I(f"s_lshl_b32 s{A0}, s{TT}, 15")
    I(f"v_add_u32 v8, s{A0}, v3")
    I("v_add_u32 v9, 0x4000, v8")
    I(f"s_lshr_b32 s{A0}, s{TT}, 1")
    I(f"s_lshl_b32 s{A0}, s{A0}, 13")
    I(f"s_and_b32 s{A0+1}, s{TT}, 1")
    I(f"s_lshl_b32 s{A0+1}, s{A0+1}, 9")
    I(f"s_add_u32 s{A0}, s{A0}, s{A0+1}")
    I(f"s_add_u32 s{A0}, s{A0}, {hex(ST[0])}")
    I(f"v_lshl_add_u32 v11, v6, 4, s{A0}")
    I("v_lshl_add_u32 v11, v7, 12, v11")
    RING = 6
    LOOK = int(ENV("LOOK", "4"))
    ROT1 = 67 if not PROFILE else 101
    I(f"s_lshr_b32 s{ROT1}, s{HEAD}, 1")
    def xload(ks):
        I(f"s_add_u32 s{T0}, s{ROT1}, {ks}")
        I(f"s_and_b32 s{T0}, s{T0}, 15")
        I(f"s_lshl_b32 s{T0}, s{T0}, 10")
        I(f"s_add_u32 s{T0}, s{XB_}, s{T0}")
        I(f"s_addc_u32 s{T0+1}, s{XB_+1}, 0")
        for t in range(2):
            vm.issue(f"global_load_dwordx4 {ar(64+8*(ks % RING)+4*t,4)}, v{8+t}, {sp(T0)} sc1", f"x{ks}")
    def wbase1(ks):
        I(f"s_add_u32 s{T0}, s{ROT1}, {ks}")
        I(f"s_and_b32 s{T0}, s{T0}, 15")
        I(f"s_lshl_b32 s{T0}, s{T0}, 10")
        I(f"v_add_u32 v12, s{T0}, v10")
    def first_x():
        for ks in range(LOOK): xload(ks)
    hop_a(0)
    w_addr()
    def bg_loads():
        first_x()
        for l in stat_loads: vm.issue(l, "st")
    I("s_cmp_ge_u32 s2, 224")
    I(f"s_cbranch_scc1 {lab('fin_a')}")
    hop_b_issue(0)
    hop_b(0, role="s")
    slice1(0)
    slice2(0)
    bg_loads()
    I(f"s_branch {lab('q1_go')}")
    k.L(lab("fin_a"))
    vm.q = []
    bg_loads()
    k.L(lab("q1_go"))
    k.stamp(name="q1_ffn")
    wbase1(0)
    wreads(WB, 12, 0)
    wbase1(1)
    wreads(WB + 12, 12, 0)
    for ks in range(16):
        if ks + LOOK < 16: xload(ks + LOOK)
        if ks < 14:
            wbase1(ks + 2)
            wreads(WB + 12*((ks+2)%3), 12, 0)
        vm.wait(f"x{ks}", f" lgkmcnt({12 if ks < 14 else 6 if ks == 14 else 0})")
        qmfmas(WB + 12*(ks%3), ar(64+8*(ks % RING),4), ar(64+8*(ks % RING)+4,4), ks == 0)
    k.stamp(name="q1_loop")
    poll("ps", stat_loads, stat_tags, first_issued=True)
    own_stats()
    I("s_cmp_lt_u32 s2, 224")
    I(f"s_cbranch_scc1 {lab('fin_b')}")
    hop_b_issue(0, "f")
    hop_b(0, role="f")
    vm.drain()
    finalize(0)
    k.L(lab("fin_b"))
    k.stamp(name="q1_fin")
    I(f"s_lshr_b32 s{A0}, s{IDX}, 8")
    I(f"s_cmp_lg_u32 s{A0}, s{QB}")
    I(f"s_cbranch_scc1 {lab('nofix')}")
    F0, FX = 80, 64
    I(f"s_lshl_b32 s{A0}, s{WAVE}, 9")
    I(f"s_add_u32 s{A0}, s{A0}, {hex(X2R)}")
    I(f"v_lshl_add_u32 v12, v7, 7, s{A0}")
    I("v_bfe_u32 v13, v1, 4, 1")
    I("v_lshl_add_u32 v12, v13, 5, v12")
    poll("px", [f"global_load_dwordx3 {vr(F0+4*i,3)}, v12, {sp(WSP)} offset:{256*(i>>1)+16*(i&1)} sc1" for i in range(4)], [F0 + 4*i + 2 for i in range(4)])
    I(f"s_lshl_b32 s{A0}, s{WAVE}, 11")
    I(f"v_add_u32 v12, s{A0}, v10")
    for q in range(2): wreads(WB + 12*q, 12, q)
    for i in range(4):
        I(f"v_mov_b32 v{FX+2*i}, v{F0+4*i}")
        I(f"v_mov_b32 v{FX+2*i+1}, v{F0+4*i+1}")
    I("v_mov_b32 v14, 0"); I("v_mov_b32 v15, 0")
    for r in range(8):
        I(f"v_dot2_f32_bf16 v14, v{FX+r}, s{ONES}, v14")
        I(f"v_dot2_f32_bf16 v15, v{FX+r}, v{FX+r}, v15")
    I("s_waitcnt lgkmcnt(0)")
    for q in range(2):
        for sec in range(3): mfma16(F0 + 4*sec, vr(WB+12*q+4*sec,4), vr(FX+4*q,4), q == 0)
    rowreduce("v_add_f32", 14, 13)
    rowreduce("v_add_f32", 15, 13)
    I(f"s_lshl_b32 s{A0}, s{WAVE}, 8")
    I(f"s_add_u32 s{A0}, s{A0}, {LRD}")
    I("v_and_b32 v12, 48, v1")
    I(f"v_add_u32 v12, s{A0}, v12")
    I(f"v_mov_b32 v13, s{A0}")
    I("s_mov_b32 exec_lo, 0x00010001"); I("s_mov_b32 exec_hi, 0x00010001")
    for sec in range(3): I(f"ds_write_b128 v12, {vr(F0+4*sec,4)} offset:{64*sec}")
    I("ds_write_b64 v13, v[14:15] offset:192")
    exec_all()
    bar()
    I(f"s_lshr_b32 s{A0}, s{IDX}, 5")
    I(f"s_cmp_lg_u32 s{A0}, s{OT}")
    I(f"s_cbranch_scc1 {lab('nores')}")
    I(f"s_lshl_b32 s{A0}, s{KG}, 7")
    I(f"s_add_u32 s{A0}, s{A0}, {hex(X2R)}")
    I(f"v_lshl_add_u32 v14, v7, 4, s{A0}")
    I(f"v_cmp_eq_u32 vcc, s{IDX}, v{VTK}")
    I(f"s_and_saveexec_b64 {sp(T2)}, vcc")
    I(f"global_load_dwordx2 {vr(XG,2)}, v14, {sp(WSP)} sc1")
    I(f"global_load_dwordx2 {vr(XG+2,2)}, v14, {sp(WSP)} offset:32 sc1")
    I(f"v_mov_b32 v{RESR}, 0")
    exec_all()
    k.L(lab("nores"))
    I(f"s_lshr_b32 s{A0}, s{IDX}, 5")
    I(f"s_cmp_lg_u32 s{A0}, s{TT}")
    I(f"s_cbranch_scc1 {lab('nofix')}")
    sum8(LRD, LFX)
    I("v_and_b32 v12, 48, v1")
    I(f"v_add_u32 v12, {LFX}, v12")
    I(f"v_mov_b32 v13, {LFX + 192}")
    for sec in range(2): I(f"ds_read_b128 {vr(F0+4*sec,4)}, v12 offset:{64*sec}")
    I("ds_read_b64 v[64:65], v13")
    I("v_and_b32 v15, 15, v1")
    I("v_lshlrev_b32 v14, 2, v15")
    I(f"v_add_u32 v14, {LFX + 128}, v14")
    I("ds_read_b32 v66, v14")
    I(f"s_and_b32 s{A0}, s{IDX}, 31")
    I("v_lshrrev_b32 v13, 4, v1")
    I("v_lshlrev_b32 v13, 2, v13")
    I(f"v_sub_u32 v13, s{A0}, v13")
    I(f"v_sub_u32 v15, s{A0}, v15")
    I("s_waitcnt lgkmcnt(0)")
    rowstats(64, 65, 67, 68, 69)
    for t in range(2):
        I(f"v_cmp_eq_u32 vcc, {16*t}, v15")
        k.nop(2)
        I(f"v_cndmask_b32 v{MT[t]}, v{MT[t]}, v67, vcc")
        I(f"v_cndmask_b32 v{AT[t]}, v{AT[t]}, v69, vcc")
        for sec in range(2):
            for r in range(4): I(f"v_cndmask_b32 v{ACC+8*sec+4*t+r}, v{ACC+8*sec+4*t+r}, v{F0+4*sec+r}, vcc")
        for r in range(4):
            I(f"v_cmp_eq_u32 vcc, {16*t+r}, v13")
            k.nop(2)
            I(f"v_cndmask_b32 v{ACC+16+4*t+r}, v{ACC+16+4*t+r}, v66, vcc")
    k.L(lab("nofix"))
    vm.drain()
    k.stamp(name="q1_fix")
    bounce_params()
    q_epilogue(1)
    k.stamp(name="l1_qepi")
    attention(1)
    oproj(1)
    hop_a(1)
    hop_b_issue(1)
    X, Y = 96, 16
    for i in range(4): unpack(X + 2*i, X + 2*i + 1, XG + i)
    for r in range(8): I(f"v_sub_f32 v{Y+r}, v{X+r}, v{RESM}")
    for r in range(8): I(f"v_mul_f32 v{Y+r}, v{Y+r}, v{RESR}")
    for i in range(4): I(f"v_cvt_pk_bf16_f32 v{XG+i}, v{Y+2*i}, v{Y+2*i+1}")
    for i in range(4): unpack(Y + 2*i, Y + 2*i + 1, XG + i)
    for r in range(8): I(f"v_add_f32 v{X+r}, v{X+r}, v{Y+r}")
    for i in range(4): I(f"v_cvt_pk_bf16_f32 v{XG+i}, v{X+2*i}, v{X+2*i+1}")
    I(f"s_lshl_b32 s{A0}, s{KG}, 5")
    I(f"v_lshl_add_u32 v12, v7, 4, s{A0}")
    I(f"v_lshl_add_u32 v12, v{VTK}, 10, v12")
    I(f"v_permlane32_swap_b32 v{XG}, v{XG+2}")
    I(f"v_permlane32_swap_b32 v{XG+1}, v{XG+3}")
    hop_b(1)
    k.stamp(name="t_hopb")
    I(f"v_cmp_ne_u32 vcc, s{IDX}, v{VTK}")
    I(f"s_and_saveexec_b64 {sp(T2)}, vcc")
    vm.issue(f"global_store_dwordx4 v12, {vr(XG,4)}, {sp(OUTP)} {ENV('OUTF', '')}")
    exec_all()
    slice1(1)
    slice2(1)
    k.stamp(name="t_slice")
    finalize(1)
    I("s_cmp_lg_u32 s2, 0")
    I(f"s_cbranch_scc1 {lab('end')}")
    I(f"v_mov_b32 v12, {hex(NONCE)}")
    I(f"v_mov_b32 v13, s{TAG}")
    I("v_cmp_eq_u32 vcc, 0, v0")
    I(f"s_and_saveexec_b64 {sp(T2)}, vcc")
    I(f"s_cbranch_execz {lab('end')}")
    I(f"global_store_dword v12, v13, {sp(WSP)}")
    k.L(lab("end"))
    k.stamp_end(0)
    if ENV("DBGT"):
        I("s_load_dwordx2 s[4:5], s[0:1], 72")
        I("s_memrealtime s[6:7]")
        I("s_memtime s[8:9]")
        I("s_waitcnt lgkmcnt(0)")
        I("s_mov_b64 exec, 1")
        I("s_not_b32 s96, s96")
        I("s_sub_u32 s8, s8, s98")
        I("v_mov_b32 v1, 0"); I("v_mov_b32 v2, s96"); I("v_mov_b32 v3, s6"); I("v_mov_b32 v4, s8")
        I("global_atomic_umax v1, v2, s[4:5]")
        I("global_atomic_umax v1, v3, s[4:5] offset:4")
        I("global_atomic_umax v1, v4, s[4:5] offset:8")
    k.L(lab("exit"))
    I("s_endpgm")
    return k

if __name__ == "__main__":
    k = build_kernel()
    bad = check_hazards(k)
    for b in bad: print("HAZARD", b, file=sys.stderr)
    out = sys.argv[1] if len(sys.argv) > 1 else "cdna_kernels/" + NAME + ".s"
    txt = emit_file(HEADER, [k], single=(ENV("SINGLE", "0") == "1"))
    open(out, "w").write(txt)
    print("written", out, len(txt), "bytes; hazards:", len(bad))
```

```python
import sys, struct, os
from asmlib import *

NAME = "interleave_layers__softmax_full_mha__moe_arch_mod__prompt"
HEADER = open("cdna_kernels/" + NAME + ".s.ref").read().split("; Override launch")[0]
ENV = os.environ.get

XF = [0x000000, 0x200000]
KF = [0x400000, 0x800000]
VF = [0x600000, 0xA00000]
OF = [0xC00000, 0xE00000]
ST = [0x1000000, 0x1040000]
YP = [0x1080000, 0x1180000]
FLK = [0x1280000, 0x1288000]
FLO = [0x1290000, 0x1298000]
KEY = [0x12A4000, 0x12A6000]
X2R = 0x12A0000
NONCE = 0x12A2000
EPS = 1e-5
def f2u(x): return struct.unpack("<I", struct.pack("<f", x))[0]
QSCALE = 0.25 * 1.4426950408889634
LOG2E = 1.4426950408889634
SPIN_MAX = 1 << 18

CB, CBN = 131072, 20
LWQ = 8192
LST = CB + CBN * 512
LSA = LST
LPC = LST + 8192
LFX = LST + 8448
LVB = LST + 8704
LRD = LST + 10752
LFF = LST + 14848
LDS_BYTES = LFF + 1024

X0P, WQP, WOP, WSP, WRP, WGP, WUP, WDP, OUTP = 4, 6, 8, 10, 12, 14, 16, 18, 20
HEAD, QB, WAVE, TT, W1K, THR, CTR, SPIN, PASS, TAG, CG, TB, OA, KQ, OT, KG, IDX, WSUM = range(22, 40)
T0, T2 = 40, 42
A0 = 44
KB_, VB_, OB_, XB_ = 52, 54, 56, 58
RM, RR, RS_, ONES, C512, CEPS = 60, 61, 62, 63, 64, 65
CGP = 3

def sp(i): return f"s[{i}:{i+1}]"

class VM:
    def __init__(self, k): self.k = k; self.q = []
    def issue(self, txt, tag=None):
        self.k.I(txt); self.q.append(tag)
    def wait(self, tag, extra=""):
        i = max(j for j, t in enumerate(self.q) if t == tag)
        n = len(self.q) - 1 - i
        assert n <= 63
        self.k.I(f"s_waitcnt vmcnt({n}){extra}")
    def drain(self, extra=""):
        self.k.I(f"s_waitcnt vmcnt(0){extra}"); self.q = []

def build_kernel():
    k = Kern(NAME + "_kernel", 256, 512, LDS_BYTES, 128, nagpr=128)
    I = k.I
    vm = VM(k)
    def lab(x): return f"L_{x}"
    def sadd64(d, b, const):
        I(f"s_add_u32 s{d}, s{b}, {hex(const)}"); I(f"s_addc_u32 s{d+1}, s{b+1}, 0")
    def swapop(sw, op, x, t):
        I(f"v_mov_b32 v{t}, v{x}"); k.nop(2); I(f"{sw} v{x}, v{t}"); I(f"{op} v{x}, v{x}, v{t}")
    def halfsum(op, x, t): swapop("v_permlane32_swap_b32", op, x, t)
    def rowreduce(op, x, t):
        swapop("v_permlane16_swap_b32", op, x, t); swapop("v_permlane32_swap_b32", op, x, t)
    def dppred(op, x, modes):
        for m in modes:
            k.nop(2); I(f"{op}_dpp v{x}, v{x}, v{x} {m} row_mask:0xf bank_mask:0xf")
    Q4 = ("quad_perm:[1,0,3,2]", "quad_perm:[2,3,0,1]")
    def allreduce(op, x, t):
        dppred(op, x, Q4 + ("row_half_mirror", "row_mirror")); rowreduce(op, x, t)
    def unpack(dlo, dhi, src):
        I(f"v_lshlrev_b32 v{dlo}, 16, v{src}"); I(f"v_and_b32 v{dhi}, 0xffff0000, v{src}")
    def bf16r(x):
        I(f"v_cvt_pk_bf16_f32 v{x}, v{x}, v{x}"); I(f"v_and_b32 v{x}, 0xffff0000, v{x}")
    def exec_lo(mask):
        I(f"s_mov_b32 exec_lo, {mask}"); I("s_mov_b32 exec_hi, 0")
    def exec_all(): I("s_mov_b64 exec, -1")
    def bar(lg=True):
        if lg: I("s_waitcnt lgkmcnt(0)")
        I("s_barrier")
    def poll(name, loads, tagregs, first_issued=False):
        I(f"s_mov_b32 s{SPIN}, {SPIN_MAX}")
        SL = int(ENV("SLEEP", "0"))
        if first_issued: I(f"s_branch {lab(name+'_w')}")
        elif SL: I(f"s_branch {lab(name+'_l')}")
        k.L(lab(name))
        if SL: I(f"s_sleep {SL}")
        k.L(lab(name + "_l"))
        for l in loads: I(l)
        k.L(lab(name + "_w"))
        I("s_waitcnt vmcnt(0)")
        I(f"v_cmp_ne_u32 vcc, s{TAG}, v{tagregs[0]}")
        for r in tagregs[1:]:
            I(f"v_cmp_ne_u32 {sp(T2)}, s{TAG}, v{r}")
            I(f"s_or_b64 vcc, vcc, {sp(T2)}")
        I(f"s_sub_u32 s{SPIN}, s{SPIN}, 1")
        I(f"s_cbranch_vccz {lab(name+'_ok')}")
        I(f"s_cbranch_scc0 {lab(name)}")
        k.L(lab(name + "_ok"))
        k.stampval(SPIN, "x" + name + "_spin")
        k.stamp(name="x" + name + "_ok")
        vm.q = []
    def mfma(d, a_, b_, c): I(f"v_mfma_f32_32x32x16_bf16 {vr(d,16)}, {a_}, {b_}, {vr(c,16) if c is not None else 0}")
    def rowstats(s1, s2, m, var, rstd):
        I(f"v_mul_f32 v{m}, s{C512}, v{s1}")
        I(f"v_mul_f32 v{var}, s{C512}, v{s2}")
        I(f"v_fma_f32 v{var}, -v{m}, v{m}, v{var}")
        I(f"v_max_f32 v{var}, 0, v{var}")
        I(f"v_add_f32 v{rstd}, s{CEPS}, v{var}")
        I(f"v_rsq_f32 v{rstd}, v{rstd}")

    ACC, WB = 16, 40
    CQ, CV, MV, AL = 64, 72, 76, 84
    MT, AT = [112, 114], [113, 115]
    S0, S1, P0, P1, VA, NEG, O, Q, KB = 16, 32, 48, 52, [56, 64], 72, 88, 104, 108
    AK, AV, AVS, VBASE = 112, 113, 114, 115
    XG, WR, VXO, VTK, RESM, RESR = 116, 120, 124, 125, 126, 127
    TK, TV = 96, 100
    def mfma16(d, a_, b_, first): I(f"v_mfma_f32_16x16x32_bf16 {vr(d,4)}, {a_}, {b_}, {0 if first else vr(d,4)}")
    AWO, ARS, AWS, AGU, ADN = 0, 32, 88, 112, 120

    I("s_cmp_ge_u32 s2, 256")
    I(f"s_cbranch_scc1 {lab('exit')}")
    k.stamp_begin()
    if ENV("DBGT"):
        I("s_memrealtime s[96:97]")
        I("s_memtime s[98:99]")
    I(f"s_load_dwordx4 s[4:7], s[0:1], 0")
    I(f"s_load_dwordx2 s[8:9], s[0:1], 16")
    I(f"s_load_dwordx2 s[10:11], s[0:1], 80")
    I(f"s_load_dwordx8 s[12:19], s[0:1], 32")
    I(f"s_load_dwordx2 s[20:21], s[0:1], 64")
    I("v_and_b32 v1, 63, v0")
    I("v_lshrrev_b32 v2, 6, v0")
    I("v_lshlrev_b32 v3, 4, v1")
    I(f"v_readfirstlane_b32 s{WAVE}, v2")
    I(f"s_and_b32 s{QB}, s2, 7")
    I(f"s_lshr_b32 s{HEAD}, s2, 3")
    if ENV("HX"):
        I(f"s_cmp_lt_u32 s{HEAD}, 16")
        I(f"s_cselect_b32 s{A0}, 8, 0")
        I(f"s_xor_b32 s{HEAD}, s{HEAD}, s{A0}")
    I(f"s_lshl_b32 s{TT}, s{QB}, 3")
    I(f"s_add_u32 s{TT}, s{TT}, s{WAVE}")
    I(f"s_lshl_b32 s{W1K}, s{WAVE}, 10")
    I("v_bfe_u32 v5, v1, 1, 2")
    I("v_bfe_u32 v6, v1, 3, 1")
    I("v_lshl_add_u32 v5, v6, 3, v5")
    I("v_bfe_u32 v6, v1, 4, 1")
    I("v_lshl_add_u32 v5, v6, 2, v5")
    I("v_bfe_u32 v6, v1, 5, 1")
    I("v_lshl_add_u32 v5, v6, 4, v5")
    I("v_mul_u32_u24 v5, 3072, v5")
    I("v_and_b32 v6, 1, v1")
    I("v_lshl_add_u32 v5, v6, 4, v5")
    I(f"s_lshl_b32 s{A0+1}, s{HEAD}, 5")
    I(f"v_add_u32 v5, s{A0+1}, v5")
    I("v_lshrrev_b32 v8, 4, v1")
    I("v_and_b32 v9, 7, v1")
    I("v_xor_b32 v8, v8, v9")
    I("v_lshlrev_b32 v8, 4, v8")
    I("v_lshrrev_b32 v9, 3, v1")
    I("v_lshl_add_u32 v8, v9, 10, v8")
    I(f"s_lshl_b32 s{A0}, s{TT}, 15")
    I(f"v_add_u32 v8, s{A0}, v8")
    I("v_xor_b32 v9, 64, v8")
    I("v_add_u32 v9, 0x2000, v9")
    XB3 = [A0 + 3, A0 + 4, A0 + 5]
    for b_ in range(3):
        I(f"s_mul_i32 s{XB3[b_]}, s{WAVE}, 12288")
        I(f"s_add_u32 s{XB3[b_]}, s{XB3[b_]}, {56*1024 + 4096*b_}")
        if b_:
            I(f"s_cmp_eq_u32 s{WAVE}, 7")
            I(f"s_cselect_b32 s{XB3[b_]}, {4096*(b_-1)}, s{XB3[b_]}")
    ROT = A0 + 6
    I(f"s_and_b32 s{ROT}, s{HEAD}, 3")
    I("s_waitcnt lgkmcnt(0)")
    def xstage(st):
        I(f"s_add_u32 s{A0}, s{ROT}, {st//2}")
        I(f"s_and_b32 s{A0}, s{A0}, 3")
        I(f"s_lshl_b32 s{A0}, s{A0}, 8")
        if st & 1: I(f"s_add_u32 s{A0}, s{A0}, 128")
        I(f"s_add_u32 s{T0}, s{X0P}, s{A0}")
        I(f"s_addc_u32 s{T0+1}, s{X0P+1}, 0")
        for i in range(4):
            if i == 2: sadd64(T0, T0, 16384)
            I(f"s_add_u32 m0, s{XB3[st % 3]}, {i*1024}")
            I("s_nop 0")
            vm.issue(f"global_load_lds_dwordx4 v{8 + (i&1)}, {sp(T0)}", f"x{st}")
    def wdma(j):
        I(f"s_mul_i32 s{A0}, s{ROT}, 12")
        I(f"s_add_u32 s{A0}, s{A0}, s{WAVE}")
        I(f"s_add_u32 s{A0}, s{A0}, {8*j}")
        I(f"s_sub_u32 s{A0+1}, s{A0}, 48")
        I(f"s_cmp_ge_u32 s{A0}, 48")
        I(f"s_cselect_b32 s{A0}, s{A0+1}, s{A0}")
        I(f"s_mul_i32 s{A0+1}, s{A0}, 21846")
        I(f"s_lshr_b32 s{A0+1}, s{A0+1}, 16")
        I(f"s_mul_i32 s{A0+2}, s{A0+1}, 3")
        I(f"s_sub_u32 s{A0}, s{A0}, s{A0+2}")
        I(f"s_mul_i32 s{A0+2}, s{A0+1}, {32*3072}")
        I(f"s_lshl_b32 s{T0}, s{A0}, 10")
        I(f"s_add_u32 s{A0+2}, s{A0+2}, s{T0}")
        I(f"s_add_u32 s{T0}, s{WQP}, s{A0+2}")
        I(f"s_addc_u32 s{T0+1}, s{WQP+1}, 0")
        I(f"s_lshl_b32 s{A0}, s{A0}, 14")
        I(f"s_lshl_b32 s{A0+1}, s{A0+1}, 10")
        I(f"s_add_u32 s{A0}, s{A0}, s{A0+1}")
        I(f"s_add_u32 m0, s{A0}, {LWQ}")
        I("s_nop 0")
        vm.issue(f"global_load_lds_dwordx4 v5, {sp(T0)}", f"W{j}")
    if ENV("CPF", "0") == "1":
        I(f"s_cmp_lg_u32 s{WAVE}, 7")
        I(f"s_cbranch_scc1 {lab('nocpf')}")
        I(f"s_lshl_b32 s{A0}, s{HEAD}, 13")
        I(f"v_lshl_add_u32 v12, v1, 7, s{A0}")
        I(f"v_cmp_gt_u32 vcc, {lab('exit')}-{lab('pc0')}, v12")
        I(f"s_getpc_b64 {sp(T0)}")
        k.L(lab("pc0"))
        I(f"s_and_saveexec_b64 {sp(T2)}, vcc")
        I(f"s_cbranch_execz {lab('cpf2')}")
        I(f"global_load_dword v127, v12, {sp(T0)}")
        k.L(lab("cpf2"))
        exec_all()
        k.L(lab("nocpf"))
    if ENV("ALLUP"):
        for j in range(8):
            if j < 6 and ENV("ALLUP") != "x": wdma(j)
            if ENV("ALLUP") != "w": xstage(j)
        k.stamp(name="a_issue")
        I("s_waitcnt vmcnt(0)")
        k.stamp(name="a_done")
        I("s_barrier")
        k.stamp(name="a_bar")
        I(f"s_branch {lab('end')}")
    UPW = int(ENV("UPW", "4"))
    wdma(0); xstage(0); wdma(1); xstage(1); wdma(2); xstage(2)
    for j in range(3, UPW): wdma(j)
    sadd64(T2, WSP, NONCE)
    I(f"s_load_dword s{TAG}, {sp(T2)}, 0")
    I(f"s_lshr_b32 s{CG}, s{HEAD}, 2")
    I(f"s_and_b32 s{TB}, s{HEAD}, 3")
    I(f"s_lshl_b32 s{A0}, s{QB}, 2")
    I(f"s_add_u32 s{TB}, s{TB}, s{A0}")
    I(f"s_and_b32 s{OA}, s{WAVE}, 1")
    I(f"s_lshr_b32 s{KQ}, s{WAVE}, 1")
    I(f"s_lshl_b32 s{OT}, s{TB}, 1")
    I(f"s_add_u32 s{OT}, s{OT}, s{OA}")
    I(f"s_lshl_b32 s{KG}, s{CG}, 2")
    I(f"s_add_u32 s{KG}, s{KG}, s{KQ}")
    I(f"s_mul_i32 s{CGP}, s{QB}, 28")
    I(f"s_min_u32 s{A0}, s{HEAD}, 27")
    I(f"s_add_u32 s{CGP}, s{CGP}, s{A0}")
    I(f"s_mov_b32 s{THR}, {hex(f2u(2.0**30))}")
    I(f"s_mov_b32 s{ONES}, 0x3f803f80")
    I(f"s_mov_b32 s{C512}, {hex(f2u(1/512))}")
    I(f"s_mov_b32 s{CEPS}, {hex(f2u(EPS))}")
    def lane_terms():
        I("v_and_b32 v6, 31, v1")
        I("v_lshrrev_b32 v7, 5, v1")
    lane_terms()
    def w_addr():
        I("v_bfe_u32 v12, v1, 2, 2")
        I("v_lshl_add_u32 v12, v7, 4, v12")
        I("v_bfe_u32 v13, v1, 4, 1")
        I("v_lshl_add_u32 v12, v13, 2, v12")
        I("v_and_b32 v13, 3, v1")
        I("v_lshlrev_b32 v13, 3, v13")
        I("v_lshl_add_u32 v10, v12, 5, v13")
        I(f"v_add_u32 v10, {LWQ}, v10")
    w_addr()
    def wreads(dst, ad, ks):
        for sec in range(3):
            I(f"ds_read_b64_tr_b16 {vr(dst+4*sec,2)}, v{ad} offset:{sec*16384+ks*1024}")
            I(f"ds_read_b64_tr_b16 {vr(dst+4*sec+2,2)}, v{ad} offset:{sec*16384+ks*1024+256}")
    def qmfmas(wb, xa, xb, first, between=None):
        for i, (d, A_, B_) in enumerate(((ACC, vr(wb,4), xa), (ACC+4, vr(wb,4), xb), (ACC+8, vr(wb+4,4), xa),
                                         (ACC+12, vr(wb+4,4), xb), (ACC+16, xa, vr(wb+8,4)), (ACC+20, xb, vr(wb+8,4)))):
            mfma16(d, A_, B_, first)
            if between: between(i)
    I("v_bfe_u32 v12, v1, 1, 3")
    I("v_and_b32 v13, 15, v1")
    I("v_lshlrev_b32 v13, 7, v13")
    I("v_lshrrev_b32 v14, 4, v1")
    I("v_xor_b32 v14, v14, v12")
    I("v_lshl_add_u32 v2, v14, 4, v13")
    I("v_xor_b32 v4, 64, v2")
    def xfrags(st):
        I(f"v_add_u32 v14, s{XB3[st % 3]}, v2")
        I(f"v_add_u32 v15, s{XB3[st % 3]}, v4")
        vm.wait(f"x{st}")
        for h in range(2):
            for t in range(2): I(f"ds_read_b128 {ar(16*st+8*h+4*t,4)}, v{14+h} offset:{2048*t}")
    k.stamp(name="q0_issue")
    I("s_waitcnt lgkmcnt(0)")
    I(f"s_mul_i32 s{TAG}, s{TAG}, 0x9E3779B1")
    I(f"s_add_u32 s{TAG}, s{TAG}, 0x7F4A7C15")
    GU, ON = 76, 92
    for r in range(4): I(f"v_mov_b32 v{ON+r}, s{ONES}")
    xfrags(0)
    I("s_barrier")
    k.stamp(name="q0_W")
    CSA = 96
    def colsum_part(i):
        I(f"v_add_u32 v13, s{W1K}, v10")
        wreads(100, 13, 8*i)
        if i == 0:
            for sec in range(3): I(f"v_mov_b32 v{CSA+sec}, 0")
        I("s_waitcnt lgkmcnt(0)")
        for sec in range(3):
            for r in range(4): I(f"v_dot2_f32_bf16 v{CSA+sec}, v{100+4*sec+r}, s{ONES}, v{CSA+sec}")
        if i == 1:
            k.nop(2)
            for sec in range(3): rowreduce("v_add_f32", CSA + sec, 13)
            I(f"s_lshl_b32 s{A0}, s{WAVE}, 8")
            I(f"s_add_u32 s{A0}, s{A0}, {LRD}")
            I("v_and_b32 v13, 15, v1")
            I(f"v_lshl_add_u32 v13, v13, 2, s{A0}")
            for sec in range(3): I(f"ds_write_b32 v13, v{CSA+sec} offset:{64*sec}")
    def sum8(src, dst):
        I("v_lshlrev_b32 v13, 2, v1")
        I(f"v_add_u32 v14, {src}, v13")
        for w in range(8): I(f"ds_read_b32 v{104+w}, v14 offset:{256*w}")
        I(f"v_add_u32 v13, {dst}, v13")
        I("s_waitcnt lgkmcnt(0)")
        for a_, b_ in ((0,1),(2,3),(4,5),(6,7),(0,2),(4,6),(0,4)): I(f"v_add_f32 v{104+a_}, v{104+a_}, v{104+b_}")
        I("ds_write_b32 v13, v104")
    def wsave():
        I(f"s_mul_i32 s{A0}, s{WAVE}, 6144")
        I(f"s_add_u32 s{A0}, s{A0}, {LWQ}")
        I(f"v_add_u32 v13, s{A0}, v3")
        for i in range(6): I(f"ds_read_b128 {ar(AWS+4*i,4)}, v13 offset:{1024*i}")
    def wbase(q):
        I(f"s_add_u32 s{A0}, s{ROT}, {q}")
        I(f"s_and_b32 s{A0}, s{A0}, 3")
        I(f"s_lshl_b32 s{A0}, s{A0}, 12")
        I(f"v_add_u32 v11, s{A0}, v10")
    wbase(0)
    wreads(WB, 11, 0)
    wreads(WB + 12, 11, 1)
    ready = {2: 1, 5: 2, 8: 3, 10: 4, 13: 5}
    def stats0():
        I("v_and_b32 v13, 11, v0")
        I(f"v_mov_b32 v14, s{ONES}")
        I("v_cmp_eq_u32 vcc, 0, v13")
        I("v_lshlrev_b32 v13, 4, v0")
        I(f"v_add_u32 v13, {CB}, v13")
        I("v_cndmask_b32 v100, 0, v14, vcc")
        for r in range(1, 4): I(f"v_mov_b32 v{100+r}, v100")
        I("ds_write_b128 v13, v[100:103]")
        I(f"v_cmp_gt_u32 vcc, {(CBN*512 - 8192)//16}, v0")
        I(f"s_and_saveexec_b64 {sp(T2)}, vcc")
        I("ds_write_b128 v13, v[100:103] offset:8192")
        exec_all()
        I("v_lshrrev_b32 v12, 4, v1")
        I("v_lshlrev_b32 v12, 2, v12")
        I("v_and_b32 v13, 15, v1")
        I("v_sub_u32 v12, v13, v12")
        for t in range(2): I(f"v_mov_b32 v{ON+t}, 0")
        for r in range(4):
            I(f"v_cmp_eq_u32 vcc, {r}, v12")
            k.nop(2)
            for t in range(2): I(f"v_cndmask_b32 v{ON+t}, v{ON+t}, v{GU+4*t+r}, vcc")
        for t in range(2): rowreduce("v_add_f32", ON + t, 12)
        for t in range(2): rowstats(GU + 8 + 4*t, ON + t, MT[t], 12, AT[t])
    for ks in range(16):
        st = ks // 2
        pre = 0
        if ks % 2 == 0 and st + 1 < 8:
            xfrags(st + 1); pre = 4
        if ks + 2 in ready:
            vm.wait(f"W{ready[ks+2]}")
            I("s_barrier")
        if ks == 12:
            colsum_part(0); colsum_part(1); pre = -6
        if ks == 14:
            bar()
            sum8(LRD, LPC); wsave()
        if ks < 14:
            if (ks + 2) % 4 == 0: wbase((ks + 2)//4)
            wreads(WB + 12*((ks+2)%3), 11, (ks + 2) % 4)
            I(f"s_waitcnt lgkmcnt({min(15, 12 + pre) if ks % 2 == 0 else 12})")
        if ks == 0: xstage(3)
        if ks % 2 == 1 and st + 4 < 8: xstage(st + 4)
        if ks % 2 == 0 and UPW + ks//2 < 6: wdma(UPW + ks//2)
        xa, xb = ar(8*ks,4), ar(8*ks+4,4)
        mfma16(GU, xa, xa, ks == 0); mfma16(GU + 4, xb, xb, ks == 0)
        qmfmas(WB + 12*(ks%3), xa, xb, ks == 0)
        mfma16(GU + 8, vr(ON,4), xa, ks == 0); mfma16(GU + 12, vr(ON,4), xb, ks == 0)
    k.stamp(name="q0_loop")
    stats0()
    def bounce_params():
        I(f"s_lshl_b32 s{A0}, s{WAVE}, 8")
        I(f"s_add_u32 s{A0}, s{A0}, {LVB}")
        I("v_and_b32 v13, 15, v1")
        I(f"v_lshl_add_u32 v12, v13, 2, s{A0}")
        for t in range(2):
            I(f"ds_write_b32 v12, v{MT[t]} offset:{64*t}")
            I(f"ds_write_b32 v12, v{AT[t]} offset:{128+64*t}")
        I("v_and_b32 v14, 48, v1")
        I(f"v_add_u32 v12, s{A0}, v14")
        for t in range(2):
            I(f"ds_read_b128 {vr(MV+4*t,4)}, v12 offset:{64*t}")
            I(f"ds_read_b128 {vr(AL+4*t,4)}, v12 offset:{128+64*t}")
        I(f"v_add_u32 v12, {LPC}, v14")
        for sec in range(2): I(f"ds_read_b128 {vr(CQ+4*sec,4)}, v12 offset:{64*sec}")
        I("v_lshlrev_b32 v12, 2, v13")
        I(f"v_add_u32 v12, {LPC + 128}, v12")
        I(f"ds_read_b32 v{CV}, v12")
    bounce_params()

    def q_epilogue(L):
        n = f"l{L}"
        sadd64(KB_, WSP, KF[L]); sadd64(VB_, WSP, VF[L]); sadd64(OB_, WSP, OF[L])
        for t in range(2): I(f"v_mul_f32 v{13+t}, {hex(f2u(QSCALE))}, v{AT[t]}")
        I(f"s_lshl_b32 s{A0}, s{HEAD}, 16")
        I(f"s_lshl_b32 s{A0+1}, s{TT}, 10")
        I(f"s_add_u32 s{A0}, s{A0}, s{A0+1}")
        I(f"v_add_u32 v4, s{A0}, v3")
        I(f"v_add_u32 v15, s{W1K}, v3")
        I("v_add_u32 v5, 0x10000, v15")
        I("s_waitcnt lgkmcnt(0)")
        for sec in (1, 0):
            for t in range(2):
                for r in range(4): I(f"v_fma_f32 v{ACC+8*sec+4*t+r}, -v{MT[t]}, v{CQ+4*sec+r}, v{ACC+8*sec+4*t+r}")
            for t in range(2):
                for r in range(4): I(f"v_mul_f32 v{ACC+8*sec+4*t+r}, v{AT[t] if sec else 13+t}, v{ACC+8*sec+4*t+r}")
            d = TK if sec else Q
            for i in range(4): I(f"v_cvt_pk_bf16_f32 v{d+i}, v{ACC+8*sec+2*i}, v{ACC+8*sec+2*i+1}")
        for r in range(8): I(f"v_fma_f32 v{ACC+16+r}, -v{MV+r}, v{CV}, v{ACC+16+r}")
        I(f"v_permlane16_swap_b32 v{TK}, v{TK+2}")
        I(f"v_permlane16_swap_b32 v{TK+1}, v{TK+3}")
        for r in range(8): I(f"v_mul_f32 v{ACC+16+r}, v{AL+r}, v{ACC+16+r}")
        vm.issue(f"global_store_dwordx4 v4, {vr(TK,4)}, {sp(KB_)} sc1")
        I(f"ds_write_b128 v15, {vr(TK,4)}")
        for i in range(4): I(f"v_cvt_pk_bf16_f32 v{TV+i}, v{ACC+16+2*i}, v{ACC+16+2*i+1}")
        I(f"v_permlane16_swap_b32 v{Q}, v{Q+2}")
        I(f"v_permlane16_swap_b32 v{Q+1}, v{Q+3}")
        I(f"v_permlane32_swap_b32 v{TV}, v{TV+2}")
        I(f"v_permlane32_swap_b32 v{TV+1}, v{TV+3}")
        vm.issue(f"global_store_dwordx4 v4, {vr(TV,4)}, {sp(VB_)} sc1")
        I(f"ds_write_b128 v5, {vr(TV,4)}")
        I("v_and_b32 v8, 15, v1")
        I("v_bfe_u32 v9, v1, 4, 1")
        I("v_lshlrev_b32 v10, 4, v8")
        I("v_lshl_add_u32 v10, v7, 8, v10")
        I(f"v_lshl_add_u32 v{VBASE}, v9, 16, v10")
        I(f"v_add_u32 v{VBASE}, 0x10000, v{VBASE}")
        I("v_xor_b32 v9, 1, v9")
        I(f"v_lshlrev_b32 v{AVS}, 13, v9")
        I(f"s_mov_b32 s{PASS}, 0")
        I(f"s_lshl_b32 s{A0}, s{HEAD}, 10")
        I(f"s_add_u32 s{A0}, s{A0}, {hex(FLK[L])}")
        I(f"v_lshl_add_u32 v8, v1, 7, s{A0}")
        I(f"s_lshl_b32 s{A0+1}, s{QB}, 7")
        I(f"s_add_u32 s{A0}, s{A0}, s{A0+1}")
        I(f"v_mov_b32 v9, s{A0}")
        bar()

    def ffn_gu(m_):
        I(f"s_lshl_b32 s{A0+1}, s{CGP}, 4")
        I(f"v_mul_u32_u24 v14, 3584, v0")
        I(f"v_add_u32 v14, s{A0+1}, v14")
        vm.issue(f"global_load_dwordx4 {ar(AGU+4*m_,4)}, v14, {sp(WUP if m_ else WGP)}")
    def ffn_dn():
        I(f"s_lshl_b32 s{A0+1}, s{CGP}, 13")
        I(f"s_add_u32 s{A0+1}, s{A0+1}, s{W1K}")
        I(f"v_add_u32 v14, s{A0+1}, v3")
        vm.issue(f"global_load_dwordx4 {ar(ADN,4)}, v14, {sp(WDP)}")
    def attention(L):
        n = f"l{L}"
        I(f"ds_read_b128 {vr(KB,4)}, v3")
        I("s_waitcnt lgkmcnt(0)")
        mfma(S0, vr(KB,4), vr(Q,4), None)
        k.nop(12)
        def max16(dst, S, first):
            if first:
                I(f"v_max3_f32 v{dst}, v{S}, v{S+1}, v{S+2}"); rest = list(range(3, 16))
            else: rest = list(range(16))
            while rest:
                if len(rest) >= 2:
                    I(f"v_max3_f32 v{dst}, v{dst}, v{S+rest[0]}, v{S+rest[1]}"); rest = rest[2:]
                else:
                    I(f"v_max_f32 v{dst}, v{dst}, v{S+rest[0]}"); rest = rest[1:]
        max16(2, S0, True)
        def prime():
            I(f"ds_read_b128 {vr(KB,4)}, v{AK}")
            I(f"ds_read_b128 {vr(VA[0],4)}, v{AV}")
            I(f"ds_read_b128 {vr(VA[0]+4,4)}, v{AV} offset:512")
            I("s_waitcnt lgkmcnt(0)")
            mfma(S0, vr(KB,4), vr(Q,4), NEG)
            I(f"ds_read_b128 {vr(KB,4)}, v{AK} offset:1024")
            k.nop(11)
        def setup():
            halfsum("v_max_f32", 2, 7)
            for r in range(16): I(f"v_sub_f32 v{NEG+r}, 0, v2")
            I(f"v_mov_b32 v{AK}, v3")
            I(f"v_mov_b32 v{AV}, v{VBASE}")
            for r in range(16): I(f"v_mov_b32 v{O+r}, 0")
            for r in range(4): I(f"v_mov_b32 v{P1+r}, 0")
            for r in range(4): I(f"v_mov_b32 v{VA[1]+4+r}, 0")
            prime()
        def tile(u, extra=None, nokread=False, noqk=False, novread=False):
            extra = extra or {}
            if "p" in extra: I(f"s_setprio {extra['p']}")
            Sc, Sn = (S0, S1) if u % 2 == 0 else (S1, S0)
            Vc, Vo = VA[u % 2], VA[1 - u % 2]
            E = lambda r: I(f"v_exp_f32 v{Sc+r}, v{Sc+r}")
            Cv = lambda P, r, b: I(f"v_cvt_pk_bf16_f32 v{P+r}, v{Sc+b+2*r}, v{Sc+b+2*r+1}")
            E(0); E(1)
            mfma(O, vr(Vo+4,4), vr(P1,4), O)
            if 0 in extra: extra[0]()
            E(2); E(3); E(4)
            I("s_waitcnt lgkmcnt(0)")
            E(5)
            if not noqk: mfma(Sn, vr(KB,4), vr(Q,4), NEG)
            E(6)
            if not nokread: I(f"ds_read_b128 {vr(KB,4)}, v{AK} offset:{(u+2)*1024}")
            E(7)
            if not novread: I(f"ds_read_b128 {vr(Vo,4)}, v{AV} offset:{(u+1)*1024}")
            for r in range(4): Cv(P0, r, 0)
            E(8)
            if not novread: I(f"ds_read_b128 {vr(Vo+4,4)}, v{AV} offset:{(u+1)*1024+512}")
            E(9)
            mfma(O, vr(Vc,4), vr(P0,4), O)
            if 1 in extra: extra[1]()
            for r in range(10, 16): E(r)
            for r in range(4): Cv(P1, r, 8)
        def bump():
            I(f"v_add_u32 v{AK}, 0x2000, v{AK}")
            I(f"v_add_u32 v{AV}, v{AVS}, v{AV}")
        setup()
        k.stamp(name=f"x{n}_setup")
        I("s_setprio 3")
        def publish_kv():
            vm.drain()
            I("s_barrier")
            I(f"s_cmp_lg_u32 s{WAVE}, 0")
            I(f"s_cbranch_scc1 {lab(n+'_noflag')}")
            I(f"v_mov_b32 v14, s{TAG}")
            I("s_mov_b64 exec, 1")
            I(f"global_store_dword v9, v14, {sp(WSP)} sc1")
            exec_all()
            k.L(lab(n + "_noflag"))
        pl = f"global_load_dword v14, v8, {sp(WSP)} sc1"
        def poll_issue():
            I("s_mov_b64 exec, 0xff"); I(pl); exec_all()
        def poll_check():
            I("s_mov_b64 exec, 0xff")
            if L == 1:
                I(f"s_lshr_b32 s{A0}, s{IDX}, 8")
                I(f"s_bitset0_b32 exec_lo, s{A0}")
            poll(n + "_pk", [pl], [14], first_issued=True)
            exec_all()
        def stg(sl): return ARS + 8*(sl-1) if L == 0 else 64 + 8*((sl-1) % 6)
        def rload(sl):
            if L == 1:
                I(f"s_lshr_b32 s{A0+1}, s{IDX}, 8")
                I(f"s_sub_u32 s{A0+1}, s{A0+1}, s{QB}")
                I(f"s_and_b32 s{A0+1}, s{A0+1}, 7")
                if sl == 7:
                    I(f"s_cmp_eq_u32 s{A0+1}, 0")
                    I(f"s_cselect_b32 s{A0}, 7, s{A0+1}")
                    I("s_mov_b64 exec, 0xff")
                    poll(n + "_pk7", [pl], [14], first_issued=True)
                    exec_all()
                else:
                    I(f"s_sub_u32 s{A0+1}, s{A0+1}, 1")
                    I(f"s_cmp_lt_u32 s{A0+1}, {sl}")
                    I(f"s_cselect_b32 s{A0}, {sl+1}, {sl}")
                I(f"s_add_u32 s{A0}, s{QB}, s{A0}")
            else:
                I(f"s_add_u32 s{A0}, s{QB}, {sl}")
            I(f"s_and_b32 s{A0}, s{A0}, 7")
            I(f"s_sub_u32 s{A0}, s{A0}, s{QB}")
            I(f"s_lshl_b32 s{A0}, s{A0}, 13")
            I(f"v_add_u32 v13, s{A0}, v4")
            vm.issue(f"global_load_dwordx4 {ar(stg(sl),4)}, v13, {sp(KB_)} sc1", f"r{sl}")
            vm.issue(f"global_load_dwordx4 {ar(stg(sl)+4,4)}, v13, {sp(VB_)} sc1", f"r{sl}")
        def rwrite(sl):
            if f"r{sl}" in vm.q: vm.wait(f"r{sl}")
            I(f"ds_write_b128 v15, {ar(stg(sl),4)} offset:{sl*8192}")
            I(f"ds_write_b128 v5, {ar(stg(sl)+4,4)} offset:{sl*8192}")
        PUB, PI, PC = [int(x) for x in ENV("POLL", "1,4,5").split(",")]
        PR = {}
        if ENV("PBAL", "1") == "1":
            PR = {4: 2, 6: 1, 7: 0, 8: 3, 11: 2, 12: 1, 13: 0, 14: 3, 18: 2, 20: 1, 21: 0, 22: 3, 30: 2, 34: 1, 36: 0, 38: 3}
        for u in range(8):
            ex = {}
            if u == PUB: ex[0] = publish_kv
            if u == PI: ex[0] = poll_issue
            if u == PC: ex[0] = lambda: (poll_check(), rload(1), rload(2))
            if u in PR: ex["p"] = PR[u]
            tile(u, ex, nokread=(u >= 6), noqk=(u == 7), novread=(u == 7))
        bump()
        k.stamp(name=f"x{n}_ch0a")
        rwrite(1)
        bar()
        k.stamp(name=n + "_c0")
        prime()
        def wo_addr():
            I(f"s_lshl_b32 s{A0}, s{WAVE}, 16")
            I(f"s_lshl_b32 s{A0+1}, s{CG}, 7")
            I(f"s_add_u32 s{A0}, s{A0}, s{A0+1}")
            I("v_lshrrev_b32 v2, 3, v1")
            I(f"v_lshl_add_u32 v2, v2, 10, s{A0}")
            I("v_and_b32 v14, 7, v1")
            I("v_lshl_add_u32 v2, v14, 4, v2")
        def wo_load(i):
            vm.issue(f"global_load_dwordx4 {ar(AWO+4*i,4)}, v2, {sp(WOP)}", "wo")
            if i < 7: I("v_add_u32 v2, 0x2000, v2")
        def misc_loads():
            I(f"s_lshl_b32 s{A0}, s{KG}, 9")
            I(f"s_lshl_b32 s{A0+1}, s{OT}, 15")
            I(f"s_add_u32 s{A0}, s{A0}, s{A0+1}")
            I("v_and_b32 v10, 15, v1")
            I(f"v_lshl_add_u32 v{VXO}, v10, 4, s{A0}")
            I("v_lshrrev_b32 v10, 5, v1")
            I(f"v_lshl_add_u32 v{VXO}, v10, 8, v{VXO}")
            I("v_bfe_u32 v10, v1, 4, 1")
            I(f"v_lshl_add_u32 v{VXO}, v10, 14, v{VXO}")
            I("v_and_b32 v10, 31, v1")
            I(f"s_lshl_b32 s{A0}, s{OT}, 5")
            I(f"v_add_u32 v{VTK}, s{A0}, v10")
            I("v_lshrrev_b32 v10, 5, v1")
            I(f"s_lshl_b32 s{A0}, s{KG}, 5")
            I(f"v_lshl_add_u32 v14, v10, 3, s{A0}")
            vm.issue(f"global_load_dwordx2 {vr(WR,2)}, v14, {sp(WRP)}")
            vm.issue(f"global_load_dwordx2 {vr(WR+2,2)}, v14, {sp(WRP)} offset:16")
            I(f"v_lshl_add_u32 v14, v{VTK}, 10, v14")
            vm.issue(f"global_load_dwordx2 {vr(XG,2)}, v14, {sp(X0P)}")
            vm.issue(f"global_load_dwordx2 {vr(XG+2,2)}, v14, {sp(X0P)} offset:16")
        sched = {
            1: {(0,0): lambda: rload(3), (3,0): lambda: rload(4), (4,0): lambda: rwrite(2), (6,0): bar},
            2: {(0,0): lambda: rload(5), (3,0): lambda: rload(6), (4,0): lambda: rwrite(3), (5,0): lambda: rwrite(4), (6,0): bar},
            3: {(0,0): lambda: rload(7)},
            4: {(0,0): lambda: rwrite(5), (1,0): lambda: rwrite(6), (2,0): lambda: rwrite(7), (6,0): bar},
        }
        def touches():
            I(f"s_cmp_ge_u32 s{WAVE}, 5")
            I(f"s_cbranch_scc1 {lab('t_done')}")
            I(f"s_cmp_ge_u32 s{WAVE}, 2")
            I(f"s_cbranch_scc1 {lab('t_lin')}")
            I(f"s_mul_i32 s{A0}, s{QB}, 7")
            I(f"s_lshr_b32 s{A0}, s{A0}, 1")
            I(f"s_lshl_b32 s{A0}, s{A0}, 7")
            I(f"s_mul_i32 s{A0+1}, s{HEAD}, {16*3584}")
            I(f"s_add_u32 s{A0}, s{A0}, s{A0+1}")
            I("v_lshrrev_b32 v14, 2, v1")
            I("v_mul_u32_u24 v14, 3584, v14")
            I("v_and_b32 v10, 3, v1")
            I("v_lshl_add_u32 v14, v10, 7, v14")
            I(f"v_add_u32 v14, s{A0}, v14")
            I(f"s_cmp_eq_u32 s{WAVE}, 0")
            I(f"s_cselect_b32 s{T0}, s{WGP}, s{WUP}")
            I(f"s_cselect_b32 s{T0+1}, s{WGP+1}, s{WUP+1}")
            I(f"s_branch {lab('t_go')}")
            k.L(lab("t_lin"))
            I(f"s_lshl_b32 s{A0}, s{CGP}, 13")
            I(f"s_lshl_b32 s{A0+1}, s{HEAD}, 14")
            I(f"s_and_b32 s{A0+2}, s{WAVE}, 1")
            I(f"s_lshl_b32 s{A0+2}, s{A0+2}, 13")
            I(f"s_add_u32 s{A0+1}, s{A0+1}, s{A0+2}")
            I(f"s_cmp_eq_u32 s{WAVE}, 2")
            I(f"s_cselect_b32 s{A0}, s{A0}, s{A0+1}")
            I(f"s_cselect_b32 s{T0}, s{WDP}, s{WOP}")
            I(f"s_cselect_b32 s{T0+1}, s{WDP+1}, s{WOP+1}")
            I(f"v_lshl_add_u32 v14, v1, 7, s{A0}")
            k.L(lab("t_go"))
            I(f"global_load_dword v11, v14, {sp(T0)}")
            k.L(lab("t_done"))
        NU = 5
        if L == 0:
            NU = 6
            sched[2][(6,1)] = touches
            sched[3][(3,0)] = wo_addr
            for i in range(4): sched[3][(4 + i, 0)] = (lambda i=i: wo_load(i))
            for i, u in enumerate((3, 4, 5, 7)): sched[4][(u, 0)] = (lambda i=i: wo_load(4 + i))
            sched[5] = {(0,0): lambda: ffn_gu(0), (2,0): misc_loads, (4,0): lambda: ffn_gu(1), (6,0): ffn_dn}
            PR[40] = 3
        else:
            sched[2][(7,0)] = poll_issue
        for c in range(1, NU):
            for u in range(8):
                ex = {sl: f for (uu, sl), f in sched[c].items() if uu == u}
                if 8*c + u in PR: ex["p"] = PR[8*c + u]
                tile(u, ex)
            bump()
            k.stamp(name=f"x{n}_ch{c}")
        I(f"s_mov_b32 s{CTR}, {NU}")
        k.lines.append(".p2align 6")
        k.L(lab(n + "_loop"))
        if ENV("PEND", "1") == "0":
            I(f"s_cmp_lt_u32 s{CTR}, 5"); I(f"s_cbranch_scc1 {lab(n+'_pd')}")
            I("s_setprio 2")
            I(f"s_cmp_lt_u32 s{CTR}, 6"); I(f"s_cbranch_scc1 {lab(n+'_pd')}")
            I("s_setprio 1")
            I(f"s_cmp_lt_u32 s{CTR}, 7"); I(f"s_cbranch_scc1 {lab(n+'_pd')}")
            I("s_setprio 0")
            k.L(lab(n + "_pd"))
            for u in range(8): tile(u)
        else:
            I(f"s_cmp_lt_u32 s{CTR}, 6"); I(f"s_cbranch_scc1 {lab(n+'_pd')}")
            I("s_setprio 2")
            I(f"s_cmp_lt_u32 s{CTR}, 7"); I(f"s_cbranch_scc1 {lab(n+'_pd')}")
            I("s_setprio 1")
            k.L(lab(n + "_pd"))
            for u in range(8):
                if u == 5:
                    I(f"s_cmp_lt_u32 s{CTR}, 7"); I(f"s_cbranch_scc1 {lab(n+'_pe')}")
                    I("s_setprio 0")
                    k.L(lab(n + "_pe"))
                tile(u)
        bump()
        I(f"s_add_u32 s{CTR}, s{CTR}, 1")
        I(f"s_cmp_lt_u32 s{CTR}, 8")
        I(f"s_cbranch_scc1 {lab(n+'_loop')}")
        mfma(O, vr(VA[1]+4,4), vr(P1,4), O)
        I("s_waitcnt lgkmcnt(0)")
        k.stamp(name=n + "_attn")
        k.nop(12)
        I(f"s_cmp_lg_u32 s{PASS}, 0")
        I(f"s_cbranch_scc1 {lab(n+'_fin')}")
        I(f"v_cmp_nge_f32 vcc, s{THR}, v{O+8}")
        k.nop(2)
        I(f"s_cbranch_vccz {lab(n+'_fin')}")
        I(f"s_mov_b32 s{PASS}, 1")
        I(f"v_mov_b32 v{AK}, v3")
        I("v_mov_b32 v2, 0xff800000")
        I(f"s_mov_b32 s{CTR}, 0")
        k.L(lab(n + "_maxloop"))
        I(f"ds_read_b128 {vr(KB,4)}, v{AK}")
        I("s_waitcnt lgkmcnt(0)")
        mfma(S0, vr(KB,4), vr(Q,4), None)
        I(f"v_add_u32 v{AK}, 0x400, v{AK}")
        k.nop(12)
        max16(2, S0, False)
        I(f"s_add_u32 s{CTR}, s{CTR}, 1")
        I(f"s_cmp_lt_u32 s{CTR}, 64")
        I(f"s_cbranch_scc1 {lab(n+'_maxloop')}")
        setup()
        I(f"s_mov_b32 s{CTR}, 0")
        I(f"s_branch {lab(n+'_loop')}")
        k.L(lab(n + "_fin"))
        I(f"v_rcp_f32 v2, v{O+8}")
        I("s_nop 0")
        for r in range(8): I(f"v_mul_f32 v{O+r}, v{O+r}, v2")
        for r in range(4): I(f"v_cvt_pk_bf16_f32 v{P0+r}, v{O+2*r}, v{O+2*r+1}")
        I(f"global_store_dwordx4 v4, {vr(P0,4)}, {sp(OB_)} sc1")

    def oproj(L):
        n = f"l{L}"
        OBf, AC, X, Y = 64, 32, 96, 16
        lane_terms()
        I(f"s_lshl_b32 s{A0}, s{KQ}, 19")
        I(f"s_lshl_b32 s{A0+1}, s{OT}, 10")
        I(f"s_add_u32 s{A0}, s{A0}, s{A0+1}")
        I(f"v_add_u32 v10, s{A0}, v3")
        I(f"s_lshl_b32 s{A0}, s{WAVE}, 13")
        I(f"s_add_u32 s{A0}, s{A0}, 0x10000")
        I(f"v_add_u32 v12, s{A0}, v3")
        vm.drain()
        I("s_barrier")
        k.stamp(name=n + "_odrain")
        I(f"s_cmp_lg_u32 s{WAVE}, 0")
        I(f"s_cbranch_scc1 {lab(n+'_nof')}")
        I(f"s_lshl_b32 s{A0}, s{QB}, 12")
        I(f"s_add_u32 s{A0}, s{A0}, {hex(FLO[L])}")
        I(f"v_lshl_add_u32 v8, v6, 7, s{A0}")
        I(f"s_lshl_b32 s{A0+1}, s{HEAD}, 7")
        I(f"s_add_u32 s{A0}, s{A0}, s{A0+1}")
        I(f"v_mov_b32 v13, s{A0}")
        I(f"v_mov_b32 v14, s{TAG}")
        I("s_mov_b64 exec, 1")
        I(f"global_store_dword v13, v14, {sp(WSP)} sc1")
        exec_all()
        k.L(lab(n + "_nof"))
        if L == 0:
            for i in range(8): I(f"ds_write_b128 v12, {ar(AWO+4*i,4)} offset:{1024*i}")
            I(f"global_load_dwordx4 v[16:19], v3, {sp(WRP)}")
            I(f"s_lshl_b32 s{A0}, s{WAVE}, 11")
            I(f"v_lshl_add_u32 v13, v1, 5, s{A0}")
            I(f"ds_write_b128 v13, {ar(AGU,4)}")
            I(f"ds_write_b128 v13, {ar(AGU+4,4)} offset:16")
            I(f"v_add_u32 v13, s{W1K}, v3")
            I(f"ds_write_b128 v13, {ar(ADN,4)} offset:16384")
            I("v_bfe_u32 v13, v1, 2, 2")
            I("v_and_b32 v14, 3, v1")
            I("v_lshl_add_u32 v12, v7, 2, v13")
            I("v_lshlrev_b32 v12, 7, v12")
            I("v_lshl_add_u32 v12, v14, 3, v12")
            I("v_bfe_u32 v15, v1, 4, 1")
            I("v_lshl_add_u32 v12, v15, 5, v12")
            I(f"s_lshl_b32 s{A0+1}, s{KQ}, 14")
            I(f"s_add_u32 s{A0+1}, s{A0+1}, 0x10000")
            I(f"v_add_u32 v12, s{A0+1}, v12")
            bar()
            for i in range(8):
                for b in range(2):
                    I(f"ds_read_b64_tr_b16 {ar(AWO+8*i+4*b,2)}, v12 offset:{2048*i+64*b}")
                    I(f"ds_read_b64_tr_b16 {ar(AWO+8*i+4*b+2,2)}, v12 offset:{2048*i+64*b+1024}")
                if i % 2 == 1: I("s_waitcnt lgkmcnt(0)")
            I("v_lshrrev_b32 v15, 4, v1")
            I("v_lshl_add_u32 v13, v15, 3, v13")
            I("v_lshlrev_b32 v13, 5, v13")
            I("v_lshl_add_u32 v13, v14, 3, v13")
            I(f"v_add_u32 v13, s{A0}, v13")
            for i in range(2):
                I(f"ds_read_b64_tr_b16 {ar(AGU+4*i,2)}, v13 offset:{1024*i}")
                I(f"ds_read_b64_tr_b16 {ar(AGU+4*i+2,2)}, v13 offset:{1024*i+128}")
            I("v_lshlrev_b32 v13, 1, v0")
            for f in range(8): I(f"ds_read_u16 a{ADN+f}, v13 offset:{16384+1024*f}")
            I("v_mov_b32 v20, 0")
            I("s_waitcnt vmcnt(0)")
            for r in range(4): I(f"v_dot2_f32_bf16 v20, v{16+r}, s{ONES}, v20")
            k.nop(1)
            allreduce("v_add_f32", 20, 21)
            I("s_nop 0")
            I(f"v_readfirstlane_b32 s{WSUM}, v20")
        I(f"s_cmp_lg_u32 s{WAVE}, 0")
        I(f"s_cbranch_scc1 {lab(n+'_owait')}")
        exec_lo(-1)
        poll(n + "_po", [f"global_load_dword v14, v8, {sp(WSP)} sc1"], [14])
        exec_all()
        k.L(lab(n + "_owait"))
        bar()
        k.stamp(name=n + "_opoll")
        for i in range(8):
            I(f"global_load_dwordx4 {vr(OBf+4*i,4)}, v10, {sp(OB_)} sc1")
            if i < 7: I("v_add_u32 v10, 0x10000, v10")
        NF = 0
        I(f"s_lshl_b32 s{A0}, s{OA}, 15")
        I(f"s_lshl_b32 s{A0+1}, s{KQ}, 11")
        I(f"s_add_u32 s{A0+1}, s{A0+1}, s{A0}")
        I(f"v_add_u32 v9, s{A0+1}, v3")
        I(f"s_lshl_b32 s{A0+1}, s{KQ}, 13")
        I(f"s_add_u32 s{A0+1}, s{A0+1}, s{A0}")
        I(f"v_add_u32 v8, s{A0+1}, v3")
        for i in range(4): unpack(X + 2*i, X + 2*i + 1, XG + i)
        if L == 1:
            for r in range(8): I(f"v_sub_f32 v{Y+r}, v{X+r}, v{RESM}")
            for r in range(8): I(f"v_mul_f32 v{Y+r}, v{Y+r}, v{RESR}")
            for i in range(4): I(f"v_cvt_pk_bf16_f32 v{XG+i}, v{Y+2*i}, v{Y+2*i+1}")
            for i in range(4): unpack(Y + 2*i, Y + 2*i + 1, XG + i)
            for r in range(8): I(f"v_add_f32 v{X+r}, v{X+r}, v{Y+r}")
            for i in range(4): I(f"v_cvt_pk_bf16_f32 v{XG+i}, v{X+2*i}, v{X+2*i+1}")
            for i in range(4): unpack(X + 2*i, X + 2*i + 1, XG + i)
        for i in range(4): unpack(104 + 2*i, 105 + 2*i, WR + i)
        for i in range(8):
            I(f"s_waitcnt vmcnt({7-i+NF})")
            for b in range(2): mfma(AC + 16*b, ar(AWO+8*i+4*b,4), vr(OBf+4*i,4), AC + 16*b if i else None)
        k.stamp(name=n + "_omm")
        k.nop(12)
        for q in range(4):
            for hf in range(2): I(f"ds_write_b128 v9, {vr(AC+8*q+4*hf,4)} offset:{8192*q+1024*hf}")
        bar()
        k.stamp(name="x" + n + "_red")
        for s_ in range(4):
            for hf in range(2): I(f"ds_read_b128 {vr(AC+8*s_+4*hf,4)}, v8 offset:{2048*s_+1024*hf}")
        sadd64(XB_, WSP, XF[L])
        I("s_waitcnt lgkmcnt(0)")
        for r in range(8):
            I(f"v_add_f32 v{AC+r}, v{AC+r}, v{AC+8+r}")
            I(f"v_add_f32 v{AC+16+r}, v{AC+16+r}, v{AC+24+r}")
        for r in range(8): I(f"v_add_f32 v{AC+r}, v{AC+r}, v{AC+16+r}")
        for i in range(4): I(f"v_cvt_pk_bf16_f32 v{XG+i}, v{AC+2*i}, v{AC+2*i+1}")
        for i in range(4): unpack(Y + 2*i, Y + 2*i + 1, XG + i)
        for r in range(8): I(f"v_add_f32 v{X+r}, v{X+r}, v{Y+r}")
        for i in range(4): I(f"v_cvt_pk_bf16_f32 v{XG+i}, v{X+2*i}, v{X+2*i+1}")
        for i in range(4): I(f"v_mov_b32 v{24+i}, v{XG+i}")
        k.nop(1)
        I("v_permlane32_swap_b32 v24, v26")
        I("v_permlane32_swap_b32 v25, v27")
        I(f"global_store_dwordx4 v{VXO}, v[24:27], {sp(XB_)} sc1")
        for i in range(4): unpack(X + 2*i, X + 2*i + 1, XG + i)
        I(f"v_add_f32 v16, v{X}, v{X+1}")
        I(f"v_mul_f32 v17, v{X}, v{X}")
        I(f"v_mul_f32 v18, v{X}, v104")
        for r in range(1, 8):
            if r > 1: I(f"v_add_f32 v16, v16, v{X+r}")
            I(f"v_fmac_f32 v17, v{X+r}, v{X+r}")
            I(f"v_fmac_f32 v18, v{X+r}, v{104+r}")
        I(f"s_lshl_b32 s{A0}, s{OA}, 12")
        I(f"s_lshl_b32 s{A0+1}, s{KQ}, 10")
        I(f"s_add_u32 s{A0}, s{A0}, s{A0+1}")
        I(f"s_add_u32 s{A0}, s{A0}, {LSA}")
        I(f"v_add_u32 v13, s{A0}, v3")
        I("ds_write_b96 v13, v[16:18]")
        k.stamp(name="x" + n + "_epi")
        I("s_waitcnt vmcnt(0) lgkmcnt(0)")
        k.stamp(name="x" + n + "_xdrain")
        I("s_waitcnt vmcnt(0) lgkmcnt(0)")
        I("s_barrier")
        I(f"s_cmp_lg_u32 s{WAVE}, 0")
        I(f"s_cbranch_scc1 {lab(n+'_nost')}")
        I("v_lshlrev_b32 v13, 4, v6")
        I("v_lshl_add_u32 v13, v7, 12, v13")
        I(f"v_add_u32 v13, {LSA}, v13")
        for j in range(8): I(f"ds_read_b96 {vr(32+4*j,3)}, v13 offset:{512*j}")
        I(f"s_lshl_b32 s{A0}, s{TB}, 3")
        I(f"s_add_u32 s{A0}, s{A0}, s{CG}")
        I(f"s_lshl_b32 s{A0}, s{A0}, 10")
        I(f"s_add_u32 s{A0}, s{A0}, {hex(ST[L])}")
        I(f"v_add_u32 v13, s{A0}, v3")
        I(f"v_mov_b32 v35, s{TAG}")
        I("s_waitcnt lgkmcnt(0)")
        for j in range(1, 8):
            for c in range(3): I(f"v_add_f32 v{32+c}, v{32+c}, v{32+4*j+c}")
        I(f"global_store_dwordx4 v13, v[32:35], {sp(WSP)} sc1")
        k.L(lab(n + "_nost"))
        k.stamp(name=n + "_stpub")

    def hop_a(L, after_poll=None):
        n = f"l{L}"
        I(f"s_lshl_b32 s{A0}, s{TB}, 13")
        I(f"s_add_u32 s{A0}, s{A0}, {hex(ST[L])}")
        I(f"v_lshl_add_u32 v12, v0, 4, s{A0}")
        loads = [f"global_load_dwordx4 v[32:35], v12, {sp(WSP)} sc1"]; tags = [35]
        if L == 0:
            I(f"s_lshr_b32 s{A0}, s{TT}, 1")
            I(f"s_lshl_b32 s{A0}, s{A0}, 13")
            I(f"s_add_u32 s{A0}, s{A0}, {hex(ST[L] + 12)}")
            I("v_and_b32 v13, 7, v1")
            I(f"v_lshl_add_u32 v13, v13, 10, s{A0}")
            loads.append(f"global_load_dword v36, v13, {sp(WSP)} sc1"); tags.append(36)
        poll(n + "_pa", loads, tags)
        I("v_lshlrev_b32 v13, 4, v0")
        I("ds_write_b96 v13, v[32:34]")
        if after_poll: after_poll()
        I(f"s_lshl_b32 s{A0}, s{OA}, 9")
        I(f"v_lshl_add_u32 v13, v6, 4, s{A0}")
        bar()
        k.stamp(name=n + "_hopa")
        for c in range(8): I(f"ds_read_b96 {vr(16+4*c,3)}, v13 offset:{1024*c}")
        I("s_waitcnt lgkmcnt(0)")
        for a_, b_ in ((0,1),(2,3),(4,5),(6,7),(0,2),(4,6),(0,4)):
            for c in range(3): I(f"v_add_f32 v{16+4*a_+c}, v{16+4*a_+c}, v{16+4*b_+c}")
        rowstats(16, 17, RESM, 20, RESR)
        I(f"s_or_b32 s{A0}, s{CG}, s{KQ}")
        I(f"s_cmp_lg_u32 s{A0}, 0")
        I(f"s_cbranch_scc1 {lab(n+'_nokey')}")
        I(f"v_fma_f32 v18, -v{RESM}, s{WSUM}, v18")
        I(f"v_mul_f32 v18, v18, v{RESR}")
        bf16r(18)
        I("v_ashrrev_i32 v19, 31, v18")
        I("v_or_b32 v19, 0x80000000, v19")
        I("v_xor_b32 v19, v19, v18")
        I("v_and_b32 v19, 0xffff0000, v19")
        I(f"v_sub_u32 v20, 2047, v{VTK}")
        I("v_or_b32 v20, v19, v20")
        I("v_mov_b32 v24, v20")
        I(f"v_mov_b32 v21, v{RESM}")
        dppred("v_max_u32", 24, Q4 + ("row_half_mirror", "row_mirror"))
        swapop("v_permlane16_swap_b32", "v_max_u32", 24, 25)
        I("v_cmp_eq_u32 vcc, v24, v20")
        I(f"v_mov_b32 v22, v{RESR}")
        I(f"v_mov_b32 v23, s{TAG}")
        I(f"s_lshl_b32 s{A0}, s{OT}, 7")
        I(f"s_add_u32 s{A0}, s{A0}, {hex(KEY[L])}")
        I(f"v_mov_b32 v13, s{A0}")
        I("s_mov_b32 exec_lo, vcc_lo")
        I("s_mov_b32 exec_hi, 0")
        I(f"global_store_dwordx4 v13, v[20:23], {sp(WSP)} sc1")
        exec_all()
        k.L(lab(n + "_nokey"))
        k.stamp(name="x" + n + "_key")

    FT = 76
    SR = 96
    stat_loads = [f"global_load_dwordx4 {vr(SR+4*i,4)}, v11, {sp(WSP)} offset:{1024*i} sc1" for i in range(4)]
    stat_tags = [SR + 4*i + 3 for i in range(4)]
    def own_stats():
        for i in range(1, 4):
            for c in range(2): I(f"v_add_f32 v{SR+c}, v{SR+c}, v{SR+4*i+c}")
        halfsum("v_add_f32", SR, SR + 2)
        halfsum("v_add_f32", SR + 1, SR + 2)
        rowstats(SR, SR + 1, MT[0], SR + 2, SR + 3)
        I(f"v_mov_b32 v{AT[0]}, s{CEPS}")
        I(f"v_add_f32 v{SR+3}, 1.0, v{SR+3}")
        I(f"v_mul_f32 v{SR+2}, v{SR+2}, v{SR+3}")
        I(f"v_fmac_f32 v{AT[0]}, v{SR+2}, v{SR+3}")
        I(f"v_rsq_f32 v{AT[0]}, v{AT[0]}")
        I(f"v_mov_b32 v{MT[1]}, v{MT[0]}")
        I(f"v_mul_f32 v{AT[0]}, v{AT[0]}, v{SR+3}")
        I(f"v_mov_b32 v{AT[1]}, v{AT[0]}")
        I(f"v_permlane16_swap_b32 v{MT[0]}, v{MT[1]}")
        I("s_nop 0")
        I(f"v_permlane16_swap_b32 v{AT[0]}, v{AT[1]}")
    def key_load(L):
        return f"global_load_dwordx4 {vr(FT,4)}, v{FT+4}, {sp(WSP)} sc1"
    def hop_b_issue(L, sfx=""):
        I(f"v_lshlrev_b32 v{FT+4}, 7, v1")
        I(f"v_add_u32 v{FT+4}, {hex(KEY[L])}, v{FT+4}")
        I(f"s_cmp_lg_u32 s{WAVE}, 0")
        I(f"s_cbranch_scc1 {lab(f'l{L}_nki{sfx}')}")
        I(key_load(L))
        k.L(lab(f"l{L}_nki{sfx}"))
    def hop_b(L, role=""):
        n = f"l{L}{role}"
        I(f"v_mov_b32 v{FT+6}, {LFF}")
        I(f"s_cmp_lg_u32 s{WAVE}, 0")
        I(f"s_cbranch_scc1 {lab(n+'_kw')}")
        keepq = list(vm.q)
        poll(n + "_pb", [key_load(L)], [FT + 3], first_issued=True)
        vm.q = keepq
        I(f"v_mov_b32 v{FT+5}, v{FT}")
        allreduce("v_max_u32", FT + 5, FT + 7)
        I(f"v_cmp_eq_u32 vcc, v{FT+5}, v{FT}")
        I("s_mov_b64 exec, vcc")
        I(f"ds_write_b96 v{FT+6}, {vr(FT,3)}")
        exec_all()
        k.L(lab(n + "_kw"))
        bar()
        I(f"ds_read_b96 {vr(FT,3)}, v{FT+6}")
        I("s_waitcnt lgkmcnt(0)")
        I(f"v_readfirstlane_b32 s{IDX}, v{FT}")
        I(f"v_readfirstlane_b32 s{RM}, v{FT+1}")
        I(f"v_readfirstlane_b32 s{RR}, v{FT+2}")
        I(f"s_and_b32 s{RS_}, s{IDX}, 0xffff0000")
        I(f"s_and_b32 s{IDX}, s{IDX}, 0x7ff")
        I(f"s_sub_u32 s{IDX}, 2047, s{IDX}")
        I(f"s_ashr_i32 s{A0}, s{RS_}, 31")
        I(f"s_not_b32 s{A0}, s{A0}")
        I(f"s_or_b32 s{A0}, s{A0}, 0x80000000")
        I(f"s_xor_b32 s{RS_}, s{RS_}, s{A0}")
        I(f"s_and_b32 s{RS_}, s{RS_}, 0xffff0000")
        I(f"s_lshr_b32 s{A0}, s{IDX}, 4")
        I(f"s_lshl_b32 s{A0}, s{A0}, 14")
        I(f"s_and_b32 s{A0+1}, s{IDX}, 15")
        I(f"s_lshl_b32 s{A0+1}, s{A0+1}, 4")
        I(f"s_add_u32 s{A0}, s{A0}, s{A0+1}")
        I("s_cmp_ge_u32 s2, 224")
        I(f"s_cbranch_scc1 {lab(n+'_frow')}")
        I(f"s_lshl_b32 s{A0+1}, s{WAVE}, 11")
        I(f"s_add_u32 s{A0}, s{A0}, s{A0+1}")
        I(f"v_and_b32 v{FT+4}, 48, v1")
        I(f"v_lshl_add_u32 v{FT+4}, v{FT+4}, 4, s{A0}")
        I(f"v_add_u32 v{FT+5}, 0x400, v{FT+4}")
        I(f"s_branch {lab(n+'_rowld')}")
        k.L(lab(n + "_frow"))
        I(f"s_sub_u32 s{A0+1}, s2, 224")
        I(f"s_lshl_b32 s{A0+1}, s{A0+1}, 9")
        I(f"s_add_u32 s{A0}, s{A0}, s{A0+1}")
        I(f"v_bfe_u32 v{FT+4}, v1, 3, 1")
        I(f"v_lshl_add_u32 v{FT+4}, v{FT+4}, 8, s{A0}")
        I(f"v_mov_b32 v{FT+5}, v{FT+4}")
        k.L(lab(n + "_rowld"))
        vm.issue(f"global_load_dwordx4 {vr(FT+8,4)}, v{FT+4}, {sp(XB_)} sc1", "row")
        vm.issue(f"global_load_dwordx4 {vr(FT+12,4)}, v{FT+5}, {sp(XB_)} sc1", "row")
    def slice1(L):
        n = f"l{L}"
        XR = FT + 8
        vm.wait("row")
        k.stamp(name="x" + n + "_row")
        I("s_cmp_ge_u32 s2, 224")
        I(f"s_cbranch_scc1 {lab(n+'_s1skip')}")
        for i in range(8):
            unpack(FT, FT + 1, XR + i)
            I(f"v_subrev_f32 v{FT}, s{RM}, v{FT}")
            I(f"v_subrev_f32 v{FT+1}, s{RM}, v{FT+1}")
            I(f"v_mul_f32 v{FT}, s{RR}, v{FT}")
            I(f"v_mul_f32 v{FT+1}, s{RR}, v{FT+1}")
            I(f"v_cvt_pk_bf16_f32 v{XR+i}, v{FT}, v{FT+1}")
        I(f"v_lshrrev_b32 v{FT+4}, 4, v1")
        I(f"v_lshlrev_b32 v{FT+4}, 4, v{FT+4}")
        I(f"v_mfma_f32_16x16x32_bf16 {vr(FT+16,4)}, {ar(AGU,4)}, {vr(XR,4)}, 0")
        I(f"v_mfma_f32_16x16x32_bf16 {vr(FT+16,4)}, {ar(AGU+4,4)}, {vr(XR+4,4)}, {vr(FT+16,4)}")
        I(f"s_lshl_b32 s{A0}, s{WAVE}, 6")
        I(f"s_add_u32 s{A0}, s{A0}, {LFF + 256}")
        I(f"v_add_u32 v{FT+4}, s{A0}, v{FT+4}")
        I("s_mov_b32 exec_lo, 0x00010001")
        I("s_mov_b32 exec_hi, 0x00010001")
        k.nop(3)
        I(f"ds_write_b128 v{FT+4}, {vr(FT+16,4)}")
        exec_all()
        bar()
        k.L(lab(n + "_s1skip"))
    def slice2(L):
        n = f"l{L}"
        I("s_cmp_ge_u32 s2, 224")
        I(f"s_cbranch_scc1 {lab(n+'_s2skip')}")
        I(f"v_and_b32 v{FT+4}, 15, v1")
        I(f"v_lshlrev_b32 v{FT+4}, 2, v{FT+4}")
        I(f"v_add_u32 v{FT+4}, {LFF + 256}, v{FT+4}")
        for i in range(8): I(f"ds_read_b32 v{FT+8+i}, v{FT+4} offset:{64*i}")
        for f in range(8): I(f"v_accvgpr_read_b32 v{FT+16+f}, a{ADN+f}")
        for f in range(8): I(f"v_lshlrev_b32 v{FT+16+f}, 16, v{FT+16+f}")
        I("s_waitcnt lgkmcnt(0)")
        g = FT + 8
        for a_, b_ in ((0,1),(2,3),(4,5),(6,7),(0,2),(4,6),(0,4)): I(f"v_add_f32 v{g+a_}, v{g+a_}, v{g+b_}")
        bf16r(g)
        t = FT
        I(f"v_mul_f32 v{t}, {hex(f2u(-LOG2E))}, v{g}")
        I(f"v_exp_f32 v{t}, v{t}")
        I("s_nop 0")
        I(f"v_add_f32 v{t}, 1.0, v{t}")
        I(f"v_rcp_f32 v{t}, v{t}")
        I("s_nop 0")
        I(f"v_mul_f32 v{t}, v{t}, v{g}")
        bf16r(t)
        k.nop(2)
        I(f"v_mul_f32_dpp v{t}, v{g}, v{t} row_ror:8 row_mask:0xf bank_mask:0xf")
        bf16r(t)
        k.nop(1)
        for f in range(8): I(f"v_readlane_b32 s{A0+f}, v{t}, {f}")
        I(f"s_lshl_b32 s{T2}, s{CGP}, 12")
        I(f"s_add_u32 s{T2}, s{T2}, {hex(YP[L])}")
        I(f"v_lshl_add_u32 v{FT+4}, v0, 3, s{T2}")
        I(f"v_mul_f32 v{FT+2}, s{A0}, v{FT+16}")
        for f in range(1, 8): I(f"v_fmac_f32 v{FT+2}, s{A0+f}, v{FT+16+f}")
        I(f"v_mov_b32 v{FT+3}, s{TAG}")
        I(f"global_store_dwordx2 v{FT+4}, {vr(FT+2,2)}, {sp(WSP)} sc1")
        k.L(lab(n + "_s2skip"))
    def finalize(L):
        n = f"l{L}"
        I("s_cmp_lt_u32 s2, 224")
        I(f"s_cbranch_scc1 {lab(n+'_fskip')}")
        XR = FT + 8
        I(f"v_lshrrev_b32 v{FT+4}, 4, v0")
        I(f"v_mul_u32_u24 v{FT+4}, {7*4096}, v{FT+4}")
        I(f"v_and_b32 v{FT+5}, 15, v0")
        I(f"v_lshl_add_u32 v{FT+4}, v{FT+5}, 3, v{FT+4}")
        I(f"s_sub_u32 s{A0}, s2, 224")
        I(f"s_lshl_b32 s{A0+1}, s{A0}, 7")
        I(f"s_add_u32 s{A0+1}, s{A0+1}, {hex(YP[L])}")
        I(f"v_add_u32 v{FT+4}, s{A0+1}, v{FT+4}")
        for i in range(1, 4): I(f"v_add_u32 v{FT+i-1}, {8192*i}, v{FT+4}")
        I(f"v_bfe_u32 v{FT+6}, v1, 1, 1")
        I(f"v_cmp_eq_u32 vcc, 1, v{FT+6}")
        I(f"v_bfe_u32 v{FT+6}, v1, 2, 1")
        I("s_nop 0")
        I(f"v_cndmask_b32 v{XR}, v{XR}, v{XR+1}, vcc")
        I(f"v_cndmask_b32 v{XR+2}, v{XR+2}, v{XR+3}, vcc")
        I(f"v_cmp_eq_u32 vcc, 1, v{FT+6}")
        I(f"v_and_b32 v{FT+6}, 1, v1")
        I("s_nop 0")
        I(f"v_cndmask_b32 v{XR}, v{XR}, v{XR+2}, vcc")
        I(f"v_cmp_eq_u32 vcc, 1, v{FT+6}")
        unpack(XR + 1, XR + 2, XR)
        I(f"v_cndmask_b32 v{XR}, v{XR+1}, v{XR+2}, vcc")
        Y_ = FT + 16
        ad = [FT + 4, FT, FT + 1, FT + 2]
        keepq = list(vm.q)
        poll(n + "_pl", [f"global_load_dwordx2 {vr(Y_+12,2)}, v{ad[3]}, {sp(WSP)} sc1"], [Y_ + 13])
        poll(n + "_pf", [f"global_load_dwordx2 {vr(Y_+2*i,2)}, v{ad[i//2]}, {sp(WSP)} offset:{4096*(i%2) - (4096 if False else 0)} sc1" if False else
                         f"global_load_dwordx2 {vr(Y_+2*i,2)}, v{ad[(i+1)//2]}, {sp(WSP)} offset:{-4096 if i % 2 else 0} sc1" for i in range(7)],
             [Y_ + 2*i + 1 for i in range(7)])
        for i in range(1, 7): I(f"v_add_f32 v{Y_}, v{Y_}, v{Y_+2*i}")
        rowreduce("v_add_f32", Y_, FT + 6)
        I(f"v_lshlrev_b32 v{FT+5}, 2, v{FT+5}")
        I(f"v_add_u32 v{FT+5}, {LFF + 256}, v{FT+5}")
        I(f"s_lshl_b32 s{A0+1}, s{WAVE}, 6")
        I(f"v_add_u32 v{FT+6}, s{A0+1}, v{FT+5}")
        I(f"ds_write_b32 v{FT+6}, v{Y_}")
        bar()
        for i in range(8): I(f"ds_read_b32 v{Y_+i}, v{FT+5} offset:{64*i}")
        t = FT
        I(f"v_mov_b32 v{t}, {hex(f2u(-LOG2E))}")
        I(f"v_mul_f32 v{t}, s{RS_}, v{t}")
        I(f"v_exp_f32 v{t}, v{t}")
        I(f"v_subrev_f32 v{t+1}, s{RM}, v{XR}")
        I(f"v_add_f32 v{t}, 1.0, v{t}")
        I(f"v_rcp_f32 v{t}, v{t}")
        I(f"v_mul_f32 v{t+1}, s{RR}, v{t+1}")
        bf16r(t); bf16r(t + 1)
        I("s_waitcnt lgkmcnt(0)")
        for i in range(1, 8): I(f"v_add_f32 v{Y_}, v{Y_}, v{Y_+i}")
        bf16r(Y_)
        I(f"v_mul_f32 v{Y_}, v{Y_}, v{t}")
        bf16r(Y_)
        I(f"v_add_f32 v{Y_}, v{Y_}, v{t+1}")
        bf16r(Y_)
        I(f"v_add_f32 v{Y_}, v{Y_}, v{XR}")
        I(f"v_cvt_pk_bf16_f32 v{Y_}, v{Y_}, v{Y_}")
        I(f"s_cmp_lg_u32 s{WAVE}, 0")
        I(f"s_cbranch_scc1 {lab(n+'_fskip')}")
        if L == 1:
            I(f"s_lshl_b32 s{A0+1}, s{IDX}, 10")
            I(f"s_lshl_b32 s{A0}, s{A0}, 5")
            I(f"s_add_u32 s{A0}, s{A0}, s{A0+1}")
            I(f"v_lshl_add_u32 v{FT+4}, v1, 1, s{A0}")
            exec_lo("0xffff")
            I(f"global_store_short v{FT+4}, v{Y_}, {sp(OUTP)}")
        else:
            I(f"v_and_b32 v{Y_}, 0xffff, v{Y_}")
            k.nop(2)
            for j, qp in ((1, 1), (2, 2), (3, 3)):
                I(f"v_mov_b32_dpp v{Y_+j}, v{Y_} quad_perm:[{qp},{qp},{qp},{qp}] row_mask:0xf bank_mask:0xf")
            I(f"v_lshl_or_b32 v{Y_}, v{Y_+1}, 16, v{Y_}")
            I(f"v_lshl_or_b32 v{Y_+1}, v{Y_+3}, 16, v{Y_+2}")
            I(f"v_mov_b32 v{Y_+2}, s{TAG}")
            I(f"s_lshl_b32 s{A0}, s{A0}, 7")
            I(f"s_add_u32 s{A0}, s{A0}, {hex(X2R)}")
            I(f"v_lshl_add_u32 v{FT+4}, v1, 2, s{A0}")
            exec_lo("0x1111")
            I(f"global_store_dwordx4 v{FT+4}, {vr(Y_,4)}, {sp(WSP)} sc1")
        exec_all()
        k.L(lab(n + "_fskip"))
        vm.q = keepq

    q_epilogue(0)
    k.stamp(name="l0_qepi")
    attention(0)
    oproj(0)
    I(f"s_mul_i32 s{A0}, s{WAVE}, 6144")
    I(f"s_add_u32 s{A0}, s{A0}, {LWQ}")
    I(f"v_add_u32 v12, s{A0}, v3")
    for i in range(6): I(f"ds_write_b128 v12, {ar(AWS+4*i,4)} offset:{1024*i}")
    I(f"s_lshl_b32 s{A0}, s{TT}, 15")
    I(f"v_add_u32 v8, s{A0}, v3")
    I("v_add_u32 v9, 0x4000, v8")
    I(f"s_lshr_b32 s{A0}, s{TT}, 1")
    I(f"s_lshl_b32 s{A0}, s{A0}, 13")
    I(f"s_and_b32 s{A0+1}, s{TT}, 1")
    I(f"s_lshl_b32 s{A0+1}, s{A0+1}, 9")
    I(f"s_add_u32 s{A0}, s{A0}, s{A0+1}")
    I(f"s_add_u32 s{A0}, s{A0}, {hex(ST[0])}")
    I(f"v_lshl_add_u32 v11, v6, 4, s{A0}")
    I("v_lshl_add_u32 v11, v7, 12, v11")
    RING = 6
    LOOK = int(ENV("LOOK", "4"))
    ROT1 = 67 if not PROFILE else 101
    I(f"s_lshr_b32 s{ROT1}, s{HEAD}, 1")
    def xload(ks):
        I(f"s_add_u32 s{T0}, s{ROT1}, {ks}")
        I(f"s_and_b32 s{T0}, s{T0}, 15")
        I(f"s_lshl_b32 s{T0}, s{T0}, 10")
        I(f"s_add_u32 s{T0}, s{XB_}, s{T0}")
        I(f"s_addc_u32 s{T0+1}, s{XB_+1}, 0")
        for t in range(2):
            vm.issue(f"global_load_dwordx4 {ar(64+8*(ks % RING)+4*t,4)}, v{8+t}, {sp(T0)} sc1", f"x{ks}")
    def wbase1(ks):
        I(f"s_add_u32 s{T0}, s{ROT1}, {ks}")
        I(f"s_and_b32 s{T0}, s{T0}, 15")
        I(f"s_lshl_b32 s{T0}, s{T0}, 10")
        I(f"v_add_u32 v12, s{T0}, v10")
    def first_x():
        for ks in range(LOOK): xload(ks)
    hop_a(0)
    w_addr()
    def bg_loads():
        first_x()
        for l in stat_loads: vm.issue(l, "st")
    I("s_cmp_ge_u32 s2, 224")
    I(f"s_cbranch_scc1 {lab('fin_a')}")
    hop_b_issue(0)
    hop_b(0, role="s")
    slice1(0)
    slice2(0)
    bg_loads()
    I(f"s_branch {lab('q1_go')}")
    k.L(lab("fin_a"))
    vm.q = []
    bg_loads()
    k.L(lab("q1_go"))
    k.stamp(name="q1_ffn")
    wbase1(0)
    wreads(WB, 12, 0)
    wbase1(1)
    wreads(WB + 12, 12, 0)
    for ks in range(16):
        if ks + LOOK < 16: xload(ks + LOOK)
        if ks < 14:
            wbase1(ks + 2)
            wreads(WB + 12*((ks+2)%3), 12, 0)
        vm.wait(f"x{ks}", f" lgkmcnt({12 if ks < 14 else 6 if ks == 14 else 0})")
        qmfmas(WB + 12*(ks%3), ar(64+8*(ks % RING),4), ar(64+8*(ks % RING)+4,4), ks == 0)
    k.stamp(name="q1_loop")
    poll("ps", stat_loads, stat_tags, first_issued=True)
    own_stats()
    I("s_cmp_lt_u32 s2, 224")
    I(f"s_cbranch_scc1 {lab('fin_b')}")
    hop_b_issue(0, "f")
    hop_b(0, role="f")
    vm.drain()
    finalize(0)
    k.L(lab("fin_b"))
    k.stamp(name="q1_fin")
    I(f"s_lshr_b32 s{A0}, s{IDX}, 8")
    I(f"s_cmp_lg_u32 s{A0}, s{QB}")
    I(f"s_cbranch_scc1 {lab('nofix')}")
    F0, FX = 80, 64
    I(f"s_lshl_b32 s{A0}, s{WAVE}, 9")
    I(f"s_add_u32 s{A0}, s{A0}, {hex(X2R)}")
    I(f"v_lshl_add_u32 v12, v7, 7, s{A0}")
    I("v_bfe_u32 v13, v1, 4, 1")
    I("v_lshl_add_u32 v12, v13, 5, v12")
    poll("px", [f"global_load_dwordx3 {vr(F0+4*i,3)}, v12, {sp(WSP)} offset:{256*(i>>1)+16*(i&1)} sc1" for i in range(4)], [F0 + 4*i + 2 for i in range(4)])
    I(f"s_lshl_b32 s{A0}, s{WAVE}, 11")
    I(f"v_add_u32 v12, s{A0}, v10")
    for q in range(2): wreads(WB + 12*q, 12, q)
    for i in range(4):
        I(f"v_mov_b32 v{FX+2*i}, v{F0+4*i}")
        I(f"v_mov_b32 v{FX+2*i+1}, v{F0+4*i+1}")
    I("v_mov_b32 v14, 0"); I("v_mov_b32 v15, 0")
    for r in range(8):
        I(f"v_dot2_f32_bf16 v14, v{FX+r}, s{ONES}, v14")
        I(f"v_dot2_f32_bf16 v15, v{FX+r}, v{FX+r}, v15")
    I("s_waitcnt lgkmcnt(0)")
    for q in range(2):
        for sec in range(3): mfma16(F0 + 4*sec, vr(WB+12*q+4*sec,4), vr(FX+4*q,4), q == 0)
    rowreduce("v_add_f32", 14, 13)
    rowreduce("v_add_f32", 15, 13)
    I(f"s_lshl_b32 s{A0}, s{WAVE}, 8")
    I(f"s_add_u32 s{A0}, s{A0}, {LRD}")
    I("v_and_b32 v12, 48, v1")
    I(f"v_add_u32 v12, s{A0}, v12")
    I(f"v_mov_b32 v13, s{A0}")
    I("s_mov_b32 exec_lo, 0x00010001"); I("s_mov_b32 exec_hi, 0x00010001")
    for sec in range(3): I(f"ds_write_b128 v12, {vr(F0+4*sec,4)} offset:{64*sec}")
    I("ds_write_b64 v13, v[14:15] offset:192")
    exec_all()
    bar()
    I(f"s_lshr_b32 s{A0}, s{IDX}, 5")
    I(f"s_cmp_lg_u32 s{A0}, s{OT}")
    I(f"s_cbranch_scc1 {lab('nores')}")
    I(f"s_lshl_b32 s{A0}, s{KG}, 7")
    I(f"s_add_u32 s{A0}, s{A0}, {hex(X2R)}")
    I(f"v_lshl_add_u32 v14, v7, 4, s{A0}")
    I(f"v_cmp_eq_u32 vcc, s{IDX}, v{VTK}")
    I(f"s_and_saveexec_b64 {sp(T2)}, vcc")
    I(f"global_load_dwordx2 {vr(XG,2)}, v14, {sp(WSP)} sc1")
    I(f"global_load_dwordx2 {vr(XG+2,2)}, v14, {sp(WSP)} offset:32 sc1")
    I(f"v_mov_b32 v{RESR}, 0")
    exec_all()
    k.L(lab("nores"))
    I(f"s_lshr_b32 s{A0}, s{IDX}, 5")
    I(f"s_cmp_lg_u32 s{A0}, s{TT}")
    I(f"s_cbranch_scc1 {lab('nofix')}")
    sum8(LRD, LFX)
    I("v_and_b32 v12, 48, v1")
    I(f"v_add_u32 v12, {LFX}, v12")
    I(f"v_mov_b32 v13, {LFX + 192}")
    for sec in range(2): I(f"ds_read_b128 {vr(F0+4*sec,4)}, v12 offset:{64*sec}")
    I("ds_read_b64 v[64:65], v13")
    I("v_and_b32 v15, 15, v1")
    I("v_lshlrev_b32 v14, 2, v15")
    I(f"v_add_u32 v14, {LFX + 128}, v14")
    I("ds_read_b32 v66, v14")
    I(f"s_and_b32 s{A0}, s{IDX}, 31")
    I("v_lshrrev_b32 v13, 4, v1")
    I("v_lshlrev_b32 v13, 2, v13")
    I(f"v_sub_u32 v13, s{A0}, v13")
    I(f"v_sub_u32 v15, s{A0}, v15")
    I("s_waitcnt lgkmcnt(0)")
    rowstats(64, 65, 67, 68, 69)
    for t in range(2):
        I(f"v_cmp_eq_u32 vcc, {16*t}, v15")
        k.nop(2)
        I(f"v_cndmask_b32 v{MT[t]}, v{MT[t]}, v67, vcc")
        I(f"v_cndmask_b32 v{AT[t]}, v{AT[t]}, v69, vcc")
        for sec in range(2):
            for r in range(4): I(f"v_cndmask_b32 v{ACC+8*sec+4*t+r}, v{ACC+8*sec+4*t+r}, v{F0+4*sec+r}, vcc")
        for r in range(4):
            I(f"v_cmp_eq_u32 vcc, {16*t+r}, v13")
            k.nop(2)
            I(f"v_cndmask_b32 v{ACC+16+4*t+r}, v{ACC+16+4*t+r}, v66, vcc")
    k.L(lab("nofix"))
    vm.drain()
    k.stamp(name="q1_fix")
    bounce_params()
    q_epilogue(1)
    k.stamp(name="l1_qepi")
    attention(1)
    oproj(1)
    hop_a(1)
    hop_b_issue(1)
    X, Y = 96, 16
    for i in range(4): unpack(X + 2*i, X + 2*i + 1, XG + i)
    for r in range(8): I(f"v_sub_f32 v{Y+r}, v{X+r}, v{RESM}")
    for r in range(8): I(f"v_mul_f32 v{Y+r}, v{Y+r}, v{RESR}")
    for i in range(4): I(f"v_cvt_pk_bf16_f32 v{XG+i}, v{Y+2*i}, v{Y+2*i+1}")
    for i in range(4): unpack(Y + 2*i, Y + 2*i + 1, XG + i)
    for r in range(8): I(f"v_add_f32 v{X+r}, v{X+r}, v{Y+r}")
    for i in range(4): I(f"v_cvt_pk_bf16_f32 v{XG+i}, v{X+2*i}, v{X+2*i+1}")
    I(f"s_lshl_b32 s{A0}, s{KG}, 5")
    I(f"v_lshl_add_u32 v12, v7, 4, s{A0}")
    I(f"v_lshl_add_u32 v12, v{VTK}, 10, v12")
    I(f"v_permlane32_swap_b32 v{XG}, v{XG+2}")
    I(f"v_permlane32_swap_b32 v{XG+1}, v{XG+3}")
    hop_b(1)
    k.stamp(name="t_hopb")
    I(f"v_cmp_ne_u32 vcc, s{IDX}, v{VTK}")
    I(f"s_and_saveexec_b64 {sp(T2)}, vcc")
    vm.issue(f"global_store_dwordx4 v12, {vr(XG,4)}, {sp(OUTP)} {ENV('OUTF', '')}")
    exec_all()
    slice1(1)
    slice2(1)
    k.stamp(name="t_slice")
    finalize(1)
    I("s_cmp_lg_u32 s2, 0")
    I(f"s_cbranch_scc1 {lab('end')}")
    I(f"v_mov_b32 v12, {hex(NONCE)}")
    I(f"v_mov_b32 v13, s{TAG}")
    I("v_cmp_eq_u32 vcc, 0, v0")
    I(f"s_and_saveexec_b64 {sp(T2)}, vcc")
    I(f"s_cbranch_execz {lab('end')}")
    I(f"global_store_dword v12, v13, {sp(WSP)}")
    k.L(lab("end"))
    k.stamp_end(0)
    if ENV("DBGT"):
        I("s_cmp_lt_u32 s2, 224")
        I(f"s_cbranch_scc1 {lab('exit')}")
        I(f"s_cmp_lg_u32 s{WAVE}, 0")
        I(f"s_cbranch_scc1 {lab('exit')}")
        I("s_load_dwordx2 s[4:5], s[0:1], 72")
        I("s_memrealtime s[6:7]")
        I("s_memtime s[8:9]")
        I("s_waitcnt lgkmcnt(0)")
        I("s_mov_b64 exec, 1")
        I("s_not_b32 s96, s96")
        I("s_sub_u32 s8, s8, s98")
        I("v_mov_b32 v1, 0"); I("v_mov_b32 v2, s96"); I("v_mov_b32 v3, s6"); I("v_mov_b32 v4, s8")
        I("global_atomic_umax v1, v2, s[4:5]")
        I("global_atomic_umax v1, v3, s[4:5] offset:4")
        I("global_atomic_umax v1, v4, s[4:5] offset:8")
    k.L(lab("exit"))
    I("s_endpgm")
    return k

if __name__ == "__main__":
    k = build_kernel()
    bad = check_hazards(k)
    for b in bad: print("HAZARD", b, file=sys.stderr)
    out = sys.argv[1] if len(sys.argv) > 1 else "cdna_kernels/" + NAME + ".s"
    txt = emit_file(HEADER, [k], single=(ENV("SINGLE", "0") == "1"))
    open(out, "w").write(txt)
    print("written", out, len(txt), "bytes; hazards:", len(bad))
```

```python
import sys, struct, os
from asmlib import *

NAME = "interleave_layers__softmax_full_mha__moe_arch_mod__prompt"
HEADER = open("cdna_kernels/" + NAME + ".s.ref").read().split("; Override launch")[0]
ENV = os.environ.get

XF = [0x000000, 0x200000]
KF = [0x400000, 0x800000]
VF = [0x600000, 0xA00000]
OF = [0xC00000, 0xE00000]
ST = [0x1000000, 0x1040000]
YP = [0x1080000, 0x1180000]
FLK = [0x1280000, 0x1288000]
FLO = [0x1300000, 0x1340000]
KEY = [0x12A4000, 0x12A6000]
X2R = 0x12A0000
NONCE = 0x12A2000
EPS = 1e-5
def f2u(x): return struct.unpack("<I", struct.pack("<f", x))[0]
QSCALE = 0.25 * 1.4426950408889634
LOG2E = 1.4426950408889634
SPIN_MAX = 1 << 18

CB, CBN = 131072, 20
LWQ = 8192
LST = CB + CBN * 512
LSA = LST
LPC = LST + 8192
LFX = LST + 8448
LVB = LST + 8704
LRD = LST + 10752
LFF = LST + 14848
LDS_BYTES = LFF + 1024

X0P, WQP, WOP, WSP, WRP, WGP, WUP, WDP, OUTP = 4, 6, 8, 10, 12, 14, 16, 18, 20
HEAD, QB, WAVE, TT, W1K, THR, CTR, SPIN, PASS, TAG, CG, TB, OA, KQ, OT, KG, IDX, WSUM = range(22, 40)
T0, T2 = 40, 42
A0 = 44
KB_, VB_, OB_, XB_ = 52, 54, 56, 58
RM, RR, RS_, ONES, C512, CEPS = 60, 61, 62, 63, 64, 65
CGP = 3

def sp(i): return f"s[{i}:{i+1}]"

class VM:
    def __init__(self, k): self.k = k; self.q = []
    def issue(self, txt, tag=None):
        self.k.I(txt); self.q.append(tag)
    def wait(self, tag, extra=""):
        i = max(j for j, t in enumerate(self.q) if t == tag)
        n = len(self.q) - 1 - i
        assert n <= 63
        self.k.I(f"s_waitcnt vmcnt({n}){extra}")
    def drain(self, extra=""):
        self.k.I(f"s_waitcnt vmcnt(0){extra}"); self.q = []

def build_kernel():
    k = Kern(NAME + "_kernel", 256, 512, LDS_BYTES, 128, nagpr=128)
    I = k.I
    vm = VM(k)
    def lab(x): return f"L_{x}"
    def sadd64(d, b, const):
        I(f"s_add_u32 s{d}, s{b}, {hex(const)}"); I(f"s_addc_u32 s{d+1}, s{b+1}, 0")
    def swapop(sw, op, x, t):
        I(f"v_mov_b32 v{t}, v{x}"); k.nop(2); I(f"{sw} v{x}, v{t}"); I(f"{op} v{x}, v{x}, v{t}")
    def halfsum(op, x, t): swapop("v_permlane32_swap_b32", op, x, t)
    def rowreduce(op, x, t):
        swapop("v_permlane16_swap_b32", op, x, t); swapop("v_permlane32_swap_b32", op, x, t)
    def dppred(op, x, modes):
        for m in modes:
            k.nop(2); I(f"{op}_dpp v{x}, v{x}, v{x} {m} row_mask:0xf bank_mask:0xf")
    Q4 = ("quad_perm:[1,0,3,2]", "quad_perm:[2,3,0,1]")
    def allreduce(op, x, t):
        dppred(op, x, Q4 + ("row_half_mirror", "row_mirror")); rowreduce(op, x, t)
    def unpack(dlo, dhi, src):
        I(f"v_lshlrev_b32 v{dlo}, 16, v{src}"); I(f"v_and_b32 v{dhi}, 0xffff0000, v{src}")
    def bf16r(x):
        I(f"v_cvt_pk_bf16_f32 v{x}, v{x}, v{x}"); I(f"v_and_b32 v{x}, 0xffff0000, v{x}")
    def exec_lo(mask):
        I(f"s_mov_b32 exec_lo, {mask}"); I("s_mov_b32 exec_hi, 0")
    def exec_all(): I("s_mov_b64 exec, -1")
    def bar(lg=True):
        if lg: I("s_waitcnt lgkmcnt(0)")
        I("s_barrier")
    def poll(name, loads, tagregs, first_issued=False):
        I(f"s_mov_b32 s{SPIN}, {SPIN_MAX}")
        SL = int(ENV("SLEEP", "0"))
        if first_issued: I(f"s_branch {lab(name+'_w')}")
        elif SL: I(f"s_branch {lab(name+'_l')}")
        k.L(lab(name))
        if SL: I(f"s_sleep {SL}")
        k.L(lab(name + "_l"))
        for l in loads: I(l)
        k.L(lab(name + "_w"))
        I("s_waitcnt vmcnt(0)")
        I(f"v_cmp_ne_u32 vcc, s{TAG}, v{tagregs[0]}")
        for r in tagregs[1:]:
            I(f"v_cmp_ne_u32 {sp(T2)}, s{TAG}, v{r}")
            I(f"s_or_b64 vcc, vcc, {sp(T2)}")
        I(f"s_sub_u32 s{SPIN}, s{SPIN}, 1")
        I(f"s_cbranch_vccz {lab(name+'_ok')}")
        I(f"s_cbranch_scc0 {lab(name)}")
        k.L(lab(name + "_ok"))
        k.stampval(SPIN, "x" + name + "_spin")
        k.stamp(name="x" + name + "_ok")
        vm.q = []
    def mfma(d, a_, b_, c): I(f"v_mfma_f32_32x32x16_bf16 {vr(d,16)}, {a_}, {b_}, {vr(c,16) if c is not None else 0}")
    def rowstats(s1, s2, m, var, rstd):
        I(f"v_mul_f32 v{m}, s{C512}, v{s1}")
        I(f"v_mul_f32 v{var}, s{C512}, v{s2}")
        I(f"v_fma_f32 v{var}, -v{m}, v{m}, v{var}")
        I(f"v_max_f32 v{var}, 0, v{var}")
        I(f"v_add_f32 v{rstd}, s{CEPS}, v{var}")
        I(f"v_rsq_f32 v{rstd}, v{rstd}")

    ACC, WB = 16, 40
    CQ, CV, MV, AL = 64, 72, 76, 84
    MT, AT = [112, 114], [113, 115]
    S0, S1, P0, P1, VA, NEG, O, Q, KB = 16, 32, 48, 52, [56, 64], 72, 88, 104, 108
    AK, AV, AVS, VBASE = 112, 113, 114, 115
    XG, WR, VXO, VTK, RESM, RESR = 116, 120, 124, 125, 126, 127
    TK, TV = 96, 100
    def mfma16(d, a_, b_, first): I(f"v_mfma_f32_16x16x32_bf16 {vr(d,4)}, {a_}, {b_}, {0 if first else vr(d,4)}")
    AWO, ARS, AWS, AGU, ADN = 0, 32, 88, 112, 120

    I("s_cmp_ge_u32 s2, 256")
    I(f"s_cbranch_scc1 {lab('exit')}")
    k.stamp_begin()
    if ENV("DBGT"):
        I("s_memrealtime s[96:97]")
        I("s_memtime s[98:99]")
    I(f"s_load_dwordx4 s[4:7], s[0:1], 0")
    I(f"s_load_dwordx2 s[8:9], s[0:1], 16")
    I(f"s_load_dwordx2 s[10:11], s[0:1], 80")
    I(f"s_load_dwordx8 s[12:19], s[0:1], 32")
    I(f"s_load_dwordx2 s[20:21], s[0:1], 64")
    I("v_and_b32 v1, 63, v0")
    I("v_lshrrev_b32 v2, 6, v0")
    I("v_lshlrev_b32 v3, 4, v1")
    I(f"v_readfirstlane_b32 s{WAVE}, v2")
    I(f"s_and_b32 s{QB}, s2, 7")
    I(f"s_lshr_b32 s{HEAD}, s2, 3")
    if ENV("HX"):
        I(f"s_cmp_lt_u32 s{HEAD}, 16")
        I(f"s_cselect_b32 s{A0}, 8, 0")
        I(f"s_xor_b32 s{HEAD}, s{HEAD}, s{A0}")
    I(f"s_lshl_b32 s{TT}, s{QB}, 3")
    I(f"s_add_u32 s{TT}, s{TT}, s{WAVE}")
    I(f"s_lshl_b32 s{W1K}, s{WAVE}, 10")
    I("v_bfe_u32 v5, v1, 1, 2")
    I("v_bfe_u32 v6, v1, 3, 1")
    I("v_lshl_add_u32 v5, v6, 3, v5")
    I("v_bfe_u32 v6, v1, 4, 1")
    I("v_lshl_add_u32 v5, v6, 2, v5")
    I("v_bfe_u32 v6, v1, 5, 1")
    I("v_lshl_add_u32 v5, v6, 4, v5")
    I("v_mul_u32_u24 v5, 3072, v5")
    I("v_and_b32 v6, 1, v1")
    I("v_lshl_add_u32 v5, v6, 4, v5")
    I(f"s_lshl_b32 s{A0+1}, s{HEAD}, 5")
    I(f"v_add_u32 v5, s{A0+1}, v5")
    I("v_lshrrev_b32 v8, 4, v1")
    I("v_and_b32 v9, 7, v1")
    I("v_xor_b32 v8, v8, v9")
    I("v_lshlrev_b32 v8, 4, v8")
    I("v_lshrrev_b32 v9, 3, v1")
    I("v_lshl_add_u32 v8, v9, 10, v8")
    I(f"s_lshl_b32 s{A0}, s{TT}, 15")
    I(f"v_add_u32 v8, s{A0}, v8")
    I("v_xor_b32 v9, 64, v8")
    I("v_add_u32 v9, 0x2000, v9")
    XB3 = [A0 + 3, A0 + 4, A0 + 5]
    for b_ in range(3):
        I(f"s_mul_i32 s{XB3[b_]}, s{WAVE}, 12288")
        I(f"s_add_u32 s{XB3[b_]}, s{XB3[b_]}, {56*1024 + 4096*b_}")
        if b_:
            I(f"s_cmp_eq_u32 s{WAVE}, 7")
            I(f"s_cselect_b32 s{XB3[b_]}, {4096*(b_-1)}, s{XB3[b_]}")
    ROT = A0 + 6
    I(f"s_and_b32 s{ROT}, s{HEAD}, 3")
    I("s_waitcnt lgkmcnt(0)")
    def xstage(st):
        I(f"s_add_u32 s{A0}, s{ROT}, {st//2}")
        I(f"s_and_b32 s{A0}, s{A0}, 3")
        I(f"s_lshl_b32 s{A0}, s{A0}, 8")
        if st & 1: I(f"s_add_u32 s{A0}, s{A0}, 128")
        I(f"s_add_u32 s{T0}, s{X0P}, s{A0}")
        I(f"s_addc_u32 s{T0+1}, s{X0P+1}, 0")
        for i in range(4):
            if i == 2: sadd64(T0, T0, 16384)
            I(f"s_add_u32 m0, s{XB3[st % 3]}, {i*1024}")
            I("s_nop 0")
            vm.issue(f"global_load_lds_dwordx4 v{8 + (i&1)}, {sp(T0)}", f"x{st}")
    def wdma(j):
        I(f"s_mul_i32 s{A0}, s{ROT}, 12")
        I(f"s_add_u32 s{A0}, s{A0}, s{WAVE}")
        I(f"s_add_u32 s{A0}, s{A0}, {8*j}")
        I(f"s_sub_u32 s{A0+1}, s{A0}, 48")
        I(f"s_cmp_ge_u32 s{A0}, 48")
        I(f"s_cselect_b32 s{A0}, s{A0+1}, s{A0}")
        I(f"s_mul_i32 s{A0+1}, s{A0}, 21846")
        I(f"s_lshr_b32 s{A0+1}, s{A0+1}, 16")
        I(f"s_mul_i32 s{A0+2}, s{A0+1}, 3")
        I(f"s_sub_u32 s{A0}, s{A0}, s{A0+2}")
        I(f"s_mul_i32 s{A0+2}, s{A0+1}, {32*3072}")
        I(f"s_lshl_b32 s{T0}, s{A0}, 10")
        I(f"s_add_u32 s{A0+2}, s{A0+2}, s{T0}")
        I(f"s_add_u32 s{T0}, s{WQP}, s{A0+2}")
        I(f"s_addc_u32 s{T0+1}, s{WQP+1}, 0")
        I(f"s_lshl_b32 s{A0}, s{A0}, 14")
        I(f"s_lshl_b32 s{A0+1}, s{A0+1}, 10")
        I(f"s_add_u32 s{A0}, s{A0}, s{A0+1}")
        I(f"s_add_u32 m0, s{A0}, {LWQ}")
        I("s_nop 0")
        vm.issue(f"global_load_lds_dwordx4 v5, {sp(T0)}", f"W{j}")
    if ENV("CPF", "0") == "1":
        I(f"s_cmp_lg_u32 s{WAVE}, 7")
        I(f"s_cbranch_scc1 {lab('nocpf')}")
        I(f"s_lshl_b32 s{A0}, s{HEAD}, 13")
        I(f"v_lshl_add_u32 v12, v1, 7, s{A0}")
        I(f"v_cmp_gt_u32 vcc, {lab('exit')}-{lab('pc0')}, v12")
        I(f"s_getpc_b64 {sp(T0)}")
        k.L(lab("pc0"))
        I(f"s_and_saveexec_b64 {sp(T2)}, vcc")
        I(f"s_cbranch_execz {lab('cpf2')}")
        I(f"global_load_dword v127, v12, {sp(T0)}")
        k.L(lab("cpf2"))
        exec_all()
        k.L(lab("nocpf"))
    if ENV("ALLUP"):
        for j in range(8):
            if j < 6 and ENV("ALLUP") != "x": wdma(j)
            if ENV("ALLUP") != "w": xstage(j)
        k.stamp(name="a_issue")
        I("s_waitcnt vmcnt(0)")
        k.stamp(name="a_done")
        I("s_barrier")
        k.stamp(name="a_bar")
        I(f"s_branch {lab('end')}")
    UPW = int(ENV("UPW", "4"))
    wdma(0); xstage(0); wdma(1); xstage(1); wdma(2); xstage(2)
    for j in range(3, UPW): wdma(j)
    sadd64(T2, WSP, NONCE)
    I(f"s_load_dword s{TAG}, {sp(T2)}, 0")
    I(f"s_lshr_b32 s{CG}, s{HEAD}, 2")
    I(f"s_and_b32 s{TB}, s{HEAD}, 3")
    I(f"s_lshl_b32 s{A0}, s{QB}, 2")
    I(f"s_add_u32 s{TB}, s{TB}, s{A0}")
    I(f"s_and_b32 s{OA}, s{WAVE}, 1")
    I(f"s_lshr_b32 s{KQ}, s{WAVE}, 1")
    I(f"s_lshl_b32 s{OT}, s{TB}, 1")
    I(f"s_add_u32 s{OT}, s{OT}, s{OA}")
    I(f"s_lshl_b32 s{KG}, s{CG}, 2")
    I(f"s_add_u32 s{KG}, s{KG}, s{KQ}")
    I(f"s_mul_i32 s{CGP}, s{QB}, 28")
    I(f"s_min_u32 s{A0}, s{HEAD}, 27")
    I(f"s_add_u32 s{CGP}, s{CGP}, s{A0}")
    I(f"s_mov_b32 s{THR}, {hex(f2u(2.0**30))}")
    I(f"s_mov_b32 s{ONES}, 0x3f803f80")
    I(f"s_mov_b32 s{C512}, {hex(f2u(1/512))}")
    I(f"s_mov_b32 s{CEPS}, {hex(f2u(EPS))}")
    def lane_terms():
        I("v_and_b32 v6, 31, v1")
        I("v_lshrrev_b32 v7, 5, v1")
    lane_terms()
    def w_addr():
        I("v_bfe_u32 v12, v1, 2, 2")
        I("v_lshl_add_u32 v12, v7, 4, v12")
        I("v_bfe_u32 v13, v1, 4, 1")
        I("v_lshl_add_u32 v12, v13, 2, v12")
        I("v_and_b32 v13, 3, v1")
        I("v_lshlrev_b32 v13, 3, v13")
        I("v_lshl_add_u32 v10, v12, 5, v13")
        I(f"v_add_u32 v10, {LWQ}, v10")
    w_addr()
    def wreads(dst, ad, ks):
        for sec in range(3):
            I(f"ds_read_b64_tr_b16 {vr(dst+4*sec,2)}, v{ad} offset:{sec*16384+ks*1024}")
            I(f"ds_read_b64_tr_b16 {vr(dst+4*sec+2,2)}, v{ad} offset:{sec*16384+ks*1024+256}")
    def qmfmas(wb, xa, xb, first, between=None):
        for i, (d, A_, B_) in enumerate(((ACC, vr(wb,4), xa), (ACC+4, vr(wb,4), xb), (ACC+8, vr(wb+4,4), xa),
                                         (ACC+12, vr(wb+4,4), xb), (ACC+16, xa, vr(wb+8,4)), (ACC+20, xb, vr(wb+8,4)))):
            mfma16(d, A_, B_, first)
            if between: between(i)
    I("v_bfe_u32 v12, v1, 1, 3")
    I("v_and_b32 v13, 15, v1")
    I("v_lshlrev_b32 v13, 7, v13")
    I("v_lshrrev_b32 v14, 4, v1")
    I("v_xor_b32 v14, v14, v12")
    I("v_lshl_add_u32 v2, v14, 4, v13")
    I("v_xor_b32 v4, 64, v2")
    def xfrags(st):
        I(f"v_add_u32 v14, s{XB3[st % 3]}, v2")
        I(f"v_add_u32 v15, s{XB3[st % 3]}, v4")
        vm.wait(f"x{st}")
        for h in range(2):
            for t in range(2): I(f"ds_read_b128 {ar(16*st+8*h+4*t,4)}, v{14+h} offset:{2048*t}")
    k.stamp(name="q0_issue")
    I("s_waitcnt lgkmcnt(0)")
    I(f"s_mul_i32 s{TAG}, s{TAG}, 0x9E3779B1")
    I(f"s_add_u32 s{TAG}, s{TAG}, 0x7F4A7C15")
    GU, ON = 76, 92
    for r in range(4): I(f"v_mov_b32 v{ON+r}, s{ONES}")
    xfrags(0)
    I("s_barrier")
    k.stamp(name="q0_W")
    CSA = 96
    def colsum_part(i):
        I(f"v_add_u32 v13, s{W1K}, v10")
        wreads(100, 13, 8*i)
        if i == 0:
            for sec in range(3): I(f"v_mov_b32 v{CSA+sec}, 0")
        I("s_waitcnt lgkmcnt(0)")
        for sec in range(3):
            for r in range(4): I(f"v_dot2_f32_bf16 v{CSA+sec}, v{100+4*sec+r}, s{ONES}, v{CSA+sec}")
        if i == 1:
            k.nop(2)
            for sec in range(3): rowreduce("v_add_f32", CSA + sec, 13)
            I(f"s_lshl_b32 s{A0}, s{WAVE}, 8")
            I(f"s_add_u32 s{A0}, s{A0}, {LRD}")
            I("v_and_b32 v13, 15, v1")
            I(f"v_lshl_add_u32 v13, v13, 2, s{A0}")
            for sec in range(3): I(f"ds_write_b32 v13, v{CSA+sec} offset:{64*sec}")
    def sum8(src, dst):
        I("v_lshlrev_b32 v13, 2, v1")
        I(f"v_add_u32 v14, {src}, v13")
        for w in range(8): I(f"ds_read_b32 v{104+w}, v14 offset:{256*w}")
        I(f"v_add_u32 v13, {dst}, v13")
        I("s_waitcnt lgkmcnt(0)")
        for a_, b_ in ((0,1),(2,3),(4,5),(6,7),(0,2),(4,6),(0,4)): I(f"v_add_f32 v{104+a_}, v{104+a_}, v{104+b_}")
        I("ds_write_b32 v13, v104")
    def wsave():
        I(f"s_mul_i32 s{A0}, s{WAVE}, 6144")
        I(f"s_add_u32 s{A0}, s{A0}, {LWQ}")
        I(f"v_add_u32 v13, s{A0}, v3")
        for i in range(6): I(f"ds_read_b128 {ar(AWS+4*i,4)}, v13 offset:{1024*i}")
    def wbase(q):
        I(f"s_add_u32 s{A0}, s{ROT}, {q}")
        I(f"s_and_b32 s{A0}, s{A0}, 3")
        I(f"s_lshl_b32 s{A0}, s{A0}, 12")
        I(f"v_add_u32 v11, s{A0}, v10")
    wbase(0)
    wreads(WB, 11, 0)
    wreads(WB + 12, 11, 1)
    ready = {2: 1, 5: 2, 8: 3, 10: 4, 13: 5}
    def stats0():
        I("v_and_b32 v13, 11, v0")
        I(f"v_mov_b32 v14, s{ONES}")
        I("v_cmp_eq_u32 vcc, 0, v13")
        I("v_lshlrev_b32 v13, 4, v0")
        I(f"v_add_u32 v13, {CB}, v13")
        I("v_cndmask_b32 v100, 0, v14, vcc")
        for r in range(1, 4): I(f"v_mov_b32 v{100+r}, v100")
        I("ds_write_b128 v13, v[100:103]")
        I(f"v_cmp_gt_u32 vcc, {(CBN*512 - 8192)//16}, v0")
        I(f"s_and_saveexec_b64 {sp(T2)}, vcc")
        I("ds_write_b128 v13, v[100:103] offset:8192")
        exec_all()
        I("v_lshrrev_b32 v12, 4, v1")
        I("v_lshlrev_b32 v12, 2, v12")
        I("v_and_b32 v13, 15, v1")
        I("v_sub_u32 v12, v13, v12")
        for t in range(2): I(f"v_mov_b32 v{ON+t}, 0")
        for r in range(4):
            I(f"v_cmp_eq_u32 vcc, {r}, v12")
            k.nop(2)
            for t in range(2): I(f"v_cndmask_b32 v{ON+t}, v{ON+t}, v{GU+4*t+r}, vcc")
        for t in range(2): rowreduce("v_add_f32", ON + t, 12)
        for t in range(2): rowstats(GU + 8 + 4*t, ON + t, MT[t], 12, AT[t])
    for ks in range(16):
        st = ks // 2
        pre = 0
        if ks % 2 == 0 and st + 1 < 8:
            xfrags(st + 1); pre = 4
        if ks + 2 in ready:
            vm.wait(f"W{ready[ks+2]}")
            I("s_barrier")
        if ks == 12:
            colsum_part(0); colsum_part(1); pre = -6
        if ks == 14:
            bar()
            sum8(LRD, LPC); wsave()
        if ks < 14:
            if (ks + 2) % 4 == 0: wbase((ks + 2)//4)
            wreads(WB + 12*((ks+2)%3), 11, (ks + 2) % 4)
            I(f"s_waitcnt lgkmcnt({min(15, 12 + pre) if ks % 2 == 0 else 12})")
        if ks == 0: xstage(3)
        if ks % 2 == 1 and st + 4 < 8: xstage(st + 4)
        if ks % 2 == 0 and UPW + ks//2 < 6: wdma(UPW + ks//2)
        xa, xb = ar(8*ks,4), ar(8*ks+4,4)
        mfma16(GU, xa, xa, ks == 0); mfma16(GU + 4, xb, xb, ks == 0)
        qmfmas(WB + 12*(ks%3), xa, xb, ks == 0)
        mfma16(GU + 8, vr(ON,4), xa, ks == 0); mfma16(GU + 12, vr(ON,4), xb, ks == 0)
    k.stamp(name="q0_loop")
    stats0()
    def bounce_params():
        I(f"s_lshl_b32 s{A0}, s{WAVE}, 8")
        I(f"s_add_u32 s{A0}, s{A0}, {LVB}")
        I("v_and_b32 v13, 15, v1")
        I(f"v_lshl_add_u32 v12, v13, 2, s{A0}")
        for t in range(2):
            I(f"ds_write_b32 v12, v{MT[t]} offset:{64*t}")
            I(f"ds_write_b32 v12, v{AT[t]} offset:{128+64*t}")
        I("v_and_b32 v14, 48, v1")
        I(f"v_add_u32 v12, s{A0}, v14")
        for t in range(2):
            I(f"ds_read_b128 {vr(MV+4*t,4)}, v12 offset:{64*t}")
            I(f"ds_read_b128 {vr(AL+4*t,4)}, v12 offset:{128+64*t}")
        I(f"v_add_u32 v12, {LPC}, v14")
        for sec in range(2): I(f"ds_read_b128 {vr(CQ+4*sec,4)}, v12 offset:{64*sec}")
        I("v_lshlrev_b32 v12, 2, v13")
        I(f"v_add_u32 v12, {LPC + 128}, v12")
        I(f"ds_read_b32 v{CV}, v12")
    bounce_params()

    def q_epilogue(L):
        n = f"l{L}"
        sadd64(KB_, WSP, KF[L]); sadd64(VB_, WSP, VF[L]); sadd64(OB_, WSP, OF[L])
        for t in range(2): I(f"v_mul_f32 v{13+t}, {hex(f2u(QSCALE))}, v{AT[t]}")
        I(f"s_lshl_b32 s{A0}, s{HEAD}, 16")
        I(f"s_lshl_b32 s{A0+1}, s{TT}, 10")
        I(f"s_add_u32 s{A0}, s{A0}, s{A0+1}")
        I(f"v_add_u32 v4, s{A0}, v3")
        I(f"v_add_u32 v15, s{W1K}, v3")
        I("v_add_u32 v5, 0x10000, v15")
        I("s_waitcnt lgkmcnt(0)")
        for sec in (1, 0):
            for t in range(2):
                for r in range(4): I(f"v_fma_f32 v{ACC+8*sec+4*t+r}, -v{MT[t]}, v{CQ+4*sec+r}, v{ACC+8*sec+4*t+r}")
            for t in range(2):
                for r in range(4): I(f"v_mul_f32 v{ACC+8*sec+4*t+r}, v{AT[t] if sec else 13+t}, v{ACC+8*sec+4*t+r}")
            d = TK if sec else Q
            for i in range(4): I(f"v_cvt_pk_bf16_f32 v{d+i}, v{ACC+8*sec+2*i}, v{ACC+8*sec+2*i+1}")
        I(f"v_fma_f32 v{ACC+16}, -v{MV}, v{CV}, v{ACC+16}")
        I(f"v_permlane16_swap_b32 v{TK}, v{TK+2}")
        I(f"v_permlane16_swap_b32 v{TK+1}, v{TK+3}")
        I(f"v_permlane16_swap_b32 v{Q}, v{Q+2}")
        I(f"v_permlane16_swap_b32 v{Q+1}, v{Q+3}")
        vm.issue(f"global_store_dwordx4 v4, {vr(TK,4)}, {sp(KB_)} sc1")
        I(f"ds_write_b128 v15, {vr(TK,4)}")
        mfma(S0, vr(TK,4), vr(Q,4), None)
        for r in range(1, 8): I(f"v_fma_f32 v{ACC+16+r}, -v{MV+r}, v{CV}, v{ACC+16+r}")
        for r in range(8): I(f"v_mul_f32 v{ACC+16+r}, v{AL+r}, v{ACC+16+r}")
        for i in range(4): I(f"v_cvt_pk_bf16_f32 v{TV+i}, v{ACC+16+2*i}, v{ACC+16+2*i+1}")
        I(f"v_max3_f32 v2, v{S0}, v{S0+1}, v{S0+2}")
        I(f"v_max3_f32 v13, v{S0+3}, v{S0+4}, v{S0+5}")
        I(f"v_permlane32_swap_b32 v{TV}, v{TV+2}")
        I(f"v_permlane32_swap_b32 v{TV+1}, v{TV+3}")
        vm.issue(f"global_store_dwordx4 v4, {vr(TV,4)}, {sp(VB_)} sc1")
        I(f"ds_write_b128 v5, {vr(TV,4)}")
        for r in range(6, 16, 4): I(f"v_max3_f32 v2, v2, v{S0+r}, v{S0+r+1}")
        for r in range(8, 16, 4): I(f"v_max3_f32 v13, v13, v{S0+r}, v{S0+r+1}")
        I("v_max_f32 v2, v2, v13")
        halfsum("v_max_f32", 2, 13)
        for r in range(16): I(f"v_sub_f32 v{NEG+r}, 0, v2")
        I("v_and_b32 v8, 15, v1")
        I("v_bfe_u32 v9, v1, 4, 1")
        I("v_lshlrev_b32 v10, 4, v8")
        I("v_lshl_add_u32 v10, v7, 8, v10")
        I(f"v_lshl_add_u32 v{VBASE}, v9, 16, v10")
        I(f"v_add_u32 v{VBASE}, 0x10000, v{VBASE}")
        I("v_xor_b32 v9, 1, v9")
        I(f"v_lshlrev_b32 v{AVS}, 13, v9")
        I(f"v_mov_b32 v{AK}, v3")
        I(f"v_mov_b32 v{AV}, v{VBASE}")
        I(f"s_mov_b32 s{PASS}, 0")
        I(f"s_lshl_b32 s{A0}, s{HEAD}, 10")
        I(f"s_add_u32 s{A0}, s{A0}, {hex(FLK[L])}")
        I(f"v_lshl_add_u32 v8, v1, 7, s{A0}")
        I(f"s_lshl_b32 s{A0+1}, s{QB}, 7")
        I(f"s_add_u32 s{A0}, s{A0}, s{A0+1}")
        I(f"v_mov_b32 v9, s{A0}")
        bar()

    def ffn_gu(m_):
        I(f"s_lshl_b32 s{A0+1}, s{CGP}, 4")
        I(f"v_mul_u32_u24 v14, 3584, v0")
        I(f"v_add_u32 v14, s{A0+1}, v14")
        vm.issue(f"global_load_dwordx4 {ar(AGU+4*m_,4)}, v14, {sp(WUP if m_ else WGP)}")
    def ffn_dn():
        I(f"s_lshl_b32 s{A0+1}, s{CGP}, 13")
        I(f"s_add_u32 s{A0+1}, s{A0+1}, s{W1K}")
        I(f"v_add_u32 v14, s{A0+1}, v3")
        vm.issue(f"global_load_dwordx4 {ar(ADN,4)}, v14, {sp(WDP)}")
    def attention(L):
        n = f"l{L}"
        def max16(dst, S, first):
            if first:
                I(f"v_max3_f32 v{dst}, v{S}, v{S+1}, v{S+2}"); rest = list(range(3, 16))
            else: rest = list(range(16))
            while rest:
                if len(rest) >= 2:
                    I(f"v_max3_f32 v{dst}, v{dst}, v{S+rest[0]}, v{S+rest[1]}"); rest = rest[2:]
                else:
                    I(f"v_max_f32 v{dst}, v{dst}, v{S+rest[0]}"); rest = rest[1:]
        def prime():
            I(f"ds_read_b128 {vr(KB,4)}, v{AK}")
            I(f"ds_read_b128 {vr(VA[0],4)}, v{AV}")
            I(f"ds_read_b128 {vr(VA[0]+4,4)}, v{AV} offset:512")
            I("s_waitcnt lgkmcnt(0)")
            mfma(S0, vr(KB,4), vr(Q,4), None if ENV("C0") else NEG)
            I(f"ds_read_b128 {vr(KB,4)}, v{AK} offset:1024")
            k.nop(11)
        def setup():
            halfsum("v_max_f32", 2, 7)
            for r in range(16): I(f"v_sub_f32 v{NEG+r}, 0, v2")
            I(f"v_mov_b32 v{AK}, v3")
            I(f"v_mov_b32 v{AV}, v{VBASE}")
            for r in range(16): I(f"v_mov_b32 v{O+r}, 0")
            for r in range(4): I(f"v_mov_b32 v{P1+r}, 0")
            for r in range(4): I(f"v_mov_b32 v{VA[1]+4+r}, 0")
            prime()
        def tile(u, extra=None, nokread=False, noqk=False, novread=False, first=False):
            extra = extra or {}
            if "p" in extra: I(f"s_setprio {extra['p']}")
            Sc, Sn = (S0, S1) if u % 2 == 0 else (S1, S0)
            Vc, Vo = VA[u % 2], VA[1 - u % 2]
            E = lambda r: I(f"v_exp_f32 v{Sc+r}, v{Sc+r}")
            Cv = lambda P, r, b: I(f"v_cvt_pk_bf16_f32 v{P+r}, v{Sc+b+2*r}, v{Sc+b+2*r+1}")
            E(0); E(1)
            if not first: mfma(O, vr(Vo+4,4), vr(P1,4), O)
            if 0 in extra: extra[0]()
            E(2); E(3); E(4)
            I("s_waitcnt lgkmcnt(0)")
            E(5)
            if not noqk: mfma(Sn, vr(KB,4), vr(Q,4), None if ENV("C0") else NEG)
            E(6)
            if not nokread: I(f"ds_read_b128 {vr(KB,4)}, v{AK} offset:{(u+2)*1024}")
            E(7)
            if not novread: I(f"ds_read_b128 {vr(Vo,4)}, v{AV} offset:{(u+1)*1024}")
            for r in range(4): Cv(P0, r, 0)
            E(8)
            if not novread: I(f"ds_read_b128 {vr(Vo+4,4)}, v{AV} offset:{(u+1)*1024+512}")
            E(9)
            mfma(O, vr(Vc,4), vr(P0,4), None if first else O)
            if 1 in extra: extra[1]()
            for r in range(10, 16): E(r)
            for r in range(4): Cv(P1, r, 8)
        def bump():
            I(f"v_add_u32 v{AK}, 0x2000, v{AK}")
            I(f"v_add_u32 v{AV}, v{AVS}, v{AV}")
        prime()
        k.stamp(name=f"x{n}_setup")
        I("s_setprio 3")
        def publish_kv():
            vm.drain()
            I("s_barrier")
            I(f"s_cmp_lg_u32 s{WAVE}, 0")
            I(f"s_cbranch_scc1 {lab(n+'_noflag')}")
            I(f"v_mov_b32 v14, s{TAG}")
            I("s_mov_b64 exec, 1")
            I(f"global_store_dword v9, v14, {sp(WSP)} sc1")
            exec_all()
            k.L(lab(n + "_noflag"))
        pl = f"global_load_dword v14, v8, {sp(WSP)} sc1"
        def poll_issue():
            I("s_mov_b64 exec, 0xff"); I(pl); exec_all()
        def poll_check():
            I("s_mov_b64 exec, 0xff")
            if L == 1:
                I(f"s_lshr_b32 s{A0}, s{IDX}, 8")
                I(f"s_bitset0_b32 exec_lo, s{A0}")
            poll(n + "_pk", [pl], [14], first_issued=True)
            exec_all()
        def stg(sl): return ARS + 8*(sl-1) if L == 0 else 64 + 8*((sl-1) % 6)
        def rload(sl):
            if L == 1:
                I(f"s_lshr_b32 s{A0+1}, s{IDX}, 8")
                I(f"s_sub_u32 s{A0+1}, s{A0+1}, s{QB}")
                I(f"s_and_b32 s{A0+1}, s{A0+1}, 7")
                if sl == 7:
                    I(f"s_cmp_eq_u32 s{A0+1}, 0")
                    I(f"s_cselect_b32 s{A0}, 7, s{A0+1}")
                    I("s_mov_b64 exec, 0xff")
                    poll(n + "_pk7", [pl], [14], first_issued=True)
                    exec_all()
                else:
                    I(f"s_sub_u32 s{A0+1}, s{A0+1}, 1")
                    I(f"s_cmp_lt_u32 s{A0+1}, {sl}")
                    I(f"s_cselect_b32 s{A0}, {sl+1}, {sl}")
                I(f"s_add_u32 s{A0}, s{QB}, s{A0}")
            else:
                I(f"s_add_u32 s{A0}, s{QB}, {sl}")
            I(f"s_and_b32 s{A0}, s{A0}, 7")
            I(f"s_sub_u32 s{A0}, s{A0}, s{QB}")
            I(f"s_lshl_b32 s{A0}, s{A0}, 13")
            I(f"v_add_u32 v13, s{A0}, v4")
            vm.issue(f"global_load_dwordx4 {ar(stg(sl),4)}, v13, {sp(KB_)} sc1", f"r{sl}")
            vm.issue(f"global_load_dwordx4 {ar(stg(sl)+4,4)}, v13, {sp(VB_)} sc1", f"r{sl}")
        def rwrite(sl):
            if f"r{sl}" in vm.q: vm.wait(f"r{sl}")
            I(f"ds_write_b128 v15, {ar(stg(sl),4)} offset:{sl*8192}")
            I(f"ds_write_b128 v5, {ar(stg(sl)+4,4)} offset:{sl*8192}")
        PUB, PI, PC = [int(x) for x in ENV("POLL", "1,4,5").split(",")]
        PR = {}
        if ENV("PBAL", "1") == "1":
            PR = {4: 2, 6: 1, 7: 0, 8: 3, 11: 2, 12: 1, 13: 0, 14: 3, 18: 2, 20: 1, 21: 0, 22: 3, 30: 2, 34: 1, 36: 0, 38: 3}
        for u in range(8):
            ex = {}
            if u == PUB: ex[0] = publish_kv
            if u == PI: ex[0] = poll_issue
            if u == PC: ex[0] = lambda: (poll_check(), rload(1), rload(2))
            if u in PR: ex["p"] = PR[u]
            tile(u, ex, nokread=(u >= 6), noqk=(u == 7), novread=(u == 7), first=(u == 0))
        bump()
        k.stamp(name=f"x{n}_ch0a")
        rwrite(1)
        bar()
        k.stamp(name=n + "_c0")
        prime()
        def wo_addr():
            I(f"s_lshl_b32 s{A0}, s{WAVE}, 16")
            I(f"s_lshl_b32 s{A0+1}, s{CG}, 7")
            I(f"s_add_u32 s{A0}, s{A0}, s{A0+1}")
            I("v_lshrrev_b32 v2, 3, v1")
            I(f"v_lshl_add_u32 v2, v2, 10, s{A0}")
            I("v_and_b32 v14, 7, v1")
            I("v_lshl_add_u32 v2, v14, 4, v2")
        def wo_load(i):
            vm.issue(f"global_load_dwordx4 {ar(AWO+4*i,4)}, v2, {sp(WOP)}", "wo")
            if i < 7: I("v_add_u32 v2, 0x2000, v2")
        def misc_loads():
            I(f"s_lshl_b32 s{A0}, s{KG}, 9")
            I(f"s_lshl_b32 s{A0+1}, s{OT}, 15")
            I(f"s_add_u32 s{A0}, s{A0}, s{A0+1}")
            I("v_and_b32 v10, 15, v1")
            I(f"v_lshl_add_u32 v{VXO}, v10, 4, s{A0}")
            I("v_lshrrev_b32 v10, 5, v1")
            I(f"v_lshl_add_u32 v{VXO}, v10, 8, v{VXO}")
            I("v_bfe_u32 v10, v1, 4, 1")
            I(f"v_lshl_add_u32 v{VXO}, v10, 14, v{VXO}")
            I("v_and_b32 v10, 31, v1")
            I(f"s_lshl_b32 s{A0}, s{OT}, 5")
            I(f"v_add_u32 v{VTK}, s{A0}, v10")
            I("v_lshrrev_b32 v10, 5, v1")
            I(f"s_lshl_b32 s{A0}, s{KG}, 5")
            I(f"v_lshl_add_u32 v14, v10, 3, s{A0}")
            vm.issue(f"global_load_dwordx2 {vr(WR,2)}, v14, {sp(WRP)}")
            vm.issue(f"global_load_dwordx2 {vr(WR+2,2)}, v14, {sp(WRP)} offset:16")
            I(f"v_lshl_add_u32 v14, v{VTK}, 10, v14")
            vm.issue(f"global_load_dwordx2 {vr(XG,2)}, v14, {sp(X0P)}")
            vm.issue(f"global_load_dwordx2 {vr(XG+2,2)}, v14, {sp(X0P)} offset:16")
        sched = {
            1: {(0,0): lambda: rload(3), (3,0): lambda: rload(4), (4,0): lambda: rwrite(2), (6,0): bar},
            2: {(0,0): lambda: rload(5), (3,0): lambda: rload(6), (4,0): lambda: rwrite(3), (5,0): lambda: rwrite(4), (6,0): bar},
            3: {(0,0): lambda: rload(7)},
            4: {(0,0): lambda: rwrite(5), (1,0): lambda: rwrite(6), (2,0): lambda: rwrite(7), (6,0): bar},
        }
        def touches():
            I(f"s_cmp_ge_u32 s{WAVE}, 5")
            I(f"s_cbranch_scc1 {lab('t_done')}")
            I(f"s_cmp_ge_u32 s{WAVE}, 2")
            I(f"s_cbranch_scc1 {lab('t_lin')}")
            I(f"s_mul_i32 s{A0}, s{QB}, 7")
            I(f"s_lshr_b32 s{A0}, s{A0}, 1")
            I(f"s_lshl_b32 s{A0}, s{A0}, 7")
            I(f"s_mul_i32 s{A0+1}, s{HEAD}, {16*3584}")
            I(f"s_add_u32 s{A0}, s{A0}, s{A0+1}")
            I("v_lshrrev_b32 v14, 2, v1")
            I("v_mul_u32_u24 v14, 3584, v14")
            I("v_and_b32 v10, 3, v1")
            I("v_lshl_add_u32 v14, v10, 7, v14")
            I(f"v_add_u32 v14, s{A0}, v14")
            I(f"s_cmp_eq_u32 s{WAVE}, 0")
            I(f"s_cselect_b32 s{T0}, s{WGP}, s{WUP}")
            I(f"s_cselect_b32 s{T0+1}, s{WGP+1}, s{WUP+1}")
            I(f"s_branch {lab('t_go')}")
            k.L(lab("t_lin"))
            I(f"s_lshl_b32 s{A0}, s{CGP}, 13")
            I(f"s_lshl_b32 s{A0+1}, s{HEAD}, 14")
            I(f"s_and_b32 s{A0+2}, s{WAVE}, 1")
            I(f"s_lshl_b32 s{A0+2}, s{A0+2}, 13")
            I(f"s_add_u32 s{A0+1}, s{A0+1}, s{A0+2}")
            I(f"s_cmp_eq_u32 s{WAVE}, 2")
            I(f"s_cselect_b32 s{A0}, s{A0}, s{A0+1}")
            I(f"s_cselect_b32 s{T0}, s{WDP}, s{WOP}")
            I(f"s_cselect_b32 s{T0+1}, s{WDP+1}, s{WOP+1}")
            I(f"v_lshl_add_u32 v14, v1, 7, s{A0}")
            k.L(lab("t_go"))
            I(f"global_load_dword v11, v14, {sp(T0)}")
            k.L(lab("t_done"))
        NU = 5
        if L == 0:
            NU = 6
            sched[2][(6,1)] = touches
            sched[3][(3,0)] = wo_addr
            for i in range(4): sched[3][(4 + i, 0)] = (lambda i=i: wo_load(i))
            for i, u in enumerate((3, 4, 5, 7)): sched[4][(u, 0)] = (lambda i=i: wo_load(4 + i))
            sched[5] = {(0,0): lambda: ffn_gu(0), (2,0): misc_loads, (4,0): lambda: ffn_gu(1), (6,0): ffn_dn}
            PR[40] = 3
        else:
            sched[2][(7,0)] = poll_issue
        for c in range(1, NU):
            for u in range(8):
                ex = {sl: f for (uu, sl), f in sched[c].items() if uu == u}
                if 8*c + u in PR: ex["p"] = PR[8*c + u]
                tile(u, ex)
            bump()
            k.stamp(name=f"x{n}_ch{c}")
        I(f"s_mov_b32 s{CTR}, {NU}")
        k.lines.append(".p2align 6")
        k.L(lab(n + "_loop"))
        if ENV("PEND", "1") == "0":
            I(f"s_cmp_lt_u32 s{CTR}, 5"); I(f"s_cbranch_scc1 {lab(n+'_pd')}")
            I("s_setprio 2")
            I(f"s_cmp_lt_u32 s{CTR}, 6"); I(f"s_cbranch_scc1 {lab(n+'_pd')}")
            I("s_setprio 1")
            I(f"s_cmp_lt_u32 s{CTR}, 7"); I(f"s_cbranch_scc1 {lab(n+'_pd')}")
            I("s_setprio 0")
            k.L(lab(n + "_pd"))
            for u in range(8): tile(u)
        else:
            I(f"s_cmp_lt_u32 s{CTR}, 6"); I(f"s_cbranch_scc1 {lab(n+'_pd')}")
            I("s_setprio 2")
            I(f"s_cmp_lt_u32 s{CTR}, 7"); I(f"s_cbranch_scc1 {lab(n+'_pd')}")
            I("s_setprio 1")
            k.L(lab(n + "_pd"))
            for u in range(8):
                if u == 5:
                    I(f"s_cmp_lt_u32 s{CTR}, 7"); I(f"s_cbranch_scc1 {lab(n+'_pe')}")
                    I("s_setprio 0")
                    k.L(lab(n + "_pe"))
                tile(u)
        bump()
        I(f"s_add_u32 s{CTR}, s{CTR}, 1")
        I(f"s_cmp_lt_u32 s{CTR}, 8")
        I(f"s_cbranch_scc1 {lab(n+'_loop')}")
        mfma(O, vr(VA[1]+4,4), vr(P1,4), O)
        I("s_waitcnt lgkmcnt(0)")
        k.stamp(name=n + "_attn")
        k.nop(12)
        I(f"s_cmp_lg_u32 s{PASS}, 0")
        I(f"s_cbranch_scc1 {lab(n+'_fin')}")
        I(f"v_cmp_nge_f32 vcc, s{THR}, v{O+8}")
        k.nop(2)
        I(f"s_cbranch_vccz {lab(n+'_fin')}")
        I(f"s_mov_b32 s{PASS}, 1")
        I(f"v_mov_b32 v{AK}, v3")
        I("v_mov_b32 v2, 0xff800000")
        I(f"s_mov_b32 s{CTR}, 0")
        k.L(lab(n + "_maxloop"))
        I(f"ds_read_b128 {vr(KB,4)}, v{AK}")
        I("s_waitcnt lgkmcnt(0)")
        mfma(S0, vr(KB,4), vr(Q,4), None)
        I(f"v_add_u32 v{AK}, 0x400, v{AK}")
        k.nop(12)
        max16(2, S0, False)
        I(f"s_add_u32 s{CTR}, s{CTR}, 1")
        I(f"s_cmp_lt_u32 s{CTR}, 64")
        I(f"s_cbranch_scc1 {lab(n+'_maxloop')}")
        setup()
        I(f"s_mov_b32 s{CTR}, 0")
        I(f"s_branch {lab(n+'_loop')}")
        k.L(lab(n + "_fin"))
        I(f"v_rcp_f32 v2, v{O+8}")
        I("s_nop 0")
        for r in range(8): I(f"v_mul_f32 v{O+r}, v{O+r}, v2")
        for r in range(4): I(f"v_cvt_pk_bf16_f32 v{P0+r}, v{O+2*r}, v{O+2*r+1}")
        I(f"global_store_dwordx4 v4, {vr(P0,4)}, {sp(OB_)} sc1")

    def oproj(L):
        n = f"l{L}"
        OBf, AC, X, Y = 64, 32, 96, 16
        lane_terms()
        I(f"s_lshl_b32 s{A0}, s{KQ}, 19")
        I(f"s_lshl_b32 s{A0+1}, s{OT}, 10")
        I(f"s_add_u32 s{A0}, s{A0}, s{A0+1}")
        I(f"v_add_u32 v10, s{A0}, v3")
        I(f"s_lshl_b32 s{A0}, s{WAVE}, 13")
        I(f"s_add_u32 s{A0}, s{A0}, 0x10000")
        I(f"v_add_u32 v12, s{A0}, v3")
        I(f"s_lshl_b32 s{A0}, s{TT}, 12")
        I(f"s_lshl_b32 s{A0+1}, s{HEAD}, 7")
        I(f"s_add_u32 s{A0}, s{A0}, s{A0+1}")
        I(f"s_add_u32 s{A0}, s{A0}, {hex(FLO[L])}")
        I(f"v_mov_b32 v13, s{A0}")
        I(f"v_mov_b32 v14, s{TAG}")
        I(f"s_lshl_b32 s{A0}, s{OT}, 12")
        I(f"s_lshl_b32 s{A0+1}, s{KQ}, 10")
        I(f"s_add_u32 s{A0}, s{A0}, s{A0+1}")
        I(f"s_add_u32 s{A0}, s{A0}, {hex(FLO[L])}")
        I(f"v_lshl_add_u32 v31, v1, 7, s{A0}")
        FLW = ENV("FLW", "0") == "1"
        if not FLW:
            I(f"s_lshl_b32 s{A0}, s{QB}, 15")
            I(f"s_add_u32 s{A0}, s{A0}, {hex(FLO[L])}")
            I(f"v_lshl_add_u32 v31, v6, 7, s{A0}")
        vm.drain()
        if not FLW:
            I("s_barrier")
            I(f"s_cmp_lg_u32 s{WAVE}, 0")
            I(f"s_cbranch_scc1 {lab(n+'_nof')}")
        I("s_mov_b64 exec, 1")
        I(f"global_store_dword v13, v14, {sp(WSP)} sc1")
        exec_all()
        if not FLW: k.L(lab(n + "_nof"))
        if L == 0 and FLW: I("s_barrier")
        k.stamp(name=n + "_odrain")
        if L == 0:
            for i in range(8): I(f"ds_write_b128 v12, {ar(AWO+4*i,4)} offset:{1024*i}")
            I(f"global_load_dwordx4 v[16:19], v3, {sp(WRP)}")
            I(f"s_lshl_b32 s{A0}, s{WAVE}, 11")
            I(f"v_lshl_add_u32 v13, v1, 5, s{A0}")
            I(f"ds_write_b128 v13, {ar(AGU,4)}")
            I(f"ds_write_b128 v13, {ar(AGU+4,4)} offset:16")
            I(f"v_add_u32 v13, s{W1K}, v3")
            I(f"ds_write_b128 v13, {ar(ADN,4)} offset:16384")
            I("v_bfe_u32 v13, v1, 2, 2")
            I("v_and_b32 v14, 3, v1")
            I("v_lshl_add_u32 v12, v7, 2, v13")
            I("v_lshlrev_b32 v12, 7, v12")
            I("v_lshl_add_u32 v12, v14, 3, v12")
            I("v_bfe_u32 v15, v1, 4, 1")
            I("v_lshl_add_u32 v12, v15, 5, v12")
            I(f"s_lshl_b32 s{A0+1}, s{KQ}, 5")
            I(f"v_xor_b32 v12, s{A0+1}, v12")
            I(f"s_lshl_b32 s{A0+1}, s{KQ}, 14")
            I(f"s_add_u32 s{A0+1}, s{A0+1}, 0x10000")
            I(f"v_add_u32 v12, s{A0+1}, v12")
            I("v_xor_b32 v15, 64, v12")
            bar()
            for i in range(8):
                for b in range(2):
                    I(f"ds_read_b64_tr_b16 {ar(AWO+8*i+4*b,2)}, v{15 if b else 12} offset:{2048*i}")
                    I(f"ds_read_b64_tr_b16 {ar(AWO+8*i+4*b+2,2)}, v{15 if b else 12} offset:{2048*i+1024}")
                if i % 2 == 1: I("s_waitcnt lgkmcnt(0)")
            I("v_lshrrev_b32 v15, 4, v1")
            I("v_lshl_add_u32 v13, v15, 3, v13")
            I("v_lshlrev_b32 v13, 5, v13")
            I("v_lshl_add_u32 v13, v14, 3, v13")
            I(f"v_add_u32 v13, s{A0}, v13")
            for i in range(2):
                I(f"ds_read_b64_tr_b16 {ar(AGU+4*i,2)}, v13 offset:{1024*i}")
                I(f"ds_read_b64_tr_b16 {ar(AGU+4*i+2,2)}, v13 offset:{1024*i+128}")
            I("v_lshlrev_b32 v13, 1, v0")
            for f in range(8): I(f"ds_read_u16 a{ADN+f}, v13 offset:{16384+1024*f}")
            I("v_mov_b32 v20, 0")
            I("s_waitcnt vmcnt(0)")
            for r in range(4): I(f"v_dot2_f32_bf16 v20, v{16+r}, s{ONES}, v20")
            k.nop(1)
            allreduce("v_add_f32", 20, 21)
            I("s_nop 0")
            I(f"v_readfirstlane_b32 s{WSUM}, v20")
        NF = 0
        I(f"s_lshl_b32 s{A0}, s{OA}, 15")
        for g in range(4):
            I(f"s_xor_b32 s{A0+1}, s{KQ}, {g}")
            I(f"s_lshl_b32 s{A0+1}, s{A0+1}, 13")
            I(f"s_add_u32 s{A0+1}, s{A0+1}, s{A0}")
            I(f"v_add_u32 v{27+g}, s{A0+1}, v3")
        for i in range(4): unpack(X + 2*i, X + 2*i + 1, XG + i)
        if L == 1:
            for r in range(8): I(f"v_sub_f32 v{Y+r}, v{X+r}, v{RESM}")
            for r in range(8): I(f"v_mul_f32 v{Y+r}, v{Y+r}, v{RESR}")
            for i in range(4): I(f"v_cvt_pk_bf16_f32 v{XG+i}, v{Y+2*i}, v{Y+2*i+1}")
            for i in range(4): unpack(Y + 2*i, Y + 2*i + 1, XG + i)
            for r in range(8): I(f"v_add_f32 v{X+r}, v{X+r}, v{Y+r}")
            for i in range(4): I(f"v_cvt_pk_bf16_f32 v{XG+i}, v{X+2*i}, v{X+2*i+1}")
            for i in range(4): unpack(X + 2*i, X + 2*i + 1, XG + i)
        for i in range(4): unpack(104 + 2*i, 105 + 2*i, WR + i)
        if FLW:
            I("s_mov_b64 exec, 0xff")
        else:
            I(f"s_cmp_lg_u32 s{WAVE}, 0")
            I(f"s_cbranch_scc1 {lab(n+'_owait')}")
            exec_lo(-1)
        poll(n + "_po", [f"global_load_dword v14, v31, {sp(WSP)} sc1"], [14])
        exec_all()
        if not FLW:
            k.L(lab(n + "_owait"))
            bar()
        k.stamp(name=n + "_opoll")
        for i in range(8):
            I(f"global_load_dwordx4 {vr(OBf+4*i,4)}, v10, {sp(OB_)} sc1")
            if i < 7: I("v_add_u32 v10, 0x10000, v10")
        for i in range(8):
            I(f"s_waitcnt vmcnt({7-i+NF})")
            for b in range(2): mfma(AC + 16*b, ar(AWO+8*i+4*b,4), vr(OBf+4*i,4), AC + 16*b if i else None)
        if FLW: bar()
        k.stamp(name=n + "_omm")
        k.nop(12)
        for g in range(1, 4):
            for hf in range(2): I(f"ds_write_b128 v{27+g}, {vr(AC+8*g+4*hf,4)} offset:{2048*g+1024*hf}")
        bar()
        k.stamp(name="x" + n + "_red")
        for g in range(1, 4):
            for hf in range(2): I(f"ds_read_b128 {vr(AC+8*g+4*hf,4)}, v27 offset:{2048*g+1024*hf}")
        sadd64(XB_, WSP, XF[L])
        I("s_waitcnt lgkmcnt(4)")
        for r in range(8): I(f"v_add_f32 v{AC+r}, v{AC+r}, v{AC+8+r}")
        I("s_waitcnt lgkmcnt(0)")
        for r in range(8): I(f"v_add_f32 v{AC+16+r}, v{AC+16+r}, v{AC+24+r}")
        for r in range(8): I(f"v_add_f32 v{AC+r}, v{AC+r}, v{AC+16+r}")
        for i in range(4): I(f"v_cvt_pk_bf16_f32 v{XG+i}, v{AC+2*i}, v{AC+2*i+1}")
        for i in range(4): unpack(Y + 2*i, Y + 2*i + 1, XG + i)
        for r in range(8): I(f"v_add_f32 v{X+r}, v{X+r}, v{Y+r}")
        for i in range(4): I(f"v_cvt_pk_bf16_f32 v{XG+i}, v{X+2*i}, v{X+2*i+1}")
        for i in range(4): I(f"v_mov_b32 v{24+i}, v{XG+i}")
        k.nop(1)
        I("v_permlane32_swap_b32 v24, v26")
        I("v_permlane32_swap_b32 v25, v27")
        I(f"global_store_dwordx4 v{VXO}, v[24:27], {sp(XB_)} sc1")
        for i in range(4): unpack(X + 2*i, X + 2*i + 1, XG + i)
        I(f"v_add_f32 v16, v{X}, v{X+1}")
        I(f"v_mul_f32 v17, v{X}, v{X}")
        I(f"v_mul_f32 v18, v{X}, v104")
        for r in range(1, 8):
            if r > 1: I(f"v_add_f32 v16, v16, v{X+r}")
            I(f"v_fmac_f32 v17, v{X+r}, v{X+r}")
            I(f"v_fmac_f32 v18, v{X+r}, v{104+r}")
        I(f"s_lshl_b32 s{A0}, s{OA}, 12")
        I(f"s_lshl_b32 s{A0+1}, s{KQ}, 10")
        I(f"s_add_u32 s{A0}, s{A0}, s{A0+1}")
        I(f"s_add_u32 s{A0}, s{A0}, {LSA}")
        I(f"v_add_u32 v13, s{A0}, v3")
        I("ds_write_b96 v13, v[16:18]")
        k.stamp(name="x" + n + "_epi")
        I("s_waitcnt vmcnt(0) lgkmcnt(0)")
        k.stamp(name="x" + n + "_xdrain")
        I("s_waitcnt vmcnt(0) lgkmcnt(0)")
        I("s_barrier")
        I(f"s_cmp_lg_u32 s{WAVE}, 0")
        I(f"s_cbranch_scc1 {lab(n+'_nost')}")
        I("v_lshlrev_b32 v13, 4, v6")
        I("v_lshl_add_u32 v13, v7, 12, v13")
        I(f"v_add_u32 v13, {LSA}, v13")
        for j in range(8): I(f"ds_read_b96 {vr(32+4*j,3)}, v13 offset:{512*j}")
        I(f"s_lshl_b32 s{A0}, s{TB}, 3")
        I(f"s_add_u32 s{A0}, s{A0}, s{CG}")
        I(f"s_lshl_b32 s{A0}, s{A0}, 10")
        I(f"s_add_u32 s{A0}, s{A0}, {hex(ST[L])}")
        I(f"v_add_u32 v13, s{A0}, v3")
        I(f"v_mov_b32 v35, s{TAG}")
        I("s_waitcnt lgkmcnt(0)")
        for j in range(1, 8):
            for c in range(3): I(f"v_add_f32 v{32+c}, v{32+c}, v{32+4*j+c}")
        I(f"global_store_dwordx4 v13, v[32:35], {sp(WSP)} sc1")
        k.L(lab(n + "_nost"))
        k.stamp(name=n + "_stpub")

    def hop_a(L, after_poll=None):
        n = f"l{L}"
        I(f"s_lshl_b32 s{A0}, s{TB}, 13")
        I(f"s_add_u32 s{A0}, s{A0}, {hex(ST[L])}")
        I(f"v_lshl_add_u32 v12, v0, 4, s{A0}")
        loads = [f"global_load_dwordx4 v[32:35], v12, {sp(WSP)} sc1"]; tags = [35]
        if ENV("HA2", "1") == "1":
            I(f"s_cmp_lg_u32 s{WAVE}, 0")
            I(f"s_cbranch_scc1 {lab(n+'_a1')}")
            if L == 0:
                I(f"s_lshl_b32 s{A0}, s{QB}, 15")
                I(f"s_add_u32 s{A0}, s{A0}, {hex(ST[L])}")
            I(f"s_add_u32 s{A0}, s{A0}, 1020")
            I(f"v_lshl_add_u32 v13, v1, 10, s{A0}")
            exec_lo(-1 if L == 0 else "0xff")
            poll(n + "_p1", [f"global_load_dword v36, v13, {sp(WSP)} sc1"], [36])
            exec_all()
            k.L(lab(n + "_a1"))
            I("s_barrier")
        else:
            if L == 0:
                I(f"s_lshr_b32 s{A0}, s{TT}, 1")
                I(f"s_lshl_b32 s{A0}, s{A0}, 13")
                I(f"s_add_u32 s{A0}, s{A0}, {hex(ST[L] + 12)}")
                I("v_and_b32 v13, 7, v1")
                I(f"v_lshl_add_u32 v13, v13, 10, s{A0}")
                loads.append(f"global_load_dword v36, v13, {sp(WSP)} sc1"); tags.append(36)
        poll(n + "_pa", loads, tags)
        I("v_lshlrev_b32 v13, 4, v0")
        I("ds_write_b96 v13, v[32:34]")
        if after_poll: after_poll()
        I(f"s_lshl_b32 s{A0}, s{OA}, 9")
        I(f"v_lshl_add_u32 v13, v6, 4, s{A0}")
        bar()
        k.stamp(name=n + "_hopa")
        for c in range(8): I(f"ds_read_b96 {vr(16+4*c,3)}, v13 offset:{1024*c}")
        I("s_waitcnt lgkmcnt(0)")
        for a_, b_ in ((0,1),(2,3),(4,5),(6,7),(0,2),(4,6),(0,4)):
            for c in range(3): I(f"v_add_f32 v{16+4*a_+c}, v{16+4*a_+c}, v{16+4*b_+c}")
        rowstats(16, 17, RESM, 20, RESR)
        I(f"s_or_b32 s{A0}, s{CG}, s{KQ}")
        I(f"s_cmp_lg_u32 s{A0}, 0")
        I(f"s_cbranch_scc1 {lab(n+'_nokey')}")
        I(f"v_fma_f32 v18, -v{RESM}, s{WSUM}, v18")
        I(f"v_mul_f32 v18, v18, v{RESR}")
        bf16r(18)
        I("v_ashrrev_i32 v19, 31, v18")
        I("v_or_b32 v19, 0x80000000, v19")
        I("v_xor_b32 v19, v19, v18")
        I("v_and_b32 v19, 0xffff0000, v19")
        I(f"v_sub_u32 v20, 2047, v{VTK}")
        I("v_or_b32 v20, v19, v20")
        I("v_mov_b32 v24, v20")
        I(f"v_mov_b32 v21, v{RESM}")
        dppred("v_max_u32", 24, Q4 + ("row_half_mirror", "row_mirror"))
        swapop("v_permlane16_swap_b32", "v_max_u32", 24, 25)
        I("v_cmp_eq_u32 vcc, v24, v20")
        I(f"v_mov_b32 v22, v{RESR}")
        I(f"v_mov_b32 v23, s{TAG}")
        I(f"s_lshl_b32 s{A0}, s{OT}, 7")
        I(f"s_add_u32 s{A0}, s{A0}, {hex(KEY[L])}")
        I(f"v_mov_b32 v13, s{A0}")
        I("s_mov_b32 exec_lo, vcc_lo")
        I("s_mov_b32 exec_hi, 0")
        I(f"global_store_dwordx4 v13, v[20:23], {sp(WSP)} sc1")
        exec_all()
        k.L(lab(n + "_nokey"))
        k.stamp(name="x" + n + "_key")

    FT = 76
    SR = 96
    stat_loads = [f"global_load_dwordx4 {vr(SR+4*i,4)}, v11, {sp(WSP)} offset:{1024*i} sc1" for i in range(4)]
    stat_tags = [SR + 4*i + 3 for i in range(4)]
    def own_stats():
        for i in range(1, 4):
            for c in range(2): I(f"v_add_f32 v{SR+c}, v{SR+c}, v{SR+4*i+c}")
        halfsum("v_add_f32", SR, SR + 2)
        halfsum("v_add_f32", SR + 1, SR + 2)
        rowstats(SR, SR + 1, MT[0], SR + 2, SR + 3)
        I(f"v_mov_b32 v{AT[0]}, s{CEPS}")
        I(f"v_add_f32 v{SR+3}, 1.0, v{SR+3}")
        I(f"v_mul_f32 v{SR+2}, v{SR+2}, v{SR+3}")
        I(f"v_fmac_f32 v{AT[0]}, v{SR+2}, v{SR+3}")
        I(f"v_rsq_f32 v{AT[0]}, v{AT[0]}")
        I(f"v_mov_b32 v{MT[1]}, v{MT[0]}")
        I(f"v_mul_f32 v{AT[0]}, v{AT[0]}, v{SR+3}")
        I(f"v_mov_b32 v{AT[1]}, v{AT[0]}")
        I(f"v_permlane16_swap_b32 v{MT[0]}, v{MT[1]}")
        I("s_nop 0")
        I(f"v_permlane16_swap_b32 v{AT[0]}, v{AT[1]}")
    def key_load(L):
        return f"global_load_dwordx4 {vr(FT,4)}, v{FT+4}, {sp(WSP)} sc1"
    def hop_b_issue(L, sfx=""):
        I(f"v_lshlrev_b32 v{FT+4}, 7, v1")
        I(f"v_add_u32 v{FT+4}, {hex(KEY[L])}, v{FT+4}")
        I(f"s_cmp_lg_u32 s{WAVE}, 0")
        I(f"s_cbranch_scc1 {lab(f'l{L}_nki{sfx}')}")
        I(key_load(L))
        k.L(lab(f"l{L}_nki{sfx}"))
    def hop_b(L, role=""):
        n = f"l{L}{role}"
        I(f"v_mov_b32 v{FT+6}, {LFF}")
        I(f"s_cmp_lg_u32 s{WAVE}, 0")
        I(f"s_cbranch_scc1 {lab(n+'_kw')}")
        keepq = list(vm.q)
        poll(n + "_pb", [key_load(L)], [FT + 3], first_issued=True)
        vm.q = keepq
        I(f"v_mov_b32 v{FT+5}, v{FT}")
        allreduce("v_max_u32", FT + 5, FT + 7)
        I(f"v_cmp_eq_u32 vcc, v{FT+5}, v{FT}")
        I("s_mov_b64 exec, vcc")
        I(f"ds_write_b96 v{FT+6}, {vr(FT,3)}")
        exec_all()
        k.L(lab(n + "_kw"))
        bar()
        I(f"ds_read_b96 {vr(FT,3)}, v{FT+6}")
        I("s_waitcnt lgkmcnt(0)")
        I(f"v_readfirstlane_b32 s{IDX}, v{FT}")
        I(f"v_readfirstlane_b32 s{RM}, v{FT+1}")
        I(f"v_readfirstlane_b32 s{RR}, v{FT+2}")
        I(f"s_and_b32 s{RS_}, s{IDX}, 0xffff0000")
        I(f"s_and_b32 s{IDX}, s{IDX}, 0x7ff")
        I(f"s_sub_u32 s{IDX}, 2047, s{IDX}")
        I(f"s_ashr_i32 s{A0}, s{RS_}, 31")
        I(f"s_not_b32 s{A0}, s{A0}")
        I(f"s_or_b32 s{A0}, s{A0}, 0x80000000")
        I(f"s_xor_b32 s{RS_}, s{RS_}, s{A0}")
        I(f"s_and_b32 s{RS_}, s{RS_}, 0xffff0000")
        I(f"s_lshr_b32 s{A0}, s{IDX}, 4")
        I(f"s_lshl_b32 s{A0}, s{A0}, 14")
        I(f"s_and_b32 s{A0+1}, s{IDX}, 15")
        I(f"s_lshl_b32 s{A0+1}, s{A0+1}, 4")
        I(f"s_add_u32 s{A0}, s{A0}, s{A0+1}")
        I("s_cmp_ge_u32 s2, 224")
        I(f"s_cbranch_scc1 {lab(n+'_frow')}")
        I(f"s_lshl_b32 s{A0+1}, s{WAVE}, 11")
        I(f"s_add_u32 s{A0}, s{A0}, s{A0+1}")
        I(f"v_and_b32 v{FT+4}, 48, v1")
        I(f"v_lshl_add_u32 v{FT+4}, v{FT+4}, 4, s{A0}")
        I(f"v_add_u32 v{FT+5}, 0x400, v{FT+4}")
        I(f"s_branch {lab(n+'_rowld')}")
        k.L(lab(n + "_frow"))
        I(f"s_sub_u32 s{A0+1}, s2, 224")
        I(f"s_lshl_b32 s{A0+1}, s{A0+1}, 9")
        I(f"s_add_u32 s{A0}, s{A0}, s{A0+1}")
        I(f"v_bfe_u32 v{FT+4}, v1, 3, 1")
        I(f"v_lshl_add_u32 v{FT+4}, v{FT+4}, 8, s{A0}")
        I(f"v_mov_b32 v{FT+5}, v{FT+4}")
        k.L(lab(n + "_rowld"))
        vm.issue(f"global_load_dwordx4 {vr(FT+8,4)}, v{FT+4}, {sp(XB_)} sc1", "row")
        vm.issue(f"global_load_dwordx4 {vr(FT+12,4)}, v{FT+5}, {sp(XB_)} sc1", "row")
    def slice1(L):
        n = f"l{L}"
        XR = FT + 8
        vm.wait("row")
        k.stamp(name="x" + n + "_row")
        I("s_cmp_ge_u32 s2, 224")
        I(f"s_cbranch_scc1 {lab(n+'_s1skip')}")
        for i in range(8):
            unpack(FT, FT + 1, XR + i)
            I(f"v_subrev_f32 v{FT}, s{RM}, v{FT}")
            I(f"v_subrev_f32 v{FT+1}, s{RM}, v{FT+1}")
            I(f"v_mul_f32 v{FT}, s{RR}, v{FT}")
            I(f"v_mul_f32 v{FT+1}, s{RR}, v{FT+1}")
            I(f"v_cvt_pk_bf16_f32 v{XR+i}, v{FT}, v{FT+1}")
        I(f"v_lshrrev_b32 v{FT+4}, 4, v1")
        I(f"v_lshlrev_b32 v{FT+4}, 4, v{FT+4}")
        I(f"v_mfma_f32_16x16x32_bf16 {vr(FT+16,4)}, {ar(AGU,4)}, {vr(XR,4)}, 0")
        I(f"v_mfma_f32_16x16x32_bf16 {vr(FT+16,4)}, {ar(AGU+4,4)}, {vr(XR+4,4)}, {vr(FT+16,4)}")
        I(f"s_lshl_b32 s{A0}, s{WAVE}, 6")
        I(f"s_add_u32 s{A0}, s{A0}, {LFF + 256}")
        I(f"v_add_u32 v{FT+4}, s{A0}, v{FT+4}")
        I("s_mov_b32 exec_lo, 0x00010001")
        I("s_mov_b32 exec_hi, 0x00010001")
        k.nop(3)
        I(f"ds_write_b128 v{FT+4}, {vr(FT+16,4)}")
        exec_all()
        bar()
        k.L(lab(n + "_s1skip"))
    def slice2(L):
        n = f"l{L}"
        I("s_cmp_ge_u32 s2, 224")
        I(f"s_cbranch_scc1 {lab(n+'_s2skip')}")
        I(f"v_and_b32 v{FT+4}, 15, v1")
        I(f"v_lshlrev_b32 v{FT+4}, 2, v{FT+4}")
        I(f"v_add_u32 v{FT+4}, {LFF + 256}, v{FT+4}")
        for i in range(8): I(f"ds_read_b32 v{FT+8+i}, v{FT+4} offset:{64*i}")
        for f in range(8): I(f"v_accvgpr_read_b32 v{FT+16+f}, a{ADN+f}")
        for f in range(8): I(f"v_lshlrev_b32 v{FT+16+f}, 16, v{FT+16+f}")
        I("s_waitcnt lgkmcnt(0)")
        g = FT + 8
        for a_, b_ in ((0,1),(2,3),(4,5),(6,7),(0,2),(4,6),(0,4)): I(f"v_add_f32 v{g+a_}, v{g+a_}, v{g+b_}")
        bf16r(g)
        t = FT
        I(f"v_mul_f32 v{t}, {hex(f2u(-LOG2E))}, v{g}")
        I(f"v_exp_f32 v{t}, v{t}")
        I("s_nop 0")
        I(f"v_add_f32 v{t}, 1.0, v{t}")
        I(f"v_rcp_f32 v{t}, v{t}")
        I("s_nop 0")
        I(f"v_mul_f32 v{t}, v{t}, v{g}")
        bf16r(t)
        k.nop(2)
        I(f"v_mul_f32_dpp v{t}, v{g}, v{t} row_ror:8 row_mask:0xf bank_mask:0xf")
        bf16r(t)
        k.nop(1)
        for f in range(8): I(f"v_readlane_b32 s{A0+f}, v{t}, {f}")
        I(f"s_lshl_b32 s{T2}, s{CGP}, 12")
        I(f"s_add_u32 s{T2}, s{T2}, {hex(YP[L])}")
        I(f"v_lshl_add_u32 v{FT+4}, v0, 3, s{T2}")
        I(f"v_mul_f32 v{FT+2}, s{A0}, v{FT+16}")
        for f in range(1, 8): I(f"v_fmac_f32 v{FT+2}, s{A0+f}, v{FT+16+f}")
        I(f"v_mov_b32 v{FT+3}, s{TAG}")
        I(f"global_store_dwordx2 v{FT+4}, {vr(FT+2,2)}, {sp(WSP)} sc1")
        k.L(lab(n + "_s2skip"))
    def finalize(L):
        n = f"l{L}"
        I("s_cmp_lt_u32 s2, 224")
        I(f"s_cbranch_scc1 {lab(n+'_fskip')}")
        XR = FT + 8
        I(f"v_lshrrev_b32 v{FT+4}, 4, v0")
        I(f"v_mul_u32_u24 v{FT+4}, {7*4096}, v{FT+4}")
        I(f"v_and_b32 v{FT+5}, 15, v0")
        I(f"v_lshl_add_u32 v{FT+4}, v{FT+5}, 3, v{FT+4}")
        I(f"s_sub_u32 s{A0}, s2, 224")
        I(f"s_lshl_b32 s{A0+1}, s{A0}, 7")
        I(f"s_add_u32 s{A0+1}, s{A0+1}, {hex(YP[L])}")
        I(f"v_add_u32 v{FT+4}, s{A0+1}, v{FT+4}")
        for i in range(1, 4): I(f"v_add_u32 v{FT+i-1}, {8192*i}, v{FT+4}")
        I(f"v_bfe_u32 v{FT+6}, v1, 1, 1")
        I(f"v_cmp_eq_u32 vcc, 1, v{FT+6}")
        I(f"v_bfe_u32 v{FT+6}, v1, 2, 1")
        I("s_nop 0")
        I(f"v_cndmask_b32 v{XR}, v{XR}, v{XR+1}, vcc")
        I(f"v_cndmask_b32 v{XR+2}, v{XR+2}, v{XR+3}, vcc")
        I(f"v_cmp_eq_u32 vcc, 1, v{FT+6}")
        I(f"v_and_b32 v{FT+6}, 1, v1")
        I("s_nop 0")
        I(f"v_cndmask_b32 v{XR}, v{XR}, v{XR+2}, vcc")
        I(f"v_cmp_eq_u32 vcc, 1, v{FT+6}")
        unpack(XR + 1, XR + 2, XR)
        I(f"v_cndmask_b32 v{XR}, v{XR+1}, v{XR+2}, vcc")
        Y_ = FT + 16
        ad = [FT + 4, FT, FT + 1, FT + 2]
        keepq = list(vm.q)
        poll(n + "_pl", [f"global_load_dwordx2 {vr(Y_+12,2)}, v{ad[3]}, {sp(WSP)} sc1"], [Y_ + 13])
        poll(n + "_pf", [f"global_load_dwordx2 {vr(Y_+2*i,2)}, v{ad[i//2]}, {sp(WSP)} offset:{4096*(i%2) - (4096 if False else 0)} sc1" if False else
                         f"global_load_dwordx2 {vr(Y_+2*i,2)}, v{ad[(i+1)//2]}, {sp(WSP)} offset:{-4096 if i % 2 else 0} sc1" for i in range(7)],
             [Y_ + 2*i + 1 for i in range(7)])
        for i in range(1, 7): I(f"v_add_f32 v{Y_}, v{Y_}, v{Y_+2*i}")
        rowreduce("v_add_f32", Y_, FT + 6)
        I(f"v_lshlrev_b32 v{FT+5}, 2, v{FT+5}")
        I(f"v_add_u32 v{FT+5}, {LFF + 256}, v{FT+5}")
        I(f"s_lshl_b32 s{A0+1}, s{WAVE}, 6")
        I(f"v_add_u32 v{FT+6}, s{A0+1}, v{FT+5}")
        I(f"ds_write_b32 v{FT+6}, v{Y_}")
        bar()
        for i in range(8): I(f"ds_read_b32 v{Y_+i}, v{FT+5} offset:{64*i}")
        t = FT
        I(f"v_mov_b32 v{t}, {hex(f2u(-LOG2E))}")
        I(f"v_mul_f32 v{t}, s{RS_}, v{t}")
        I(f"v_exp_f32 v{t}, v{t}")
        I(f"v_subrev_f32 v{t+1}, s{RM}, v{XR}")
        I(f"v_add_f32 v{t}, 1.0, v{t}")
        I(f"v_rcp_f32 v{t}, v{t}")
        I(f"v_mul_f32 v{t+1}, s{RR}, v{t+1}")
        bf16r(t); bf16r(t + 1)
        I("s_waitcnt lgkmcnt(0)")
        for i in range(1, 8): I(f"v_add_f32 v{Y_}, v{Y_}, v{Y_+i}")
        bf16r(Y_)
        I(f"v_mul_f32 v{Y_}, v{Y_}, v{t}")
        bf16r(Y_)
        I(f"v_add_f32 v{Y_}, v{Y_}, v{t+1}")
        bf16r(Y_)
        I(f"v_add_f32 v{Y_}, v{Y_}, v{XR}")
        I(f"v_cvt_pk_bf16_f32 v{Y_}, v{Y_}, v{Y_}")
        I(f"s_cmp_lg_u32 s{WAVE}, 0")
        I(f"s_cbranch_scc1 {lab(n+'_fskip')}")
        if L == 1:
            I(f"s_lshl_b32 s{A0+1}, s{IDX}, 10")
            I(f"s_lshl_b32 s{A0}, s{A0}, 5")
            I(f"s_add_u32 s{A0}, s{A0}, s{A0+1}")
            I(f"v_lshl_add_u32 v{FT+4}, v1, 1, s{A0}")
            exec_lo("0xffff")
            I(f"global_store_short v{FT+4}, v{Y_}, {sp(OUTP)}")
        else:
            I(f"v_and_b32 v{Y_}, 0xffff, v{Y_}")
            k.nop(2)
            for j, qp in ((1, 1), (2, 2), (3, 3)):
                I(f"v_mov_b32_dpp v{Y_+j}, v{Y_} quad_perm:[{qp},{qp},{qp},{qp}] row_mask:0xf bank_mask:0xf")
            I(f"v_lshl_or_b32 v{Y_}, v{Y_+1}, 16, v{Y_}")
            I(f"v_lshl_or_b32 v{Y_+1}, v{Y_+3}, 16, v{Y_+2}")
            I(f"v_mov_b32 v{Y_+2}, s{TAG}")
            I(f"s_lshl_b32 s{A0}, s{A0}, 7")
            I(f"s_add_u32 s{A0}, s{A0}, {hex(X2R)}")
            I(f"v_lshl_add_u32 v{FT+4}, v1, 2, s{A0}")
            exec_lo("0x1111")
            I(f"global_store_dwordx4 v{FT+4}, {vr(Y_,4)}, {sp(WSP)} sc1")
        exec_all()
        k.L(lab(n + "_fskip"))
        vm.q = keepq

    q_epilogue(0)
    k.stamp(name="l0_qepi")
    attention(0)
    oproj(0)
    I(f"s_mul_i32 s{A0}, s{WAVE}, 6144")
    I(f"s_add_u32 s{A0}, s{A0}, {LWQ}")
    I(f"v_add_u32 v12, s{A0}, v3")
    for i in range(6): I(f"ds_write_b128 v12, {ar(AWS+4*i,4)} offset:{1024*i}")
    I(f"s_lshl_b32 s{A0}, s{TT}, 15")
    I(f"v_add_u32 v8, s{A0}, v3")
    I("v_add_u32 v9, 0x4000, v8")
    I(f"s_lshr_b32 s{A0}, s{TT}, 1")
    I(f"s_lshl_b32 s{A0}, s{A0}, 13")
    I(f"s_and_b32 s{A0+1}, s{TT}, 1")
    I(f"s_lshl_b32 s{A0+1}, s{A0+1}, 9")
    I(f"s_add_u32 s{A0}, s{A0}, s{A0+1}")
    I(f"s_add_u32 s{A0}, s{A0}, {hex(ST[0])}")
    I(f"v_lshl_add_u32 v11, v6, 4, s{A0}")
    I("v_lshl_add_u32 v11, v7, 12, v11")
    RING = 6
    LOOK = int(ENV("LOOK", "4"))
    ROT1 = 67 if not PROFILE else 101
    I(f"s_lshr_b32 s{ROT1}, s{HEAD}, 1")
    def xload(ks):
        I(f"s_add_u32 s{T0}, s{ROT1}, {ks}")
        I(f"s_and_b32 s{T0}, s{T0}, 15")
        I(f"s_lshl_b32 s{T0}, s{T0}, 10")
        I(f"s_add_u32 s{T0}, s{XB_}, s{T0}")
        I(f"s_addc_u32 s{T0+1}, s{XB_+1}, 0")
        for t in range(2):
            vm.issue(f"global_load_dwordx4 {ar(64+8*(ks % RING)+4*t,4)}, v{8+t}, {sp(T0)} sc1", f"x{ks}")
    def wbase1(ks):
        I(f"s_add_u32 s{T0}, s{ROT1}, {ks}")
        I(f"s_and_b32 s{T0}, s{T0}, 15")
        I(f"s_lshl_b32 s{T0}, s{T0}, 10")
        I(f"v_add_u32 v12, s{T0}, v10")
    def first_x():
        for ks in range(LOOK): xload(ks)
    hop_a(0)
    w_addr()
    def bg_loads():
        first_x()
        for l in stat_loads: vm.issue(l, "st")
    I("s_cmp_ge_u32 s2, 224")
    I(f"s_cbranch_scc1 {lab('fin_a')}")
    hop_b_issue(0)
    hop_b(0, role="s")
    slice1(0)
    slice2(0)
    bg_loads()
    I(f"s_branch {lab('q1_go')}")
    k.L(lab("fin_a"))
    vm.q = []
    bg_loads()
    k.L(lab("q1_go"))
    k.stamp(name="q1_ffn")
    wbase1(0)
    wreads(WB, 12, 0)
    wbase1(1)
    wreads(WB + 12, 12, 0)
    for ks in range(16):
        if ks + LOOK < 16: xload(ks + LOOK)
        if ks < 14:
            wbase1(ks + 2)
            wreads(WB + 12*((ks+2)%3), 12, 0)
        vm.wait(f"x{ks}", f" lgkmcnt({12 if ks < 14 else 6 if ks == 14 else 0})")
        qmfmas(WB + 12*(ks%3), ar(64+8*(ks % RING),4), ar(64+8*(ks % RING)+4,4), ks == 0)
    k.stamp(name="q1_loop")
    poll("ps", stat_loads, stat_tags, first_issued=True)
    own_stats()
    I("s_cmp_lt_u32 s2, 224")
    I(f"s_cbranch_scc1 {lab('fin_b')}")
    hop_b_issue(0, "f")
    hop_b(0, role="f")
    vm.drain()
    finalize(0)
    k.L(lab("fin_b"))
    k.stamp(name="q1_fin")
    I(f"s_lshr_b32 s{A0}, s{IDX}, 8")
    I(f"s_cmp_lg_u32 s{A0}, s{QB}")
    I(f"s_cbranch_scc1 {lab('nofix')}")
    F0, FX = 80, 64
    I(f"s_lshl_b32 s{A0}, s{WAVE}, 9")
    I(f"s_add_u32 s{A0}, s{A0}, {hex(X2R)}")
    I(f"v_lshl_add_u32 v12, v7, 7, s{A0}")
    I("v_bfe_u32 v13, v1, 4, 1")
    I("v_lshl_add_u32 v12, v13, 5, v12")
    if ENV("PX2", "0") == "1":
        I(f"s_cmp_lg_u32 s{WAVE}, 0")
        I(f"s_cbranch_scc1 {lab('px1')}")
        I("v_lshlrev_b32 v13, 7, v1")
        I(f"v_add_u32 v13, {hex(X2R + 56)}, v13")
        exec_lo(-1)
        poll("pw", [f"global_load_dword v14, v13, {sp(WSP)} sc1"], [14])
        exec_all()
        k.L(lab("px1"))
        I("s_barrier")
    poll("px", [f"global_load_dwordx3 {vr(F0+4*i,3)}, v12, {sp(WSP)} offset:{256*(i>>1)+16*(i&1)} sc1" for i in range(4)], [F0 + 4*i + 2 for i in range(4)])
    I(f"s_lshl_b32 s{A0}, s{WAVE}, 11")
    I(f"v_add_u32 v12, s{A0}, v10")
    for q in range(2): wreads(WB + 12*q, 12, q)
    for i in range(4):
        I(f"v_mov_b32 v{FX+2*i}, v{F0+4*i}")
        I(f"v_mov_b32 v{FX+2*i+1}, v{F0+4*i+1}")
    I("v_mov_b32 v14, 0"); I("v_mov_b32 v15, 0")
    for r in range(8):
        I(f"v_dot2_f32_bf16 v14, v{FX+r}, s{ONES}, v14")
        I(f"v_dot2_f32_bf16 v15, v{FX+r}, v{FX+r}, v15")
    I("s_waitcnt lgkmcnt(0)")
    for q in range(2):
        for sec in range(3): mfma16(F0 + 4*sec, vr(WB+12*q+4*sec,4), vr(FX+4*q,4), q == 0)
    rowreduce("v_add_f32", 14, 13)
    rowreduce("v_add_f32", 15, 13)
    I(f"s_lshl_b32 s{A0}, s{WAVE}, 8")
    I(f"s_add_u32 s{A0}, s{A0}, {LRD}")
    I("v_and_b32 v12, 48, v1")
    I(f"v_add_u32 v12, s{A0}, v12")
    I(f"v_mov_b32 v13, s{A0}")
    I("s_mov_b32 exec_lo, 0x00010001"); I("s_mov_b32 exec_hi, 0x00010001")
    for sec in range(3): I(f"ds_write_b128 v12, {vr(F0+4*sec,4)} offset:{64*sec}")
    I("ds_write_b64 v13, v[14:15] offset:192")
    exec_all()
    bar()
    I(f"s_lshr_b32 s{A0}, s{IDX}, 5")
    I(f"s_cmp_lg_u32 s{A0}, s{OT}")
    I(f"s_cbranch_scc1 {lab('nores')}")
    I(f"s_lshl_b32 s{A0}, s{KG}, 7")
    I(f"s_add_u32 s{A0}, s{A0}, {hex(X2R)}")
    I(f"v_lshl_add_u32 v14, v7, 4, s{A0}")
    I(f"v_cmp_eq_u32 vcc, s{IDX}, v{VTK}")
    I(f"s_and_saveexec_b64 {sp(T2)}, vcc")
    I(f"global_load_dwordx2 {vr(XG,2)}, v14, {sp(WSP)} sc1")
    I(f"global_load_dwordx2 {vr(XG+2,2)}, v14, {sp(WSP)} offset:32 sc1")
    I(f"v_mov_b32 v{RESR}, 0")
    exec_all()
    k.L(lab("nores"))
    I(f"s_lshr_b32 s{A0}, s{IDX}, 5")
    I(f"s_cmp_lg_u32 s{A0}, s{TT}")
    I(f"s_cbranch_scc1 {lab('nofix')}")
    sum8(LRD, LFX)
    I("v_and_b32 v12, 48, v1")
    I(f"v_add_u32 v12, {LFX}, v12")
    I(f"v_mov_b32 v13, {LFX + 192}")
    for sec in range(2): I(f"ds_read_b128 {vr(F0+4*sec,4)}, v12 offset:{64*sec}")
    I("ds_read_b64 v[64:65], v13")
    I("v_and_b32 v15, 15, v1")
    I("v_lshlrev_b32 v14, 2, v15")
    I(f"v_add_u32 v14, {LFX + 128}, v14")
    I("ds_read_b32 v66, v14")
    I(f"s_and_b32 s{A0}, s{IDX}, 31")
    I("v_lshrrev_b32 v13, 4, v1")
    I("v_lshlrev_b32 v13, 2, v13")
    I(f"v_sub_u32 v13, s{A0}, v13")
    I(f"v_sub_u32 v15, s{A0}, v15")
    I("s_waitcnt lgkmcnt(0)")
    rowstats(64, 65, 67, 68, 69)
    for t in range(2):
        I(f"v_cmp_eq_u32 vcc, {16*t}, v15")
        k.nop(2)
        I(f"v_cndmask_b32 v{MT[t]}, v{MT[t]}, v67, vcc")
        I(f"v_cndmask_b32 v{AT[t]}, v{AT[t]}, v69, vcc")
        for sec in range(2):
            for r in range(4): I(f"v_cndmask_b32 v{ACC+8*sec+4*t+r}, v{ACC+8*sec+4*t+r}, v{F0+4*sec+r}, vcc")
        for r in range(4):
            I(f"v_cmp_eq_u32 vcc, {16*t+r}, v13")
            k.nop(2)
            I(f"v_cndmask_b32 v{ACC+16+4*t+r}, v{ACC+16+4*t+r}, v66, vcc")
    k.L(lab("nofix"))
    vm.drain()
    k.stamp(name="q1_fix")
    bounce_params()
    q_epilogue(1)
    k.stamp(name="l1_qepi")
    attention(1)
    oproj(1)
    hop_a(1)
    hop_b_issue(1)
    X, Y = 96, 16
    for i in range(4): unpack(X + 2*i, X + 2*i + 1, XG + i)
    for r in range(8): I(f"v_sub_f32 v{Y+r}, v{X+r}, v{RESM}")
    for r in range(8): I(f"v_mul_f32 v{Y+r}, v{Y+r}, v{RESR}")
    for i in range(4): I(f"v_cvt_pk_bf16_f32 v{XG+i}, v{Y+2*i}, v{Y+2*i+1}")
    for i in range(4): unpack(Y + 2*i, Y + 2*i + 1, XG + i)
    for r in range(8): I(f"v_add_f32 v{X+r}, v{X+r}, v{Y+r}")
    for i in range(4): I(f"v_cvt_pk_bf16_f32 v{XG+i}, v{X+2*i}, v{X+2*i+1}")
    I(f"s_lshl_b32 s{A0}, s{KG}, 5")
    I(f"v_lshl_add_u32 v12, v7, 4, s{A0}")
    I(f"v_lshl_add_u32 v12, v{VTK}, 10, v12")
    I(f"v_permlane32_swap_b32 v{XG}, v{XG+2}")
    I(f"v_permlane32_swap_b32 v{XG+1}, v{XG+3}")
    hop_b(1)
    k.stamp(name="t_hopb")
    I(f"v_cmp_ne_u32 vcc, s{IDX}, v{VTK}")
    I(f"s_and_saveexec_b64 {sp(T2)}, vcc")
    vm.issue(f"global_store_dwordx4 v12, {vr(XG,4)}, {sp(OUTP)} {ENV('OUTF', '')}")
    exec_all()
    slice1(1)
    slice2(1)
    k.stamp(name="t_slice")
    finalize(1)
    I("s_cmp_lg_u32 s2, 0")
    I(f"s_cbranch_scc1 {lab('end')}")
    I(f"v_mov_b32 v12, {hex(NONCE)}")
    I(f"v_mov_b32 v13, s{TAG}")
    I("v_cmp_eq_u32 vcc, 0, v0")
    I(f"s_and_saveexec_b64 {sp(T2)}, vcc")
    I(f"s_cbranch_execz {lab('end')}")
    I(f"global_store_dword v12, v13, {sp(WSP)}")
    k.L(lab("end"))
    k.stamp_end(0)
    if ENV("DBGT"):
        I("s_cmp_lt_u32 s2, 224")
        I(f"s_cbranch_scc1 {lab('exit')}")
        I(f"s_cmp_lg_u32 s{WAVE}, 0")
        I(f"s_cbranch_scc1 {lab('exit')}")
        I("s_load_dwordx2 s[4:5], s[0:1], 72")
        I("s_memrealtime s[6:7]")
        I("s_memtime s[8:9]")
        I("s_waitcnt lgkmcnt(0)")
        I("s_mov_b64 exec, 1")
        I("s_not_b32 s96, s96")
        I("s_sub_u32 s8, s8, s98")
        I("v_mov_b32 v1, 0"); I("v_mov_b32 v2, s96"); I("v_mov_b32 v3, s6"); I("v_mov_b32 v4, s8")
        I("global_atomic_umax v1, v2, s[4:5]")
        I("global_atomic_umax v1, v3, s[4:5] offset:4")
        I("global_atomic_umax v1, v4, s[4:5] offset:8")
    k.L(lab("exit"))
    I("s_endpgm")
    return k

if __name__ == "__main__":
    k = build_kernel()
    bad = check_hazards(k)
    for b in bad: print("HAZARD", b, file=sys.stderr)
    out = sys.argv[1] if len(sys.argv) > 1 else "cdna_kernels/" + NAME + ".s"
    txt = emit_file(HEADER, [k], single=(ENV("SINGLE", "0") == "1"))
    open(out, "w").write(txt)
    print("written", out, len(txt), "bytes; hazards:", len(bad))
```

```python
import sys, struct, os
from asmlib import *

NAME = "interleave_layers__softmax_full_mha__moe_arch_mod__prompt"
HEADER = open("cdna_kernels/" + NAME + ".s.ref").read().split("; Override launch")[0]
ENV = os.environ.get

XF = [0x000000, 0x200000]
KF = [0x400000, 0x800000]
VF = [0x600000, 0xA00000]
OF = [0xC00000, 0xE00000]
ST = [0x1000000, 0x1040000]
YP = [0x1080000, 0x1180000]
FLK = [0x1280000, 0x1288000]
FLO = [0x1300000, 0x1340000]
KEY = [0x12A4000, 0x12A6000]
X2R = 0x12A0000
NONCE = 0x12A2000
EPS = 1e-5
def f2u(x): return struct.unpack("<I", struct.pack("<f", x))[0]
QSCALE = 0.25 * 1.4426950408889634
LOG2E = 1.4426950408889634
SPIN_MAX = 1 << 18

CB, CBN = 131072, 20
LWQ = 8192
LST = CB + CBN * 512
LSA = LST
LPC = LST + 8192
LFX = LST + 8448
LVB = LST + 8704
LRD = LST + 10752
LFF = LST + 14848
LDS_BYTES = LFF + 1024

X0P, WQP, WOP, WSP, WRP, WGP, WUP, WDP, OUTP = 4, 6, 8, 10, 12, 14, 16, 18, 20
HEAD, QB, WAVE, TT, W1K, THR, CTR, SPIN, PASS, TAG, CG, TB, OA, KQ, OT, KG, IDX, WSUM = range(22, 40)
T0, T2 = 40, 42
A0 = 44
KB_, VB_, OB_, XB_ = 52, 54, 56, 58
RM, RR, RS_, ONES, C512, CEPS = 60, 61, 62, 63, 64, 65
CGP = 3

def sp(i): return f"s[{i}:{i+1}]"

class VM:
    def __init__(self, k): self.k = k; self.q = []
    def issue(self, txt, tag=None):
        self.k.I(txt); self.q.append(tag)
    def wait(self, tag, extra=""):
        i = max(j for j, t in enumerate(self.q) if t == tag)
        n = len(self.q) - 1 - i
        assert n <= 63
        self.k.I(f"s_waitcnt vmcnt({n}){extra}")
    def drain(self, extra=""):
        self.k.I(f"s_waitcnt vmcnt(0){extra}"); self.q = []

def build_kernel():
    k = Kern(NAME + "_kernel", 256, 512, LDS_BYTES, 128, nagpr=128)
    I = k.I
    vm = VM(k)
    def lab(x): return f"L_{x}"
    def sadd64(d, b, const):
        I(f"s_add_u32 s{d}, s{b}, {hex(const)}"); I(f"s_addc_u32 s{d+1}, s{b+1}, 0")
    def swapop(sw, op, x, t):
        I(f"v_mov_b32 v{t}, v{x}"); k.nop(2); I(f"{sw} v{x}, v{t}"); I(f"{op} v{x}, v{x}, v{t}")
    def halfsum(op, x, t): swapop("v_permlane32_swap_b32", op, x, t)
    def rowreduce(op, x, t):
        swapop("v_permlane16_swap_b32", op, x, t); swapop("v_permlane32_swap_b32", op, x, t)
    def dppred(op, x, modes):
        for m in modes:
            k.nop(2); I(f"{op}_dpp v{x}, v{x}, v{x} {m} row_mask:0xf bank_mask:0xf")
    Q4 = ("quad_perm:[1,0,3,2]", "quad_perm:[2,3,0,1]")
    def allreduce(op, x, t):
        dppred(op, x, Q4 + ("row_half_mirror", "row_mirror")); rowreduce(op, x, t)
    def unpack(dlo, dhi, src):
        I(f"v_lshlrev_b32 v{dlo}, 16, v{src}"); I(f"v_and_b32 v{dhi}, 0xffff0000, v{src}")
    def bf16r(x):
        I(f"v_cvt_pk_bf16_f32 v{x}, v{x}, v{x}"); I(f"v_and_b32 v{x}, 0xffff0000, v{x}")
    def exec_lo(mask):
        I(f"s_mov_b32 exec_lo, {mask}"); I("s_mov_b32 exec_hi, 0")
    def exec_all(): I("s_mov_b64 exec, -1")
    def bar(lg=True):
        if lg: I("s_waitcnt lgkmcnt(0)")
        I("s_barrier")
    def poll(name, loads, tagregs, first_issued=False):
        I(f"s_mov_b32 s{SPIN}, {SPIN_MAX}")
        SL = int(ENV("SLEEP", "0"))
        if first_issued: I(f"s_branch {lab(name+'_w')}")
        elif SL: I(f"s_branch {lab(name+'_l')}")
        k.L(lab(name))
        if SL: I(f"s_sleep {SL}")
        k.L(lab(name + "_l"))
        for l in loads: I(l)
        k.L(lab(name + "_w"))
        I("s_waitcnt vmcnt(0)")
        I(f"v_cmp_ne_u32 vcc, s{TAG}, v{tagregs[0]}")
        for r in tagregs[1:]:
            I(f"v_cmp_ne_u32 {sp(T2)}, s{TAG}, v{r}")
            I(f"s_or_b64 vcc, vcc, {sp(T2)}")
        I(f"s_sub_u32 s{SPIN}, s{SPIN}, 1")
        I(f"s_cbranch_vccz {lab(name+'_ok')}")
        I(f"s_cbranch_scc0 {lab(name)}")
        k.L(lab(name + "_ok"))
        k.stampval(SPIN, "x" + name + "_spin")
        k.stamp(name="x" + name + "_ok")
        vm.q = []
    def mfma(d, a_, b_, c): I(f"v_mfma_f32_32x32x16_bf16 {vr(d,16)}, {a_}, {b_}, {vr(c,16) if c is not None else 0}")
    def rowstats(s1, s2, m, var, rstd):
        I(f"v_mul_f32 v{m}, s{C512}, v{s1}")
        I(f"v_mul_f32 v{var}, s{C512}, v{s2}")
        I(f"v_fma_f32 v{var}, -v{m}, v{m}, v{var}")
        I(f"v_max_f32 v{var}, 0, v{var}")
        I(f"v_add_f32 v{rstd}, s{CEPS}, v{var}")
        I(f"v_rsq_f32 v{rstd}, v{rstd}")

    ACC, WB = 16, 40
    CQ, CV, MV, AL = 64, 72, 76, 84
    MT, AT = [112, 114], [113, 115]
    S0, S1, P0, P1, VA, NEG, O, Q, KB = 16, 32, 48, 52, [56, 64], 72, 88, 104, 108
    AK, AV, AVS, VBASE = 112, 113, 114, 115
    XG, WR, VXO, VTK, RESM, RESR = 116, 120, 124, 125, 126, 127
    TK, TV = 96, 100
    def mfma16(d, a_, b_, first): I(f"v_mfma_f32_16x16x32_bf16 {vr(d,4)}, {a_}, {b_}, {0 if first else vr(d,4)}")
    AWO, ARS, AWS, AGU, ADN = 0, 32, 88, 112, 120

    I("s_cmp_ge_u32 s2, 256")
    I(f"s_cbranch_scc1 {lab('exit')}")
    k.stamp_begin()
    if ENV("DBGT"):
        I("s_memrealtime s[96:97]")
        I("s_memtime s[98:99]")
    I(f"s_load_dwordx4 s[4:7], s[0:1], 0")
    I(f"s_load_dwordx2 s[8:9], s[0:1], 16")
    I(f"s_load_dwordx2 s[10:11], s[0:1], 80")
    I(f"s_load_dwordx8 s[12:19], s[0:1], 32")
    I(f"s_load_dwordx2 s[20:21], s[0:1], 64")
    I("v_and_b32 v1, 63, v0")
    I("v_lshrrev_b32 v2, 6, v0")
    I("v_lshlrev_b32 v3, 4, v1")
    I(f"v_readfirstlane_b32 s{WAVE}, v2")
    I(f"s_and_b32 s{QB}, s2, 7")
    I(f"s_lshr_b32 s{HEAD}, s2, 3")
    if ENV("HX"):
        I(f"s_cmp_lt_u32 s{HEAD}, 16")
        I(f"s_cselect_b32 s{A0}, 8, 0")
        I(f"s_xor_b32 s{HEAD}, s{HEAD}, s{A0}")
    I(f"s_lshl_b32 s{TT}, s{QB}, 3")
    I(f"s_add_u32 s{TT}, s{TT}, s{WAVE}")
    I(f"s_lshl_b32 s{W1K}, s{WAVE}, 10")
    I("v_bfe_u32 v5, v1, 1, 2")
    I("v_bfe_u32 v6, v1, 3, 1")
    I("v_lshl_add_u32 v5, v6, 3, v5")
    I("v_bfe_u32 v6, v1, 4, 1")
    I("v_lshl_add_u32 v5, v6, 2, v5")
    I("v_bfe_u32 v6, v1, 5, 1")
    I("v_lshl_add_u32 v5, v6, 4, v5")
    I("v_mul_u32_u24 v5, 3072, v5")
    I("v_and_b32 v6, 1, v1")
    I("v_lshl_add_u32 v5, v6, 4, v5")
    I(f"s_lshl_b32 s{A0+1}, s{HEAD}, 5")
    I(f"v_add_u32 v5, s{A0+1}, v5")
    I("v_lshrrev_b32 v8, 4, v1")
    I("v_and_b32 v9, 7, v1")
    I("v_xor_b32 v8, v8, v9")
    I("v_lshlrev_b32 v8, 4, v8")
    I("v_lshrrev_b32 v9, 3, v1")
    I("v_lshl_add_u32 v8, v9, 10, v8")
    I(f"s_lshl_b32 s{A0}, s{TT}, 15")
    I(f"v_add_u32 v8, s{A0}, v8")
    I("v_xor_b32 v9, 64, v8")
    I("v_add_u32 v9, 0x2000, v9")
    XB3 = [A0 + 3, A0 + 4, A0 + 5]
    for b_ in range(3):
        I(f"s_mul_i32 s{XB3[b_]}, s{WAVE}, 12288")
        I(f"s_add_u32 s{XB3[b_]}, s{XB3[b_]}, {56*1024 + 4096*b_}")
        if b_:
            I(f"s_cmp_eq_u32 s{WAVE}, 7")
            I(f"s_cselect_b32 s{XB3[b_]}, {4096*(b_-1)}, s{XB3[b_]}")
    ROT = A0 + 6
    I(f"s_and_b32 s{ROT}, s{HEAD}, 3")
    I("s_waitcnt lgkmcnt(0)")
    def xstage(st):
        I(f"s_add_u32 s{A0}, s{ROT}, {st//2}")
        I(f"s_and_b32 s{A0}, s{A0}, 3")
        I(f"s_lshl_b32 s{A0}, s{A0}, 8")
        if st & 1: I(f"s_add_u32 s{A0}, s{A0}, 128")
        I(f"s_add_u32 s{T0}, s{X0P}, s{A0}")
        I(f"s_addc_u32 s{T0+1}, s{X0P+1}, 0")
        for i in range(4):
            if i == 2: sadd64(T0, T0, 16384)
            I(f"s_add_u32 m0, s{XB3[st % 3]}, {i*1024}")
            I("s_nop 0")
            vm.issue(f"global_load_lds_dwordx4 v{8 + (i&1)}, {sp(T0)}", f"x{st}")
    def wdma(j):
        I(f"s_mul_i32 s{A0}, s{ROT}, 12")
        I(f"s_add_u32 s{A0}, s{A0}, s{WAVE}")
        I(f"s_add_u32 s{A0}, s{A0}, {8*j}")
        I(f"s_sub_u32 s{A0+1}, s{A0}, 48")
        I(f"s_cmp_ge_u32 s{A0}, 48")
        I(f"s_cselect_b32 s{A0}, s{A0+1}, s{A0}")
        I(f"s_mul_i32 s{A0+1}, s{A0}, 21846")
        I(f"s_lshr_b32 s{A0+1}, s{A0+1}, 16")
        I(f"s_mul_i32 s{A0+2}, s{A0+1}, 3")
        I(f"s_sub_u32 s{A0}, s{A0}, s{A0+2}")
        I(f"s_mul_i32 s{A0+2}, s{A0+1}, {32*3072}")
        I(f"s_lshl_b32 s{T0}, s{A0}, 10")
        I(f"s_add_u32 s{A0+2}, s{A0+2}, s{T0}")
        I(f"s_add_u32 s{T0}, s{WQP}, s{A0+2}")
        I(f"s_addc_u32 s{T0+1}, s{WQP+1}, 0")
        I(f"s_lshl_b32 s{A0}, s{A0}, 14")
        I(f"s_lshl_b32 s{A0+1}, s{A0+1}, 10")
        I(f"s_add_u32 s{A0}, s{A0}, s{A0+1}")
        I(f"s_add_u32 m0, s{A0}, {LWQ}")
        I("s_nop 0")
        vm.issue(f"global_load_lds_dwordx4 v5, {sp(T0)}", f"W{j}")
    if ENV("CPF", "0") == "1":
        I(f"s_cmp_lg_u32 s{WAVE}, 7")
        I(f"s_cbranch_scc1 {lab('nocpf')}")
        I(f"s_lshl_b32 s{A0}, s{HEAD}, 13")
        I(f"v_lshl_add_u32 v12, v1, 7, s{A0}")
        I(f"v_cmp_gt_u32 vcc, {lab('exit')}-{lab('pc0')}, v12")
        I(f"s_getpc_b64 {sp(T0)}")
        k.L(lab("pc0"))
        I(f"s_and_saveexec_b64 {sp(T2)}, vcc")
        I(f"s_cbranch_execz {lab('cpf2')}")
        I(f"global_load_dword v127, v12, {sp(T0)}")
        k.L(lab("cpf2"))
        exec_all()
        k.L(lab("nocpf"))
    if ENV("ALLUP"):
        for j in range(8):
            if j < 6 and ENV("ALLUP") != "x": wdma(j)
            if ENV("ALLUP") != "w": xstage(j)
        k.stamp(name="a_issue")
        I("s_waitcnt vmcnt(0)")
        k.stamp(name="a_done")
        I("s_barrier")
        k.stamp(name="a_bar")
        I(f"s_branch {lab('end')}")
    UPW = int(ENV("UPW", "4"))
    wdma(0); xstage(0); wdma(1); xstage(1); wdma(2); xstage(2)
    for j in range(3, UPW): wdma(j)
    sadd64(T2, WSP, NONCE)
    I(f"s_load_dword s{TAG}, {sp(T2)}, 0")
    I(f"s_lshr_b32 s{CG}, s{HEAD}, 2")
    I(f"s_and_b32 s{TB}, s{HEAD}, 3")
    I(f"s_lshl_b32 s{A0}, s{QB}, 2")
    I(f"s_add_u32 s{TB}, s{TB}, s{A0}")
    I(f"s_and_b32 s{OA}, s{WAVE}, 1")
    I(f"s_lshr_b32 s{KQ}, s{WAVE}, 1")
    I(f"s_lshl_b32 s{OT}, s{TB}, 1")
    I(f"s_add_u32 s{OT}, s{OT}, s{OA}")
    I(f"s_lshl_b32 s{KG}, s{CG}, 2")
    I(f"s_add_u32 s{KG}, s{KG}, s{KQ}")
    I(f"s_mul_i32 s{CGP}, s{QB}, 28")
    I(f"s_min_u32 s{A0}, s{HEAD}, 27")
    I(f"s_add_u32 s{CGP}, s{CGP}, s{A0}")
    I(f"s_mov_b32 s{THR}, {hex(f2u(2.0**30))}")
    I(f"s_mov_b32 s{ONES}, 0x3f803f80")
    I(f"s_mov_b32 s{C512}, {hex(f2u(1/512))}")
    I(f"s_mov_b32 s{CEPS}, {hex(f2u(EPS))}")
    def lane_terms():
        I("v_and_b32 v6, 31, v1")
        I("v_lshrrev_b32 v7, 5, v1")
    lane_terms()
    def w_addr():
        I("v_bfe_u32 v12, v1, 2, 2")
        I("v_lshl_add_u32 v12, v7, 4, v12")
        I("v_bfe_u32 v13, v1, 4, 1")
        I("v_lshl_add_u32 v12, v13, 2, v12")
        I("v_and_b32 v13, 3, v1")
        I("v_lshlrev_b32 v13, 3, v13")
        I("v_lshl_add_u32 v10, v12, 5, v13")
        I(f"v_add_u32 v10, {LWQ}, v10")
    w_addr()
    def wreads(dst, ad, ks):
        for sec in range(3):
            I(f"ds_read_b64_tr_b16 {vr(dst+4*sec,2)}, v{ad} offset:{sec*16384+ks*1024}")
            I(f"ds_read_b64_tr_b16 {vr(dst+4*sec+2,2)}, v{ad} offset:{sec*16384+ks*1024+256}")
    def qmfmas(wb, xa, xb, first, between=None):
        for i, (d, A_, B_) in enumerate(((ACC, vr(wb,4), xa), (ACC+4, vr(wb,4), xb), (ACC+8, vr(wb+4,4), xa),
                                         (ACC+12, vr(wb+4,4), xb), (ACC+16, xa, vr(wb+8,4)), (ACC+20, xb, vr(wb+8,4)))):
            mfma16(d, A_, B_, first)
            if between: between(i)
    I("v_bfe_u32 v12, v1, 1, 3")
    I("v_and_b32 v13, 15, v1")
    I("v_lshlrev_b32 v13, 7, v13")
    I("v_lshrrev_b32 v14, 4, v1")
    I("v_xor_b32 v14, v14, v12")
    I("v_lshl_add_u32 v2, v14, 4, v13")
    I("v_xor_b32 v4, 64, v2")
    def xfrags(st):
        I(f"v_add_u32 v14, s{XB3[st % 3]}, v2")
        I(f"v_add_u32 v15, s{XB3[st % 3]}, v4")
        vm.wait(f"x{st}")
        for h in range(2):
            for t in range(2): I(f"ds_read_b128 {ar(16*st+8*h+4*t,4)}, v{14+h} offset:{2048*t}")
    k.stamp(name="q0_issue")
    I("s_waitcnt lgkmcnt(0)")
    I(f"s_mul_i32 s{TAG}, s{TAG}, 0x9E3779B1")
    I(f"s_add_u32 s{TAG}, s{TAG}, 0x7F4A7C15")
    GU, ON = 76, 92
    for r in range(4): I(f"v_mov_b32 v{ON+r}, s{ONES}")
    xfrags(0)
    I("s_barrier")
    k.stamp(name="q0_W")
    CSA = 96
    def colsum_part(i):
        I(f"v_add_u32 v13, s{W1K}, v10")
        wreads(100, 13, 8*i)
        if i == 0:
            for sec in range(3): I(f"v_mov_b32 v{CSA+sec}, 0")
        I("s_waitcnt lgkmcnt(0)")
        for sec in range(3):
            for r in range(4): I(f"v_dot2_f32_bf16 v{CSA+sec}, v{100+4*sec+r}, s{ONES}, v{CSA+sec}")
        if i == 1:
            k.nop(2)
            for sec in range(3): rowreduce("v_add_f32", CSA + sec, 13)
            I(f"s_lshl_b32 s{A0}, s{WAVE}, 8")
            I(f"s_add_u32 s{A0}, s{A0}, {LRD}")
            I("v_and_b32 v13, 15, v1")
            I(f"v_lshl_add_u32 v13, v13, 2, s{A0}")
            for sec in range(3): I(f"ds_write_b32 v13, v{CSA+sec} offset:{64*sec}")
    def sum8(src, dst):
        I("v_lshlrev_b32 v13, 2, v1")
        I(f"v_add_u32 v14, {src}, v13")
        for w in range(8): I(f"ds_read_b32 v{104+w}, v14 offset:{256*w}")
        I(f"v_add_u32 v13, {dst}, v13")
        I("s_waitcnt lgkmcnt(0)")
        for a_, b_ in ((0,1),(2,3),(4,5),(6,7),(0,2),(4,6),(0,4)): I(f"v_add_f32 v{104+a_}, v{104+a_}, v{104+b_}")
        I("ds_write_b32 v13, v104")
    def wsave():
        I(f"s_mul_i32 s{A0}, s{WAVE}, 6144")
        I(f"s_add_u32 s{A0}, s{A0}, {LWQ}")
        I(f"v_add_u32 v13, s{A0}, v3")
        for i in range(6): I(f"ds_read_b128 {ar(AWS+4*i,4)}, v13 offset:{1024*i}")
    def wbase(q):
        I(f"s_add_u32 s{A0}, s{ROT}, {q}")
        I(f"s_and_b32 s{A0}, s{A0}, 3")
        I(f"s_lshl_b32 s{A0}, s{A0}, 12")
        I(f"v_add_u32 v11, s{A0}, v10")
    wbase(0)
    wreads(WB, 11, 0)
    wreads(WB + 12, 11, 1)
    ready = {2: 1, 5: 2, 8: 3, 10: 4, 13: 5}
    def stats0():
        I("v_and_b32 v13, 11, v0")
        I(f"v_mov_b32 v14, s{ONES}")
        I("v_cmp_eq_u32 vcc, 0, v13")
        I("v_lshlrev_b32 v13, 4, v0")
        I(f"v_add_u32 v13, {CB}, v13")
        I("v_cndmask_b32 v100, 0, v14, vcc")
        for r in range(1, 4): I(f"v_mov_b32 v{100+r}, v100")
        I("ds_write_b128 v13, v[100:103]")
        I(f"v_cmp_gt_u32 vcc, {(CBN*512 - 8192)//16}, v0")
        I(f"s_and_saveexec_b64 {sp(T2)}, vcc")
        I("ds_write_b128 v13, v[100:103] offset:8192")
        exec_all()
        I("v_lshrrev_b32 v12, 4, v1")
        I("v_lshlrev_b32 v12, 2, v12")
        I("v_and_b32 v13, 15, v1")
        I("v_sub_u32 v12, v13, v12")
        for t in range(2): I(f"v_mov_b32 v{ON+t}, 0")
        for r in range(4):
            I(f"v_cmp_eq_u32 vcc, {r}, v12")
            k.nop(2)
            for t in range(2): I(f"v_cndmask_b32 v{ON+t}, v{ON+t}, v{GU+4*t+r}, vcc")
        for t in range(2): rowreduce("v_add_f32", ON + t, 12)
        for t in range(2): rowstats(GU + 8 + 4*t, ON + t, MT[t], 12, AT[t])
    for ks in range(16):
        st = ks // 2
        pre = 0
        if ks % 2 == 0 and st + 1 < 8:
            xfrags(st + 1); pre = 4
        if ks + 2 in ready:
            vm.wait(f"W{ready[ks+2]}")
            I("s_barrier")
        if ks == 12:
            colsum_part(0); colsum_part(1); pre = -6
        if ks == 14:
            bar()
            sum8(LRD, LPC); wsave()
        if ks < 14:
            if (ks + 2) % 4 == 0: wbase((ks + 2)//4)
            wreads(WB + 12*((ks+2)%3), 11, (ks + 2) % 4)
            I(f"s_waitcnt lgkmcnt({min(15, 12 + pre) if ks % 2 == 0 else 12})")
        if ks == 0: xstage(3)
        if ks % 2 == 1 and st + 4 < 8: xstage(st + 4)
        if ks % 2 == 0 and UPW + ks//2 < 6: wdma(UPW + ks//2)
        xa, xb = ar(8*ks,4), ar(8*ks+4,4)
        mfma16(GU, xa, xa, ks == 0); mfma16(GU + 4, xb, xb, ks == 0)
        qmfmas(WB + 12*(ks%3), xa, xb, ks == 0)
        mfma16(GU + 8, vr(ON,4), xa, ks == 0); mfma16(GU + 12, vr(ON,4), xb, ks == 0)
    k.stamp(name="q0_loop")
    stats0()
    def bounce_params():
        I(f"s_lshl_b32 s{A0}, s{WAVE}, 8")
        I(f"s_add_u32 s{A0}, s{A0}, {LVB}")
        I("v_and_b32 v13, 15, v1")
        I(f"v_lshl_add_u32 v12, v13, 2, s{A0}")
        for t in range(2):
            I(f"ds_write_b32 v12, v{MT[t]} offset:{64*t}")
            I(f"ds_write_b32 v12, v{AT[t]} offset:{128+64*t}")
        I("v_and_b32 v14, 48, v1")
        I(f"v_add_u32 v12, s{A0}, v14")
        for t in range(2):
            I(f"ds_read_b128 {vr(MV+4*t,4)}, v12 offset:{64*t}")
            I(f"ds_read_b128 {vr(AL+4*t,4)}, v12 offset:{128+64*t}")
        I(f"v_add_u32 v12, {LPC}, v14")
        for sec in range(2): I(f"ds_read_b128 {vr(CQ+4*sec,4)}, v12 offset:{64*sec}")
        I("v_lshlrev_b32 v12, 2, v13")
        I(f"v_add_u32 v12, {LPC + 128}, v12")
        I(f"ds_read_b32 v{CV}, v12")
    bounce_params()

    def q_epilogue(L):
        n = f"l{L}"
        sadd64(KB_, WSP, KF[L]); sadd64(VB_, WSP, VF[L]); sadd64(OB_, WSP, OF[L])
        for t in range(2): I(f"v_mul_f32 v{13+t}, {hex(f2u(QSCALE))}, v{AT[t]}")
        I(f"s_lshl_b32 s{A0}, s{HEAD}, 16")
        I(f"s_lshl_b32 s{A0+1}, s{TT}, 10")
        I(f"s_add_u32 s{A0}, s{A0}, s{A0+1}")
        I(f"v_add_u32 v4, s{A0}, v3")
        I(f"v_add_u32 v15, s{W1K}, v3")
        I("v_add_u32 v5, 0x10000, v15")
        I("s_waitcnt lgkmcnt(0)")
        for sec in (1, 0):
            for t in range(2):
                for r in range(4): I(f"v_fma_f32 v{ACC+8*sec+4*t+r}, -v{MT[t]}, v{CQ+4*sec+r}, v{ACC+8*sec+4*t+r}")
            for t in range(2):
                for r in range(4): I(f"v_mul_f32 v{ACC+8*sec+4*t+r}, v{AT[t] if sec else 13+t}, v{ACC+8*sec+4*t+r}")
            d = TK if sec else Q
            for i in range(4): I(f"v_cvt_pk_bf16_f32 v{d+i}, v{ACC+8*sec+2*i}, v{ACC+8*sec+2*i+1}")
        I(f"v_fma_f32 v{ACC+16}, -v{MV}, v{CV}, v{ACC+16}")
        I(f"v_permlane16_swap_b32 v{TK}, v{TK+2}")
        I(f"v_permlane16_swap_b32 v{TK+1}, v{TK+3}")
        I(f"v_permlane16_swap_b32 v{Q}, v{Q+2}")
        I(f"v_permlane16_swap_b32 v{Q+1}, v{Q+3}")
        vm.issue(f"global_store_dwordx4 v4, {vr(TK,4)}, {sp(KB_)} sc1")
        I(f"ds_write_b128 v15, {vr(TK,4)}")
        mfma(S0, vr(TK,4), vr(Q,4), None)
        for r in range(1, 8): I(f"v_fma_f32 v{ACC+16+r}, -v{MV+r}, v{CV}, v{ACC+16+r}")
        for r in range(8): I(f"v_mul_f32 v{ACC+16+r}, v{AL+r}, v{ACC+16+r}")
        for i in range(4): I(f"v_cvt_pk_bf16_f32 v{TV+i}, v{ACC+16+2*i}, v{ACC+16+2*i+1}")
        I(f"v_max3_f32 v2, v{S0}, v{S0+1}, v{S0+2}")
        I(f"v_max3_f32 v13, v{S0+3}, v{S0+4}, v{S0+5}")
        I(f"v_permlane32_swap_b32 v{TV}, v{TV+2}")
        I(f"v_permlane32_swap_b32 v{TV+1}, v{TV+3}")
        vm.issue(f"global_store_dwordx4 v4, {vr(TV,4)}, {sp(VB_)} sc1")
        I(f"ds_write_b128 v5, {vr(TV,4)}")
        for r in range(6, 16, 4): I(f"v_max3_f32 v2, v2, v{S0+r}, v{S0+r+1}")
        for r in range(8, 16, 4): I(f"v_max3_f32 v13, v13, v{S0+r}, v{S0+r+1}")
        I("v_max_f32 v2, v2, v13")
        halfsum("v_max_f32", 2, 13)
        for r in range(16): I(f"v_sub_f32 v{NEG+r}, 0, v2")
        I("v_and_b32 v8, 15, v1")
        I("v_bfe_u32 v9, v1, 4, 1")
        I("v_lshlrev_b32 v10, 4, v8")
        I("v_lshl_add_u32 v10, v7, 8, v10")
        I(f"v_lshl_add_u32 v{VBASE}, v9, 16, v10")
        I(f"v_add_u32 v{VBASE}, 0x10000, v{VBASE}")
        I("v_xor_b32 v9, 1, v9")
        I(f"v_lshlrev_b32 v{AVS}, 13, v9")
        I(f"v_mov_b32 v{AK}, v3")
        I(f"v_mov_b32 v{AV}, v{VBASE}")
        I(f"s_mov_b32 s{PASS}, 0")
        I(f"s_lshl_b32 s{A0}, s{HEAD}, 10")
        I(f"s_add_u32 s{A0}, s{A0}, {hex(FLK[L])}")
        I(f"v_lshl_add_u32 v8, v1, 7, s{A0}")
        I(f"s_lshl_b32 s{A0+1}, s{QB}, 7")
        I(f"s_add_u32 s{A0}, s{A0}, s{A0+1}")
        I(f"v_mov_b32 v9, s{A0}")
        bar()

    def ffn_gu(m_):
        I(f"s_lshl_b32 s{A0+1}, s{CGP}, 4")
        I(f"v_mul_u32_u24 v14, 3584, v0")
        I(f"v_add_u32 v14, s{A0+1}, v14")
        vm.issue(f"global_load_dwordx4 {ar(AGU+4*m_,4)}, v14, {sp(WUP if m_ else WGP)}")
    def ffn_dn():
        I(f"s_lshl_b32 s{A0+1}, s{CGP}, 13")
        I(f"s_add_u32 s{A0+1}, s{A0+1}, s{W1K}")
        I(f"v_add_u32 v14, s{A0+1}, v3")
        vm.issue(f"global_load_dwordx4 {ar(ADN,4)}, v14, {sp(WDP)}")
    def attention(L):
        n = f"l{L}"
        def max16(dst, S, first):
            if first:
                I(f"v_max3_f32 v{dst}, v{S}, v{S+1}, v{S+2}"); rest = list(range(3, 16))
            else: rest = list(range(16))
            while rest:
                if len(rest) >= 2:
                    I(f"v_max3_f32 v{dst}, v{dst}, v{S+rest[0]}, v{S+rest[1]}"); rest = rest[2:]
                else:
                    I(f"v_max_f32 v{dst}, v{dst}, v{S+rest[0]}"); rest = rest[1:]
        def prime():
            I(f"ds_read_b128 {vr(KB,4)}, v{AK}")
            I(f"ds_read_b128 {vr(VA[0],4)}, v{AV}")
            I(f"ds_read_b128 {vr(VA[0]+4,4)}, v{AV} offset:512")
            I("s_waitcnt lgkmcnt(0)")
            mfma(S0, vr(KB,4), vr(Q,4), None if ENV("C0") else NEG)
            I(f"ds_read_b128 {vr(KB,4)}, v{AK} offset:1024")
            k.nop(11)
        def setup():
            halfsum("v_max_f32", 2, 7)
            for r in range(16): I(f"v_sub_f32 v{NEG+r}, 0, v2")
            I(f"v_mov_b32 v{AK}, v3")
            I(f"v_mov_b32 v{AV}, v{VBASE}")
            for r in range(16): I(f"v_mov_b32 v{O+r}, 0")
            for r in range(4): I(f"v_mov_b32 v{P1+r}, 0")
            for r in range(4): I(f"v_mov_b32 v{VA[1]+4+r}, 0")
            prime()
        def tile(u, extra=None, nokread=False, noqk=False, novread=False, first=False):
            extra = extra or {}
            if "p" in extra: I(f"s_setprio {extra['p']}")
            Sc, Sn = (S0, S1) if u % 2 == 0 else (S1, S0)
            Vc, Vo = VA[u % 2], VA[1 - u % 2]
            E = lambda r: I(f"v_exp_f32 v{Sc+r}, v{Sc+r}")
            Cv = lambda P, r, b: I(f"v_cvt_pk_bf16_f32 v{P+r}, v{Sc+b+2*r}, v{Sc+b+2*r+1}")
            E(0); E(1)
            if not first: mfma(O, vr(Vo+4,4), vr(P1,4), O)
            if 0 in extra: extra[0]()
            E(2); E(3); E(4)
            I("s_waitcnt lgkmcnt(0)")
            E(5)
            if not noqk: mfma(Sn, vr(KB,4), vr(Q,4), None if ENV("C0") else NEG)
            E(6)
            if not nokread: I(f"ds_read_b128 {vr(KB,4)}, v{AK} offset:{(u+2)*1024}")
            E(7)
            if not novread: I(f"ds_read_b128 {vr(Vo,4)}, v{AV} offset:{(u+1)*1024}")
            for r in range(4): Cv(P0, r, 0)
            E(8)
            if not novread: I(f"ds_read_b128 {vr(Vo+4,4)}, v{AV} offset:{(u+1)*1024+512}")
            E(9)
            mfma(O, vr(Vc,4), vr(P0,4), None if first else O)
            if 1 in extra: extra[1]()
            for r in range(10, 16): E(r)
            for r in range(4): Cv(P1, r, 8)
        def bump():
            I(f"v_add_u32 v{AK}, 0x2000, v{AK}")
            I(f"v_add_u32 v{AV}, v{AVS}, v{AV}")
        prime()
        k.stamp(name=f"x{n}_setup")
        I("s_setprio 3")
        def publish_kv():
            vm.drain()
            I("s_barrier")
            I(f"s_cmp_lg_u32 s{WAVE}, 0")
            I(f"s_cbranch_scc1 {lab(n+'_noflag')}")
            I(f"v_mov_b32 v14, s{TAG}")
            I("s_mov_b64 exec, 1")
            I(f"global_store_dword v9, v14, {sp(WSP)} sc1")
            exec_all()
            k.L(lab(n + "_noflag"))
        pl = f"global_load_dword v14, v8, {sp(WSP)} sc1"
        def poll_issue():
            I("s_mov_b64 exec, 0xff"); I(pl); exec_all()
        def poll_check():
            I("s_mov_b64 exec, 0xff")
            if L == 1:
                I(f"s_lshr_b32 s{A0}, s{IDX}, 8")
                I(f"s_bitset0_b32 exec_lo, s{A0}")
            poll(n + "_pk", [pl], [14], first_issued=True)
            exec_all()
        def stg(sl): return ARS + 8*(sl-1) if L == 0 else 64 + 8*((sl-1) % 6)
        def rload(sl):
            if L == 1:
                I(f"s_lshr_b32 s{A0+1}, s{IDX}, 8")
                I(f"s_sub_u32 s{A0+1}, s{A0+1}, s{QB}")
                I(f"s_and_b32 s{A0+1}, s{A0+1}, 7")
                if sl == 7:
                    I(f"s_cmp_eq_u32 s{A0+1}, 0")
                    I(f"s_cselect_b32 s{A0}, 7, s{A0+1}")
                    I("s_mov_b64 exec, 0xff")
                    poll(n + "_pk7", [pl], [14], first_issued=True)
                    exec_all()
                else:
                    I(f"s_sub_u32 s{A0+1}, s{A0+1}, 1")
                    I(f"s_cmp_lt_u32 s{A0+1}, {sl}")
                    I(f"s_cselect_b32 s{A0}, {sl+1}, {sl}")
                I(f"s_add_u32 s{A0}, s{QB}, s{A0}")
            else:
                I(f"s_add_u32 s{A0}, s{QB}, {sl}")
            I(f"s_and_b32 s{A0}, s{A0}, 7")
            I(f"s_sub_u32 s{A0}, s{A0}, s{QB}")
            I(f"s_lshl_b32 s{A0}, s{A0}, 13")
            I(f"v_add_u32 v13, s{A0}, v4")
            vm.issue(f"global_load_dwordx4 {ar(stg(sl),4)}, v13, {sp(KB_)} sc1", f"r{sl}")
            vm.issue(f"global_load_dwordx4 {ar(stg(sl)+4,4)}, v13, {sp(VB_)} sc1", f"r{sl}")
        def rwrite(sl):
            if f"r{sl}" in vm.q: vm.wait(f"r{sl}")
            I(f"ds_write_b128 v15, {ar(stg(sl),4)} offset:{sl*8192}")
            I(f"ds_write_b128 v5, {ar(stg(sl)+4,4)} offset:{sl*8192}")
        PUB, PI, PC = [int(x) for x in ENV("POLL", "1,4,5").split(",")]
        PR = {}
        if ENV("PBAL", "1") == "1":
            PR = {4: 2, 6: 1, 7: 0, 8: 3, 11: 2, 12: 1, 13: 0, 14: 3, 18: 2, 20: 1, 21: 0, 22: 3, 30: 2, 34: 1, 36: 0, 38: 3}
        for u in range(8):
            ex = {}
            if u == PUB: ex[0] = publish_kv
            if u == PI: ex[0] = poll_issue
            if u == PC: ex[0] = lambda: (poll_check(), rload(1), rload(2))
            if u in PR: ex["p"] = PR[u]
            tile(u, ex, nokread=(u >= 6), noqk=(u == 7), novread=(u == 7), first=(u == 0))
        bump()
        k.stamp(name=f"x{n}_ch0a")
        rwrite(1)
        bar()
        k.stamp(name=n + "_c0")
        prime()
        def wo_addr():
            I(f"s_lshl_b32 s{A0}, s{WAVE}, 16")
            I(f"s_lshl_b32 s{A0+1}, s{CG}, 7")
            I(f"s_add_u32 s{A0}, s{A0}, s{A0+1}")
            I("v_lshrrev_b32 v2, 3, v1")
            I(f"v_lshl_add_u32 v2, v2, 10, s{A0}")
            I("v_and_b32 v14, 7, v1")
            I("v_lshl_add_u32 v2, v14, 4, v2")
        def wo_load(i):
            vm.issue(f"global_load_dwordx4 {ar(AWO+4*i,4)}, v2, {sp(WOP)}", "wo")
            if i < 7: I("v_add_u32 v2, 0x2000, v2")
        def misc_loads():
            I(f"s_lshl_b32 s{A0}, s{KG}, 9")
            I(f"s_lshl_b32 s{A0+1}, s{OT}, 15")
            I(f"s_add_u32 s{A0}, s{A0}, s{A0+1}")
            I("v_and_b32 v10, 15, v1")
            I(f"v_lshl_add_u32 v{VXO}, v10, 4, s{A0}")
            I("v_lshrrev_b32 v10, 5, v1")
            I(f"v_lshl_add_u32 v{VXO}, v10, 8, v{VXO}")
            I("v_bfe_u32 v10, v1, 4, 1")
            I(f"v_lshl_add_u32 v{VXO}, v10, 14, v{VXO}")
            I("v_and_b32 v10, 31, v1")
            I(f"s_lshl_b32 s{A0}, s{OT}, 5")
            I(f"v_add_u32 v{VTK}, s{A0}, v10")
            I("v_lshrrev_b32 v10, 5, v1")
            I(f"s_lshl_b32 s{A0}, s{KG}, 5")
            I(f"v_lshl_add_u32 v14, v10, 3, s{A0}")
            vm.issue(f"global_load_dwordx2 {vr(WR,2)}, v14, {sp(WRP)}")
            vm.issue(f"global_load_dwordx2 {vr(WR+2,2)}, v14, {sp(WRP)} offset:16")
            I(f"v_lshl_add_u32 v14, v{VTK}, 10, v14")
            vm.issue(f"global_load_dwordx2 {vr(XG,2)}, v14, {sp(X0P)}")
            vm.issue(f"global_load_dwordx2 {vr(XG+2,2)}, v14, {sp(X0P)} offset:16")
        sched = {
            1: {(0,0): lambda: rload(3), (3,0): lambda: rload(4), (4,0): lambda: rwrite(2), (6,0): bar},
            2: {(0,0): lambda: rload(5), (3,0): lambda: rload(6), (4,0): lambda: rwrite(3), (5,0): lambda: rwrite(4), (6,0): bar},
            3: {(0,0): lambda: rload(7)},
            4: {(0,0): lambda: rwrite(5), (1,0): lambda: rwrite(6), (2,0): lambda: rwrite(7), (6,0): bar},
        }
        def touches():
            I(f"s_cmp_ge_u32 s{WAVE}, 5")
            I(f"s_cbranch_scc1 {lab('t_done')}")
            I(f"s_cmp_ge_u32 s{WAVE}, 2")
            I(f"s_cbranch_scc1 {lab('t_lin')}")
            I(f"s_mul_i32 s{A0}, s{QB}, 7")
            I(f"s_lshr_b32 s{A0}, s{A0}, 1")
            I(f"s_lshl_b32 s{A0}, s{A0}, 7")
            I(f"s_mul_i32 s{A0+1}, s{HEAD}, {16*3584}")
            I(f"s_add_u32 s{A0}, s{A0}, s{A0+1}")
            I("v_lshrrev_b32 v14, 2, v1")
            I("v_mul_u32_u24 v14, 3584, v14")
            I("v_and_b32 v10, 3, v1")
            I("v_lshl_add_u32 v14, v10, 7, v14")
            I(f"v_add_u32 v14, s{A0}, v14")
            I(f"s_cmp_eq_u32 s{WAVE}, 0")
            I(f"s_cselect_b32 s{T0}, s{WGP}, s{WUP}")
            I(f"s_cselect_b32 s{T0+1}, s{WGP+1}, s{WUP+1}")
            I(f"s_branch {lab('t_go')}")
            k.L(lab("t_lin"))
            I(f"s_lshl_b32 s{A0}, s{CGP}, 13")
            I(f"s_lshl_b32 s{A0+1}, s{HEAD}, 14")
            I(f"s_and_b32 s{A0+2}, s{WAVE}, 1")
            I(f"s_lshl_b32 s{A0+2}, s{A0+2}, 13")
            I(f"s_add_u32 s{A0+1}, s{A0+1}, s{A0+2}")
            I(f"s_cmp_eq_u32 s{WAVE}, 2")
            I(f"s_cselect_b32 s{A0}, s{A0}, s{A0+1}")
            I(f"s_cselect_b32 s{T0}, s{WDP}, s{WOP}")
            I(f"s_cselect_b32 s{T0+1}, s{WDP+1}, s{WOP+1}")
            I(f"v_lshl_add_u32 v14, v1, 7, s{A0}")
            k.L(lab("t_go"))
            I(f"global_load_dword v11, v14, {sp(T0)}")
            k.L(lab("t_done"))
        NU = 5
        if L == 0:
            NU = 6
            def pretouch():
                if ENV("PT") == "1":
                    I(f"s_cmp_lg_u32 s{WAVE}, 6")
                    I(f"s_cbranch_scc1 {lab('pt_done')}")
                    I("v_mul_u32_u24 v14, 0x50000, v1")
                    I(f"global_load_dword v11, v14, {sp(WSP)}")
                    I("v_lshlrev_b32 v14, 15, v1")
                    I(f"global_load_dword v11, v14, {sp(OUTP)}")
                    k.L(lab("pt_done"))
                else:
                    I("v_mul_u32_u24 v14, 0xa000, v0")
                    I(f"global_load_dword v11, v14, {sp(WSP)}")
                    I("v_lshlrev_b32 v14, 12, v0")
                    I(f"global_load_dword v11, v14, {sp(OUTP)}")
            if ENV("PT"): sched[2][(7,0)] = pretouch
            sched[2][(6,1)] = touches
            sched[3][(3,0)] = wo_addr
            for i in range(4): sched[3][(4 + i, 0)] = (lambda i=i: wo_load(i))
            for i, u in enumerate((3, 4, 5, 7)): sched[4][(u, 0)] = (lambda i=i: wo_load(4 + i))
            sched[5] = {(0,0): lambda: ffn_gu(0), (2,0): misc_loads, (4,0): lambda: ffn_gu(1), (6,0): ffn_dn}
            PR[40] = 3
        else:
            sched[2][(7,0)] = poll_issue
        for c in range(1, NU):
            for u in range(8):
                ex = {sl: f for (uu, sl), f in sched[c].items() if uu == u}
                if 8*c + u in PR: ex["p"] = PR[8*c + u]
                tile(u, ex)
            bump()
            k.stamp(name=f"x{n}_ch{c}")
        I(f"s_mov_b32 s{CTR}, {NU}")
        k.lines.append(".p2align 6")
        k.L(lab(n + "_loop"))
        if ENV("PEND", "1") == "0":
            I(f"s_cmp_lt_u32 s{CTR}, 5"); I(f"s_cbranch_scc1 {lab(n+'_pd')}")
            I("s_setprio 2")
            I(f"s_cmp_lt_u32 s{CTR}, 6"); I(f"s_cbranch_scc1 {lab(n+'_pd')}")
            I("s_setprio 1")
            I(f"s_cmp_lt_u32 s{CTR}, 7"); I(f"s_cbranch_scc1 {lab(n+'_pd')}")
            I("s_setprio 0")
            k.L(lab(n + "_pd"))
            for u in range(8): tile(u)
        else:
            I(f"s_cmp_lt_u32 s{CTR}, 6"); I(f"s_cbranch_scc1 {lab(n+'_pd')}")
            I("s_setprio 2")
            I(f"s_cmp_lt_u32 s{CTR}, 7"); I(f"s_cbranch_scc1 {lab(n+'_pd')}")
            I("s_setprio 1")
            k.L(lab(n + "_pd"))
            for u in range(8):
                if u == 5:
                    I(f"s_cmp_lt_u32 s{CTR}, 7"); I(f"s_cbranch_scc1 {lab(n+'_pe')}")
                    I("s_setprio 0")
                    k.L(lab(n + "_pe"))
                tile(u)
        bump()
        I(f"s_add_u32 s{CTR}, s{CTR}, 1")
        I(f"s_cmp_lt_u32 s{CTR}, 8")
        I(f"s_cbranch_scc1 {lab(n+'_loop')}")
        mfma(O, vr(VA[1]+4,4), vr(P1,4), O)
        I("s_waitcnt lgkmcnt(0)")
        k.stamp(name=n + "_attn")
        k.nop(12)
        I(f"s_cmp_lg_u32 s{PASS}, 0")
        I(f"s_cbranch_scc1 {lab(n+'_fin')}")
        I(f"v_cmp_nge_f32 vcc, s{THR}, v{O+8}")
        k.nop(2)
        I(f"s_cbranch_vccz {lab(n+'_fin')}")
        I(f"s_mov_b32 s{PASS}, 1")
        I(f"v_mov_b32 v{AK}, v3")
        I("v_mov_b32 v2, 0xff800000")
        I(f"s_mov_b32 s{CTR}, 0")
        k.L(lab(n + "_maxloop"))
        I(f"ds_read_b128 {vr(KB,4)}, v{AK}")
        I("s_waitcnt lgkmcnt(0)")
        mfma(S0, vr(KB,4), vr(Q,4), None)
        I(f"v_add_u32 v{AK}, 0x400, v{AK}")
        k.nop(12)
        max16(2, S0, False)
        I(f"s_add_u32 s{CTR}, s{CTR}, 1")
        I(f"s_cmp_lt_u32 s{CTR}, 64")
        I(f"s_cbranch_scc1 {lab(n+'_maxloop')}")
        setup()
        I(f"s_mov_b32 s{CTR}, 0")
        I(f"s_branch {lab(n+'_loop')}")
        k.L(lab(n + "_fin"))
        I(f"v_rcp_f32 v2, v{O+8}")
        I("s_nop 0")
        for r in range(8): I(f"v_mul_f32 v{O+r}, v{O+r}, v2")
        for r in range(4): I(f"v_cvt_pk_bf16_f32 v{P0+r}, v{O+2*r}, v{O+2*r+1}")
        I(f"global_store_dwordx4 v4, {vr(P0,4)}, {sp(OB_)} sc1")

    def oproj(L):
        n = f"l{L}"
        OBf, AC, X, Y = 64, 32, 96, 16
        lane_terms()
        I(f"s_lshl_b32 s{A0}, s{KQ}, 19")
        I(f"s_lshl_b32 s{A0+1}, s{OT}, 10")
        I(f"s_add_u32 s{A0}, s{A0}, s{A0+1}")
        I(f"v_add_u32 v10, s{A0}, v3")
        I(f"s_lshl_b32 s{A0}, s{WAVE}, 13")
        I(f"s_add_u32 s{A0}, s{A0}, 0x10000")
        I(f"v_add_u32 v12, s{A0}, v3")
        I(f"s_lshl_b32 s{A0}, s{TT}, 12")
        I(f"s_lshl_b32 s{A0+1}, s{HEAD}, 7")
        I(f"s_add_u32 s{A0}, s{A0}, s{A0+1}")
        I(f"s_add_u32 s{A0}, s{A0}, {hex(FLO[L])}")
        I(f"v_mov_b32 v13, s{A0}")
        I(f"v_mov_b32 v14, s{TAG}")
        I(f"s_lshl_b32 s{A0}, s{OT}, 12")
        I(f"s_lshl_b32 s{A0+1}, s{KQ}, 10")
        I(f"s_add_u32 s{A0}, s{A0}, s{A0+1}")
        I(f"s_add_u32 s{A0}, s{A0}, {hex(FLO[L])}")
        I(f"v_lshl_add_u32 v31, v1, 7, s{A0}")
        FLW = ENV("FLW", "0") == "1"
        if not FLW:
            I(f"s_lshl_b32 s{A0}, s{QB}, 15")
            I(f"s_add_u32 s{A0}, s{A0}, {hex(FLO[L])}")
            I(f"v_lshl_add_u32 v31, v6, 7, s{A0}")
        vm.drain()
        if not FLW:
            I("s_barrier")
            I(f"s_cmp_lg_u32 s{WAVE}, 0")
            I(f"s_cbranch_scc1 {lab(n+'_nof')}")
        I("s_mov_b64 exec, 1")
        I(f"global_store_dword v13, v14, {sp(WSP)} sc1")
        exec_all()
        if not FLW: k.L(lab(n + "_nof"))
        if L == 0 and FLW: I("s_barrier")
        k.stamp(name=n + "_odrain")
        if L == 0:
            for i in range(8): I(f"ds_write_b128 v12, {ar(AWO+4*i,4)} offset:{1024*i}")
            I(f"global_load_dwordx4 v[16:19], v3, {sp(WRP)}")
            I(f"s_lshl_b32 s{A0}, s{WAVE}, 11")
            I(f"v_lshl_add_u32 v13, v1, 5, s{A0}")
            I(f"ds_write_b128 v13, {ar(AGU,4)}")
            I(f"ds_write_b128 v13, {ar(AGU+4,4)} offset:16")
            I(f"v_add_u32 v13, s{W1K}, v3")
            I(f"ds_write_b128 v13, {ar(ADN,4)} offset:16384")
            I("v_bfe_u32 v13, v1, 2, 2")
            I("v_and_b32 v14, 3, v1")
            I("v_lshl_add_u32 v12, v7, 2, v13")
            I("v_lshlrev_b32 v12, 7, v12")
            I("v_lshl_add_u32 v12, v14, 3, v12")
            I("v_bfe_u32 v15, v1, 4, 1")
            I("v_lshl_add_u32 v12, v15, 5, v12")
            I(f"s_lshl_b32 s{A0+1}, s{KQ}, 5")
            I(f"v_xor_b32 v12, s{A0+1}, v12")
            I(f"s_lshl_b32 s{A0+1}, s{KQ}, 14")
            I(f"s_add_u32 s{A0+1}, s{A0+1}, 0x10000")
            I(f"v_add_u32 v12, s{A0+1}, v12")
            I("v_xor_b32 v15, 64, v12")
            bar()
            for i in range(8):
                for b in range(2):
                    I(f"ds_read_b64_tr_b16 {ar(AWO+8*i+4*b,2)}, v{15 if b else 12} offset:{2048*i}")
                    I(f"ds_read_b64_tr_b16 {ar(AWO+8*i+4*b+2,2)}, v{15 if b else 12} offset:{2048*i+1024}")
                if i % 2 == 1: I("s_waitcnt lgkmcnt(0)")
            I("v_lshrrev_b32 v15, 4, v1")
            I("v_lshl_add_u32 v13, v15, 3, v13")
            I("v_lshlrev_b32 v13, 5, v13")
            I("v_lshl_add_u32 v13, v14, 3, v13")
            I(f"v_add_u32 v13, s{A0}, v13")
            for i in range(2):
                I(f"ds_read_b64_tr_b16 {ar(AGU+4*i,2)}, v13 offset:{1024*i}")
                I(f"ds_read_b64_tr_b16 {ar(AGU+4*i+2,2)}, v13 offset:{1024*i+128}")
            I("v_lshlrev_b32 v13, 1, v0")
            for f in range(8): I(f"ds_read_u16 a{ADN+f}, v13 offset:{16384+1024*f}")
            I("v_mov_b32 v20, 0")
            I("s_waitcnt vmcnt(0)")
            for r in range(4): I(f"v_dot2_f32_bf16 v20, v{16+r}, s{ONES}, v20")
            k.nop(1)
            allreduce("v_add_f32", 20, 21)
            I("s_nop 0")
            I(f"v_readfirstlane_b32 s{WSUM}, v20")
        NF = 0
        I(f"s_lshl_b32 s{A0}, s{OA}, 15")
        for g in range(4):
            I(f"s_xor_b32 s{A0+1}, s{KQ}, {g}")
            I(f"s_lshl_b32 s{A0+1}, s{A0+1}, 13")
            I(f"s_add_u32 s{A0+1}, s{A0+1}, s{A0}")
            I(f"v_add_u32 v{27+g}, s{A0+1}, v3")
        for i in range(4): unpack(X + 2*i, X + 2*i + 1, XG + i)
        if L == 1:
            for r in range(8): I(f"v_sub_f32 v{Y+r}, v{X+r}, v{RESM}")
            for r in range(8): I(f"v_mul_f32 v{Y+r}, v{Y+r}, v{RESR}")
            for i in range(4): I(f"v_cvt_pk_bf16_f32 v{XG+i}, v{Y+2*i}, v{Y+2*i+1}")
            for i in range(4): unpack(Y + 2*i, Y + 2*i + 1, XG + i)
            for r in range(8): I(f"v_add_f32 v{X+r}, v{X+r}, v{Y+r}")
            for i in range(4): I(f"v_cvt_pk_bf16_f32 v{XG+i}, v{X+2*i}, v{X+2*i+1}")
            for i in range(4): unpack(X + 2*i, X + 2*i + 1, XG + i)
        for i in range(4): unpack(104 + 2*i, 105 + 2*i, WR + i)
        if FLW:
            I("s_mov_b64 exec, 0xff")
        else:
            I(f"s_cmp_lg_u32 s{WAVE}, 0")
            I(f"s_cbranch_scc1 {lab(n+'_owait')}")
            exec_lo(-1)
        poll(n + "_po", [f"global_load_dword v14, v31, {sp(WSP)} sc1"], [14])
        exec_all()
        if not FLW:
            k.L(lab(n + "_owait"))
            bar()
        k.stamp(name=n + "_opoll")
        for i in range(8):
            I(f"global_load_dwordx4 {vr(OBf+4*i,4)}, v10, {sp(OB_)} sc1")
            if i < 7: I("v_add_u32 v10, 0x10000, v10")
        for i in range(8):
            I(f"s_waitcnt vmcnt({7-i+NF})")
            for b in range(2): mfma(AC + 16*b, ar(AWO+8*i+4*b,4), vr(OBf+4*i,4), AC + 16*b if i else None)
        if FLW: bar()
        k.stamp(name=n + "_omm")
        k.nop(12)
        for g in range(1, 4):
            for hf in range(2): I(f"ds_write_b128 v{27+g}, {vr(AC+8*g+4*hf,4)} offset:{2048*g+1024*hf}")
        bar()
        k.stamp(name="x" + n + "_red")
        for g in range(1, 4):
            for hf in range(2): I(f"ds_read_b128 {vr(AC+8*g+4*hf,4)}, v27 offset:{2048*g+1024*hf}")
        sadd64(XB_, WSP, XF[L])
        I("s_waitcnt lgkmcnt(4)")
        for r in range(8): I(f"v_add_f32 v{AC+r}, v{AC+r}, v{AC+8+r}")
        I("s_waitcnt lgkmcnt(0)")
        for r in range(8): I(f"v_add_f32 v{AC+16+r}, v{AC+16+r}, v{AC+24+r}")
        for r in range(8): I(f"v_add_f32 v{AC+r}, v{AC+r}, v{AC+16+r}")
        for i in range(4): I(f"v_cvt_pk_bf16_f32 v{XG+i}, v{AC+2*i}, v{AC+2*i+1}")
        for i in range(4): unpack(Y + 2*i, Y + 2*i + 1, XG + i)
        for r in range(8): I(f"v_add_f32 v{X+r}, v{X+r}, v{Y+r}")
        for i in range(4): I(f"v_cvt_pk_bf16_f32 v{XG+i}, v{X+2*i}, v{X+2*i+1}")
        for i in range(4): I(f"v_mov_b32 v{24+i}, v{XG+i}")
        k.nop(1)
        I("v_permlane32_swap_b32 v24, v26")
        I("v_permlane32_swap_b32 v25, v27")
        I(f"global_store_dwordx4 v{VXO}, v[24:27], {sp(XB_)} sc1")
        for i in range(4): unpack(X + 2*i, X + 2*i + 1, XG + i)
        I(f"v_add_f32 v16, v{X}, v{X+1}")
        I(f"v_mul_f32 v17, v{X}, v{X}")
        I(f"v_mul_f32 v18, v{X}, v104")
        for r in range(1, 8):
            if r > 1: I(f"v_add_f32 v16, v16, v{X+r}")
            I(f"v_fmac_f32 v17, v{X+r}, v{X+r}")
            I(f"v_fmac_f32 v18, v{X+r}, v{104+r}")
        I(f"s_lshl_b32 s{A0}, s{OA}, 12")
        I(f"s_lshl_b32 s{A0+1}, s{KQ}, 10")
        I(f"s_add_u32 s{A0}, s{A0}, s{A0+1}")
        I(f"s_add_u32 s{A0}, s{A0}, {LSA}")
        I(f"v_add_u32 v13, s{A0}, v3")
        I("ds_write_b96 v13, v[16:18]")
        k.stamp(name="x" + n + "_epi")
        I("s_waitcnt vmcnt(0) lgkmcnt(0)")
        k.stamp(name="x" + n + "_xdrain")
        I("s_waitcnt vmcnt(0) lgkmcnt(0)")
        I("s_barrier")
        I(f"s_cmp_lg_u32 s{WAVE}, 0")
        I(f"s_cbranch_scc1 {lab(n+'_nost')}")
        I("v_lshlrev_b32 v13, 4, v6")
        I("v_lshl_add_u32 v13, v7, 12, v13")
        I(f"v_add_u32 v13, {LSA}, v13")
        for j in range(8): I(f"ds_read_b96 {vr(32+4*j,3)}, v13 offset:{512*j}")
        I(f"s_lshl_b32 s{A0}, s{TB}, 3")
        I(f"s_add_u32 s{A0}, s{A0}, s{CG}")
        I(f"s_lshl_b32 s{A0}, s{A0}, 10")
        I(f"s_add_u32 s{A0}, s{A0}, {hex(ST[L])}")
        I(f"v_add_u32 v13, s{A0}, v3")
        I(f"v_mov_b32 v35, s{TAG}")
        I("s_waitcnt lgkmcnt(0)")
        for j in range(1, 8):
            for c in range(3): I(f"v_add_f32 v{32+c}, v{32+c}, v{32+4*j+c}")
        I(f"global_store_dwordx4 v13, v[32:35], {sp(WSP)} sc1")
        k.L(lab(n + "_nost"))
        k.stamp(name=n + "_stpub")

    def hop_a(L, after_poll=None):
        n = f"l{L}"
        I(f"s_lshl_b32 s{A0}, s{TB}, 13")
        I(f"s_add_u32 s{A0}, s{A0}, {hex(ST[L])}")
        I(f"v_lshl_add_u32 v12, v0, 4, s{A0}")
        loads = [f"global_load_dwordx4 v[32:35], v12, {sp(WSP)} sc1"]; tags = [35]
        if ENV("HA2", "1") == "1":
            I(f"s_cmp_lg_u32 s{WAVE}, 0")
            I(f"s_cbranch_scc1 {lab(n+'_a1')}")
            if L == 0:
                I(f"s_lshl_b32 s{A0}, s{QB}, 15")
                I(f"s_add_u32 s{A0}, s{A0}, {hex(ST[L])}")
            I(f"s_add_u32 s{A0}, s{A0}, 1020")
            I(f"v_lshl_add_u32 v13, v1, 10, s{A0}")
            exec_lo(-1 if L == 0 else "0xff")
            poll(n + "_p1", [f"global_load_dword v36, v13, {sp(WSP)} sc1"], [36])
            exec_all()
            k.L(lab(n + "_a1"))
            I("s_barrier")
        else:
            if L == 0:
                I(f"s_lshr_b32 s{A0}, s{TT}, 1")
                I(f"s_lshl_b32 s{A0}, s{A0}, 13")
                I(f"s_add_u32 s{A0}, s{A0}, {hex(ST[L] + 12)}")
                I("v_and_b32 v13, 7, v1")
                I(f"v_lshl_add_u32 v13, v13, 10, s{A0}")
                loads.append(f"global_load_dword v36, v13, {sp(WSP)} sc1"); tags.append(36)
        poll(n + "_pa", loads, tags)
        I("v_lshlrev_b32 v13, 4, v0")
        I("ds_write_b96 v13, v[32:34]")
        if after_poll: after_poll()
        I(f"s_lshl_b32 s{A0}, s{OA}, 9")
        I(f"v_lshl_add_u32 v13, v6, 4, s{A0}")
        bar()
        k.stamp(name=n + "_hopa")
        for c in range(8): I(f"ds_read_b96 {vr(16+4*c,3)}, v13 offset:{1024*c}")
        I("s_waitcnt lgkmcnt(0)")
        for a_, b_ in ((0,1),(2,3),(4,5),(6,7),(0,2),(4,6),(0,4)):
            for c in range(3): I(f"v_add_f32 v{16+4*a_+c}, v{16+4*a_+c}, v{16+4*b_+c}")
        rowstats(16, 17, RESM, 20, RESR)
        I(f"s_or_b32 s{A0}, s{CG}, s{KQ}")
        I(f"s_cmp_lg_u32 s{A0}, 0")
        I(f"s_cbranch_scc1 {lab(n+'_nokey')}")
        I(f"v_fma_f32 v18, -v{RESM}, s{WSUM}, v18")
        I(f"v_mul_f32 v18, v18, v{RESR}")
        bf16r(18)
        I("v_ashrrev_i32 v19, 31, v18")
        I("v_or_b32 v19, 0x80000000, v19")
        I("v_xor_b32 v19, v19, v18")
        I("v_and_b32 v19, 0xffff0000, v19")
        I(f"v_sub_u32 v20, 2047, v{VTK}")
        I("v_or_b32 v20, v19, v20")
        I("v_mov_b32 v24, v20")
        I(f"v_mov_b32 v21, v{RESM}")
        dppred("v_max_u32", 24, Q4 + ("row_half_mirror", "row_mirror"))
        swapop("v_permlane16_swap_b32", "v_max_u32", 24, 25)
        I("v_cmp_eq_u32 vcc, v24, v20")
        I(f"v_mov_b32 v22, v{RESR}")
        I(f"v_mov_b32 v23, s{TAG}")
        I(f"s_lshl_b32 s{A0}, s{OT}, 7")
        I(f"s_add_u32 s{A0}, s{A0}, {hex(KEY[L])}")
        I(f"v_mov_b32 v13, s{A0}")
        I("s_mov_b32 exec_lo, vcc_lo")
        I("s_mov_b32 exec_hi, 0")
        I(f"global_store_dwordx4 v13, v[20:23], {sp(WSP)} sc1")
        exec_all()
        k.L(lab(n + "_nokey"))
        k.stamp(name="x" + n + "_key")

    FT = 76
    SR = 96
    stat_loads = [f"global_load_dwordx4 {vr(SR+4*i,4)}, v11, {sp(WSP)} offset:{1024*i} sc1" for i in range(4)]
    stat_tags = [SR + 4*i + 3 for i in range(4)]
    def own_stats():
        for i in range(1, 4):
            for c in range(2): I(f"v_add_f32 v{SR+c}, v{SR+c}, v{SR+4*i+c}")
        halfsum("v_add_f32", SR, SR + 2)
        halfsum("v_add_f32", SR + 1, SR + 2)
        rowstats(SR, SR + 1, MT[0], SR + 2, SR + 3)
        I(f"v_mov_b32 v{AT[0]}, s{CEPS}")
        I(f"v_add_f32 v{SR+3}, 1.0, v{SR+3}")
        I(f"v_mul_f32 v{SR+2}, v{SR+2}, v{SR+3}")
        I(f"v_fmac_f32 v{AT[0]}, v{SR+2}, v{SR+3}")
        I(f"v_rsq_f32 v{AT[0]}, v{AT[0]}")
        I(f"v_mov_b32 v{MT[1]}, v{MT[0]}")
        I(f"v_mul_f32 v{AT[0]}, v{AT[0]}, v{SR+3}")
        I(f"v_mov_b32 v{AT[1]}, v{AT[0]}")
        I(f"v_permlane16_swap_b32 v{MT[0]}, v{MT[1]}")
        I("s_nop 0")
        I(f"v_permlane16_swap_b32 v{AT[0]}, v{AT[1]}")
    def key_load(L):
        return f"global_load_dwordx4 {vr(FT,4)}, v{FT+4}, {sp(WSP)} sc1"
    def hop_b_issue(L, sfx=""):
        I(f"v_lshlrev_b32 v{FT+4}, 7, v1")
        I(f"v_add_u32 v{FT+4}, {hex(KEY[L])}, v{FT+4}")
        I(f"s_cmp_lg_u32 s{WAVE}, 0")
        I(f"s_cbranch_scc1 {lab(f'l{L}_nki{sfx}')}")
        I(key_load(L))
        k.L(lab(f"l{L}_nki{sfx}"))
    def hop_b(L, role=""):
        n = f"l{L}{role}"
        I(f"v_mov_b32 v{FT+6}, {LFF}")
        I(f"s_cmp_lg_u32 s{WAVE}, 0")
        I(f"s_cbranch_scc1 {lab(n+'_kw')}")
        keepq = list(vm.q)
        poll(n + "_pb", [key_load(L)], [FT + 3], first_issued=True)
        vm.q = keepq
        I(f"v_mov_b32 v{FT+5}, v{FT}")
        allreduce("v_max_u32", FT + 5, FT + 7)
        I(f"v_cmp_eq_u32 vcc, v{FT+5}, v{FT}")
        I("s_mov_b64 exec, vcc")
        I(f"ds_write_b96 v{FT+6}, {vr(FT,3)}")
        exec_all()
        k.L(lab(n + "_kw"))
        bar()
        I(f"ds_read_b96 {vr(FT,3)}, v{FT+6}")
        I("s_waitcnt lgkmcnt(0)")
        I(f"v_readfirstlane_b32 s{IDX}, v{FT}")
        I(f"v_readfirstlane_b32 s{RM}, v{FT+1}")
        I(f"v_readfirstlane_b32 s{RR}, v{FT+2}")
        I(f"s_and_b32 s{RS_}, s{IDX}, 0xffff0000")
        I(f"s_and_b32 s{IDX}, s{IDX}, 0x7ff")
        I(f"s_sub_u32 s{IDX}, 2047, s{IDX}")
        I(f"s_ashr_i32 s{A0}, s{RS_}, 31")
        I(f"s_not_b32 s{A0}, s{A0}")
        I(f"s_or_b32 s{A0}, s{A0}, 0x80000000")
        I(f"s_xor_b32 s{RS_}, s{RS_}, s{A0}")
        I(f"s_and_b32 s{RS_}, s{RS_}, 0xffff0000")
        I(f"s_lshr_b32 s{A0}, s{IDX}, 4")
        I(f"s_lshl_b32 s{A0}, s{A0}, 14")
        I(f"s_and_b32 s{A0+1}, s{IDX}, 15")
        I(f"s_lshl_b32 s{A0+1}, s{A0+1}, 4")
        I(f"s_add_u32 s{A0}, s{A0}, s{A0+1}")
        I("s_cmp_ge_u32 s2, 224")
        I(f"s_cbranch_scc1 {lab(n+'_frow')}")
        I(f"s_lshl_b32 s{A0+1}, s{WAVE}, 11")
        I(f"s_add_u32 s{A0}, s{A0}, s{A0+1}")
        I(f"v_and_b32 v{FT+4}, 48, v1")
        I(f"v_lshl_add_u32 v{FT+4}, v{FT+4}, 4, s{A0}")
        I(f"v_add_u32 v{FT+5}, 0x400, v{FT+4}")
        I(f"s_branch {lab(n+'_rowld')}")
        k.L(lab(n + "_frow"))
        I(f"s_sub_u32 s{A0+1}, s2, 224")
        I(f"s_lshl_b32 s{A0+1}, s{A0+1}, 9")
        I(f"s_add_u32 s{A0}, s{A0}, s{A0+1}")
        I(f"v_bfe_u32 v{FT+4}, v1, 3, 1")
        I(f"v_lshl_add_u32 v{FT+4}, v{FT+4}, 8, s{A0}")
        I(f"v_mov_b32 v{FT+5}, v{FT+4}")
        k.L(lab(n + "_rowld"))
        vm.issue(f"global_load_dwordx4 {vr(FT+8,4)}, v{FT+4}, {sp(XB_)} sc1", "row")
        vm.issue(f"global_load_dwordx4 {vr(FT+12,4)}, v{FT+5}, {sp(XB_)} sc1", "row")
    def slice1(L):
        n = f"l{L}"
        XR = FT + 8
        vm.wait("row")
        k.stamp(name="x" + n + "_row")
        I("s_cmp_ge_u32 s2, 224")
        I(f"s_cbranch_scc1 {lab(n+'_s1skip')}")
        for i in range(8):
            unpack(FT, FT + 1, XR + i)
            I(f"v_subrev_f32 v{FT}, s{RM}, v{FT}")
            I(f"v_subrev_f32 v{FT+1}, s{RM}, v{FT+1}")
            I(f"v_mul_f32 v{FT}, s{RR}, v{FT}")
            I(f"v_mul_f32 v{FT+1}, s{RR}, v{FT+1}")
            I(f"v_cvt_pk_bf16_f32 v{XR+i}, v{FT}, v{FT+1}")
        I(f"v_lshrrev_b32 v{FT+4}, 4, v1")
        I(f"v_lshlrev_b32 v{FT+4}, 4, v{FT+4}")
        I(f"v_mfma_f32_16x16x32_bf16 {vr(FT+16,4)}, {ar(AGU,4)}, {vr(XR,4)}, 0")
        I(f"v_mfma_f32_16x16x32_bf16 {vr(FT+16,4)}, {ar(AGU+4,4)}, {vr(XR+4,4)}, {vr(FT+16,4)}")
        I(f"s_lshl_b32 s{A0}, s{WAVE}, 6")
        I(f"s_add_u32 s{A0}, s{A0}, {LFF + 256}")
        I(f"v_add_u32 v{FT+4}, s{A0}, v{FT+4}")
        I("s_mov_b32 exec_lo, 0x00010001")
        I("s_mov_b32 exec_hi, 0x00010001")
        k.nop(3)
        I(f"ds_write_b128 v{FT+4}, {vr(FT+16,4)}")
        exec_all()
        bar()
        k.L(lab(n + "_s1skip"))
    def slice2(L):
        n = f"l{L}"
        I("s_cmp_ge_u32 s2, 224")
        I(f"s_cbranch_scc1 {lab(n+'_s2skip')}")
        I(f"v_and_b32 v{FT+4}, 15, v1")
        I(f"v_lshlrev_b32 v{FT+4}, 2, v{FT+4}")
        I(f"v_add_u32 v{FT+4}, {LFF + 256}, v{FT+4}")
        for i in range(8): I(f"ds_read_b32 v{FT+8+i}, v{FT+4} offset:{64*i}")
        for f in range(8): I(f"v_accvgpr_read_b32 v{FT+16+f}, a{ADN+f}")
        for f in range(8): I(f"v_lshlrev_b32 v{FT+16+f}, 16, v{FT+16+f}")
        I("s_waitcnt lgkmcnt(0)")
        g = FT + 8
        for a_, b_ in ((0,1),(2,3),(4,5),(6,7),(0,2),(4,6),(0,4)): I(f"v_add_f32 v{g+a_}, v{g+a_}, v{g+b_}")
        bf16r(g)
        t = FT
        I(f"v_mul_f32 v{t}, {hex(f2u(-LOG2E))}, v{g}")
        I(f"v_exp_f32 v{t}, v{t}")
        I("s_nop 0")
        I(f"v_add_f32 v{t}, 1.0, v{t}")
        I(f"v_rcp_f32 v{t}, v{t}")
        I("s_nop 0")
        I(f"v_mul_f32 v{t}, v{t}, v{g}")
        bf16r(t)
        k.nop(2)
        I(f"v_mul_f32_dpp v{t}, v{g}, v{t} row_ror:8 row_mask:0xf bank_mask:0xf")
        bf16r(t)
        k.nop(1)
        for f in range(8): I(f"v_readlane_b32 s{A0+f}, v{t}, {f}")
        I(f"s_lshl_b32 s{T2}, s{CGP}, 12")
        I(f"s_add_u32 s{T2}, s{T2}, {hex(YP[L])}")
        I(f"v_lshl_add_u32 v{FT+4}, v0, 3, s{T2}")
        I(f"v_mul_f32 v{FT+2}, s{A0}, v{FT+16}")
        for f in range(1, 8): I(f"v_fmac_f32 v{FT+2}, s{A0+f}, v{FT+16+f}")
        I(f"v_mov_b32 v{FT+3}, s{TAG}")
        I(f"global_store_dwordx2 v{FT+4}, {vr(FT+2,2)}, {sp(WSP)} sc1")
        k.L(lab(n + "_s2skip"))
    def finalize(L):
        n = f"l{L}"
        I("s_cmp_lt_u32 s2, 224")
        I(f"s_cbranch_scc1 {lab(n+'_fskip')}")
        XR = FT + 8
        I(f"v_lshrrev_b32 v{FT+4}, 4, v0")
        I(f"v_mul_u32_u24 v{FT+4}, {7*4096}, v{FT+4}")
        I(f"v_and_b32 v{FT+5}, 15, v0")
        I(f"v_lshl_add_u32 v{FT+4}, v{FT+5}, 3, v{FT+4}")
        I(f"s_sub_u32 s{A0}, s2, 224")
        I(f"s_lshl_b32 s{A0+1}, s{A0}, 7")
        I(f"s_add_u32 s{A0+1}, s{A0+1}, {hex(YP[L])}")
        I(f"v_add_u32 v{FT+4}, s{A0+1}, v{FT+4}")
        for i in range(1, 4): I(f"v_add_u32 v{FT+i-1}, {8192*i}, v{FT+4}")
        I(f"v_bfe_u32 v{FT+6}, v1, 1, 1")
        I(f"v_cmp_eq_u32 vcc, 1, v{FT+6}")
        I(f"v_bfe_u32 v{FT+6}, v1, 2, 1")
        I("s_nop 0")
        I(f"v_cndmask_b32 v{XR}, v{XR}, v{XR+1}, vcc")
        I(f"v_cndmask_b32 v{XR+2}, v{XR+2}, v{XR+3}, vcc")
        I(f"v_cmp_eq_u32 vcc, 1, v{FT+6}")
        I(f"v_and_b32 v{FT+6}, 1, v1")
        I("s_nop 0")
        I(f"v_cndmask_b32 v{XR}, v{XR}, v{XR+2}, vcc")
        I(f"v_cmp_eq_u32 vcc, 1, v{FT+6}")
        unpack(XR + 1, XR + 2, XR)
        I(f"v_cndmask_b32 v{XR}, v{XR+1}, v{XR+2}, vcc")
        Y_ = FT + 16
        ad = [FT + 4, FT, FT + 1, FT + 2]
        keepq = list(vm.q)
        poll(n + "_pl", [f"global_load_dwordx2 {vr(Y_+12,2)}, v{ad[3]}, {sp(WSP)} sc1"], [Y_ + 13])
        poll(n + "_pf", [f"global_load_dwordx2 {vr(Y_+2*i,2)}, v{ad[i//2]}, {sp(WSP)} offset:{4096*(i%2) - (4096 if False else 0)} sc1" if False else
                         f"global_load_dwordx2 {vr(Y_+2*i,2)}, v{ad[(i+1)//2]}, {sp(WSP)} offset:{-4096 if i % 2 else 0} sc1" for i in range(7)],
             [Y_ + 2*i + 1 for i in range(7)])
        for i in range(1, 7): I(f"v_add_f32 v{Y_}, v{Y_}, v{Y_+2*i}")
        rowreduce("v_add_f32", Y_, FT + 6)
        I(f"v_lshlrev_b32 v{FT+5}, 2, v{FT+5}")
        I(f"v_add_u32 v{FT+5}, {LFF + 256}, v{FT+5}")
        I(f"s_lshl_b32 s{A0+1}, s{WAVE}, 6")
        I(f"v_add_u32 v{FT+6}, s{A0+1}, v{FT+5}")
        I(f"ds_write_b32 v{FT+6}, v{Y_}")
        bar()
        for i in range(8): I(f"ds_read_b32 v{Y_+i}, v{FT+5} offset:{64*i}")
        t = FT
        I(f"v_mov_b32 v{t}, {hex(f2u(-LOG2E))}")
        I(f"v_mul_f32 v{t}, s{RS_}, v{t}")
        I(f"v_exp_f32 v{t}, v{t}")
        I(f"v_subrev_f32 v{t+1}, s{RM}, v{XR}")
        I(f"v_add_f32 v{t}, 1.0, v{t}")
        I(f"v_rcp_f32 v{t}, v{t}")
        I(f"v_mul_f32 v{t+1}, s{RR}, v{t+1}")
        bf16r(t); bf16r(t + 1)
        I("s_waitcnt lgkmcnt(0)")
        for i in range(1, 8): I(f"v_add_f32 v{Y_}, v{Y_}, v{Y_+i}")
        bf16r(Y_)
        I(f"v_mul_f32 v{Y_}, v{Y_}, v{t}")
        bf16r(Y_)
        I(f"v_add_f32 v{Y_}, v{Y_}, v{t+1}")
        bf16r(Y_)
        I(f"v_add_f32 v{Y_}, v{Y_}, v{XR}")
        I(f"v_cvt_pk_bf16_f32 v{Y_}, v{Y_}, v{Y_}")
        I(f"s_cmp_lg_u32 s{WAVE}, 0")
        I(f"s_cbranch_scc1 {lab(n+'_fskip')}")
        if L == 1:
            I(f"s_lshl_b32 s{A0+1}, s{IDX}, 10")
            I(f"s_lshl_b32 s{A0}, s{A0}, 5")
            I(f"s_add_u32 s{A0}, s{A0}, s{A0+1}")
            I(f"v_lshl_add_u32 v{FT+4}, v1, 1, s{A0}")
            exec_lo("0xffff")
            I(f"global_store_short v{FT+4}, v{Y_}, {sp(OUTP)}")
        else:
            I(f"v_and_b32 v{Y_}, 0xffff, v{Y_}")
            k.nop(2)
            for j, qp in ((1, 1), (2, 2), (3, 3)):
                I(f"v_mov_b32_dpp v{Y_+j}, v{Y_} quad_perm:[{qp},{qp},{qp},{qp}] row_mask:0xf bank_mask:0xf")
            I(f"v_lshl_or_b32 v{Y_}, v{Y_+1}, 16, v{Y_}")
            I(f"v_lshl_or_b32 v{Y_+1}, v{Y_+3}, 16, v{Y_+2}")
            I(f"v_mov_b32 v{Y_+2}, s{TAG}")
            I(f"s_lshl_b32 s{A0}, s{A0}, 7")
            I(f"s_add_u32 s{A0}, s{A0}, {hex(X2R)}")
            I(f"v_lshl_add_u32 v{FT+4}, v1, 2, s{A0}")
            exec_lo("0x1111")
            I(f"global_store_dwordx4 v{FT+4}, {vr(Y_,4)}, {sp(WSP)} sc1")
        exec_all()
        k.L(lab(n + "_fskip"))
        vm.q = keepq

    q_epilogue(0)
    k.stamp(name="l0_qepi")
    attention(0)
    oproj(0)
    I(f"s_mul_i32 s{A0}, s{WAVE}, 6144")
    I(f"s_add_u32 s{A0}, s{A0}, {LWQ}")
    I(f"v_add_u32 v12, s{A0}, v3")
    for i in range(6): I(f"ds_write_b128 v12, {ar(AWS+4*i,4)} offset:{1024*i}")
    I(f"s_lshl_b32 s{A0}, s{TT}, 15")
    I(f"v_add_u32 v8, s{A0}, v3")
    I("v_add_u32 v9, 0x4000, v8")
    I(f"s_lshr_b32 s{A0}, s{TT}, 1")
    I(f"s_lshl_b32 s{A0}, s{A0}, 13")
    I(f"s_and_b32 s{A0+1}, s{TT}, 1")
    I(f"s_lshl_b32 s{A0+1}, s{A0+1}, 9")
    I(f"s_add_u32 s{A0}, s{A0}, s{A0+1}")
    I(f"s_add_u32 s{A0}, s{A0}, {hex(ST[0])}")
    I(f"v_lshl_add_u32 v11, v6, 4, s{A0}")
    I("v_lshl_add_u32 v11, v7, 12, v11")
    RING = 6
    LOOK = int(ENV("LOOK", "4"))
    ROT1 = 67 if not PROFILE else 101
    I(f"s_lshr_b32 s{ROT1}, s{HEAD}, 1")
    def xload(ks):
        I(f"s_add_u32 s{T0}, s{ROT1}, {ks}")
        I(f"s_and_b32 s{T0}, s{T0}, 15")
        I(f"s_lshl_b32 s{T0}, s{T0}, 10")
        I(f"s_add_u32 s{T0}, s{XB_}, s{T0}")
        I(f"s_addc_u32 s{T0+1}, s{XB_+1}, 0")
        for t in range(2):
            vm.issue(f"global_load_dwordx4 {ar(64+8*(ks % RING)+4*t,4)}, v{8+t}, {sp(T0)} sc1", f"x{ks}")
    def wbase1(ks):
        I(f"s_add_u32 s{T0}, s{ROT1}, {ks}")
        I(f"s_and_b32 s{T0}, s{T0}, 15")
        I(f"s_lshl_b32 s{T0}, s{T0}, 10")
        I(f"v_add_u32 v12, s{T0}, v10")
    def first_x():
        for ks in range(LOOK): xload(ks)
    hop_a(0)
    w_addr()
    def bg_loads():
        first_x()
        for l in stat_loads: vm.issue(l, "st")
    I("s_cmp_ge_u32 s2, 224")
    I(f"s_cbranch_scc1 {lab('fin_a')}")
    hop_b_issue(0)
    hop_b(0, role="s")
    slice1(0)
    slice2(0)
    bg_loads()
    I(f"s_branch {lab('q1_go')}")
    k.L(lab("fin_a"))
    vm.q = []
    bg_loads()
    k.L(lab("q1_go"))
    k.stamp(name="q1_ffn")
    wbase1(0)
    wreads(WB, 12, 0)
    wbase1(1)
    wreads(WB + 12, 12, 0)
    for ks in range(16):
        if ks + LOOK < 16: xload(ks + LOOK)
        if ks < 14:
            wbase1(ks + 2)
            wreads(WB + 12*((ks+2)%3), 12, 0)
        vm.wait(f"x{ks}", f" lgkmcnt({12 if ks < 14 else 6 if ks == 14 else 0})")
        qmfmas(WB + 12*(ks%3), ar(64+8*(ks % RING),4), ar(64+8*(ks % RING)+4,4), ks == 0)
    k.stamp(name="q1_loop")
    poll("ps", stat_loads, stat_tags, first_issued=True)
    own_stats()
    I("s_cmp_lt_u32 s2, 224")
    I(f"s_cbranch_scc1 {lab('fin_b')}")
    hop_b_issue(0, "f")
    hop_b(0, role="f")
    vm.drain()
    finalize(0)
    k.L(lab("fin_b"))
    k.stamp(name="q1_fin")
    I(f"s_lshr_b32 s{A0}, s{IDX}, 8")
    I(f"s_cmp_lg_u32 s{A0}, s{QB}")
    I(f"s_cbranch_scc1 {lab('nofix')}")
    F0, FX = 80, 64
    I(f"s_lshl_b32 s{A0}, s{WAVE}, 9")
    I(f"s_add_u32 s{A0}, s{A0}, {hex(X2R)}")
    I(f"v_lshl_add_u32 v12, v7, 7, s{A0}")
    I("v_bfe_u32 v13, v1, 4, 1")
    I("v_lshl_add_u32 v12, v13, 5, v12")
    if ENV("PX2", "0") == "1":
        I(f"s_cmp_lg_u32 s{WAVE}, 0")
        I(f"s_cbranch_scc1 {lab('px1')}")
        I("v_lshlrev_b32 v13, 7, v1")
        I(f"v_add_u32 v13, {hex(X2R + 56)}, v13")
        exec_lo(-1)
        poll("pw", [f"global_load_dword v14, v13, {sp(WSP)} sc1"], [14])
        exec_all()
        k.L(lab("px1"))
        I("s_barrier")
    poll("px", [f"global_load_dwordx3 {vr(F0+4*i,3)}, v12, {sp(WSP)} offset:{256*(i>>1)+16*(i&1)} sc1" for i in range(4)], [F0 + 4*i + 2 for i in range(4)])
    I(f"s_lshl_b32 s{A0}, s{WAVE}, 11")
    I(f"v_add_u32 v12, s{A0}, v10")
    for q in range(2): wreads(WB + 12*q, 12, q)
    for i in range(4):
        I(f"v_mov_b32 v{FX+2*i}, v{F0+4*i}")
        I(f"v_mov_b32 v{FX+2*i+1}, v{F0+4*i+1}")
    I("v_mov_b32 v14, 0"); I("v_mov_b32 v15, 0")
    for r in range(8):
        I(f"v_dot2_f32_bf16 v14, v{FX+r}, s{ONES}, v14")
        I(f"v_dot2_f32_bf16 v15, v{FX+r}, v{FX+r}, v15")
    I("s_waitcnt lgkmcnt(0)")
    for q in range(2):
        for sec in range(3): mfma16(F0 + 4*sec, vr(WB+12*q+4*sec,4), vr(FX+4*q,4), q == 0)
    rowreduce("v_add_f32", 14, 13)
    rowreduce("v_add_f32", 15, 13)
    I(f"s_lshl_b32 s{A0}, s{WAVE}, 8")
    I(f"s_add_u32 s{A0}, s{A0}, {LRD}")
    I("v_and_b32 v12, 48, v1")
    I(f"v_add_u32 v12, s{A0}, v12")
    I(f"v_mov_b32 v13, s{A0}")
    I("s_mov_b32 exec_lo, 0x00010001"); I("s_mov_b32 exec_hi, 0x00010001")
    for sec in range(3): I(f"ds_write_b128 v12, {vr(F0+4*sec,4)} offset:{64*sec}")
    I("ds_write_b64 v13, v[14:15] offset:192")
    exec_all()
    bar()
    I(f"s_lshr_b32 s{A0}, s{IDX}, 5")
    I(f"s_cmp_lg_u32 s{A0}, s{OT}")
    I(f"s_cbranch_scc1 {lab('nores')}")
    I(f"s_lshl_b32 s{A0}, s{KG}, 7")
    I(f"s_add_u32 s{A0}, s{A0}, {hex(X2R)}")
    I(f"v_lshl_add_u32 v14, v7, 4, s{A0}")
    I(f"v_cmp_eq_u32 vcc, s{IDX}, v{VTK}")
    I(f"s_and_saveexec_b64 {sp(T2)}, vcc")
    I(f"global_load_dwordx2 {vr(XG,2)}, v14, {sp(WSP)} sc1")
    I(f"global_load_dwordx2 {vr(XG+2,2)}, v14, {sp(WSP)} offset:32 sc1")
    I(f"v_mov_b32 v{RESR}, 0")
    exec_all()
    k.L(lab("nores"))
    I(f"s_lshr_b32 s{A0}, s{IDX}, 5")
    I(f"s_cmp_lg_u32 s{A0}, s{TT}")
    I(f"s_cbranch_scc1 {lab('nofix')}")
    sum8(LRD, LFX)
    I("v_and_b32 v12, 48, v1")
    I(f"v_add_u32 v12, {LFX}, v12")
    I(f"v_mov_b32 v13, {LFX + 192}")
    for sec in range(2): I(f"ds_read_b128 {vr(F0+4*sec,4)}, v12 offset:{64*sec}")
    I("ds_read_b64 v[64:65], v13")
    I("v_and_b32 v15, 15, v1")
    I("v_lshlrev_b32 v14, 2, v15")
    I(f"v_add_u32 v14, {LFX + 128}, v14")
    I("ds_read_b32 v66, v14")
    I(f"s_and_b32 s{A0}, s{IDX}, 31")
    I("v_lshrrev_b32 v13, 4, v1")
    I("v_lshlrev_b32 v13, 2, v13")
    I(f"v_sub_u32 v13, s{A0}, v13")
    I(f"v_sub_u32 v15, s{A0}, v15")
    I("s_waitcnt lgkmcnt(0)")
    rowstats(64, 65, 67, 68, 69)
    for t in range(2):
        I(f"v_cmp_eq_u32 vcc, {16*t}, v15")
        k.nop(2)
        I(f"v_cndmask_b32 v{MT[t]}, v{MT[t]}, v67, vcc")
        I(f"v_cndmask_b32 v{AT[t]}, v{AT[t]}, v69, vcc")
        for sec in range(2):
            for r in range(4): I(f"v_cndmask_b32 v{ACC+8*sec+4*t+r}, v{ACC+8*sec+4*t+r}, v{F0+4*sec+r}, vcc")
        for r in range(4):
            I(f"v_cmp_eq_u32 vcc, {16*t+r}, v13")
            k.nop(2)
            I(f"v_cndmask_b32 v{ACC+16+4*t+r}, v{ACC+16+4*t+r}, v66, vcc")
    k.L(lab("nofix"))
    vm.drain()
    k.stamp(name="q1_fix")
    bounce_params()
    q_epilogue(1)
    k.stamp(name="l1_qepi")
    attention(1)
    oproj(1)
    hop_a(1)
    hop_b_issue(1)
    X, Y = 96, 16
    for i in range(4): unpack(X + 2*i, X + 2*i + 1, XG + i)
    for r in range(8): I(f"v_sub_f32 v{Y+r}, v{X+r}, v{RESM}")
    for r in range(8): I(f"v_mul_f32 v{Y+r}, v{Y+r}, v{RESR}")
    for i in range(4): I(f"v_cvt_pk_bf16_f32 v{XG+i}, v{Y+2*i}, v{Y+2*i+1}")
    for i in range(4): unpack(Y + 2*i, Y + 2*i + 1, XG + i)
    for r in range(8): I(f"v_add_f32 v{X+r}, v{X+r}, v{Y+r}")
    for i in range(4): I(f"v_cvt_pk_bf16_f32 v{XG+i}, v{X+2*i}, v{X+2*i+1}")
    I(f"s_lshl_b32 s{A0}, s{KG}, 5")
    I(f"v_lshl_add_u32 v12, v7, 4, s{A0}")
    I(f"v_lshl_add_u32 v12, v{VTK}, 10, v12")
    I(f"v_permlane32_swap_b32 v{XG}, v{XG+2}")
    I(f"v_permlane32_swap_b32 v{XG+1}, v{XG+3}")
    hop_b(1)
    k.stamp(name="t_hopb")
    I(f"v_cmp_ne_u32 vcc, s{IDX}, v{VTK}")
    I(f"s_and_saveexec_b64 {sp(T2)}, vcc")
    vm.issue(f"global_store_dwordx4 v12, {vr(XG,4)}, {sp(OUTP)} {ENV('OUTF', '')}")
    exec_all()
    slice1(1)
    slice2(1)
    k.stamp(name="t_slice")
    finalize(1)
    I("s_cmp_lg_u32 s2, 0")
    I(f"s_cbranch_scc1 {lab('end')}")
    I(f"v_mov_b32 v12, {hex(NONCE)}")
    I(f"v_mov_b32 v13, s{TAG}")
    I("v_cmp_eq_u32 vcc, 0, v0")
    I(f"s_and_saveexec_b64 {sp(T2)}, vcc")
    I(f"s_cbranch_execz {lab('end')}")
    I(f"global_store_dword v12, v13, {sp(WSP)}")
    k.L(lab("end"))
    k.stamp_end(0)
    if ENV("DBGT"):
        I("s_cmp_lt_u32 s2, 224")
        I(f"s_cbranch_scc1 {lab('exit')}")
        I(f"s_cmp_lg_u32 s{WAVE}, 0")
        I(f"s_cbranch_scc1 {lab('exit')}")
        I("s_load_dwordx2 s[4:5], s[0:1], 72")
        I("s_memrealtime s[6:7]")
        I("s_memtime s[8:9]")
        I("s_waitcnt lgkmcnt(0)")
        I("s_mov_b64 exec, 1")
        I("s_not_b32 s96, s96")
        I("s_sub_u32 s8, s8, s98")
        I("v_mov_b32 v1, 0"); I("v_mov_b32 v2, s96"); I("v_mov_b32 v3, s6"); I("v_mov_b32 v4, s8")
        I("global_atomic_umax v1, v2, s[4:5]")
        I("global_atomic_umax v1, v3, s[4:5] offset:4")
        I("global_atomic_umax v1, v4, s[4:5] offset:8")
    k.L(lab("exit"))
    I("s_endpgm")
    return k

if __name__ == "__main__":
    k = build_kernel()
    bad = check_hazards(k)
    for b in bad: print("HAZARD", b, file=sys.stderr)
    out = sys.argv[1] if len(sys.argv) > 1 else "cdna_kernels/" + NAME + ".s"
    txt = emit_file(HEADER, [k], single=(ENV("SINGLE", "0") == "1"))
    open(out, "w").write(txt)
    print("written", out, len(txt), "bytes; hazards:", len(bad))
```

```python
import sys, struct, os
from asmlib import *

NAME = "interleave_layers__softmax_full_mha__moe_arch_mod__prompt"
HEADER = open("cdna_kernels/" + NAME + ".s.ref").read().split("; Override launch")[0]
ENV = os.environ.get

XF = [0x000000, 0x200000]
KF = [0x400000, 0x800000]
VF = [0x600000, 0xA00000]
OF = [0xC00000, 0xE00000]
ST = [0x1000000, 0x1040000]
YP = [0x1080000, 0x1100000]
FLK = [0x1280000, 0x1288000]
FLO = [0x1300000, 0x1340000]
KEY = [0x12A4000, 0x12A6000]
X2R = 0x12A0000
NONCE = 0x12A2000
EPS = 1e-5
def f2u(x): return struct.unpack("<I", struct.pack("<f", x))[0]
QSCALE = 0.25 * 1.4426950408889634
LOG2E = 1.4426950408889634
SPIN_MAX = 1 << 18

CB, CBN = 131072, 20
LWQ = 8192
LST = CB + CBN * 512
LSA = LST
LPC = LST + 8192
LFX = LST + 8448
LVB = LST + 8704
LRD = LST + 10752
LFF = LST + 14848
LDS_BYTES = LFF + 1024

X0P, WQP, WOP, WSP, WRP, WGP, WUP, WDP, OUTP = 4, 6, 8, 10, 12, 14, 16, 18, 20
HEAD, QB, WAVE, TT, W1K, THR, CTR, SPIN, PASS, TAG, CG, TB, OA, KQ, OT, KG, IDX, WSUM = range(22, 40)
T0, T2 = 40, 42
A0 = 44
KB_, VB_, OB_, XB_ = 52, 54, 56, 58
RM, RR, RS_, ONES, C512, CEPS = 60, 61, 62, 63, 64, 65
CGP = 3

def sp(i): return f"s[{i}:{i+1}]"

class VM:
    def __init__(self, k): self.k = k; self.q = []
    def issue(self, txt, tag=None):
        self.k.I(txt); self.q.append(tag)
    def wait(self, tag, extra=""):
        i = max(j for j, t in enumerate(self.q) if t == tag)
        n = len(self.q) - 1 - i
        assert n <= 63
        self.k.I(f"s_waitcnt vmcnt({n}){extra}")
    def drain(self, extra=""):
        self.k.I(f"s_waitcnt vmcnt(0){extra}"); self.q = []

def build_kernel():
    k = Kern(NAME + "_kernel", 256, 512, LDS_BYTES, 128, nagpr=128)
    I = k.I
    vm = VM(k)
    def lab(x): return f"L_{x}"
    def sadd64(d, b, const):
        I(f"s_add_u32 s{d}, s{b}, {hex(const)}"); I(f"s_addc_u32 s{d+1}, s{b+1}, 0")
    def swapop(sw, op, x, t):
        I(f"v_mov_b32 v{t}, v{x}"); k.nop(2); I(f"{sw} v{x}, v{t}"); I(f"{op} v{x}, v{x}, v{t}")
    def halfsum(op, x, t): swapop("v_permlane32_swap_b32", op, x, t)
    def rowreduce(op, x, t):
        swapop("v_permlane16_swap_b32", op, x, t); swapop("v_permlane32_swap_b32", op, x, t)
    def dppred(op, x, modes):
        for m in modes:
            k.nop(2); I(f"{op}_dpp v{x}, v{x}, v{x} {m} row_mask:0xf bank_mask:0xf")
    Q4 = ("quad_perm:[1,0,3,2]", "quad_perm:[2,3,0,1]")
    def allreduce(op, x, t):
        dppred(op, x, Q4 + ("row_half_mirror", "row_mirror")); rowreduce(op, x, t)
    def unpack(dlo, dhi, src):
        I(f"v_lshlrev_b32 v{dlo}, 16, v{src}"); I(f"v_and_b32 v{dhi}, 0xffff0000, v{src}")
    def bf16r(x):
        I(f"v_cvt_pk_bf16_f32 v{x}, v{x}, v{x}"); I(f"v_and_b32 v{x}, 0xffff0000, v{x}")
    def exec_lo(mask):
        I(f"s_mov_b32 exec_lo, {mask}"); I("s_mov_b32 exec_hi, 0")
    def exec_all(): I("s_mov_b64 exec, -1")
    def bar(lg=True):
        if lg: I("s_waitcnt lgkmcnt(0)")
        I("s_barrier")
    def poll(name, loads, tagregs, first_issued=False, check=None, chk_label=None):
        I(f"s_mov_b32 s{SPIN}, {SPIN_MAX}")
        SL = int(ENV("SLEEP", "0"))
        if chk_label: I(f"s_branch {lab(chk_label)}")
        elif first_issued: I(f"s_branch {lab(name+'_w')}")
        elif SL: I(f"s_branch {lab(name+'_l')}")
        k.L(lab(name))
        if SL: I(f"s_sleep {SL}")
        k.L(lab(name + "_l"))
        for l in loads: I(l)
        k.L(lab(name + "_w"))
        I("s_waitcnt vmcnt(0)")
        if chk_label: k.L(lab(chk_label))
        if check: check()
        else: I(f"v_cmp_ne_u32 vcc, s{TAG}, v{tagregs[0]}")
        for r in tagregs[1:]:
            I(f"v_cmp_ne_u32 {sp(T2)}, s{TAG}, v{r}")
            I(f"s_or_b64 vcc, vcc, {sp(T2)}")
        I(f"s_sub_u32 s{SPIN}, s{SPIN}, 1")
        I(f"s_cbranch_vccz {lab(name+'_ok')}")
        I(f"s_cbranch_scc0 {lab(name)}")
        k.L(lab(name + "_ok"))
        k.stampval(SPIN, "x" + name + "_spin")
        k.stamp(name="x" + name + "_ok")
        vm.q = []
    def mfma(d, a_, b_, c): I(f"v_mfma_f32_32x32x16_bf16 {vr(d,16)}, {a_}, {b_}, {vr(c,16) if c is not None else 0}")
    def rowstats(s1, s2, m, var, rstd):
        I(f"v_mul_f32 v{m}, s{C512}, v{s1}")
        I(f"v_mul_f32 v{var}, s{C512}, v{s2}")
        I(f"v_fma_f32 v{var}, -v{m}, v{m}, v{var}")
        I(f"v_max_f32 v{var}, 0, v{var}")
        I(f"v_add_f32 v{rstd}, s{CEPS}, v{var}")
        I(f"v_rsq_f32 v{rstd}, v{rstd}")

    ACC, WB = 16, 40
    CQ, CV, MV, AL = 96, 108, 76, 84
    MT, AT = [112, 114], [113, 115]
    S0, S1, P0, P1, VA, NEG, O, Q, KB = 16, 32, 48, 52, [56, 64], 72, 88, 104, 108
    AK, AV, AVS, VBASE = 112, 113, 114, 115
    XG, WR, VXO, VTK, RESM, RESR = 116, 120, 124, 125, 126, 127
    TK, TV = 64, 68
    def mfma16(d, a_, b_, first): I(f"v_mfma_f32_16x16x32_bf16 {vr(d,4)}, {a_}, {b_}, {0 if first else vr(d,4)}")
    AWO, ARS, AWS, AGU, ADN = 0, 32, 88, 112, 120

    I("s_cmp_ge_u32 s2, 256")
    I(f"s_cbranch_scc1 {lab('exit')}")
    k.stamp_begin()
    if ENV("DBGT"):
        I("s_memrealtime s[96:97]")
        I("s_memtime s[98:99]")
    I(f"s_load_dwordx4 s[4:7], s[0:1], 0")
    I(f"s_load_dwordx2 s[8:9], s[0:1], 16")
    I(f"s_load_dwordx2 s[10:11], s[0:1], 80")
    I(f"s_load_dwordx8 s[12:19], s[0:1], 32")
    I(f"s_load_dwordx2 s[20:21], s[0:1], 64")
    I("v_and_b32 v1, 63, v0")
    I("v_lshrrev_b32 v2, 6, v0")
    I("v_lshlrev_b32 v3, 4, v1")
    I(f"v_readfirstlane_b32 s{WAVE}, v2")
    I(f"s_and_b32 s{QB}, s2, 7")
    I(f"s_lshr_b32 s{HEAD}, s2, 3")
    if ENV("HX"):
        I(f"s_cmp_lt_u32 s{HEAD}, 16")
        I(f"s_cselect_b32 s{A0}, 8, 0")
        I(f"s_xor_b32 s{HEAD}, s{HEAD}, s{A0}")
    I(f"s_lshl_b32 s{TT}, s{QB}, 3")
    I(f"s_add_u32 s{TT}, s{TT}, s{WAVE}")
    I(f"s_lshl_b32 s{W1K}, s{WAVE}, 10")
    I("v_bfe_u32 v5, v1, 1, 2")
    I("v_bfe_u32 v6, v1, 3, 1")
    I("v_lshl_add_u32 v5, v6, 3, v5")
    I("v_bfe_u32 v6, v1, 4, 1")
    I("v_lshl_add_u32 v5, v6, 2, v5")
    I("v_bfe_u32 v6, v1, 5, 1")
    I("v_lshl_add_u32 v5, v6, 4, v5")
    I("v_mul_u32_u24 v5, 3072, v5")
    I("v_and_b32 v6, 1, v1")
    I("v_lshl_add_u32 v5, v6, 4, v5")
    I(f"s_lshl_b32 s{A0+1}, s{HEAD}, 5")
    I(f"v_add_u32 v5, s{A0+1}, v5")
    I("v_lshrrev_b32 v8, 4, v1")
    I("v_and_b32 v9, 7, v1")
    I("v_xor_b32 v8, v8, v9")
    I("v_lshlrev_b32 v8, 4, v8")
    I("v_lshrrev_b32 v9, 3, v1")
    I("v_lshl_add_u32 v8, v9, 10, v8")
    I(f"s_lshl_b32 s{A0}, s{TT}, 15")
    I(f"v_add_u32 v8, s{A0}, v8")
    I("v_xor_b32 v9, 64, v8")
    I("v_add_u32 v9, 0x2000, v9")
    XB3 = [A0 + 3, A0 + 4, A0 + 5]
    for b_ in range(3):
        I(f"s_mul_i32 s{XB3[b_]}, s{WAVE}, 12288")
        I(f"s_add_u32 s{XB3[b_]}, s{XB3[b_]}, {56*1024 + 4096*b_}")
        if b_:
            I(f"s_cmp_eq_u32 s{WAVE}, 7")
            I(f"s_cselect_b32 s{XB3[b_]}, {4096*(b_-1)}, s{XB3[b_]}")
    ROT = A0 + 6
    I(f"s_and_b32 s{ROT}, s{HEAD}, 3")
    I("s_waitcnt lgkmcnt(0)")
    def xstage(st):
        I(f"s_add_u32 s{A0}, s{ROT}, {st//2}")
        I(f"s_and_b32 s{A0}, s{A0}, 3")
        I(f"s_lshl_b32 s{A0}, s{A0}, 8")
        if st & 1: I(f"s_add_u32 s{A0}, s{A0}, 128")
        I(f"s_add_u32 s{T0}, s{X0P}, s{A0}")
        I(f"s_addc_u32 s{T0+1}, s{X0P+1}, 0")
        for i in range(4):
            if i == 2: sadd64(T0, T0, 16384)
            I(f"s_add_u32 m0, s{XB3[st % 3]}, {i*1024}")
            I("s_nop 0")
            vm.issue(f"global_load_lds_dwordx4 v{8 + (i&1)}, {sp(T0)}", f"x{st}")
    def wdma(j):
        I(f"s_mul_i32 s{A0}, s{ROT}, 12")
        I(f"s_add_u32 s{A0}, s{A0}, s{WAVE}")
        I(f"s_add_u32 s{A0}, s{A0}, {8*j}")
        I(f"s_sub_u32 s{A0+1}, s{A0}, 48")
        I(f"s_cmp_ge_u32 s{A0}, 48")
        I(f"s_cselect_b32 s{A0}, s{A0+1}, s{A0}")
        I(f"s_mul_i32 s{A0+1}, s{A0}, 21846")
        I(f"s_lshr_b32 s{A0+1}, s{A0+1}, 16")
        I(f"s_mul_i32 s{A0+2}, s{A0+1}, 3")
        I(f"s_sub_u32 s{A0}, s{A0}, s{A0+2}")
        I(f"s_mul_i32 s{A0+2}, s{A0+1}, {32*3072}")
        I(f"s_lshl_b32 s{T0}, s{A0}, 10")
        I(f"s_add_u32 s{A0+2}, s{A0+2}, s{T0}")
        I(f"s_add_u32 s{T0}, s{WQP}, s{A0+2}")
        I(f"s_addc_u32 s{T0+1}, s{WQP+1}, 0")
        I(f"s_lshl_b32 s{A0}, s{A0}, 14")
        I(f"s_lshl_b32 s{A0+1}, s{A0+1}, 10")
        I(f"s_add_u32 s{A0}, s{A0}, s{A0+1}")
        I(f"s_add_u32 m0, s{A0}, {LWQ}")
        I("s_nop 0")
        vm.issue(f"global_load_lds_dwordx4 v5, {sp(T0)}", f"W{j}")
    if ENV("CPF", "0") == "1":
        I(f"s_cmp_lg_u32 s{WAVE}, 7")
        I(f"s_cbranch_scc1 {lab('nocpf')}")
        I(f"s_lshl_b32 s{A0}, s{HEAD}, 13")
        I(f"v_lshl_add_u32 v12, v1, 7, s{A0}")
        I(f"v_cmp_gt_u32 vcc, {lab('exit')}-{lab('pc0')}, v12")
        I(f"s_getpc_b64 {sp(T0)}")
        k.L(lab("pc0"))
        I(f"s_and_saveexec_b64 {sp(T2)}, vcc")
        I(f"s_cbranch_execz {lab('cpf2')}")
        I(f"global_load_dword v127, v12, {sp(T0)}")
        k.L(lab("cpf2"))
        exec_all()
        k.L(lab("nocpf"))
    if ENV("ALLUP"):
        for j in range(8):
            if j < 6 and ENV("ALLUP") != "x": wdma(j)
            if ENV("ALLUP") != "w": xstage(j)
        k.stamp(name="a_issue")
        I("s_waitcnt vmcnt(0)")
        k.stamp(name="a_done")
        I("s_barrier")
        k.stamp(name="a_bar")
        I(f"s_branch {lab('end')}")
    UPW = int(ENV("UPW", "4"))
    wdma(0); xstage(0); wdma(1); xstage(1); wdma(2); xstage(2)
    for j in range(3, UPW): wdma(j)
    sadd64(T2, WSP, NONCE)
    I(f"s_load_dword s{TAG}, {sp(T2)}, 0")
    I(f"s_lshr_b32 s{CG}, s{HEAD}, 2")
    I(f"s_and_b32 s{TB}, s{HEAD}, 3")
    I(f"s_lshl_b32 s{A0}, s{QB}, 2")
    I(f"s_add_u32 s{TB}, s{TB}, s{A0}")
    I(f"s_and_b32 s{OA}, s{WAVE}, 1")
    I(f"s_lshr_b32 s{KQ}, s{WAVE}, 1")
    I(f"s_lshl_b32 s{OT}, s{TB}, 1")
    I(f"s_add_u32 s{OT}, s{OT}, s{OA}")
    I(f"s_lshl_b32 s{KG}, s{CG}, 2")
    I(f"s_add_u32 s{KG}, s{KG}, s{KQ}")
    I(f"s_mul_i32 s{CGP}, s{QB}, 28")
    I(f"s_min_u32 s{A0}, s{HEAD}, 27")
    I(f"s_add_u32 s{CGP}, s{CGP}, s{A0}")
    I(f"s_mov_b32 s{THR}, {hex(f2u(2.0**30)) if not ENV('THRZ') else 0}")
    I(f"s_mov_b32 s{ONES}, 0x3f803f80")
    I(f"s_mov_b32 s{C512}, {hex(f2u(1/512))}")
    I(f"s_mov_b32 s{CEPS}, {hex(f2u(EPS))}")
    def lane_terms():
        I("v_and_b32 v6, 31, v1")
        I("v_lshrrev_b32 v7, 5, v1")
    lane_terms()
    def w_addr():
        I("v_bfe_u32 v12, v1, 2, 2")
        I("v_lshl_add_u32 v12, v7, 4, v12")
        I("v_bfe_u32 v13, v1, 4, 1")
        I("v_lshl_add_u32 v12, v13, 2, v12")
        I("v_and_b32 v13, 3, v1")
        I("v_lshlrev_b32 v13, 3, v13")
        I("v_lshl_add_u32 v10, v12, 5, v13")
        I(f"v_add_u32 v10, {LWQ}, v10")
    w_addr()
    def wreads(dst, ad, ks):
        for sec in range(3):
            I(f"ds_read_b64_tr_b16 {vr(dst+4*sec,2)}, v{ad} offset:{sec*16384+ks*1024}")
            I(f"ds_read_b64_tr_b16 {vr(dst+4*sec+2,2)}, v{ad} offset:{sec*16384+ks*1024+256}")
    def qmfmas(wb, xa, xb, first, between=None):
        for i, (d, A_, B_) in enumerate(((ACC, vr(wb,4), xa), (ACC+4, vr(wb,4), xb), (ACC+8, vr(wb+4,4), xa),
                                         (ACC+12, vr(wb+4,4), xb), (ACC+16, xa, vr(wb+8,4)), (ACC+20, xb, vr(wb+8,4)))):
            mfma16(d, A_, B_, first)
            if between: between(i)
    I("v_bfe_u32 v12, v1, 1, 3")
    I("v_and_b32 v13, 15, v1")
    I("v_lshlrev_b32 v13, 7, v13")
    I("v_lshrrev_b32 v14, 4, v1")
    I("v_xor_b32 v14, v14, v12")
    I("v_lshl_add_u32 v2, v14, 4, v13")
    I("v_xor_b32 v4, 64, v2")
    def xfrags(st):
        I(f"v_add_u32 v14, s{XB3[st % 3]}, v2")
        I(f"v_add_u32 v15, s{XB3[st % 3]}, v4")
        vm.wait(f"x{st}")
        for h in range(2):
            for t in range(2): I(f"ds_read_b128 {ar(16*st+8*h+4*t,4)}, v{14+h} offset:{2048*t}")
    k.stamp(name="q0_issue")
    I("s_waitcnt lgkmcnt(0)")
    I(f"s_mul_i32 s{TAG}, s{TAG}, 0x9E3779B1")
    I(f"s_add_u32 s{TAG}, s{TAG}, 0x7F4A7C15")
    GU, ON = 76, 92
    for r in range(4): I(f"v_mov_b32 v{ON+r}, s{ONES}")
    xfrags(0)
    I("s_barrier")
    k.stamp(name="q0_W")
    CSA = 96
    def colsum_part(i):
        I(f"v_add_u32 v13, s{W1K}, v10")
        wreads(100, 13, 8*i)
        if i == 0:
            for sec in range(3): I(f"v_mov_b32 v{CSA+sec}, 0")
        I("s_waitcnt lgkmcnt(0)")
        for sec in range(3):
            for r in range(4): I(f"v_dot2_f32_bf16 v{CSA+sec}, v{100+4*sec+r}, s{ONES}, v{CSA+sec}")
        if i == 1:
            k.nop(2)
            for sec in range(3): rowreduce("v_add_f32", CSA + sec, 13)
            I(f"s_lshl_b32 s{A0}, s{WAVE}, 8")
            I(f"s_add_u32 s{A0}, s{A0}, {LRD}")
            I("v_and_b32 v13, 15, v1")
            I(f"v_lshl_add_u32 v13, v13, 2, s{A0}")
            for sec in range(3): I(f"ds_write_b32 v13, v{CSA+sec} offset:{64*sec}")
    def sum8(src, dst):
        I("v_lshlrev_b32 v13, 2, v1")
        I(f"v_add_u32 v14, {src}, v13")
        for w in range(8): I(f"ds_read_b32 v{104+w}, v14 offset:{256*w}")
        I(f"v_add_u32 v13, {dst}, v13")
        I("s_waitcnt lgkmcnt(0)")
        for a_, b_ in ((0,1),(2,3),(4,5),(6,7),(0,2),(4,6),(0,4)): I(f"v_add_f32 v{104+a_}, v{104+a_}, v{104+b_}")
        I("ds_write_b32 v13, v104")
    def wsave():
        I(f"s_mul_i32 s{A0}, s{WAVE}, 6144")
        I(f"s_add_u32 s{A0}, s{A0}, {LWQ}")
        I(f"v_add_u32 v13, s{A0}, v3")
        for i in range(6): I(f"ds_read_b128 {ar(AWS+4*i,4)}, v13 offset:{1024*i}")
    def wbase(q):
        I(f"s_add_u32 s{A0}, s{ROT}, {q}")
        I(f"s_and_b32 s{A0}, s{A0}, 3")
        I(f"s_lshl_b32 s{A0}, s{A0}, 12")
        I(f"v_add_u32 v11, s{A0}, v10")
    wbase(0)
    wreads(WB, 11, 0)
    wreads(WB + 12, 11, 1)
    ready = {2: 1, 5: 2, 8: 3, 10: 4, 13: 5}
    def stats0():
        I("v_and_b32 v13, 11, v0")
        I(f"v_mov_b32 v14, s{ONES}")
        I("v_cmp_eq_u32 vcc, 0, v13")
        I("v_lshlrev_b32 v13, 4, v0")
        I(f"v_add_u32 v13, {CB}, v13")
        I("v_cndmask_b32 v100, 0, v14, vcc")
        for r in range(1, 4): I(f"v_mov_b32 v{100+r}, v100")
        I("ds_write_b128 v13, v[100:103]")
        I(f"v_cmp_gt_u32 vcc, {(CBN*512 - 8192)//16}, v0")
        I(f"s_and_saveexec_b64 {sp(T2)}, vcc")
        I("ds_write_b128 v13, v[100:103] offset:8192")
        exec_all()
        I("v_lshrrev_b32 v12, 4, v1")
        I("v_lshlrev_b32 v12, 2, v12")
        I("v_and_b32 v13, 15, v1")
        I("v_sub_u32 v12, v13, v12")
        for t in range(2): I(f"v_mov_b32 v{ON+t}, 0")
        for r in range(4):
            I(f"v_cmp_eq_u32 vcc, {r}, v12")
            k.nop(2)
            for t in range(2): I(f"v_cndmask_b32 v{ON+t}, v{ON+t}, v{GU+4*t+r}, vcc")
        for t in range(2): rowreduce("v_add_f32", ON + t, 12)
        for t in range(2): rowstats(GU + 8 + 4*t, ON + t, MT[t], 12, AT[t])
    for ks in range(16):
        st = ks // 2
        pre = 0
        if ks % 2 == 0 and st + 1 < 8:
            xfrags(st + 1); pre = 4
        if ks + 2 in ready:
            vm.wait(f"W{ready[ks+2]}")
            I("s_barrier")
        if ks == 12:
            colsum_part(0); colsum_part(1); pre = -6
        if ks == 14:
            bar()
            sum8(LRD, LPC); wsave()
        if ks < 14:
            if (ks + 2) % 4 == 0: wbase((ks + 2)//4)
            wreads(WB + 12*((ks+2)%3), 11, (ks + 2) % 4)
            I(f"s_waitcnt lgkmcnt({min(15, 12 + pre) if ks % 2 == 0 else 12})")
        if ks == 0: xstage(3)
        if ks % 2 == 1 and st + 4 < 8: xstage(st + 4)
        if ks % 2 == 0 and UPW + ks//2 < 6: wdma(UPW + ks//2)
        xa, xb = ar(8*ks,4), ar(8*ks+4,4)
        def smf(q_, half):
            ya, yb = ar(8*q_,4), ar(8*q_+4,4)
            if half == 0: mfma16(GU, ya, ya, q_ == 0); mfma16(GU + 4, yb, yb, q_ == 0)
            else: mfma16(GU + 8, vr(ON,4), ya, q_ == 0); mfma16(GU + 12, vr(ON,4), yb, q_ == 0)
        if ks < 14: smf(ks, 0)
        if ks == 13:
            smf(13, 1)
            for q_ in (14, 15): smf(q_, 0); smf(q_, 1)
        qmfmas(WB + 12*(ks%3), xa, xb, ks == 0)
        if ks < 13: smf(ks, 1)
        if ks == 14: stats0()
    k.stamp(name="q0_loop")
    def bounce_params():
        I(f"s_lshl_b32 s{A0}, s{WAVE}, 8")
        I(f"s_add_u32 s{A0}, s{A0}, {LVB}")
        I("v_and_b32 v13, 15, v1")
        I(f"v_lshl_add_u32 v12, v13, 2, s{A0}")
        for t in range(2):
            I(f"ds_write_b32 v12, v{MT[t]} offset:{64*t}")
            I(f"ds_write_b32 v12, v{AT[t]} offset:{128+64*t}")
        I("v_and_b32 v14, 48, v1")
        I(f"v_add_u32 v12, s{A0}, v14")
        for t in range(2):
            I(f"ds_read_b128 {vr(MV+4*t,4)}, v12 offset:{64*t}")
            I(f"ds_read_b128 {vr(AL+4*t,4)}, v12 offset:{128+64*t}")
        I(f"v_add_u32 v12, {LPC}, v14")
        for sec in range(2): I(f"ds_read_b128 {vr(CQ+4*sec,4)}, v12 offset:{64*sec}")
        I("v_lshlrev_b32 v12, 2, v13")
        I(f"v_add_u32 v12, {LPC + 128}, v12")
        I(f"ds_read_b32 v{CV}, v12")
    bounce_params()

    def yp_addr(d, L):
        I(f"v_lshrrev_b32 v{d}, 4, v0")
        I(f"v_mul_u32_u24 v{d}, {224*64}, v{d}")
        I(f"v_and_b32 v{d+1}, 15, v0")
        I(f"v_lshl_add_u32 v{d}, v{d+1}, 2, v{d}")
        I(f"s_lshl_b32 s{T2}, s{CGP}, 6")
        I(f"s_add_u32 s{T2}, s{T2}, {hex(YP[L])}")
        I(f"v_add_u32 v{d}, s{T2}, v{d}")

    def q_epilogue(L):
        n = f"l{L}"
        sadd64(KB_, WSP, KF[L]); sadd64(VB_, WSP, VF[L]); sadd64(OB_, WSP, OF[L])
        for t in range(2): I(f"v_mul_f32 v{13+t}, {hex(f2u(QSCALE))}, v{AT[t]}")
        I(f"s_lshl_b32 s{A0}, s{HEAD}, 16")
        I(f"s_lshl_b32 s{A0+1}, s{TT}, 10")
        I(f"s_add_u32 s{A0}, s{A0}, s{A0+1}")
        I(f"v_add_u32 v4, s{A0}, v3")
        I(f"v_add_u32 v15, s{W1K}, v3")
        I("v_add_u32 v5, 0x10000, v15")
        I("s_waitcnt lgkmcnt(0)")
        for sec in (1, 0):
            for t in range(2):
                for r in range(4): I(f"v_fma_f32 v{ACC+8*sec+4*t+r}, -v{MT[t]}, v{CQ+4*sec+r}, v{ACC+8*sec+4*t+r}")
            for t in range(2):
                for r in range(4): I(f"v_mul_f32 v{ACC+8*sec+4*t+r}, v{AT[t] if sec else 13+t}, v{ACC+8*sec+4*t+r}")
            d = TK if sec else Q
            for i in range(4): I(f"v_cvt_pk_bf16_f32 v{d+i}, v{ACC+8*sec+2*i}, v{ACC+8*sec+2*i+1}")
        I(f"v_fma_f32 v{ACC+16}, -v{MV}, v{CV}, v{ACC+16}")
        I(f"v_permlane16_swap_b32 v{TK}, v{TK+2}")
        I(f"v_permlane16_swap_b32 v{TK+1}, v{TK+3}")
        I(f"v_permlane16_swap_b32 v{Q}, v{Q+2}")
        I(f"v_permlane16_swap_b32 v{Q+1}, v{Q+3}")
        vm.issue(f"global_store_dwordx4 v4, {vr(TK,4)}, {sp(KB_)} sc1")
        I(f"ds_write_b128 v15, {vr(TK,4)}")
        mfma(S0, vr(TK,4), vr(Q,4), None)
        for r in range(1, 8): I(f"v_fma_f32 v{ACC+16+r}, -v{MV+r}, v{CV}, v{ACC+16+r}")
        for r in range(8): I(f"v_mul_f32 v{ACC+16+r}, v{AL+r}, v{ACC+16+r}")
        for i in range(4): I(f"v_cvt_pk_bf16_f32 v{TV+i}, v{ACC+16+2*i}, v{ACC+16+2*i+1}")
        I(f"v_max3_f32 v2, v{S0}, v{S0+1}, v{S0+2}")
        I(f"v_max3_f32 v13, v{S0+3}, v{S0+4}, v{S0+5}")
        I(f"v_permlane32_swap_b32 v{TV}, v{TV+2}")
        I(f"v_permlane32_swap_b32 v{TV+1}, v{TV+3}")
        vm.issue(f"global_store_dwordx4 v4, {vr(TV,4)}, {sp(VB_)} sc1")
        I(f"ds_write_b128 v5, {vr(TV,4)}")
        if L == 0:
            I("s_cmp_ge_u32 s2, 224")
            I(f"s_cbranch_scc1 {lab('nomark')}")
            yp_addr(10, 0)
            I("v_mov_b32 v12, -1")
            I(f"v_add_u32 v11, {hex(YP[1] - YP[0])}, v10")
            I(f"global_store_dword v10, v12, {sp(WSP)} sc1")
            I(f"global_store_dword v11, v12, {sp(WSP)} sc1")
            k.L(lab("nomark"))
        for r in range(6, 16, 4): I(f"v_max3_f32 v2, v2, v{S0+r}, v{S0+r+1}")
        for r in range(8, 16, 4): I(f"v_max3_f32 v13, v13, v{S0+r}, v{S0+r+1}")
        I("v_max_f32 v2, v2, v13")
        halfsum("v_max_f32", 2, 13)
        for r in range(16): I(f"v_sub_f32 v{NEG+r}, 0, v2")
        I("v_and_b32 v8, 15, v1")
        I("v_bfe_u32 v9, v1, 4, 1")
        I("v_lshlrev_b32 v10, 4, v8")
        I("v_lshl_add_u32 v10, v7, 8, v10")
        I(f"v_lshl_add_u32 v{VBASE}, v9, 16, v10")
        I(f"v_add_u32 v{VBASE}, 0x10000, v{VBASE}")
        I("v_xor_b32 v9, 1, v9")
        I(f"v_lshlrev_b32 v{AVS}, 13, v9")
        I(f"v_mov_b32 v{AK}, v3")
        I(f"v_mov_b32 v{AV}, v{VBASE}")
        I(f"s_mov_b32 s{PASS}, 0")
        I(f"s_lshl_b32 s{A0}, s{HEAD}, 10")
        I(f"s_add_u32 s{A0}, s{A0}, {hex(FLK[L])}")
        I(f"v_lshl_add_u32 v8, v1, 7, s{A0}")
        I(f"s_lshl_b32 s{A0+1}, s{QB}, 7")
        I(f"s_add_u32 s{A0}, s{A0}, s{A0+1}")
        I(f"v_mov_b32 v9, s{A0}")
        bar()

    def ffn_gu(m_):
        I(f"s_lshl_b32 s{A0+1}, s{CGP}, 4")
        I(f"v_mul_u32_u24 v14, 3584, v0")
        I(f"v_add_u32 v14, s{A0+1}, v14")
        vm.issue(f"global_load_dwordx4 {ar(AGU+4*m_,4)}, v14, {sp(WUP if m_ else WGP)}")
    def ffn_dn():
        I(f"s_lshl_b32 s{A0+1}, s{CGP}, 13")
        I(f"s_add_u32 s{A0+1}, s{A0+1}, s{W1K}")
        I(f"v_add_u32 v14, s{A0+1}, v3")
        vm.issue(f"global_load_dwordx4 {ar(ADN,4)}, v14, {sp(WDP)}")
    def attention(L):
        n = f"l{L}"
        def max16(dst, S, first):
            if first:
                I(f"v_max3_f32 v{dst}, v{S}, v{S+1}, v{S+2}"); rest = list(range(3, 16))
            else: rest = list(range(16))
            while rest:
                if len(rest) >= 2:
                    I(f"v_max3_f32 v{dst}, v{dst}, v{S+rest[0]}, v{S+rest[1]}"); rest = rest[2:]
                else:
                    I(f"v_max_f32 v{dst}, v{dst}, v{S+rest[0]}"); rest = rest[1:]
        def prime():
            I(f"ds_read_b128 {vr(KB,4)}, v{AK}")
            I(f"ds_read_b128 {vr(VA[0],4)}, v{AV}")
            I(f"ds_read_b128 {vr(VA[0]+4,4)}, v{AV} offset:512")
            I("s_waitcnt lgkmcnt(0)")
            mfma(S0, vr(KB,4), vr(Q,4), None if ENV("C0") else NEG)
            I(f"ds_read_b128 {vr(KB,4)}, v{AK} offset:1024")
            k.nop(11)
        def setup():
            halfsum("v_max_f32", 2, 7)
            for r in range(16): I(f"v_sub_f32 v{NEG+r}, 0, v2")
            I(f"v_mov_b32 v{AK}, v3")
            I(f"v_mov_b32 v{AV}, v{VBASE}")
            for r in range(16): I(f"v_mov_b32 v{O+r}, 0")
            for r in range(4): I(f"v_mov_b32 v{P1+r}, 0")
            for r in range(4): I(f"v_mov_b32 v{VA[1]+4+r}, 0")
            prime()
        def tile(u, extra=None, nokread=False, noqk=False, novread=False, first=False):
            extra = extra or {}
            if "p" in extra: I(f"s_setprio {extra['p']}")
            Sc, Sn = (S0, S1) if u % 2 == 0 else (S1, S0)
            Vc, Vo = VA[u % 2], VA[1 - u % 2]
            E = lambda r: I(f"v_exp_f32 v{Sc+r}, v{Sc+r}")
            Cv = lambda P, r, b: I(f"v_cvt_pk_bf16_f32 v{P+r}, v{Sc+b+2*r}, v{Sc+b+2*r+1}")
            E(0); E(1)
            if not first: mfma(O, vr(Vo+4,4), vr(P1,4), O)
            if 0 in extra: extra[0]()
            E(2); E(3); E(4)
            I("s_waitcnt lgkmcnt(0)")
            E(5)
            if not noqk: mfma(Sn, vr(KB,4), vr(Q,4), None if ENV("C0") else NEG)
            E(6)
            if not nokread: I(f"ds_read_b128 {vr(KB,4)}, v{AK} offset:{(u+2)*1024}")
            E(7)
            if not novread: I(f"ds_read_b128 {vr(Vo,4)}, v{AV} offset:{(u+1)*1024}")
            for r in range(4): Cv(P0, r, 0)
            E(8)
            if not novread: I(f"ds_read_b128 {vr(Vo+4,4)}, v{AV} offset:{(u+1)*1024+512}")
            E(9)
            mfma(O, vr(Vc,4), vr(P0,4), None if first else O)
            if 1 in extra: extra[1]()
            for r in range(10, 16): E(r)
            for r in range(4): Cv(P1, r, 8)
        def bump():
            I(f"v_add_u32 v{AK}, 0x2000, v{AK}")
            I(f"v_add_u32 v{AV}, v{AVS}, v{AV}")
        prime()
        k.stamp(name=f"x{n}_setup")
        I("s_setprio 3")
        def publish_kv():
            vm.drain()
            I("s_barrier")
            I(f"s_cmp_lg_u32 s{WAVE}, 0")
            I(f"s_cbranch_scc1 {lab(n+'_noflag')}")
            I(f"v_mov_b32 v14, s{TAG}")
            I("s_mov_b64 exec, 1")
            I(f"global_store_dword v9, v14, {sp(WSP)} sc1")
            exec_all()
            k.L(lab(n + "_noflag"))
        pl = f"global_load_dword v14, v8, {sp(WSP)} sc1"
        def poll_issue():
            I("s_mov_b64 exec, 0xff"); I(pl); exec_all()
        def poll_check():
            I("s_mov_b64 exec, 0xff")
            if L == 1:
                I(f"s_lshr_b32 s{A0}, s{IDX}, 8")
                I(f"s_bitset0_b32 exec_lo, s{A0}")
            poll(n + "_pk", [pl], [14], first_issued=True)
            exec_all()
        def stg(sl): return ARS + 8*(sl-1) if L == 0 else 64 + 8*((sl-1) % 6)
        def rload(sl):
            if L == 1:
                I(f"s_lshr_b32 s{A0+1}, s{IDX}, 8")
                I(f"s_sub_u32 s{A0+1}, s{A0+1}, s{QB}")
                I(f"s_and_b32 s{A0+1}, s{A0+1}, 7")
                if sl == 7:
                    I(f"s_cmp_eq_u32 s{A0+1}, 0")
                    I(f"s_cselect_b32 s{A0}, 7, s{A0+1}")
                    I("s_mov_b64 exec, 0xff")
                    poll(n + "_pk7", [pl], [14], first_issued=True)
                    exec_all()
                else:
                    I(f"s_sub_u32 s{A0+1}, s{A0+1}, 1")
                    I(f"s_cmp_lt_u32 s{A0+1}, {sl}")
                    I(f"s_cselect_b32 s{A0}, {sl+1}, {sl}")
                I(f"s_add_u32 s{A0}, s{QB}, s{A0}")
            else:
                I(f"s_add_u32 s{A0}, s{QB}, {sl}")
            I(f"s_and_b32 s{A0}, s{A0}, 7")
            I(f"s_sub_u32 s{A0}, s{A0}, s{QB}")
            I(f"s_lshl_b32 s{A0}, s{A0}, 13")
            I(f"v_add_u32 v13, s{A0}, v4")
            vm.issue(f"global_load_dwordx4 {ar(stg(sl),4)}, v13, {sp(KB_)} sc1", f"r{sl}")
            vm.issue(f"global_load_dwordx4 {ar(stg(sl)+4,4)}, v13, {sp(VB_)} sc1", f"r{sl}")
        def rwrite(sl):
            if f"r{sl}" in vm.q: vm.wait(f"r{sl}")
            I(f"ds_write_b128 v15, {ar(stg(sl),4)} offset:{sl*8192}")
            I(f"ds_write_b128 v5, {ar(stg(sl)+4,4)} offset:{sl*8192}")
        PUB, PI, PC = [int(x) for x in ENV("POLL", "1,4,5").split(",")]
        PR = {}
        if ENV("PBAL", "1") == "1":
            PR = {4: 2, 6: 1, 7: 0, 8: 3, 11: 2, 12: 1, 13: 0, 14: 3, 18: 2, 20: 1, 21: 0, 22: 3, 30: 2, 34: 1, 36: 0, 38: 3}
        for u in range(8):
            ex = {}
            if u == PUB: ex[0] = publish_kv
            if u == PI: ex[0] = poll_issue
            if u == PC: ex[0] = lambda: (poll_check(), rload(1), rload(2))
            if u in PR: ex["p"] = PR[u]
            tile(u, ex, nokread=(u >= 6), noqk=(u == 7), novread=(u == 7), first=(u == 0))
        bump()
        k.stamp(name=f"x{n}_ch0a")
        rwrite(1)
        B2 = ENV("B2", "0") == "1"
        if B2: rwrite(2)
        bar()
        k.stamp(name=n + "_c0")
        prime()
        def wo_addr():
            I(f"s_lshl_b32 s{A0}, s{WAVE}, 16")
            I(f"s_lshl_b32 s{A0+1}, s{CG}, 7")
            I(f"s_add_u32 s{A0}, s{A0}, s{A0+1}")
            I("v_lshrrev_b32 v2, 3, v1")
            I(f"v_lshl_add_u32 v2, v2, 10, s{A0}")
            I("v_and_b32 v14, 7, v1")
            I("v_lshl_add_u32 v2, v14, 4, v2")
        def wo_load(i):
            vm.issue(f"global_load_dwordx4 {ar(AWO+4*i,4)}, v2, {sp(WOP)}", "wo")
            if i < 7: I("v_add_u32 v2, 0x2000, v2")
        def misc_loads():
            I(f"s_lshl_b32 s{A0}, s{KG}, 9")
            I(f"s_lshl_b32 s{A0+1}, s{OT}, 15")
            I(f"s_add_u32 s{A0}, s{A0}, s{A0+1}")
            I("v_and_b32 v10, 15, v1")
            I(f"v_lshl_add_u32 v{VXO}, v10, 4, s{A0}")
            I("v_lshrrev_b32 v10, 5, v1")
            I(f"v_lshl_add_u32 v{VXO}, v10, 8, v{VXO}")
            I("v_bfe_u32 v10, v1, 4, 1")
            I(f"v_lshl_add_u32 v{VXO}, v10, 14, v{VXO}")
            I("v_and_b32 v10, 31, v1")
            I(f"s_lshl_b32 s{A0}, s{OT}, 5")
            I(f"v_add_u32 v{VTK}, s{A0}, v10")
            I("v_lshrrev_b32 v10, 5, v1")
            I(f"s_lshl_b32 s{A0}, s{KG}, 5")
            I(f"v_lshl_add_u32 v14, v10, 3, s{A0}")
            vm.issue(f"global_load_dwordx2 {vr(WR,2)}, v14, {sp(WRP)}")
            vm.issue(f"global_load_dwordx2 {vr(WR+2,2)}, v14, {sp(WRP)} offset:16")
            I(f"v_lshl_add_u32 v14, v{VTK}, 10, v14")
            vm.issue(f"global_load_dwordx2 {vr(XG,2)}, v14, {sp(X0P)}")
            vm.issue(f"global_load_dwordx2 {vr(XG+2,2)}, v14, {sp(X0P)} offset:16")
        sched = {
            1: {(0,0): lambda: rload(3), (3,0): lambda: rload(4), (4,0): lambda: rwrite(2), (6,0): bar},
            2: {(0,0): lambda: rload(5), (3,0): lambda: rload(6), (4,0): lambda: rwrite(3), (5,0): lambda: rwrite(4), (6,0): bar},
            3: {(0,0): lambda: rload(7)},
            4: {(0,0): lambda: rwrite(5), (1,0): lambda: rwrite(6), (2,0): lambda: rwrite(7), (6,0): bar},
        }
        def touches():
            I(f"s_cmp_ge_u32 s{WAVE}, 5")
            I(f"s_cbranch_scc1 {lab('t_done')}")
            I(f"s_cmp_ge_u32 s{WAVE}, 2")
            I(f"s_cbranch_scc1 {lab('t_lin')}")
            I(f"s_mul_i32 s{A0}, s{QB}, 7")
            I(f"s_lshr_b32 s{A0}, s{A0}, 1")
            I(f"s_lshl_b32 s{A0}, s{A0}, 7")
            I(f"s_mul_i32 s{A0+1}, s{HEAD}, {16*3584}")
            I(f"s_add_u32 s{A0}, s{A0}, s{A0+1}")
            I("v_lshrrev_b32 v14, 2, v1")
            I("v_mul_u32_u24 v14, 3584, v14")
            I("v_and_b32 v10, 3, v1")
            I("v_lshl_add_u32 v14, v10, 7, v14")
            I(f"v_add_u32 v14, s{A0}, v14")
            I(f"s_cmp_eq_u32 s{WAVE}, 0")
            I(f"s_cselect_b32 s{T0}, s{WGP}, s{WUP}")
            I(f"s_cselect_b32 s{T0+1}, s{WGP+1}, s{WUP+1}")
            I(f"s_branch {lab('t_go')}")
            k.L(lab("t_lin"))
            I(f"s_lshl_b32 s{A0}, s{CGP}, 13")
            I(f"s_lshl_b32 s{A0+1}, s{HEAD}, 14")
            I(f"s_and_b32 s{A0+2}, s{WAVE}, 1")
            I(f"s_lshl_b32 s{A0+2}, s{A0+2}, 13")
            I(f"s_add_u32 s{A0+1}, s{A0+1}, s{A0+2}")
            I(f"s_cmp_eq_u32 s{WAVE}, 2")
            I(f"s_cselect_b32 s{A0}, s{A0}, s{A0+1}")
            I(f"s_cselect_b32 s{T0}, s{WDP}, s{WOP}")
            I(f"s_cselect_b32 s{T0+1}, s{WDP+1}, s{WOP+1}")
            I(f"v_lshl_add_u32 v14, v1, 7, s{A0}")
            k.L(lab("t_go"))
            I(f"global_load_dword v11, v14, {sp(T0)}")
            k.L(lab("t_done"))
        NU = 5
        if B2:
            del sched[1][(4,0)]; del sched[1][(6,0)]
            for t_ in (11, 12, 13, 14, 18, 20, 21): PR.pop(t_, None)
            PR.update({15: 2, 19: 1, 21: 0})
        if L == 0:
            NU = 6
            def pretouch():
                if ENV("PT") == "1":
                    I(f"s_cmp_lg_u32 s{WAVE}, 6")
                    I(f"s_cbranch_scc1 {lab('pt_done')}")
                    I("v_mul_u32_u24 v14, 0x50000, v1")
                    I(f"global_load_dword v11, v14, {sp(WSP)}")
                    I("v_lshlrev_b32 v14, 15, v1")
                    I(f"global_load_dword v11, v14, {sp(OUTP)}")
                    k.L(lab("pt_done"))
                else:
                    I("v_mul_u32_u24 v14, 0xa000, v0")
                    I(f"global_load_dword v11, v14, {sp(WSP)}")
                    I("v_lshlrev_b32 v14, 12, v0")
                    I(f"global_load_dword v11, v14, {sp(OUTP)}")
            if ENV("PT"): sched[2][(7,0)] = pretouch
            if ENV("TL", "1") == "0":
                sched[2][(6,1)] = touches
                sched[3][(3,0)] = wo_addr
                for i in range(4): sched[3][(4 + i, 0)] = (lambda i=i: wo_load(i))
                for i, u in enumerate((3, 4, 5, 7)): sched[4][(u, 0)] = (lambda i=i: wo_load(4 + i))
                sched[5] = {(0,0): lambda: ffn_gu(0), (2,0): misc_loads, (4,0): lambda: ffn_gu(1), (6,0): ffn_dn}
            else:
                sched[3][(0,1)] = touches
                sched[4][(3,0)] = wo_addr
                for i, u in enumerate((4, 5, 7)): sched[4][(u, 0)] = (lambda i=i: wo_load(i))
                sched[5] = {(i, 0): (lambda i=i: wo_load(3 + i)) for i in range(5)}
                sched[5][(5,0)] = lambda: ffn_gu(0)
                sched[5][(6,0)] = lambda: ffn_gu(1)
                sched[5][(7,0)] = ffn_dn
                sched[5][(7,1)] = misc_loads
            PR[40] = 3
        else:
            sched[2][(7,0)] = poll_issue
        for c in range(1, NU):
            for u in range(8):
                ex = {sl: f for (uu, sl), f in sched[c].items() if uu == u}
                if 8*c + u in PR: ex["p"] = PR[8*c + u]
                tile(u, ex)
            bump()
            k.stamp(name=f"x{n}_ch{c}")
        I(f"s_mov_b32 s{CTR}, {NU}")
        k.lines.append(".p2align 6")
        k.L(lab(n + "_loop"))
        if ENV("PEND", "1") == "0":
            I(f"s_cmp_lt_u32 s{CTR}, 5"); I(f"s_cbranch_scc1 {lab(n+'_pd')}")
            I("s_setprio 2")
            I(f"s_cmp_lt_u32 s{CTR}, 6"); I(f"s_cbranch_scc1 {lab(n+'_pd')}")
            I("s_setprio 1")
            I(f"s_cmp_lt_u32 s{CTR}, 7"); I(f"s_cbranch_scc1 {lab(n+'_pd')}")
            I("s_setprio 0")
            k.L(lab(n + "_pd"))
            for u in range(8): tile(u)
        else:
            I(f"s_cmp_lt_u32 s{CTR}, 6"); I(f"s_cbranch_scc1 {lab(n+'_pd')}")
            I("s_setprio 2")
            I(f"s_cmp_lt_u32 s{CTR}, 7"); I(f"s_cbranch_scc1 {lab(n+'_pd')}")
            I("s_setprio 1")
            k.L(lab(n + "_pd"))
            for u in range(8):
                if u == 5:
                    I(f"s_cmp_lt_u32 s{CTR}, 7"); I(f"s_cbranch_scc1 {lab(n+'_pe')}")
                    I("s_setprio 0")
                    k.L(lab(n + "_pe"))
                tile(u)
        bump()
        I(f"s_add_u32 s{CTR}, s{CTR}, 1")
        I(f"s_cmp_lt_u32 s{CTR}, 8")
        I(f"s_cbranch_scc1 {lab(n+'_loop')}")
        mfma(O, vr(VA[1]+4,4), vr(P1,4), O)
        I("s_waitcnt lgkmcnt(0)")
        k.stamp(name=n + "_attn")
        k.nop(12)
        I(f"s_cmp_lg_u32 s{PASS}, 0")
        I(f"s_cbranch_scc1 {lab(n+'_fin')}")
        I(f"v_cmp_nge_f32 vcc, s{THR}, v{O+8}")
        k.nop(2)
        I(f"s_cbranch_vccz {lab(n+'_fin')}")
        I(f"s_mov_b32 s{PASS}, 1")
        I(f"v_mov_b32 v{AK}, v3")
        I("v_mov_b32 v2, 0xff800000")
        I(f"s_mov_b32 s{CTR}, 0")
        k.L(lab(n + "_maxloop"))
        I(f"ds_read_b128 {vr(KB,4)}, v{AK}")
        I("s_waitcnt lgkmcnt(0)")
        mfma(S0, vr(KB,4), vr(Q,4), None)
        I(f"v_add_u32 v{AK}, 0x400, v{AK}")
        k.nop(12)
        max16(2, S0, False)
        I(f"s_add_u32 s{CTR}, s{CTR}, 1")
        I(f"s_cmp_lt_u32 s{CTR}, 64")
        I(f"s_cbranch_scc1 {lab(n+'_maxloop')}")
        setup()
        I(f"s_mov_b32 s{CTR}, 0")
        I(f"s_branch {lab(n+'_loop')}")
        k.L(lab(n + "_fin"))
        I(f"v_rcp_f32 v2, v{O+8}")
        I("s_nop 0")
        for r in range(8): I(f"v_mul_f32 v{O+r}, v{O+r}, v2")
        for r in range(4): I(f"v_cvt_pk_bf16_f32 v{P0+r}, v{O+2*r}, v{O+2*r+1}")
        I(f"global_store_dwordx4 v4, {vr(P0,4)}, {sp(OB_)} sc1")

    def oproj(L):
        n = f"l{L}"
        OBf, AC, X, Y = 64, 32, 96, 16
        lane_terms()
        I(f"s_lshl_b32 s{A0}, s{KQ}, 19")
        I(f"s_lshl_b32 s{A0+1}, s{OT}, 10")
        I(f"s_add_u32 s{A0}, s{A0}, s{A0+1}")
        I(f"v_add_u32 v10, s{A0}, v3")
        I(f"s_lshl_b32 s{A0}, s{WAVE}, 13")
        I(f"s_add_u32 s{A0}, s{A0}, 0x10000")
        I(f"v_add_u32 v12, s{A0}, v3")
        I(f"s_lshl_b32 s{A0}, s{TT}, 12")
        I(f"s_lshl_b32 s{A0+1}, s{HEAD}, 7")
        I(f"s_add_u32 s{A0}, s{A0}, s{A0+1}")
        I(f"s_add_u32 s{A0}, s{A0}, {hex(FLO[L])}")
        I(f"v_mov_b32 v13, s{A0}")
        I(f"v_mov_b32 v14, s{TAG}")
        I(f"s_lshl_b32 s{A0}, s{OT}, 12")
        I(f"s_lshl_b32 s{A0+1}, s{KQ}, 10")
        I(f"s_add_u32 s{A0}, s{A0}, s{A0+1}")
        I(f"s_add_u32 s{A0}, s{A0}, {hex(FLO[L])}")
        I(f"v_lshl_add_u32 v31, v1, 7, s{A0}")
        FLW = ENV("FLW", "0") == "1"
        if not FLW:
            I(f"s_lshl_b32 s{A0}, s{QB}, 15")
            I(f"s_add_u32 s{A0}, s{A0}, {hex(FLO[L])}")
            I(f"v_lshl_add_u32 v31, v6, 7, s{A0}")
        vm.drain()
        if not FLW:
            I("s_barrier")
            I(f"s_cmp_lg_u32 s{WAVE}, 0")
            I(f"s_cbranch_scc1 {lab(n+'_nof')}")
        I("s_mov_b64 exec, 1")
        I(f"global_store_dword v13, v14, {sp(WSP)} sc1")
        exec_all()
        if not FLW: k.L(lab(n + "_nof"))
        if L == 0 and FLW: I("s_barrier")
        k.stamp(name=n + "_odrain")
        if L == 0:
            for i in range(8): I(f"ds_write_b128 v12, {ar(AWO+4*i,4)} offset:{1024*i}")
            I(f"global_load_dwordx4 v[16:19], v3, {sp(WRP)}")
            I(f"s_lshl_b32 s{A0}, s{WAVE}, 11")
            I(f"v_lshl_add_u32 v13, v1, 5, s{A0}")
            I(f"ds_write_b128 v13, {ar(AGU,4)}")
            I(f"ds_write_b128 v13, {ar(AGU+4,4)} offset:16")
            I(f"v_add_u32 v13, s{W1K}, v3")
            I(f"ds_write_b128 v13, {ar(ADN,4)} offset:16384")
            I("v_bfe_u32 v13, v1, 2, 2")
            I("v_and_b32 v14, 3, v1")
            I("v_lshl_add_u32 v12, v7, 2, v13")
            I("v_lshlrev_b32 v12, 7, v12")
            I("v_lshl_add_u32 v12, v14, 3, v12")
            I("v_bfe_u32 v15, v1, 4, 1")
            I("v_lshl_add_u32 v12, v15, 5, v12")
            I(f"s_lshl_b32 s{A0+1}, s{KQ}, 5")
            I(f"v_xor_b32 v12, s{A0+1}, v12")
            I(f"s_lshl_b32 s{A0+1}, s{KQ}, 14")
            I(f"s_add_u32 s{A0+1}, s{A0+1}, 0x10000")
            I(f"v_add_u32 v12, s{A0+1}, v12")
            I("v_xor_b32 v15, 64, v12")
            bar()
            for i in range(8):
                for b in range(2):
                    I(f"ds_read_b64_tr_b16 {ar(AWO+8*i+4*b,2)}, v{15 if b else 12} offset:{2048*i}")
                    I(f"ds_read_b64_tr_b16 {ar(AWO+8*i+4*b+2,2)}, v{15 if b else 12} offset:{2048*i+1024}")
                if i % 2 == 1: I("s_waitcnt lgkmcnt(0)")
            I("v_lshrrev_b32 v15, 4, v1")
            I("v_lshl_add_u32 v13, v15, 3, v13")
            I("v_lshlrev_b32 v13, 5, v13")
            I("v_lshl_add_u32 v13, v14, 3, v13")
            I(f"v_add_u32 v13, s{A0}, v13")
            for i in range(2):
                I(f"ds_read_b64_tr_b16 {ar(AGU+4*i,2)}, v13 offset:{1024*i}")
                I(f"ds_read_b64_tr_b16 {ar(AGU+4*i+2,2)}, v13 offset:{1024*i+128}")
            I("v_lshlrev_b32 v13, 1, v0")
            for f in range(8): I(f"ds_read_u16 a{ADN+f}, v13 offset:{16384+1024*f}")
            I("v_mov_b32 v20, 0")
            I("s_waitcnt vmcnt(0)")
            for r in range(4): I(f"v_dot2_f32_bf16 v20, v{16+r}, s{ONES}, v20")
            k.nop(1)
            allreduce("v_add_f32", 20, 21)
            I("s_nop 0")
            I(f"v_readfirstlane_b32 s{WSUM}, v20")
        NF = 0
        I(f"s_lshl_b32 s{A0}, s{OA}, 15")
        for g in range(4):
            I(f"s_xor_b32 s{A0+1}, s{KQ}, {g}")
            I(f"s_lshl_b32 s{A0+1}, s{A0+1}, 13")
            I(f"s_add_u32 s{A0+1}, s{A0+1}, s{A0}")
            I(f"v_add_u32 v{27+g}, s{A0+1}, v3")
        for i in range(4): unpack(X + 2*i, X + 2*i + 1, XG + i)
        if L == 1:
            for r in range(8): I(f"v_sub_f32 v{Y+r}, v{X+r}, v{RESM}")
            for r in range(8): I(f"v_mul_f32 v{Y+r}, v{Y+r}, v{RESR}")
            for i in range(4): I(f"v_cvt_pk_bf16_f32 v{XG+i}, v{Y+2*i}, v{Y+2*i+1}")
            for i in range(4): unpack(Y + 2*i, Y + 2*i + 1, XG + i)
            for r in range(8): I(f"v_add_f32 v{X+r}, v{X+r}, v{Y+r}")
            for i in range(4): I(f"v_cvt_pk_bf16_f32 v{XG+i}, v{X+2*i}, v{X+2*i+1}")
            for i in range(4): unpack(X + 2*i, X + 2*i + 1, XG + i)
        for i in range(4): unpack(104 + 2*i, 105 + 2*i, WR + i)
        if FLW:
            I("s_mov_b64 exec, 0xff")
        else:
            I(f"s_cmp_lg_u32 s{WAVE}, 0")
            I(f"s_cbranch_scc1 {lab(n+'_owait')}")
            exec_lo(-1)
        poll(n + "_po", [f"global_load_dword v14, v31, {sp(WSP)} sc1"], [14])
        exec_all()
        if not FLW:
            k.L(lab(n + "_owait"))
            bar()
        k.stamp(name=n + "_opoll")
        for i in range(8):
            I(f"global_load_dwordx4 {vr(OBf+4*i,4)}, v10, {sp(OB_)} sc1")
            if i < 7: I("v_add_u32 v10, 0x10000, v10")
        for i in range(8):
            I(f"s_waitcnt vmcnt({7-i+NF})")
            for b in range(2): mfma(AC + 16*b, ar(AWO+8*i+4*b,4), vr(OBf+4*i,4), AC + 16*b if i else None)
        if FLW: bar()
        k.stamp(name=n + "_omm")
        k.nop(12)
        for g in range(1, 4):
            for hf in range(2): I(f"ds_write_b128 v{27+g}, {vr(AC+8*g+4*hf,4)} offset:{2048*g+1024*hf}")
        bar()
        k.stamp(name="x" + n + "_red")
        for g in range(1, 4):
            for hf in range(2): I(f"ds_read_b128 {vr(AC+8*g+4*hf,4)}, v27 offset:{2048*g+1024*hf}")
        sadd64(XB_, WSP, XF[L])
        I("s_waitcnt lgkmcnt(4)")
        for r in range(8): I(f"v_add_f32 v{AC+r}, v{AC+r}, v{AC+8+r}")
        I("s_waitcnt lgkmcnt(0)")
        for r in range(8): I(f"v_add_f32 v{AC+16+r}, v{AC+16+r}, v{AC+24+r}")
        for r in range(8): I(f"v_add_f32 v{AC+r}, v{AC+r}, v{AC+16+r}")
        for i in range(4): I(f"v_cvt_pk_bf16_f32 v{XG+i}, v{AC+2*i}, v{AC+2*i+1}")
        for i in range(4): unpack(Y + 2*i, Y + 2*i + 1, XG + i)
        for r in range(8): I(f"v_add_f32 v{X+r}, v{X+r}, v{Y+r}")
        for i in range(4): I(f"v_cvt_pk_bf16_f32 v{XG+i}, v{X+2*i}, v{X+2*i+1}")
        for i in range(4): I(f"v_mov_b32 v{24+i}, v{XG+i}")
        k.nop(1)
        I("v_permlane32_swap_b32 v24, v26")
        I("v_permlane32_swap_b32 v25, v27")
        I(f"global_store_dwordx4 v{VXO}, v[24:27], {sp(XB_)} sc1")
        for i in range(4): unpack(X + 2*i, X + 2*i + 1, XG + i)
        I(f"v_add_f32 v16, v{X}, v{X+1}")
        I(f"v_mul_f32 v17, v{X}, v{X}")
        I(f"v_mul_f32 v18, v{X}, v104")
        for r in range(1, 8):
            if r > 1: I(f"v_add_f32 v16, v16, v{X+r}")
            I(f"v_fmac_f32 v17, v{X+r}, v{X+r}")
            I(f"v_fmac_f32 v18, v{X+r}, v{104+r}")
        I(f"s_lshl_b32 s{A0}, s{OA}, 12")
        I(f"s_lshl_b32 s{A0+1}, s{KQ}, 10")
        I(f"s_add_u32 s{A0}, s{A0}, s{A0+1}")
        I(f"s_add_u32 s{A0}, s{A0}, {LSA}")
        I(f"v_add_u32 v13, s{A0}, v3")
        I("ds_write_b96 v13, v[16:18]")
        k.stamp(name="x" + n + "_epi")
        I("s_waitcnt vmcnt(0) lgkmcnt(0)")
        k.stamp(name="x" + n + "_xdrain")
        I("s_waitcnt vmcnt(0) lgkmcnt(0)")
        I("s_barrier")
        I(f"s_cmp_lg_u32 s{WAVE}, 0")
        I(f"s_cbranch_scc1 {lab(n+'_nost')}")
        I("v_lshlrev_b32 v13, 4, v6")
        I("v_lshl_add_u32 v13, v7, 12, v13")
        I(f"v_add_u32 v13, {LSA}, v13")
        for j in range(8): I(f"ds_read_b96 {vr(32+4*j,3)}, v13 offset:{512*j}")
        I(f"s_lshl_b32 s{A0}, s{TB}, 3")
        I(f"s_add_u32 s{A0}, s{A0}, s{CG}")
        I(f"s_lshl_b32 s{A0}, s{A0}, 10")
        I(f"s_add_u32 s{A0}, s{A0}, {hex(ST[L])}")
        I(f"v_add_u32 v13, s{A0}, v3")
        I(f"v_mov_b32 v35, s{TAG}")
        I("s_waitcnt lgkmcnt(0)")
        for j in range(1, 8):
            for c in range(3): I(f"v_add_f32 v{32+c}, v{32+c}, v{32+4*j+c}")
        I(f"global_store_dwordx4 v13, v[32:35], {sp(WSP)} sc1")
        k.L(lab(n + "_nost"))
        k.stamp(name=n + "_stpub")

    def hop_a(L, after_poll=None):
        n = f"l{L}"
        I(f"s_lshl_b32 s{A0}, s{TB}, 13")
        I(f"s_add_u32 s{A0}, s{A0}, {hex(ST[L])}")
        I(f"v_lshl_add_u32 v12, v0, 4, s{A0}")
        loads = [f"global_load_dwordx4 v[32:35], v12, {sp(WSP)} sc1"]; tags = [35]
        if ENV("HA2", "1") == "1":
            I(f"s_cmp_lg_u32 s{WAVE}, 0")
            I(f"s_cbranch_scc1 {lab(n+'_a1')}")
            if L == 0:
                I(f"s_lshl_b32 s{A0}, s{QB}, 15")
                I(f"s_add_u32 s{A0}, s{A0}, {hex(ST[L])}")
            I(f"s_add_u32 s{A0}, s{A0}, 1020")
            I(f"v_lshl_add_u32 v13, v1, 10, s{A0}")
            exec_lo(-1 if L == 0 else "0xff")
            poll(n + "_p1", [f"global_load_dword v36, v13, {sp(WSP)} sc1"], [36])
            exec_all()
            k.L(lab(n + "_a1"))
            I("s_barrier")
        else:
            if L == 0:
                I(f"s_lshr_b32 s{A0}, s{TT}, 1")
                I(f"s_lshl_b32 s{A0}, s{A0}, 13")
                I(f"s_add_u32 s{A0}, s{A0}, {hex(ST[L] + 12)}")
                I("v_and_b32 v13, 7, v1")
                I(f"v_lshl_add_u32 v13, v13, 10, s{A0}")
                loads.append(f"global_load_dword v36, v13, {sp(WSP)} sc1"); tags.append(36)
        poll(n + "_pa", loads, tags)
        I("v_lshlrev_b32 v13, 4, v0")
        I("ds_write_b96 v13, v[32:34]")
        if after_poll: after_poll()
        bar()
        k.stamp(name=n + "_hopa")
        for c in range(8): I(f"ds_read_b96 {vr(16+4*c,3)}, v3 offset:{1024*c}")
        I("s_waitcnt lgkmcnt(0)")
        for a_, b_ in ((0,1),(2,3),(4,5),(6,7),(0,2),(4,6),(0,4)):
            for c in range(3): I(f"v_add_f32 v{16+4*a_+c}, v{16+4*a_+c}, v{16+4*b_+c}")
        rowstats(16, 17, RESM, 20, RESR)
        I(f"s_or_b32 s{A0}, s{CG}, s{WAVE}")
        I(f"s_cmp_lg_u32 s{A0}, 0")
        I(f"s_cbranch_scc1 {lab(n+'_nokey')}")
        I(f"v_fma_f32 v18, -v{RESM}, s{WSUM}, v18")
        I(f"v_mul_f32 v18, v18, v{RESR}")
        bf16r(18)
        I("v_ashrrev_i32 v19, 31, v18")
        I("v_or_b32 v19, 0x80000000, v19")
        I("v_xor_b32 v19, v19, v18")
        I("v_and_b32 v19, 0xffff0000, v19")
        I(f"s_lshl_b32 s{A0}, s{TB}, 6")
        I(f"s_sub_u32 s{A0}, 2047, s{A0}")
        I(f"v_sub_u32 v20, s{A0}, v1")
        I("v_or_b32 v20, v19, v20")
        I("v_mov_b32 v24, v20")
        I(f"v_mov_b32 v21, v{RESM}")
        allreduce("v_max_u32", 24, 25)
        I("v_cmp_eq_u32 vcc, v24, v20")
        I(f"v_mov_b32 v22, v{RESR}")
        I(f"v_mov_b32 v23, s{TAG}")
        I(f"s_lshl_b32 s{A0}, s{TB}, 7")
        I(f"s_add_u32 s{A0}, s{A0}, {hex(KEY[L])}")
        I(f"v_mov_b32 v13, s{A0}")
        I("s_mov_b64 exec, vcc")
        I(f"global_store_dwordx4 v13, v[20:23], {sp(WSP)} sc1")
        exec_all()
        k.L(lab(n + "_nokey"))
        I(f"v_mov_b32 v16, v{RESM}")
        I(f"v_mov_b32 v17, v{RESR}")
        I(f"s_cmp_eq_u32 s{OA}, 1")
        I("s_cselect_b64 vcc, -1, 0")
        I(f"v_permlane32_swap_b32 v{RESM}, v16")
        I(f"v_permlane32_swap_b32 v{RESR}, v17")
        I(f"v_cndmask_b32 v{RESM}, v{RESM}, v16, vcc")
        I(f"v_cndmask_b32 v{RESR}, v{RESR}, v17, vcc")
        k.stamp(name="x" + n + "_key")

    FT = 76
    SR = 96
    stat_loads = [f"global_load_dwordx4 {vr(SR+4*i,4)}, v11, {sp(WSP)} offset:{1024*i} sc1" for i in range(4)]
    stat_tags = [SR + 4*i + 3 for i in range(4)]
    def own_stats():
        for i in range(1, 4):
            for c in range(2): I(f"v_add_f32 v{SR+c}, v{SR+c}, v{SR+4*i+c}")
        halfsum("v_add_f32", SR, SR + 2)
        halfsum("v_add_f32", SR + 1, SR + 2)
        rowstats(SR, SR + 1, MT[0], SR + 2, SR + 3)
        I(f"v_mov_b32 v{AT[0]}, s{CEPS}")
        I(f"v_add_f32 v{SR+3}, 1.0, v{SR+3}")
        I(f"v_mul_f32 v{SR+2}, v{SR+2}, v{SR+3}")
        I(f"v_fmac_f32 v{AT[0]}, v{SR+2}, v{SR+3}")
        I(f"v_rsq_f32 v{AT[0]}, v{AT[0]}")
        I(f"v_mov_b32 v{MT[1]}, v{MT[0]}")
        I(f"v_mul_f32 v{AT[0]}, v{AT[0]}, v{SR+3}")
        I(f"v_mov_b32 v{AT[1]}, v{AT[0]}")
        I(f"v_permlane16_swap_b32 v{MT[0]}, v{MT[1]}")
        I("s_nop 0")
        I(f"v_permlane16_swap_b32 v{AT[0]}, v{AT[1]}")
    def key_load(L):
        return f"global_load_dwordx4 {vr(FT,4)}, v{FT+4}, {sp(WSP)} sc1"
    def hop_b_issue(L, sfx=""):
        I(f"v_lshlrev_b32 v{FT+4}, 7, v6")
        I(f"v_add_u32 v{FT+4}, {hex(KEY[L])}, v{FT+4}")
        I(f"s_cmp_lg_u32 s{WAVE}, 0")
        I(f"s_cbranch_scc1 {lab(f'l{L}_nki{sfx}')}")
        I(key_load(L))
        k.L(lab(f"l{L}_nki{sfx}"))
    def hop_b(L, role=""):
        n = f"l{L}{role}"
        I(f"v_mov_b32 v{FT+6}, {LFF}")
        I(f"s_cmp_lg_u32 s{WAVE}, 0")
        I(f"s_cbranch_scc1 {lab(n+'_kw')}")
        keepq = list(vm.q)
        poll(n + "_pb", [key_load(L)], [FT + 3], first_issued=True)
        vm.q = keepq
        I(f"v_mov_b32 v{FT+5}, v{FT}")
        dppred("v_max_u32", FT + 5, Q4 + ("row_half_mirror", "row_mirror"))
        swapop("v_permlane16_swap_b32", "v_max_u32", FT + 5, FT + 7)
        I(f"v_cmp_eq_u32 vcc, v{FT+5}, v{FT}")
        I("s_mov_b64 exec, vcc")
        I(f"ds_write_b96 v{FT+6}, {vr(FT,3)}")
        exec_all()
        k.L(lab(n + "_kw"))
        bar()
        I(f"ds_read_b96 {vr(FT,3)}, v{FT+6}")
        I("s_waitcnt lgkmcnt(0)")
        I(f"v_readfirstlane_b32 s{IDX}, v{FT}")
        I(f"v_readfirstlane_b32 s{RM}, v{FT+1}")
        I(f"v_readfirstlane_b32 s{RR}, v{FT+2}")
        I(f"s_and_b32 s{RS_}, s{IDX}, 0xffff0000")
        I(f"s_and_b32 s{IDX}, s{IDX}, 0x7ff")
        I(f"s_sub_u32 s{IDX}, 2047, s{IDX}")
        I(f"s_ashr_i32 s{A0}, s{RS_}, 31")
        I(f"s_not_b32 s{A0}, s{A0}")
        I(f"s_or_b32 s{A0}, s{A0}, 0x80000000")
        I(f"s_xor_b32 s{RS_}, s{RS_}, s{A0}")
        I(f"s_and_b32 s{RS_}, s{RS_}, 0xffff0000")
        I(f"s_lshr_b32 s{A0}, s{IDX}, 4")
        I(f"s_lshl_b32 s{A0}, s{A0}, 14")
        I(f"s_and_b32 s{A0+1}, s{IDX}, 15")
        I(f"s_lshl_b32 s{A0+1}, s{A0+1}, 4")
        I(f"s_add_u32 s{A0}, s{A0}, s{A0+1}")
        I("s_cmp_ge_u32 s2, 224")
        I(f"s_cbranch_scc1 {lab(n+'_frow')}")
        I(f"s_lshl_b32 s{A0+1}, s{WAVE}, 11")
        I(f"s_add_u32 s{A0}, s{A0}, s{A0+1}")
        I(f"v_and_b32 v{FT+4}, 48, v1")
        I(f"v_lshl_add_u32 v{FT+4}, v{FT+4}, 4, s{A0}")
        I(f"v_add_u32 v{FT+5}, 0x400, v{FT+4}")
        I(f"s_branch {lab(n+'_rowld')}")
        k.L(lab(n + "_frow"))
        I(f"s_sub_u32 s{A0+1}, s2, 224")
        I(f"s_lshl_b32 s{A0+1}, s{A0+1}, 9")
        I(f"s_add_u32 s{A0}, s{A0}, s{A0+1}")
        I(f"v_bfe_u32 v{FT+4}, v1, 3, 1")
        I(f"v_lshl_add_u32 v{FT+4}, v{FT+4}, 8, s{A0}")
        I(f"v_mov_b32 v{FT+5}, v{FT+4}")
        k.L(lab(n + "_rowld"))
        vm.issue(f"global_load_dwordx4 {vr(FT+8,4)}, v{FT+4}, {sp(XB_)} sc1", "row")
        vm.issue(f"global_load_dwordx4 {vr(FT+12,4)}, v{FT+5}, {sp(XB_)} sc1", "row")
    def slice1(L):
        n = f"l{L}"
        XR = FT + 8
        I(f"v_mov_b32 v{FT+2}, s{RM}")
        I(f"v_mul_f32 v{FT+2}, s{RR}, v{FT+2}")
        I(f"v_and_b32 v{FT+4}, 48, v1")
        I(f"s_lshl_b32 s{A0}, s{WAVE}, 6")
        I(f"s_add_u32 s{A0}, s{A0}, {LFF + 256}")
        I(f"v_add_u32 v{FT+4}, s{A0}, v{FT+4}")
        yp_addr(FT + 5, L)
        I(f"v_and_b32 v{FT+6}, 15, v1")
        I(f"v_lshlrev_b32 v{FT+6}, 2, v{FT+6}")
        I(f"v_add_u32 v{FT+6}, {LFF + 256}, v{FT+6}")
        for f in range(8): I(f"v_accvgpr_read_b32 v{FT+20+f}, a{ADN+f}")
        for f in range(8): I(f"v_lshlrev_b32 v{FT+20+f}, 16, v{FT+20+f}")
        vm.wait("row")
        k.stamp(name="x" + n + "_row")
        I("s_cmp_ge_u32 s2, 224")
        I(f"s_cbranch_scc1 {lab(n+'_s1skip')}")
        for i in range(8):
            t0 = FT + 16 + 2*(i & 1)
            unpack(t0, t0 + 1, XR + i)
            I(f"v_fma_f32 v{t0}, v{t0}, s{RR}, -v{FT+2}")
            I(f"v_fma_f32 v{t0+1}, v{t0+1}, s{RR}, -v{FT+2}")
            I(f"v_cvt_pk_bf16_f32 v{XR+i}, v{t0}, v{t0+1}")
        k.nop(2)
        I(f"v_mfma_f32_16x16x32_bf16 {vr(FT+16,4)}, {ar(AGU,4)}, {vr(XR,4)}, 0")
        I(f"v_mfma_f32_16x16x32_bf16 {vr(FT+16,4)}, {ar(AGU+4,4)}, {vr(XR+4,4)}, {vr(FT+16,4)}")
        I("s_mov_b32 exec_lo, 0x00010001")
        I("s_mov_b32 exec_hi, 0x00010001")
        k.nop(6)
        I(f"ds_write_b128 v{FT+4}, {vr(FT+16,4)}")
        exec_all()
        bar()
        k.L(lab(n + "_s1skip"))
    def slice2(L):
        n = f"l{L}"
        I("s_cmp_ge_u32 s2, 224")
        I(f"s_cbranch_scc1 {lab(n+'_s2skip')}")
        for i in range(8): I(f"ds_read_b32 v{FT+8+i}, v{FT+6} offset:{64*i}")
        I("s_waitcnt lgkmcnt(0)")
        g = FT + 8
        for a_, b_ in ((0,1),(2,3),(4,5),(6,7),(0,2),(4,6),(0,4)): I(f"v_add_f32 v{g+a_}, v{g+a_}, v{g+b_}")
        bf16r(g)
        t = FT
        I(f"v_mul_f32 v{t}, {hex(f2u(-LOG2E))}, v{g}")
        I(f"v_exp_f32 v{t}, v{t}")
        I("s_nop 0")
        I(f"v_add_f32 v{t}, 1.0, v{t}")
        I(f"v_rcp_f32 v{t}, v{t}")
        I("s_nop 0")
        I(f"v_mul_f32 v{t}, v{t}, v{g}")
        bf16r(t)
        k.nop(2)
        I(f"v_mul_f32_dpp v{t}, v{g}, v{t} row_ror:8 row_mask:0xf bank_mask:0xf")
        bf16r(t)
        k.nop(1)
        for f in range(8): I(f"v_readlane_b32 s{A0+f}, v{t}, {f}")
        I(f"v_mul_f32 v{FT+2}, s{A0}, v{FT+20}")
        I(f"v_mul_f32 v{FT+3}, s{A0+1}, v{FT+21}")
        for f in range(2, 8): I(f"v_fmac_f32 v{FT+2+(f&1)}, s{A0+f}, v{FT+20+f}")
        I(f"v_add_f32 v{FT+2}, v{FT+2}, v{FT+3}")
        I(f"v_min_u32 v{FT+2}, 0xfffffffe, v{FT+2}")
        I(f"global_store_dword v{FT+5}, v{FT+2}, {sp(WSP)} sc1")
        k.L(lab(n + "_s2skip"))
    def finalize(L):
        n = f"l{L}"
        I("s_cmp_lt_u32 s2, 224")
        I(f"s_cbranch_scc1 {lab(n+'_fskip')}")
        XR = FT + 8
        I(f"s_sub_u32 s{A0}, s2, 224")
        I(f"s_mul_i32 s{A0+1}, s{A0}, {224*64}")
        I(f"s_add_u32 s{A0+1}, s{A0+1}, {hex(YP[L])}")
        I(f"v_min_u32 v{FT+4}, 447, v0")
        I(f"v_lshl_add_u32 v{FT+4}, v{FT+4}, 4, s{A0+1}")
        I(f"v_add_u32 v{FT}, {448*16}, v{FT+4}")
        I(f"v_and_b32 v{FT+5}, 15, v0")
        I(f"v_bfe_u32 v{FT+6}, v1, 1, 1")
        I(f"v_cmp_eq_u32 vcc, 1, v{FT+6}")
        I(f"v_bfe_u32 v{FT+6}, v1, 2, 1")
        I("s_nop 0")
        I(f"v_cndmask_b32 v{XR}, v{XR}, v{XR+1}, vcc")
        I(f"v_cndmask_b32 v{XR+2}, v{XR+2}, v{XR+3}, vcc")
        I(f"v_cmp_eq_u32 vcc, 1, v{FT+6}")
        I(f"v_and_b32 v{FT+6}, 1, v1")
        I("s_nop 0")
        I(f"v_cndmask_b32 v{XR}, v{XR}, v{XR+2}, vcc")
        I(f"v_cmp_eq_u32 vcc, 1, v{FT+6}")
        unpack(XR + 1, XR + 2, XR)
        I(f"v_cndmask_b32 v{XR}, v{XR+1}, v{XR+2}, vcc")
        Y_ = FT + 16
        keepq = list(vm.q)
        def ychk():
            I(f"v_max3_u32 v{FT+1}, v{Y_}, v{Y_+1}, v{Y_+2}")
            I(f"v_max3_u32 v{FT+2}, v{Y_+3}, v{Y_+4}, v{Y_+5}")
            I(f"v_max3_u32 v{FT+1}, v{FT+1}, v{Y_+6}, v{Y_+7}")
            I(f"v_max_u32 v{FT+1}, v{FT+1}, v{FT+2}")
            I(f"v_cmp_eq_u32 vcc, -1, v{FT+1}")
        if ENV("YPL", "1") == "1":
            I("s_mov_b64 exec, 1")
            poll(n + "_pl", [f"global_load_dword v{Y_}, v{FT}, {sp(WSP)} sc1"], [0], check=lambda: I(f"v_cmp_eq_u32 vcc, -1, v{Y_}"))
            exec_all()
        poll(n + "_pf", [f"global_load_dwordx4 {vr(Y_,4)}, v{FT+4}, {sp(WSP)} sc1", f"global_load_dwordx4 {vr(Y_+4,4)}, v{FT}, {sp(WSP)} sc1"], [0], check=ychk)
        for c in range(4): I(f"v_add_f32 v{Y_+c}, v{Y_+c}, v{Y_+4+c}")
        for m in ("row_shr:4", "row_shr:8"):
            k.nop(1)
            for c in range(4): I(f"v_add_f32_dpp v{Y_+c}, v{Y_+c}, v{Y_+c} {m} row_mask:0xf bank_mask:0xf bound_ctrl:0")
        for c in range(4): rowreduce("v_add_f32", Y_ + c, FT + 6)
        I(f"v_and_b32 v{FT+6}, 3, v1")
        I(f"s_lshl_b32 s{A0+1}, s{WAVE}, 6")
        I(f"s_add_u32 s{A0+1}, s{A0+1}, {LFF + 256}")
        I(f"v_lshl_add_u32 v{FT+6}, v{FT+6}, 4, s{A0+1}")
        exec_lo("0xf000")
        I(f"ds_write_b128 v{FT+6}, {vr(Y_,4)}")
        exec_all()
        I(f"v_lshlrev_b32 v{FT+5}, 2, v{FT+5}")
        I(f"v_add_u32 v{FT+5}, {LFF + 256}, v{FT+5}")
        bar()
        for i in range(7): I(f"ds_read_b32 v{Y_+i}, v{FT+5} offset:{64*i}")
        t = FT
        I(f"v_mov_b32 v{t}, {hex(f2u(-LOG2E))}")
        I(f"v_mul_f32 v{t}, s{RS_}, v{t}")
        I(f"v_exp_f32 v{t}, v{t}")
        I(f"v_subrev_f32 v{t+1}, s{RM}, v{XR}")
        I(f"v_add_f32 v{t}, 1.0, v{t}")
        I(f"v_rcp_f32 v{t}, v{t}")
        I(f"v_mul_f32 v{t+1}, s{RR}, v{t+1}")
        bf16r(t); bf16r(t + 1)
        I("s_waitcnt lgkmcnt(0)")
        for i in range(1, 7): I(f"v_add_f32 v{Y_}, v{Y_}, v{Y_+i}")
        bf16r(Y_)
        I(f"v_mul_f32 v{Y_}, v{Y_}, v{t}")
        bf16r(Y_)
        I(f"v_add_f32 v{Y_}, v{Y_}, v{t+1}")
        bf16r(Y_)
        I(f"v_add_f32 v{Y_}, v{Y_}, v{XR}")
        I(f"v_cvt_pk_bf16_f32 v{Y_}, v{Y_}, v{Y_}")
        I(f"s_cmp_lg_u32 s{WAVE}, 0")
        I(f"s_cbranch_scc1 {lab(n+'_fskip')}")
        if L == 1:
            I(f"s_lshl_b32 s{A0+1}, s{IDX}, 10")
            I(f"s_lshl_b32 s{A0}, s{A0}, 5")
            I(f"s_add_u32 s{A0}, s{A0}, s{A0+1}")
            I(f"v_lshl_add_u32 v{FT+4}, v1, 1, s{A0}")
            exec_lo("0xffff")
            I(f"global_store_short v{FT+4}, v{Y_}, {sp(OUTP)}")
        else:
            I(f"v_and_b32 v{Y_}, 0xffff, v{Y_}")
            k.nop(2)
            for j, qp in ((1, 1), (2, 2), (3, 3)):
                I(f"v_mov_b32_dpp v{Y_+j}, v{Y_} quad_perm:[{qp},{qp},{qp},{qp}] row_mask:0xf bank_mask:0xf")
            I(f"v_lshl_or_b32 v{Y_}, v{Y_+1}, 16, v{Y_}")
            I(f"v_lshl_or_b32 v{Y_+1}, v{Y_+3}, 16, v{Y_+2}")
            I(f"v_mov_b32 v{Y_+2}, s{TAG}")
            I(f"s_lshl_b32 s{A0}, s{A0}, 7")
            I(f"s_add_u32 s{A0}, s{A0}, {hex(X2R)}")
            I(f"v_lshl_add_u32 v{FT+4}, v1, 2, s{A0}")
            exec_lo("0x1111")
            I(f"global_store_dwordx4 v{FT+4}, {vr(Y_,4)}, {sp(WSP)} sc1")
        exec_all()
        k.L(lab(n + "_fskip"))
        vm.q = keepq

    q_epilogue(0)
    k.stamp(name="l0_qepi")
    attention(0)
    oproj(0)
    I(f"s_mul_i32 s{A0}, s{WAVE}, 6144")
    I(f"s_add_u32 s{A0}, s{A0}, {LWQ}")
    I(f"v_add_u32 v12, s{A0}, v3")
    for i in range(6): I(f"ds_write_b128 v12, {ar(AWS+4*i,4)} offset:{1024*i}")
    I(f"s_lshl_b32 s{A0}, s{TT}, 15")
    I(f"v_add_u32 v8, s{A0}, v3")
    I("v_add_u32 v9, 0x4000, v8")
    I(f"s_lshr_b32 s{A0}, s{TT}, 1")
    I(f"s_lshl_b32 s{A0}, s{A0}, 13")
    I(f"s_and_b32 s{A0+1}, s{TT}, 1")
    I(f"s_lshl_b32 s{A0+1}, s{A0+1}, 9")
    I(f"s_add_u32 s{A0}, s{A0}, s{A0+1}")
    I(f"s_add_u32 s{A0}, s{A0}, {hex(ST[0])}")
    I(f"v_lshl_add_u32 v11, v6, 4, s{A0}")
    I("v_lshl_add_u32 v11, v7, 12, v11")
    RING = 6
    LOOK = int(ENV("LOOK", "4"))
    ROT1 = 67 if not PROFILE else 101
    I(f"s_lshr_b32 s{ROT1}, s{HEAD}, 1")
    def xload(ks):
        I(f"s_add_u32 s{T0}, s{ROT1}, {ks}")
        I(f"s_and_b32 s{T0}, s{T0}, 15")
        I(f"s_lshl_b32 s{T0}, s{T0}, 10")
        I(f"s_add_u32 s{T0}, s{XB_}, s{T0}")
        I(f"s_addc_u32 s{T0+1}, s{XB_+1}, 0")
        for t in range(2):
            vm.issue(f"global_load_dwordx4 {ar(64+8*(ks % RING)+4*t,4)}, v{8+t}, {sp(T0)} sc1", f"x{ks}")
    def wbase1(ks):
        I(f"s_add_u32 s{T0}, s{ROT1}, {ks}")
        I(f"s_and_b32 s{T0}, s{T0}, 15")
        I(f"s_lshl_b32 s{T0}, s{T0}, 10")
        I(f"v_add_u32 v12, s{T0}, v10")
    def first_x():
        for ks in range(LOOK): xload(ks)
    hop_a(0)
    w_addr()
    def bg_loads():
        first_x()
        for l in stat_loads: vm.issue(l, "st")
    I("s_cmp_ge_u32 s2, 224")
    I(f"s_cbranch_scc1 {lab('fin_a')}")
    hop_b_issue(0)
    hop_b(0, role="s")
    slice1(0)
    slice2(0)
    bg_loads()
    I(f"s_branch {lab('q1_go')}")
    k.L(lab("fin_a"))
    vm.q = []
    bg_loads()
    k.L(lab("q1_go"))
    k.stamp(name="q1_ffn")
    F0, FX = 76, 64
    pxl = [f"global_load_dwordx3 {vr(F0+4*i,3)}, v2, {sp(WSP)} offset:{256*(i>>1)+16*(i&1)} sc1" for i in range(4)]
    def px_issue():
        I(f"s_lshl_b32 s{A0}, s{WAVE}, 9")
        I(f"s_add_u32 s{A0}, s{A0}, {hex(X2R)}")
        I(f"v_lshl_add_u32 v2, v7, 7, s{A0}")
        I("v_bfe_u32 v4, v1, 4, 1")
        I("v_lshl_add_u32 v2, v4, 5, v2")
        for l in pxl: I(l)
    wbase1(0)
    wreads(WB, 12, 0)
    wbase1(1)
    wreads(WB + 12, 12, 0)
    for ks in range(16):
        if ks + LOOK < 16: xload(ks + LOOK)
        if ks == int(ENV("STE", "10")):
            vm.wait("st")
            keep_ = list(vm.q)
            poll("ps", stat_loads, stat_tags, chk_label="ps_c")
            vm.q = keep_
            own_stats()
            bounce_params()
        if ks == int(ENV("PXE", "13")):
            I("s_cmp_ge_u32 s2, 224")
            I(f"s_cbranch_scc1 {lab('px_e')}")
            I(f"s_lshr_b32 s{A0}, s{IDX}, 8")
            I(f"s_cmp_lg_u32 s{A0}, s{QB}")
            I(f"s_cbranch_scc1 {lab('px_e')}")
            px_issue()
            k.L(lab("px_e"))
        if ks < 14:
            wbase1(ks + 2)
            wreads(WB + 12*((ks+2)%3), 12, 0)
        vm.wait(f"x{ks}", f" lgkmcnt({12 if ks < 14 else 6 if ks == 14 else 0})")
        qmfmas(WB + 12*(ks%3), ar(64+8*(ks % RING),4), ar(64+8*(ks % RING)+4,4), ks == 0)
    k.stamp(name="q1_loop")
    I("s_cmp_lt_u32 s2, 224")
    I(f"s_cbranch_scc1 {lab('fin_b')}")
    hop_b_issue(0, "f")
    hop_b(0, role="f")
    vm.drain()
    finalize(0)
    k.L(lab("fin_b"))
    k.stamp(name="q1_fin")
    I(f"s_lshr_b32 s{A0}, s{IDX}, 8")
    I(f"s_cmp_eq_u32 s{A0}, s{QB}")
    I(f"s_cbranch_scc1 {lab('dofix')}")
    I("s_cmp_lt_u32 s2, 224")
    I(f"s_cbranch_scc1 {lab('nofix')}")
    I(f"s_branch {lab('rebounce')}")
    k.L(lab("dofix"))
    I(f"s_lshl_b32 s{A0}, s{WAVE}, 11")
    I(f"v_add_u32 v12, s{A0}, v10")
    for q in range(2): wreads(WB + 12*q, 12, q)
    for r in range(4): I(f"v_mov_b32 v{72+r}, s{ONES}")
    I(f"s_lshl_b32 s{A0}, s{WAVE}, 8")
    I(f"s_add_u32 s{A0}, s{A0}, {LRD}")
    I("v_and_b32 v12, 48, v1")
    I(f"v_add_u32 v12, s{A0}, v12")
    I(f"v_mov_b32 v13, s{A0}")
    I("s_cmp_lt_u32 s2, 224")
    I(f"s_cbranch_scc1 {lab('px_go')}")
    px_issue()
    k.L(lab("px_go"))
    poll("px", pxl, [F0 + 4*i + 2 for i in range(4)], first_issued=True)
    for i in range(4):
        I(f"v_mov_b32 v{FX+2*i}, v{F0+4*i}")
        I(f"v_mov_b32 v{FX+2*i+1}, v{F0+4*i+1}")
    I("s_waitcnt lgkmcnt(0)")
    for q in range(2):
        for sec in range(3): mfma16(F0 + 4*sec, vr(WB+12*q+4*sec,4), vr(FX+4*q,4), q == 0)
        mfma16(F0 + 12, vr(72,4), vr(FX+4*q,4), q == 0)
        mfma16(F0 + 16, vr(FX+4*q,4), vr(FX+4*q,4), q == 0)
    I("s_mov_b32 exec_lo, 0x00010001"); I("s_mov_b32 exec_hi, 0x00010001")
    k.nop(6)
    for sec in range(3): I(f"ds_write_b128 v12, {vr(F0+4*sec,4)} offset:{64*sec}")
    I(f"ds_write_b32 v13, v{F0+12} offset:192")
    I(f"ds_write_b32 v13, v{F0+16} offset:196")
    exec_all()
    I(f"s_and_b32 s{A0}, s{IDX}, 31")
    I("v_and_b32 v15, 15, v1")
    I("v_lshrrev_b32 v14, 4, v1")
    I("v_lshlrev_b32 v14, 2, v14")
    I(f"v_sub_u32 v66, s{A0}, v14")
    I(f"v_sub_u32 v67, s{A0}, v15")
    I("v_lshlrev_b32 v15, 2, v15")
    I(f"v_add_u32 v15, {LFX + 128}, v15")
    I("v_and_b32 v12, 48, v1")
    I(f"v_add_u32 v12, {LFX}, v12")
    bar()
    I(f"s_lshr_b32 s{A0}, s{IDX}, 5")
    I(f"s_cmp_lg_u32 s{A0}, s{OT}")
    I(f"s_cbranch_scc1 {lab('nores')}")
    I(f"s_lshl_b32 s{A0}, s{KG}, 7")
    I(f"s_add_u32 s{A0}, s{A0}, {hex(X2R)}")
    I(f"v_lshl_add_u32 v14, v7, 4, s{A0}")
    I(f"v_cmp_eq_u32 vcc, s{IDX}, v{VTK}")
    I(f"s_and_saveexec_b64 {sp(T2)}, vcc")
    I(f"global_load_dwordx2 {vr(XG,2)}, v14, {sp(WSP)} sc1")
    I(f"global_load_dwordx2 {vr(XG+2,2)}, v14, {sp(WSP)} offset:32 sc1")
    I(f"v_mov_b32 v{RESR}, 0")
    exec_all()
    k.L(lab("nores"))
    I(f"s_lshr_b32 s{A0}, s{IDX}, 5")
    I(f"s_cmp_lg_u32 s{A0}, s{TT}")
    I(f"s_cbranch_scc1 {lab('rebounce')}")
    sum8(LRD, LFX)
    I(f"v_mov_b32 v13, {LFX + 192}")
    for sec in range(2): I(f"ds_read_b128 {vr(F0+4*sec,4)}, v12 offset:{64*sec}")
    I("ds_read_b64 v[64:65], v13")
    I("ds_read_b32 v68, v15")
    MK = [T0, T2, A0, A0 + 2, A0 + 4, A0 + 6]
    for t in range(2):
        I(f"v_cmp_eq_u32 {sp(MK[0])}, {16*t}, v67")
        for r in range(4): I(f"v_cmp_eq_u32 {sp(MK[1+r])}, {16*t+r}, v66")
        if t == 0:
            I("s_waitcnt lgkmcnt(0)")
            rowstats(64, 65, 69, 70, 71)
        else: k.nop(1)
        for sec in range(2):
            for r in range(4): I(f"v_cndmask_b32 v{ACC+8*sec+4*t+r}, v{ACC+8*sec+4*t+r}, v{F0+4*sec+r}, {sp(MK[0])}")
        I(f"v_cndmask_b32 v{MT[t]}, v{MT[t]}, v69, {sp(MK[0])}")
        I(f"v_cndmask_b32 v{AT[t]}, v{AT[t]}, v71, {sp(MK[0])}")
        for r in range(4): I(f"v_cndmask_b32 v{ACC+16+4*t+r}, v{ACC+16+4*t+r}, v68, {sp(MK[1+r])}")
    k.L(lab("rebounce"))
    bounce_params()
    k.L(lab("nofix"))
    vm.drain()
    k.stamp(name="q1_fix")
    q_epilogue(1)
    k.stamp(name="l1_qepi")
    attention(1)
    oproj(1)
    hop_a(1)
    hop_b_issue(1)
    X, Y = 96, 16
    for i in range(4): unpack(X + 2*i, X + 2*i + 1, XG + i)
    for r in range(8): I(f"v_sub_f32 v{Y+r}, v{X+r}, v{RESM}")
    for r in range(8): I(f"v_mul_f32 v{Y+r}, v{Y+r}, v{RESR}")
    for i in range(4): I(f"v_cvt_pk_bf16_f32 v{XG+i}, v{Y+2*i}, v{Y+2*i+1}")
    for i in range(4): unpack(Y + 2*i, Y + 2*i + 1, XG + i)
    for r in range(8): I(f"v_add_f32 v{X+r}, v{X+r}, v{Y+r}")
    for i in range(4): I(f"v_cvt_pk_bf16_f32 v{XG+i}, v{X+2*i}, v{X+2*i+1}")
    I(f"s_lshl_b32 s{A0}, s{KG}, 5")
    I(f"v_lshl_add_u32 v12, v7, 4, s{A0}")
    I(f"v_lshl_add_u32 v12, v{VTK}, 10, v12")
    I(f"v_permlane32_swap_b32 v{XG}, v{XG+2}")
    I(f"v_permlane32_swap_b32 v{XG+1}, v{XG+3}")
    hop_b(1)
    k.stamp(name="t_hopb")
    def out_store():
        I(f"v_cmp_ne_u32 vcc, s{IDX}, v{VTK}")
        I(f"s_and_saveexec_b64 {sp(T2)}, vcc")
        vm.issue(f"global_store_dwordx4 v12, {vr(XG,4)}, {sp(OUTP)} {ENV('OUTF', '')}")
        exec_all()
    if ENV('OL', '0') == '0': out_store()
    slice1(1)
    slice2(1)
    if ENV('OL', '0') == '1': out_store()
    k.stamp(name="t_slice")
    finalize(1)
    I("s_cmp_lg_u32 s2, 0")
    I(f"s_cbranch_scc1 {lab('end')}")
    I(f"v_mov_b32 v12, {hex(NONCE)}")
    I(f"v_mov_b32 v13, s{TAG}")
    I("v_cmp_eq_u32 vcc, 0, v0")
    I(f"s_and_saveexec_b64 {sp(T2)}, vcc")
    I(f"s_cbranch_execz {lab('end')}")
    I(f"global_store_dword v12, v13, {sp(WSP)}")
    k.L(lab("end"))
    k.stamp_end(0)
    if ENV("DBGT"):
        I("s_cmp_lt_u32 s2, 224")
        I(f"s_cbranch_scc1 {lab('exit')}")
        I(f"s_cmp_lg_u32 s{WAVE}, 0")
        I(f"s_cbranch_scc1 {lab('exit')}")
        I("s_load_dwordx2 s[4:5], s[0:1], 72")
        I("s_memrealtime s[6:7]")
        I("s_memtime s[8:9]")
        I("s_waitcnt lgkmcnt(0)")
        I("s_mov_b64 exec, 1")
        I("s_not_b32 s96, s96")
        I("s_sub_u32 s8, s8, s98")
        I("v_mov_b32 v1, 0"); I("v_mov_b32 v2, s96"); I("v_mov_b32 v3, s6"); I("v_mov_b32 v4, s8")
        I("global_atomic_umax v1, v2, s[4:5]")
        I("global_atomic_umax v1, v3, s[4:5] offset:4")
        I("global_atomic_umax v1, v4, s[4:5] offset:8")
    k.L(lab("exit"))
    I("s_endpgm")
    return k

if __name__ == "__main__":
    k = build_kernel()
    bad = check_hazards(k)
    for b in bad: print("HAZARD", b, file=sys.stderr)
    out = sys.argv[1] if len(sys.argv) > 1 else "cdna_kernels/" + NAME + ".s"
    txt = emit_file(HEADER, [k], single=(ENV("SINGLE", "0") == "1"))
    open(out, "w").write(txt)
    print("written", out, len(txt), "bytes; hazards:", len(bad))
```

```python
import sys, struct, os
from asmlib import *

NAME = "interleave_layers__softmax_full_mha__moe_arch_mod__prompt"
HEADER = open("cdna_kernels/" + NAME + ".s.ref").read().split("; Override launch")[0]
ENV = os.environ.get

XF = [0x000000, 0x200000]
KF = [0x400000, 0x800000]
VF = [0x600000, 0xA00000]
OF = [0xC00000, 0xE00000]
ST = [0x1000000, 0x1040000]
YP = [0x1080000, 0x1100000, 0x1180000, 0x1400000]
FLK = [0x1280000, 0x1288000]
FLO = [0x1300000, 0x1340000]
KEY = [0x12A4000, 0x12A6000]
X2R = 0x12A0000
NONCE = 0x12A2000
EPS = 1e-5
def f2u(x): return struct.unpack("<I", struct.pack("<f", x))[0]
QSCALE = 0.25 * 1.4426950408889634
LOG2E = 1.4426950408889634
SPIN_MAX = 1 << 18

CB, CBN = 131072, 20
LWQ = 8192
LST = CB + CBN * 512
LSA = LST
LPC = LST + 8192
LFX = LST + 8448
LVB = LST + 8704
LRD = LST + 10752
LFF = LST + 14848
LKY = LFF + 128
LCS = LFF + 768
LDS_BYTES = LFF + 1024

X0P, WQP, WOP, WSP, WRP, WGP, WUP, WDP, OUTP = 4, 6, 8, 10, 12, 14, 16, 18, 20
HEAD, QB, WAVE, TT, W1K, THR, CTR, SPIN, PASS, TAG, CG, TB, OA, KQ, OT, KG, IDX, WSUM = range(22, 40)
T0, T2 = 40, 42
A0 = 44
KB_, VB_, OB_, XB_ = 52, 54, 56, 58
RM, RR, RS_, ONES, C512, CEPS = 60, 61, 62, 63, 64, 65
CGP = 3
CA, CB_, YSEL = 100, 101, 30

def sp(i): return f"s[{i}:{i+1}]"

class VM:
    def __init__(self, k): self.k = k; self.q = []
    def issue(self, txt, tag=None):
        self.k.I(txt); self.q.append(tag)
    def wait(self, tag, extra=""):
        i = max(j for j, t in enumerate(self.q) if t == tag)
        n = len(self.q) - 1 - i
        assert n <= 63
        self.k.I(f"s_waitcnt vmcnt({n}){extra}")
    def drain(self, extra=""):
        self.k.I(f"s_waitcnt vmcnt(0){extra}"); self.q = []

def build_kernel():
    k = Kern(NAME + "_kernel", 256, 512, LDS_BYTES, 128, nagpr=128)
    I = k.I
    vm = VM(k)
    def lab(x): return f"L_{x}"
    def sadd64(d, b, const):
        I(f"s_add_u32 s{d}, s{b}, {hex(const)}"); I(f"s_addc_u32 s{d+1}, s{b+1}, 0")
    def swapop(sw, op, x, t):
        I(f"v_mov_b32 v{t}, v{x}"); k.nop(2); I(f"{sw} v{x}, v{t}"); I(f"{op} v{x}, v{x}, v{t}")
    def halfsum(op, x, t): swapop("v_permlane32_swap_b32", op, x, t)
    def rowreduce(op, x, t):
        swapop("v_permlane16_swap_b32", op, x, t); swapop("v_permlane32_swap_b32", op, x, t)
    def dppred(op, x, modes):
        for m in modes:
            k.nop(2); I(f"{op}_dpp v{x}, v{x}, v{x} {m} row_mask:0xf bank_mask:0xf")
    Q4 = ("quad_perm:[1,0,3,2]", "quad_perm:[2,3,0,1]")
    def allreduce(op, x, t):
        dppred(op, x, Q4 + ("row_half_mirror", "row_mirror")); rowreduce(op, x, t)
    def unpack(dlo, dhi, src):
        I(f"v_lshlrev_b32 v{dlo}, 16, v{src}"); I(f"v_and_b32 v{dhi}, 0xffff0000, v{src}")
    def bf16r(x):
        I(f"v_cvt_pk_bf16_f32 v{x}, v{x}, v{x}"); I(f"v_and_b32 v{x}, 0xffff0000, v{x}")
    def exec_lo(mask):
        I(f"s_mov_b32 exec_lo, {mask}"); I("s_mov_b32 exec_hi, 0")
    def exec_all(): I("s_mov_b64 exec, -1")
    def bar(lg=True):
        if lg: I("s_waitcnt lgkmcnt(0)")
        I("s_barrier")
    def poll(name, loads, tagregs, first_issued=False, check=None, chk_label=None):
        I(f"s_mov_b32 s{SPIN}, {SPIN_MAX}")
        SL = int(ENV("SLEEP", "0"))
        if chk_label: I(f"s_branch {lab(chk_label)}")
        elif first_issued: I(f"s_branch {lab(name+'_w')}")
        elif SL: I(f"s_branch {lab(name+'_l')}")
        k.L(lab(name))
        if SL: I(f"s_sleep {SL}")
        k.L(lab(name + "_l"))
        for l in loads: I(l)
        k.L(lab(name + "_w"))
        I("s_waitcnt vmcnt(0)")
        if chk_label: k.L(lab(chk_label))
        if check: check()
        else: I(f"v_cmp_ne_u32 vcc, s{TAG}, v{tagregs[0]}")
        for r in tagregs[1:]:
            I(f"v_cmp_ne_u32 {sp(T2)}, s{TAG}, v{r}")
            I(f"s_or_b64 vcc, vcc, {sp(T2)}")
        I(f"s_sub_u32 s{SPIN}, s{SPIN}, 1")
        I(f"s_cbranch_vccz {lab(name+'_ok')}")
        I(f"s_cbranch_scc0 {lab(name)}")
        k.L(lab(name + "_ok"))
        k.stampval(SPIN, "x" + name + "_spin")
        k.stamp(name="x" + name + "_ok")
        vm.q = []
    def mfma(d, a_, b_, c): I(f"v_mfma_f32_32x32x16_bf16 {vr(d,16)}, {a_}, {b_}, {vr(c,16) if c is not None else 0}")
    def rowstats(s1, s2, m, var, rstd):
        I(f"v_mul_f32 v{m}, s{C512}, v{s1}")
        I(f"v_mul_f32 v{var}, s{C512}, v{s2}")
        I(f"v_fma_f32 v{var}, -v{m}, v{m}, v{var}")
        I(f"v_max_f32 v{var}, 0, v{var}")
        I(f"v_add_f32 v{rstd}, s{CEPS}, v{var}")
        I(f"v_rsq_f32 v{rstd}, v{rstd}")

    ACC, WB = 16, 40
    CQ, CV, MV, AL = 96, 108, 76, 84
    MT, AT = [112, 114], [113, 115]
    S0, S1, P0, P1, VA, NEG, O, Q, KB = 16, 32, 48, 52, [56, 64], 72, 88, 104, 108
    AK, AV, AVS, VBASE = 112, 113, 114, 115
    XG, WR, VXO, VTK, RESM, RESR = 116, 120, 124, 125, 126, 127
    TK, TV = 64, 68
    def mfma16(d, a_, b_, first): I(f"v_mfma_f32_16x16x32_bf16 {vr(d,4)}, {a_}, {b_}, {0 if first else vr(d,4)}")
    AWO, ARS, AWS, AGU, ADN = 0, 32, 88, 112, 120

    I("s_cmp_ge_u32 s2, 256")
    I(f"s_cbranch_scc1 {lab('exit')}")
    k.stamp_begin()
    if ENV("DBGT"):
        I("s_memrealtime s[96:97]")
        I("s_memtime s[98:99]")
    I(f"s_load_dwordx4 s[4:7], s[0:1], 0")
    I(f"s_load_dwordx2 s[8:9], s[0:1], 16")
    I(f"s_load_dwordx2 s[10:11], s[0:1], 80")
    I(f"s_load_dwordx8 s[12:19], s[0:1], 32")
    I(f"s_load_dwordx2 s[20:21], s[0:1], 64")
    I("v_and_b32 v1, 63, v0")
    I("v_lshrrev_b32 v2, 6, v0")
    I("v_lshlrev_b32 v3, 4, v1")
    I(f"v_readfirstlane_b32 s{WAVE}, v2")
    I(f"s_and_b32 s{QB}, s2, 7")
    I(f"s_lshr_b32 s{HEAD}, s2, 3")
    if ENV("HX"):
        I(f"s_cmp_lt_u32 s{HEAD}, 16")
        I(f"s_cselect_b32 s{A0}, 8, 0")
        I(f"s_xor_b32 s{HEAD}, s{HEAD}, s{A0}")
    I(f"s_lshl_b32 s{TT}, s{QB}, 3")
    I(f"s_add_u32 s{TT}, s{TT}, s{WAVE}")
    I(f"s_lshl_b32 s{W1K}, s{WAVE}, 10")
    I("v_bfe_u32 v5, v1, 1, 2")
    I("v_bfe_u32 v6, v1, 3, 1")
    I("v_lshl_add_u32 v5, v6, 3, v5")
    I("v_bfe_u32 v6, v1, 4, 1")
    I("v_lshl_add_u32 v5, v6, 2, v5")
    I("v_bfe_u32 v6, v1, 5, 1")
    I("v_lshl_add_u32 v5, v6, 4, v5")
    I("v_mul_u32_u24 v5, 3072, v5")
    I("v_and_b32 v6, 1, v1")
    I("v_lshl_add_u32 v5, v6, 4, v5")
    I(f"s_lshl_b32 s{A0+1}, s{HEAD}, 5")
    I(f"v_add_u32 v5, s{A0+1}, v5")
    I("v_lshrrev_b32 v8, 4, v1")
    I("v_and_b32 v9, 7, v1")
    I("v_xor_b32 v8, v8, v9")
    I("v_lshlrev_b32 v8, 4, v8")
    I("v_lshrrev_b32 v9, 3, v1")
    I("v_lshl_add_u32 v8, v9, 10, v8")
    I(f"s_lshl_b32 s{A0}, s{TT}, 15")
    I(f"v_add_u32 v8, s{A0}, v8")
    I("v_xor_b32 v9, 64, v8")
    I("v_add_u32 v9, 0x2000, v9")
    XB3 = [A0 + 3, A0 + 4, A0 + 5]
    for b_ in range(3):
        I(f"s_mul_i32 s{XB3[b_]}, s{WAVE}, 12288")
        I(f"s_add_u32 s{XB3[b_]}, s{XB3[b_]}, {56*1024 + 4096*b_}")
        if b_:
            I(f"s_cmp_eq_u32 s{WAVE}, 7")
            I(f"s_cselect_b32 s{XB3[b_]}, {4096*(b_-1)}, s{XB3[b_]}")
    ROT = A0 + 6
    I(f"s_and_b32 s{ROT}, s{HEAD}, 3")
    I("s_waitcnt lgkmcnt(0)")
    def xstage(st):
        I(f"s_add_u32 s{A0}, s{ROT}, {st//2}")
        I(f"s_and_b32 s{A0}, s{A0}, 3")
        I(f"s_lshl_b32 s{A0}, s{A0}, 8")
        if st & 1: I(f"s_add_u32 s{A0}, s{A0}, 128")
        I(f"s_add_u32 s{T0}, s{X0P}, s{A0}")
        I(f"s_addc_u32 s{T0+1}, s{X0P+1}, 0")
        for i in range(4):
            if i == 2: sadd64(T0, T0, 16384)
            I(f"s_add_u32 m0, s{XB3[st % 3]}, {i*1024}")
            I("s_nop 0")
            vm.issue(f"global_load_lds_dwordx4 v{8 + (i&1)}, {sp(T0)}", f"x{st}")
    def wdma(j):
        I(f"s_mul_i32 s{A0}, s{ROT}, 12")
        I(f"s_add_u32 s{A0}, s{A0}, s{WAVE}")
        I(f"s_add_u32 s{A0}, s{A0}, {8*j}")
        I(f"s_sub_u32 s{A0+1}, s{A0}, 48")
        I(f"s_cmp_ge_u32 s{A0}, 48")
        I(f"s_cselect_b32 s{A0}, s{A0+1}, s{A0}")
        I(f"s_mul_i32 s{A0+1}, s{A0}, 21846")
        I(f"s_lshr_b32 s{A0+1}, s{A0+1}, 16")
        I(f"s_mul_i32 s{A0+2}, s{A0+1}, 3")
        I(f"s_sub_u32 s{A0}, s{A0}, s{A0+2}")
        I(f"s_mul_i32 s{A0+2}, s{A0+1}, {32*3072}")
        I(f"s_lshl_b32 s{T0}, s{A0}, 10")
        I(f"s_add_u32 s{A0+2}, s{A0+2}, s{T0}")
        I(f"s_add_u32 s{T0}, s{WQP}, s{A0+2}")
        I(f"s_addc_u32 s{T0+1}, s{WQP+1}, 0")
        I(f"s_lshl_b32 s{A0}, s{A0}, 14")
        I(f"s_lshl_b32 s{A0+1}, s{A0+1}, 10")
        I(f"s_add_u32 s{A0}, s{A0}, s{A0+1}")
        I(f"s_add_u32 m0, s{A0}, {LWQ}")
        I("s_nop 0")
        vm.issue(f"global_load_lds_dwordx4 v5, {sp(T0)}", f"W{j}")
    if ENV("CPF", "0") == "1":
        I(f"s_cmp_lg_u32 s{WAVE}, 7")
        I(f"s_cbranch_scc1 {lab('nocpf')}")
        I(f"s_lshl_b32 s{A0}, s{HEAD}, 13")
        I(f"v_lshl_add_u32 v12, v1, 7, s{A0}")
        I(f"v_cmp_gt_u32 vcc, {lab('exit')}-{lab('pc0')}, v12")
        I(f"s_getpc_b64 {sp(T0)}")
        k.L(lab("pc0"))
        I(f"s_and_saveexec_b64 {sp(T2)}, vcc")
        I(f"s_cbranch_execz {lab('cpf2')}")
        I(f"global_load_dword v127, v12, {sp(T0)}")
        k.L(lab("cpf2"))
        exec_all()
        k.L(lab("nocpf"))
    if ENV("ALLUP"):
        for j in range(8):
            if j < 6 and ENV("ALLUP") != "x": wdma(j)
            if ENV("ALLUP") != "w": xstage(j)
        k.stamp(name="a_issue")
        I("s_waitcnt vmcnt(0)")
        k.stamp(name="a_done")
        I("s_barrier")
        k.stamp(name="a_bar")
        I(f"s_branch {lab('end')}")
    UPW = int(ENV("UPW", "4"))
    wdma(0); xstage(0); wdma(1); xstage(1); wdma(2); xstage(2)
    for j in range(3, UPW): wdma(j)
    sadd64(T2, WSP, NONCE)
    I(f"s_load_dword s{TAG}, {sp(T2)}, 0")
    I(f"s_lshr_b32 s{CG}, s{HEAD}, 2")
    I(f"s_and_b32 s{TB}, s{HEAD}, 3")
    I(f"s_lshl_b32 s{A0}, s{QB}, 2")
    I(f"s_add_u32 s{TB}, s{TB}, s{A0}")
    I(f"s_and_b32 s{OA}, s{WAVE}, 1")
    I(f"s_lshr_b32 s{KQ}, s{WAVE}, 1")
    I(f"s_lshl_b32 s{OT}, s{TB}, 1")
    I(f"s_add_u32 s{OT}, s{OT}, s{OA}")
    I(f"s_lshl_b32 s{KG}, s{CG}, 2")
    I(f"s_add_u32 s{KG}, s{KG}, s{KQ}")
    I(f"s_mul_i32 s{CGP}, s{QB}, 28")
    I(f"s_min_u32 s{A0}, s{HEAD}, 27")
    I(f"s_add_u32 s{CGP}, s{CGP}, s{A0}")
    I(f"s_mov_b32 s{THR}, {hex(f2u(2.0**30)) if not ENV('THRZ') else 0}")
    I(f"s_mov_b32 s{ONES}, 0x3f803f80")
    I(f"s_mov_b32 s{C512}, {hex(f2u(1/512))}")
    I(f"s_mov_b32 s{CEPS}, {hex(f2u(EPS))}")
    def lane_terms():
        I("v_and_b32 v6, 31, v1")
        I("v_lshrrev_b32 v7, 5, v1")
    lane_terms()
    def w_addr():
        I("v_bfe_u32 v12, v1, 2, 2")
        I("v_lshl_add_u32 v12, v7, 4, v12")
        I("v_bfe_u32 v13, v1, 4, 1")
        I("v_lshl_add_u32 v12, v13, 2, v12")
        I("v_and_b32 v13, 3, v1")
        I("v_lshlrev_b32 v13, 3, v13")
        I("v_lshl_add_u32 v10, v12, 5, v13")
        I(f"v_add_u32 v10, {LWQ}, v10")
    w_addr()
    def wreads(dst, ad, ks):
        for sec in range(3):
            I(f"ds_read_b64_tr_b16 {vr(dst+4*sec,2)}, v{ad} offset:{sec*16384+ks*1024}")
            I(f"ds_read_b64_tr_b16 {vr(dst+4*sec+2,2)}, v{ad} offset:{sec*16384+ks*1024+256}")
    def qmfmas(wb, xa, xb, first, between=None):
        for i, (d, A_, B_) in enumerate(((ACC, vr(wb,4), xa), (ACC+4, vr(wb,4), xb), (ACC+8, vr(wb+4,4), xa),
                                         (ACC+12, vr(wb+4,4), xb), (ACC+16, xa, vr(wb+8,4)), (ACC+20, xb, vr(wb+8,4)))):
            mfma16(d, A_, B_, first)
            if between: between(i)
    I("v_bfe_u32 v12, v1, 1, 3")
    I("v_and_b32 v13, 15, v1")
    I("v_lshlrev_b32 v13, 7, v13")
    I("v_lshrrev_b32 v14, 4, v1")
    I("v_xor_b32 v14, v14, v12")
    I("v_lshl_add_u32 v2, v14, 4, v13")
    I("v_xor_b32 v4, 64, v2")
    def xfrags(st):
        I(f"v_add_u32 v14, s{XB3[st % 3]}, v2")
        I(f"v_add_u32 v15, s{XB3[st % 3]}, v4")
        vm.wait(f"x{st}")
        for h in range(2):
            for t in range(2): I(f"ds_read_b128 {ar(16*st+8*h+4*t,4)}, v{14+h} offset:{2048*t}")
    k.stamp(name="q0_issue")
    I("s_waitcnt lgkmcnt(0)")
    I(f"s_mul_i32 s{TAG}, s{TAG}, 0x9E3779B1")
    I(f"s_add_u32 s{TAG}, s{TAG}, 0x7F4A7C15")
    GU, ON = 76, 92
    for r in range(4): I(f"v_mov_b32 v{ON+r}, s{ONES}")
    xfrags(0)
    I("s_barrier")
    k.stamp(name="q0_W")
    CSA = 96
    def colsum_part(i):
        I(f"v_add_u32 v13, s{W1K}, v10")
        wreads(100, 13, 8*i)
        if i == 0:
            for sec in range(3): I(f"v_mov_b32 v{CSA+sec}, 0")
        I("s_waitcnt lgkmcnt(0)")
        for sec in range(3):
            for r in range(4): I(f"v_dot2_f32_bf16 v{CSA+sec}, v{100+4*sec+r}, s{ONES}, v{CSA+sec}")
        if i == 1:
            k.nop(2)
            for sec in range(3): rowreduce("v_add_f32", CSA + sec, 13)
            I(f"s_lshl_b32 s{A0}, s{WAVE}, 8")
            I(f"s_add_u32 s{A0}, s{A0}, {LRD}")
            I("v_and_b32 v13, 15, v1")
            I(f"v_lshl_add_u32 v13, v13, 2, s{A0}")
            for sec in range(3): I(f"ds_write_b32 v13, v{CSA+sec} offset:{64*sec}")
    def sum8(src, dst):
        I("v_lshlrev_b32 v13, 2, v1")
        I(f"v_add_u32 v14, {src}, v13")
        for w in range(8): I(f"ds_read_b32 v{104+w}, v14 offset:{256*w}")
        I(f"v_add_u32 v13, {dst}, v13")
        I("s_waitcnt lgkmcnt(0)")
        for a_, b_ in ((0,1),(2,3),(4,5),(6,7),(0,2),(4,6),(0,4)): I(f"v_add_f32 v{104+a_}, v{104+a_}, v{104+b_}")
        I("ds_write_b32 v13, v104")
    def wsave():
        I(f"s_mul_i32 s{A0}, s{WAVE}, 6144")
        I(f"s_add_u32 s{A0}, s{A0}, {LWQ}")
        I(f"v_add_u32 v13, s{A0}, v3")
        for i in range(6): I(f"ds_read_b128 {ar(AWS+4*i,4)}, v13 offset:{1024*i}")
    def wbase(q):
        I(f"s_add_u32 s{A0}, s{ROT}, {q}")
        I(f"s_and_b32 s{A0}, s{A0}, 3")
        I(f"s_lshl_b32 s{A0}, s{A0}, 12")
        I(f"v_add_u32 v11, s{A0}, v10")
    wbase(0)
    wreads(WB, 11, 0)
    wreads(WB + 12, 11, 1)
    ready = {2: 1, 5: 2, 8: 3, 10: 4, 13: 5}
    def stats0():
        I("v_and_b32 v13, 11, v0")
        I(f"v_mov_b32 v14, s{ONES}")
        I("v_cmp_eq_u32 vcc, 0, v13")
        I("v_lshlrev_b32 v13, 4, v0")
        I(f"v_add_u32 v13, {CB}, v13")
        I("v_cndmask_b32 v100, 0, v14, vcc")
        for r in range(1, 4): I(f"v_mov_b32 v{100+r}, v100")
        I("ds_write_b128 v13, v[100:103]")
        I(f"v_cmp_gt_u32 vcc, {(CBN*512 - 8192)//16}, v0")
        I(f"s_and_saveexec_b64 {sp(T2)}, vcc")
        I("ds_write_b128 v13, v[100:103] offset:8192")
        exec_all()
        I("v_lshrrev_b32 v12, 4, v1")
        I("v_lshlrev_b32 v12, 2, v12")
        I("v_and_b32 v13, 15, v1")
        I("v_sub_u32 v12, v13, v12")
        for t in range(2): I(f"v_mov_b32 v{ON+t}, 0")
        for r in range(4):
            I(f"v_cmp_eq_u32 vcc, {r}, v12")
            k.nop(2)
            for t in range(2): I(f"v_cndmask_b32 v{ON+t}, v{ON+t}, v{GU+4*t+r}, vcc")
        for t in range(2): rowreduce("v_add_f32", ON + t, 12)
        for t in range(2): rowstats(GU + 8 + 4*t, ON + t, MT[t], 12, AT[t])
    for ks in range(16):
        st = ks // 2
        pre = 0
        if ks % 2 == 0 and st + 1 < 8:
            xfrags(st + 1); pre = 4
        if ks + 2 in ready:
            vm.wait(f"W{ready[ks+2]}")
            I("s_barrier")
        if ks == 12:
            colsum_part(0); colsum_part(1); pre = -6
        if ks == 14:
            bar()
            sum8(LRD, LPC); wsave()
        if ks < 14:
            if (ks + 2) % 4 == 0: wbase((ks + 2)//4)
            wreads(WB + 12*((ks+2)%3), 11, (ks + 2) % 4)
            I(f"s_waitcnt lgkmcnt({min(15, 12 + pre) if ks % 2 == 0 else 12})")
        if ks == 0: xstage(3)
        if ks % 2 == 1 and st + 4 < 8: xstage(st + 4)
        if ks % 2 == 0 and UPW + ks//2 < 6: wdma(UPW + ks//2)
        xa, xb = ar(8*ks,4), ar(8*ks+4,4)
        def smf(q_, half):
            ya, yb = ar(8*q_,4), ar(8*q_+4,4)
            if half == 0: mfma16(GU, ya, ya, q_ == 0); mfma16(GU + 4, yb, yb, q_ == 0)
            else: mfma16(GU + 8, vr(ON,4), ya, q_ == 0); mfma16(GU + 12, vr(ON,4), yb, q_ == 0)
        if ks < 14: smf(ks, 0)
        if ks == 13:
            smf(13, 1)
            for q_ in (14, 15): smf(q_, 0); smf(q_, 1)
        qmfmas(WB + 12*(ks%3), xa, xb, ks == 0)
        if ks < 13: smf(ks, 1)
        if ks == 14: stats0()
    k.stamp(name="q0_loop")
    def bounce_params():
        I(f"s_lshl_b32 s{A0}, s{WAVE}, 8")
        I(f"s_add_u32 s{A0}, s{A0}, {LVB}")
        I("v_and_b32 v13, 15, v1")
        I(f"v_lshl_add_u32 v12, v13, 2, s{A0}")
        for t in range(2):
            I(f"ds_write_b32 v12, v{MT[t]} offset:{64*t}")
            I(f"ds_write_b32 v12, v{AT[t]} offset:{128+64*t}")
        I("v_and_b32 v14, 48, v1")
        I(f"v_add_u32 v12, s{A0}, v14")
        for t in range(2):
            I(f"ds_read_b128 {vr(MV+4*t,4)}, v12 offset:{64*t}")
            I(f"ds_read_b128 {vr(AL+4*t,4)}, v12 offset:{128+64*t}")
        I(f"v_add_u32 v12, {LPC}, v14")
        for sec in range(2): I(f"ds_read_b128 {vr(CQ+4*sec,4)}, v12 offset:{64*sec}")
        I("v_lshlrev_b32 v12, 2, v13")
        I(f"v_add_u32 v12, {LPC + 128}, v12")
        I(f"ds_read_b32 v{CV}, v12")
    bounce_params()

    def yp_addr(d, L):
        I(f"v_lshrrev_b32 v{d}, 4, v0")
        I(f"v_mul_u32_u24 v{d}, {224*64}, v{d}")
        I(f"v_and_b32 v{d+1}, 15, v0")
        I(f"v_lshl_add_u32 v{d}, v{d+1}, 2, v{d}")
        I(f"s_lshl_b32 s{T2}, s{CGP}, 6")
        I(f"s_add_u32 s{T2}, s{T2}, {hex(YP[L])}")
        I(f"v_add_u32 v{d}, s{T2}, v{d}")

    def q_epilogue(L):
        n = f"l{L}"
        sadd64(KB_, WSP, KF[L]); sadd64(VB_, WSP, VF[L]); sadd64(OB_, WSP, OF[L])
        for t in range(2): I(f"v_mul_f32 v{13+t}, {hex(f2u(QSCALE))}, v{AT[t]}")
        I(f"s_lshl_b32 s{A0}, s{HEAD}, 16")
        I(f"s_lshl_b32 s{A0+1}, s{TT}, 10")
        I(f"s_add_u32 s{A0}, s{A0}, s{A0+1}")
        I(f"v_add_u32 v4, s{A0}, v3")
        I(f"v_add_u32 v15, s{W1K}, v3")
        I("v_add_u32 v5, 0x10000, v15")
        I("s_waitcnt lgkmcnt(0)")
        for sec in (1, 0):
            for t in range(2):
                for r in range(4): I(f"v_fma_f32 v{ACC+8*sec+4*t+r}, -v{MT[t]}, v{CQ+4*sec+r}, v{ACC+8*sec+4*t+r}")
            for t in range(2):
                for r in range(4): I(f"v_mul_f32 v{ACC+8*sec+4*t+r}, v{AT[t] if sec else 13+t}, v{ACC+8*sec+4*t+r}")
            d = TK if sec else Q
            for i in range(4): I(f"v_cvt_pk_bf16_f32 v{d+i}, v{ACC+8*sec+2*i}, v{ACC+8*sec+2*i+1}")
        I(f"v_fma_f32 v{ACC+16}, -v{MV}, v{CV}, v{ACC+16}")
        I(f"v_permlane16_swap_b32 v{TK}, v{TK+2}")
        I(f"v_permlane16_swap_b32 v{TK+1}, v{TK+3}")
        I(f"v_permlane16_swap_b32 v{Q}, v{Q+2}")
        I(f"v_permlane16_swap_b32 v{Q+1}, v{Q+3}")
        vm.issue(f"global_store_dwordx4 v4, {vr(TK,4)}, {sp(KB_)} sc1")
        I(f"ds_write_b128 v15, {vr(TK,4)}")
        mfma(S0, vr(TK,4), vr(Q,4), None)
        for r in range(1, 8): I(f"v_fma_f32 v{ACC+16+r}, -v{MV+r}, v{CV}, v{ACC+16+r}")
        for r in range(8): I(f"v_mul_f32 v{ACC+16+r}, v{AL+r}, v{ACC+16+r}")
        for i in range(4): I(f"v_cvt_pk_bf16_f32 v{TV+i}, v{ACC+16+2*i}, v{ACC+16+2*i+1}")
        I(f"v_max3_f32 v2, v{S0}, v{S0+1}, v{S0+2}")
        I(f"v_max3_f32 v13, v{S0+3}, v{S0+4}, v{S0+5}")
        I(f"v_permlane32_swap_b32 v{TV}, v{TV+2}")
        I(f"v_permlane32_swap_b32 v{TV+1}, v{TV+3}")
        vm.issue(f"global_store_dwordx4 v4, {vr(TV,4)}, {sp(VB_)} sc1")
        I(f"ds_write_b128 v5, {vr(TV,4)}")
        if L == 0:
            I("s_cmp_ge_u32 s2, 224")
            I(f"s_cbranch_scc1 {lab('nomark')}")
            yp_addr(10, 0)
            I("v_mov_b32 v12, -1")
            I(f"global_store_dword v10, v12, {sp(WSP)} sc1")
            for b_ in range(1, 4):
                I(f"v_add_u32 v11, {hex(YP[b_] - YP[0])}, v10")
                I(f"global_store_dword v11, v12, {sp(WSP)} sc1")
            k.L(lab("nomark"))
        for r in range(6, 16, 4): I(f"v_max3_f32 v2, v2, v{S0+r}, v{S0+r+1}")
        for r in range(8, 16, 4): I(f"v_max3_f32 v13, v13, v{S0+r}, v{S0+r+1}")
        I("v_max_f32 v2, v2, v13")
        halfsum("v_max_f32", 2, 13)
        for r in range(16): I(f"v_sub_f32 v{NEG+r}, 0, v2")
        I("v_and_b32 v8, 15, v1")
        I("v_bfe_u32 v9, v1, 4, 1")
        I("v_lshlrev_b32 v10, 4, v8")
        I("v_lshl_add_u32 v10, v7, 8, v10")
        I(f"v_lshl_add_u32 v{VBASE}, v9, 16, v10")
        I(f"v_add_u32 v{VBASE}, 0x10000, v{VBASE}")
        I("v_xor_b32 v9, 1, v9")
        I(f"v_lshlrev_b32 v{AVS}, 13, v9")
        I(f"v_mov_b32 v{AK}, v3")
        I(f"v_mov_b32 v{AV}, v{VBASE}")
        I(f"s_mov_b32 s{PASS}, 0")
        I(f"s_lshl_b32 s{A0}, s{HEAD}, 10")
        I(f"s_add_u32 s{A0}, s{A0}, {hex(FLK[L])}")
        I(f"v_lshl_add_u32 v8, v1, 7, s{A0}")
        I(f"s_lshl_b32 s{A0+1}, s{QB}, 7")
        I(f"s_add_u32 s{A0}, s{A0}, s{A0+1}")
        I(f"v_mov_b32 v9, s{A0}")
        bar()

    def ffn_gu(m_):
        I(f"s_lshl_b32 s{A0+1}, s{CGP}, 4")
        I(f"v_mul_u32_u24 v14, 3584, v0")
        I(f"v_add_u32 v14, s{A0+1}, v14")
        vm.issue(f"global_load_dwordx4 {ar(AGU+4*m_,4)}, v14, {sp(WUP if m_ else WGP)}")
    def ffn_dn():
        I(f"s_lshl_b32 s{A0+1}, s{CGP}, 13")
        I(f"s_add_u32 s{A0+1}, s{A0+1}, s{W1K}")
        I(f"v_add_u32 v14, s{A0+1}, v3")
        vm.issue(f"global_load_dwordx4 {ar(ADN,4)}, v14, {sp(WDP)}")
    def attention(L):
        n = f"l{L}"
        def max16(dst, S, first):
            if first:
                I(f"v_max3_f32 v{dst}, v{S}, v{S+1}, v{S+2}"); rest = list(range(3, 16))
            else: rest = list(range(16))
            while rest:
                if len(rest) >= 2:
                    I(f"v_max3_f32 v{dst}, v{dst}, v{S+rest[0]}, v{S+rest[1]}"); rest = rest[2:]
                else:
                    I(f"v_max_f32 v{dst}, v{dst}, v{S+rest[0]}"); rest = rest[1:]
        def prime():
            I(f"ds_read_b128 {vr(KB,4)}, v{AK}")
            I(f"ds_read_b128 {vr(VA[0],4)}, v{AV}")
            I(f"ds_read_b128 {vr(VA[0]+4,4)}, v{AV} offset:512")
            I("s_waitcnt lgkmcnt(0)")
            mfma(S0, vr(KB,4), vr(Q,4), None if ENV("C0") else NEG)
            I(f"ds_read_b128 {vr(KB,4)}, v{AK} offset:1024")
            k.nop(11)
        def setup():
            halfsum("v_max_f32", 2, 7)
            for r in range(16): I(f"v_sub_f32 v{NEG+r}, 0, v2")
            I(f"v_mov_b32 v{AK}, v3")
            I(f"v_mov_b32 v{AV}, v{VBASE}")
            for r in range(16): I(f"v_mov_b32 v{O+r}, 0")
            for r in range(4): I(f"v_mov_b32 v{P1+r}, 0")
            for r in range(4): I(f"v_mov_b32 v{VA[1]+4+r}, 0")
            prime()
        def tile(u, extra=None, nokread=False, noqk=False, novread=False, first=False):
            extra = extra or {}
            if "p" in extra: I(f"s_setprio {extra['p']}")
            Sc, Sn = (S0, S1) if u % 2 == 0 else (S1, S0)
            Vc, Vo = VA[u % 2], VA[1 - u % 2]
            E = lambda r: I(f"v_exp_f32 v{Sc+r}, v{Sc+r}")
            Cv = lambda P, r, b: I(f"v_cvt_pk_bf16_f32 v{P+r}, v{Sc+b+2*r}, v{Sc+b+2*r+1}")
            E(0); E(1)
            if not first: mfma(O, vr(Vo+4,4), vr(P1,4), O)
            if 0 in extra: extra[0]()
            E(2); E(3); E(4)
            I("s_waitcnt lgkmcnt(0)")
            E(5)
            if not noqk: mfma(Sn, vr(KB,4), vr(Q,4), None if ENV("C0") else NEG)
            E(6)
            if not nokread: I(f"ds_read_b128 {vr(KB,4)}, v{AK} offset:{(u+2)*1024}")
            E(7)
            if not novread: I(f"ds_read_b128 {vr(Vo,4)}, v{AV} offset:{(u+1)*1024}")
            for r in range(4): Cv(P0, r, 0)
            E(8)
            if not novread: I(f"ds_read_b128 {vr(Vo+4,4)}, v{AV} offset:{(u+1)*1024+512}")
            E(9)
            mfma(O, vr(Vc,4), vr(P0,4), None if first else O)
            if 1 in extra: extra[1]()
            for r in range(10, 16): E(r)
            for r in range(4): Cv(P1, r, 8)
        def bump():
            I(f"v_add_u32 v{AK}, 0x2000, v{AK}")
            I(f"v_add_u32 v{AV}, v{AVS}, v{AV}")
        prime()
        k.stamp(name=f"x{n}_setup")
        I("s_setprio 3")
        def publish_kv():
            vm.drain()
            I("s_barrier")
            I(f"s_cmp_lg_u32 s{WAVE}, 0")
            I(f"s_cbranch_scc1 {lab(n+'_noflag')}")
            I(f"v_mov_b32 v14, s{TAG}")
            I("s_mov_b64 exec, 1")
            I(f"global_store_dword v9, v14, {sp(WSP)} sc1")
            exec_all()
            k.L(lab(n + "_noflag"))
        pl = f"global_load_dword v14, v8, {sp(WSP)} sc1"
        def poll_issue():
            I("s_mov_b64 exec, 0xff"); I(pl); exec_all()
        def poll_check():
            I("s_mov_b64 exec, 0xff")
            if L == 1:
                I(f"s_lshr_b32 s{A0}, s{IDX}, 8")
                I(f"s_bitset0_b32 exec_lo, s{A0}")
            poll(n + "_pk", [pl], [14], first_issued=True)
            exec_all()
        def stg(sl): return ARS + 8*(sl-1) if L == 0 else 64 + 8*((sl-1) % 6)
        def rload(sl):
            if L == 1:
                I(f"s_lshr_b32 s{A0+1}, s{IDX}, 8")
                I(f"s_sub_u32 s{A0+1}, s{A0+1}, s{QB}")
                I(f"s_and_b32 s{A0+1}, s{A0+1}, 7")
                if sl == 7:
                    I(f"s_cmp_eq_u32 s{A0+1}, 0")
                    I(f"s_cselect_b32 s{A0}, 7, s{A0+1}")
                    I("s_mov_b64 exec, 0xff")
                    poll(n + "_pk7", [pl], [14], first_issued=True)
                    exec_all()
                else:
                    I(f"s_sub_u32 s{A0+1}, s{A0+1}, 1")
                    I(f"s_cmp_lt_u32 s{A0+1}, {sl}")
                    I(f"s_cselect_b32 s{A0}, {sl+1}, {sl}")
                I(f"s_add_u32 s{A0}, s{QB}, s{A0}")
            else:
                I(f"s_add_u32 s{A0}, s{QB}, {sl}")
            I(f"s_and_b32 s{A0}, s{A0}, 7")
            I(f"s_sub_u32 s{A0}, s{A0}, s{QB}")
            I(f"s_lshl_b32 s{A0}, s{A0}, 13")
            I(f"v_add_u32 v13, s{A0}, v4")
            vm.issue(f"global_load_dwordx4 {ar(stg(sl),4)}, v13, {sp(KB_)} sc1", f"r{sl}")
            vm.issue(f"global_load_dwordx4 {ar(stg(sl)+4,4)}, v13, {sp(VB_)} sc1", f"r{sl}")
        def rwrite(sl):
            if f"r{sl}" in vm.q: vm.wait(f"r{sl}")
            I(f"ds_write_b128 v15, {ar(stg(sl),4)} offset:{sl*8192}")
            I(f"ds_write_b128 v5, {ar(stg(sl)+4,4)} offset:{sl*8192}")
        PUB, PI, PC = [int(x) for x in ENV("POLL", "1,4,5").split(",")]
        PR = {}
        if ENV("PBAL", "1") == "1":
            PR = {4: 2, 6: 1, 7: 0, 8: 3, 11: 2, 12: 1, 13: 0, 14: 3, 18: 2, 20: 1, 21: 0, 22: 3, 30: 2, 34: 1, 36: 0, 38: 3}
        for u in range(8):
            ex = {}
            if u == PUB: ex[0] = publish_kv
            if u == PI: ex[0] = poll_issue
            if u == PC: ex[0] = lambda: (poll_check(), rload(1), rload(2))
            if u in PR: ex["p"] = PR[u]
            tile(u, ex, nokread=(u >= 6), noqk=(u == 7), novread=(u == 7), first=(u == 0))
        bump()
        k.stamp(name=f"x{n}_ch0a")
        rwrite(1)
        B2 = ENV("B2", "0") == "1"
        if B2: rwrite(2)
        bar()
        k.stamp(name=n + "_c0")
        prime()
        def wo_addr():
            I(f"s_lshl_b32 s{A0}, s{WAVE}, 16")
            I(f"s_lshl_b32 s{A0+1}, s{CG}, 7")
            I(f"s_add_u32 s{A0}, s{A0}, s{A0+1}")
            I("v_lshrrev_b32 v2, 3, v1")
            I(f"v_lshl_add_u32 v2, v2, 10, s{A0}")
            I("v_and_b32 v14, 7, v1")
            I("v_lshl_add_u32 v2, v14, 4, v2")
        def wo_load(i):
            vm.issue(f"global_load_dwordx4 {ar(AWO+4*i,4)}, v2, {sp(WOP)}", "wo")
            if i < 7: I("v_add_u32 v2, 0x2000, v2")
        def misc_loads():
            I(f"s_lshl_b32 s{A0}, s{KG}, 9")
            I(f"s_lshl_b32 s{A0+1}, s{OT}, 15")
            I(f"s_add_u32 s{A0}, s{A0}, s{A0+1}")
            I("v_and_b32 v10, 15, v1")
            I(f"v_lshl_add_u32 v{VXO}, v10, 4, s{A0}")
            I("v_lshrrev_b32 v10, 5, v1")
            I(f"v_lshl_add_u32 v{VXO}, v10, 8, v{VXO}")
            I("v_bfe_u32 v10, v1, 4, 1")
            I(f"v_lshl_add_u32 v{VXO}, v10, 14, v{VXO}")
            I("v_and_b32 v10, 31, v1")
            I(f"s_lshl_b32 s{A0}, s{OT}, 5")
            I(f"v_add_u32 v{VTK}, s{A0}, v10")
            I("v_lshrrev_b32 v10, 5, v1")
            I(f"s_lshl_b32 s{A0}, s{KG}, 5")
            I(f"v_lshl_add_u32 v14, v10, 3, s{A0}")
            vm.issue(f"global_load_dwordx2 {vr(WR,2)}, v14, {sp(WRP)}")
            vm.issue(f"global_load_dwordx2 {vr(WR+2,2)}, v14, {sp(WRP)} offset:16")
            I(f"v_lshl_add_u32 v14, v{VTK}, 10, v14")
            vm.issue(f"global_load_dwordx2 {vr(XG,2)}, v14, {sp(X0P)}")
            vm.issue(f"global_load_dwordx2 {vr(XG+2,2)}, v14, {sp(X0P)} offset:16")
        sched = {
            1: {(0,0): lambda: rload(3), (3,0): lambda: rload(4), (4,0): lambda: rwrite(2), (6,0): bar},
            2: {(0,0): lambda: rload(5), (3,0): lambda: rload(6), (4,0): lambda: rwrite(3), (5,0): lambda: rwrite(4), (6,0): bar},
            3: {(0,0): lambda: rload(7)},
            4: {(0,0): lambda: rwrite(5), (1,0): lambda: rwrite(6), (2,0): lambda: rwrite(7), (6,0): bar},
        }
        def touches():
            I(f"s_cmp_ge_u32 s{WAVE}, 5")
            I(f"s_cbranch_scc1 {lab('t_done')}")
            I(f"s_cmp_ge_u32 s{WAVE}, 2")
            I(f"s_cbranch_scc1 {lab('t_lin')}")
            I(f"s_mul_i32 s{A0}, s{QB}, 7")
            I(f"s_lshr_b32 s{A0}, s{A0}, 1")
            I(f"s_lshl_b32 s{A0}, s{A0}, 7")
            I(f"s_mul_i32 s{A0+1}, s{HEAD}, {16*3584}")
            I(f"s_add_u32 s{A0}, s{A0}, s{A0+1}")
            I("v_lshrrev_b32 v14, 2, v1")
            I("v_mul_u32_u24 v14, 3584, v14")
            I("v_and_b32 v10, 3, v1")
            I("v_lshl_add_u32 v14, v10, 7, v14")
            I(f"v_add_u32 v14, s{A0}, v14")
            I(f"s_cmp_eq_u32 s{WAVE}, 0")
            I(f"s_cselect_b32 s{T0}, s{WGP}, s{WUP}")
            I(f"s_cselect_b32 s{T0+1}, s{WGP+1}, s{WUP+1}")
            I(f"s_branch {lab('t_go')}")
            k.L(lab("t_lin"))
            I(f"s_lshl_b32 s{A0}, s{CGP}, 13")
            I(f"s_lshl_b32 s{A0+1}, s{HEAD}, 14")
            I(f"s_and_b32 s{A0+2}, s{WAVE}, 1")
            I(f"s_lshl_b32 s{A0+2}, s{A0+2}, 13")
            I(f"s_add_u32 s{A0+1}, s{A0+1}, s{A0+2}")
            I(f"s_cmp_eq_u32 s{WAVE}, 2")
            I(f"s_cselect_b32 s{A0}, s{A0}, s{A0+1}")
            I(f"s_cselect_b32 s{T0}, s{WDP}, s{WOP}")
            I(f"s_cselect_b32 s{T0+1}, s{WDP+1}, s{WOP+1}")
            I(f"v_lshl_add_u32 v14, v1, 7, s{A0}")
            k.L(lab("t_go"))
            I(f"global_load_dword v11, v14, {sp(T0)}")
            k.L(lab("t_done"))
        NU = 5
        if B2:
            del sched[1][(4,0)]; del sched[1][(6,0)]
            for t_ in (11, 12, 13, 14, 18, 20, 21): PR.pop(t_, None)
            PR.update({15: 2, 19: 1, 21: 0})
        if L == 0:
            NU = 6
            def pretouch():
                if ENV("PT") == "1":
                    I(f"s_cmp_lg_u32 s{WAVE}, 6")
                    I(f"s_cbranch_scc1 {lab('pt_done')}")
                    I("v_mul_u32_u24 v14, 0x50000, v1")
                    I(f"global_load_dword v11, v14, {sp(WSP)}")
                    I("v_lshlrev_b32 v14, 15, v1")
                    I(f"global_load_dword v11, v14, {sp(OUTP)}")
                    k.L(lab("pt_done"))
                else:
                    I("v_mul_u32_u24 v14, 0xa000, v0")
                    I(f"global_load_dword v11, v14, {sp(WSP)}")
                    I("v_lshlrev_b32 v14, 12, v0")
                    I(f"global_load_dword v11, v14, {sp(OUTP)}")
            if ENV("PT"): sched[2][(7,0)] = pretouch
            if ENV("TL", "1") == "0":
                sched[2][(6,1)] = touches
                sched[3][(3,0)] = wo_addr
                for i in range(4): sched[3][(4 + i, 0)] = (lambda i=i: wo_load(i))
                for i, u in enumerate((3, 4, 5, 7)): sched[4][(u, 0)] = (lambda i=i: wo_load(4 + i))
                sched[5] = {(0,0): lambda: ffn_gu(0), (2,0): misc_loads, (4,0): lambda: ffn_gu(1), (6,0): ffn_dn}
            else:
                sched[3][(0,1)] = touches
                sched[4][(3,0)] = wo_addr
                for i, u in enumerate((4, 5, 7)): sched[4][(u, 0)] = (lambda i=i: wo_load(i))
                sched[5] = {(i, 0): (lambda i=i: wo_load(3 + i)) for i in range(5)}
                sched[5][(5,0)] = lambda: ffn_gu(0)
                sched[5][(6,0)] = lambda: ffn_gu(1)
                sched[5][(7,0)] = ffn_dn
                sched[5][(7,1)] = misc_loads
            PR[40] = 3
        else:
            sched[2][(7,0)] = poll_issue
        for c in range(1, NU):
            for u in range(8):
                ex = {sl: f for (uu, sl), f in sched[c].items() if uu == u}
                if 8*c + u in PR: ex["p"] = PR[8*c + u]
                tile(u, ex)
            bump()
            k.stamp(name=f"x{n}_ch{c}")
        I(f"s_mov_b32 s{CTR}, {NU}")
        k.lines.append(".p2align 6")
        k.L(lab(n + "_loop"))
        if ENV("PEND", "1") == "0":
            I(f"s_cmp_lt_u32 s{CTR}, 5"); I(f"s_cbranch_scc1 {lab(n+'_pd')}")
            I("s_setprio 2")
            I(f"s_cmp_lt_u32 s{CTR}, 6"); I(f"s_cbranch_scc1 {lab(n+'_pd')}")
            I("s_setprio 1")
            I(f"s_cmp_lt_u32 s{CTR}, 7"); I(f"s_cbranch_scc1 {lab(n+'_pd')}")
            I("s_setprio 0")
            k.L(lab(n + "_pd"))
            for u in range(8): tile(u)
        else:
            I(f"s_cmp_lt_u32 s{CTR}, 6"); I(f"s_cbranch_scc1 {lab(n+'_pd')}")
            I("s_setprio 2")
            I(f"s_cmp_lt_u32 s{CTR}, 7"); I(f"s_cbranch_scc1 {lab(n+'_pd')}")
            I("s_setprio 1")
            k.L(lab(n + "_pd"))
            for u in range(8):
                if u == 5:
                    I(f"s_cmp_lt_u32 s{CTR}, 7"); I(f"s_cbranch_scc1 {lab(n+'_pe')}")
                    I("s_setprio 0")
                    k.L(lab(n + "_pe"))
                tile(u)
        bump()
        I(f"s_add_u32 s{CTR}, s{CTR}, 1")
        I(f"s_cmp_lt_u32 s{CTR}, 8")
        I(f"s_cbranch_scc1 {lab(n+'_loop')}")
        mfma(O, vr(VA[1]+4,4), vr(P1,4), O)
        I("s_waitcnt lgkmcnt(0)")
        k.stamp(name=n + "_attn")
        k.nop(12)
        I(f"s_cmp_lg_u32 s{PASS}, 0")
        I(f"s_cbranch_scc1 {lab(n+'_fin')}")
        I(f"v_cmp_nge_f32 vcc, s{THR}, v{O+8}")
        k.nop(2)
        I(f"s_cbranch_vccz {lab(n+'_fin')}")
        I(f"s_mov_b32 s{PASS}, 1")
        I(f"v_mov_b32 v{AK}, v3")
        I("v_mov_b32 v2, 0xff800000")
        I(f"s_mov_b32 s{CTR}, 0")
        k.L(lab(n + "_maxloop"))
        I(f"ds_read_b128 {vr(KB,4)}, v{AK}")
        I("s_waitcnt lgkmcnt(0)")
        mfma(S0, vr(KB,4), vr(Q,4), None)
        I(f"v_add_u32 v{AK}, 0x400, v{AK}")
        k.nop(12)
        max16(2, S0, False)
        I(f"s_add_u32 s{CTR}, s{CTR}, 1")
        I(f"s_cmp_lt_u32 s{CTR}, 64")
        I(f"s_cbranch_scc1 {lab(n+'_maxloop')}")
        setup()
        I(f"s_mov_b32 s{CTR}, 0")
        I(f"s_branch {lab(n+'_loop')}")
        k.L(lab(n + "_fin"))
        I(f"v_rcp_f32 v2, v{O+8}")
        I("s_nop 0")
        for r in range(8): I(f"v_mul_f32 v{O+r}, v{O+r}, v2")
        for r in range(4): I(f"v_cvt_pk_bf16_f32 v{P0+r}, v{O+2*r}, v{O+2*r+1}")
        I(f"global_store_dwordx4 v4, {vr(P0,4)}, {sp(OB_)} sc1")

    def oproj(L):
        n = f"l{L}"
        OBf, AC, X, Y = 64, 32, 96, 16
        lane_terms()
        I(f"s_lshl_b32 s{A0}, s{KQ}, 19")
        I(f"s_lshl_b32 s{A0+1}, s{OT}, 10")
        I(f"s_add_u32 s{A0}, s{A0}, s{A0+1}")
        I(f"v_add_u32 v10, s{A0}, v3")
        I(f"s_lshl_b32 s{A0}, s{WAVE}, 13")
        I(f"s_add_u32 s{A0}, s{A0}, 0x10000")
        I(f"v_add_u32 v12, s{A0}, v3")
        I(f"s_lshl_b32 s{A0}, s{TT}, 12")
        I(f"s_lshl_b32 s{A0+1}, s{HEAD}, 7")
        I(f"s_add_u32 s{A0}, s{A0}, s{A0+1}")
        I(f"s_add_u32 s{A0}, s{A0}, {hex(FLO[L])}")
        I(f"v_mov_b32 v13, s{A0}")
        I(f"v_mov_b32 v14, s{TAG}")
        I(f"s_lshl_b32 s{A0}, s{OT}, 12")
        I(f"s_lshl_b32 s{A0+1}, s{KQ}, 10")
        I(f"s_add_u32 s{A0}, s{A0}, s{A0+1}")
        I(f"s_add_u32 s{A0}, s{A0}, {hex(FLO[L])}")
        I(f"v_lshl_add_u32 v31, v1, 7, s{A0}")
        FLW = ENV("FLW", "0") == "1"
        if not FLW:
            I(f"s_lshl_b32 s{A0}, s{QB}, 15")
            I(f"s_add_u32 s{A0}, s{A0}, {hex(FLO[L])}")
            I(f"v_lshl_add_u32 v31, v6, 7, s{A0}")
        vm.drain()
        if not FLW:
            I("s_barrier")
            I(f"s_cmp_lg_u32 s{WAVE}, 0")
            I(f"s_cbranch_scc1 {lab(n+'_nof')}")
        I("s_mov_b64 exec, 1")
        I(f"global_store_dword v13, v14, {sp(WSP)} sc1")
        exec_all()
        if not FLW: k.L(lab(n + "_nof"))
        if L == 0 and FLW: I("s_barrier")
        k.stamp(name=n + "_odrain")
        if L == 0:
            for i in range(8): I(f"ds_write_b128 v12, {ar(AWO+4*i,4)} offset:{1024*i}")
            I(f"global_load_dwordx4 v[16:19], v3, {sp(WRP)}")
            I(f"s_lshl_b32 s{A0}, s{WAVE}, 11")
            I(f"v_lshl_add_u32 v13, v1, 5, s{A0}")
            I(f"ds_write_b128 v13, {ar(AGU,4)}")
            I(f"ds_write_b128 v13, {ar(AGU+4,4)} offset:16")
            I(f"v_add_u32 v13, s{W1K}, v3")
            I(f"ds_write_b128 v13, {ar(ADN,4)} offset:16384")
            I("v_bfe_u32 v13, v1, 2, 2")
            I("v_and_b32 v14, 3, v1")
            I("v_lshl_add_u32 v12, v7, 2, v13")
            I("v_lshlrev_b32 v12, 7, v12")
            I("v_lshl_add_u32 v12, v14, 3, v12")
            I("v_bfe_u32 v15, v1, 4, 1")
            I("v_lshl_add_u32 v12, v15, 5, v12")
            I(f"s_lshl_b32 s{A0+1}, s{KQ}, 5")
            I(f"v_xor_b32 v12, s{A0+1}, v12")
            I(f"s_lshl_b32 s{A0+1}, s{KQ}, 14")
            I(f"s_add_u32 s{A0+1}, s{A0+1}, 0x10000")
            I(f"v_add_u32 v12, s{A0+1}, v12")
            I("v_xor_b32 v15, 64, v12")
            bar()
            for i in range(8):
                for b in range(2):
                    I(f"ds_read_b64_tr_b16 {ar(AWO+8*i+4*b,2)}, v{15 if b else 12} offset:{2048*i}")
                    I(f"ds_read_b64_tr_b16 {ar(AWO+8*i+4*b+2,2)}, v{15 if b else 12} offset:{2048*i+1024}")
                if i % 2 == 1: I("s_waitcnt lgkmcnt(0)")
            I("v_lshrrev_b32 v15, 4, v1")
            I("v_lshl_add_u32 v13, v15, 3, v13")
            I("v_lshlrev_b32 v13, 5, v13")
            I("v_lshl_add_u32 v13, v14, 3, v13")
            I(f"v_add_u32 v13, s{A0}, v13")
            for i in range(2):
                I(f"ds_read_b64_tr_b16 {ar(AGU+4*i,2)}, v13 offset:{1024*i}")
                I(f"ds_read_b64_tr_b16 {ar(AGU+4*i+2,2)}, v13 offset:{1024*i+128}")
            I("v_lshlrev_b32 v13, 1, v0")
            for f in range(8): I(f"ds_read_u16 a{ADN+f}, v13 offset:{16384+1024*f}")
            I("v_mov_b32 v20, 0")
            I("s_waitcnt vmcnt(0)")
            for r in range(4): I(f"v_dot2_f32_bf16 v20, v{16+r}, s{ONES}, v20")
            k.nop(1)
            allreduce("v_add_f32", 20, 21)
            I("s_nop 0")
            I(f"v_readfirstlane_b32 s{WSUM}, v20")
        NF = 0
        I(f"s_lshl_b32 s{A0}, s{OA}, 15")
        for g in range(4):
            I(f"s_xor_b32 s{A0+1}, s{KQ}, {g}")
            I(f"s_lshl_b32 s{A0+1}, s{A0+1}, 13")
            I(f"s_add_u32 s{A0+1}, s{A0+1}, s{A0}")
            I(f"v_add_u32 v{27+g}, s{A0+1}, v3")
        for i in range(4): unpack(X + 2*i, X + 2*i + 1, XG + i)
        if L == 1:
            for r in range(8): I(f"v_sub_f32 v{Y+r}, v{X+r}, v{RESM}")
            for r in range(8): I(f"v_mul_f32 v{Y+r}, v{Y+r}, v{RESR}")
            for i in range(4): I(f"v_cvt_pk_bf16_f32 v{XG+i}, v{Y+2*i}, v{Y+2*i+1}")
            for i in range(4): unpack(Y + 2*i, Y + 2*i + 1, XG + i)
            for r in range(8): I(f"v_add_f32 v{X+r}, v{X+r}, v{Y+r}")
            for i in range(4): I(f"v_cvt_pk_bf16_f32 v{XG+i}, v{X+2*i}, v{X+2*i+1}")
            for i in range(4): unpack(X + 2*i, X + 2*i + 1, XG + i)
        for i in range(4): unpack(104 + 2*i, 105 + 2*i, WR + i)
        if L == 1:
            I("v_lshlrev_b32 v13, 2, v6")
            I(f"v_add_u32 v13, {LKY}, v13")
            I("ds_read_b32 v16, v13")
            I("s_waitcnt lgkmcnt(0)")
            for rnd in range(3):
                I("v_mov_b32 v17, v16")
                dppred("v_max_u32", 17, Q4 + ("row_half_mirror", "row_mirror"))
                swapop("v_permlane16_swap_b32", "v_max_u32", 17, 18)
                I("v_cmp_ne_u32 vcc, v17, v16")
                if rnd: I(f"v_readfirstlane_b32 s{(CA, CB_)[rnd-1]}, v17")
                else: I("s_nop 0")
                I("s_nop 0")
                I("v_cndmask_b32 v16, 0, v16, vcc")
            for c_ in (CA, CB_):
                I(f"s_and_b32 s{c_}, s{c_}, 0x7ff")
                I(f"s_sub_u32 s{c_}, 2047, s{c_}")
        if FLW:
            I("s_mov_b64 exec, 0xff")
        else:
            I(f"s_cmp_lg_u32 s{WAVE}, 0")
            I(f"s_cbranch_scc1 {lab(n+'_owait')}")
            exec_lo(-1)
        poll(n + "_po", [f"global_load_dword v14, v31, {sp(WSP)} sc1"], [14])
        exec_all()
        if not FLW:
            k.L(lab(n + "_owait"))
            bar()
        k.stamp(name=n + "_opoll")
        for i in range(8):
            I(f"global_load_dwordx4 {vr(OBf+4*i,4)}, v10, {sp(OB_)} sc1")
            if i < 7: I("v_add_u32 v10, 0x10000, v10")
        for i in range(8):
            I(f"s_waitcnt vmcnt({7-i+NF})")
            for b in range(2): mfma(AC + 16*b, ar(AWO+8*i+4*b,4), vr(OBf+4*i,4), AC + 16*b if i else None)
        if FLW: bar()
        k.stamp(name=n + "_omm")
        k.nop(12)
        for g in range(1, 4):
            for hf in range(2): I(f"ds_write_b128 v{27+g}, {vr(AC+8*g+4*hf,4)} offset:{2048*g+1024*hf}")
        bar()
        k.stamp(name="x" + n + "_red")
        for g in range(1, 4):
            for hf in range(2): I(f"ds_read_b128 {vr(AC+8*g+4*hf,4)}, v27 offset:{2048*g+1024*hf}")
        sadd64(XB_, WSP, XF[L])
        I("s_waitcnt lgkmcnt(4)")
        for r in range(8): I(f"v_add_f32 v{AC+r}, v{AC+r}, v{AC+8+r}")
        I("s_waitcnt lgkmcnt(0)")
        for r in range(8): I(f"v_add_f32 v{AC+16+r}, v{AC+16+r}, v{AC+24+r}")
        for r in range(8): I(f"v_add_f32 v{AC+r}, v{AC+r}, v{AC+16+r}")
        for i in range(4): I(f"v_cvt_pk_bf16_f32 v{XG+i}, v{AC+2*i}, v{AC+2*i+1}")
        for i in range(4): unpack(Y + 2*i, Y + 2*i + 1, XG + i)
        for r in range(8): I(f"v_add_f32 v{X+r}, v{X+r}, v{Y+r}")
        for i in range(4): I(f"v_cvt_pk_bf16_f32 v{XG+i}, v{X+2*i}, v{X+2*i+1}")
        for i in range(4): I(f"v_mov_b32 v{24+i}, v{XG+i}")
        k.nop(1)
        I("v_permlane32_swap_b32 v24, v26")
        I("v_permlane32_swap_b32 v25, v27")
        I(f"global_store_dwordx4 v{VXO}, v[24:27], {sp(XB_)} sc1")
        for i in range(4): unpack(X + 2*i, X + 2*i + 1, XG + i)
        I(f"v_add_f32 v16, v{X}, v{X+1}")
        I(f"v_mul_f32 v17, v{X}, v{X}")
        I(f"v_mul_f32 v18, v{X}, v104")
        for r in range(1, 8):
            if r > 1: I(f"v_add_f32 v16, v16, v{X+r}")
            I(f"v_fmac_f32 v17, v{X+r}, v{X+r}")
            I(f"v_fmac_f32 v18, v{X+r}, v{104+r}")
        I(f"s_lshl_b32 s{A0}, s{OA}, 12")
        I(f"s_lshl_b32 s{A0+1}, s{KQ}, 10")
        I(f"s_add_u32 s{A0}, s{A0}, s{A0+1}")
        I(f"s_add_u32 s{A0}, s{A0}, {LSA}")
        I(f"v_add_u32 v13, s{A0}, v3")
        I("ds_write_b96 v13, v[16:18]")
        k.stamp(name="x" + n + "_epi")
        I("s_waitcnt vmcnt(0) lgkmcnt(0)")
        k.stamp(name="x" + n + "_xdrain")
        I("s_waitcnt vmcnt(0) lgkmcnt(0)")
        I("s_barrier")
        I(f"s_cmp_lg_u32 s{WAVE}, 0")
        I(f"s_cbranch_scc1 {lab(n+'_nost')}")
        I("v_lshlrev_b32 v13, 4, v6")
        I("v_lshl_add_u32 v13, v7, 12, v13")
        I(f"v_add_u32 v13, {LSA}, v13")
        for j in range(8): I(f"ds_read_b96 {vr(32+4*j,3)}, v13 offset:{512*j}")
        I(f"s_lshl_b32 s{A0}, s{TB}, 3")
        I(f"s_add_u32 s{A0}, s{A0}, s{CG}")
        I(f"s_lshl_b32 s{A0}, s{A0}, 10")
        I(f"s_add_u32 s{A0}, s{A0}, {hex(ST[L])}")
        I(f"v_add_u32 v13, s{A0}, v3")
        I(f"v_mov_b32 v35, s{TAG}")
        I("s_waitcnt lgkmcnt(0)")
        for j in range(1, 8):
            for c in range(3): I(f"v_add_f32 v{32+c}, v{32+c}, v{32+4*j+c}")
        I(f"global_store_dwordx4 v13, v[32:35], {sp(WSP)} sc1")
        k.L(lab(n + "_nost"))
        k.stamp(name=n + "_stpub")

    def hop_a(L, after_poll=None, before_poll=None, after_bar=None):
        n = f"l{L}"
        I(f"s_lshl_b32 s{A0}, s{TB}, 13")
        I(f"s_add_u32 s{A0}, s{A0}, {hex(ST[L])}")
        I(f"v_lshl_add_u32 v12, v0, 4, s{A0}")
        loads = [f"global_load_dwordx4 v[32:35], v12, {sp(WSP)} sc1"]; tags = [35]
        if ENV("HA2", "1") == "1":
            I(f"s_cmp_lg_u32 s{WAVE}, 0")
            I(f"s_cbranch_scc1 {lab(n+'_a1')}")
            if L == 0:
                I(f"s_lshl_b32 s{A0}, s{QB}, 15")
                I(f"s_add_u32 s{A0}, s{A0}, {hex(ST[L])}")
            I(f"s_add_u32 s{A0}, s{A0}, 1020")
            I(f"v_lshl_add_u32 v13, v1, 10, s{A0}")
            exec_lo(-1 if L == 0 else "0xff")
            poll(n + "_p1", [f"global_load_dword v36, v13, {sp(WSP)} sc1"], [36])
            exec_all()
            k.L(lab(n + "_a1"))
            I("s_barrier")
        else:
            if L == 0:
                I(f"s_lshr_b32 s{A0}, s{TT}, 1")
                I(f"s_lshl_b32 s{A0}, s{A0}, 13")
                I(f"s_add_u32 s{A0}, s{A0}, {hex(ST[L] + 12)}")
                I("v_and_b32 v13, 7, v1")
                I(f"v_lshl_add_u32 v13, v13, 10, s{A0}")
                loads.append(f"global_load_dword v36, v13, {sp(WSP)} sc1"); tags.append(36)
        if before_poll: before_poll()
        poll(n + "_pa", loads, tags)
        I("v_lshlrev_b32 v13, 4, v0")
        I("ds_write_b96 v13, v[32:34]")
        if after_poll: after_poll()
        bar()
        k.stamp(name=n + "_hopa")
        if after_bar: after_bar()
        for c in range(8): I(f"ds_read_b96 {vr(16+4*c,3)}, v3 offset:{1024*c}")
        I("s_waitcnt lgkmcnt(0)")
        for a_, b_ in ((0,1),(2,3),(4,5),(6,7),(0,2),(4,6),(0,4)):
            for c in range(3): I(f"v_add_f32 v{16+4*a_+c}, v{16+4*a_+c}, v{16+4*b_+c}")
        rowstats(16, 17, RESM, 20, RESR)
        I(f"s_or_b32 s{A0}, s{CG}, s{WAVE}")
        I(f"s_cmp_lg_u32 s{A0}, 0")
        I(f"s_cbranch_scc1 {lab(n+'_nokey')}")
        I(f"v_fma_f32 v18, -v{RESM}, s{WSUM}, v18")
        I(f"v_mul_f32 v18, v18, v{RESR}")
        bf16r(18)
        I("v_ashrrev_i32 v19, 31, v18")
        I("v_or_b32 v19, 0x80000000, v19")
        I("v_xor_b32 v19, v19, v18")
        I("v_and_b32 v19, 0xffff0000, v19")
        I(f"s_lshl_b32 s{A0}, s{TB}, 6")
        I(f"s_sub_u32 s{A0}, 2047, s{A0}")
        I(f"v_sub_u32 v20, s{A0}, v1")
        I("v_or_b32 v20, v19, v20")
        I("v_mov_b32 v24, v20")
        I(f"v_mov_b32 v21, v{RESM}")
        allreduce("v_max_u32", 24, 25)
        I("v_cmp_eq_u32 vcc, v24, v20")
        I(f"v_mov_b32 v22, v{RESR}")
        I(f"v_mov_b32 v23, s{TAG}")
        I(f"s_lshl_b32 s{A0}, s{TB}, 7")
        I(f"s_add_u32 s{A0}, s{A0}, {hex(KEY[L])}")
        I(f"v_mov_b32 v13, s{A0}")
        I("s_mov_b64 exec, vcc")
        I(f"global_store_dwordx4 v13, v[20:23], {sp(WSP)} sc1")
        exec_all()
        k.L(lab(n + "_nokey"))
        I(f"v_mov_b32 v16, v{RESM}")
        I(f"v_mov_b32 v17, v{RESR}")
        I(f"s_cmp_eq_u32 s{OA}, 1")
        I("s_cselect_b64 vcc, -1, 0")
        I(f"v_permlane32_swap_b32 v{RESM}, v16")
        I(f"v_permlane32_swap_b32 v{RESR}, v17")
        I(f"v_cndmask_b32 v{RESM}, v{RESM}, v16, vcc")
        I(f"v_cndmask_b32 v{RESR}, v{RESR}, v17, vcc")
        k.stamp(name="x" + n + "_key")

    FT = 76
    SR = 96
    stat_loads = [f"global_load_dwordx4 {vr(SR+4*i,4)}, v11, {sp(WSP)} offset:{1024*i} sc1" for i in range(4)]
    stat_tags = [SR + 4*i + 3 for i in range(4)]
    def own_stats():
        for i in range(1, 4):
            for c in range(2): I(f"v_add_f32 v{SR+c}, v{SR+c}, v{SR+4*i+c}")
        halfsum("v_add_f32", SR, SR + 2)
        halfsum("v_add_f32", SR + 1, SR + 2)
        rowstats(SR, SR + 1, MT[0], SR + 2, SR + 3)
        I(f"v_mov_b32 v{AT[0]}, s{CEPS}")
        I(f"v_add_f32 v{SR+3}, 1.0, v{SR+3}")
        I(f"v_mul_f32 v{SR+2}, v{SR+2}, v{SR+3}")
        I(f"v_fmac_f32 v{AT[0]}, v{SR+2}, v{SR+3}")
        I(f"v_rsq_f32 v{AT[0]}, v{AT[0]}")
        I(f"v_mov_b32 v{MT[1]}, v{MT[0]}")
        I(f"v_mul_f32 v{AT[0]}, v{AT[0]}, v{SR+3}")
        I(f"v_mov_b32 v{AT[1]}, v{AT[0]}")
        I(f"v_permlane16_swap_b32 v{MT[0]}, v{MT[1]}")
        I("s_nop 0")
        I(f"v_permlane16_swap_b32 v{AT[0]}, v{AT[1]}")
    def key_load(L):
        return f"global_load_dwordx4 {vr(FT,4)}, v{FT+4}, {sp(WSP)} sc1"
    def hop_b_issue(L, sfx=""):
        I(f"v_lshlrev_b32 v{FT+4}, 7, v6")
        I(f"v_add_u32 v{FT+4}, {hex(KEY[L])}, v{FT+4}")
        I(f"s_cmp_lg_u32 s{WAVE}, 0")
        I(f"s_cbranch_scc1 {lab(f'l{L}_nki{sfx}')}")
        I(key_load(L))
        k.L(lab(f"l{L}_nki{sfx}"))
    def hop_b(L, role=""):
        n = f"l{L}{role}"
        I(f"v_mov_b32 v{FT+6}, {LFF}")
        I(f"s_cmp_lg_u32 s{WAVE}, 0")
        I(f"s_cbranch_scc1 {lab(n+'_kw')}")
        keepq = list(vm.q)
        poll(n + "_pb", [key_load(L)], [FT + 3], first_issued=True)
        vm.q = keepq
        if L == 0:
            I(f"v_lshlrev_b32 v{FT+5}, 2, v6")
            I(f"v_add_u32 v{FT+5}, {LKY}, v{FT+5}")
            I(f"ds_write_b32 v{FT+5}, v{FT}")
        I(f"v_mov_b32 v{FT+5}, v{FT}")
        dppred("v_max_u32", FT + 5, Q4 + ("row_half_mirror", "row_mirror"))
        swapop("v_permlane16_swap_b32", "v_max_u32", FT + 5, FT + 7)
        I(f"v_cmp_eq_u32 vcc, v{FT+5}, v{FT}")
        I("s_mov_b64 exec, vcc")
        I(f"ds_write_b96 v{FT+6}, {vr(FT,3)}")
        exec_all()
        k.L(lab(n + "_kw"))
        bar()
        I(f"ds_read_b96 {vr(FT,3)}, v{FT+6}")
        I("s_waitcnt lgkmcnt(0)")
        I(f"v_readfirstlane_b32 s{IDX}, v{FT}")
        I(f"v_readfirstlane_b32 s{RM}, v{FT+1}")
        I(f"v_readfirstlane_b32 s{RR}, v{FT+2}")
        I(f"s_and_b32 s{RS_}, s{IDX}, 0xffff0000")
        I(f"s_and_b32 s{IDX}, s{IDX}, 0x7ff")
        I(f"s_sub_u32 s{IDX}, 2047, s{IDX}")
        I(f"s_ashr_i32 s{A0}, s{RS_}, 31")
        I(f"s_not_b32 s{A0}, s{A0}")
        I(f"s_or_b32 s{A0}, s{A0}, 0x80000000")
        I(f"s_xor_b32 s{RS_}, s{RS_}, s{A0}")
        I(f"s_and_b32 s{RS_}, s{RS_}, 0xffff0000")
        if L == 1:
            I(f"s_cmp_eq_u32 s{IDX}, s{CA}")
            I(f"s_cselect_b32 s{YSEL}, 1, 0")
            I(f"s_cmp_eq_u32 s{IDX}, s{CB_}")
            I(f"s_cselect_b32 s{YSEL}, 2, s{YSEL}")
            I(f"s_cmp_lg_u32 s{YSEL}, 0")
            I(f"s_cbranch_scc1 {lab('hit')}")
        I(f"s_lshr_b32 s{A0}, s{IDX}, 4")
        I(f"s_lshl_b32 s{A0}, s{A0}, 14")
        I(f"s_and_b32 s{A0+1}, s{IDX}, 15")
        I(f"s_lshl_b32 s{A0+1}, s{A0+1}, 4")
        I(f"s_add_u32 s{A0}, s{A0}, s{A0+1}")
        I("s_cmp_ge_u32 s2, 224")
        I(f"s_cbranch_scc1 {lab(n+'_frow')}")
        I(f"s_lshl_b32 s{A0+1}, s{WAVE}, 11")
        I(f"s_add_u32 s{A0}, s{A0}, s{A0+1}")
        I(f"v_and_b32 v{FT+4}, 48, v1")
        I(f"v_lshl_add_u32 v{FT+4}, v{FT+4}, 4, s{A0}")
        I(f"v_add_u32 v{FT+5}, 0x400, v{FT+4}")
        I(f"s_branch {lab(n+'_rowld')}")
        k.L(lab(n + "_frow"))
        I(f"s_sub_u32 s{A0+1}, s2, 224")
        I(f"s_lshl_b32 s{A0+1}, s{A0+1}, 9")
        I(f"s_add_u32 s{A0}, s{A0}, s{A0+1}")
        I(f"v_bfe_u32 v{FT+4}, v1, 3, 1")
        I(f"v_lshl_add_u32 v{FT+4}, v{FT+4}, 8, s{A0}")
        I(f"v_mov_b32 v{FT+5}, v{FT+4}")
        k.L(lab(n + "_rowld"))
        vm.issue(f"global_load_dwordx4 {vr(FT+8,4)}, v{FT+4}, {sp(XB_)} sc1", "row")
        vm.issue(f"global_load_dwordx4 {vr(FT+12,4)}, v{FT+5}, {sp(XB_)} sc1", "row")
    def slice1(L):
        n = f"l{L}"
        XR = FT + 8
        I(f"v_mov_b32 v{FT+2}, s{RM}")
        I(f"v_mul_f32 v{FT+2}, s{RR}, v{FT+2}")
        I(f"v_and_b32 v{FT+4}, 48, v1")
        I(f"s_lshl_b32 s{A0}, s{WAVE}, 6")
        I(f"s_add_u32 s{A0}, s{A0}, {LFF + 256}")
        I(f"v_add_u32 v{FT+4}, s{A0}, v{FT+4}")
        yp_addr(FT + 5, L)
        I(f"v_and_b32 v{FT+6}, 15, v1")
        I(f"v_lshlrev_b32 v{FT+6}, 2, v{FT+6}")
        I(f"v_add_u32 v{FT+6}, {LFF + 256}, v{FT+6}")
        for f in range(8): I(f"v_accvgpr_read_b32 v{FT+20+f}, a{ADN+f}")
        for f in range(8): I(f"v_lshlrev_b32 v{FT+20+f}, 16, v{FT+20+f}")
        vm.wait("row")
        k.stamp(name="x" + n + "_row")
        I("s_cmp_ge_u32 s2, 224")
        I(f"s_cbranch_scc1 {lab(n+'_s1skip')}")
        for i in range(8):
            t0 = FT + 16 + 2*(i & 1)
            unpack(t0, t0 + 1, XR + i)
            I(f"v_fma_f32 v{t0}, v{t0}, s{RR}, -v{FT+2}")
            I(f"v_fma_f32 v{t0+1}, v{t0+1}, s{RR}, -v{FT+2}")
            I(f"v_cvt_pk_bf16_f32 v{XR+i}, v{t0}, v{t0+1}")
        k.nop(2)
        I(f"v_mfma_f32_16x16x32_bf16 {vr(FT+16,4)}, {ar(AGU,4)}, {vr(XR,4)}, 0")
        I(f"v_mfma_f32_16x16x32_bf16 {vr(FT+16,4)}, {ar(AGU+4,4)}, {vr(XR+4,4)}, {vr(FT+16,4)}")
        I("s_mov_b32 exec_lo, 0x00010001")
        I("s_mov_b32 exec_hi, 0x00010001")
        k.nop(6)
        I(f"ds_write_b128 v{FT+4}, {vr(FT+16,4)}")
        exec_all()
        bar()
        k.L(lab(n + "_s1skip"))
    def slice2(L):
        n = f"l{L}"
        I("s_cmp_ge_u32 s2, 224")
        I(f"s_cbranch_scc1 {lab(n+'_s2skip')}")
        for i in range(8): I(f"ds_read_b32 v{FT+8+i}, v{FT+6} offset:{64*i}")
        I("s_waitcnt lgkmcnt(0)")
        g = FT + 8
        for a_, b_ in ((0,1),(2,3),(4,5),(6,7),(0,2),(4,6),(0,4)): I(f"v_add_f32 v{g+a_}, v{g+a_}, v{g+b_}")
        bf16r(g)
        t = FT
        I(f"v_mul_f32 v{t}, {hex(f2u(-LOG2E))}, v{g}")
        I(f"v_exp_f32 v{t}, v{t}")
        I("s_nop 0")
        I(f"v_add_f32 v{t}, 1.0, v{t}")
        I(f"v_rcp_f32 v{t}, v{t}")
        I("s_nop 0")
        I(f"v_mul_f32 v{t}, v{t}, v{g}")
        bf16r(t)
        k.nop(2)
        I(f"v_mul_f32_dpp v{t}, v{g}, v{t} row_ror:8 row_mask:0xf bank_mask:0xf")
        bf16r(t)
        k.nop(1)
        for f in range(8): I(f"v_readlane_b32 s{A0+f}, v{t}, {f}")
        I(f"v_mul_f32 v{FT+2}, s{A0}, v{FT+20}")
        I(f"v_mul_f32 v{FT+3}, s{A0+1}, v{FT+21}")
        for f in range(2, 8): I(f"v_fmac_f32 v{FT+2+(f&1)}, s{A0+f}, v{FT+20+f}")
        I(f"v_add_f32 v{FT+2}, v{FT+2}, v{FT+3}")
        I(f"v_min_u32 v{FT+2}, 0xfffffffe, v{FT+2}")
        I(f"global_store_dword v{FT+5}, v{FT+2}, {sp(WSP)} sc1")
        k.L(lab(n + "_s2skip"))
    def x_elem(XR, t6):
        I(f"v_bfe_u32 v{t6}, v1, 1, 1")
        I(f"v_cmp_eq_u32 vcc, 1, v{t6}")
        I(f"v_bfe_u32 v{t6}, v1, 2, 1")
        I("s_nop 0")
        I(f"v_cndmask_b32 v{XR}, v{XR}, v{XR+1}, vcc")
        I(f"v_cndmask_b32 v{XR+2}, v{XR+2}, v{XR+3}, vcc")
        I(f"v_cmp_eq_u32 vcc, 1, v{t6}")
        I(f"v_and_b32 v{t6}, 1, v1")
        I("s_nop 0")
        I(f"v_cndmask_b32 v{XR}, v{XR}, v{XR+2}, vcc")
        I(f"v_cmp_eq_u32 vcc, 1, v{t6}")
        unpack(XR + 1, XR + 2, XR)
        I(f"v_cndmask_b32 v{XR}, v{XR+1}, v{XR+2}, vcc")
    def gather(name, bufs, B, ldsoff, light=True):
        I(f"s_sub_u32 s{A0}, s2, 224")
        I(f"s_mul_i32 s{A0+1}, s{A0}, {224*64}")
        I(f"s_add_u32 s{A0+1}, s{A0+1}, {hex(bufs[0]) if isinstance(bufs[0], int) else bufs[0]}")
        I(f"v_min_u32 v{B}, 447, v0")
        I(f"v_lshl_add_u32 v{B}, v{B}, 4, s{A0+1}")
        I(f"v_add_u32 v{B+1}, {448*16}, v{B}")
        for j in range(1, len(bufs)):
            I(f"v_add_u32 v{B+2*j}, {hex(bufs[j] - bufs[0])}, v{B}")
            I(f"v_add_u32 v{B+2*j+1}, {hex(bufs[j] - bufs[0])}, v{B+1}")
        Y_ = B + 8; nb = len(bufs)
        keepq = list(vm.q)
        def ychk():
            I(f"v_max3_u32 v{B+4}, v{Y_}, v{Y_+1}, v{Y_+2}")
            for r in range(3, 8*nb - 1, 2): I(f"v_max3_u32 v{B+4}, v{B+4}, v{Y_+r}, v{Y_+r+1}")
            I(f"v_max_u32 v{B+4}, v{B+4}, v{Y_+8*nb-1}")
            I(f"v_cmp_eq_u32 vcc, -1, v{B+4}")
        if light:
            I("s_mov_b64 exec, 1")
            poll(name + "_pl", [f"global_load_dword v{Y_}, v{B+2*nb-1}, {sp(WSP)} sc1"], [0], check=lambda: I(f"v_cmp_eq_u32 vcc, -1, v{Y_}"))
            exec_all()
        poll(name + "_pf", [f"global_load_dwordx4 {vr(Y_+4*j,4)}, v{B+j}, {sp(WSP)} sc1" for j in range(2*nb)], [0], check=ychk)
        vm.q = keepq
        for j in range(nb):
            for c in range(4): I(f"v_add_f32 v{Y_+8*j+c}, v{Y_+8*j+c}, v{Y_+8*j+4+c}")
        for m in ("row_shr:4", "row_shr:8"):
            k.nop(1)
            for j in range(nb):
                for c in range(4): I(f"v_add_f32_dpp v{Y_+8*j+c}, v{Y_+8*j+c}, v{Y_+8*j+c} {m} row_mask:0xf bank_mask:0xf bound_ctrl:0")
        for sw in ("v_permlane16_swap_b32", "v_permlane32_swap_b32"):
            for j in range(nb):
                for c in range(4): I(f"v_mov_b32 v{Y_+8*j+4+c}, v{Y_+8*j+c}")
            k.nop(1)
            for j in range(nb):
                for c in range(4): I(f"{sw} v{Y_+8*j+c}, v{Y_+8*j+4+c}")
            for j in range(nb):
                for c in range(4): I(f"v_add_f32 v{Y_+8*j+c}, v{Y_+8*j+c}, v{Y_+8*j+4+c}")
        I(f"v_and_b32 v{B+4}, 3, v1")
        I(f"s_lshl_b32 s{A0+1}, s{WAVE}, 6")
        I(f"s_add_u32 s{A0+1}, s{A0+1}, {ldsoff}")
        I(f"v_lshl_add_u32 v{B+4}, v{B+4}, 4, s{A0+1}")
        exec_lo("0xf000")
        for j in range(nb): I(f"ds_write_b128 v{B+4}, {vr(Y_+8*j,4)} offset:{512*j}")
        exec_all()
    def finish_row(L, XR, rd):
        n = f"l{L}"
        Y_ = FT + 16
        for i in range(7): I(f"ds_read_b32 v{Y_+i}, v{rd} offset:{64*i}")
        t = FT
        I(f"v_mov_b32 v{t}, {hex(f2u(-LOG2E))}")
        I(f"v_mul_f32 v{t}, s{RS_}, v{t}")
        I(f"v_exp_f32 v{t}, v{t}")
        I(f"v_subrev_f32 v{t+1}, s{RM}, v{XR}")
        I(f"v_add_f32 v{t}, 1.0, v{t}")
        I(f"v_rcp_f32 v{t}, v{t}")
        I(f"v_mul_f32 v{t+1}, s{RR}, v{t+1}")
        bf16r(t); bf16r(t + 1)
        I("s_waitcnt lgkmcnt(0)")
        for a_, b_ in ((0,1),(2,3),(4,5),(0,2),(4,6),(0,4)): I(f"v_add_f32 v{Y_+a_}, v{Y_+a_}, v{Y_+b_}")
        bf16r(Y_)
        I(f"v_mul_f32 v{Y_}, v{Y_}, v{t}")
        bf16r(Y_)
        I(f"v_add_f32 v{Y_}, v{Y_}, v{t+1}")
        bf16r(Y_)
        I(f"v_add_f32 v{Y_}, v{Y_}, v{XR}")
        I(f"v_cvt_pk_bf16_f32 v{Y_}, v{Y_}, v{Y_}")
        I(f"s_sub_u32 s{A0}, s2, 224")
        if L == 1:
            I(f"s_lshl_b32 s{A0+1}, s{IDX}, 10")
            I(f"s_lshl_b32 s{A0}, s{A0}, 5")
            I(f"s_add_u32 s{A0}, s{A0}, s{A0+1}")
            I(f"v_lshl_add_u32 v{FT+4}, v1, 1, s{A0}")
            exec_lo("0xffff")
            I(f"global_store_short v{FT+4}, v{Y_}, {sp(OUTP)}")
        else:
            I(f"v_and_b32 v{Y_}, 0xffff, v{Y_}")
            k.nop(2)
            for j, qp in ((1, 1), (2, 2), (3, 3)):
                I(f"v_mov_b32_dpp v{Y_+j}, v{Y_} quad_perm:[{qp},{qp},{qp},{qp}] row_mask:0xf bank_mask:0xf")
            I(f"v_lshl_or_b32 v{Y_}, v{Y_+1}, 16, v{Y_}")
            I(f"v_lshl_or_b32 v{Y_+1}, v{Y_+3}, 16, v{Y_+2}")
            I(f"v_mov_b32 v{Y_+2}, s{TAG}")
            I(f"s_lshl_b32 s{A0}, s{A0}, 7")
            I(f"s_add_u32 s{A0}, s{A0}, {hex(X2R)}")
            I(f"v_lshl_add_u32 v{FT+4}, v1, 2, s{A0}")
            exec_lo("0x1111")
            I(f"global_store_dwordx4 v{FT+4}, {vr(Y_,4)}, {sp(WSP)} sc1")
        exec_all()
    def finalize(L):
        n = f"l{L}"
        I("s_cmp_lt_u32 s2, 224")
        I(f"s_cbranch_scc1 {lab(n+'_fskip')}")
        x_elem(FT + 8, FT + 6)
        gather(n, [YP[L]], FT + 12, LFF + 256, light=(L == 1 or ENV('F0L', '1') == '1'))
        I(f"v_and_b32 v{FT+5}, 15, v1")
        I(f"v_lshlrev_b32 v{FT+5}, 2, v{FT+5}")
        I(f"v_add_u32 v{FT+5}, {LFF + 256}, v{FT+5}")
        bar()
        I(f"s_cmp_lg_u32 s{WAVE}, 0")
        I(f"s_cbranch_scc1 {lab(n+'_fskip')}")
        finish_row(L, FT + 8, FT + 5)
        k.L(lab(n + "_fskip"))

    q_epilogue(0)
    k.stamp(name="l0_qepi")
    attention(0)
    oproj(0)
    I(f"s_mul_i32 s{A0}, s{WAVE}, 6144")
    I(f"s_add_u32 s{A0}, s{A0}, {LWQ}")
    I(f"v_add_u32 v12, s{A0}, v3")
    for i in range(6): I(f"ds_write_b128 v12, {ar(AWS+4*i,4)} offset:{1024*i}")
    I(f"s_lshl_b32 s{A0}, s{TT}, 15")
    I(f"v_add_u32 v8, s{A0}, v3")
    I("v_add_u32 v9, 0x4000, v8")
    I(f"s_lshr_b32 s{A0}, s{TT}, 1")
    I(f"s_lshl_b32 s{A0}, s{A0}, 13")
    I(f"s_and_b32 s{A0+1}, s{TT}, 1")
    I(f"s_lshl_b32 s{A0+1}, s{A0+1}, 9")
    I(f"s_add_u32 s{A0}, s{A0}, s{A0+1}")
    I(f"s_add_u32 s{A0}, s{A0}, {hex(ST[0])}")
    I(f"v_lshl_add_u32 v11, v6, 4, s{A0}")
    I("v_lshl_add_u32 v11, v7, 12, v11")
    RING = 6
    LOOK = int(ENV("LOOK", "4"))
    ROT1 = 67 if not PROFILE else 101
    I(f"s_lshr_b32 s{ROT1}, s{HEAD}, 1")
    def xload(ks):
        I(f"s_add_u32 s{T0}, s{ROT1}, {ks}")
        I(f"s_and_b32 s{T0}, s{T0}, 15")
        I(f"s_lshl_b32 s{T0}, s{T0}, 10")
        I(f"s_add_u32 s{T0}, s{XB_}, s{T0}")
        I(f"s_addc_u32 s{T0+1}, s{XB_+1}, 0")
        for t in range(2):
            vm.issue(f"global_load_dwordx4 {ar(64+8*(ks % RING)+4*t,4)}, v{8+t}, {sp(T0)} sc1", f"x{ks}")
    def wbase1(ks):
        I(f"s_add_u32 s{T0}, s{ROT1}, {ks}")
        I(f"s_and_b32 s{T0}, s{T0}, 15")
        I(f"s_lshl_b32 s{T0}, s{T0}, 10")
        I(f"v_add_u32 v12, s{T0}, v10")
    def first_x():
        for ks in range(LOOK): xload(ks)
    hop_a(0)
    w_addr()
    def bg_loads():
        first_x()
        for l in stat_loads: vm.issue(l, "st")
    I("s_cmp_ge_u32 s2, 224")
    I(f"s_cbranch_scc1 {lab('fin_a')}")
    hop_b_issue(0)
    hop_b(0, role="s")
    slice1(0)
    slice2(0)
    bg_loads()
    I(f"s_branch {lab('q1_go')}")
    k.L(lab("fin_a"))
    vm.q = []
    bg_loads()
    k.L(lab("q1_go"))
    k.stamp(name="q1_ffn")
    F0, FX = 76, 64
    pxl = [f"global_load_dwordx3 {vr(F0+4*i,3)}, v2, {sp(WSP)} offset:{256*(i>>1)+16*(i&1)} sc1" for i in range(4)]
    def px_issue():
        I(f"s_lshl_b32 s{A0}, s{WAVE}, 9")
        I(f"s_add_u32 s{A0}, s{A0}, {hex(X2R)}")
        I(f"v_lshl_add_u32 v2, v7, 7, s{A0}")
        I("v_bfe_u32 v4, v1, 4, 1")
        I("v_lshl_add_u32 v2, v4, 5, v2")
        for l in pxl: I(l)
    wbase1(0)
    wreads(WB, 12, 0)
    wbase1(1)
    wreads(WB + 12, 12, 0)
    for ks in range(16):
        if ks + LOOK < 16: xload(ks + LOOK)
        if ks == int(ENV("STE", "10")):
            vm.wait("st")
            keep_ = list(vm.q)
            poll("ps", stat_loads, stat_tags, chk_label="ps_c")
            vm.q = keep_
            own_stats()
            bounce_params()
        if ks == int(ENV("PXE", "13")):
            I("s_cmp_ge_u32 s2, 224")
            I(f"s_cbranch_scc1 {lab('px_e')}")
            I(f"s_lshr_b32 s{A0}, s{IDX}, 8")
            I(f"s_cmp_lg_u32 s{A0}, s{QB}")
            I(f"s_cbranch_scc1 {lab('px_e')}")
            px_issue()
            k.L(lab("px_e"))
        if ks < 14:
            wbase1(ks + 2)
            wreads(WB + 12*((ks+2)%3), 12, 0)
        vm.wait(f"x{ks}", f" lgkmcnt({12 if ks < 14 else 6 if ks == 14 else 0})")
        qmfmas(WB + 12*(ks%3), ar(64+8*(ks % RING),4), ar(64+8*(ks % RING)+4,4), ks == 0)
    k.stamp(name="q1_loop")
    I("s_cmp_lt_u32 s2, 224")
    I(f"s_cbranch_scc1 {lab('fin_b')}")
    hop_b_issue(0, "f")
    hop_b(0, role="f")
    vm.drain()
    finalize(0)
    k.L(lab("fin_b"))
    k.stamp(name="q1_fin")
    I(f"s_lshr_b32 s{A0}, s{IDX}, 8")
    I(f"s_cmp_eq_u32 s{A0}, s{QB}")
    I(f"s_cbranch_scc1 {lab('dofix')}")
    I("s_cmp_lt_u32 s2, 224")
    I(f"s_cbranch_scc1 {lab('nofix')}")
    I(f"s_branch {lab('rebounce')}")
    k.L(lab("dofix"))
    I(f"s_lshl_b32 s{A0}, s{WAVE}, 11")
    I(f"v_add_u32 v12, s{A0}, v10")
    for q in range(2): wreads(WB + 12*q, 12, q)
    for r in range(4): I(f"v_mov_b32 v{72+r}, s{ONES}")
    I(f"s_lshl_b32 s{A0}, s{WAVE}, 8")
    I(f"s_add_u32 s{A0}, s{A0}, {LRD}")
    I("v_and_b32 v12, 48, v1")
    I(f"v_add_u32 v12, s{A0}, v12")
    I(f"v_mov_b32 v13, s{A0}")
    I("s_cmp_lt_u32 s2, 224")
    I(f"s_cbranch_scc1 {lab('px_go')}")
    px_issue()
    k.L(lab("px_go"))
    poll("px", pxl, [F0 + 4*i + 2 for i in range(4)], first_issued=True)
    for i in range(4):
        I(f"v_mov_b32 v{FX+2*i}, v{F0+4*i}")
        I(f"v_mov_b32 v{FX+2*i+1}, v{F0+4*i+1}")
    I("s_waitcnt lgkmcnt(0)")
    for q in range(2):
        for sec in range(3): mfma16(F0 + 4*sec, vr(WB+12*q+4*sec,4), vr(FX+4*q,4), q == 0)
        mfma16(F0 + 12, vr(72,4), vr(FX+4*q,4), q == 0)
        mfma16(F0 + 16, vr(FX+4*q,4), vr(FX+4*q,4), q == 0)
    I("s_mov_b32 exec_lo, 0x00010001"); I("s_mov_b32 exec_hi, 0x00010001")
    k.nop(6)
    for sec in range(3): I(f"ds_write_b128 v12, {vr(F0+4*sec,4)} offset:{64*sec}")
    I(f"ds_write_b32 v13, v{F0+12} offset:192")
    I(f"ds_write_b32 v13, v{F0+16} offset:196")
    exec_all()
    I(f"s_and_b32 s{A0}, s{IDX}, 31")
    I("v_and_b32 v15, 15, v1")
    I("v_lshrrev_b32 v14, 4, v1")
    I("v_lshlrev_b32 v14, 2, v14")
    I(f"v_sub_u32 v66, s{A0}, v14")
    I(f"v_sub_u32 v67, s{A0}, v15")
    I("v_lshlrev_b32 v15, 2, v15")
    I(f"v_add_u32 v15, {LFX + 128}, v15")
    I("v_and_b32 v12, 48, v1")
    I(f"v_add_u32 v12, {LFX}, v12")
    bar()
    I(f"s_lshr_b32 s{A0}, s{IDX}, 5")
    I(f"s_cmp_lg_u32 s{A0}, s{OT}")
    I(f"s_cbranch_scc1 {lab('nores')}")
    I(f"s_lshl_b32 s{A0}, s{KG}, 7")
    I(f"s_add_u32 s{A0}, s{A0}, {hex(X2R)}")
    I(f"v_lshl_add_u32 v14, v7, 4, s{A0}")
    I(f"v_cmp_eq_u32 vcc, s{IDX}, v{VTK}")
    I(f"s_and_saveexec_b64 {sp(T2)}, vcc")
    I(f"global_load_dwordx2 {vr(XG,2)}, v14, {sp(WSP)} sc1")
    I(f"global_load_dwordx2 {vr(XG+2,2)}, v14, {sp(WSP)} offset:32 sc1")
    I(f"v_mov_b32 v{RESR}, 0")
    exec_all()
    k.L(lab("nores"))
    I(f"s_lshr_b32 s{A0}, s{IDX}, 5")
    I(f"s_cmp_lg_u32 s{A0}, s{TT}")
    I(f"s_cbranch_scc1 {lab('rebounce')}")
    sum8(LRD, LFX)
    I(f"v_mov_b32 v13, {LFX + 192}")
    for sec in range(2): I(f"ds_read_b128 {vr(F0+4*sec,4)}, v12 offset:{64*sec}")
    I("ds_read_b64 v[64:65], v13")
    I("ds_read_b32 v68, v15")
    MK = [T0, T2, A0, A0 + 2, A0 + 4, A0 + 6]
    for t in range(2):
        I(f"v_cmp_eq_u32 {sp(MK[0])}, {16*t}, v67")
        for r in range(4): I(f"v_cmp_eq_u32 {sp(MK[1+r])}, {16*t+r}, v66")
        if t == 0:
            I("s_waitcnt lgkmcnt(0)")
            rowstats(64, 65, 69, 70, 71)
        else: k.nop(1)
        for sec in range(2):
            for r in range(4): I(f"v_cndmask_b32 v{ACC+8*sec+4*t+r}, v{ACC+8*sec+4*t+r}, v{F0+4*sec+r}, {sp(MK[0])}")
        I(f"v_cndmask_b32 v{MT[t]}, v{MT[t]}, v69, {sp(MK[0])}")
        I(f"v_cndmask_b32 v{AT[t]}, v{AT[t]}, v71, {sp(MK[0])}")
        for r in range(4): I(f"v_cndmask_b32 v{ACC+16+4*t+r}, v{ACC+16+4*t+r}, v68, {sp(MK[1+r])}")
    k.L(lab("rebounce"))
    bounce_params()
    k.L(lab("nofix"))
    vm.drain()
    k.stamp(name="q1_fix")
    q_epilogue(1)
    k.stamp(name="l1_qepi")
    attention(1)
    oproj(1)
    def cand_stats():
        I(f"s_cmp_lg_u32 s{WAVE}, 1")
        I(f"s_cbranch_scc1 {lab('cs_skip0')}")
        I(f"v_mov_b32 v40, s{CA}")
        I(f"v_mov_b32 v41, s{CB_}")
        I("v_cmp_gt_u32 vcc, 8, v1")
        I("v_and_b32 v42, 7, v1")
        I("s_nop 0")
        I("v_cndmask_b32 v40, v41, v40, vcc")
        I("v_lshrrev_b32 v41, 6, v40")
        I("v_lshl_add_u32 v41, v41, 3, v42")
        I("v_and_b32 v40, 63, v40")
        I("v_lshlrev_b32 v40, 4, v40")
        I("v_lshl_add_u32 v40, v41, 10, v40")
        I(f"v_add_u32 v40, {hex(ST[1])}, v40")
        exec_lo("0xffff")
        I(f"global_load_dwordx4 v[44:47], v40, {sp(WSP)} sc1")
        exec_all()
        k.L(lab("cs_skip0"))
    def cand_stats2():
        I(f"s_cmp_lg_u32 s{WAVE}, 1")
        I(f"s_cbranch_scc1 {lab('cs_skip')}")
        exec_lo("0xffff")
        poll("pc", [f"global_load_dwordx4 v[44:47], v40, {sp(WSP)} sc1"], [47], first_issued=True)
        for m in Q4 + ("row_half_mirror",):
            k.nop(1)
            for c in range(2): I(f"v_add_f32_dpp v{44+c}, v{44+c}, v{44+c} {m} row_mask:0xf bank_mask:0xf")
        rowstats(44, 45, 46, 47, 45)
        I("v_and_b32 v40, 8, v1")
        I(f"v_add_u32 v40, {LCS}, v40")
        I("v_mul_f32 v44, v46, v45")
        I("ds_write_b64 v40, v[44:45]")
        exec_all()
        k.L(lab("cs_skip"))
    SX, SD = 56, 64
    def cand_addr():
        I(f"v_mov_b32 v50, s{CA}")
        I(f"v_mov_b32 v51, s{CB_}")
        I("v_and_b32 v52, 1, v1")
        I("v_cmp_eq_u32 vcc, 1, v52")
        I("v_lshlrev_b32 v52, 3, v52")
        I(f"v_add_u32 v52, {LCS}, v52")
        I("v_cndmask_b32 v50, v50, v51, vcc")
        I("v_lshrrev_b32 v51, 4, v50")
        I("v_and_b32 v50, 15, v50")
        I("v_lshlrev_b32 v50, 4, v50")
        I("v_lshl_add_u32 v50, v51, 14, v50")
        I("v_and_b32 v51, 48, v1")
        I("v_lshl_add_u32 v50, v51, 4, v50")
        I(f"s_lshl_b32 s{A0}, s{WAVE}, 11")
        I(f"v_add_u32 v50, s{A0}, v50")
        I("s_cmp_lt_u32 s2, 224")
        I(f"s_cbranch_scc1 {lab('ca_done')}")
        I(f"v_mov_b32 v50, s{CA}")
        I(f"v_mov_b32 v51, s{CB_}")
        I("v_and_b32 v53, 16, v1")
        I("v_cmp_eq_u32 vcc, 16, v53")
        I(f"s_sub_u32 s{A0}, s2, 224")
        I(f"s_lshl_b32 s{A0}, s{A0}, 9")
        I("v_cndmask_b32 v50, v50, v51, vcc")
        I("v_lshrrev_b32 v51, 4, v50")
        I("v_and_b32 v50, 15, v50")
        I("v_lshlrev_b32 v50, 4, v50")
        I("v_lshl_add_u32 v50, v51, 14, v50")
        I("v_bfe_u32 v51, v1, 3, 1")
        I("v_lshl_add_u32 v50, v51, 8, v50")
        I(f"v_add_u32 v50, s{A0}, v50")
        k.L(lab("ca_done"))
        for f in range(8): I(f"v_accvgpr_read_b32 v{SD+f}, a{ADN+f}")
        for f in range(8): I(f"v_lshlrev_b32 v{SD+f}, 16, v{SD+f}")
    def cand_rows():
        I(f"global_load_dwordx4 {vr(SX,4)}, v50, {sp(XB_)} sc1")
        I(f"global_load_dwordx4 {vr(SX+4,4)}, v50, {sp(XB_)} offset:1024 sc1")
        I("ds_read_b64 v[54:55], v52")
    cand_addr()
    hop_a(1, cand_stats2, cand_stats, cand_rows)
    I("s_cmp_ge_u32 s2, 224")
    I(f"s_cbranch_scc1 {lab('sp_skip')}")
    I("v_and_b32 v17, 48, v1")
    I(f"s_lshl_b32 s{A0}, s{WAVE}, 7")
    I(f"s_add_u32 s{A0}, s{A0}, {LRD}")
    I("v_and_b32 v18, 1, v1")
    I("v_lshl_add_u32 v17, v18, 6, v17")
    I(f"v_add_u32 v17, s{A0}, v17")
    I("v_and_b32 v18, 31, v1")
    I("v_lshlrev_b32 v18, 2, v18")
    I(f"v_add_u32 v18, {LRD}, v18")
    yp_addr(22, 2)
    I(f"v_add_u32 v23, {hex(YP[3] - YP[2])}, v22")
    I(f"s_or_b32 s{A0}, s{CG}, s{WAVE}")
    I(f"s_cmp_eq_u32 s{A0}, 0")
    I("s_waitcnt vmcnt(1)")
    I(f"s_cbranch_scc1 {lab('sp_go')}")
    I("s_waitcnt vmcnt(0)")
    k.L(lab("sp_go"))
    for i in range(8):
        t0 = 24 + 2*(i & 1)
        unpack(t0, t0 + 1, SX + i)
        I(f"v_fma_f32 v{t0}, v{t0}, v55, -v54")
        I(f"v_fma_f32 v{t0+1}, v{t0+1}, v55, -v54")
        I(f"v_cvt_pk_bf16_f32 v{SX+i}, v{t0}, v{t0+1}")
    k.nop(2)
    I(f"v_mfma_f32_16x16x32_bf16 v[24:27], {ar(AGU,4)}, {vr(SX,4)}, 0")
    I(f"v_mfma_f32_16x16x32_bf16 v[24:27], {ar(AGU+4,4)}, {vr(SX+4,4)}, v[24:27]")
    I("s_mov_b32 exec_lo, 0x00030003")
    I("s_mov_b32 exec_hi, 0x00030003")
    k.nop(6)
    I("ds_write_b128 v17, v[24:27]")
    exec_all()
    bar()
    for i in range(8): I(f"ds_read_b32 v{SX+i}, v18 offset:{128*i}")
    I("s_waitcnt lgkmcnt(0)")
    for a_, b_ in ((0,1),(2,3),(4,5),(6,7),(0,2),(4,6),(0,4)): I(f"v_add_f32 v{SX+a_}, v{SX+a_}, v{SX+b_}")
    bf16r(SX)
    I(f"v_mul_f32 v16, {hex(f2u(-LOG2E))}, v{SX}")
    I("v_exp_f32 v16, v16")
    I("s_nop 0")
    I("v_add_f32 v16, 1.0, v16")
    I("v_rcp_f32 v16, v16")
    I("s_nop 0")
    I(f"v_mul_f32 v16, v16, v{SX}")
    bf16r(16)
    k.nop(2)
    I(f"v_mul_f32_dpp v16, v{SX}, v16 row_ror:8 row_mask:0xf bank_mask:0xf")
    bf16r(16)
    k.nop(1)
    for c_ in range(2):
        for f in range(8): I(f"v_readlane_b32 s{A0+f}, v16, {16*c_+f}")
        I(f"v_mul_f32 v{24+2*c_}, s{A0}, v{SD}")
        I(f"v_mul_f32 v{25+2*c_}, s{A0+1}, v{SD+1}")
        for f in range(2, 8): I(f"v_fmac_f32 v{24+2*c_+(f&1)}, s{A0+f}, v{SD+f}")
        I(f"v_add_f32 v{24+2*c_}, v{24+2*c_}, v{25+2*c_}")
        I(f"v_min_u32 v{24+2*c_}, 0xfffffffe, v{24+2*c_}")
        I(f"global_store_dword v{22+c_}, v{24+2*c_}, {sp(WSP)} sc1")
    I(f"s_branch {lab('sp_done')}")
    k.L(lab("sp_skip"))
    I("s_waitcnt vmcnt(0)")
    x_elem(SX, 16)
    k.L(lab("sp_done"))
    hop_b_issue(1)
    k.stamp(name="t_spec")
    X, Y = 96, 16
    for i in range(4): unpack(X + 2*i, X + 2*i + 1, XG + i)
    for r in range(8): I(f"v_sub_f32 v{Y+r}, v{X+r}, v{RESM}")
    for r in range(8): I(f"v_mul_f32 v{Y+r}, v{Y+r}, v{RESR}")
    for i in range(4): I(f"v_cvt_pk_bf16_f32 v{XG+i}, v{Y+2*i}, v{Y+2*i+1}")
    for i in range(4): unpack(Y + 2*i, Y + 2*i + 1, XG + i)
    for r in range(8): I(f"v_add_f32 v{X+r}, v{X+r}, v{Y+r}")
    for i in range(4): I(f"v_cvt_pk_bf16_f32 v{XG+i}, v{X+2*i}, v{X+2*i+1}")
    I(f"s_lshl_b32 s{A0}, s{KG}, 5")
    I(f"v_lshl_add_u32 v12, v7, 4, s{A0}")
    I(f"v_lshl_add_u32 v12, v{VTK}, 10, v12")
    I(f"v_permlane32_swap_b32 v{XG}, v{XG+2}")
    I(f"v_permlane32_swap_b32 v{XG+1}, v{XG+3}")
    hop_b(1)
    k.stamp(name="t_hopb")
    def out_store():
        I(f"v_cmp_ne_u32 vcc, s{IDX}, v{VTK}")
        I(f"s_and_saveexec_b64 {sp(T2)}, vcc")
        vm.issue(f"global_store_dwordx4 v12, {vr(XG,4)}, {sp(OUTP)} {ENV('OUTF', '')}")
        exec_all()
    out_store()
    slice1(1)
    slice2(1)
    k.stamp(name="t_slice")
    finalize(1)
    I(f"s_branch {lab('fdone')}")
    k.L(lab("hit"))
    I("s_cmp_lt_u32 s2, 224")
    I(f"s_cbranch_scc1 {lab('hit_out')}")
    I(f"s_cmp_eq_u32 s{YSEL}, 2")
    I(f"s_mov_b32 s{T0}, {hex(YP[2])}")
    I(f"s_cselect_b32 s{T0}, {hex(YP[3])}, s{T0}")
    gather("sg", [f"s{T0}"], 20, LRD, light=(ENV("SGL", "0") == "1"))
    I("v_and_b32 v16, 15, v1")
    I("v_lshlrev_b32 v16, 2, v16")
    I(f"v_add_u32 v16, {LRD}, v16")
    bar()
    I(f"s_cmp_lg_u32 s{WAVE}, 0")
    I(f"s_cbranch_scc1 {lab('hit_out')}")
    I(f"v_mov_b32 v17, v{SX}")
    I(f"s_cmp_eq_u32 s{YSEL}, 2")
    I("s_cselect_b64 vcc, -1, 0")
    I(f"v_permlane16_swap_b32 v{SX}, v17")
    I("s_nop 0")
    I(f"v_cndmask_b32 v{SX}, v{SX}, v17, vcc")
    finish_row(1, SX, 16)
    k.L(lab("hit_out"))
    out_store()
    k.L(lab("fdone"))
    I("s_cmp_lg_u32 s2, 0")
    I(f"s_cbranch_scc1 {lab('end')}")
    I(f"v_mov_b32 v12, {hex(NONCE)}")
    I(f"v_mov_b32 v13, s{TAG}")
    I("v_cmp_eq_u32 vcc, 0, v0")
    I(f"s_and_saveexec_b64 {sp(T2)}, vcc")
    I(f"s_cbranch_execz {lab('end')}")
    I(f"global_store_dword v12, v13, {sp(WSP)}")
    k.L(lab("end"))
    k.stamp_end(0)
    if ENV("DBGT"):
        I("s_cmp_lt_u32 s2, 224")
        I(f"s_cbranch_scc1 {lab('exit')}")
        I(f"s_cmp_lg_u32 s{WAVE}, 0")
        I(f"s_cbranch_scc1 {lab('exit')}")
        I("s_load_dwordx2 s[4:5], s[0:1], 72")
        I("s_memrealtime s[6:7]")
        I("s_memtime s[8:9]")
        I("s_waitcnt lgkmcnt(0)")
        I("s_mov_b64 exec, 1")
        I("s_not_b32 s96, s96")
        I("s_sub_u32 s8, s8, s98")
        I("v_mov_b32 v1, 0"); I("v_mov_b32 v2, s96"); I("v_mov_b32 v3, s6"); I("v_mov_b32 v4, s8")
        I("global_atomic_umax v1, v2, s[4:5]")
        I("global_atomic_umax v1, v3, s[4:5] offset:4")
        I("global_atomic_umax v1, v4, s[4:5] offset:8")
    k.L(lab("exit"))
    I("s_endpgm")
    return k

if __name__ == "__main__":
    k = build_kernel()
    bad = check_hazards(k)
    for b in bad: print("HAZARD", b, file=sys.stderr)
    out = sys.argv[1] if len(sys.argv) > 1 else "cdna_kernels/" + NAME + ".s"
    txt = emit_file(HEADER, [k], single=(ENV("SINGLE", "0") == "1"))
    open(out, "w").write(txt)
    print("written", out, len(txt), "bytes; hazards:", len(bad))
```

```python
import sys, struct, os
from asmlib import *

NAME = "interleave_layers__softmax_full_mha__moe_arch_mod__prompt"
HEADER = open("cdna_kernels/" + NAME + ".s.ref").read().split("; Override launch")[0]
ENV = os.environ.get

XF = [0x000000, 0x200000]
KF = [0x400000, 0x800000]
VF = [0x600000, 0xA00000]
OF = [0xC00000, 0xE00000]
ST = [0x1000000, 0x1040000]
YP = [0x1080000, 0x1100000, 0x1180000, 0x1400000]
FLK = [0x1280000, 0x1288000]
FLO = [0x1300000, 0x1340000]
KEY = [0x12A4000, 0x12A6000]
X2R = 0x12A0000
NONCE = 0x12A2000
EPS = 1e-5
def f2u(x): return struct.unpack("<I", struct.pack("<f", x))[0]
QSCALE = 0.25 * 1.4426950408889634
LOG2E = 1.4426950408889634
SPIN_MAX = 1 << 18

CB, CBN = 131072, 20
LWQ = 8192
LST = CB + CBN * 512
LSA = LST
LPC = LST + 8192
LFX = LST + 8448
LVB = LST + 8704
LRD = LST + 10752
LFF = LST + 14848
LKY = LFF + 128
LCS = LFF + 768
LDS_BYTES = LFF + 1024

X0P, WQP, WOP, WSP, WRP, WGP, WUP, WDP, OUTP = 4, 6, 8, 10, 12, 14, 16, 18, 20
HEAD, QB, WAVE, TT, W1K, THR, CTR, SPIN, PASS, TAG, CG, TB, OA, KQ, OT, KG, IDX, WSUM = range(22, 40)
T0, T2 = 40, 42
A0 = 44
KB_, VB_, OB_, XB_ = 52, 54, 56, 58
RM, RR, RS_, ONES, C512, CEPS = 60, 61, 62, 63, 64, 65
CGP = 3
CA, CB_, YSEL = 100, 101, 30

def sp(i): return f"s[{i}:{i+1}]"

class VM:
    def __init__(self, k): self.k = k; self.q = []
    def issue(self, txt, tag=None):
        self.k.I(txt); self.q.append(tag)
    def wait(self, tag, extra=""):
        i = max(j for j, t in enumerate(self.q) if t == tag)
        n = len(self.q) - 1 - i
        assert n <= 63
        self.k.I(f"s_waitcnt vmcnt({n}){extra}")
    def drain(self, extra=""):
        self.k.I(f"s_waitcnt vmcnt(0){extra}"); self.q = []

def build_kernel():
    k = Kern(NAME + "_kernel", 256, 512, LDS_BYTES, 128, nagpr=128)
    I = k.I
    vm = VM(k)
    def lab(x): return f"L_{x}"
    def sadd64(d, b, const):
        I(f"s_add_u32 s{d}, s{b}, {hex(const)}"); I(f"s_addc_u32 s{d+1}, s{b+1}, 0")
    def swapop(sw, op, x, t):
        I(f"v_mov_b32 v{t}, v{x}"); k.nop(2); I(f"{sw} v{x}, v{t}"); I(f"{op} v{x}, v{x}, v{t}")
    def halfsum(op, x, t): swapop("v_permlane32_swap_b32", op, x, t)
    def rowreduce(op, x, t):
        swapop("v_permlane16_swap_b32", op, x, t); swapop("v_permlane32_swap_b32", op, x, t)
    def dppred(op, x, modes):
        for m in modes:
            k.nop(2); I(f"{op}_dpp v{x}, v{x}, v{x} {m} row_mask:0xf bank_mask:0xf")
    Q4 = ("quad_perm:[1,0,3,2]", "quad_perm:[2,3,0,1]")
    def allreduce(op, x, t):
        dppred(op, x, Q4 + ("row_half_mirror", "row_mirror")); rowreduce(op, x, t)
    def unpack(dlo, dhi, src):
        I(f"v_lshlrev_b32 v{dlo}, 16, v{src}"); I(f"v_and_b32 v{dhi}, 0xffff0000, v{src}")
    def bf16r(x):
        I(f"v_cvt_pk_bf16_f32 v{x}, v{x}, v{x}"); I(f"v_and_b32 v{x}, 0xffff0000, v{x}")
    def exec_lo(mask):
        I(f"s_mov_b32 exec_lo, {mask}"); I("s_mov_b32 exec_hi, 0")
    def exec_all(): I("s_mov_b64 exec, -1")
    def bar(lg=True):
        if lg: I("s_waitcnt lgkmcnt(0)")
        I("s_barrier")
    def poll(name, loads, tagregs, first_issued=False, check=None, chk_label=None):
        I(f"s_mov_b32 s{SPIN}, {SPIN_MAX}")
        SL = int(ENV("SLEEP", "0"))
        if chk_label: I(f"s_branch {lab(chk_label)}")
        elif first_issued: I(f"s_branch {lab(name+'_w')}")
        elif SL: I(f"s_branch {lab(name+'_l')}")
        k.L(lab(name))
        if SL: I(f"s_sleep {SL}")
        k.L(lab(name + "_l"))
        for l in loads: I(l)
        k.L(lab(name + "_w"))
        I("s_waitcnt vmcnt(0)")
        if chk_label: k.L(lab(chk_label))
        if check: check()
        else: I(f"v_cmp_ne_u32 vcc, s{TAG}, v{tagregs[0]}")
        for r in tagregs[1:]:
            I(f"v_cmp_ne_u32 {sp(T2)}, s{TAG}, v{r}")
            I(f"s_or_b64 vcc, vcc, {sp(T2)}")
        I(f"s_sub_u32 s{SPIN}, s{SPIN}, 1")
        I(f"s_cbranch_vccz {lab(name+'_ok')}")
        I(f"s_cbranch_scc0 {lab(name)}")
        k.L(lab(name + "_ok"))
        k.stampval(SPIN, "x" + name + "_spin")
        k.stamp(name="x" + name + "_ok")
        vm.q = []
    def mfma(d, a_, b_, c): I(f"v_mfma_f32_32x32x16_bf16 {vr(d,16)}, {a_}, {b_}, {vr(c,16) if c is not None else 0}")
    def rowstats(s1, s2, m, var, rstd):
        I(f"v_mul_f32 v{m}, s{C512}, v{s1}")
        I(f"v_mul_f32 v{var}, s{C512}, v{s2}")
        I(f"v_fma_f32 v{var}, -v{m}, v{m}, v{var}")
        I(f"v_max_f32 v{var}, 0, v{var}")
        I(f"v_add_f32 v{rstd}, s{CEPS}, v{var}")
        I(f"v_rsq_f32 v{rstd}, v{rstd}")

    ACC, WB = 16, 40
    CQ, CV, MV, AL = 96, 108, 76, 84
    MT, AT = [112, 114], [113, 115]
    S0, S1, P0, P1, VA, NEG, O, Q, KB = 16, 32, 48, 52, [56, 64], 72, 88, 104, 108
    AK, AV, AVS, VBASE = 112, 113, 114, 115
    XG, WR, VXO, VTK, RESM, RESR = 116, 120, 124, 125, 126, 127
    TK, TV = 64, 68
    def mfma16(d, a_, b_, first): I(f"v_mfma_f32_16x16x32_bf16 {vr(d,4)}, {a_}, {b_}, {0 if first else vr(d,4)}")
    AWO, ARS, AWS, AGU, ADN = 0, 32, 88, 112, 120

    I("s_cmp_ge_u32 s2, 256")
    I(f"s_cbranch_scc1 {lab('exit')}")
    k.stamp_begin()
    if ENV("DBGT"):
        I("s_memrealtime s[96:97]")
        I("s_memtime s[98:99]")
    I(f"s_load_dwordx4 s[4:7], s[0:1], 0")
    I(f"s_load_dwordx2 s[8:9], s[0:1], 16")
    I(f"s_load_dwordx2 s[10:11], s[0:1], 80")
    I(f"s_load_dwordx8 s[12:19], s[0:1], 32")
    I(f"s_load_dwordx2 s[20:21], s[0:1], 64")
    I("v_and_b32 v1, 63, v0")
    I("v_lshrrev_b32 v2, 6, v0")
    I("v_lshlrev_b32 v3, 4, v1")
    I(f"v_readfirstlane_b32 s{WAVE}, v2")
    I(f"s_and_b32 s{QB}, s2, 7")
    I(f"s_lshr_b32 s{HEAD}, s2, 3")
    if ENV("HX"):
        I(f"s_cmp_lt_u32 s{HEAD}, 16")
        I(f"s_cselect_b32 s{A0}, 8, 0")
        I(f"s_xor_b32 s{HEAD}, s{HEAD}, s{A0}")
    I(f"s_lshl_b32 s{TT}, s{QB}, 3")
    I(f"s_add_u32 s{TT}, s{TT}, s{WAVE}")
    I(f"s_lshl_b32 s{W1K}, s{WAVE}, 10")
    I("v_bfe_u32 v5, v1, 1, 2")
    I("v_bfe_u32 v6, v1, 3, 1")
    I("v_lshl_add_u32 v5, v6, 3, v5")
    I("v_bfe_u32 v6, v1, 4, 1")
    I("v_lshl_add_u32 v5, v6, 2, v5")
    I("v_bfe_u32 v6, v1, 5, 1")
    I("v_lshl_add_u32 v5, v6, 4, v5")
    I("v_mul_u32_u24 v5, 3072, v5")
    I("v_and_b32 v6, 1, v1")
    I("v_lshl_add_u32 v5, v6, 4, v5")
    I(f"s_lshl_b32 s{A0+1}, s{HEAD}, 5")
    I(f"v_add_u32 v5, s{A0+1}, v5")
    I("v_lshrrev_b32 v8, 4, v1")
    I("v_and_b32 v9, 7, v1")
    I("v_xor_b32 v8, v8, v9")
    I("v_lshlrev_b32 v8, 4, v8")
    I("v_lshrrev_b32 v9, 3, v1")
    I("v_lshl_add_u32 v8, v9, 10, v8")
    I(f"s_lshl_b32 s{A0}, s{TT}, 15")
    I(f"v_add_u32 v8, s{A0}, v8")
    I("v_xor_b32 v9, 64, v8")
    I("v_add_u32 v9, 0x2000, v9")
    XB3 = [A0 + 3, A0 + 4, A0 + 5]
    for b_ in range(3):
        I(f"s_mul_i32 s{XB3[b_]}, s{WAVE}, 12288")
        I(f"s_add_u32 s{XB3[b_]}, s{XB3[b_]}, {56*1024 + 4096*b_}")
        if b_:
            I(f"s_cmp_eq_u32 s{WAVE}, 7")
            I(f"s_cselect_b32 s{XB3[b_]}, {4096*(b_-1)}, s{XB3[b_]}")
    ROT = A0 + 6
    I(f"s_and_b32 s{ROT}, s{HEAD}, 3")
    I("s_waitcnt lgkmcnt(0)")
    def xstage(st):
        I(f"s_add_u32 s{A0}, s{ROT}, {st//2}")
        I(f"s_and_b32 s{A0}, s{A0}, 3")
        I(f"s_lshl_b32 s{A0}, s{A0}, 8")
        if st & 1: I(f"s_add_u32 s{A0}, s{A0}, 128")
        I(f"s_add_u32 s{T0}, s{X0P}, s{A0}")
        I(f"s_addc_u32 s{T0+1}, s{X0P+1}, 0")
        for i in range(4):
            if i == 2: sadd64(T0, T0, 16384)
            I(f"s_add_u32 m0, s{XB3[st % 3]}, {i*1024}")
            I("s_nop 0")
            vm.issue(f"global_load_lds_dwordx4 v{8 + (i&1)}, {sp(T0)}", f"x{st}")
    def wdma(j):
        I(f"s_mul_i32 s{A0}, s{ROT}, 12")
        I(f"s_add_u32 s{A0}, s{A0}, s{WAVE}")
        I(f"s_add_u32 s{A0}, s{A0}, {8*j}")
        I(f"s_sub_u32 s{A0+1}, s{A0}, 48")
        I(f"s_cmp_ge_u32 s{A0}, 48")
        I(f"s_cselect_b32 s{A0}, s{A0+1}, s{A0}")
        I(f"s_mul_i32 s{A0+1}, s{A0}, 21846")
        I(f"s_lshr_b32 s{A0+1}, s{A0+1}, 16")
        I(f"s_mul_i32 s{A0+2}, s{A0+1}, 3")
        I(f"s_sub_u32 s{A0}, s{A0}, s{A0+2}")
        I(f"s_mul_i32 s{A0+2}, s{A0+1}, {32*3072}")
        I(f"s_lshl_b32 s{T0}, s{A0}, 10")
        I(f"s_add_u32 s{A0+2}, s{A0+2}, s{T0}")
        I(f"s_add_u32 s{T0}, s{WQP}, s{A0+2}")
        I(f"s_addc_u32 s{T0+1}, s{WQP+1}, 0")
        I(f"s_lshl_b32 s{A0}, s{A0}, 14")
        I(f"s_lshl_b32 s{A0+1}, s{A0+1}, 10")
        I(f"s_add_u32 s{A0}, s{A0}, s{A0+1}")
        I(f"s_add_u32 m0, s{A0}, {LWQ}")
        I("s_nop 0")
        vm.issue(f"global_load_lds_dwordx4 v5, {sp(T0)}", f"W{j}")
    if ENV("CPF", "0") == "1":
        I(f"s_cmp_lg_u32 s{WAVE}, 7")
        I(f"s_cbranch_scc1 {lab('nocpf')}")
        I(f"s_lshl_b32 s{A0}, s{HEAD}, 13")
        I(f"v_lshl_add_u32 v12, v1, 7, s{A0}")
        I(f"v_cmp_gt_u32 vcc, {lab('exit')}-{lab('pc0')}, v12")
        I(f"s_getpc_b64 {sp(T0)}")
        k.L(lab("pc0"))
        I(f"s_and_saveexec_b64 {sp(T2)}, vcc")
        I(f"s_cbranch_execz {lab('cpf2')}")
        I(f"global_load_dword v127, v12, {sp(T0)}")
        k.L(lab("cpf2"))
        exec_all()
        k.L(lab("nocpf"))
    if ENV("ALLUP"):
        for j in range(8):
            if j < 6 and ENV("ALLUP") != "x": wdma(j)
            if ENV("ALLUP") != "w": xstage(j)
        k.stamp(name="a_issue")
        I("s_waitcnt vmcnt(0)")
        k.stamp(name="a_done")
        I("s_barrier")
        k.stamp(name="a_bar")
        I(f"s_branch {lab('end')}")
    UPW = int(ENV("UPW", "4"))
    UPX = int(ENV("UPX", "3"))
    I(f"v_mov_b32 v12, {hex(NONCE)}")
    vm.issue(f"global_load_dword v126, v12, {sp(WSP)} sc1", "nonce")
    wdma(0); xstage(0); wdma(1); xstage(1)
    if UPW > 2: wdma(2)
    if UPX > 2: xstage(2)
    for j in range(3, UPW): wdma(j)
    I(f"s_lshr_b32 s{CG}, s{HEAD}, 2")
    I(f"s_and_b32 s{TB}, s{HEAD}, 3")
    I(f"s_lshl_b32 s{A0}, s{QB}, 2")
    I(f"s_add_u32 s{TB}, s{TB}, s{A0}")
    I(f"s_and_b32 s{OA}, s{WAVE}, 1")
    I(f"s_lshr_b32 s{KQ}, s{WAVE}, 1")
    I(f"s_lshl_b32 s{OT}, s{TB}, 1")
    I(f"s_add_u32 s{OT}, s{OT}, s{OA}")
    I(f"s_lshl_b32 s{KG}, s{CG}, 2")
    I(f"s_add_u32 s{KG}, s{KG}, s{KQ}")
    I(f"s_mul_i32 s{CGP}, s{QB}, 28")
    I(f"s_min_u32 s{A0}, s{HEAD}, 27")
    I(f"s_add_u32 s{CGP}, s{CGP}, s{A0}")
    I(f"s_mov_b32 s{THR}, {hex(f2u(2.0**30)) if not ENV('THRZ') else 0}")
    I(f"s_mov_b32 s{ONES}, 0x3f803f80")
    I(f"s_mov_b32 s{C512}, {hex(f2u(1/512))}")
    I(f"s_mov_b32 s{CEPS}, {hex(f2u(EPS))}")
    def lane_terms():
        I("v_and_b32 v6, 31, v1")
        I("v_lshrrev_b32 v7, 5, v1")
    lane_terms()
    def w_addr():
        I("v_bfe_u32 v12, v1, 2, 2")
        I("v_lshl_add_u32 v12, v7, 4, v12")
        I("v_bfe_u32 v13, v1, 4, 1")
        I("v_lshl_add_u32 v12, v13, 2, v12")
        I("v_and_b32 v13, 3, v1")
        I("v_lshlrev_b32 v13, 3, v13")
        I("v_lshl_add_u32 v10, v12, 5, v13")
        I(f"v_add_u32 v10, {LWQ}, v10")
    w_addr()
    def wreads(dst, ad, ks):
        for sec in range(3):
            I(f"ds_read_b64_tr_b16 {vr(dst+4*sec,2)}, v{ad} offset:{sec*16384+ks*1024}")
            I(f"ds_read_b64_tr_b16 {vr(dst+4*sec+2,2)}, v{ad} offset:{sec*16384+ks*1024+256}")
    def qmfmas(wb, xa, xb, first, between=None):
        for i, (d, A_, B_) in enumerate(((ACC, vr(wb,4), xa), (ACC+4, vr(wb,4), xb), (ACC+8, vr(wb+4,4), xa),
                                         (ACC+12, vr(wb+4,4), xb), (ACC+16, xa, vr(wb+8,4)), (ACC+20, xb, vr(wb+8,4)))):
            mfma16(d, A_, B_, first)
            if between: between(i)
    I("v_bfe_u32 v12, v1, 1, 3")
    I("v_and_b32 v13, 15, v1")
    I("v_lshlrev_b32 v13, 7, v13")
    I("v_lshrrev_b32 v14, 4, v1")
    I("v_xor_b32 v14, v14, v12")
    I("v_lshl_add_u32 v2, v14, 4, v13")
    I("v_xor_b32 v4, 64, v2")
    def xfrags(st):
        I(f"v_add_u32 v14, s{XB3[st % 3]}, v2")
        I(f"v_add_u32 v15, s{XB3[st % 3]}, v4")
        vm.wait(f"x{st}")
        for h in range(2):
            for t in range(2): I(f"ds_read_b128 {ar(16*st+8*h+4*t,4)}, v{14+h} offset:{2048*t}")
    k.stamp(name="q0_issue")
    GU, ON = 76, 92
    for r in range(4): I(f"v_mov_b32 v{ON+r}, s{ONES}")
    xfrags(0)
    vm.wait("W1")
    I(f"v_readfirstlane_b32 s{TAG}, v126")
    I(f"s_mul_i32 s{TAG}, s{TAG}, 0x9E3779B1")
    I(f"s_add_u32 s{TAG}, s{TAG}, 0x7F4A7C15")
    I("s_barrier")
    k.stamp(name="q0_W")
    def capture(f):
        n0 = len(k.lines); f(); out = k.lines[n0:]; del k.lines[n0:]; return out
    def weave(main, fill):
        atoms = []; masked = False
        for l in fill:
            opens = ("exec" in l.split(",")[0] or "saveexec" in l) and "exec, -1" not in l
            if masked: atoms[-1].append(l)
            else: atoms.append([l])
            if opens: masked = True
            if "exec, -1" in l: masked = False
        per = -(-len(atoms) // len(main))
        for i, l in enumerate(main):
            k.lines.append(l)
            for at in atoms[i*per:(i+1)*per]: k.lines.extend(at)
    CSA = 96
    def colsum_reads():
        I(f"v_add_u32 v13, s{W1K}, v10")
        wreads(100, 13, 0)
    def colsum_mm(i):
        for sec in range(2): mfma16(CS3[sec], vr(100+4*sec,4), vr(ON,4), i == 0)
        mfma16(CS3[2], vr(ON,4), vr(108,4), i == 0)
    CS3 = [96, 116, 120]
    def colsum_write():
        I(f"s_lshl_b32 s{A0}, s{WAVE}, 8")
        I(f"s_add_u32 s{A0}, s{A0}, {LRD}")
        I("v_and_b32 v13, 48, v1")
        I(f"v_add_u32 v13, s{A0}, v13")
        I("v_and_b32 v14, 15, v1")
        I(f"v_lshl_add_u32 v14, v14, 2, s{A0}")
        I(f"ds_write_b32 v14, v{CS3[2]} offset:128")
        I("s_mov_b32 exec_lo, 0x00010001"); I("s_mov_b32 exec_hi, 0x00010001")
        for sec in range(2): I(f"ds_write_b128 v13, {vr(CS3[sec],4)} offset:{64*sec}")
        exec_all()
    def sum8(src, dst):
        I("v_lshlrev_b32 v13, 2, v1")
        I(f"v_add_u32 v14, {src}, v13")
        for w in range(8): I(f"ds_read_b32 v{104+w}, v14 offset:{256*w}")
        I(f"v_add_u32 v13, {dst}, v13")
        I("s_waitcnt lgkmcnt(0)")
        for a_, b_ in ((0,1),(2,3),(4,5),(6,7),(0,2),(4,6),(0,4)): I(f"v_add_f32 v{104+a_}, v{104+a_}, v{104+b_}")
        I("ds_write_b32 v13, v104")
    def wsave():
        I(f"s_mul_i32 s{A0}, s{WAVE}, 6144")
        I(f"s_add_u32 s{A0}, s{A0}, {LWQ}")
        I(f"v_add_u32 v13, s{A0}, v3")
        for i in range(6): I(f"ds_read_b128 {ar(AWS+4*i,4)}, v13 offset:{1024*i}")
    def wbase(q):
        I(f"s_add_u32 s{A0}, s{ROT}, {q}")
        I(f"s_and_b32 s{A0}, s{A0}, 3")
        I(f"s_lshl_b32 s{A0}, s{A0}, 12")
        I(f"v_add_u32 v11, s{A0}, v10")
    wbase(0)
    wreads(WB, 11, 0)
    wreads(WB + 12, 11, 1)
    ready = {2: 1, 5: 2, 8: 3, 10: 4, 13: 5}
    def const_area():
        I("v_and_b32 v13, 11, v0")
        I(f"v_mov_b32 v14, s{ONES}")
        I("v_cmp_eq_u32 vcc, 0, v13")
        I("v_lshlrev_b32 v13, 4, v0")
        I(f"v_add_u32 v13, {CB}, v13")
        I("v_cndmask_b32 v100, 0, v14, vcc")
        for r in range(1, 4): I(f"v_mov_b32 v{100+r}, v100")
        I("ds_write_b128 v13, v[100:103]")
        I(f"v_cmp_gt_u32 vcc, {(CBN*512 - 8192)//16}, v0")
        I(f"s_and_saveexec_b64 {sp(T2)}, vcc")
        I("ds_write_b128 v13, v[100:103] offset:8192")
        exec_all()
    def stats0():
        I("v_lshrrev_b32 v12, 4, v1")
        I("v_lshlrev_b32 v12, 2, v12")
        I("v_and_b32 v13, 15, v1")
        I("v_sub_u32 v12, v13, v12")
        for t in range(2): I(f"v_mov_b32 v{ON+t}, 0")
        for r in range(4):
            I(f"v_cmp_eq_u32 vcc, {r}, v12")
            k.nop(2)
            for t in range(2): I(f"v_cndmask_b32 v{ON+t}, v{ON+t}, v{GU+4*t+r}, vcc")
        for t in range(2): rowreduce("v_add_f32", ON + t, 12)
        for t in range(2): rowstats(GU + 8 + 4*t, ON + t, MT[t], 12, AT[t])
    ready = {5: 3, 10: 5}
    def smf(q_, half):
        ya, yb = ar(8*q_,4), ar(8*q_+4,4)
        if half == 0: mfma16(GU, ya, ya, q_ == 0); mfma16(GU + 4, yb, yb, q_ == 0)
        else: mfma16(GU + 8, vr(ON,4), ya, q_ == 0); mfma16(GU + 12, vr(ON,4), yb, q_ == 0)
    for ks in range(16):
        st = ks // 2
        pre = 0
        QP0 = eval(ENV("QP0", "{0: 3, 1: 2, 2: 1, 3: 3, 5: 2, 6: 1, 7: 0, 8: 3, 10: 2, 11: 1, 12: 0, 13: 3, 14: 2, 15: 1}"))
        if ks in QP0: I(f"s_setprio {QP0[ks]}")
        if ks % 2 == 0 and st + 1 < 8:
            xfrags(st + 1); pre = 4
        if ks + 2 in ready:
            vm.wait(f"W{ready[ks+2]}")
            I("s_barrier")
        if ks == 13: bar()
        if ks < 14:
            if (ks + 2) % 4 == 0: wbase((ks + 2)//4)
            wreads(WB + 12*((ks+2)%3), 11, (ks + 2) % 4)
            I(f"s_waitcnt lgkmcnt({min(15, 12 + pre) if ks % 2 == 0 else 12})")
        elif ks == 14: I("s_waitcnt lgkmcnt(0)")
        def loads():
            if UPW + ks < 6 and ENV("WFAST"): wdma(UPW + ks)
            if ks == 0 and UPX == 2: xstage(2)
            if ks == 0: xstage(3)
            if ks % 2 == 1 and st + 4 < 8: xstage(st + 4)
            if ks % 2 == 0 and UPW + ks//2 < 6 and not ENV("WFAST"): wdma(UPW + ks//2)
        def mm():
            xa, xb = ar(8*ks,4), ar(8*ks+4,4)
            if ks < 14: smf(ks, 0)
            if ks == 13:
                smf(13, 1)
                for q_ in (14, 15): smf(q_, 0); smf(q_, 1)
            qmfmas(WB + 12*(ks%3), xa, xb, ks == 0)
            if ks < 13: smf(ks, 1)
            if ks == 10: I("s_waitcnt lgkmcnt(10)"); colsum_mm(0)
            if ks == 11: I("s_waitcnt lgkmcnt(6)"); colsum_mm(1)
        fill = capture(loads)
        if ks == 9: fill += capture(colsum_reads)
        if ks == 12: fill += capture(colsum_write)
        if ks == 13: fill += capture(lambda: sum8(LRD, LPC)) + capture(const_area)
        if ks == 14: fill += capture(wsave) + capture(stats0)
        weave(capture(mm), fill)
        if ks == 10: wreads(100, 13, 8)
        k.stamp(name=f"xq0k{ks}")
    k.stamp(name="q0_loop")
    def bounce_params():
        I(f"s_lshl_b32 s{A0}, s{WAVE}, 8")
        I(f"s_add_u32 s{A0}, s{A0}, {LVB}")
        I("v_and_b32 v13, 15, v1")
        I(f"v_lshl_add_u32 v12, v13, 2, s{A0}")
        for t in range(2):
            I(f"ds_write_b32 v12, v{MT[t]} offset:{64*t}")
            I(f"ds_write_b32 v12, v{AT[t]} offset:{128+64*t}")
        I("v_and_b32 v14, 48, v1")
        I(f"v_add_u32 v12, s{A0}, v14")
        for t in range(2):
            I(f"ds_read_b128 {vr(MV+4*t,4)}, v12 offset:{64*t}")
            I(f"ds_read_b128 {vr(AL+4*t,4)}, v12 offset:{128+64*t}")
        I(f"v_add_u32 v12, {LPC}, v14")
        for sec in range(2): I(f"ds_read_b128 {vr(CQ+4*sec,4)}, v12 offset:{64*sec}")
        I("v_lshlrev_b32 v12, 2, v13")
        I(f"v_add_u32 v12, {LPC + 128}, v12")
        I(f"ds_read_b32 v{CV}, v12")
    bounce_params()

    def yp_addr(d, L):
        I(f"v_lshrrev_b32 v{d}, 4, v0")
        I(f"v_mul_u32_u24 v{d}, {224*64}, v{d}")
        I(f"v_and_b32 v{d+1}, 15, v0")
        I(f"v_lshl_add_u32 v{d}, v{d+1}, 2, v{d}")
        I(f"s_lshl_b32 s{T2}, s{CGP}, 6")
        I(f"s_add_u32 s{T2}, s{T2}, {hex(YP[L])}")
        I(f"v_add_u32 v{d}, s{T2}, v{d}")

    def q_epilogue(L):
        n = f"l{L}"
        sadd64(KB_, WSP, KF[L]); sadd64(VB_, WSP, VF[L]); sadd64(OB_, WSP, OF[L])
        for t in range(2): I(f"v_mul_f32 v{13+t}, {hex(f2u(QSCALE))}, v{AT[t]}")
        I(f"s_lshl_b32 s{A0}, s{HEAD}, 16")
        I(f"s_lshl_b32 s{A0+1}, s{TT}, 10")
        I(f"s_add_u32 s{A0}, s{A0}, s{A0+1}")
        I(f"v_add_u32 v4, s{A0}, v3")
        I(f"v_add_u32 v15, s{W1K}, v3")
        I("v_add_u32 v5, 0x10000, v15")
        I("s_waitcnt lgkmcnt(0)")
        for sec in (1, 0):
            for t in range(2):
                for r in range(4): I(f"v_fma_f32 v{ACC+8*sec+4*t+r}, -v{MT[t]}, v{CQ+4*sec+r}, v{ACC+8*sec+4*t+r}")
            for t in range(2):
                for r in range(4): I(f"v_mul_f32 v{ACC+8*sec+4*t+r}, v{AT[t] if sec else 13+t}, v{ACC+8*sec+4*t+r}")
            d = TK if sec else Q
            for i in range(4): I(f"v_cvt_pk_bf16_f32 v{d+i}, v{ACC+8*sec+2*i}, v{ACC+8*sec+2*i+1}")
        I(f"v_fma_f32 v{ACC+16}, -v{MV}, v{CV}, v{ACC+16}")
        I(f"v_permlane16_swap_b32 v{TK}, v{TK+2}")
        I(f"v_permlane16_swap_b32 v{TK+1}, v{TK+3}")
        I(f"v_permlane16_swap_b32 v{Q}, v{Q+2}")
        I(f"v_permlane16_swap_b32 v{Q+1}, v{Q+3}")
        vm.issue(f"global_store_dwordx4 v4, {vr(TK,4)}, {sp(KB_)} sc1")
        I(f"ds_write_b128 v15, {vr(TK,4)}")
        mfma(S0, vr(TK,4), vr(Q,4), None)
        for r in range(1, 8): I(f"v_fma_f32 v{ACC+16+r}, -v{MV+r}, v{CV}, v{ACC+16+r}")
        for r in range(8): I(f"v_mul_f32 v{ACC+16+r}, v{AL+r}, v{ACC+16+r}")
        for i in range(4): I(f"v_cvt_pk_bf16_f32 v{TV+i}, v{ACC+16+2*i}, v{ACC+16+2*i+1}")
        I(f"v_max3_f32 v2, v{S0}, v{S0+1}, v{S0+2}")
        I(f"v_max3_f32 v13, v{S0+3}, v{S0+4}, v{S0+5}")
        I(f"v_permlane32_swap_b32 v{TV}, v{TV+2}")
        I(f"v_permlane32_swap_b32 v{TV+1}, v{TV+3}")
        vm.issue(f"global_store_dwordx4 v4, {vr(TV,4)}, {sp(VB_)} sc1")
        I(f"ds_write_b128 v5, {vr(TV,4)}")
        if L == 0:
            I("s_cmp_ge_u32 s2, 224")
            I(f"s_cbranch_scc1 {lab('nomark')}")
            yp_addr(10, 0)
            I("v_mov_b32 v12, -1")
            I(f"global_store_dword v10, v12, {sp(WSP)} sc1")
            for b_ in range(1, 4):
                I(f"v_add_u32 v11, {hex(YP[b_] - YP[0])}, v10")
                I(f"global_store_dword v11, v12, {sp(WSP)} sc1")
            k.L(lab("nomark"))
        for r in range(6, 16, 4): I(f"v_max3_f32 v2, v2, v{S0+r}, v{S0+r+1}")
        for r in range(8, 16, 4): I(f"v_max3_f32 v13, v13, v{S0+r}, v{S0+r+1}")
        I("v_max_f32 v2, v2, v13")
        halfsum("v_max_f32", 2, 13)
        for r in range(16): I(f"v_sub_f32 v{NEG+r}, 0, v2")
        I("v_and_b32 v8, 15, v1")
        I("v_bfe_u32 v9, v1, 4, 1")
        I("v_lshlrev_b32 v10, 4, v8")
        I("v_lshl_add_u32 v10, v7, 8, v10")
        I(f"v_lshl_add_u32 v{VBASE}, v9, 16, v10")
        I(f"v_add_u32 v{VBASE}, 0x10000, v{VBASE}")
        I("v_xor_b32 v9, 1, v9")
        I(f"v_lshlrev_b32 v{AVS}, 13, v9")
        I(f"v_mov_b32 v{AK}, v3")
        I(f"v_mov_b32 v{AV}, v{VBASE}")
        I(f"s_mov_b32 s{PASS}, 0")
        I(f"s_lshl_b32 s{A0}, s{HEAD}, 10")
        I(f"s_add_u32 s{A0}, s{A0}, {hex(FLK[L])}")
        I(f"v_lshl_add_u32 v8, v1, 7, s{A0}")
        I(f"s_lshl_b32 s{A0+1}, s{QB}, 7")
        I(f"s_add_u32 s{A0}, s{A0}, s{A0+1}")
        I(f"v_mov_b32 v9, s{A0}")
        bar()

    def ffn_gu(m_):
        I(f"s_lshl_b32 s{A0+1}, s{CGP}, 4")
        I(f"v_mul_u32_u24 v14, 3584, v0")
        I(f"v_add_u32 v14, s{A0+1}, v14")
        vm.issue(f"global_load_dwordx4 {ar(AGU+4*m_,4)}, v14, {sp(WUP if m_ else WGP)}")
    def ffn_dn():
        I(f"s_lshl_b32 s{A0+1}, s{CGP}, 13")
        I(f"s_add_u32 s{A0+1}, s{A0+1}, s{W1K}")
        I(f"v_add_u32 v14, s{A0+1}, v3")
        vm.issue(f"global_load_dwordx4 {ar(ADN,4)}, v14, {sp(WDP)}")
    def attention(L):
        n = f"l{L}"
        def max16(dst, S, first):
            if first:
                I(f"v_max3_f32 v{dst}, v{S}, v{S+1}, v{S+2}"); rest = list(range(3, 16))
            else: rest = list(range(16))
            while rest:
                if len(rest) >= 2:
                    I(f"v_max3_f32 v{dst}, v{dst}, v{S+rest[0]}, v{S+rest[1]}"); rest = rest[2:]
                else:
                    I(f"v_max_f32 v{dst}, v{dst}, v{S+rest[0]}"); rest = rest[1:]
        def prime():
            I(f"ds_read_b128 {vr(KB,4)}, v{AK}")
            I(f"ds_read_b128 {vr(VA[0],4)}, v{AV}")
            I(f"ds_read_b128 {vr(VA[0]+4,4)}, v{AV} offset:512")
            I("s_waitcnt lgkmcnt(0)")
            mfma(S0, vr(KB,4), vr(Q,4), None if ENV("C0") else NEG)
            I(f"ds_read_b128 {vr(KB,4)}, v{AK} offset:1024")
            k.nop(11)
        def setup():
            halfsum("v_max_f32", 2, 7)
            for r in range(16): I(f"v_sub_f32 v{NEG+r}, 0, v2")
            I(f"v_mov_b32 v{AK}, v3")
            I(f"v_mov_b32 v{AV}, v{VBASE}")
            for r in range(16): I(f"v_mov_b32 v{O+r}, 0")
            for r in range(4): I(f"v_mov_b32 v{P1+r}, 0")
            for r in range(4): I(f"v_mov_b32 v{VA[1]+4+r}, 0")
            prime()
        def tile(u, extra=None, nokread=False, noqk=False, novread=False, first=False):
            extra = extra or {}
            if "p" in extra: I(f"s_setprio {extra['p']}")
            Sc, Sn = (S0, S1) if u % 2 == 0 else (S1, S0)
            Vc, Vo = VA[u % 2], VA[1 - u % 2]
            E = lambda r: I(f"v_exp_f32 v{Sc+r}, v{Sc+r}")
            Cv = lambda P, r, b: I(f"v_cvt_pk_bf16_f32 v{P+r}, v{Sc+b+2*r}, v{Sc+b+2*r+1}")
            E(0); E(1)
            if not first: mfma(O, vr(Vo+4,4), vr(P1,4), O)
            if 0 in extra: extra[0]()
            E(2); E(3); E(4)
            I("s_waitcnt lgkmcnt(0)")
            E(5)
            if not noqk: mfma(Sn, vr(KB,4), vr(Q,4), None if ENV("C0") else NEG)
            E(6)
            if not nokread: I(f"ds_read_b128 {vr(KB,4)}, v{AK} offset:{(u+2)*1024}")
            E(7)
            if not novread: I(f"ds_read_b128 {vr(Vo,4)}, v{AV} offset:{(u+1)*1024}")
            for r in range(4): Cv(P0, r, 0)
            E(8)
            if not novread: I(f"ds_read_b128 {vr(Vo+4,4)}, v{AV} offset:{(u+1)*1024+512}")
            E(9)
            mfma(O, vr(Vc,4), vr(P0,4), None if first else O)
            if 1 in extra: extra[1]()
            for r in range(10, 16): E(r)
            for r in range(4): Cv(P1, r, 8)
        def bump():
            I(f"v_add_u32 v{AK}, 0x2000, v{AK}")
            I(f"v_add_u32 v{AV}, v{AVS}, v{AV}")
        prime()
        k.stamp(name=f"x{n}_setup")
        I("s_setprio 3")
        def publish_kv():
            vm.drain()
            I("s_barrier")
            I(f"s_cmp_lg_u32 s{WAVE}, 0")
            I(f"s_cbranch_scc1 {lab(n+'_noflag')}")
            I(f"v_mov_b32 v14, s{TAG}")
            I("s_mov_b64 exec, 1")
            I(f"global_store_dword v9, v14, {sp(WSP)} sc1")
            exec_all()
            k.L(lab(n + "_noflag"))
        pl = f"global_load_dword v14, v8, {sp(WSP)} sc1"
        def poll_issue():
            I("s_mov_b64 exec, 0xff"); I(pl); exec_all()
        def poll_check():
            I("s_mov_b64 exec, 0xff")
            if L == 1:
                I(f"s_lshr_b32 s{A0}, s{IDX}, 8")
                I(f"s_bitset0_b32 exec_lo, s{A0}")
            poll(n + "_pk", [pl], [14], first_issued=True)
            exec_all()
        def stg(sl): return ARS + 8*(sl-1) if L == 0 else 64 + 8*((sl-1) % 6)
        def rload(sl):
            if L == 1:
                I(f"s_lshr_b32 s{A0+1}, s{IDX}, 8")
                I(f"s_sub_u32 s{A0+1}, s{A0+1}, s{QB}")
                I(f"s_and_b32 s{A0+1}, s{A0+1}, 7")
                if sl == 7:
                    I(f"s_cmp_eq_u32 s{A0+1}, 0")
                    I(f"s_cselect_b32 s{A0}, 7, s{A0+1}")
                    I("s_mov_b64 exec, 0xff")
                    poll(n + "_pk7", [pl], [14], first_issued=True)
                    exec_all()
                else:
                    I(f"s_sub_u32 s{A0+1}, s{A0+1}, 1")
                    I(f"s_cmp_lt_u32 s{A0+1}, {sl}")
                    I(f"s_cselect_b32 s{A0}, {sl+1}, {sl}")
                I(f"s_add_u32 s{A0}, s{QB}, s{A0}")
            else:
                I(f"s_add_u32 s{A0}, s{QB}, {sl}")
            I(f"s_and_b32 s{A0}, s{A0}, 7")
            I(f"s_sub_u32 s{A0}, s{A0}, s{QB}")
            I(f"s_lshl_b32 s{A0}, s{A0}, 13")
            I(f"v_add_u32 v13, s{A0}, v4")
            vm.issue(f"global_load_dwordx4 {ar(stg(sl),4)}, v13, {sp(KB_)} sc1", f"r{sl}")
            vm.issue(f"global_load_dwordx4 {ar(stg(sl)+4,4)}, v13, {sp(VB_)} sc1", f"r{sl}")
        def rwrite(sl):
            if f"r{sl}" in vm.q: vm.wait(f"r{sl}")
            I(f"ds_write_b128 v15, {ar(stg(sl),4)} offset:{sl*8192}")
            I(f"ds_write_b128 v5, {ar(stg(sl)+4,4)} offset:{sl*8192}")
        PUB, PI, PC = [int(x) for x in ENV("POLL", "1,4,5").split(",")]
        PR = {}
        if ENV("PBAL", "1") == "1":
            PR = {4: 2, 6: 1, 7: 0, 8: 3, 11: 2, 12: 1, 13: 0, 14: 3, 18: 2, 20: 1, 21: 0, 22: 3, 30: 2, 34: 1, 36: 0, 38: 3}
        for u in range(8):
            ex = {}
            if u == PUB: ex[0] = publish_kv
            if u == PI: ex[0] = poll_issue
            if u == PC: ex[0] = lambda: (poll_check(), rload(1), rload(2))
            if u in PR: ex["p"] = PR[u]
            tile(u, ex, nokread=(u >= 6), noqk=(u == 7), novread=(u == 7), first=(u == 0))
        bump()
        k.stamp(name=f"x{n}_ch0a")
        rwrite(1)
        B2 = ENV("B2", "0") == "1"
        if B2: rwrite(2)
        bar()
        k.stamp(name=n + "_c0")
        prime()
        def wo_addr():
            I(f"s_lshl_b32 s{A0}, s{WAVE}, 16")
            I(f"s_lshl_b32 s{A0+1}, s{CG}, 7")
            I(f"s_add_u32 s{A0}, s{A0}, s{A0+1}")
            I("v_lshrrev_b32 v2, 3, v1")
            I(f"v_lshl_add_u32 v2, v2, 10, s{A0}")
            I("v_and_b32 v14, 7, v1")
            I("v_lshl_add_u32 v2, v14, 4, v2")
        def wo_load(i):
            vm.issue(f"global_load_dwordx4 {ar(AWO+4*i,4)}, v2, {sp(WOP)}", "wo")
            if i < 7: I("v_add_u32 v2, 0x2000, v2")
        def misc_loads():
            I(f"s_lshl_b32 s{A0}, s{KG}, 9")
            I(f"s_lshl_b32 s{A0+1}, s{OT}, 15")
            I(f"s_add_u32 s{A0}, s{A0}, s{A0+1}")
            I("v_and_b32 v10, 15, v1")
            I(f"v_lshl_add_u32 v{VXO}, v10, 4, s{A0}")
            I("v_lshrrev_b32 v10, 5, v1")
            I(f"v_lshl_add_u32 v{VXO}, v10, 8, v{VXO}")
            I("v_bfe_u32 v10, v1, 4, 1")
            I(f"v_lshl_add_u32 v{VXO}, v10, 14, v{VXO}")
            I("v_and_b32 v10, 31, v1")
            I(f"s_lshl_b32 s{A0}, s{OT}, 5")
            I(f"v_add_u32 v{VTK}, s{A0}, v10")
            I("v_lshrrev_b32 v10, 5, v1")
            I(f"s_lshl_b32 s{A0}, s{KG}, 5")
            I(f"v_lshl_add_u32 v14, v10, 3, s{A0}")
            vm.issue(f"global_load_dwordx2 {vr(WR,2)}, v14, {sp(WRP)}")
            vm.issue(f"global_load_dwordx2 {vr(WR+2,2)}, v14, {sp(WRP)} offset:16")
            I(f"v_lshl_add_u32 v14, v{VTK}, 10, v14")
            vm.issue(f"global_load_dwordx2 {vr(XG,2)}, v14, {sp(X0P)}")
            vm.issue(f"global_load_dwordx2 {vr(XG+2,2)}, v14, {sp(X0P)} offset:16")
        sched = {
            1: {(0,0): lambda: rload(3), (3,0): lambda: rload(4), (4,0): lambda: rwrite(2), (6,0): bar},
            2: {(0,0): lambda: rload(5), (3,0): lambda: rload(6), (4,0): lambda: rwrite(3), (5,0): lambda: rwrite(4), (6,0): bar},
            3: {(0,0): lambda: rload(7)},
            4: {(0,0): lambda: rwrite(5), (1,0): lambda: rwrite(6), (2,0): lambda: rwrite(7), (6,0): bar},
        }
        def touches():
            I(f"s_cmp_ge_u32 s{WAVE}, 5")
            I(f"s_cbranch_scc1 {lab('t_done')}")
            I(f"s_cmp_ge_u32 s{WAVE}, 2")
            I(f"s_cbranch_scc1 {lab('t_lin')}")
            I(f"s_mul_i32 s{A0}, s{QB}, 7")
            I(f"s_lshr_b32 s{A0}, s{A0}, 1")
            I(f"s_lshl_b32 s{A0}, s{A0}, 7")
            I(f"s_mul_i32 s{A0+1}, s{HEAD}, {16*3584}")
            I(f"s_add_u32 s{A0}, s{A0}, s{A0+1}")
            I("v_lshrrev_b32 v14, 2, v1")
            I("v_mul_u32_u24 v14, 3584, v14")
            I("v_and_b32 v10, 3, v1")
            I("v_lshl_add_u32 v14, v10, 7, v14")
            I(f"v_add_u32 v14, s{A0}, v14")
            I(f"s_cmp_eq_u32 s{WAVE}, 0")
            I(f"s_cselect_b32 s{T0}, s{WGP}, s{WUP}")
            I(f"s_cselect_b32 s{T0+1}, s{WGP+1}, s{WUP+1}")
            I(f"s_branch {lab('t_go')}")
            k.L(lab("t_lin"))
            I(f"s_lshl_b32 s{A0}, s{CGP}, 13")
            I(f"s_lshl_b32 s{A0+1}, s{HEAD}, 14")
            I(f"s_and_b32 s{A0+2}, s{WAVE}, 1")
            I(f"s_lshl_b32 s{A0+2}, s{A0+2}, 13")
            I(f"s_add_u32 s{A0+1}, s{A0+1}, s{A0+2}")
            I(f"s_cmp_eq_u32 s{WAVE}, 2")
            I(f"s_cselect_b32 s{A0}, s{A0}, s{A0+1}")
            I(f"s_cselect_b32 s{T0}, s{WDP}, s{WOP}")
            I(f"s_cselect_b32 s{T0+1}, s{WDP+1}, s{WOP+1}")
            I(f"v_lshl_add_u32 v14, v1, 7, s{A0}")
            k.L(lab("t_go"))
            I(f"global_load_dword v9, v14, {sp(T0)}")
            k.L(lab("t_done"))
        NU = 5
        if B2:
            del sched[1][(4,0)]; del sched[1][(6,0)]
            for t_ in (11, 12, 13, 14, 18, 20, 21): PR.pop(t_, None)
            PR.update({15: 2, 19: 1, 21: 0})
        if L == 0:
            NU = 6
            def pretouch():
                if ENV("PT") == "1":
                    I(f"s_cmp_lg_u32 s{WAVE}, 6")
                    I(f"s_cbranch_scc1 {lab('pt_done')}")
                    I("v_mul_u32_u24 v14, 0x50000, v1")
                    I(f"global_load_dword v11, v14, {sp(WSP)}")
                    I("v_lshlrev_b32 v14, 15, v1")
                    I(f"global_load_dword v11, v14, {sp(OUTP)}")
                    k.L(lab("pt_done"))
                else:
                    I("v_mul_u32_u24 v14, 0xa000, v0")
                    I(f"global_load_dword v11, v14, {sp(WSP)}")
                    I("v_lshlrev_b32 v14, 12, v0")
                    I(f"global_load_dword v11, v14, {sp(OUTP)}")
            if ENV("PT"): sched[2][(7,0)] = pretouch
            if ENV("TL", "1") == "0":
                sched[2][(6,1)] = touches
                sched[3][(3,0)] = wo_addr
                for i in range(4): sched[3][(4 + i, 0)] = (lambda i=i: wo_load(i))
                for i, u in enumerate((3, 4, 5, 7)): sched[4][(u, 0)] = (lambda i=i: wo_load(4 + i))
                sched[5] = {(0,0): lambda: ffn_gu(0), (2,0): misc_loads, (4,0): lambda: ffn_gu(1), (6,0): ffn_dn}
            else:
                sched[3][(0,1)] = touches
                sched[4][(3,0)] = wo_addr
                for i, u in enumerate((4, 5, 7)): sched[4][(u, 0)] = (lambda i=i: wo_load(i))
                sched[5] = {(i, 0): (lambda i=i: wo_load(3 + i)) for i in range(5)}
                sched[5][(5,0)] = lambda: ffn_gu(0)
                sched[5][(6,0)] = lambda: ffn_gu(1)
                sched[5][(7,0)] = ffn_dn
                sched[5][(7,1)] = misc_loads
            PR[40] = 3
        else:
            sched[2][(7,0)] = poll_issue
        for c in range(1, NU):
            for u in range(8):
                ex = {sl: f for (uu, sl), f in sched[c].items() if uu == u}
                if 8*c + u in PR: ex["p"] = PR[8*c + u]
                tile(u, ex)
            bump()
            k.stamp(name=f"x{n}_ch{c}")
        I(f"s_mov_b32 s{CTR}, {NU}")
        k.lines.append(".p2align 6")
        k.L(lab(n + "_loop"))
        if ENV("PEND", "1") == "0":
            I(f"s_cmp_lt_u32 s{CTR}, 5"); I(f"s_cbranch_scc1 {lab(n+'_pd')}")
            I("s_setprio 2")
            I(f"s_cmp_lt_u32 s{CTR}, 6"); I(f"s_cbranch_scc1 {lab(n+'_pd')}")
            I("s_setprio 1")
            I(f"s_cmp_lt_u32 s{CTR}, 7"); I(f"s_cbranch_scc1 {lab(n+'_pd')}")
            I("s_setprio 0")
            k.L(lab(n + "_pd"))
            for u in range(8): tile(u)
        else:
            I(f"s_cmp_lt_u32 s{CTR}, 6"); I(f"s_cbranch_scc1 {lab(n+'_pd')}")
            I("s_setprio 2")
            I(f"s_cmp_lt_u32 s{CTR}, 7"); I(f"s_cbranch_scc1 {lab(n+'_pd')}")
            I("s_setprio 1")
            k.L(lab(n + "_pd"))
            for u in range(8):
                if u == 5:
                    I(f"s_cmp_lt_u32 s{CTR}, 7"); I(f"s_cbranch_scc1 {lab(n+'_pe')}")
                    I("s_setprio 0")
                    k.L(lab(n + "_pe"))
                tile(u)
        bump()
        I(f"s_add_u32 s{CTR}, s{CTR}, 1")
        I(f"s_cmp_lt_u32 s{CTR}, 8")
        I(f"s_cbranch_scc1 {lab(n+'_loop')}")
        mfma(O, vr(VA[1]+4,4), vr(P1,4), O)
        I("s_waitcnt lgkmcnt(0)")
        k.stamp(name=n + "_attn")
        k.nop(12)
        I(f"s_cmp_lg_u32 s{PASS}, 0")
        I(f"s_cbranch_scc1 {lab(n+'_fin')}")
        I(f"v_cmp_nge_f32 vcc, s{THR}, v{O+8}")
        k.nop(2)
        I(f"s_cbranch_vccz {lab(n+'_fin')}")
        I(f"s_mov_b32 s{PASS}, 1")
        I(f"v_mov_b32 v{AK}, v3")
        I("v_mov_b32 v2, 0xff800000")
        I(f"s_mov_b32 s{CTR}, 0")
        k.L(lab(n + "_maxloop"))
        I(f"ds_read_b128 {vr(KB,4)}, v{AK}")
        I("s_waitcnt lgkmcnt(0)")
        mfma(S0, vr(KB,4), vr(Q,4), None)
        I(f"v_add_u32 v{AK}, 0x400, v{AK}")
        k.nop(12)
        max16(2, S0, False)
        I(f"s_add_u32 s{CTR}, s{CTR}, 1")
        I(f"s_cmp_lt_u32 s{CTR}, 64")
        I(f"s_cbranch_scc1 {lab(n+'_maxloop')}")
        setup()
        I(f"s_mov_b32 s{CTR}, 0")
        I(f"s_branch {lab(n+'_loop')}")
        k.L(lab(n + "_fin"))
        I(f"v_rcp_f32 v2, v{O+8}")
        I("s_nop 0")
        for r in range(8): I(f"v_mul_f32 v{O+r}, v{O+r}, v2")
        for r in range(4): I(f"v_cvt_pk_bf16_f32 v{P0+r}, v{O+2*r}, v{O+2*r+1}")
        I(f"global_store_dwordx4 v4, {vr(P0,4)}, {sp(OB_)} sc1")

    def oproj(L):
        n = f"l{L}"
        OBf, AC, X, Y = 64, 32, 96, 16
        lane_terms()
        I(f"s_lshl_b32 s{A0}, s{KQ}, 19")
        I(f"s_lshl_b32 s{A0+1}, s{OT}, 10")
        I(f"s_add_u32 s{A0}, s{A0}, s{A0+1}")
        I(f"v_add_u32 v10, s{A0}, v3")
        I(f"s_lshl_b32 s{A0}, s{WAVE}, 13")
        I(f"s_add_u32 s{A0}, s{A0}, 0x10000")
        I(f"v_add_u32 v12, s{A0}, v3")
        I(f"s_lshl_b32 s{A0}, s{TT}, 12")
        I(f"s_lshl_b32 s{A0+1}, s{HEAD}, 7")
        I(f"s_add_u32 s{A0}, s{A0}, s{A0+1}")
        I(f"s_add_u32 s{A0}, s{A0}, {hex(FLO[L])}")
        I(f"v_mov_b32 v13, s{A0}")
        I(f"v_mov_b32 v14, s{TAG}")
        I(f"s_lshl_b32 s{A0}, s{OT}, 12")
        I(f"s_lshl_b32 s{A0+1}, s{KQ}, 10")
        I(f"s_add_u32 s{A0}, s{A0}, s{A0+1}")
        I(f"s_add_u32 s{A0}, s{A0}, {hex(FLO[L])}")
        I(f"v_lshl_add_u32 v31, v1, 7, s{A0}")
        FLW = ENV("FLW", "0") == "1"
        if not FLW:
            I(f"s_lshl_b32 s{A0}, s{QB}, 15")
            I(f"s_add_u32 s{A0}, s{A0}, {hex(FLO[L])}")
            I(f"v_lshl_add_u32 v31, v6, 7, s{A0}")
        vm.drain()
        if not FLW:
            I("s_barrier")
            I(f"s_cmp_lg_u32 s{WAVE}, 0")
            I(f"s_cbranch_scc1 {lab(n+'_nof')}")
        I("s_mov_b64 exec, 1")
        I(f"global_store_dword v13, v14, {sp(WSP)} sc1")
        exec_all()
        if not FLW: k.L(lab(n + "_nof"))
        if L == 0 and FLW: I("s_barrier")
        k.stamp(name=n + "_odrain")
        if L == 0:
            for i in range(8): I(f"ds_write_b128 v12, {ar(AWO+4*i,4)} offset:{1024*i}")
            I(f"global_load_dwordx4 v[16:19], v3, {sp(WRP)}")
            I(f"s_lshl_b32 s{A0}, s{WAVE}, 11")
            I(f"v_lshl_add_u32 v13, v1, 5, s{A0}")
            I(f"ds_write_b128 v13, {ar(AGU,4)}")
            I(f"ds_write_b128 v13, {ar(AGU+4,4)} offset:16")
            I(f"v_add_u32 v13, s{W1K}, v3")
            I(f"ds_write_b128 v13, {ar(ADN,4)} offset:16384")
            I("v_bfe_u32 v13, v1, 2, 2")
            I("v_and_b32 v14, 3, v1")
            I("v_lshl_add_u32 v12, v7, 2, v13")
            I("v_lshlrev_b32 v12, 7, v12")
            I("v_lshl_add_u32 v12, v14, 3, v12")
            I("v_bfe_u32 v15, v1, 4, 1")
            I("v_lshl_add_u32 v12, v15, 5, v12")
            I(f"s_lshl_b32 s{A0+1}, s{KQ}, 5")
            I(f"v_xor_b32 v12, s{A0+1}, v12")
            I(f"s_lshl_b32 s{A0+1}, s{KQ}, 14")
            I(f"s_add_u32 s{A0+1}, s{A0+1}, 0x10000")
            I(f"v_add_u32 v12, s{A0+1}, v12")
            I("v_xor_b32 v15, 64, v12")
            bar()
            for i in range(8):
                for b in range(2):
                    I(f"ds_read_b64_tr_b16 {ar(AWO+8*i+4*b,2)}, v{15 if b else 12} offset:{2048*i}")
                    I(f"ds_read_b64_tr_b16 {ar(AWO+8*i+4*b+2,2)}, v{15 if b else 12} offset:{2048*i+1024}")
                if i % 2 == 1: I("s_waitcnt lgkmcnt(0)")
            I("v_lshrrev_b32 v15, 4, v1")
            I("v_lshl_add_u32 v13, v15, 3, v13")
            I("v_lshlrev_b32 v13, 5, v13")
            I("v_lshl_add_u32 v13, v14, 3, v13")
            I(f"v_add_u32 v13, s{A0}, v13")
            for i in range(2):
                I(f"ds_read_b64_tr_b16 {ar(AGU+4*i,2)}, v13 offset:{1024*i}")
                I(f"ds_read_b64_tr_b16 {ar(AGU+4*i+2,2)}, v13 offset:{1024*i+128}")
            I("v_lshlrev_b32 v13, 1, v0")
            for f in range(8): I(f"ds_read_u16 a{ADN+f}, v13 offset:{16384+1024*f}")
            I("v_mov_b32 v20, 0")
            I("s_waitcnt vmcnt(0)")
            for r in range(4): I(f"v_dot2_f32_bf16 v20, v{16+r}, s{ONES}, v20")
            k.nop(1)
            allreduce("v_add_f32", 20, 21)
            I("s_nop 0")
            I(f"v_readfirstlane_b32 s{WSUM}, v20")
        NF = 0
        I(f"s_lshl_b32 s{A0}, s{OA}, 15")
        for g in range(4):
            I(f"s_xor_b32 s{A0+1}, s{KQ}, {g}")
            I(f"s_lshl_b32 s{A0+1}, s{A0+1}, 13")
            I(f"s_add_u32 s{A0+1}, s{A0+1}, s{A0}")
            I(f"v_add_u32 v{27+g}, s{A0+1}, v3")
        for i in range(4): unpack(X + 2*i, X + 2*i + 1, XG + i)
        if L == 1:
            for r in range(8): I(f"v_sub_f32 v{Y+r}, v{X+r}, v{RESM}")
            for r in range(8): I(f"v_mul_f32 v{Y+r}, v{Y+r}, v{RESR}")
            for i in range(4): I(f"v_cvt_pk_bf16_f32 v{XG+i}, v{Y+2*i}, v{Y+2*i+1}")
            for i in range(4): unpack(Y + 2*i, Y + 2*i + 1, XG + i)
            for r in range(8): I(f"v_add_f32 v{X+r}, v{X+r}, v{Y+r}")
            for i in range(4): I(f"v_cvt_pk_bf16_f32 v{XG+i}, v{X+2*i}, v{X+2*i+1}")
            for i in range(4): unpack(X + 2*i, X + 2*i + 1, XG + i)
        for i in range(4): unpack(104 + 2*i, 105 + 2*i, WR + i)
        if L == 1:
            I("v_lshlrev_b32 v13, 2, v6")
            I(f"v_add_u32 v13, {LKY}, v13")
            I("ds_read_b32 v16, v13")
            I("s_waitcnt lgkmcnt(0)")
            for rnd in range(3):
                I("v_mov_b32 v17, v16")
                dppred("v_max_u32", 17, Q4 + ("row_half_mirror", "row_mirror"))
                swapop("v_permlane16_swap_b32", "v_max_u32", 17, 18)
                I("v_cmp_ne_u32 vcc, v17, v16")
                if rnd: I(f"v_readfirstlane_b32 s{(CA, CB_)[rnd-1]}, v17")
                else: I("s_nop 0")
                I("s_nop 0")
                I("v_cndmask_b32 v16, 0, v16, vcc")
            for c_ in (CA, CB_):
                I(f"s_and_b32 s{c_}, s{c_}, 0x7ff")
                I(f"s_sub_u32 s{c_}, 2047, s{c_}")
        if FLW:
            I("s_mov_b64 exec, 0xff")
        else:
            I(f"s_cmp_lg_u32 s{WAVE}, 0")
            I(f"s_cbranch_scc1 {lab(n+'_owait')}")
            exec_lo(-1)
        poll(n + "_po", [f"global_load_dword v14, v31, {sp(WSP)} sc1"], [14])
        exec_all()
        if not FLW:
            k.L(lab(n + "_owait"))
            bar()
        k.stamp(name=n + "_opoll")
        for i in range(8):
            I(f"global_load_dwordx4 {vr(OBf+4*i,4)}, v10, {sp(OB_)} sc1")
            if i < 7: I("v_add_u32 v10, 0x10000, v10")
        for i in range(8):
            I(f"s_waitcnt vmcnt({7-i+NF})")
            for b in range(2): mfma(AC + 16*b, ar(AWO+8*i+4*b,4), vr(OBf+4*i,4), AC + 16*b if i else None)
        if FLW: bar()
        k.stamp(name=n + "_omm")
        k.nop(12)
        for g in range(1, 4):
            for hf in range(2): I(f"ds_write_b128 v{27+g}, {vr(AC+8*g+4*hf,4)} offset:{2048*g+1024*hf}")
        bar()
        k.stamp(name="x" + n + "_red")
        for g in range(1, 4):
            for hf in range(2): I(f"ds_read_b128 {vr(AC+8*g+4*hf,4)}, v27 offset:{2048*g+1024*hf}")
        sadd64(XB_, WSP, XF[L])
        I("s_waitcnt lgkmcnt(4)")
        for r in range(8): I(f"v_add_f32 v{AC+r}, v{AC+r}, v{AC+8+r}")
        I("s_waitcnt lgkmcnt(0)")
        for r in range(8): I(f"v_add_f32 v{AC+16+r}, v{AC+16+r}, v{AC+24+r}")
        for r in range(8): I(f"v_add_f32 v{AC+r}, v{AC+r}, v{AC+16+r}")
        for i in range(4): I(f"v_cvt_pk_bf16_f32 v{XG+i}, v{AC+2*i}, v{AC+2*i+1}")
        for i in range(4): unpack(Y + 2*i, Y + 2*i + 1, XG + i)
        for r in range(8): I(f"v_add_f32 v{X+r}, v{X+r}, v{Y+r}")
        for i in range(4): I(f"v_cvt_pk_bf16_f32 v{XG+i}, v{X+2*i}, v{X+2*i+1}")
        for i in range(4): I(f"v_mov_b32 v{24+i}, v{XG+i}")
        k.nop(1)
        I("v_permlane32_swap_b32 v24, v26")
        I("v_permlane32_swap_b32 v25, v27")
        I(f"global_store_dwordx4 v{VXO}, v[24:27], {sp(XB_)} sc1")
        for i in range(4): unpack(X + 2*i, X + 2*i + 1, XG + i)
        I(f"v_add_f32 v16, v{X}, v{X+1}")
        I(f"v_mul_f32 v17, v{X}, v{X}")
        I(f"v_mul_f32 v18, v{X}, v104")
        for r in range(1, 8):
            if r > 1: I(f"v_add_f32 v16, v16, v{X+r}")
            I(f"v_fmac_f32 v17, v{X+r}, v{X+r}")
            I(f"v_fmac_f32 v18, v{X+r}, v{104+r}")
        I(f"s_lshl_b32 s{A0}, s{OA}, 12")
        I(f"s_lshl_b32 s{A0+1}, s{KQ}, 10")
        I(f"s_add_u32 s{A0}, s{A0}, s{A0+1}")
        I(f"s_add_u32 s{A0}, s{A0}, {LSA}")
        I(f"v_add_u32 v13, s{A0}, v3")
        I("ds_write_b96 v13, v[16:18]")
        k.stamp(name="x" + n + "_epi")
        I("s_waitcnt vmcnt(0) lgkmcnt(0)")
        k.stamp(name="x" + n + "_xdrain")
        I("s_waitcnt vmcnt(0) lgkmcnt(0)")
        I("s_barrier")
        I(f"s_cmp_lg_u32 s{WAVE}, 0")
        I(f"s_cbranch_scc1 {lab(n+'_nost')}")
        I("v_lshlrev_b32 v13, 4, v6")
        I("v_lshl_add_u32 v13, v7, 12, v13")
        I(f"v_add_u32 v13, {LSA}, v13")
        for j in range(8): I(f"ds_read_b96 {vr(32+4*j,3)}, v13 offset:{512*j}")
        I(f"s_lshl_b32 s{A0}, s{TB}, 3")
        I(f"s_add_u32 s{A0}, s{A0}, s{CG}")
        I(f"s_lshl_b32 s{A0}, s{A0}, 10")
        I(f"s_add_u32 s{A0}, s{A0}, {hex(ST[L])}")
        I(f"v_add_u32 v13, s{A0}, v3")
        I(f"v_mov_b32 v35, s{TAG}")
        I("s_waitcnt lgkmcnt(0)")
        for j in range(1, 8):
            for c in range(3): I(f"v_add_f32 v{32+c}, v{32+c}, v{32+4*j+c}")
        I(f"global_store_dwordx4 v13, v[32:35], {sp(WSP)} sc1")
        k.L(lab(n + "_nost"))
        k.stamp(name=n + "_stpub")

    def hop_a(L, after_poll=None, before_poll=None, after_bar=None):
        n = f"l{L}"
        I(f"s_lshl_b32 s{A0}, s{TB}, 13")
        I(f"s_add_u32 s{A0}, s{A0}, {hex(ST[L])}")
        I(f"v_lshl_add_u32 v12, v0, 4, s{A0}")
        loads = [f"global_load_dwordx4 v[32:35], v12, {sp(WSP)} sc1"]; tags = [35]
        if ENV("HA2", "1") == "1":
            I(f"s_cmp_lg_u32 s{WAVE}, 0")
            I(f"s_cbranch_scc1 {lab(n+'_a1')}")
            if L == 0:
                I(f"s_lshl_b32 s{A0}, s{QB}, 15")
                I(f"s_add_u32 s{A0}, s{A0}, {hex(ST[L])}")
            I(f"s_add_u32 s{A0}, s{A0}, 1020")
            I(f"v_lshl_add_u32 v13, v1, 10, s{A0}")
            exec_lo(-1 if L == 0 else "0xff")
            poll(n + "_p1", [f"global_load_dword v36, v13, {sp(WSP)} sc1"], [36])
            exec_all()
            k.L(lab(n + "_a1"))
            I("s_barrier")
        else:
            if L == 0:
                I(f"s_lshr_b32 s{A0}, s{TT}, 1")
                I(f"s_lshl_b32 s{A0}, s{A0}, 13")
                I(f"s_add_u32 s{A0}, s{A0}, {hex(ST[L] + 12)}")
                I("v_and_b32 v13, 7, v1")
                I(f"v_lshl_add_u32 v13, v13, 10, s{A0}")
                loads.append(f"global_load_dword v36, v13, {sp(WSP)} sc1"); tags.append(36)
        if before_poll: before_poll()
        poll(n + "_pa", loads, tags)
        I("v_lshlrev_b32 v13, 4, v0")
        I("ds_write_b96 v13, v[32:34]")
        if after_poll: after_poll()
        bar()
        k.stamp(name=n + "_hopa")
        if after_bar: after_bar()
        for c in range(8): I(f"ds_read_b96 {vr(16+4*c,3)}, v3 offset:{1024*c}")
        I("s_waitcnt lgkmcnt(0)")
        for a_, b_ in ((0,1),(2,3),(4,5),(6,7),(0,2),(4,6),(0,4)):
            for c in range(3): I(f"v_add_f32 v{16+4*a_+c}, v{16+4*a_+c}, v{16+4*b_+c}")
        rowstats(16, 17, RESM, 20, RESR)
        I(f"s_or_b32 s{A0}, s{CG}, s{WAVE}")
        I(f"s_cmp_lg_u32 s{A0}, 0")
        I(f"s_cbranch_scc1 {lab(n+'_nokey')}")
        I(f"v_fma_f32 v18, -v{RESM}, s{WSUM}, v18")
        I(f"v_mul_f32 v18, v18, v{RESR}")
        bf16r(18)
        I("v_ashrrev_i32 v19, 31, v18")
        I("v_or_b32 v19, 0x80000000, v19")
        I("v_xor_b32 v19, v19, v18")
        I("v_and_b32 v19, 0xffff0000, v19")
        I(f"s_lshl_b32 s{A0}, s{TB}, 6")
        I(f"s_sub_u32 s{A0}, 2047, s{A0}")
        I(f"v_sub_u32 v20, s{A0}, v1")
        I("v_or_b32 v20, v19, v20")
        I("v_mov_b32 v24, v20")
        I(f"v_mov_b32 v21, v{RESM}")
        allreduce("v_max_u32", 24, 25)
        I("v_cmp_eq_u32 vcc, v24, v20")
        I(f"v_mov_b32 v22, v{RESR}")
        I(f"v_mov_b32 v23, s{TAG}")
        I(f"s_lshl_b32 s{A0}, s{TB}, 7")
        I(f"s_add_u32 s{A0}, s{A0}, {hex(KEY[L])}")
        I(f"v_mov_b32 v13, s{A0}")
        I("s_mov_b64 exec, vcc")
        I(f"global_store_dwordx4 v13, v[20:23], {sp(WSP)} sc1")
        exec_all()
        k.L(lab(n + "_nokey"))
        I(f"v_mov_b32 v16, v{RESM}")
        I(f"v_mov_b32 v17, v{RESR}")
        I(f"s_cmp_eq_u32 s{OA}, 1")
        I("s_cselect_b64 vcc, -1, 0")
        I(f"v_permlane32_swap_b32 v{RESM}, v16")
        I(f"v_permlane32_swap_b32 v{RESR}, v17")
        I(f"v_cndmask_b32 v{RESM}, v{RESM}, v16, vcc")
        I(f"v_cndmask_b32 v{RESR}, v{RESR}, v17, vcc")
        k.stamp(name="x" + n + "_key")

    FT = 76
    SR = 96
    stat_loads = [f"global_load_dwordx4 {vr(SR+4*i,4)}, v11, {sp(WSP)} offset:{1024*i} sc1" for i in range(4)]
    stat_tags = [SR + 4*i + 3 for i in range(4)]
    def own_stats():
        for i in range(1, 4):
            for c in range(2): I(f"v_add_f32 v{SR+c}, v{SR+c}, v{SR+4*i+c}")
        halfsum("v_add_f32", SR, SR + 2)
        halfsum("v_add_f32", SR + 1, SR + 2)
        rowstats(SR, SR + 1, MT[0], SR + 2, SR + 3)
        I(f"v_mov_b32 v{AT[0]}, s{CEPS}")
        I(f"v_add_f32 v{SR+3}, 1.0, v{SR+3}")
        I(f"v_mul_f32 v{SR+2}, v{SR+2}, v{SR+3}")
        I(f"v_fmac_f32 v{AT[0]}, v{SR+2}, v{SR+3}")
        I(f"v_rsq_f32 v{AT[0]}, v{AT[0]}")
        I(f"v_mov_b32 v{MT[1]}, v{MT[0]}")
        I(f"v_mul_f32 v{AT[0]}, v{AT[0]}, v{SR+3}")
        I(f"v_mov_b32 v{AT[1]}, v{AT[0]}")
        I(f"v_permlane16_swap_b32 v{MT[0]}, v{MT[1]}")
        I("s_nop 0")
        I(f"v_permlane16_swap_b32 v{AT[0]}, v{AT[1]}")
    def key_load(L):
        return f"global_load_dwordx4 {vr(FT,4)}, v{FT+4}, {sp(WSP)} sc1"
    def hop_b_issue(L, sfx=""):
        I(f"v_lshlrev_b32 v{FT+4}, 7, v6")
        I(f"v_add_u32 v{FT+4}, {hex(KEY[L])}, v{FT+4}")
        I(f"s_cmp_lg_u32 s{WAVE}, 0")
        I(f"s_cbranch_scc1 {lab(f'l{L}_nki{sfx}')}")
        I(key_load(L))
        k.L(lab(f"l{L}_nki{sfx}"))
    def hop_b(L, role=""):
        n = f"l{L}{role}"
        I(f"v_mov_b32 v{FT+6}, {LFF}")
        I(f"s_cmp_lg_u32 s{WAVE}, 0")
        I(f"s_cbranch_scc1 {lab(n+'_kw')}")
        keepq = list(vm.q)
        poll(n + "_pb", [key_load(L)], [FT + 3], first_issued=True)
        vm.q = keepq
        if L == 0:
            I(f"v_lshlrev_b32 v{FT+5}, 2, v6")
            I(f"v_add_u32 v{FT+5}, {LKY}, v{FT+5}")
            I(f"ds_write_b32 v{FT+5}, v{FT}")
        I(f"v_mov_b32 v{FT+5}, v{FT}")
        dppred("v_max_u32", FT + 5, Q4 + ("row_half_mirror", "row_mirror"))
        swapop("v_permlane16_swap_b32", "v_max_u32", FT + 5, FT + 7)
        I(f"v_cmp_eq_u32 vcc, v{FT+5}, v{FT}")
        I("s_mov_b64 exec, vcc")
        I(f"ds_write_b96 v{FT+6}, {vr(FT,3)}")
        exec_all()
        k.L(lab(n + "_kw"))
        bar()
        I(f"ds_read_b96 {vr(FT,3)}, v{FT+6}")
        I("s_waitcnt lgkmcnt(0)")
        I(f"v_readfirstlane_b32 s{IDX}, v{FT}")
        I(f"v_readfirstlane_b32 s{RM}, v{FT+1}")
        I(f"v_readfirstlane_b32 s{RR}, v{FT+2}")
        I(f"s_and_b32 s{RS_}, s{IDX}, 0xffff0000")
        I(f"s_and_b32 s{IDX}, s{IDX}, 0x7ff")
        I(f"s_sub_u32 s{IDX}, 2047, s{IDX}")
        I(f"s_ashr_i32 s{A0}, s{RS_}, 31")
        I(f"s_not_b32 s{A0}, s{A0}")
        I(f"s_or_b32 s{A0}, s{A0}, 0x80000000")
        I(f"s_xor_b32 s{RS_}, s{RS_}, s{A0}")
        I(f"s_and_b32 s{RS_}, s{RS_}, 0xffff0000")
        if L == 1:
            I(f"s_cmp_eq_u32 s{IDX}, s{CA}")
            I(f"s_cselect_b32 s{YSEL}, 1, 0")
            I(f"s_cmp_eq_u32 s{IDX}, s{CB_}")
            I(f"s_cselect_b32 s{YSEL}, 2, s{YSEL}")
            I(f"s_cmp_lg_u32 s{YSEL}, 0")
            I(f"s_cbranch_scc1 {lab('hit')}")
        I(f"s_lshr_b32 s{A0}, s{IDX}, 4")
        I(f"s_lshl_b32 s{A0}, s{A0}, 14")
        I(f"s_and_b32 s{A0+1}, s{IDX}, 15")
        I(f"s_lshl_b32 s{A0+1}, s{A0+1}, 4")
        I(f"s_add_u32 s{A0}, s{A0}, s{A0+1}")
        I("s_cmp_ge_u32 s2, 224")
        I(f"s_cbranch_scc1 {lab(n+'_frow')}")
        I(f"s_lshl_b32 s{A0+1}, s{WAVE}, 11")
        I(f"s_add_u32 s{A0}, s{A0}, s{A0+1}")
        I(f"v_and_b32 v{FT+4}, 48, v1")
        I(f"v_lshl_add_u32 v{FT+4}, v{FT+4}, 4, s{A0}")
        I(f"v_add_u32 v{FT+5}, 0x400, v{FT+4}")
        I(f"s_branch {lab(n+'_rowld')}")
        k.L(lab(n + "_frow"))
        I(f"s_sub_u32 s{A0+1}, s2, 224")
        I(f"s_lshl_b32 s{A0+1}, s{A0+1}, 9")
        I(f"s_add_u32 s{A0}, s{A0}, s{A0+1}")
        I(f"v_bfe_u32 v{FT+4}, v1, 3, 1")
        I(f"v_lshl_add_u32 v{FT+4}, v{FT+4}, 8, s{A0}")
        I(f"v_mov_b32 v{FT+5}, v{FT+4}")
        k.L(lab(n + "_rowld"))
        vm.issue(f"global_load_dwordx4 {vr(FT+8,4)}, v{FT+4}, {sp(XB_)} sc1", "row")
        vm.issue(f"global_load_dwordx4 {vr(FT+12,4)}, v{FT+5}, {sp(XB_)} sc1", "row")
    def slice1(L):
        n = f"l{L}"
        XR = FT + 8
        I(f"v_mov_b32 v{FT+2}, s{RM}")
        I(f"v_mul_f32 v{FT+2}, s{RR}, v{FT+2}")
        I(f"v_and_b32 v{FT+4}, 48, v1")
        I(f"s_lshl_b32 s{A0}, s{WAVE}, 6")
        I(f"s_add_u32 s{A0}, s{A0}, {LFF + 256}")
        I(f"v_add_u32 v{FT+4}, s{A0}, v{FT+4}")
        yp_addr(FT + 5, L)
        I(f"v_and_b32 v{FT+6}, 15, v1")
        I(f"v_lshlrev_b32 v{FT+6}, 2, v{FT+6}")
        I(f"v_add_u32 v{FT+6}, {LFF + 256}, v{FT+6}")
        for f in range(8): I(f"v_accvgpr_read_b32 v{FT+20+f}, a{ADN+f}")
        for f in range(8): I(f"v_lshlrev_b32 v{FT+20+f}, 16, v{FT+20+f}")
        vm.wait("row")
        k.stamp(name="x" + n + "_row")
        I("s_cmp_ge_u32 s2, 224")
        I(f"s_cbranch_scc1 {lab(n+'_s1skip')}")
        for i in range(8):
            t0 = FT + 16 + 2*(i & 1)
            unpack(t0, t0 + 1, XR + i)
            I(f"v_fma_f32 v{t0}, v{t0}, s{RR}, -v{FT+2}")
            I(f"v_fma_f32 v{t0+1}, v{t0+1}, s{RR}, -v{FT+2}")
            I(f"v_cvt_pk_bf16_f32 v{XR+i}, v{t0}, v{t0+1}")
        k.nop(2)
        I(f"v_mfma_f32_16x16x32_bf16 {vr(FT+16,4)}, {ar(AGU,4)}, {vr(XR,4)}, 0")
        I(f"v_mfma_f32_16x16x32_bf16 {vr(FT+16,4)}, {ar(AGU+4,4)}, {vr(XR+4,4)}, {vr(FT+16,4)}")
        I("s_mov_b32 exec_lo, 0x00010001")
        I("s_mov_b32 exec_hi, 0x00010001")
        k.nop(6)
        I(f"ds_write_b128 v{FT+4}, {vr(FT+16,4)}")
        exec_all()
        bar()
        k.L(lab(n + "_s1skip"))
    def slice2(L):
        n = f"l{L}"
        I("s_cmp_ge_u32 s2, 224")
        I(f"s_cbranch_scc1 {lab(n+'_s2skip')}")
        for i in range(8): I(f"ds_read_b32 v{FT+8+i}, v{FT+6} offset:{64*i}")
        I("s_waitcnt lgkmcnt(0)")
        g = FT + 8
        for a_, b_ in ((0,1),(2,3),(4,5),(6,7),(0,2),(4,6),(0,4)): I(f"v_add_f32 v{g+a_}, v{g+a_}, v{g+b_}")
        bf16r(g)
        t = FT
        I(f"v_mul_f32 v{t}, {hex(f2u(-LOG2E))}, v{g}")
        I(f"v_exp_f32 v{t}, v{t}")
        I("s_nop 0")
        I(f"v_add_f32 v{t}, 1.0, v{t}")
        I(f"v_rcp_f32 v{t}, v{t}")
        I("s_nop 0")
        I(f"v_mul_f32 v{t}, v{t}, v{g}")
        bf16r(t)
        k.nop(2)
        I(f"v_mul_f32_dpp v{t}, v{g}, v{t} row_ror:8 row_mask:0xf bank_mask:0xf")
        bf16r(t)
        k.nop(1)
        for f in range(8): I(f"v_readlane_b32 s{A0+f}, v{t}, {f}")
        I(f"v_mul_f32 v{FT+2}, s{A0}, v{FT+20}")
        I(f"v_mul_f32 v{FT+3}, s{A0+1}, v{FT+21}")
        for f in range(2, 8): I(f"v_fmac_f32 v{FT+2+(f&1)}, s{A0+f}, v{FT+20+f}")
        I(f"v_add_f32 v{FT+2}, v{FT+2}, v{FT+3}")
        I(f"v_min_u32 v{FT+2}, 0xfffffffe, v{FT+2}")
        I(f"global_store_dword v{FT+5}, v{FT+2}, {sp(WSP)} sc1")
        k.L(lab(n + "_s2skip"))
    def x_elem(XR, t6):
        I(f"v_bfe_u32 v{t6}, v1, 1, 1")
        I(f"v_cmp_eq_u32 vcc, 1, v{t6}")
        I(f"v_bfe_u32 v{t6}, v1, 2, 1")
        I("s_nop 0")
        I(f"v_cndmask_b32 v{XR}, v{XR}, v{XR+1}, vcc")
        I(f"v_cndmask_b32 v{XR+2}, v{XR+2}, v{XR+3}, vcc")
        I(f"v_cmp_eq_u32 vcc, 1, v{t6}")
        I(f"v_and_b32 v{t6}, 1, v1")
        I("s_nop 0")
        I(f"v_cndmask_b32 v{XR}, v{XR}, v{XR+2}, vcc")
        I(f"v_cmp_eq_u32 vcc, 1, v{t6}")
        unpack(XR + 1, XR + 2, XR)
        I(f"v_cndmask_b32 v{XR}, v{XR+1}, v{XR+2}, vcc")
    def gather(name, bufs, B, ldsoff, light=True):
        I(f"s_sub_u32 s{A0}, s2, 224")
        I(f"s_mul_i32 s{A0+1}, s{A0}, {224*64}")
        I(f"s_add_u32 s{A0+1}, s{A0+1}, {hex(bufs[0]) if isinstance(bufs[0], int) else bufs[0]}")
        I(f"v_min_u32 v{B}, 447, v0")
        I(f"v_lshl_add_u32 v{B}, v{B}, 4, s{A0+1}")
        I(f"v_add_u32 v{B+1}, {448*16}, v{B}")
        for j in range(1, len(bufs)):
            I(f"v_add_u32 v{B+2*j}, {hex(bufs[j] - bufs[0])}, v{B}")
            I(f"v_add_u32 v{B+2*j+1}, {hex(bufs[j] - bufs[0])}, v{B+1}")
        Y_ = B + 8; nb = len(bufs)
        keepq = list(vm.q)
        def ychk():
            I(f"v_max3_u32 v{B+4}, v{Y_}, v{Y_+1}, v{Y_+2}")
            for r in range(3, 8*nb - 1, 2): I(f"v_max3_u32 v{B+4}, v{B+4}, v{Y_+r}, v{Y_+r+1}")
            I(f"v_max_u32 v{B+4}, v{B+4}, v{Y_+8*nb-1}")
            I(f"v_cmp_eq_u32 vcc, -1, v{B+4}")
        if light:
            I("s_mov_b64 exec, 1")
            poll(name + "_pl", [f"global_load_dword v{Y_}, v{B+2*nb-1}, {sp(WSP)} sc1"], [0], check=lambda: I(f"v_cmp_eq_u32 vcc, -1, v{Y_}"))
            exec_all()
        poll(name + "_pf", [f"global_load_dwordx4 {vr(Y_+4*j,4)}, v{B+j}, {sp(WSP)} sc1" for j in range(2*nb)], [0], check=ychk)
        vm.q = keepq
        for j in range(nb):
            for c in range(4): I(f"v_add_f32 v{Y_+8*j+c}, v{Y_+8*j+c}, v{Y_+8*j+4+c}")
        for m in ("row_shr:4", "row_shr:8"):
            k.nop(1)
            for j in range(nb):
                for c in range(4): I(f"v_add_f32_dpp v{Y_+8*j+c}, v{Y_+8*j+c}, v{Y_+8*j+c} {m} row_mask:0xf bank_mask:0xf bound_ctrl:0")
        for sw in ("v_permlane16_swap_b32", "v_permlane32_swap_b32"):
            for j in range(nb):
                for c in range(4): I(f"v_mov_b32 v{Y_+8*j+4+c}, v{Y_+8*j+c}")
            k.nop(1)
            for j in range(nb):
                for c in range(4): I(f"{sw} v{Y_+8*j+c}, v{Y_+8*j+4+c}")
            for j in range(nb):
                for c in range(4): I(f"v_add_f32 v{Y_+8*j+c}, v{Y_+8*j+c}, v{Y_+8*j+4+c}")
        I(f"v_and_b32 v{B+4}, 3, v1")
        I(f"s_lshl_b32 s{A0+1}, s{WAVE}, 6")
        I(f"s_add_u32 s{A0+1}, s{A0+1}, {ldsoff}")
        I(f"v_lshl_add_u32 v{B+4}, v{B+4}, 4, s{A0+1}")
        exec_lo("0xf000")
        for j in range(nb): I(f"ds_write_b128 v{B+4}, {vr(Y_+8*j,4)} offset:{512*j}")
        exec_all()
    def finish_row(L, XR, rd):
        n = f"l{L}"
        Y_ = FT + 16
        for i in range(7): I(f"ds_read_b32 v{Y_+i}, v{rd} offset:{64*i}")
        t = FT
        I(f"v_mov_b32 v{t}, {hex(f2u(-LOG2E))}")
        I(f"v_mul_f32 v{t}, s{RS_}, v{t}")
        I(f"v_exp_f32 v{t}, v{t}")
        I(f"v_subrev_f32 v{t+1}, s{RM}, v{XR}")
        I(f"v_add_f32 v{t}, 1.0, v{t}")
        I(f"v_rcp_f32 v{t}, v{t}")
        I(f"v_mul_f32 v{t+1}, s{RR}, v{t+1}")
        bf16r(t); bf16r(t + 1)
        I("s_waitcnt lgkmcnt(0)")
        for a_, b_ in ((0,1),(2,3),(4,5),(0,2),(4,6),(0,4)): I(f"v_add_f32 v{Y_+a_}, v{Y_+a_}, v{Y_+b_}")
        bf16r(Y_)
        I(f"v_mul_f32 v{Y_}, v{Y_}, v{t}")
        bf16r(Y_)
        I(f"v_add_f32 v{Y_}, v{Y_}, v{t+1}")
        bf16r(Y_)
        I(f"v_add_f32 v{Y_}, v{Y_}, v{XR}")
        I(f"v_cvt_pk_bf16_f32 v{Y_}, v{Y_}, v{Y_}")
        I(f"s_sub_u32 s{A0}, s2, 224")
        if L == 1:
            I(f"s_lshl_b32 s{A0+1}, s{IDX}, 10")
            I(f"s_lshl_b32 s{A0}, s{A0}, 5")
            I(f"s_add_u32 s{A0}, s{A0}, s{A0+1}")
            I(f"v_lshl_add_u32 v{FT+4}, v1, 1, s{A0}")
            exec_lo("0xffff")
            I(f"global_store_short v{FT+4}, v{Y_}, {sp(OUTP)}")
        else:
            I(f"v_and_b32 v{Y_}, 0xffff, v{Y_}")
            k.nop(2)
            for j, qp in ((1, 1), (2, 2), (3, 3)):
                I(f"v_mov_b32_dpp v{Y_+j}, v{Y_} quad_perm:[{qp},{qp},{qp},{qp}] row_mask:0xf bank_mask:0xf")
            I(f"v_lshl_or_b32 v{Y_}, v{Y_+1}, 16, v{Y_}")
            I(f"v_lshl_or_b32 v{Y_+1}, v{Y_+3}, 16, v{Y_+2}")
            I(f"v_mov_b32 v{Y_+2}, s{TAG}")
            I(f"s_lshl_b32 s{A0}, s{A0}, 7")
            I(f"s_add_u32 s{A0}, s{A0}, {hex(X2R)}")
            I(f"v_lshl_add_u32 v{FT+4}, v1, 2, s{A0}")
            exec_lo("0x1111")
            I(f"global_store_dwordx4 v{FT+4}, {vr(Y_,4)}, {sp(WSP)} sc1")
        exec_all()
    def finalize(L):
        n = f"l{L}"
        I("s_cmp_lt_u32 s2, 224")
        I(f"s_cbranch_scc1 {lab(n+'_fskip')}")
        x_elem(FT + 8, FT + 6)
        gather(n, [YP[L]], FT + 12, LFF + 256, light=(L == 1 or ENV('F0L', '1') == '1'))
        I(f"v_and_b32 v{FT+5}, 15, v1")
        I(f"v_lshlrev_b32 v{FT+5}, 2, v{FT+5}")
        I(f"v_add_u32 v{FT+5}, {LFF + 256}, v{FT+5}")
        bar()
        I(f"s_cmp_lg_u32 s{WAVE}, 0")
        I(f"s_cbranch_scc1 {lab(n+'_fskip')}")
        finish_row(L, FT + 8, FT + 5)
        k.L(lab(n + "_fskip"))

    q_epilogue(0)
    k.stamp(name="l0_qepi")
    attention(0)
    oproj(0)
    I(f"s_mul_i32 s{A0}, s{WAVE}, 6144")
    I(f"s_add_u32 s{A0}, s{A0}, {LWQ}")
    I(f"v_add_u32 v12, s{A0}, v3")
    for i in range(6): I(f"ds_write_b128 v12, {ar(AWS+4*i,4)} offset:{1024*i}")
    I(f"s_lshl_b32 s{A0}, s{TT}, 15")
    I(f"v_add_u32 v8, s{A0}, v3")
    I("v_add_u32 v9, 0x4000, v8")
    I(f"s_lshr_b32 s{A0}, s{TT}, 1")
    I(f"s_lshl_b32 s{A0}, s{A0}, 13")
    I(f"s_and_b32 s{A0+1}, s{TT}, 1")
    I(f"s_lshl_b32 s{A0+1}, s{A0+1}, 9")
    I(f"s_add_u32 s{A0}, s{A0}, s{A0+1}")
    I(f"s_add_u32 s{A0}, s{A0}, {hex(ST[0])}")
    I(f"v_lshl_add_u32 v11, v6, 4, s{A0}")
    I("v_lshl_add_u32 v11, v7, 12, v11")
    RING = 6
    LOOK = int(ENV("LOOK", "4"))
    ROT1 = 67 if not PROFILE else 101
    I(f"s_lshr_b32 s{ROT1}, s{HEAD}, 1")
    def xload(ks):
        I(f"s_add_u32 s{T0}, s{ROT1}, {ks}")
        I(f"s_and_b32 s{T0}, s{T0}, 15")
        I(f"s_lshl_b32 s{T0}, s{T0}, 10")
        I(f"s_add_u32 s{T0}, s{XB_}, s{T0}")
        I(f"s_addc_u32 s{T0+1}, s{XB_+1}, 0")
        for t in range(2):
            vm.issue(f"global_load_dwordx4 {ar(64+8*(ks % RING)+4*t,4)}, v{8+t}, {sp(T0)} sc1", f"x{ks}")
    def wbase1(ks):
        I(f"s_add_u32 s{T0}, s{ROT1}, {ks}")
        I(f"s_and_b32 s{T0}, s{T0}, 15")
        I(f"s_lshl_b32 s{T0}, s{T0}, 10")
        I(f"v_add_u32 v12, s{T0}, v10")
    def first_x():
        for ks in range(LOOK): xload(ks)
    hop_a(0)
    w_addr()
    def bg_loads():
        first_x()
        for l in stat_loads: vm.issue(l, "st")
    I("s_cmp_ge_u32 s2, 224")
    I(f"s_cbranch_scc1 {lab('fin_a')}")
    hop_b_issue(0)
    hop_b(0, role="s")
    slice1(0)
    slice2(0)
    bg_loads()
    I(f"s_branch {lab('q1_go')}")
    k.L(lab("fin_a"))
    vm.q = []
    bg_loads()
    k.L(lab("q1_go"))
    k.stamp(name="q1_ffn")
    F0, FX = 76, 64
    pxl = [f"global_load_dwordx3 {vr(F0+4*i,3)}, v2, {sp(WSP)} offset:{256*(i>>1)+16*(i&1)} sc1" for i in range(4)]
    def px_issue():
        I(f"s_lshl_b32 s{A0}, s{WAVE}, 9")
        I(f"s_add_u32 s{A0}, s{A0}, {hex(X2R)}")
        I(f"v_lshl_add_u32 v2, v7, 7, s{A0}")
        I("v_bfe_u32 v4, v1, 4, 1")
        I("v_lshl_add_u32 v2, v4, 5, v2")
        for l in pxl: I(l)
    wbase1(0)
    wreads(WB, 12, 0)
    wbase1(1)
    wreads(WB + 12, 12, 0)
    for ks in range(16):
        QP1 = eval(ENV("QP1", "{0: 3, 6: 2, 11: 1, 14: 0}"))
        if ks in QP1: I(f"s_setprio {QP1[ks]}")
        if ks + LOOK < 16: xload(ks + LOOK)
        if ks == int(ENV("STE", "10")):
            vm.wait("st")
            keep_ = list(vm.q)
            poll("ps", stat_loads, stat_tags, chk_label="ps_c")
            vm.q = keep_
            own_stats()
            bounce_params()
        if ks == int(ENV("PXE", "13")):
            I("s_cmp_ge_u32 s2, 224")
            I(f"s_cbranch_scc1 {lab('px_e')}")
            I(f"s_lshr_b32 s{A0}, s{IDX}, 8")
            I(f"s_cmp_lg_u32 s{A0}, s{QB}")
            I(f"s_cbranch_scc1 {lab('px_e')}")
            px_issue()
            k.L(lab("px_e"))
        if ks < 14:
            wbase1(ks + 2)
            wreads(WB + 12*((ks+2)%3), 12, 0)
        vm.wait(f"x{ks}", f" lgkmcnt({12 if ks < 14 else 6 if ks == 14 else 0})")
        qmfmas(WB + 12*(ks%3), ar(64+8*(ks % RING),4), ar(64+8*(ks % RING)+4,4), ks == 0)
    k.stamp(name="q1_loop")
    I("s_cmp_lt_u32 s2, 224")
    I(f"s_cbranch_scc1 {lab('fin_b')}")
    hop_b_issue(0, "f")
    hop_b(0, role="f")
    vm.drain()
    finalize(0)
    k.L(lab("fin_b"))
    k.stamp(name="q1_fin")
    I(f"s_lshr_b32 s{A0}, s{IDX}, 8")
    I(f"s_cmp_eq_u32 s{A0}, s{QB}")
    I(f"s_cbranch_scc1 {lab('dofix')}")
    I("s_cmp_lt_u32 s2, 224")
    I(f"s_cbranch_scc1 {lab('nofix')}")
    I(f"s_branch {lab('rebounce')}")
    k.L(lab("dofix"))
    I(f"s_lshl_b32 s{A0}, s{WAVE}, 11")
    I(f"v_add_u32 v12, s{A0}, v10")
    for q in range(2): wreads(WB + 12*q, 12, q)
    for r in range(4): I(f"v_mov_b32 v{72+r}, s{ONES}")
    I(f"s_lshl_b32 s{A0}, s{WAVE}, 8")
    I(f"s_add_u32 s{A0}, s{A0}, {LRD}")
    I("v_and_b32 v12, 48, v1")
    I(f"v_add_u32 v12, s{A0}, v12")
    I(f"v_mov_b32 v13, s{A0}")
    I("s_cmp_lt_u32 s2, 224")
    I(f"s_cbranch_scc1 {lab('px_go')}")
    px_issue()
    k.L(lab("px_go"))
    poll("px", pxl, [F0 + 4*i + 2 for i in range(4)], first_issued=True)
    for i in range(4):
        I(f"v_mov_b32 v{FX+2*i}, v{F0+4*i}")
        I(f"v_mov_b32 v{FX+2*i+1}, v{F0+4*i+1}")
    I("s_waitcnt lgkmcnt(0)")
    for q in range(2):
        for sec in range(3): mfma16(F0 + 4*sec, vr(WB+12*q+4*sec,4), vr(FX+4*q,4), q == 0)
        mfma16(F0 + 12, vr(72,4), vr(FX+4*q,4), q == 0)
        mfma16(F0 + 16, vr(FX+4*q,4), vr(FX+4*q,4), q == 0)
    I("s_mov_b32 exec_lo, 0x00010001"); I("s_mov_b32 exec_hi, 0x00010001")
    k.nop(6)
    for sec in range(3): I(f"ds_write_b128 v12, {vr(F0+4*sec,4)} offset:{64*sec}")
    I(f"ds_write_b32 v13, v{F0+12} offset:192")
    I(f"ds_write_b32 v13, v{F0+16} offset:196")
    exec_all()
    I(f"s_and_b32 s{A0}, s{IDX}, 31")
    I("v_and_b32 v15, 15, v1")
    I("v_lshrrev_b32 v14, 4, v1")
    I("v_lshlrev_b32 v14, 2, v14")
    I(f"v_sub_u32 v66, s{A0}, v14")
    I(f"v_sub_u32 v67, s{A0}, v15")
    I("v_lshlrev_b32 v15, 2, v15")
    I(f"v_add_u32 v15, {LFX + 128}, v15")
    I("v_and_b32 v12, 48, v1")
    I(f"v_add_u32 v12, {LFX}, v12")
    bar()
    I(f"s_lshr_b32 s{A0}, s{IDX}, 5")
    I(f"s_cmp_lg_u32 s{A0}, s{OT}")
    I(f"s_cbranch_scc1 {lab('nores')}")
    I(f"s_lshl_b32 s{A0}, s{KG}, 7")
    I(f"s_add_u32 s{A0}, s{A0}, {hex(X2R)}")
    I(f"v_lshl_add_u32 v14, v7, 4, s{A0}")
    I(f"v_cmp_eq_u32 vcc, s{IDX}, v{VTK}")
    I(f"s_and_saveexec_b64 {sp(T2)}, vcc")
    I(f"global_load_dwordx2 {vr(XG,2)}, v14, {sp(WSP)} sc1")
    I(f"global_load_dwordx2 {vr(XG+2,2)}, v14, {sp(WSP)} offset:32 sc1")
    I(f"v_mov_b32 v{RESR}, 0")
    exec_all()
    k.L(lab("nores"))
    I(f"s_lshr_b32 s{A0}, s{IDX}, 5")
    I(f"s_cmp_lg_u32 s{A0}, s{TT}")
    I(f"s_cbranch_scc1 {lab('rebounce')}")
    sum8(LRD, LFX)
    I(f"v_mov_b32 v13, {LFX + 192}")
    for sec in range(2): I(f"ds_read_b128 {vr(F0+4*sec,4)}, v12 offset:{64*sec}")
    I("ds_read_b64 v[64:65], v13")
    I("ds_read_b32 v68, v15")
    MK = [T0, T2, A0, A0 + 2, A0 + 4, A0 + 6]
    for t in range(2):
        I(f"v_cmp_eq_u32 {sp(MK[0])}, {16*t}, v67")
        for r in range(4): I(f"v_cmp_eq_u32 {sp(MK[1+r])}, {16*t+r}, v66")
        if t == 0:
            I("s_waitcnt lgkmcnt(0)")
            rowstats(64, 65, 69, 70, 71)
        else: k.nop(1)
        for sec in range(2):
            for r in range(4): I(f"v_cndmask_b32 v{ACC+8*sec+4*t+r}, v{ACC+8*sec+4*t+r}, v{F0+4*sec+r}, {sp(MK[0])}")
        I(f"v_cndmask_b32 v{MT[t]}, v{MT[t]}, v69, {sp(MK[0])}")
        I(f"v_cndmask_b32 v{AT[t]}, v{AT[t]}, v71, {sp(MK[0])}")
        for r in range(4): I(f"v_cndmask_b32 v{ACC+16+4*t+r}, v{ACC+16+4*t+r}, v68, {sp(MK[1+r])}")
    k.L(lab("rebounce"))
    bounce_params()
    k.L(lab("nofix"))
    vm.drain()
    k.stamp(name="q1_fix")
    q_epilogue(1)
    k.stamp(name="l1_qepi")
    attention(1)
    oproj(1)
    def cand_stats():
        I(f"s_cmp_lg_u32 s{WAVE}, 1")
        I(f"s_cbranch_scc1 {lab('cs_skip0')}")
        I(f"v_mov_b32 v40, s{CA}")
        I(f"v_mov_b32 v41, s{CB_}")
        I("v_cmp_gt_u32 vcc, 8, v1")
        I("v_and_b32 v42, 7, v1")
        I("s_nop 0")
        I("v_cndmask_b32 v40, v41, v40, vcc")
        I("v_lshrrev_b32 v41, 6, v40")
        I("v_lshl_add_u32 v41, v41, 3, v42")
        I("v_and_b32 v40, 63, v40")
        I("v_lshlrev_b32 v40, 4, v40")
        I("v_lshl_add_u32 v40, v41, 10, v40")
        I(f"v_add_u32 v40, {hex(ST[1])}, v40")
        exec_lo("0xffff")
        I(f"global_load_dwordx4 v[44:47], v40, {sp(WSP)} sc1")
        exec_all()
        k.L(lab("cs_skip0"))
    def cand_stats2():
        I(f"s_cmp_lg_u32 s{WAVE}, 1")
        I(f"s_cbranch_scc1 {lab('cs_skip')}")
        exec_lo("0xffff")
        poll("pc", [f"global_load_dwordx4 v[44:47], v40, {sp(WSP)} sc1"], [47], first_issued=True)
        for m in Q4 + ("row_half_mirror",):
            k.nop(1)
            for c in range(2): I(f"v_add_f32_dpp v{44+c}, v{44+c}, v{44+c} {m} row_mask:0xf bank_mask:0xf")
        rowstats(44, 45, 46, 47, 45)
        I("v_and_b32 v40, 8, v1")
        I(f"v_add_u32 v40, {LCS}, v40")
        I("v_mul_f32 v44, v46, v45")
        I("ds_write_b64 v40, v[44:45]")
        exec_all()
        k.L(lab("cs_skip"))
    SX, SD = 56, 64
    def cand_addr():
        I(f"v_mov_b32 v50, s{CA}")
        I(f"v_mov_b32 v51, s{CB_}")
        I("v_and_b32 v52, 1, v1")
        I("v_cmp_eq_u32 vcc, 1, v52")
        I("v_lshlrev_b32 v52, 3, v52")
        I(f"v_add_u32 v52, {LCS}, v52")
        I("v_cndmask_b32 v50, v50, v51, vcc")
        I("v_lshrrev_b32 v51, 4, v50")
        I("v_and_b32 v50, 15, v50")
        I("v_lshlrev_b32 v50, 4, v50")
        I("v_lshl_add_u32 v50, v51, 14, v50")
        I("v_and_b32 v51, 48, v1")
        I("v_lshl_add_u32 v50, v51, 4, v50")
        I(f"s_lshl_b32 s{A0}, s{WAVE}, 11")
        I(f"v_add_u32 v50, s{A0}, v50")
        I("s_cmp_lt_u32 s2, 224")
        I(f"s_cbranch_scc1 {lab('ca_done')}")
        I(f"v_mov_b32 v50, s{CA}")
        I(f"v_mov_b32 v51, s{CB_}")
        I("v_and_b32 v53, 16, v1")
        I("v_cmp_eq_u32 vcc, 16, v53")
        I(f"s_sub_u32 s{A0}, s2, 224")
        I(f"s_lshl_b32 s{A0}, s{A0}, 9")
        I("v_cndmask_b32 v50, v50, v51, vcc")
        I("v_lshrrev_b32 v51, 4, v50")
        I("v_and_b32 v50, 15, v50")
        I("v_lshlrev_b32 v50, 4, v50")
        I("v_lshl_add_u32 v50, v51, 14, v50")
        I("v_bfe_u32 v51, v1, 3, 1")
        I("v_lshl_add_u32 v50, v51, 8, v50")
        I(f"v_add_u32 v50, s{A0}, v50")
        k.L(lab("ca_done"))
        for f in range(8): I(f"v_accvgpr_read_b32 v{SD+f}, a{ADN+f}")
        for f in range(8): I(f"v_lshlrev_b32 v{SD+f}, 16, v{SD+f}")
    def cand_rows():
        I(f"global_load_dwordx4 {vr(SX,4)}, v50, {sp(XB_)} sc1")
        I(f"global_load_dwordx4 {vr(SX+4,4)}, v50, {sp(XB_)} offset:1024 sc1")
        I("ds_read_b64 v[54:55], v52")
    cand_addr()
    hop_a(1, cand_stats2, cand_stats, cand_rows)
    I("s_cmp_ge_u32 s2, 224")
    I(f"s_cbranch_scc1 {lab('sp_skip')}")
    I("v_and_b32 v17, 48, v1")
    I(f"s_lshl_b32 s{A0}, s{WAVE}, 7")
    I(f"s_add_u32 s{A0}, s{A0}, {LRD}")
    I("v_and_b32 v18, 1, v1")
    I("v_lshl_add_u32 v17, v18, 6, v17")
    I(f"v_add_u32 v17, s{A0}, v17")
    I("v_and_b32 v18, 31, v1")
    I("v_lshlrev_b32 v18, 2, v18")
    I(f"v_add_u32 v18, {LRD}, v18")
    yp_addr(22, 2)
    I(f"v_add_u32 v23, {hex(YP[3] - YP[2])}, v22")
    I(f"s_or_b32 s{A0}, s{CG}, s{WAVE}")
    I(f"s_cmp_eq_u32 s{A0}, 0")
    I("s_waitcnt vmcnt(1)")
    I(f"s_cbranch_scc1 {lab('sp_go')}")
    I("s_waitcnt vmcnt(0)")
    k.L(lab("sp_go"))
    for i in range(8):
        t0 = 24 + 2*(i & 1)
        unpack(t0, t0 + 1, SX + i)
        I(f"v_fma_f32 v{t0}, v{t0}, v55, -v54")
        I(f"v_fma_f32 v{t0+1}, v{t0+1}, v55, -v54")
        I(f"v_cvt_pk_bf16_f32 v{SX+i}, v{t0}, v{t0+1}")
    k.nop(2)
    I(f"v_mfma_f32_16x16x32_bf16 v[24:27], {ar(AGU,4)}, {vr(SX,4)}, 0")
    I(f"v_mfma_f32_16x16x32_bf16 v[24:27], {ar(AGU+4,4)}, {vr(SX+4,4)}, v[24:27]")
    I("s_mov_b32 exec_lo, 0x00030003")
    I("s_mov_b32 exec_hi, 0x00030003")
    k.nop(6)
    I("ds_write_b128 v17, v[24:27]")
    exec_all()
    bar()
    for i in range(8): I(f"ds_read_b32 v{SX+i}, v18 offset:{128*i}")
    I("s_waitcnt lgkmcnt(0)")
    for a_, b_ in ((0,1),(2,3),(4,5),(6,7),(0,2),(4,6),(0,4)): I(f"v_add_f32 v{SX+a_}, v{SX+a_}, v{SX+b_}")
    bf16r(SX)
    I(f"v_mul_f32 v16, {hex(f2u(-LOG2E))}, v{SX}")
    I("v_exp_f32 v16, v16")
    I("s_nop 0")
    I("v_add_f32 v16, 1.0, v16")
    I("v_rcp_f32 v16, v16")
    I("s_nop 0")
    I(f"v_mul_f32 v16, v16, v{SX}")
    bf16r(16)
    k.nop(2)
    I(f"v_mul_f32_dpp v16, v{SX}, v16 row_ror:8 row_mask:0xf bank_mask:0xf")
    bf16r(16)
    k.nop(1)
    for c_ in range(2):
        for f in range(8): I(f"v_readlane_b32 s{A0+f}, v16, {16*c_+f}")
        I(f"v_mul_f32 v{24+2*c_}, s{A0}, v{SD}")
        I(f"v_mul_f32 v{25+2*c_}, s{A0+1}, v{SD+1}")
        for f in range(2, 8): I(f"v_fmac_f32 v{24+2*c_+(f&1)}, s{A0+f}, v{SD+f}")
        I(f"v_add_f32 v{24+2*c_}, v{24+2*c_}, v{25+2*c_}")
        I(f"v_min_u32 v{24+2*c_}, 0xfffffffe, v{24+2*c_}")
        I(f"global_store_dword v{22+c_}, v{24+2*c_}, {sp(WSP)} sc1")
    I(f"s_branch {lab('sp_done')}")
    k.L(lab("sp_skip"))
    I("s_waitcnt vmcnt(0)")
    x_elem(SX, 16)
    k.L(lab("sp_done"))
    hop_b_issue(1)
    k.stamp(name="t_spec")
    X, Y = 96, 16
    for i in range(4): unpack(X + 2*i, X + 2*i + 1, XG + i)
    for r in range(8): I(f"v_sub_f32 v{Y+r}, v{X+r}, v{RESM}")
    for r in range(8): I(f"v_mul_f32 v{Y+r}, v{Y+r}, v{RESR}")
    for i in range(4): I(f"v_cvt_pk_bf16_f32 v{XG+i}, v{Y+2*i}, v{Y+2*i+1}")
    for i in range(4): unpack(Y + 2*i, Y + 2*i + 1, XG + i)
    for r in range(8): I(f"v_add_f32 v{X+r}, v{X+r}, v{Y+r}")
    for i in range(4): I(f"v_cvt_pk_bf16_f32 v{XG+i}, v{X+2*i}, v{X+2*i+1}")
    I(f"s_lshl_b32 s{A0}, s{KG}, 5")
    I(f"v_lshl_add_u32 v12, v7, 4, s{A0}")
    I(f"v_lshl_add_u32 v12, v{VTK}, 10, v12")
    I(f"v_permlane32_swap_b32 v{XG}, v{XG+2}")
    I(f"v_permlane32_swap_b32 v{XG+1}, v{XG+3}")
    hop_b(1)
    k.stamp(name="t_hopb")
    def out_store():
        I(f"v_cmp_ne_u32 vcc, s{IDX}, v{VTK}")
        I(f"s_and_saveexec_b64 {sp(T2)}, vcc")
        vm.issue(f"global_store_dwordx4 v12, {vr(XG,4)}, {sp(OUTP)} {ENV('OUTF', '')}")
        exec_all()
    out_store()
    slice1(1)
    slice2(1)
    k.stamp(name="t_slice")
    finalize(1)
    I(f"s_branch {lab('fdone')}")
    k.L(lab("hit"))
    I("s_cmp_lt_u32 s2, 224")
    I(f"s_cbranch_scc1 {lab('hit_out')}")
    I(f"s_cmp_eq_u32 s{YSEL}, 2")
    I(f"s_mov_b32 s{T0}, {hex(YP[2])}")
    I(f"s_cselect_b32 s{T0}, {hex(YP[3])}, s{T0}")
    gather("sg", [f"s{T0}"], 20, LRD, light=(ENV("SGL", "0") == "1"))
    I("v_and_b32 v16, 15, v1")
    I("v_lshlrev_b32 v16, 2, v16")
    I(f"v_add_u32 v16, {LRD}, v16")
    bar()
    I(f"s_cmp_lg_u32 s{WAVE}, 0")
    I(f"s_cbranch_scc1 {lab('hit_out')}")
    I(f"v_mov_b32 v17, v{SX}")
    I(f"s_cmp_eq_u32 s{YSEL}, 2")
    I("s_cselect_b64 vcc, -1, 0")
    I(f"v_permlane16_swap_b32 v{SX}, v17")
    I("s_nop 0")
    I(f"v_cndmask_b32 v{SX}, v{SX}, v17, vcc")
    finish_row(1, SX, 16)
    k.L(lab("hit_out"))
    out_store()
    k.L(lab("fdone"))
    I("s_cmp_lg_u32 s2, 0")
    I(f"s_cbranch_scc1 {lab('end')}")
    I(f"v_mov_b32 v12, {hex(NONCE)}")
    I(f"v_mov_b32 v13, s{TAG}")
    I("v_cmp_eq_u32 vcc, 0, v0")
    I(f"s_and_saveexec_b64 {sp(T2)}, vcc")
    I(f"s_cbranch_execz {lab('end')}")
    I(f"global_store_dword v12, v13, {sp(WSP)} sc1")
    k.L(lab("end"))
    k.stamp_end(0)
    if ENV("DBGT"):
        I("s_cmp_lt_u32 s2, 224")
        I(f"s_cbranch_scc1 {lab('exit')}")
        I(f"s_cmp_lg_u32 s{WAVE}, 0")
        I(f"s_cbranch_scc1 {lab('exit')}")
        I("s_load_dwordx2 s[4:5], s[0:1], 72")
        I("s_memrealtime s[6:7]")
        I("s_memtime s[8:9]")
        I("s_waitcnt lgkmcnt(0)")
        I("s_mov_b64 exec, 1")
        I("s_not_b32 s96, s96")
        I("s_sub_u32 s8, s8, s98")
        I("v_mov_b32 v1, 0"); I("v_mov_b32 v2, s96"); I("v_mov_b32 v3, s6"); I("v_mov_b32 v4, s8")
        I("global_atomic_umax v1, v2, s[4:5]")
        I("global_atomic_umax v1, v3, s[4:5] offset:4")
        I("global_atomic_umax v1, v4, s[4:5] offset:8")
    k.L(lab("exit"))
    I("s_endpgm")
    return k

if __name__ == "__main__":
    k = build_kernel()
    bad = check_hazards(k)
    for b in bad: print("HAZARD", b, file=sys.stderr)
    out = sys.argv[1] if len(sys.argv) > 1 else "cdna_kernels/" + NAME + ".s"
    txt = emit_file(HEADER, [k], single=(ENV("SINGLE", "0") == "1"))
    open(out, "w").write(txt)
    print("written", out, len(txt), "bytes; hazards:", len(bad))
```

```python
import sys, struct, os
from asmlib import *

NAME = "interleave_layers__softmax_full_mha__moe_arch_mod__prompt"
HEADER = open("cdna_kernels/" + NAME + ".s.ref").read().split("; Override launch")[0]
ENV = os.environ.get

XF = [0x000000, 0x200000]
KF = [0x400000, 0x800000]
VF = [0x600000, 0xA00000]
OF = [0xC00000, 0xE00000]
ST = [0x1000000, 0x1040000]
YP = [0x1080000, 0x1100000, 0x1180000, 0x1400000]
FLK = [0x1280000, 0x1288000]
FLO = [0x1300000, 0x1340000]
KEY = [0x12C0000, 0x12C8000]
X2R = 0x12A0000
NONCE = 0x12A2000
EPS = 1e-5
def f2u(x): return struct.unpack("<I", struct.pack("<f", x))[0]
QSCALE = 0.25 * 1.4426950408889634
LOG2E = 1.4426950408889634
SPIN_MAX = 1 << 18

CB, CBN = 131072, 20
LWQ = 8192
LST = CB + CBN * 512
LSA = LST
LPC = LST + 8192
LFX = LST + 8448
LVB = LST + 8704
LRD = LST + 10752
LFF = LST + 14848
LKY = LFF + 128
LCS = LFF + 768
LDS_BYTES = LFF + 1024

X0P, WQP, WOP, WSP, WRP, WGP, WUP, WDP, OUTP = 4, 6, 8, 10, 12, 14, 16, 18, 20
HEAD, QB, WAVE, TT, W1K, THR, CTR, SPIN, PASS, TAG, CG, TB, OA, KQ, OT, KG, IDX, WSUM = range(22, 40)
T0, T2 = 40, 42
A0 = 44
KB_, VB_, OB_, XB_ = 52, 54, 56, 58
RM, RR, RS_, ONES, C512, CEPS = 60, 61, 62, 63, 64, 65
CGP = 3
CA, CB_, YSEL = 100, 101, 30

def sp(i): return f"s[{i}:{i+1}]"

class VM:
    def __init__(self, k): self.k = k; self.q = []
    def issue(self, txt, tag=None):
        self.k.I(txt); self.q.append(tag)
    def wait(self, tag, extra=""):
        i = max(j for j, t in enumerate(self.q) if t == tag)
        n = len(self.q) - 1 - i
        assert n <= 63
        self.k.I(f"s_waitcnt vmcnt({n}){extra}")
    def drain(self, extra=""):
        self.k.I(f"s_waitcnt vmcnt(0){extra}"); self.q = []

def build_kernel():
    k = Kern(NAME + "_kernel", 256, 512, LDS_BYTES, 128, nagpr=128)
    I = k.I
    vm = VM(k)
    def lab(x): return f"L_{x}"
    def sadd64(d, b, const):
        I(f"s_add_u32 s{d}, s{b}, {hex(const)}"); I(f"s_addc_u32 s{d+1}, s{b+1}, 0")
    def swapop(sw, op, x, t):
        I(f"v_mov_b32 v{t}, v{x}"); k.nop(2); I(f"{sw} v{x}, v{t}"); I(f"{op} v{x}, v{x}, v{t}")
    def halfsum(op, x, t): swapop("v_permlane32_swap_b32", op, x, t)
    def rowreduce(op, x, t):
        swapop("v_permlane16_swap_b32", op, x, t); swapop("v_permlane32_swap_b32", op, x, t)
    def dppred(op, x, modes):
        for m in modes:
            k.nop(2); I(f"{op}_dpp v{x}, v{x}, v{x} {m} row_mask:0xf bank_mask:0xf")
    Q4 = ("quad_perm:[1,0,3,2]", "quad_perm:[2,3,0,1]")
    def allreduce(op, x, t):
        dppred(op, x, Q4 + ("row_half_mirror", "row_mirror")); rowreduce(op, x, t)
    def unpack(dlo, dhi, src):
        I(f"v_lshlrev_b32 v{dlo}, 16, v{src}"); I(f"v_and_b32 v{dhi}, 0xffff0000, v{src}")
    def bf16r(x):
        I(f"v_cvt_pk_bf16_f32 v{x}, v{x}, v{x}"); I(f"v_and_b32 v{x}, 0xffff0000, v{x}")
    def exec_lo(mask):
        I(f"s_mov_b32 exec_lo, {mask}"); I("s_mov_b32 exec_hi, 0")
    def exec_all(): I("s_mov_b64 exec, -1")
    def bar(lg=True):
        if lg: I("s_waitcnt lgkmcnt(0)")
        I("s_barrier")
    def poll(name, loads, tagregs, first_issued=False, check=None, chk_label=None):
        I(f"s_mov_b32 s{SPIN}, {SPIN_MAX}")
        SL = int(ENV("SLEEP", "0"))
        if chk_label: I(f"s_branch {lab(chk_label)}")
        elif first_issued: I(f"s_branch {lab(name+'_w')}")
        elif SL: I(f"s_branch {lab(name+'_l')}")
        k.L(lab(name))
        if SL: I(f"s_sleep {SL}")
        k.L(lab(name + "_l"))
        for l in loads: I(l)
        k.L(lab(name + "_w"))
        I("s_waitcnt vmcnt(0)")
        if chk_label: k.L(lab(chk_label))
        if check: check()
        else: I(f"v_cmp_ne_u32 vcc, s{TAG}, v{tagregs[0]}")
        for r in tagregs[1:]:
            I(f"v_cmp_ne_u32 {sp(T2)}, s{TAG}, v{r}")
            I(f"s_or_b64 vcc, vcc, {sp(T2)}")
        I(f"s_sub_u32 s{SPIN}, s{SPIN}, 1")
        I(f"s_cbranch_vccz {lab(name+'_ok')}")
        I(f"s_cbranch_scc0 {lab(name)}")
        k.L(lab(name + "_ok"))
        k.stampval(SPIN, "x" + name + "_spin")
        k.stamp(name="x" + name + "_ok")
        vm.q = []
    def mfma(d, a_, b_, c): I(f"v_mfma_f32_32x32x16_bf16 {vr(d,16)}, {a_}, {b_}, {vr(c,16) if c is not None else 0}")
    def rowstats(s1, s2, m, var, rstd):
        I(f"v_mul_f32 v{m}, s{C512}, v{s1}")
        I(f"v_mul_f32 v{var}, s{C512}, v{s2}")
        I(f"v_fma_f32 v{var}, -v{m}, v{m}, v{var}")
        I(f"v_max_f32 v{var}, 0, v{var}")
        I(f"v_add_f32 v{rstd}, s{CEPS}, v{var}")
        I(f"v_rsq_f32 v{rstd}, v{rstd}")

    ACC, WB = 16, 40
    CQ, CV, MV, AL = 96, 108, 76, 84
    MT, AT = [112, 114], [113, 115]
    S0, S1, P0, P1, VA, NEG, O, Q, KB = 16, 32, 48, 52, [56, 64], 72, 88, 104, 108
    AK, AV, AVS, VBASE = 112, 113, 114, 115
    XG, WR, VXO, VTK, RESM, RESR = 116, 120, 124, 125, 126, 127
    TK, TV = 64, 68
    def mfma16(d, a_, b_, first): I(f"v_mfma_f32_16x16x32_bf16 {vr(d,4)}, {a_}, {b_}, {0 if first else vr(d,4)}")
    AWO, ARS, AWS, AGU, ADN = 0, 32, 88, 112, 120

    I("s_cmp_ge_u32 s2, 256")
    I(f"s_cbranch_scc1 {lab('exit')}")
    k.stamp_begin()
    if ENV("DBGT"):
        I("s_memrealtime s[96:97]")
        I("s_memtime s[98:99]")
    I(f"s_load_dwordx4 s[4:7], s[0:1], 0")
    I(f"s_load_dwordx2 s[8:9], s[0:1], 16")
    I(f"s_load_dwordx2 s[10:11], s[0:1], 80")
    I(f"s_load_dwordx8 s[12:19], s[0:1], 32")
    I(f"s_load_dwordx2 s[20:21], s[0:1], 64")
    I("v_and_b32 v1, 63, v0")
    I("v_lshrrev_b32 v2, 6, v0")
    I("v_lshlrev_b32 v3, 4, v1")
    I(f"v_readfirstlane_b32 s{WAVE}, v2")
    I(f"s_and_b32 s{QB}, s2, 7")
    I(f"s_lshr_b32 s{HEAD}, s2, 3")
    if ENV("HX"):
        I(f"s_cmp_lt_u32 s{HEAD}, 16")
        I(f"s_cselect_b32 s{A0}, 8, 0")
        I(f"s_xor_b32 s{HEAD}, s{HEAD}, s{A0}")
    I(f"s_lshl_b32 s{TT}, s{QB}, 3")
    I(f"s_add_u32 s{TT}, s{TT}, s{WAVE}")
    I(f"s_lshl_b32 s{W1K}, s{WAVE}, 10")
    I("v_bfe_u32 v5, v1, 1, 2")
    I("v_bfe_u32 v6, v1, 3, 1")
    I("v_lshl_add_u32 v5, v6, 3, v5")
    I("v_bfe_u32 v6, v1, 4, 1")
    I("v_lshl_add_u32 v5, v6, 2, v5")
    I("v_bfe_u32 v6, v1, 5, 1")
    I("v_lshl_add_u32 v5, v6, 4, v5")
    I("v_mul_u32_u24 v5, 3072, v5")
    I("v_and_b32 v6, 1, v1")
    I("v_lshl_add_u32 v5, v6, 4, v5")
    I(f"s_lshl_b32 s{A0+1}, s{HEAD}, 5")
    I(f"v_add_u32 v5, s{A0+1}, v5")
    I("v_lshrrev_b32 v8, 4, v1")
    I("v_and_b32 v9, 7, v1")
    I("v_xor_b32 v8, v8, v9")
    I("v_lshlrev_b32 v8, 4, v8")
    I("v_lshrrev_b32 v9, 3, v1")
    I("v_lshl_add_u32 v8, v9, 10, v8")
    I(f"s_lshl_b32 s{A0}, s{TT}, 15")
    I(f"v_add_u32 v8, s{A0}, v8")
    I("v_xor_b32 v9, 64, v8")
    I("v_add_u32 v9, 0x2000, v9")
    XB3 = [A0 + 3, A0 + 4, A0 + 5]
    for b_ in range(3):
        I(f"s_mul_i32 s{XB3[b_]}, s{WAVE}, 12288")
        I(f"s_add_u32 s{XB3[b_]}, s{XB3[b_]}, {56*1024 + 4096*b_}")
        if b_:
            I(f"s_cmp_eq_u32 s{WAVE}, 7")
            I(f"s_cselect_b32 s{XB3[b_]}, {4096*(b_-1)}, s{XB3[b_]}")
    ROT = A0 + 6
    I(f"s_and_b32 s{ROT}, s{HEAD}, 3")
    I("s_waitcnt lgkmcnt(0)")
    def xstage(st):
        I(f"s_add_u32 s{A0}, s{ROT}, {st//2}")
        I(f"s_and_b32 s{A0}, s{A0}, 3")
        I(f"s_lshl_b32 s{A0}, s{A0}, 8")
        if st & 1: I(f"s_add_u32 s{A0}, s{A0}, 128")
        I(f"s_add_u32 s{T0}, s{X0P}, s{A0}")
        I(f"s_addc_u32 s{T0+1}, s{X0P+1}, 0")
        for i in range(4):
            if i == 2: sadd64(T0, T0, 16384)
            I(f"s_add_u32 m0, s{XB3[st % 3]}, {i*1024}")
            I("s_nop 0")
            vm.issue(f"global_load_lds_dwordx4 v{8 + (i&1)}, {sp(T0)}", f"x{st}")
    def wdma(j):
        I(f"s_mul_i32 s{A0}, s{ROT}, 12")
        I(f"s_add_u32 s{A0}, s{A0}, s{WAVE}")
        I(f"s_add_u32 s{A0}, s{A0}, {8*j}")
        I(f"s_sub_u32 s{A0+1}, s{A0}, 48")
        I(f"s_cmp_ge_u32 s{A0}, 48")
        I(f"s_cselect_b32 s{A0}, s{A0+1}, s{A0}")
        I(f"s_mul_i32 s{A0+1}, s{A0}, 21846")
        I(f"s_lshr_b32 s{A0+1}, s{A0+1}, 16")
        I(f"s_mul_i32 s{A0+2}, s{A0+1}, 3")
        I(f"s_sub_u32 s{A0}, s{A0}, s{A0+2}")
        I(f"s_mul_i32 s{A0+2}, s{A0+1}, {32*3072}")
        I(f"s_lshl_b32 s{T0}, s{A0}, 10")
        I(f"s_add_u32 s{A0+2}, s{A0+2}, s{T0}")
        I(f"s_add_u32 s{T0}, s{WQP}, s{A0+2}")
        I(f"s_addc_u32 s{T0+1}, s{WQP+1}, 0")
        I(f"s_lshl_b32 s{A0}, s{A0}, 14")
        I(f"s_lshl_b32 s{A0+1}, s{A0+1}, 10")
        I(f"s_add_u32 s{A0}, s{A0}, s{A0+1}")
        I(f"s_add_u32 m0, s{A0}, {LWQ}")
        I("s_nop 0")
        vm.issue(f"global_load_lds_dwordx4 v5, {sp(T0)}", f"W{j}")
    if ENV("CPF", "0") == "1":
        I(f"s_cmp_lg_u32 s{WAVE}, 7")
        I(f"s_cbranch_scc1 {lab('nocpf')}")
        I(f"s_lshl_b32 s{A0}, s{HEAD}, 13")
        I(f"v_lshl_add_u32 v12, v1, 7, s{A0}")
        I(f"v_cmp_gt_u32 vcc, {lab('exit')}-{lab('pc0')}, v12")
        I(f"s_getpc_b64 {sp(T0)}")
        k.L(lab("pc0"))
        I(f"s_and_saveexec_b64 {sp(T2)}, vcc")
        I(f"s_cbranch_execz {lab('cpf2')}")
        I(f"global_load_dword v127, v12, {sp(T0)}")
        k.L(lab("cpf2"))
        exec_all()
        k.L(lab("nocpf"))
    if ENV("ALLUP"):
        for j in range(8):
            if j < 6 and ENV("ALLUP") != "x": wdma(j)
            if ENV("ALLUP") != "w": xstage(j)
        k.stamp(name="a_issue")
        I("s_waitcnt vmcnt(0)")
        k.stamp(name="a_done")
        I("s_barrier")
        k.stamp(name="a_bar")
        I(f"s_branch {lab('end')}")
    UPW = int(ENV("UPW", "4"))
    UPX = int(ENV("UPX", "3"))
    I(f"v_mov_b32 v12, {hex(NONCE)}")
    vm.issue(f"global_load_dword v126, v12, {sp(WSP)} sc1", "nonce")
    wdma(0); xstage(0); wdma(1); xstage(1)
    if UPW > 2: wdma(2)
    if UPX > 2: xstage(2)
    for j in range(3, UPW): wdma(j)
    I(f"s_lshr_b32 s{CG}, s{HEAD}, 2")
    I(f"s_and_b32 s{TB}, s{HEAD}, 3")
    I(f"s_lshl_b32 s{A0}, s{QB}, 2")
    I(f"s_add_u32 s{TB}, s{TB}, s{A0}")
    I(f"s_and_b32 s{OA}, s{WAVE}, 1")
    I(f"s_lshr_b32 s{KQ}, s{WAVE}, 1")
    I(f"s_lshl_b32 s{OT}, s{TB}, 1")
    I(f"s_add_u32 s{OT}, s{OT}, s{OA}")
    I(f"s_lshl_b32 s{KG}, s{CG}, 2")
    I(f"s_add_u32 s{KG}, s{KG}, s{KQ}")
    I(f"s_mul_i32 s{CGP}, s{QB}, 28")
    I(f"s_min_u32 s{A0}, s{HEAD}, 27")
    I(f"s_add_u32 s{CGP}, s{CGP}, s{A0}")
    I(f"s_mov_b32 s{THR}, {hex(f2u(2.0**30)) if not ENV('THRZ') else 0}")
    I(f"s_mov_b32 s{ONES}, 0x3f803f80")
    I(f"s_mov_b32 s{C512}, {hex(f2u(1/512))}")
    I(f"s_mov_b32 s{CEPS}, {hex(f2u(EPS))}")
    def lane_terms():
        I("v_and_b32 v6, 31, v1")
        I("v_lshrrev_b32 v7, 5, v1")
    lane_terms()
    def w_addr():
        I("v_bfe_u32 v12, v1, 2, 2")
        I("v_lshl_add_u32 v12, v7, 4, v12")
        I("v_bfe_u32 v13, v1, 4, 1")
        I("v_lshl_add_u32 v12, v13, 2, v12")
        I("v_and_b32 v13, 3, v1")
        I("v_lshlrev_b32 v13, 3, v13")
        I("v_lshl_add_u32 v10, v12, 5, v13")
        I(f"v_add_u32 v10, {LWQ}, v10")
    w_addr()
    def wreads(dst, ad, ks):
        for sec in range(3):
            I(f"ds_read_b64_tr_b16 {vr(dst+4*sec,2)}, v{ad} offset:{sec*16384+ks*1024}")
            I(f"ds_read_b64_tr_b16 {vr(dst+4*sec+2,2)}, v{ad} offset:{sec*16384+ks*1024+256}")
    def qmfmas(wb, xa, xb, first, between=None):
        for i, (d, A_, B_) in enumerate(((ACC, vr(wb,4), xa), (ACC+4, vr(wb,4), xb), (ACC+8, vr(wb+4,4), xa),
                                         (ACC+12, vr(wb+4,4), xb), (ACC+16, xa, vr(wb+8,4)), (ACC+20, xb, vr(wb+8,4)))):
            mfma16(d, A_, B_, first)
            if between: between(i)
    I("v_bfe_u32 v12, v1, 1, 3")
    I("v_and_b32 v13, 15, v1")
    I("v_lshlrev_b32 v13, 7, v13")
    I("v_lshrrev_b32 v14, 4, v1")
    I("v_xor_b32 v14, v14, v12")
    I("v_lshl_add_u32 v2, v14, 4, v13")
    I("v_xor_b32 v4, 64, v2")
    def xfrags(st):
        I(f"v_add_u32 v14, s{XB3[st % 3]}, v2")
        I(f"v_add_u32 v15, s{XB3[st % 3]}, v4")
        vm.wait(f"x{st}")
        for h in range(2):
            for t in range(2): I(f"ds_read_b128 {ar(16*st+8*h+4*t,4)}, v{14+h} offset:{2048*t}")
    k.stamp(name="q0_issue")
    GU, ON = 76, 92
    for r in range(4): I(f"v_mov_b32 v{ON+r}, s{ONES}")
    xfrags(0)
    vm.wait("W1")
    I(f"v_readfirstlane_b32 s{TAG}, v126")
    I(f"s_mul_i32 s{TAG}, s{TAG}, 0x9E3779B1")
    I(f"s_add_u32 s{TAG}, s{TAG}, 0x7F4A7C15")
    I("s_barrier")
    k.stamp(name="q0_W")
    def capture(f):
        n0 = len(k.lines); f(); out = k.lines[n0:]; del k.lines[n0:]; return out
    def weave(main, fill):
        atoms = []; masked = False
        for l in fill:
            opens = ("exec" in l.split(",")[0] or "saveexec" in l) and "exec, -1" not in l
            if masked: atoms[-1].append(l)
            else: atoms.append([l])
            if opens: masked = True
            if "exec, -1" in l: masked = False
        per = -(-len(atoms) // len(main))
        for i, l in enumerate(main):
            k.lines.append(l)
            for at in atoms[i*per:(i+1)*per]: k.lines.extend(at)
    CSA = 96
    def colsum_reads():
        I(f"v_add_u32 v13, s{W1K}, v10")
        wreads(100, 13, 0)
    def colsum_mm(i):
        for sec in range(2): mfma16(CS3[sec], vr(100+4*sec,4), vr(ON,4), i == 0)
        mfma16(CS3[2], vr(ON,4), vr(108,4), i == 0)
    CS3 = [96, 116, 120]
    def colsum_write():
        I(f"s_lshl_b32 s{A0}, s{WAVE}, 8")
        I(f"s_add_u32 s{A0}, s{A0}, {LRD}")
        I("v_and_b32 v13, 48, v1")
        I(f"v_add_u32 v13, s{A0}, v13")
        I("v_and_b32 v14, 15, v1")
        I(f"v_lshl_add_u32 v14, v14, 2, s{A0}")
        I(f"ds_write_b32 v14, v{CS3[2]} offset:128")
        I("s_mov_b32 exec_lo, 0x00010001"); I("s_mov_b32 exec_hi, 0x00010001")
        for sec in range(2): I(f"ds_write_b128 v13, {vr(CS3[sec],4)} offset:{64*sec}")
        exec_all()
    def sum8(src, dst):
        I("v_lshlrev_b32 v13, 2, v1")
        I(f"v_add_u32 v14, {src}, v13")
        for w in range(8): I(f"ds_read_b32 v{104+w}, v14 offset:{256*w}")
        I(f"v_add_u32 v13, {dst}, v13")
        I("s_waitcnt lgkmcnt(0)")
        for a_, b_ in ((0,1),(2,3),(4,5),(6,7),(0,2),(4,6),(0,4)): I(f"v_add_f32 v{104+a_}, v{104+a_}, v{104+b_}")
        I("ds_write_b32 v13, v104")
    def wsave():
        I(f"s_mul_i32 s{A0}, s{WAVE}, 6144")
        I(f"s_add_u32 s{A0}, s{A0}, {LWQ}")
        I(f"v_add_u32 v13, s{A0}, v3")
        for i in range(6): I(f"ds_read_b128 {ar(AWS+4*i,4)}, v13 offset:{1024*i}")
    def wbase(q):
        I(f"s_add_u32 s{A0}, s{ROT}, {q}")
        I(f"s_and_b32 s{A0}, s{A0}, 3")
        I(f"s_lshl_b32 s{A0}, s{A0}, 12")
        I(f"v_add_u32 v11, s{A0}, v10")
    wbase(0)
    wreads(WB, 11, 0)
    wreads(WB + 12, 11, 1)
    ready = {2: 1, 5: 2, 8: 3, 10: 4, 13: 5}
    def const_area():
        I("v_and_b32 v13, 11, v0")
        I(f"v_mov_b32 v14, s{ONES}")
        I("v_cmp_eq_u32 vcc, 0, v13")
        I("v_lshlrev_b32 v13, 4, v0")
        I(f"v_add_u32 v13, {CB}, v13")
        I("v_cndmask_b32 v100, 0, v14, vcc")
        for r in range(1, 4): I(f"v_mov_b32 v{100+r}, v100")
        I("ds_write_b128 v13, v[100:103]")
        I(f"v_cmp_gt_u32 vcc, {(CBN*512 - 8192)//16}, v0")
        I(f"s_and_saveexec_b64 {sp(T2)}, vcc")
        I("ds_write_b128 v13, v[100:103] offset:8192")
        exec_all()
    def stats0():
        I("v_lshrrev_b32 v12, 4, v1")
        I("v_lshlrev_b32 v12, 2, v12")
        I("v_and_b32 v13, 15, v1")
        I("v_sub_u32 v12, v13, v12")
        for t in range(2): I(f"v_mov_b32 v{ON+t}, 0")
        for r in range(4):
            I(f"v_cmp_eq_u32 vcc, {r}, v12")
            k.nop(2)
            for t in range(2): I(f"v_cndmask_b32 v{ON+t}, v{ON+t}, v{GU+4*t+r}, vcc")
        for t in range(2): rowreduce("v_add_f32", ON + t, 12)
        for t in range(2): rowstats(GU + 8 + 4*t, ON + t, MT[t], 12, AT[t])
    ready = {5: 3, 10: 5}
    def smf(q_, half):
        ya, yb = ar(8*q_,4), ar(8*q_+4,4)
        if half == 0: mfma16(GU, ya, ya, q_ == 0); mfma16(GU + 4, yb, yb, q_ == 0)
        else: mfma16(GU + 8, vr(ON,4), ya, q_ == 0); mfma16(GU + 12, vr(ON,4), yb, q_ == 0)
    for ks in range(16):
        st = ks // 2
        pre = 0
        QP0 = eval(ENV("QP0", "{0: 3, 1: 2, 2: 1, 3: 3, 5: 2, 6: 1, 7: 0, 8: 3, 10: 2, 11: 1, 12: 0, 13: 3, 14: 2, 15: 1}"))
        if ks in QP0: I(f"s_setprio {QP0[ks]}")
        if ks % 2 == 0 and st + 1 < 8:
            xfrags(st + 1); pre = 4
        if ks + 2 in ready:
            vm.wait(f"W{ready[ks+2]}")
            I("s_barrier")
        if ks == 13: bar()
        if ks < 14:
            if (ks + 2) % 4 == 0: wbase((ks + 2)//4)
            wreads(WB + 12*((ks+2)%3), 11, (ks + 2) % 4)
            I(f"s_waitcnt lgkmcnt({min(15, 12 + pre) if ks % 2 == 0 else 12})")
        elif ks == 14: I("s_waitcnt lgkmcnt(0)")
        def loads():
            if UPW + ks < 6 and ENV("WFAST"): wdma(UPW + ks)
            if ks == 0 and UPX == 2: xstage(2)
            if ks == 0: xstage(3)
            if ks % 2 == 1 and st + 4 < 8: xstage(st + 4)
            if ks % 2 == 0 and UPW + ks//2 < 6 and not ENV("WFAST"): wdma(UPW + ks//2)
        def mm():
            xa, xb = ar(8*ks,4), ar(8*ks+4,4)
            if ks < 14: smf(ks, 0)
            if ks == 13:
                smf(13, 1)
                for q_ in (14, 15): smf(q_, 0); smf(q_, 1)
            qmfmas(WB + 12*(ks%3), xa, xb, ks == 0)
            if ks < 13: smf(ks, 1)
            if ks == 10: I("s_waitcnt lgkmcnt(10)"); colsum_mm(0)
            if ks == 11: I("s_waitcnt lgkmcnt(6)"); colsum_mm(1)
        fill = capture(loads)
        if ks == 9: fill += capture(colsum_reads)
        if ks == 12: fill += capture(colsum_write)
        if ks == 13: fill += capture(lambda: sum8(LRD, LPC)) + capture(const_area)
        if ks == 14: fill += capture(wsave) + capture(stats0)
        weave(capture(mm), fill)
        if ks == 10: wreads(100, 13, 8)
        k.stamp(name=f"xq0k{ks}")
    k.stamp(name="q0_loop")
    def bounce_params():
        I(f"s_lshl_b32 s{A0}, s{WAVE}, 8")
        I(f"s_add_u32 s{A0}, s{A0}, {LVB}")
        I("v_and_b32 v13, 15, v1")
        I(f"v_lshl_add_u32 v12, v13, 2, s{A0}")
        for t in range(2):
            I(f"ds_write_b32 v12, v{MT[t]} offset:{64*t}")
            I(f"ds_write_b32 v12, v{AT[t]} offset:{128+64*t}")
        I("v_and_b32 v14, 48, v1")
        I(f"v_add_u32 v12, s{A0}, v14")
        for t in range(2):
            I(f"ds_read_b128 {vr(MV+4*t,4)}, v12 offset:{64*t}")
            I(f"ds_read_b128 {vr(AL+4*t,4)}, v12 offset:{128+64*t}")
        I(f"v_add_u32 v12, {LPC}, v14")
        for sec in range(2): I(f"ds_read_b128 {vr(CQ+4*sec,4)}, v12 offset:{64*sec}")
        I("v_lshlrev_b32 v12, 2, v13")
        I(f"v_add_u32 v12, {LPC + 128}, v12")
        I(f"ds_read_b32 v{CV}, v12")
    bounce_params()

    def yp_addr(d, L):
        I(f"v_lshrrev_b32 v{d}, 4, v0")
        I(f"v_mul_u32_u24 v{d}, {224*64}, v{d}")
        I(f"v_and_b32 v{d+1}, 15, v0")
        I(f"v_lshl_add_u32 v{d}, v{d+1}, 2, v{d}")
        I(f"s_lshl_b32 s{T2}, s{CGP}, 6")
        I(f"s_add_u32 s{T2}, s{T2}, {hex(YP[L])}")
        I(f"v_add_u32 v{d}, s{T2}, v{d}")

    def q_epilogue(L):
        n = f"l{L}"
        sadd64(KB_, WSP, KF[L]); sadd64(VB_, WSP, VF[L]); sadd64(OB_, WSP, OF[L])
        for t in range(2): I(f"v_mul_f32 v{13+t}, {hex(f2u(QSCALE))}, v{AT[t]}")
        I(f"s_lshl_b32 s{A0}, s{HEAD}, 16")
        I(f"s_lshl_b32 s{A0+1}, s{TT}, 10")
        I(f"s_add_u32 s{A0}, s{A0}, s{A0+1}")
        I(f"v_add_u32 v4, s{A0}, v3")
        I(f"v_add_u32 v15, s{W1K}, v3")
        I("v_add_u32 v5, 0x10000, v15")
        I("s_waitcnt lgkmcnt(0)")
        for sec in (1, 0):
            for t in range(2):
                for r in range(4): I(f"v_fma_f32 v{ACC+8*sec+4*t+r}, -v{MT[t]}, v{CQ+4*sec+r}, v{ACC+8*sec+4*t+r}")
            for t in range(2):
                for r in range(4): I(f"v_mul_f32 v{ACC+8*sec+4*t+r}, v{AT[t] if sec else 13+t}, v{ACC+8*sec+4*t+r}")
            d = TK if sec else Q
            for i in range(4): I(f"v_cvt_pk_bf16_f32 v{d+i}, v{ACC+8*sec+2*i}, v{ACC+8*sec+2*i+1}")
        I(f"v_fma_f32 v{ACC+16}, -v{MV}, v{CV}, v{ACC+16}")
        I(f"v_permlane16_swap_b32 v{TK}, v{TK+2}")
        I(f"v_permlane16_swap_b32 v{TK+1}, v{TK+3}")
        I(f"v_permlane16_swap_b32 v{Q}, v{Q+2}")
        I(f"v_permlane16_swap_b32 v{Q+1}, v{Q+3}")
        vm.issue(f"global_store_dwordx4 v4, {vr(TK,4)}, {sp(KB_)} sc1")
        I(f"ds_write_b128 v15, {vr(TK,4)}")
        mfma(S0, vr(TK,4), vr(Q,4), None)
        for r in range(1, 8): I(f"v_fma_f32 v{ACC+16+r}, -v{MV+r}, v{CV}, v{ACC+16+r}")
        for r in range(8): I(f"v_mul_f32 v{ACC+16+r}, v{AL+r}, v{ACC+16+r}")
        for i in range(4): I(f"v_cvt_pk_bf16_f32 v{TV+i}, v{ACC+16+2*i}, v{ACC+16+2*i+1}")
        I(f"v_max3_f32 v2, v{S0}, v{S0+1}, v{S0+2}")
        I(f"v_max3_f32 v13, v{S0+3}, v{S0+4}, v{S0+5}")
        I(f"v_permlane32_swap_b32 v{TV}, v{TV+2}")
        I(f"v_permlane32_swap_b32 v{TV+1}, v{TV+3}")
        vm.issue(f"global_store_dwordx4 v4, {vr(TV,4)}, {sp(VB_)} sc1")
        I(f"ds_write_b128 v5, {vr(TV,4)}")
        if L == 0:
            I("s_cmp_ge_u32 s2, 224")
            I(f"s_cbranch_scc1 {lab('nomark')}")
            yp_addr(10, 0)
            I("v_mov_b32 v12, -1")
            I(f"global_store_dword v10, v12, {sp(WSP)} sc1")
            for b_ in range(1, 4):
                I(f"v_add_u32 v11, {hex(YP[b_] - YP[0])}, v10")
                I(f"global_store_dword v11, v12, {sp(WSP)} sc1")
            k.L(lab("nomark"))
        for r in range(6, 16, 4): I(f"v_max3_f32 v2, v2, v{S0+r}, v{S0+r+1}")
        for r in range(8, 16, 4): I(f"v_max3_f32 v13, v13, v{S0+r}, v{S0+r+1}")
        I("v_max_f32 v2, v2, v13")
        halfsum("v_max_f32", 2, 13)
        for r in range(16): I(f"v_sub_f32 v{NEG+r}, 0, v2")
        I("v_and_b32 v8, 15, v1")
        I("v_bfe_u32 v9, v1, 4, 1")
        I("v_lshlrev_b32 v10, 4, v8")
        I("v_lshl_add_u32 v10, v7, 8, v10")
        I(f"v_lshl_add_u32 v{VBASE}, v9, 16, v10")
        I(f"v_add_u32 v{VBASE}, 0x10000, v{VBASE}")
        I("v_xor_b32 v9, 1, v9")
        I(f"v_lshlrev_b32 v{AVS}, 13, v9")
        I(f"v_mov_b32 v{AK}, v3")
        I(f"v_mov_b32 v{AV}, v{VBASE}")
        I(f"s_mov_b32 s{PASS}, 0")
        I(f"s_lshl_b32 s{A0}, s{HEAD}, 10")
        I(f"s_add_u32 s{A0}, s{A0}, {hex(FLK[L])}")
        I(f"v_lshl_add_u32 v8, v1, 7, s{A0}")
        I(f"s_lshl_b32 s{A0+1}, s{QB}, 7")
        I(f"s_add_u32 s{A0}, s{A0}, s{A0+1}")
        I(f"v_mov_b32 v9, s{A0}")
        bar()

    def ffn_gu(m_):
        I(f"s_lshl_b32 s{A0+1}, s{CGP}, 4")
        I(f"v_mul_u32_u24 v14, 3584, v0")
        I(f"v_add_u32 v14, s{A0+1}, v14")
        vm.issue(f"global_load_dwordx4 {ar(AGU+4*m_,4)}, v14, {sp(WUP if m_ else WGP)}")
    def ffn_dn():
        I(f"s_lshl_b32 s{A0+1}, s{CGP}, 13")
        I(f"s_add_u32 s{A0+1}, s{A0+1}, s{W1K}")
        I(f"v_add_u32 v14, s{A0+1}, v3")
        vm.issue(f"global_load_dwordx4 {ar(ADN,4)}, v14, {sp(WDP)}")
    def attention(L):
        n = f"l{L}"
        def max16(dst, S, first):
            if first:
                I(f"v_max3_f32 v{dst}, v{S}, v{S+1}, v{S+2}"); rest = list(range(3, 16))
            else: rest = list(range(16))
            while rest:
                if len(rest) >= 2:
                    I(f"v_max3_f32 v{dst}, v{dst}, v{S+rest[0]}, v{S+rest[1]}"); rest = rest[2:]
                else:
                    I(f"v_max_f32 v{dst}, v{dst}, v{S+rest[0]}"); rest = rest[1:]
        def prime():
            I(f"ds_read_b128 {vr(KB,4)}, v{AK}")
            I(f"ds_read_b128 {vr(VA[0],4)}, v{AV}")
            I(f"ds_read_b128 {vr(VA[0]+4,4)}, v{AV} offset:512")
            I("s_waitcnt lgkmcnt(0)")
            mfma(S0, vr(KB,4), vr(Q,4), None if ENV("C0") else NEG)
            I(f"ds_read_b128 {vr(KB,4)}, v{AK} offset:1024")
            k.nop(11)
        def setup():
            halfsum("v_max_f32", 2, 7)
            for r in range(16): I(f"v_sub_f32 v{NEG+r}, 0, v2")
            I(f"v_mov_b32 v{AK}, v3")
            I(f"v_mov_b32 v{AV}, v{VBASE}")
            for r in range(16): I(f"v_mov_b32 v{O+r}, 0")
            for r in range(4): I(f"v_mov_b32 v{P1+r}, 0")
            for r in range(4): I(f"v_mov_b32 v{VA[1]+4+r}, 0")
            prime()
        def tile(u, extra=None, nokread=False, noqk=False, novread=False, first=False):
            extra = extra or {}
            if "p" in extra: I(f"s_setprio {extra['p']}")
            Sc, Sn = (S0, S1) if u % 2 == 0 else (S1, S0)
            Vc, Vo = VA[u % 2], VA[1 - u % 2]
            E = lambda r: I(f"v_exp_f32 v{Sc+r}, v{Sc+r}")
            Cv = lambda P, r, b: I(f"v_cvt_pk_bf16_f32 v{P+r}, v{Sc+b+2*r}, v{Sc+b+2*r+1}")
            E(0); E(1)
            if not first: mfma(O, vr(Vo+4,4), vr(P1,4), O)
            if 0 in extra: extra[0]()
            E(2); E(3); E(4)
            I("s_waitcnt lgkmcnt(0)")
            E(5)
            if not noqk: mfma(Sn, vr(KB,4), vr(Q,4), None if ENV("C0") else NEG)
            E(6)
            if not nokread: I(f"ds_read_b128 {vr(KB,4)}, v{AK} offset:{(u+2)*1024}")
            E(7)
            if not novread: I(f"ds_read_b128 {vr(Vo,4)}, v{AV} offset:{(u+1)*1024}")
            for r in range(4): Cv(P0, r, 0)
            E(8)
            if not novread: I(f"ds_read_b128 {vr(Vo+4,4)}, v{AV} offset:{(u+1)*1024+512}")
            E(9)
            mfma(O, vr(Vc,4), vr(P0,4), None if first else O)
            if 1 in extra: extra[1]()
            for r in range(10, 16): E(r)
            for r in range(4): Cv(P1, r, 8)
        def bump():
            I(f"v_add_u32 v{AK}, 0x2000, v{AK}")
            I(f"v_add_u32 v{AV}, v{AVS}, v{AV}")
        prime()
        k.stamp(name=f"x{n}_setup")
        I("s_setprio 3")
        def publish_kv():
            vm.drain()
            I("s_barrier")
            I(f"s_cmp_lg_u32 s{WAVE}, 0")
            I(f"s_cbranch_scc1 {lab(n+'_noflag')}")
            I(f"v_mov_b32 v14, s{TAG}")
            I("s_mov_b64 exec, 1")
            I(f"global_store_dword v9, v14, {sp(WSP)} sc1")
            exec_all()
            k.L(lab(n + "_noflag"))
        pl = f"global_load_dword v14, v8, {sp(WSP)} sc1"
        def poll_issue():
            I("s_mov_b64 exec, 0xff"); I(pl); exec_all()
        def poll_check():
            I("s_mov_b64 exec, 0xff")
            if L == 1:
                I(f"s_lshr_b32 s{A0}, s{IDX}, 8")
                I(f"s_bitset0_b32 exec_lo, s{A0}")
            poll(n + "_pk", [pl], [14], first_issued=True)
            exec_all()
        def stg(sl): return ARS + 8*(sl-1) if L == 0 else 64 + 8*((sl-1) % 6)
        def rload(sl):
            if L == 1:
                I(f"s_lshr_b32 s{A0+1}, s{IDX}, 8")
                I(f"s_sub_u32 s{A0+1}, s{A0+1}, s{QB}")
                I(f"s_and_b32 s{A0+1}, s{A0+1}, 7")
                if sl == 7:
                    I(f"s_cmp_eq_u32 s{A0+1}, 0")
                    I(f"s_cselect_b32 s{A0}, 7, s{A0+1}")
                    I("s_mov_b64 exec, 0xff")
                    poll(n + "_pk7", [pl], [14], first_issued=True)
                    exec_all()
                else:
                    I(f"s_sub_u32 s{A0+1}, s{A0+1}, 1")
                    I(f"s_cmp_lt_u32 s{A0+1}, {sl}")
                    I(f"s_cselect_b32 s{A0}, {sl+1}, {sl}")
                I(f"s_add_u32 s{A0}, s{QB}, s{A0}")
            else:
                I(f"s_add_u32 s{A0}, s{QB}, {sl}")
            I(f"s_and_b32 s{A0}, s{A0}, 7")
            I(f"s_sub_u32 s{A0}, s{A0}, s{QB}")
            I(f"s_lshl_b32 s{A0}, s{A0}, 13")
            I(f"v_add_u32 v13, s{A0}, v4")
            vm.issue(f"global_load_dwordx4 {ar(stg(sl),4)}, v13, {sp(KB_)} sc1", f"r{sl}")
            vm.issue(f"global_load_dwordx4 {ar(stg(sl)+4,4)}, v13, {sp(VB_)} sc1", f"r{sl}")
        def rwrite(sl):
            if f"r{sl}" in vm.q: vm.wait(f"r{sl}")
            I(f"ds_write_b128 v15, {ar(stg(sl),4)} offset:{sl*8192}")
            I(f"ds_write_b128 v5, {ar(stg(sl)+4,4)} offset:{sl*8192}")
        PUB, PI, PC = [int(x) for x in ENV("POLL", "1,4,5").split(",")]
        PR = {}
        if ENV("PBAL", "1") == "1":
            PR = {4: 2, 6: 1, 7: 0, 8: 3, 11: 2, 12: 1, 13: 0, 14: 3, 18: 2, 20: 1, 21: 0, 22: 3, 30: 2, 34: 1, 36: 0, 38: 3}
        for u in range(8):
            ex = {}
            if u == PUB: ex[0] = publish_kv
            if u == PI: ex[0] = poll_issue
            if u == PC: ex[0] = lambda: (poll_check(), rload(1), rload(2))
            if u in PR: ex["p"] = PR[u]
            tile(u, ex, nokread=(u >= 6), noqk=(u == 7), novread=(u == 7), first=(u == 0))
        bump()
        k.stamp(name=f"x{n}_ch0a")
        rwrite(1)
        B2 = ENV("B2", "0") == "1"
        if B2: rwrite(2)
        bar()
        k.stamp(name=n + "_c0")
        prime()
        def wo_addr():
            I(f"s_lshl_b32 s{A0}, s{WAVE}, 16")
            I(f"s_lshl_b32 s{A0+1}, s{CG}, 7")
            I(f"s_add_u32 s{A0}, s{A0}, s{A0+1}")
            I("v_lshrrev_b32 v2, 3, v1")
            I(f"v_lshl_add_u32 v2, v2, 10, s{A0}")
            I("v_and_b32 v14, 7, v1")
            I("v_lshl_add_u32 v2, v14, 4, v2")
        def wo_load(i):
            vm.issue(f"global_load_dwordx4 {ar(AWO+4*i,4)}, v2, {sp(WOP)}", "wo")
            if i < 7: I("v_add_u32 v2, 0x2000, v2")
        def misc_loads():
            I(f"s_lshl_b32 s{A0}, s{KG}, 9")
            I(f"s_lshl_b32 s{A0+1}, s{OT}, 15")
            I(f"s_add_u32 s{A0}, s{A0}, s{A0+1}")
            I("v_and_b32 v10, 15, v1")
            I(f"v_lshl_add_u32 v{VXO}, v10, 4, s{A0}")
            I("v_lshrrev_b32 v10, 5, v1")
            I(f"v_lshl_add_u32 v{VXO}, v10, 8, v{VXO}")
            I("v_bfe_u32 v10, v1, 4, 1")
            I(f"v_lshl_add_u32 v{VXO}, v10, 14, v{VXO}")
            I("v_and_b32 v10, 31, v1")
            I(f"s_lshl_b32 s{A0}, s{OT}, 5")
            I(f"v_add_u32 v{VTK}, s{A0}, v10")
            I("v_lshrrev_b32 v10, 5, v1")
            I(f"s_lshl_b32 s{A0}, s{KG}, 5")
            I(f"v_lshl_add_u32 v14, v10, 3, s{A0}")
            vm.issue(f"global_load_dwordx2 {vr(WR,2)}, v14, {sp(WRP)}")
            vm.issue(f"global_load_dwordx2 {vr(WR+2,2)}, v14, {sp(WRP)} offset:16")
            I(f"v_lshl_add_u32 v14, v{VTK}, 10, v14")
            vm.issue(f"global_load_dwordx2 {vr(XG,2)}, v14, {sp(X0P)}")
            vm.issue(f"global_load_dwordx2 {vr(XG+2,2)}, v14, {sp(X0P)} offset:16")
        sched = {
            1: {(0,0): lambda: rload(3), (3,0): lambda: rload(4), (4,0): lambda: rwrite(2), (6,0): bar},
            2: {(0,0): lambda: rload(5), (3,0): lambda: rload(6), (4,0): lambda: rwrite(3), (5,0): lambda: rwrite(4), (6,0): bar},
            3: {(0,0): lambda: rload(7)},
            4: {(0,0): lambda: rwrite(5), (1,0): lambda: rwrite(6), (2,0): lambda: rwrite(7), (6,0): bar},
        }
        def touches():
            I(f"s_cmp_ge_u32 s{WAVE}, 5")
            I(f"s_cbranch_scc1 {lab('t_done')}")
            I(f"s_cmp_ge_u32 s{WAVE}, 2")
            I(f"s_cbranch_scc1 {lab('t_lin')}")
            I(f"s_mul_i32 s{A0}, s{QB}, 7")
            I(f"s_lshr_b32 s{A0}, s{A0}, 1")
            I(f"s_lshl_b32 s{A0}, s{A0}, 7")
            I(f"s_mul_i32 s{A0+1}, s{HEAD}, {16*3584}")
            I(f"s_add_u32 s{A0}, s{A0}, s{A0+1}")
            I("v_lshrrev_b32 v14, 2, v1")
            I("v_mul_u32_u24 v14, 3584, v14")
            I("v_and_b32 v10, 3, v1")
            I("v_lshl_add_u32 v14, v10, 7, v14")
            I(f"v_add_u32 v14, s{A0}, v14")
            I(f"s_cmp_eq_u32 s{WAVE}, 0")
            I(f"s_cselect_b32 s{T0}, s{WGP}, s{WUP}")
            I(f"s_cselect_b32 s{T0+1}, s{WGP+1}, s{WUP+1}")
            I(f"s_branch {lab('t_go')}")
            k.L(lab("t_lin"))
            I(f"s_lshl_b32 s{A0}, s{CGP}, 13")
            I(f"s_lshl_b32 s{A0+1}, s{HEAD}, 14")
            I(f"s_and_b32 s{A0+2}, s{WAVE}, 1")
            I(f"s_lshl_b32 s{A0+2}, s{A0+2}, 13")
            I(f"s_add_u32 s{A0+1}, s{A0+1}, s{A0+2}")
            I(f"s_cmp_eq_u32 s{WAVE}, 2")
            I(f"s_cselect_b32 s{A0}, s{A0}, s{A0+1}")
            I(f"s_cselect_b32 s{T0}, s{WDP}, s{WOP}")
            I(f"s_cselect_b32 s{T0+1}, s{WDP+1}, s{WOP+1}")
            I(f"v_lshl_add_u32 v14, v1, 7, s{A0}")
            k.L(lab("t_go"))
            I(f"global_load_dword v9, v14, {sp(T0)}")
            k.L(lab("t_done"))
        NU = 5
        if B2:
            del sched[1][(4,0)]; del sched[1][(6,0)]
            for t_ in (11, 12, 13, 14, 18, 20, 21): PR.pop(t_, None)
            PR.update({15: 2, 19: 1, 21: 0})
        if L == 0:
            NU = 6
            def pretouch():
                if ENV("PT") == "1":
                    I(f"s_cmp_lg_u32 s{WAVE}, 6")
                    I(f"s_cbranch_scc1 {lab('pt_done')}")
                    I("v_mul_u32_u24 v14, 0x50000, v1")
                    I(f"global_load_dword v11, v14, {sp(WSP)}")
                    I("v_lshlrev_b32 v14, 15, v1")
                    I(f"global_load_dword v11, v14, {sp(OUTP)}")
                    k.L(lab("pt_done"))
                else:
                    I("v_mul_u32_u24 v14, 0xa000, v0")
                    I(f"global_load_dword v11, v14, {sp(WSP)}")
                    I("v_lshlrev_b32 v14, 12, v0")
                    I(f"global_load_dword v11, v14, {sp(OUTP)}")
            if ENV("PT"): sched[2][(7,0)] = pretouch
            if ENV("TL", "1") == "0":
                sched[2][(6,1)] = touches
                sched[3][(3,0)] = wo_addr
                for i in range(4): sched[3][(4 + i, 0)] = (lambda i=i: wo_load(i))
                for i, u in enumerate((3, 4, 5, 7)): sched[4][(u, 0)] = (lambda i=i: wo_load(4 + i))
                sched[5] = {(0,0): lambda: ffn_gu(0), (2,0): misc_loads, (4,0): lambda: ffn_gu(1), (6,0): ffn_dn}
            else:
                sched[3][(0,1)] = touches
                sched[4][(3,0)] = wo_addr
                for i, u in enumerate((4, 5, 7)): sched[4][(u, 0)] = (lambda i=i: wo_load(i))
                sched[5] = {(i, 0): (lambda i=i: wo_load(3 + i)) for i in range(5)}
                sched[5][(5,0)] = lambda: ffn_gu(0)
                sched[5][(6,0)] = lambda: ffn_gu(1)
                sched[5][(7,0)] = ffn_dn
                sched[5][(7,1)] = misc_loads
            PR[40] = 3
        else:
            sched[2][(7,0)] = poll_issue
        for c in range(1, NU):
            for u in range(8):
                ex = {sl: f for (uu, sl), f in sched[c].items() if uu == u}
                if 8*c + u in PR: ex["p"] = PR[8*c + u]
                tile(u, ex)
            bump()
            k.stamp(name=f"x{n}_ch{c}")
        I(f"s_mov_b32 s{CTR}, {NU}")
        k.lines.append(".p2align 6")
        k.L(lab(n + "_loop"))
        if ENV("PEND", "1") == "0":
            I(f"s_cmp_lt_u32 s{CTR}, 5"); I(f"s_cbranch_scc1 {lab(n+'_pd')}")
            I("s_setprio 2")
            I(f"s_cmp_lt_u32 s{CTR}, 6"); I(f"s_cbranch_scc1 {lab(n+'_pd')}")
            I("s_setprio 1")
            I(f"s_cmp_lt_u32 s{CTR}, 7"); I(f"s_cbranch_scc1 {lab(n+'_pd')}")
            I("s_setprio 0")
            k.L(lab(n + "_pd"))
            for u in range(8): tile(u)
        else:
            I(f"s_cmp_lt_u32 s{CTR}, 6"); I(f"s_cbranch_scc1 {lab(n+'_pd')}")
            I("s_setprio 2")
            I(f"s_cmp_lt_u32 s{CTR}, 7"); I(f"s_cbranch_scc1 {lab(n+'_pd')}")
            I("s_setprio 1")
            k.L(lab(n + "_pd"))
            for u in range(8):
                if u == 5:
                    I(f"s_cmp_lt_u32 s{CTR}, 7"); I(f"s_cbranch_scc1 {lab(n+'_pe')}")
                    I("s_setprio 0")
                    k.L(lab(n + "_pe"))
                tile(u)
        bump()
        I(f"s_add_u32 s{CTR}, s{CTR}, 1")
        I(f"s_cmp_lt_u32 s{CTR}, 8")
        I(f"s_cbranch_scc1 {lab(n+'_loop')}")
        mfma(O, vr(VA[1]+4,4), vr(P1,4), O)
        I("s_waitcnt lgkmcnt(0)")
        k.stamp(name=n + "_attn")
        k.nop(12)
        I(f"s_cmp_lg_u32 s{PASS}, 0")
        I(f"s_cbranch_scc1 {lab(n+'_fin')}")
        I(f"v_cmp_nge_f32 vcc, s{THR}, v{O+8}")
        k.nop(2)
        I(f"s_cbranch_vccz {lab(n+'_fin')}")
        I(f"s_mov_b32 s{PASS}, 1")
        I(f"v_mov_b32 v{AK}, v3")
        I("v_mov_b32 v2, 0xff800000")
        I(f"s_mov_b32 s{CTR}, 0")
        k.L(lab(n + "_maxloop"))
        I(f"ds_read_b128 {vr(KB,4)}, v{AK}")
        I("s_waitcnt lgkmcnt(0)")
        mfma(S0, vr(KB,4), vr(Q,4), None)
        I(f"v_add_u32 v{AK}, 0x400, v{AK}")
        k.nop(12)
        max16(2, S0, False)
        I(f"s_add_u32 s{CTR}, s{CTR}, 1")
        I(f"s_cmp_lt_u32 s{CTR}, 64")
        I(f"s_cbranch_scc1 {lab(n+'_maxloop')}")
        setup()
        I(f"s_mov_b32 s{CTR}, 0")
        I(f"s_branch {lab(n+'_loop')}")
        k.L(lab(n + "_fin"))
        I(f"v_rcp_f32 v2, v{O+8}")
        I("s_nop 0")
        for r in range(8): I(f"v_mul_f32 v{O+r}, v{O+r}, v2")
        for r in range(4): I(f"v_cvt_pk_bf16_f32 v{P0+r}, v{O+2*r}, v{O+2*r+1}")
        I(f"global_store_dwordx4 v4, {vr(P0,4)}, {sp(OB_)} sc1")

    def oproj(L):
        n = f"l{L}"
        OBf, AC, X, Y = 64, 32, 96, 16
        lane_terms()
        I(f"s_lshl_b32 s{A0}, s{KQ}, 19")
        I(f"s_lshl_b32 s{A0+1}, s{OT}, 10")
        I(f"s_add_u32 s{A0}, s{A0}, s{A0+1}")
        I(f"v_add_u32 v10, s{A0}, v3")
        I(f"s_lshl_b32 s{A0}, s{WAVE}, 13")
        I(f"s_add_u32 s{A0}, s{A0}, 0x10000")
        I(f"v_add_u32 v12, s{A0}, v3")
        I(f"s_lshl_b32 s{A0}, s{TT}, 12")
        I(f"s_lshl_b32 s{A0+1}, s{HEAD}, 7")
        I(f"s_add_u32 s{A0}, s{A0}, s{A0+1}")
        I(f"s_add_u32 s{A0}, s{A0}, {hex(FLO[L])}")
        I(f"v_mov_b32 v13, s{A0}")
        I(f"v_mov_b32 v14, s{TAG}")
        I(f"s_lshl_b32 s{A0}, s{OT}, 12")
        I(f"s_lshl_b32 s{A0+1}, s{KQ}, 10")
        I(f"s_add_u32 s{A0}, s{A0}, s{A0+1}")
        I(f"s_add_u32 s{A0}, s{A0}, {hex(FLO[L])}")
        I(f"v_lshl_add_u32 v31, v1, 7, s{A0}")
        FLW = ENV("FLW", "0") == "1"
        if not FLW:
            I(f"s_lshl_b32 s{A0}, s{QB}, 15")
            I(f"s_add_u32 s{A0}, s{A0}, {hex(FLO[L])}")
            I(f"v_lshl_add_u32 v31, v6, 7, s{A0}")
        vm.drain()
        if not FLW:
            I("s_barrier")
            I(f"s_cmp_lg_u32 s{WAVE}, 0")
            I(f"s_cbranch_scc1 {lab(n+'_nof')}")
        I("s_mov_b64 exec, 1")
        I(f"global_store_dword v13, v14, {sp(WSP)} sc1")
        exec_all()
        if not FLW: k.L(lab(n + "_nof"))
        if L == 0 and FLW: I("s_barrier")
        k.stamp(name=n + "_odrain")
        if L == 0:
            for i in range(8): I(f"ds_write_b128 v12, {ar(AWO+4*i,4)} offset:{1024*i}")
            I(f"global_load_dwordx4 v[16:19], v3, {sp(WRP)}")
            I(f"s_lshl_b32 s{A0}, s{WAVE}, 11")
            I(f"v_lshl_add_u32 v13, v1, 5, s{A0}")
            I(f"ds_write_b128 v13, {ar(AGU,4)}")
            I(f"ds_write_b128 v13, {ar(AGU+4,4)} offset:16")
            I(f"v_add_u32 v13, s{W1K}, v3")
            I(f"ds_write_b128 v13, {ar(ADN,4)} offset:16384")
            I("v_bfe_u32 v13, v1, 2, 2")
            I("v_and_b32 v14, 3, v1")
            I("v_lshl_add_u32 v12, v7, 2, v13")
            I("v_lshlrev_b32 v12, 7, v12")
            I("v_lshl_add_u32 v12, v14, 3, v12")
            I("v_bfe_u32 v15, v1, 4, 1")
            I("v_lshl_add_u32 v12, v15, 5, v12")
            I(f"s_lshl_b32 s{A0+1}, s{KQ}, 5")
            I(f"v_xor_b32 v12, s{A0+1}, v12")
            I(f"s_lshl_b32 s{A0+1}, s{KQ}, 14")
            I(f"s_add_u32 s{A0+1}, s{A0+1}, 0x10000")
            I(f"v_add_u32 v12, s{A0+1}, v12")
            I("v_xor_b32 v15, 64, v12")
            bar()
            for i in range(8):
                for b in range(2):
                    I(f"ds_read_b64_tr_b16 {ar(AWO+8*i+4*b,2)}, v{15 if b else 12} offset:{2048*i}")
                    I(f"ds_read_b64_tr_b16 {ar(AWO+8*i+4*b+2,2)}, v{15 if b else 12} offset:{2048*i+1024}")
                if i % 2 == 1: I("s_waitcnt lgkmcnt(0)")
            I("v_lshrrev_b32 v15, 4, v1")
            I("v_lshl_add_u32 v13, v15, 3, v13")
            I("v_lshlrev_b32 v13, 5, v13")
            I("v_lshl_add_u32 v13, v14, 3, v13")
            I(f"v_add_u32 v13, s{A0}, v13")
            for i in range(2):
                I(f"ds_read_b64_tr_b16 {ar(AGU+4*i,2)}, v13 offset:{1024*i}")
                I(f"ds_read_b64_tr_b16 {ar(AGU+4*i+2,2)}, v13 offset:{1024*i+128}")
            I("v_lshlrev_b32 v13, 1, v0")
            for f in range(8): I(f"ds_read_u16 a{ADN+f}, v13 offset:{16384+1024*f}")
            I("v_mov_b32 v20, 0")
            I("s_waitcnt vmcnt(0)")
            for r in range(4): I(f"v_dot2_f32_bf16 v20, v{16+r}, s{ONES}, v20")
            k.nop(1)
            allreduce("v_add_f32", 20, 21)
            I("s_nop 0")
            I(f"v_readfirstlane_b32 s{WSUM}, v20")
        NF = 0
        I(f"s_lshl_b32 s{A0}, s{OA}, 15")
        for g in range(4):
            I(f"s_xor_b32 s{A0+1}, s{KQ}, {g}")
            I(f"s_lshl_b32 s{A0+1}, s{A0+1}, 13")
            I(f"s_add_u32 s{A0+1}, s{A0+1}, s{A0}")
            I(f"v_add_u32 v{27+g}, s{A0+1}, v3")
        for i in range(4): unpack(X + 2*i, X + 2*i + 1, XG + i)
        if L == 1:
            for r in range(8): I(f"v_sub_f32 v{Y+r}, v{X+r}, v{RESM}")
            for r in range(8): I(f"v_mul_f32 v{Y+r}, v{Y+r}, v{RESR}")
            for i in range(4): I(f"v_cvt_pk_bf16_f32 v{XG+i}, v{Y+2*i}, v{Y+2*i+1}")
            for i in range(4): unpack(Y + 2*i, Y + 2*i + 1, XG + i)
            for r in range(8): I(f"v_add_f32 v{X+r}, v{X+r}, v{Y+r}")
            for i in range(4): I(f"v_cvt_pk_bf16_f32 v{XG+i}, v{X+2*i}, v{X+2*i+1}")
            for i in range(4): unpack(X + 2*i, X + 2*i + 1, XG + i)
        if L == 1:
            I("v_lshlrev_b32 v13, 2, v6")
            I(f"v_add_u32 v13, {LKY}, v13")
            I("ds_read_b32 v16, v13")
            I("s_waitcnt lgkmcnt(0)")
            for rnd in range(3):
                I("v_mov_b32 v17, v16")
                dppred("v_max_u32", 17, Q4 + ("row_half_mirror", "row_mirror"))
                swapop("v_permlane16_swap_b32", "v_max_u32", 17, 18)
                I("v_cmp_ne_u32 vcc, v17, v16")
                if rnd: I(f"v_readfirstlane_b32 s{(CA, CB_)[rnd-1]}, v17")
                else: I("s_nop 0")
                I("s_nop 0")
                I("v_cndmask_b32 v16, 0, v16, vcc")
            for c_ in (CA, CB_):
                I(f"s_and_b32 s{c_}, s{c_}, 0x7ff")
                I(f"s_sub_u32 s{c_}, 2047, s{c_}")
        if FLW:
            I("s_mov_b64 exec, 0xff")
        else:
            I(f"s_cmp_lg_u32 s{WAVE}, 0")
            I(f"s_cbranch_scc1 {lab(n+'_owait')}")
            exec_lo(-1)
        poll(n + "_po", [f"global_load_dword v14, v31, {sp(WSP)} sc1"], [14])
        exec_all()
        if not FLW:
            k.L(lab(n + "_owait"))
            bar()
        k.stamp(name=n + "_opoll")
        for i in range(8):
            I(f"global_load_dwordx4 {vr(OBf+4*i,4)}, v10, {sp(OB_)} sc1")
            if i < 7: I("v_add_u32 v10, 0x10000, v10")
        for i in range(8):
            I(f"s_waitcnt vmcnt({7-i+NF})")
            for b in range(2): mfma(AC + 16*b, ar(AWO+8*i+4*b,4), vr(OBf+4*i,4), AC + 16*b if i else None)
        if FLW: bar()
        k.stamp(name=n + "_omm")
        I(f"s_lshl_b32 s{A0}, s{OA}, 12")
        I(f"s_lshl_b32 s{A0+1}, s{KQ}, 10")
        I(f"s_add_u32 s{A0}, s{A0}, s{A0+1}")
        I(f"s_add_u32 s{A0}, s{A0}, {LSA}")
        I(f"v_add_u32 v13, s{A0}, v3")
        sadd64(XB_, WSP, XF[L])
        k.nop(5)
        for g in range(1, 4):
            for hf in range(2): I(f"ds_write_b128 v{27+g}, {vr(AC+8*g+4*hf,4)} offset:{2048*g+1024*hf}")
        for r in range(8): I(f"v_add_f32 v{AC+r}, v{AC+r}, v{X+r}")
        bar()
        k.stamp(name="x" + n + "_red")
        for g in range(1, 4):
            for hf in range(2): I(f"ds_read_b128 {vr(AC+8*g+4*hf,4)}, v27 offset:{2048*g+1024*hf}")
        I("s_waitcnt lgkmcnt(4)")
        for r in range(8): I(f"v_add_f32 v{AC+r}, v{AC+r}, v{AC+8+r}")
        I("s_waitcnt lgkmcnt(0)")
        for r in range(8): I(f"v_add_f32 v{AC+16+r}, v{AC+16+r}, v{AC+24+r}")
        for r in range(8): I(f"v_add_f32 v{AC+r}, v{AC+r}, v{AC+16+r}")
        for i in range(4): I(f"v_cvt_pk_bf16_f32 v{24+i}, v{AC+2*i}, v{AC+2*i+1}")
        for i in range(4): I(f"v_mov_b32 v{XG+i}, v{24+i}")
        I("v_permlane32_swap_b32 v24, v26")
        I("v_permlane32_swap_b32 v25, v27")
        I(f"global_store_dwordx4 v{VXO}, v[24:27], {sp(XB_)} sc1")
        for i in range(4):
            I(f"v_dot2_f32_bf16 v16, v{XG+i}, s{ONES}, {'v16' if i else 0}")
            I(f"v_dot2_f32_bf16 v17, v{XG+i}, v{XG+i}, {'v17' if i else 0}")
            I(f"v_dot2_f32_bf16 v18, v{XG+i}, v{WR+i}, {'v18' if i else 0}")
        k.nop(3)
        I("ds_write_b96 v13, v[16:18]")
        k.stamp(name="x" + n + "_epi")
        I("s_waitcnt vmcnt(0) lgkmcnt(0)")
        k.stamp(name="x" + n + "_xdrain")
        I("s_waitcnt vmcnt(0) lgkmcnt(0)")
        I("s_barrier")
        I(f"s_cmp_lg_u32 s{WAVE}, 0")
        I(f"s_cbranch_scc1 {lab(n+'_nost')}")
        I("v_lshlrev_b32 v13, 4, v6")
        I("v_lshl_add_u32 v13, v7, 12, v13")
        I(f"v_add_u32 v13, {LSA}, v13")
        for j in range(8): I(f"ds_read_b96 {vr(32+4*j,3)}, v13 offset:{512*j}")
        I(f"s_lshl_b32 s{A0}, s{TB}, 3")
        I(f"s_add_u32 s{A0}, s{A0}, s{CG}")
        I(f"s_lshl_b32 s{A0}, s{A0}, 10")
        I(f"s_add_u32 s{A0}, s{A0}, {hex(ST[L])}")
        I(f"v_add_u32 v13, s{A0}, v3")
        I(f"v_mov_b32 v35, s{TAG}")
        I("s_waitcnt lgkmcnt(0)")
        for j in range(1, 8):
            for c in range(3): I(f"v_add_f32 v{32+c}, v{32+c}, v{32+4*j+c}")
        I(f"global_store_dwordx4 v13, v[32:35], {sp(WSP)} sc1")
        k.L(lab(n + "_nost"))
        k.stamp(name=n + "_stpub")

    def hop_a(L, after_poll=None, before_poll=None, after_bar=None):
        n = f"l{L}"
        I(f"s_lshl_b32 s{A0}, s{TB}, 13")
        I(f"s_add_u32 s{A0}, s{A0}, {hex(ST[L])}")
        I(f"v_lshl_add_u32 v12, v0, 4, s{A0}")
        loads = [f"global_load_dwordx4 v[32:35], v12, {sp(WSP)} sc1"]; tags = [35]
        if ENV("HA2", "1") == "1":
            I(f"s_cmp_lg_u32 s{WAVE}, 0")
            I(f"s_cbranch_scc1 {lab(n+'_a1')}")
            if L == 0:
                I(f"s_lshl_b32 s{A0}, s{QB}, 15")
                I(f"s_add_u32 s{A0}, s{A0}, {hex(ST[L])}")
            I(f"s_add_u32 s{A0}, s{A0}, 1020")
            I(f"v_lshl_add_u32 v13, v1, 10, s{A0}")
            exec_lo(-1 if L == 0 else "0xff")
            poll(n + "_p1", [f"global_load_dword v36, v13, {sp(WSP)} sc1"], [36])
            exec_all()
            k.L(lab(n + "_a1"))
            I("s_barrier")
        else:
            if L == 0:
                I(f"s_lshr_b32 s{A0}, s{TT}, 1")
                I(f"s_lshl_b32 s{A0}, s{A0}, 13")
                I(f"s_add_u32 s{A0}, s{A0}, {hex(ST[L] + 12)}")
                I("v_and_b32 v13, 7, v1")
                I(f"v_lshl_add_u32 v13, v13, 10, s{A0}")
                loads.append(f"global_load_dword v36, v13, {sp(WSP)} sc1"); tags.append(36)
        if before_poll: before_poll()
        poll(n + "_pa", loads, tags)
        I("v_lshlrev_b32 v13, 4, v0")
        I("ds_write_b96 v13, v[32:34]")
        if after_poll: after_poll()
        bar()
        k.stamp(name=n + "_hopa")
        if after_bar: after_bar()
        for c in range(8): I(f"ds_read_b96 {vr(16+4*c,3)}, v3 offset:{1024*c}")
        I("s_waitcnt lgkmcnt(0)")
        for a_, b_ in ((0,1),(2,3),(4,5),(6,7),(0,2),(4,6),(0,4)):
            for c in range(3): I(f"v_add_f32 v{16+4*a_+c}, v{16+4*a_+c}, v{16+4*b_+c}")
        rowstats(16, 17, RESM, 20, RESR)
        I(f"s_or_b32 s{A0}, s{CG}, s{WAVE}")
        I(f"s_cmp_lg_u32 s{A0}, 0")
        I(f"s_cbranch_scc1 {lab(n+'_nokey')}")
        I(f"v_fma_f32 v18, -v{RESM}, s{WSUM}, v18")
        I(f"v_mul_f32 v18, v18, v{RESR}")
        bf16r(18)
        I("v_ashrrev_i32 v19, 31, v18")
        I("v_or_b32 v19, 0x80000000, v19")
        I("v_xor_b32 v19, v19, v18")
        I("v_and_b32 v19, 0xffff0000, v19")
        I(f"s_lshl_b32 s{A0}, s{TB}, 6")
        I(f"s_sub_u32 s{A0}, 2047, s{A0}")
        I(f"v_sub_u32 v20, s{A0}, v1")
        I("v_or_b32 v20, v19, v20")
        I("v_mov_b32 v24, v20")
        allreduce("v_max_u32", 24, 25)
        I("v_cmp_eq_u32 vcc, v24, v20")
        I(f"s_lshl_b32 s{A0}, s{TB}, 7")
        I(f"s_add_u32 s{A0}, s{A0}, {hex(KEY[L])}")
        I(f"s_ff1_i32_b64 s{A0+1}, vcc")
        I(f"v_lshl_add_u32 v13, v1, 12, s{A0}")
        I(f"v_mov_b32 v27, s{TAG}")
        I(f"v_readlane_b32 s{A0+2}, v{RESM}, s{A0+1}")
        I(f"v_readlane_b32 s{A0+3}, v{RESR}, s{A0+1}")
        I("s_mov_b64 exec, 0xff")
        I("s_nop 0")
        I(f"v_mov_b32 v25, s{A0+2}")
        I(f"v_mov_b32 v26, s{A0+3}")
        I(f"global_store_dwordx4 v13, v[24:27], {sp(WSP)} sc1")
        exec_all()
        k.L(lab(n + "_nokey"))
        I(f"v_mov_b32 v16, v{RESM}")
        I(f"v_mov_b32 v17, v{RESR}")
        I(f"s_cmp_eq_u32 s{OA}, 1")
        I("s_cselect_b64 vcc, -1, 0")
        I(f"v_permlane32_swap_b32 v{RESM}, v16")
        I(f"v_permlane32_swap_b32 v{RESR}, v17")
        I(f"v_cndmask_b32 v{RESM}, v{RESM}, v16, vcc")
        I(f"v_cndmask_b32 v{RESR}, v{RESR}, v17, vcc")
        k.stamp(name="x" + n + "_key")

    FT = 76
    SR = 96
    stat_loads = [f"global_load_dwordx4 {vr(SR+4*i,4)}, v11, {sp(WSP)} offset:{1024*i} sc1" for i in range(4)]
    stat_tags = [SR + 4*i + 3 for i in range(4)]
    def own_stats():
        for i in range(1, 4):
            for c in range(2): I(f"v_add_f32 v{SR+c}, v{SR+c}, v{SR+4*i+c}")
        halfsum("v_add_f32", SR, SR + 2)
        halfsum("v_add_f32", SR + 1, SR + 2)
        rowstats(SR, SR + 1, MT[0], SR + 2, SR + 3)
        I(f"v_mov_b32 v{AT[0]}, s{CEPS}")
        I(f"v_add_f32 v{SR+3}, 1.0, v{SR+3}")
        I(f"v_mul_f32 v{SR+2}, v{SR+2}, v{SR+3}")
        I(f"v_fmac_f32 v{AT[0]}, v{SR+2}, v{SR+3}")
        I(f"v_rsq_f32 v{AT[0]}, v{AT[0]}")
        I(f"v_mov_b32 v{MT[1]}, v{MT[0]}")
        I(f"v_mul_f32 v{AT[0]}, v{AT[0]}, v{SR+3}")
        I(f"v_mov_b32 v{AT[1]}, v{AT[0]}")
        I(f"v_permlane16_swap_b32 v{MT[0]}, v{MT[1]}")
        I("s_nop 0")
        I(f"v_permlane16_swap_b32 v{AT[0]}, v{AT[1]}")
    def key_load(L):
        return f"global_load_dwordx4 {vr(FT,4)}, v{FT+4}, {sp(WSP)} sc1"
    def hop_b_issue(L, sfx=""):
        I(f"s_lshl_b32 s{A0}, s{QB}, 12")
        I(f"s_add_u32 s{A0}, s{A0}, {hex(KEY[L])}")
        I(f"v_lshl_add_u32 v{FT+4}, v6, 7, s{A0}")
        I(f"s_cmp_lg_u32 s{WAVE}, 0")
        I(f"s_cbranch_scc1 {lab(f'l{L}_nki{sfx}')}")
        I(key_load(L))
        k.L(lab(f"l{L}_nki{sfx}"))
    def hop_b(L, role=""):
        n = f"l{L}{role}"
        I(f"v_mov_b32 v{FT+6}, {LFF}")
        I(f"s_cmp_lg_u32 s{WAVE}, 0")
        I(f"s_cbranch_scc1 {lab(n+'_kw')}")
        keepq = list(vm.q)
        poll(n + "_pb", [key_load(L)], [FT + 3], first_issued=True)
        vm.q = keepq
        if L == 0:
            I(f"v_lshlrev_b32 v{FT+5}, 2, v6")
            I(f"v_add_u32 v{FT+5}, {LKY}, v{FT+5}")
            I(f"ds_write_b32 v{FT+5}, v{FT}")
        I(f"v_mov_b32 v{FT+5}, v{FT}")
        dppred("v_max_u32", FT + 5, Q4 + ("row_half_mirror", "row_mirror"))
        swapop("v_permlane16_swap_b32", "v_max_u32", FT + 5, FT + 7)
        I(f"v_cmp_eq_u32 vcc, v{FT+5}, v{FT}")
        I("s_mov_b64 exec, vcc")
        I(f"ds_write_b96 v{FT+6}, {vr(FT,3)}")
        exec_all()
        k.L(lab(n + "_kw"))
        bar()
        I(f"ds_read_b96 {vr(FT,3)}, v{FT+6}")
        I("s_waitcnt lgkmcnt(0)")
        I(f"v_readfirstlane_b32 s{IDX}, v{FT}")
        I(f"v_readfirstlane_b32 s{RM}, v{FT+1}")
        I(f"v_readfirstlane_b32 s{RR}, v{FT+2}")
        I(f"s_and_b32 s{RS_}, s{IDX}, 0xffff0000")
        I(f"s_and_b32 s{IDX}, s{IDX}, 0x7ff")
        I(f"s_sub_u32 s{IDX}, 2047, s{IDX}")
        I(f"s_ashr_i32 s{A0}, s{RS_}, 31")
        I(f"s_not_b32 s{A0}, s{A0}")
        I(f"s_or_b32 s{A0}, s{A0}, 0x80000000")
        I(f"s_xor_b32 s{RS_}, s{RS_}, s{A0}")
        I(f"s_and_b32 s{RS_}, s{RS_}, 0xffff0000")
        if L == 1:
            I(f"s_cmp_eq_u32 s{IDX}, s{CA}")
            I(f"s_cselect_b32 s{YSEL}, 1, 0")
            I(f"s_cmp_eq_u32 s{IDX}, s{CB_}")
            I(f"s_cselect_b32 s{YSEL}, 2, s{YSEL}")
            I(f"s_cmp_lg_u32 s{YSEL}, 0")
            I(f"s_cbranch_scc1 {lab('hit')}")
        I(f"s_lshr_b32 s{A0}, s{IDX}, 4")
        I(f"s_lshl_b32 s{A0}, s{A0}, 14")
        I(f"s_and_b32 s{A0+1}, s{IDX}, 15")
        I(f"s_lshl_b32 s{A0+1}, s{A0+1}, 4")
        I(f"s_add_u32 s{A0}, s{A0}, s{A0+1}")
        I("s_cmp_ge_u32 s2, 224")
        I(f"s_cbranch_scc1 {lab(n+'_frow')}")
        I(f"s_lshl_b32 s{A0+1}, s{WAVE}, 11")
        I(f"s_add_u32 s{A0}, s{A0}, s{A0+1}")
        I(f"v_and_b32 v{FT+4}, 48, v1")
        I(f"v_lshl_add_u32 v{FT+4}, v{FT+4}, 4, s{A0}")
        I(f"v_add_u32 v{FT+5}, 0x400, v{FT+4}")
        I(f"s_branch {lab(n+'_rowld')}")
        k.L(lab(n + "_frow"))
        I(f"s_sub_u32 s{A0+1}, s2, 224")
        I(f"s_lshl_b32 s{A0+1}, s{A0+1}, 9")
        I(f"s_add_u32 s{A0}, s{A0}, s{A0+1}")
        I(f"v_bfe_u32 v{FT+4}, v1, 3, 1")
        I(f"v_lshl_add_u32 v{FT+4}, v{FT+4}, 8, s{A0}")
        I(f"v_mov_b32 v{FT+5}, v{FT+4}")
        k.L(lab(n + "_rowld"))
        vm.issue(f"global_load_dwordx4 {vr(FT+8,4)}, v{FT+4}, {sp(XB_)} sc1", "row")
        vm.issue(f"global_load_dwordx4 {vr(FT+12,4)}, v{FT+5}, {sp(XB_)} sc1", "row")
    def slice1(L):
        n = f"l{L}"
        XR = FT + 8
        I(f"v_mov_b32 v{FT+2}, s{RM}")
        I(f"v_mul_f32 v{FT+2}, s{RR}, v{FT+2}")
        I(f"v_and_b32 v{FT+4}, 48, v1")
        I(f"s_lshl_b32 s{A0}, s{WAVE}, 6")
        I(f"s_add_u32 s{A0}, s{A0}, {LFF + 256}")
        I(f"v_add_u32 v{FT+4}, s{A0}, v{FT+4}")
        yp_addr(FT + 5, L)
        I(f"v_and_b32 v{FT+6}, 15, v1")
        I(f"v_lshlrev_b32 v{FT+6}, 2, v{FT+6}")
        I(f"v_add_u32 v{FT+6}, {LFF + 256}, v{FT+6}")
        for f in range(8): I(f"v_accvgpr_read_b32 v{FT+20+f}, a{ADN+f}")
        for f in range(8): I(f"v_lshlrev_b32 v{FT+20+f}, 16, v{FT+20+f}")
        vm.wait("row")
        k.stamp(name="x" + n + "_row")
        I("s_cmp_ge_u32 s2, 224")
        I(f"s_cbranch_scc1 {lab(n+'_s1skip')}")
        for i in range(8):
            t0 = FT + 16 + 2*(i & 1)
            unpack(t0, t0 + 1, XR + i)
            I(f"v_fma_f32 v{t0}, v{t0}, s{RR}, -v{FT+2}")
            I(f"v_fma_f32 v{t0+1}, v{t0+1}, s{RR}, -v{FT+2}")
            I(f"v_cvt_pk_bf16_f32 v{XR+i}, v{t0}, v{t0+1}")
        k.nop(2)
        I(f"v_mfma_f32_16x16x32_bf16 {vr(FT+16,4)}, {ar(AGU,4)}, {vr(XR,4)}, 0")
        I(f"v_mfma_f32_16x16x32_bf16 {vr(FT+16,4)}, {ar(AGU+4,4)}, {vr(XR+4,4)}, {vr(FT+16,4)}")
        I("s_mov_b32 exec_lo, 0x00010001")
        I("s_mov_b32 exec_hi, 0x00010001")
        k.nop(6)
        I(f"ds_write_b128 v{FT+4}, {vr(FT+16,4)}")
        exec_all()
        bar()
        k.L(lab(n + "_s1skip"))
    def slice2(L):
        n = f"l{L}"
        I("s_cmp_ge_u32 s2, 224")
        I(f"s_cbranch_scc1 {lab(n+'_s2skip')}")
        for i in range(8): I(f"ds_read_b32 v{FT+8+i}, v{FT+6} offset:{64*i}")
        I("s_waitcnt lgkmcnt(0)")
        g = FT + 8
        for a_, b_ in ((0,1),(2,3),(4,5),(6,7),(0,2),(4,6),(0,4)): I(f"v_add_f32 v{g+a_}, v{g+a_}, v{g+b_}")
        bf16r(g)
        t = FT
        I(f"v_mul_f32 v{t}, {hex(f2u(-LOG2E))}, v{g}")
        I(f"v_exp_f32 v{t}, v{t}")
        I("s_nop 0")
        I(f"v_add_f32 v{t}, 1.0, v{t}")
        I(f"v_rcp_f32 v{t}, v{t}")
        I("s_nop 0")
        I(f"v_mul_f32 v{t}, v{t}, v{g}")
        bf16r(t)
        k.nop(2)
        I(f"v_mul_f32_dpp v{t}, v{g}, v{t} row_ror:8 row_mask:0xf bank_mask:0xf")
        bf16r(t)
        k.nop(1)
        for f in range(8): I(f"v_readlane_b32 s{A0+f}, v{t}, {f}")
        I(f"v_mul_f32 v{FT+2}, s{A0}, v{FT+20}")
        I(f"v_mul_f32 v{FT+3}, s{A0+1}, v{FT+21}")
        for f in range(2, 8): I(f"v_fmac_f32 v{FT+2+(f&1)}, s{A0+f}, v{FT+20+f}")
        I(f"v_add_f32 v{FT+2}, v{FT+2}, v{FT+3}")
        I(f"v_min_u32 v{FT+2}, 0xfffffffe, v{FT+2}")
        I(f"global_store_dword v{FT+5}, v{FT+2}, {sp(WSP)} sc1")
        k.L(lab(n + "_s2skip"))
    def x_elem(XR, t6):
        I(f"v_bfe_u32 v{t6}, v1, 1, 1")
        I(f"v_cmp_eq_u32 vcc, 1, v{t6}")
        I(f"v_bfe_u32 v{t6}, v1, 2, 1")
        I("s_nop 0")
        I(f"v_cndmask_b32 v{XR}, v{XR}, v{XR+1}, vcc")
        I(f"v_cndmask_b32 v{XR+2}, v{XR+2}, v{XR+3}, vcc")
        I(f"v_cmp_eq_u32 vcc, 1, v{t6}")
        I(f"v_and_b32 v{t6}, 1, v1")
        I("s_nop 0")
        I(f"v_cndmask_b32 v{XR}, v{XR}, v{XR+2}, vcc")
        I(f"v_cmp_eq_u32 vcc, 1, v{t6}")
        unpack(XR + 1, XR + 2, XR)
        I(f"v_cndmask_b32 v{XR}, v{XR+1}, v{XR+2}, vcc")
    def gather(name, bufs, B, ldsoff, light=True):
        I(f"s_sub_u32 s{A0}, s2, 224")
        I(f"s_mul_i32 s{A0+1}, s{A0}, {224*64}")
        I(f"s_add_u32 s{A0+1}, s{A0+1}, {hex(bufs[0]) if isinstance(bufs[0], int) else bufs[0]}")
        I(f"v_min_u32 v{B}, 447, v0")
        I(f"v_lshl_add_u32 v{B}, v{B}, 4, s{A0+1}")
        I(f"v_add_u32 v{B+1}, {448*16}, v{B}")
        for j in range(1, len(bufs)):
            I(f"v_add_u32 v{B+2*j}, {hex(bufs[j] - bufs[0])}, v{B}")
            I(f"v_add_u32 v{B+2*j+1}, {hex(bufs[j] - bufs[0])}, v{B+1}")
        Y_ = B + 8; nb = len(bufs)
        keepq = list(vm.q)
        def ychk():
            I(f"v_max3_u32 v{B+4}, v{Y_}, v{Y_+1}, v{Y_+2}")
            for r in range(3, 8*nb - 1, 2): I(f"v_max3_u32 v{B+4}, v{B+4}, v{Y_+r}, v{Y_+r+1}")
            I(f"v_max_u32 v{B+4}, v{B+4}, v{Y_+8*nb-1}")
            I(f"v_cmp_eq_u32 vcc, -1, v{B+4}")
        if light:
            I("s_mov_b64 exec, 1")
            poll(name + "_pl", [f"global_load_dword v{Y_}, v{B+2*nb-1}, {sp(WSP)} sc1"], [0], check=lambda: I(f"v_cmp_eq_u32 vcc, -1, v{Y_}"))
            exec_all()
        poll(name + "_pf", [f"global_load_dwordx4 {vr(Y_+4*j,4)}, v{B+j}, {sp(WSP)} sc1" for j in range(2*nb)], [0], check=ychk)
        vm.q = keepq
        for j in range(nb):
            for c in range(4): I(f"v_add_f32 v{Y_+8*j+c}, v{Y_+8*j+c}, v{Y_+8*j+4+c}")
        for m in ("row_shr:4", "row_shr:8"):
            k.nop(1)
            for j in range(nb):
                for c in range(4): I(f"v_add_f32_dpp v{Y_+8*j+c}, v{Y_+8*j+c}, v{Y_+8*j+c} {m} row_mask:0xf bank_mask:0xf bound_ctrl:0")
        for sw in ("v_permlane16_swap_b32", "v_permlane32_swap_b32"):
            for j in range(nb):
                for c in range(4): I(f"v_mov_b32 v{Y_+8*j+4+c}, v{Y_+8*j+c}")
            k.nop(1)
            for j in range(nb):
                for c in range(4): I(f"{sw} v{Y_+8*j+c}, v{Y_+8*j+4+c}")
            for j in range(nb):
                for c in range(4): I(f"v_add_f32 v{Y_+8*j+c}, v{Y_+8*j+c}, v{Y_+8*j+4+c}")
        I(f"v_and_b32 v{B+4}, 3, v1")
        I(f"s_lshl_b32 s{A0+1}, s{WAVE}, 6")
        I(f"s_add_u32 s{A0+1}, s{A0+1}, {ldsoff}")
        I(f"v_lshl_add_u32 v{B+4}, v{B+4}, 4, s{A0+1}")
        exec_lo("0xf000")
        for j in range(nb): I(f"ds_write_b128 v{B+4}, {vr(Y_+8*j,4)} offset:{512*j}")
        exec_all()
    def finish_row(L, XR, rd):
        n = f"l{L}"
        Y_ = FT + 16
        for i in range(7): I(f"ds_read_b32 v{Y_+i}, v{rd} offset:{64*i}")
        t = FT
        I(f"v_mov_b32 v{t}, {hex(f2u(-LOG2E))}")
        I(f"v_mul_f32 v{t}, s{RS_}, v{t}")
        I(f"v_exp_f32 v{t}, v{t}")
        I(f"v_subrev_f32 v{t+1}, s{RM}, v{XR}")
        I(f"v_add_f32 v{t}, 1.0, v{t}")
        I(f"v_rcp_f32 v{t}, v{t}")
        I(f"v_mul_f32 v{t+1}, s{RR}, v{t+1}")
        bf16r(t); bf16r(t + 1)
        I("s_waitcnt lgkmcnt(0)")
        for a_, b_ in ((0,1),(2,3),(4,5),(0,2),(4,6),(0,4)): I(f"v_add_f32 v{Y_+a_}, v{Y_+a_}, v{Y_+b_}")
        bf16r(Y_)
        I(f"v_mul_f32 v{Y_}, v{Y_}, v{t}")
        bf16r(Y_)
        I(f"v_add_f32 v{Y_}, v{Y_}, v{t+1}")
        bf16r(Y_)
        I(f"v_add_f32 v{Y_}, v{Y_}, v{XR}")
        I(f"v_cvt_pk_bf16_f32 v{Y_}, v{Y_}, v{Y_}")
        I(f"s_sub_u32 s{A0}, s2, 224")
        if L == 1:
            I(f"s_lshl_b32 s{A0+1}, s{IDX}, 10")
            I(f"s_lshl_b32 s{A0}, s{A0}, 5")
            I(f"s_add_u32 s{A0}, s{A0}, s{A0+1}")
            I(f"v_lshl_add_u32 v{FT+4}, v1, 1, s{A0}")
            exec_lo("0xffff")
            I(f"global_store_short v{FT+4}, v{Y_}, {sp(OUTP)}")
        else:
            I(f"v_and_b32 v{Y_}, 0xffff, v{Y_}")
            k.nop(2)
            for j, qp in ((1, 1), (2, 2), (3, 3)):
                I(f"v_mov_b32_dpp v{Y_+j}, v{Y_} quad_perm:[{qp},{qp},{qp},{qp}] row_mask:0xf bank_mask:0xf")
            I(f"v_lshl_or_b32 v{Y_}, v{Y_+1}, 16, v{Y_}")
            I(f"v_lshl_or_b32 v{Y_+1}, v{Y_+3}, 16, v{Y_+2}")
            I(f"v_mov_b32 v{Y_+2}, s{TAG}")
            I(f"s_lshl_b32 s{A0}, s{A0}, 7")
            I(f"s_add_u32 s{A0}, s{A0}, {hex(X2R)}")
            I(f"v_lshl_add_u32 v{FT+4}, v1, 2, s{A0}")
            exec_lo("0x1111")
            I(f"global_store_dwordx4 v{FT+4}, {vr(Y_,4)}, {sp(WSP)} sc1")
        exec_all()
    def finalize(L):
        n = f"l{L}"
        I("s_cmp_lt_u32 s2, 224")
        I(f"s_cbranch_scc1 {lab(n+'_fskip')}")
        x_elem(FT + 8, FT + 6)
        gather(n, [YP[L]], FT + 12, LFF + 256, light=(L == 1 or ENV('F0L', '1') == '1'))
        I(f"v_and_b32 v{FT+5}, 15, v1")
        I(f"v_lshlrev_b32 v{FT+5}, 2, v{FT+5}")
        I(f"v_add_u32 v{FT+5}, {LFF + 256}, v{FT+5}")
        bar()
        I(f"s_cmp_lg_u32 s{WAVE}, 0")
        I(f"s_cbranch_scc1 {lab(n+'_fskip')}")
        finish_row(L, FT + 8, FT + 5)
        k.L(lab(n + "_fskip"))

    q_epilogue(0)
    k.stamp(name="l0_qepi")
    attention(0)
    oproj(0)
    I(f"s_mul_i32 s{A0}, s{WAVE}, 6144")
    I(f"s_add_u32 s{A0}, s{A0}, {LWQ}")
    I(f"v_add_u32 v12, s{A0}, v3")
    for i in range(6): I(f"ds_write_b128 v12, {ar(AWS+4*i,4)} offset:{1024*i}")
    I(f"s_lshl_b32 s{A0}, s{TT}, 15")
    I(f"v_add_u32 v8, s{A0}, v3")
    I("v_add_u32 v9, 0x4000, v8")
    I(f"s_lshr_b32 s{A0}, s{TT}, 1")
    I(f"s_lshl_b32 s{A0}, s{A0}, 13")
    I(f"s_and_b32 s{A0+1}, s{TT}, 1")
    I(f"s_lshl_b32 s{A0+1}, s{A0+1}, 9")
    I(f"s_add_u32 s{A0}, s{A0}, s{A0+1}")
    I(f"s_add_u32 s{A0}, s{A0}, {hex(ST[0])}")
    I(f"v_lshl_add_u32 v11, v6, 4, s{A0}")
    I("v_lshl_add_u32 v11, v7, 12, v11")
    RING = 6
    LOOK = int(ENV("LOOK", "4"))
    ROT1 = 67 if not PROFILE else 101
    I(f"s_lshr_b32 s{ROT1}, s{HEAD}, 1")
    def xload(ks):
        I(f"s_add_u32 s{T0}, s{ROT1}, {ks}")
        I(f"s_and_b32 s{T0}, s{T0}, 15")
        I(f"s_lshl_b32 s{T0}, s{T0}, 10")
        I(f"s_add_u32 s{T0}, s{XB_}, s{T0}")
        I(f"s_addc_u32 s{T0+1}, s{XB_+1}, 0")
        for t in range(2):
            vm.issue(f"global_load_dwordx4 {ar(64+8*(ks % RING)+4*t,4)}, v{8+t}, {sp(T0)} sc1", f"x{ks}")
    def wbase1(ks):
        I(f"s_add_u32 s{T0}, s{ROT1}, {ks}")
        I(f"s_and_b32 s{T0}, s{T0}, 15")
        I(f"s_lshl_b32 s{T0}, s{T0}, 10")
        I(f"v_add_u32 v12, s{T0}, v10")
    def first_x():
        for ks in range(LOOK): xload(ks)
    hop_a(0)
    w_addr()
    def bg_loads():
        first_x()
        for l in stat_loads: vm.issue(l, "st")
    I("s_cmp_ge_u32 s2, 224")
    I(f"s_cbranch_scc1 {lab('fin_a')}")
    hop_b_issue(0)
    hop_b(0, role="s")
    slice1(0)
    slice2(0)
    bg_loads()
    I(f"s_branch {lab('q1_go')}")
    k.L(lab("fin_a"))
    vm.q = []
    bg_loads()
    k.L(lab("q1_go"))
    k.stamp(name="q1_ffn")
    F0, FX = 76, 64
    pxl = [f"global_load_dwordx3 {vr(F0+4*i,3)}, v2, {sp(WSP)} offset:{256*(i>>1)+16*(i&1)} sc1" for i in range(4)]
    def px_issue():
        I(f"s_lshl_b32 s{A0}, s{WAVE}, 9")
        I(f"s_add_u32 s{A0}, s{A0}, {hex(X2R)}")
        I(f"v_lshl_add_u32 v2, v7, 7, s{A0}")
        I("v_bfe_u32 v4, v1, 4, 1")
        I("v_lshl_add_u32 v2, v4, 5, v2")
        for l in pxl: I(l)
    wbase1(0)
    wreads(WB, 12, 0)
    wbase1(1)
    wreads(WB + 12, 12, 0)
    for ks in range(16):
        QP1 = eval(ENV("QP1", "{0: 3, 6: 2, 11: 1, 14: 0}"))
        if ks in QP1: I(f"s_setprio {QP1[ks]}")
        if ks + LOOK < 16: xload(ks + LOOK)
        if ks == int(ENV("STE", "10")):
            vm.wait("st")
            keep_ = list(vm.q)
            poll("ps", stat_loads, stat_tags, chk_label="ps_c")
            vm.q = keep_
            own_stats()
            bounce_params()
        if ks == int(ENV("PXE", "13")):
            I("s_cmp_ge_u32 s2, 224")
            I(f"s_cbranch_scc1 {lab('px_e')}")
            I(f"s_lshr_b32 s{A0}, s{IDX}, 8")
            I(f"s_cmp_lg_u32 s{A0}, s{QB}")
            I(f"s_cbranch_scc1 {lab('px_e')}")
            px_issue()
            k.L(lab("px_e"))
        if ks < 14:
            wbase1(ks + 2)
            wreads(WB + 12*((ks+2)%3), 12, 0)
        vm.wait(f"x{ks}", f" lgkmcnt({12 if ks < 14 else 6 if ks == 14 else 0})")
        qmfmas(WB + 12*(ks%3), ar(64+8*(ks % RING),4), ar(64+8*(ks % RING)+4,4), ks == 0)
    k.stamp(name="q1_loop")
    I("s_cmp_lt_u32 s2, 224")
    I(f"s_cbranch_scc1 {lab('fin_b')}")
    hop_b_issue(0, "f")
    hop_b(0, role="f")
    vm.drain()
    finalize(0)
    k.L(lab("fin_b"))
    k.stamp(name="q1_fin")
    I(f"s_lshr_b32 s{A0}, s{IDX}, 8")
    I(f"s_cmp_eq_u32 s{A0}, s{QB}")
    I(f"s_cbranch_scc1 {lab('dofix')}")
    I("s_cmp_lt_u32 s2, 224")
    I(f"s_cbranch_scc1 {lab('nofix')}")
    I(f"s_branch {lab('rebounce')}")
    k.L(lab("dofix"))
    I(f"s_lshl_b32 s{A0}, s{WAVE}, 11")
    I(f"v_add_u32 v12, s{A0}, v10")
    for q in range(2): wreads(WB + 12*q, 12, q)
    for r in range(4): I(f"v_mov_b32 v{72+r}, s{ONES}")
    I(f"s_lshl_b32 s{A0}, s{WAVE}, 8")
    I(f"s_add_u32 s{A0}, s{A0}, {LRD}")
    I("v_and_b32 v12, 48, v1")
    I(f"v_add_u32 v12, s{A0}, v12")
    I(f"v_mov_b32 v13, s{A0}")
    I("s_cmp_lt_u32 s2, 224")
    I(f"s_cbranch_scc1 {lab('px_go')}")
    px_issue()
    k.L(lab("px_go"))
    poll("px", pxl, [F0 + 4*i + 2 for i in range(4)], first_issued=True)
    for i in range(4):
        I(f"v_mov_b32 v{FX+2*i}, v{F0+4*i}")
        I(f"v_mov_b32 v{FX+2*i+1}, v{F0+4*i+1}")
    I("s_waitcnt lgkmcnt(0)")
    for q in range(2):
        for sec in range(3): mfma16(F0 + 4*sec, vr(WB+12*q+4*sec,4), vr(FX+4*q,4), q == 0)
        mfma16(F0 + 12, vr(72,4), vr(FX+4*q,4), q == 0)
        mfma16(F0 + 16, vr(FX+4*q,4), vr(FX+4*q,4), q == 0)
    I("s_mov_b32 exec_lo, 0x00010001"); I("s_mov_b32 exec_hi, 0x00010001")
    k.nop(6)
    for sec in range(3): I(f"ds_write_b128 v12, {vr(F0+4*sec,4)} offset:{64*sec}")
    I(f"ds_write_b32 v13, v{F0+12} offset:192")
    I(f"ds_write_b32 v13, v{F0+16} offset:196")
    exec_all()
    I(f"s_and_b32 s{A0}, s{IDX}, 31")
    I("v_and_b32 v15, 15, v1")
    I("v_lshrrev_b32 v14, 4, v1")
    I("v_lshlrev_b32 v14, 2, v14")
    I(f"v_sub_u32 v66, s{A0}, v14")
    I(f"v_sub_u32 v67, s{A0}, v15")
    I("v_lshlrev_b32 v15, 2, v15")
    I(f"v_add_u32 v15, {LFX + 128}, v15")
    I("v_and_b32 v12, 48, v1")
    I(f"v_add_u32 v12, {LFX}, v12")
    bar()
    I(f"s_lshr_b32 s{A0}, s{IDX}, 5")
    I(f"s_cmp_lg_u32 s{A0}, s{OT}")
    I(f"s_cbranch_scc1 {lab('nores')}")
    I(f"s_lshl_b32 s{A0}, s{KG}, 7")
    I(f"s_add_u32 s{A0}, s{A0}, {hex(X2R)}")
    I(f"v_lshl_add_u32 v14, v7, 4, s{A0}")
    I(f"v_cmp_eq_u32 vcc, s{IDX}, v{VTK}")
    I(f"s_and_saveexec_b64 {sp(T2)}, vcc")
    I(f"global_load_dwordx2 {vr(XG,2)}, v14, {sp(WSP)} sc1")
    I(f"global_load_dwordx2 {vr(XG+2,2)}, v14, {sp(WSP)} offset:32 sc1")
    I(f"v_mov_b32 v{RESR}, 0")
    exec_all()
    k.L(lab("nores"))
    I(f"s_lshr_b32 s{A0}, s{IDX}, 5")
    I(f"s_cmp_lg_u32 s{A0}, s{TT}")
    I(f"s_cbranch_scc1 {lab('rebounce')}")
    sum8(LRD, LFX)
    I(f"v_mov_b32 v13, {LFX + 192}")
    for sec in range(2): I(f"ds_read_b128 {vr(F0+4*sec,4)}, v12 offset:{64*sec}")
    I("ds_read_b64 v[64:65], v13")
    I("ds_read_b32 v68, v15")
    MK = [T0, T2, A0, A0 + 2, A0 + 4, A0 + 6]
    for t in range(2):
        I(f"v_cmp_eq_u32 {sp(MK[0])}, {16*t}, v67")
        for r in range(4): I(f"v_cmp_eq_u32 {sp(MK[1+r])}, {16*t+r}, v66")
        if t == 0:
            I("s_waitcnt lgkmcnt(0)")
            rowstats(64, 65, 69, 70, 71)
        else: k.nop(1)
        for sec in range(2):
            for r in range(4): I(f"v_cndmask_b32 v{ACC+8*sec+4*t+r}, v{ACC+8*sec+4*t+r}, v{F0+4*sec+r}, {sp(MK[0])}")
        I(f"v_cndmask_b32 v{MT[t]}, v{MT[t]}, v69, {sp(MK[0])}")
        I(f"v_cndmask_b32 v{AT[t]}, v{AT[t]}, v71, {sp(MK[0])}")
        for r in range(4): I(f"v_cndmask_b32 v{ACC+16+4*t+r}, v{ACC+16+4*t+r}, v68, {sp(MK[1+r])}")
    k.L(lab("rebounce"))
    bounce_params()
    k.L(lab("nofix"))
    vm.drain()
    k.stamp(name="q1_fix")
    q_epilogue(1)
    k.stamp(name="l1_qepi")
    attention(1)
    oproj(1)
    def cand_stats():
        I(f"s_cmp_lg_u32 s{WAVE}, 1")
        I(f"s_cbranch_scc1 {lab('cs_skip0')}")
        I(f"v_mov_b32 v40, s{CA}")
        I(f"v_mov_b32 v41, s{CB_}")
        I("v_cmp_gt_u32 vcc, 8, v1")
        I("v_and_b32 v42, 7, v1")
        I("s_nop 0")
        I("v_cndmask_b32 v40, v41, v40, vcc")
        I("v_lshrrev_b32 v41, 6, v40")
        I("v_lshl_add_u32 v41, v41, 3, v42")
        I("v_and_b32 v40, 63, v40")
        I("v_lshlrev_b32 v40, 4, v40")
        I("v_lshl_add_u32 v40, v41, 10, v40")
        I(f"v_add_u32 v40, {hex(ST[1])}, v40")
        exec_lo("0xffff")
        I(f"global_load_dwordx4 v[44:47], v40, {sp(WSP)} sc1")
        exec_all()
        k.L(lab("cs_skip0"))
    def cand_stats2():
        I(f"s_cmp_lg_u32 s{WAVE}, 1")
        I(f"s_cbranch_scc1 {lab('cs_skip')}")
        exec_lo("0xffff")
        poll("pc", [f"global_load_dwordx4 v[44:47], v40, {sp(WSP)} sc1"], [47], first_issued=True)
        for m in Q4 + ("row_half_mirror",):
            k.nop(1)
            for c in range(2): I(f"v_add_f32_dpp v{44+c}, v{44+c}, v{44+c} {m} row_mask:0xf bank_mask:0xf")
        rowstats(44, 45, 46, 47, 45)
        I("v_and_b32 v40, 8, v1")
        I(f"v_add_u32 v40, {LCS}, v40")
        I("v_mul_f32 v44, v46, v45")
        I("ds_write_b64 v40, v[44:45]")
        exec_all()
        k.L(lab("cs_skip"))
    SX, SD = 56, 64
    def cand_addr():
        I(f"v_mov_b32 v50, s{CA}")
        I(f"v_mov_b32 v51, s{CB_}")
        I("v_and_b32 v52, 1, v1")
        I("v_cmp_eq_u32 vcc, 1, v52")
        I("v_lshlrev_b32 v52, 3, v52")
        I(f"v_add_u32 v52, {LCS}, v52")
        I("v_cndmask_b32 v50, v50, v51, vcc")
        I("v_lshrrev_b32 v51, 4, v50")
        I("v_and_b32 v50, 15, v50")
        I("v_lshlrev_b32 v50, 4, v50")
        I("v_lshl_add_u32 v50, v51, 14, v50")
        I("v_and_b32 v51, 48, v1")
        I("v_lshl_add_u32 v50, v51, 4, v50")
        I(f"s_lshl_b32 s{A0}, s{WAVE}, 11")
        I(f"v_add_u32 v50, s{A0}, v50")
        I("s_cmp_lt_u32 s2, 224")
        I(f"s_cbranch_scc1 {lab('ca_done')}")
        I(f"v_mov_b32 v50, s{CA}")
        I(f"v_mov_b32 v51, s{CB_}")
        I("v_and_b32 v53, 16, v1")
        I("v_cmp_eq_u32 vcc, 16, v53")
        I(f"s_sub_u32 s{A0}, s2, 224")
        I(f"s_lshl_b32 s{A0}, s{A0}, 9")
        I("v_cndmask_b32 v50, v50, v51, vcc")
        I("v_lshrrev_b32 v51, 4, v50")
        I("v_and_b32 v50, 15, v50")
        I("v_lshlrev_b32 v50, 4, v50")
        I("v_lshl_add_u32 v50, v51, 14, v50")
        I("v_bfe_u32 v51, v1, 3, 1")
        I("v_lshl_add_u32 v50, v51, 8, v50")
        I(f"v_add_u32 v50, s{A0}, v50")
        k.L(lab("ca_done"))
        for f in range(8): I(f"v_accvgpr_read_b32 v{SD+f}, a{ADN+f}")
        for f in range(8): I(f"v_lshlrev_b32 v{SD+f}, 16, v{SD+f}")
    def cand_rows():
        I(f"global_load_dwordx4 {vr(SX,4)}, v50, {sp(XB_)} sc1")
        I(f"global_load_dwordx4 {vr(SX+4,4)}, v50, {sp(XB_)} offset:1024 sc1")
        I("ds_read_b64 v[54:55], v52")
    cand_addr()
    hop_a(1, cand_stats2, cand_stats, cand_rows)
    I("s_cmp_ge_u32 s2, 224")
    I(f"s_cbranch_scc1 {lab('sp_skip')}")
    I("v_and_b32 v17, 48, v1")
    I(f"s_lshl_b32 s{A0}, s{WAVE}, 7")
    I(f"s_add_u32 s{A0}, s{A0}, {LRD}")
    I("v_and_b32 v18, 1, v1")
    I("v_lshl_add_u32 v17, v18, 6, v17")
    I(f"v_add_u32 v17, s{A0}, v17")
    I("v_and_b32 v18, 31, v1")
    I("v_lshlrev_b32 v18, 2, v18")
    I(f"v_add_u32 v18, {LRD}, v18")
    yp_addr(22, 2)
    I(f"v_add_u32 v23, {hex(YP[3] - YP[2])}, v22")
    I(f"s_or_b32 s{A0}, s{CG}, s{WAVE}")
    I(f"s_cmp_eq_u32 s{A0}, 0")
    I("s_waitcnt vmcnt(1)")
    I(f"s_cbranch_scc1 {lab('sp_go')}")
    I("s_waitcnt vmcnt(0)")
    k.L(lab("sp_go"))
    for i in range(8):
        t0 = 24 + 2*(i & 1)
        unpack(t0, t0 + 1, SX + i)
        I(f"v_fma_f32 v{t0}, v{t0}, v55, -v54")
        I(f"v_fma_f32 v{t0+1}, v{t0+1}, v55, -v54")
        I(f"v_cvt_pk_bf16_f32 v{SX+i}, v{t0}, v{t0+1}")
    k.nop(2)
    I(f"v_mfma_f32_16x16x32_bf16 v[24:27], {ar(AGU,4)}, {vr(SX,4)}, 0")
    I(f"v_mfma_f32_16x16x32_bf16 v[24:27], {ar(AGU+4,4)}, {vr(SX+4,4)}, v[24:27]")
    I("s_mov_b32 exec_lo, 0x00030003")
    I("s_mov_b32 exec_hi, 0x00030003")
    k.nop(6)
    I("ds_write_b128 v17, v[24:27]")
    exec_all()
    bar()
    for i in range(8): I(f"ds_read_b32 v{SX+i}, v18 offset:{128*i}")
    I("s_waitcnt lgkmcnt(0)")
    for a_, b_ in ((0,1),(2,3),(4,5),(6,7),(0,2),(4,6),(0,4)): I(f"v_add_f32 v{SX+a_}, v{SX+a_}, v{SX+b_}")
    bf16r(SX)
    I(f"v_mul_f32 v16, {hex(f2u(-LOG2E))}, v{SX}")
    I("v_exp_f32 v16, v16")
    I("s_nop 0")
    I("v_add_f32 v16, 1.0, v16")
    I("v_rcp_f32 v16, v16")
    I("s_nop 0")
    I(f"v_mul_f32 v16, v16, v{SX}")
    bf16r(16)
    k.nop(2)
    I(f"v_mul_f32_dpp v16, v{SX}, v16 row_ror:8 row_mask:0xf bank_mask:0xf")
    bf16r(16)
    k.nop(1)
    for c_ in range(2):
        for f in range(8): I(f"v_readlane_b32 s{A0+f}, v16, {16*c_+f}")
        I(f"v_mul_f32 v{24+2*c_}, s{A0}, v{SD}")
        I(f"v_mul_f32 v{25+2*c_}, s{A0+1}, v{SD+1}")
        for f in range(2, 8): I(f"v_fmac_f32 v{24+2*c_+(f&1)}, s{A0+f}, v{SD+f}")
        I(f"v_add_f32 v{24+2*c_}, v{24+2*c_}, v{25+2*c_}")
        I(f"v_min_u32 v{24+2*c_}, 0xfffffffe, v{24+2*c_}")
        I(f"global_store_dword v{22+c_}, v{24+2*c_}, {sp(WSP)} sc1")
    I(f"s_branch {lab('sp_done')}")
    k.L(lab("sp_skip"))
    I("s_waitcnt vmcnt(0)")
    x_elem(SX, 16)
    k.L(lab("sp_done"))
    hop_b_issue(1)
    k.stamp(name="t_spec")
    X, Y = 96, 16
    for i in range(4): unpack(X + 2*i, X + 2*i + 1, XG + i)
    for r in range(8): I(f"v_sub_f32 v{Y+r}, v{X+r}, v{RESM}")
    for r in range(8): I(f"v_mul_f32 v{Y+r}, v{Y+r}, v{RESR}")
    for i in range(4): I(f"v_cvt_pk_bf16_f32 v{XG+i}, v{Y+2*i}, v{Y+2*i+1}")
    for i in range(4): unpack(Y + 2*i, Y + 2*i + 1, XG + i)
    for r in range(8): I(f"v_add_f32 v{X+r}, v{X+r}, v{Y+r}")
    for i in range(4): I(f"v_cvt_pk_bf16_f32 v{XG+i}, v{X+2*i}, v{X+2*i+1}")
    I(f"s_lshl_b32 s{A0}, s{KG}, 5")
    I(f"v_lshl_add_u32 v12, v7, 4, s{A0}")
    I(f"v_lshl_add_u32 v12, v{VTK}, 10, v12")
    I(f"v_permlane32_swap_b32 v{XG}, v{XG+2}")
    I(f"v_permlane32_swap_b32 v{XG+1}, v{XG+3}")
    hop_b(1)
    k.stamp(name="t_hopb")
    def out_store():
        I(f"v_cmp_ne_u32 vcc, s{IDX}, v{VTK}")
        I(f"s_and_saveexec_b64 {sp(T2)}, vcc")
        vm.issue(f"global_store_dwordx4 v12, {vr(XG,4)}, {sp(OUTP)} {ENV('OUTF', '')}")
        exec_all()
    out_store()
    slice1(1)
    slice2(1)
    k.stamp(name="t_slice")
    finalize(1)
    I(f"s_branch {lab('fdone')}")
    k.L(lab("hit"))
    I("s_cmp_lt_u32 s2, 224")
    I(f"s_cbranch_scc1 {lab('hit_out')}")
    I(f"s_cmp_eq_u32 s{YSEL}, 2")
    I(f"s_mov_b32 s{T0}, {hex(YP[2])}")
    I(f"s_cselect_b32 s{T0}, {hex(YP[3])}, s{T0}")
    gather("sg", [f"s{T0}"], 20, LRD, light=(ENV("SGL", "0") == "1"))
    I("v_and_b32 v16, 15, v1")
    I("v_lshlrev_b32 v16, 2, v16")
    I(f"v_add_u32 v16, {LRD}, v16")
    bar()
    I(f"s_cmp_lg_u32 s{WAVE}, 0")
    I(f"s_cbranch_scc1 {lab('hit_out')}")
    I(f"v_mov_b32 v17, v{SX}")
    I(f"s_cmp_eq_u32 s{YSEL}, 2")
    I("s_cselect_b64 vcc, -1, 0")
    I(f"v_permlane16_swap_b32 v{SX}, v17")
    I("s_nop 0")
    I(f"v_cndmask_b32 v{SX}, v{SX}, v17, vcc")
    finish_row(1, SX, 16)
    k.L(lab("hit_out"))
    out_store()
    k.L(lab("fdone"))
    I("s_cmp_lg_u32 s2, 0")
    I(f"s_cbranch_scc1 {lab('end')}")
    I(f"v_mov_b32 v12, {hex(NONCE)}")
    I(f"v_mov_b32 v13, s{TAG}")
    I("v_cmp_eq_u32 vcc, 0, v0")
    I(f"s_and_saveexec_b64 {sp(T2)}, vcc")
    I(f"s_cbranch_execz {lab('end')}")
    I(f"global_store_dword v12, v13, {sp(WSP)} sc1")
    k.L(lab("end"))
    k.stamp_end(0)
    if ENV("DBGT"):
        I("s_cmp_lt_u32 s2, 224")
        I(f"s_cbranch_scc1 {lab('exit')}")
        I(f"s_cmp_lg_u32 s{WAVE}, 0")
        I(f"s_cbranch_scc1 {lab('exit')}")
        I("s_load_dwordx2 s[4:5], s[0:1], 72")
        I("s_memrealtime s[6:7]")
        I("s_memtime s[8:9]")
        I("s_waitcnt lgkmcnt(0)")
        I("s_mov_b64 exec, 1")
        I("s_not_b32 s96, s96")
        I("s_sub_u32 s8, s8, s98")
        I("v_mov_b32 v1, 0"); I("v_mov_b32 v2, s96"); I("v_mov_b32 v3, s6"); I("v_mov_b32 v4, s8")
        I("global_atomic_umax v1, v2, s[4:5]")
        I("global_atomic_umax v1, v3, s[4:5] offset:4")
        I("global_atomic_umax v1, v4, s[4:5] offset:8")
    k.L(lab("exit"))
    I("s_endpgm")
    return k

if __name__ == "__main__":
    k = build_kernel()
    bad = check_hazards(k)
    for b in bad: print("HAZARD", b, file=sys.stderr)
    out = sys.argv[1] if len(sys.argv) > 1 else "cdna_kernels/" + NAME + ".s"
    NOTES = """; One persistent kernel, 256 workgroups (one per CU, all co-resident) x 8 waves; workgroup = (q-block id&7, head id>>3).
"""
    txt = emit_file(HEADER + NOTES, [k], single=(ENV("SINGLE", "0") == "1"))
    open(out, "w").write(txt)
    print("written", out, len(txt), "bytes; hazards:", len(bad))
```

```python
import sys, struct, os
from asmlib import *

NAME = "interleave_layers__softmax_full_mha__moe_arch_mod__prompt"
HEADER = open("cdna_kernels/" + NAME + ".s.ref").read().split("; Override launch")[0]
ENV = os.environ.get

XF = [0x000000, 0x200000]
KF = [0x400000, 0x800000]
VF = [0x600000, 0xA00000]
OF = [0xC00000, 0xE00000]
ST = [0x1000000, 0x1040000]
YP = [0x1080000, 0x1100000, 0x1180000, 0x1400000]
FLK = [0x1280000, 0x1288000]
FLO = [0x1300000, 0x1340000]
KEY = [0x12C0000, 0x12C8000]
X2R = 0x12A0000
NONCE = 0x12A2000
EPS = 1e-5
def f2u(x): return struct.unpack("<I", struct.pack("<f", x))[0]
QSCALE = 0.25 * 1.4426950408889634
LOG2E = 1.4426950408889634
SPIN_MAX = 1 << 18

CB, CBN = 131072, 20
LWQ = 8192
LST = CB + CBN * 512
LSA = LST
LPC = LST + 8192
LFX = LST + 8448
LVB = LST + 8704
LRD = LST + 10752
LFF = LST + 14848
LKY = LFF + 128
LCS = LFF + 768
LDS_BYTES = LFF + 1024

X0P, WQP, WOP, WSP, WRP, WGP, WUP, WDP, OUTP = 4, 6, 8, 10, 12, 14, 16, 18, 20
HEAD, QB, WAVE, TT, W1K, THR, CTR, SPIN, PASS, TAG, CG, TB, OA, KQ, OT, KG, IDX, WSUM = range(22, 40)
T0, T2 = 40, 42
A0 = 44
KB_, VB_, OB_, XB_ = 52, 54, 56, 58
RM, RR, RS_, ONES, C512, CEPS = 60, 61, 62, 63, 64, 65
CGP = 3
CA, CB_, YSEL = 100, 101, 30

def sp(i): return f"s[{i}:{i+1}]"

class VM:
    def __init__(self, k): self.k = k; self.q = []
    def issue(self, txt, tag=None):
        self.k.I(txt); self.q.append(tag)
    def wait(self, tag, extra=""):
        i = max(j for j, t in enumerate(self.q) if t == tag)
        n = len(self.q) - 1 - i
        assert n <= 63
        self.k.I(f"s_waitcnt vmcnt({n}){extra}")
    def drain(self, extra=""):
        self.k.I(f"s_waitcnt vmcnt(0){extra}"); self.q = []

def build_kernel():
    k = Kern(NAME + "_kernel", 256, 512, LDS_BYTES, 128, nagpr=128)
    I = k.I
    vm = VM(k)
    def lab(x): return f"L_{x}"
    def sadd64(d, b, const):
        I(f"s_add_u32 s{d}, s{b}, {hex(const)}"); I(f"s_addc_u32 s{d+1}, s{b+1}, 0")
    def swapop(sw, op, x, t):
        I(f"v_mov_b32 v{t}, v{x}"); k.nop(2); I(f"{sw} v{x}, v{t}"); I(f"{op} v{x}, v{x}, v{t}")
    def halfsum(op, x, t): swapop("v_permlane32_swap_b32", op, x, t)
    def rowreduce(op, x, t):
        swapop("v_permlane16_swap_b32", op, x, t); swapop("v_permlane32_swap_b32", op, x, t)
    def dppred(op, x, modes):
        for m in modes:
            k.nop(2); I(f"{op}_dpp v{x}, v{x}, v{x} {m} row_mask:0xf bank_mask:0xf")
    Q4 = ("quad_perm:[1,0,3,2]", "quad_perm:[2,3,0,1]")
    def allreduce(op, x, t):
        dppred(op, x, Q4 + ("row_half_mirror", "row_mirror")); rowreduce(op, x, t)
    def unpack(dlo, dhi, src):
        I(f"v_lshlrev_b32 v{dlo}, 16, v{src}"); I(f"v_and_b32 v{dhi}, 0xffff0000, v{src}")
    def bf16r(x):
        I(f"v_cvt_pk_bf16_f32 v{x}, v{x}, v{x}"); I(f"v_and_b32 v{x}, 0xffff0000, v{x}")
    def exec_lo(mask):
        I(f"s_mov_b32 exec_lo, {mask}"); I("s_mov_b32 exec_hi, 0")
    def exec_all(): I("s_mov_b64 exec, -1")
    def bar(lg=True):
        if lg: I("s_waitcnt lgkmcnt(0)")
        I("s_barrier")
    def poll(name, loads, tagregs, first_issued=False, check=None, chk_label=None):
        I(f"s_mov_b32 s{SPIN}, {SPIN_MAX}")
        SL = int(ENV("SLEEP", "0"))
        import re as _re
        if ENV("SLRE") and not _re.search(ENV("SLRE"), name): SL = 0
        if chk_label: I(f"s_branch {lab(chk_label)}")
        elif first_issued: I(f"s_branch {lab(name+'_w')}")
        elif SL: I(f"s_branch {lab(name+'_l')}")
        k.L(lab(name))
        if SL: I(f"s_sleep {SL}")
        k.L(lab(name + "_l"))
        for l in loads: I(l)
        k.L(lab(name + "_w"))
        I("s_waitcnt vmcnt(0)")
        if chk_label: k.L(lab(chk_label))
        if check: check()
        else: I(f"v_cmp_ne_u32 vcc, s{TAG}, v{tagregs[0]}")
        for r in tagregs[1:]:
            I(f"v_cmp_ne_u32 {sp(T2)}, s{TAG}, v{r}")
            I(f"s_or_b64 vcc, vcc, {sp(T2)}")
        I(f"s_sub_u32 s{SPIN}, s{SPIN}, 1")
        I(f"s_cbranch_vccz {lab(name+'_ok')}")
        I(f"s_cbranch_scc0 {lab(name)}")
        k.L(lab(name + "_ok"))
        k.stampval(SPIN, "x" + name + "_spin")
        k.stamp(name="x" + name + "_ok")
        vm.q = []
    def mfma(d, a_, b_, c): I(f"v_mfma_f32_32x32x16_bf16 {vr(d,16)}, {a_}, {b_}, {vr(c,16) if c is not None else 0}")
    def rowstats(s1, s2, m, var, rstd):
        I(f"v_mul_f32 v{m}, s{C512}, v{s1}")
        I(f"v_mul_f32 v{var}, s{C512}, v{s2}")
        I(f"v_fma_f32 v{var}, -v{m}, v{m}, v{var}")
        I(f"v_max_f32 v{var}, 0, v{var}")
        I(f"v_add_f32 v{rstd}, s{CEPS}, v{var}")
        I(f"v_rsq_f32 v{rstd}, v{rstd}")

    ACC, WB = 16, 40
    CQ, CV, MV, AL = 96, 108, 76, 84
    MT, AT = [112, 114], [113, 115]
    S0, S1, P0, P1, VA, NEG, O, Q, KB = 16, 32, 48, 52, [56, 64], 72, 88, 104, 108
    AK, AV, AVS, VBASE = 112, 113, 114, 115
    XG, WR, VXO, VTK, RESM, RESR = 116, 120, 124, 125, 126, 127
    TK, TV = 64, 68
    def mfma16(d, a_, b_, first): I(f"v_mfma_f32_16x16x32_bf16 {vr(d,4)}, {a_}, {b_}, {0 if first else vr(d,4)}")
    AWO, ARS, AWS, AGU, ADN = 0, 32, 88, 112, 120

    I("s_cmp_ge_u32 s2, 256")
    I(f"s_cbranch_scc1 {lab('exit')}")
    k.stamp_begin()
    if ENV("DBGT"):
        I("s_memrealtime s[96:97]")
        I("s_memtime s[98:99]")
    I(f"s_load_dwordx4 s[4:7], s[0:1], 0")
    I(f"s_load_dwordx2 s[8:9], s[0:1], 16")
    I(f"s_load_dwordx2 s[10:11], s[0:1], 80")
    I(f"s_load_dwordx8 s[12:19], s[0:1], 32")
    I(f"s_load_dwordx2 s[20:21], s[0:1], 64")
    I("v_and_b32 v1, 63, v0")
    I("v_lshrrev_b32 v2, 6, v0")
    I("v_lshlrev_b32 v3, 4, v1")
    I(f"v_readfirstlane_b32 s{WAVE}, v2")
    I(f"s_and_b32 s{QB}, s2, 7")
    I(f"s_lshr_b32 s{HEAD}, s2, 3")
    if ENV("HX"):
        I(f"s_cmp_lt_u32 s{HEAD}, 16")
        I(f"s_cselect_b32 s{A0}, 8, 0")
        I(f"s_xor_b32 s{HEAD}, s{HEAD}, s{A0}")
    I(f"s_lshl_b32 s{TT}, s{QB}, 3")
    I(f"s_add_u32 s{TT}, s{TT}, s{WAVE}")
    I(f"s_lshl_b32 s{W1K}, s{WAVE}, 10")
    I("v_bfe_u32 v5, v1, 1, 2")
    I("v_bfe_u32 v6, v1, 3, 1")
    I("v_lshl_add_u32 v5, v6, 3, v5")
    I("v_bfe_u32 v6, v1, 4, 1")
    I("v_lshl_add_u32 v5, v6, 2, v5")
    I("v_bfe_u32 v6, v1, 5, 1")
    I("v_lshl_add_u32 v5, v6, 4, v5")
    I("v_mul_u32_u24 v5, 3072, v5")
    I("v_and_b32 v6, 1, v1")
    I("v_lshl_add_u32 v5, v6, 4, v5")
    I(f"s_lshl_b32 s{A0+1}, s{HEAD}, 5")
    I(f"v_add_u32 v5, s{A0+1}, v5")
    I("v_lshrrev_b32 v8, 4, v1")
    I("v_and_b32 v9, 7, v1")
    I("v_xor_b32 v8, v8, v9")
    I("v_lshlrev_b32 v8, 4, v8")
    I("v_lshrrev_b32 v9, 3, v1")
    I("v_lshl_add_u32 v8, v9, 10, v8")
    I(f"s_lshl_b32 s{A0}, s{TT}, 15")
    I(f"v_add_u32 v8, s{A0}, v8")
    I("v_xor_b32 v9, 64, v8")
    I("v_add_u32 v9, 0x2000, v9")
    XB3 = [A0 + 3, A0 + 4, A0 + 5]
    for b_ in range(3):
        I(f"s_mul_i32 s{XB3[b_]}, s{WAVE}, 12288")
        I(f"s_add_u32 s{XB3[b_]}, s{XB3[b_]}, {56*1024 + 4096*b_}")
        if b_:
            I(f"s_cmp_eq_u32 s{WAVE}, 7")
            I(f"s_cselect_b32 s{XB3[b_]}, {4096*(b_-1)}, s{XB3[b_]}")
    ROT = A0 + 6
    I(f"s_and_b32 s{ROT}, s{HEAD}, 3")
    I("s_waitcnt lgkmcnt(0)")
    def xstage(st):
        I(f"s_add_u32 s{A0}, s{ROT}, {st//2}")
        I(f"s_and_b32 s{A0}, s{A0}, 3")
        I(f"s_lshl_b32 s{A0}, s{A0}, 8")
        if st & 1: I(f"s_add_u32 s{A0}, s{A0}, 128")
        I(f"s_add_u32 s{T0}, s{X0P}, s{A0}")
        I(f"s_addc_u32 s{T0+1}, s{X0P+1}, 0")
        for i in range(4):
            if i == 2: sadd64(T0, T0, 16384)
            I(f"s_add_u32 m0, s{XB3[st % 3]}, {i*1024}")
            I("s_nop 0")
            vm.issue(f"global_load_lds_dwordx4 v{8 + (i&1)}, {sp(T0)}", f"x{st}")
    def wdma(j):
        I(f"s_mul_i32 s{A0}, s{ROT}, 12")
        I(f"s_add_u32 s{A0}, s{A0}, s{WAVE}")
        I(f"s_add_u32 s{A0}, s{A0}, {8*j}")
        I(f"s_sub_u32 s{A0+1}, s{A0}, 48")
        I(f"s_cmp_ge_u32 s{A0}, 48")
        I(f"s_cselect_b32 s{A0}, s{A0+1}, s{A0}")
        I(f"s_mul_i32 s{A0+1}, s{A0}, 21846")
        I(f"s_lshr_b32 s{A0+1}, s{A0+1}, 16")
        I(f"s_mul_i32 s{A0+2}, s{A0+1}, 3")
        I(f"s_sub_u32 s{A0}, s{A0}, s{A0+2}")
        I(f"s_mul_i32 s{A0+2}, s{A0+1}, {32*3072}")
        I(f"s_lshl_b32 s{T0}, s{A0}, 10")
        I(f"s_add_u32 s{A0+2}, s{A0+2}, s{T0}")
        I(f"s_add_u32 s{T0}, s{WQP}, s{A0+2}")
        I(f"s_addc_u32 s{T0+1}, s{WQP+1}, 0")
        I(f"s_lshl_b32 s{A0}, s{A0}, 14")
        I(f"s_lshl_b32 s{A0+1}, s{A0+1}, 10")
        I(f"s_add_u32 s{A0}, s{A0}, s{A0+1}")
        I(f"s_add_u32 m0, s{A0}, {LWQ}")
        I("s_nop 0")
        vm.issue(f"global_load_lds_dwordx4 v5, {sp(T0)}", f"W{j}")
    if ENV("CPF", "0") == "1":
        I(f"s_cmp_lg_u32 s{WAVE}, 7")
        I(f"s_cbranch_scc1 {lab('nocpf')}")
        I(f"s_lshl_b32 s{A0}, s{HEAD}, 13")
        I(f"v_lshl_add_u32 v12, v1, 7, s{A0}")
        I(f"v_cmp_gt_u32 vcc, {lab('exit')}-{lab('pc0')}, v12")
        I(f"s_getpc_b64 {sp(T0)}")
        k.L(lab("pc0"))
        I(f"s_and_saveexec_b64 {sp(T2)}, vcc")
        I(f"s_cbranch_execz {lab('cpf2')}")
        I(f"global_load_dword v127, v12, {sp(T0)}")
        k.L(lab("cpf2"))
        exec_all()
        k.L(lab("nocpf"))
    if ENV("ALLUP"):
        for j in range(8):
            if j < 6 and ENV("ALLUP") != "x": wdma(j)
            if ENV("ALLUP") != "w": xstage(j)
        k.stamp(name="a_issue")
        I("s_waitcnt vmcnt(0)")
        k.stamp(name="a_done")
        I("s_barrier")
        k.stamp(name="a_bar")
        I(f"s_branch {lab('end')}")
    UPW = int(ENV("UPW", "4"))
    UPX = int(ENV("UPX", "3"))
    I(f"v_mov_b32 v12, {hex(NONCE)}")
    vm.issue(f"global_load_dword v126, v12, {sp(WSP)} sc1", "nonce")
    wdma(0); xstage(0); wdma(1); xstage(1)
    if UPW > 2: wdma(2)
    if UPX > 2: xstage(2)
    for j in range(3, UPW): wdma(j)
    I(f"s_lshr_b32 s{CG}, s{HEAD}, 2")
    I(f"s_and_b32 s{TB}, s{HEAD}, 3")
    I(f"s_lshl_b32 s{A0}, s{QB}, 2")
    I(f"s_add_u32 s{TB}, s{TB}, s{A0}")
    I(f"s_and_b32 s{OA}, s{WAVE}, 1")
    I(f"s_lshr_b32 s{KQ}, s{WAVE}, 1")
    I(f"s_lshl_b32 s{OT}, s{TB}, 1")
    I(f"s_add_u32 s{OT}, s{OT}, s{OA}")
    I(f"s_lshl_b32 s{KG}, s{CG}, 2")
    I(f"s_add_u32 s{KG}, s{KG}, s{KQ}")
    I(f"s_mul_i32 s{CGP}, s{QB}, 28")
    I(f"s_min_u32 s{A0}, s{HEAD}, 27")
    I(f"s_add_u32 s{CGP}, s{CGP}, s{A0}")
    I(f"s_mov_b32 s{THR}, {hex(f2u(2.0**30)) if not ENV('THRZ') else 0}")
    I(f"s_mov_b32 s{ONES}, 0x3f803f80")
    I(f"s_mov_b32 s{C512}, {hex(f2u(1/512))}")
    I(f"s_mov_b32 s{CEPS}, {hex(f2u(EPS))}")
    def lane_terms():
        I("v_and_b32 v6, 31, v1")
        I("v_lshrrev_b32 v7, 5, v1")
    lane_terms()
    def w_addr():
        I("v_bfe_u32 v12, v1, 2, 2")
        I("v_lshl_add_u32 v12, v7, 4, v12")
        I("v_bfe_u32 v13, v1, 4, 1")
        I("v_lshl_add_u32 v12, v13, 2, v12")
        I("v_and_b32 v13, 3, v1")
        I("v_lshlrev_b32 v13, 3, v13")
        I("v_lshl_add_u32 v10, v12, 5, v13")
        I(f"v_add_u32 v10, {LWQ}, v10")
    w_addr()
    def wreads(dst, ad, ks):
        for sec in range(3):
            I(f"ds_read_b64_tr_b16 {vr(dst+4*sec,2)}, v{ad} offset:{sec*16384+ks*1024}")
            I(f"ds_read_b64_tr_b16 {vr(dst+4*sec+2,2)}, v{ad} offset:{sec*16384+ks*1024+256}")
    def qmfmas(wb, xa, xb, first, between=None):
        for i, (d, A_, B_) in enumerate(((ACC, vr(wb,4), xa), (ACC+4, vr(wb,4), xb), (ACC+8, vr(wb+4,4), xa),
                                         (ACC+12, vr(wb+4,4), xb), (ACC+16, xa, vr(wb+8,4)), (ACC+20, xb, vr(wb+8,4)))):
            mfma16(d, A_, B_, first)
            if between: between(i)
    I("v_bfe_u32 v12, v1, 1, 3")
    I("v_and_b32 v13, 15, v1")
    I("v_lshlrev_b32 v13, 7, v13")
    I("v_lshrrev_b32 v14, 4, v1")
    I("v_xor_b32 v14, v14, v12")
    I("v_lshl_add_u32 v2, v14, 4, v13")
    I("v_xor_b32 v4, 64, v2")
    def xfrags(st):
        I(f"v_add_u32 v14, s{XB3[st % 3]}, v2")
        I(f"v_add_u32 v15, s{XB3[st % 3]}, v4")
        vm.wait(f"x{st}")
        for h in range(2):
            for t in range(2): I(f"ds_read_b128 {ar(16*st+8*h+4*t,4)}, v{14+h} offset:{2048*t}")
    k.stamp(name="q0_issue")
    GU, ON = 76, 92
    for r in range(4): I(f"v_mov_b32 v{ON+r}, s{ONES}")
    xfrags(0)
    vm.wait("W1")
    I(f"v_readfirstlane_b32 s{TAG}, v126")
    I(f"s_mul_i32 s{TAG}, s{TAG}, 0x9E3779B1")
    I(f"s_add_u32 s{TAG}, s{TAG}, 0x7F4A7C15")
    I("s_barrier")
    k.stamp(name="q0_W")
    def capture(f):
        n0 = len(k.lines); f(); out = k.lines[n0:]; del k.lines[n0:]; return out
    def weave(main, fill):
        atoms = []; masked = False
        for l in fill:
            opens = ("exec" in l.split(",")[0] or "saveexec" in l) and "exec, -1" not in l
            if masked: atoms[-1].append(l)
            else: atoms.append([l])
            if opens: masked = True
            if "exec, -1" in l: masked = False
        per = -(-len(atoms) // len(main))
        for i, l in enumerate(main):
            k.lines.append(l)
            for at in atoms[i*per:(i+1)*per]: k.lines.extend(at)
    CSA = 96
    def colsum_reads():
        I(f"v_add_u32 v13, s{W1K}, v10")
        wreads(100, 13, 0)
    def colsum_mm(i):
        for sec in range(2): mfma16(CS3[sec], vr(100+4*sec,4), vr(ON,4), i == 0)
        mfma16(CS3[2], vr(ON,4), vr(108,4), i == 0)
    CS3 = [96, 116, 120]
    def colsum_write():
        I(f"s_lshl_b32 s{A0}, s{WAVE}, 8")
        I(f"s_add_u32 s{A0}, s{A0}, {LRD}")
        I("v_and_b32 v13, 48, v1")
        I(f"v_add_u32 v13, s{A0}, v13")
        I("v_and_b32 v14, 15, v1")
        I(f"v_lshl_add_u32 v14, v14, 2, s{A0}")
        I(f"ds_write_b32 v14, v{CS3[2]} offset:128")
        I("s_mov_b32 exec_lo, 0x00010001"); I("s_mov_b32 exec_hi, 0x00010001")
        for sec in range(2): I(f"ds_write_b128 v13, {vr(CS3[sec],4)} offset:{64*sec}")
        exec_all()
    def sum8(src, dst):
        I("v_lshlrev_b32 v13, 2, v1")
        I(f"v_add_u32 v14, {src}, v13")
        for w in range(8): I(f"ds_read_b32 v{104+w}, v14 offset:{256*w}")
        I(f"v_add_u32 v13, {dst}, v13")
        I("s_waitcnt lgkmcnt(0)")
        for a_, b_ in ((0,1),(2,3),(4,5),(6,7),(0,2),(4,6),(0,4)): I(f"v_add_f32 v{104+a_}, v{104+a_}, v{104+b_}")
        I("ds_write_b32 v13, v104")
    def wsave():
        I(f"s_mul_i32 s{A0}, s{WAVE}, 6144")
        I(f"s_add_u32 s{A0}, s{A0}, {LWQ}")
        I(f"v_add_u32 v13, s{A0}, v3")
        for i in range(6): I(f"ds_read_b128 {ar(AWS+4*i,4)}, v13 offset:{1024*i}")
    def wbase(q):
        I(f"s_add_u32 s{A0}, s{ROT}, {q}")
        I(f"s_and_b32 s{A0}, s{A0}, 3")
        I(f"s_lshl_b32 s{A0}, s{A0}, 12")
        I(f"v_add_u32 v11, s{A0}, v10")
    wbase(0)
    wreads(WB, 11, 0)
    wreads(WB + 12, 11, 1)
    ready = {2: 1, 5: 2, 8: 3, 10: 4, 13: 5}
    def const_area():
        I("v_and_b32 v13, 11, v0")
        I(f"v_mov_b32 v14, s{ONES}")
        I("v_cmp_eq_u32 vcc, 0, v13")
        I("v_lshlrev_b32 v13, 4, v0")
        I(f"v_add_u32 v13, {CB}, v13")
        I("v_cndmask_b32 v100, 0, v14, vcc")
        for r in range(1, 4): I(f"v_mov_b32 v{100+r}, v100")
        I("ds_write_b128 v13, v[100:103]")
        I(f"v_cmp_gt_u32 vcc, {(CBN*512 - 8192)//16}, v0")
        I(f"s_and_saveexec_b64 {sp(T2)}, vcc")
        I("ds_write_b128 v13, v[100:103] offset:8192")
        exec_all()
    def stats0():
        I("v_lshrrev_b32 v12, 4, v1")
        I("v_lshlrev_b32 v12, 2, v12")
        I("v_and_b32 v13, 15, v1")
        I("v_sub_u32 v12, v13, v12")
        for t in range(2): I(f"v_mov_b32 v{ON+t}, 0")
        for r in range(4):
            I(f"v_cmp_eq_u32 vcc, {r}, v12")
            k.nop(2)
            for t in range(2): I(f"v_cndmask_b32 v{ON+t}, v{ON+t}, v{GU+4*t+r}, vcc")
        for t in range(2): rowreduce("v_add_f32", ON + t, 12)
        for t in range(2): rowstats(GU + 8 + 4*t, ON + t, MT[t], 12, AT[t])
    ready = {5: 3, 10: 5}
    def smf(q_, half):
        ya, yb = ar(8*q_,4), ar(8*q_+4,4)
        if half == 0: mfma16(GU, ya, ya, q_ == 0); mfma16(GU + 4, yb, yb, q_ == 0)
        else: mfma16(GU + 8, vr(ON,4), ya, q_ == 0); mfma16(GU + 12, vr(ON,4), yb, q_ == 0)
    for ks in range(16):
        st = ks // 2
        pre = 0
        QP0 = eval(ENV("QP0", "{0: 3, 1: 2, 2: 1, 3: 3, 5: 2, 6: 1, 7: 0, 8: 3, 10: 2, 11: 1, 12: 0, 13: 3, 14: 2, 15: 1}"))
        if ks in QP0: I(f"s_setprio {QP0[ks]}")
        if ks % 2 == 0 and st + 1 < 8:
            xfrags(st + 1); pre = 4
        if ks + 2 in ready:
            vm.wait(f"W{ready[ks+2]}")
            I("s_barrier")
        if ks == 13: bar()
        if ks < 14:
            if (ks + 2) % 4 == 0: wbase((ks + 2)//4)
            wreads(WB + 12*((ks+2)%3), 11, (ks + 2) % 4)
            I(f"s_waitcnt lgkmcnt({min(15, 12 + pre) if ks % 2 == 0 else 12})")
        elif ks == 14: I("s_waitcnt lgkmcnt(0)")
        def loads():
            if UPW + ks < 6 and ENV("WFAST"): wdma(UPW + ks)
            if ks == 0 and UPX == 2: xstage(2)
            if ks == 0: xstage(3)
            if ks % 2 == 1 and st + 4 < 8: xstage(st + 4)
            if ks % 2 == 0 and UPW + ks//2 < 6 and not ENV("WFAST"): wdma(UPW + ks//2)
        def mm():
            xa, xb = ar(8*ks,4), ar(8*ks+4,4)
            if ks < 14: smf(ks, 0)
            if ks == 13:
                smf(13, 1)
                for q_ in (14, 15): smf(q_, 0); smf(q_, 1)
            qmfmas(WB + 12*(ks%3), xa, xb, ks == 0)
            if ks < 13: smf(ks, 1)
            if ks == 10: I("s_waitcnt lgkmcnt(10)"); colsum_mm(0)
            if ks == 11: I("s_waitcnt lgkmcnt(6)"); colsum_mm(1)
        fill = capture(loads)
        if ks == 9: fill += capture(colsum_reads)
        if ks == 12: fill += capture(colsum_write)
        if ks == 13: fill += capture(lambda: sum8(LRD, LPC)) + capture(const_area)
        if ks == 14: fill += capture(wsave) + capture(stats0)
        weave(capture(mm), fill)
        if ks == 10: wreads(100, 13, 8)
        k.stamp(name=f"xq0k{ks}")
    k.stamp(name="q0_loop")
    def bounce_params():
        I(f"s_lshl_b32 s{A0}, s{WAVE}, 8")
        I(f"s_add_u32 s{A0}, s{A0}, {LVB}")
        I("v_and_b32 v13, 15, v1")
        I(f"v_lshl_add_u32 v12, v13, 2, s{A0}")
        for t in range(2):
            I(f"ds_write_b32 v12, v{MT[t]} offset:{64*t}")
            I(f"ds_write_b32 v12, v{AT[t]} offset:{128+64*t}")
        I("v_and_b32 v14, 48, v1")
        I(f"v_add_u32 v12, s{A0}, v14")
        for t in range(2):
            I(f"ds_read_b128 {vr(MV+4*t,4)}, v12 offset:{64*t}")
            I(f"ds_read_b128 {vr(AL+4*t,4)}, v12 offset:{128+64*t}")
        I(f"v_add_u32 v12, {LPC}, v14")
        for sec in range(2): I(f"ds_read_b128 {vr(CQ+4*sec,4)}, v12 offset:{64*sec}")
        I("v_lshlrev_b32 v12, 2, v13")
        I(f"v_add_u32 v12, {LPC + 128}, v12")
        I(f"ds_read_b32 v{CV}, v12")
    bounce_params()

    def yp_addr(d, L):
        I(f"v_lshrrev_b32 v{d}, 4, v0")
        I(f"v_mul_u32_u24 v{d}, {224*64}, v{d}")
        I(f"v_and_b32 v{d+1}, 15, v0")
        I(f"v_lshl_add_u32 v{d}, v{d+1}, 2, v{d}")
        I(f"s_lshl_b32 s{T2}, s{CGP}, 6")
        I(f"s_add_u32 s{T2}, s{T2}, {hex(YP[L])}")
        I(f"v_add_u32 v{d}, s{T2}, v{d}")

    def q_epilogue(L):
        n = f"l{L}"
        sadd64(KB_, WSP, KF[L]); sadd64(VB_, WSP, VF[L]); sadd64(OB_, WSP, OF[L])
        for t in range(2): I(f"v_mul_f32 v{13+t}, {hex(f2u(QSCALE))}, v{AT[t]}")
        I(f"s_lshl_b32 s{A0}, s{HEAD}, 16")
        I(f"s_lshl_b32 s{A0+1}, s{TT}, 10")
        I(f"s_add_u32 s{A0}, s{A0}, s{A0+1}")
        I(f"v_add_u32 v4, s{A0}, v3")
        I(f"v_add_u32 v15, s{W1K}, v3")
        I("v_add_u32 v5, 0x10000, v15")
        I("s_waitcnt lgkmcnt(0)")
        for sec in (1, 0):
            for t in range(2):
                for r in range(4): I(f"v_fma_f32 v{ACC+8*sec+4*t+r}, -v{MT[t]}, v{CQ+4*sec+r}, v{ACC+8*sec+4*t+r}")
            for t in range(2):
                for r in range(4): I(f"v_mul_f32 v{ACC+8*sec+4*t+r}, v{AT[t] if sec else 13+t}, v{ACC+8*sec+4*t+r}")
            d = TK if sec else Q
            for i in range(4): I(f"v_cvt_pk_bf16_f32 v{d+i}, v{ACC+8*sec+2*i}, v{ACC+8*sec+2*i+1}")
        I(f"v_fma_f32 v{ACC+16}, -v{MV}, v{CV}, v{ACC+16}")
        I(f"v_permlane16_swap_b32 v{TK}, v{TK+2}")
        I(f"v_permlane16_swap_b32 v{TK+1}, v{TK+3}")
        I(f"v_permlane16_swap_b32 v{Q}, v{Q+2}")
        I(f"v_permlane16_swap_b32 v{Q+1}, v{Q+3}")
        vm.issue(f"global_store_dwordx4 v4, {vr(TK,4)}, {sp(KB_)} sc1")
        I(f"ds_write_b128 v15, {vr(TK,4)}")
        mfma(S0, vr(TK,4), vr(Q,4), None)
        for r in range(1, 8): I(f"v_fma_f32 v{ACC+16+r}, -v{MV+r}, v{CV}, v{ACC+16+r}")
        for r in range(8): I(f"v_mul_f32 v{ACC+16+r}, v{AL+r}, v{ACC+16+r}")
        for i in range(4): I(f"v_cvt_pk_bf16_f32 v{TV+i}, v{ACC+16+2*i}, v{ACC+16+2*i+1}")
        I(f"v_max3_f32 v2, v{S0}, v{S0+1}, v{S0+2}")
        I(f"v_max3_f32 v13, v{S0+3}, v{S0+4}, v{S0+5}")
        I(f"v_permlane32_swap_b32 v{TV}, v{TV+2}")
        I(f"v_permlane32_swap_b32 v{TV+1}, v{TV+3}")
        vm.issue(f"global_store_dwordx4 v4, {vr(TV,4)}, {sp(VB_)} sc1")
        I(f"ds_write_b128 v5, {vr(TV,4)}")
        if L == 0:
            I("s_cmp_ge_u32 s2, 224")
            I(f"s_cbranch_scc1 {lab('nomark')}")
            yp_addr(10, 0)
            I("v_mov_b32 v12, -1")
            I(f"global_store_dword v10, v12, {sp(WSP)} sc1")
            for b_ in range(1, 4):
                I(f"v_add_u32 v11, {hex(YP[b_] - YP[0])}, v10")
                I(f"global_store_dword v11, v12, {sp(WSP)} sc1")
            k.L(lab("nomark"))
        for r in range(6, 16, 4): I(f"v_max3_f32 v2, v2, v{S0+r}, v{S0+r+1}")
        for r in range(8, 16, 4): I(f"v_max3_f32 v13, v13, v{S0+r}, v{S0+r+1}")
        I("v_max_f32 v2, v2, v13")
        halfsum("v_max_f32", 2, 13)
        for r in range(16): I(f"v_sub_f32 v{NEG+r}, 0, v2")
        I("v_and_b32 v8, 15, v1")
        I("v_bfe_u32 v9, v1, 4, 1")
        I("v_lshlrev_b32 v10, 4, v8")
        I("v_lshl_add_u32 v10, v7, 8, v10")
        I(f"v_lshl_add_u32 v{VBASE}, v9, 16, v10")
        I(f"v_add_u32 v{VBASE}, 0x10000, v{VBASE}")
        I("v_xor_b32 v9, 1, v9")
        I(f"v_lshlrev_b32 v{AVS}, 13, v9")
        I(f"v_mov_b32 v{AK}, v3")
        I(f"v_mov_b32 v{AV}, v{VBASE}")
        I(f"s_mov_b32 s{PASS}, 0")
        I(f"s_lshl_b32 s{A0}, s{HEAD}, 10")
        I(f"s_add_u32 s{A0}, s{A0}, {hex(FLK[L])}")
        I(f"v_lshl_add_u32 v8, v1, 7, s{A0}")
        I(f"s_lshl_b32 s{A0+1}, s{QB}, 7")
        I(f"s_add_u32 s{A0}, s{A0}, s{A0+1}")
        I(f"v_mov_b32 v9, s{A0}")
        bar()

    def ffn_gu(m_):
        I(f"s_lshl_b32 s{A0+1}, s{CGP}, 4")
        I(f"v_mul_u32_u24 v14, 3584, v0")
        I(f"v_add_u32 v14, s{A0+1}, v14")
        vm.issue(f"global_load_dwordx4 {ar(AGU+4*m_,4)}, v14, {sp(WUP if m_ else WGP)}")
    def ffn_dn():
        I(f"s_lshl_b32 s{A0+1}, s{CGP}, 13")
        I(f"s_add_u32 s{A0+1}, s{A0+1}, s{W1K}")
        I(f"v_add_u32 v14, s{A0+1}, v3")
        vm.issue(f"global_load_dwordx4 {ar(ADN,4)}, v14, {sp(WDP)}")
    def attention(L):
        n = f"l{L}"
        def max16(dst, S, first):
            if first:
                I(f"v_max3_f32 v{dst}, v{S}, v{S+1}, v{S+2}"); rest = list(range(3, 16))
            else: rest = list(range(16))
            while rest:
                if len(rest) >= 2:
                    I(f"v_max3_f32 v{dst}, v{dst}, v{S+rest[0]}, v{S+rest[1]}"); rest = rest[2:]
                else:
                    I(f"v_max_f32 v{dst}, v{dst}, v{S+rest[0]}"); rest = rest[1:]
        def prime():
            I(f"ds_read_b128 {vr(KB,4)}, v{AK}")
            I(f"ds_read_b128 {vr(VA[0],4)}, v{AV}")
            I(f"ds_read_b128 {vr(VA[0]+4,4)}, v{AV} offset:512")
            I("s_waitcnt lgkmcnt(0)")
            mfma(S0, vr(KB,4), vr(Q,4), None if ENV("C0") else NEG)
            I(f"ds_read_b128 {vr(KB,4)}, v{AK} offset:1024")
            k.nop(11)
        def setup():
            halfsum("v_max_f32", 2, 7)
            for r in range(16): I(f"v_sub_f32 v{NEG+r}, 0, v2")
            I(f"v_mov_b32 v{AK}, v3")
            I(f"v_mov_b32 v{AV}, v{VBASE}")
            for r in range(16): I(f"v_mov_b32 v{O+r}, 0")
            for r in range(4): I(f"v_mov_b32 v{P1+r}, 0")
            for r in range(4): I(f"v_mov_b32 v{VA[1]+4+r}, 0")
            prime()
        def tile(u, extra=None, nokread=False, noqk=False, novread=False, first=False):
            extra = extra or {}
            if "p" in extra: I(f"s_setprio {extra['p']}")
            Sc, Sn = (S0, S1) if u % 2 == 0 else (S1, S0)
            Vc, Vo = VA[u % 2], VA[1 - u % 2]
            E = lambda r: I(f"v_exp_f32 v{Sc+r}, v{Sc+r}")
            Cv = lambda P, r, b: I(f"v_cvt_pk_bf16_f32 v{P+r}, v{Sc+b+2*r}, v{Sc+b+2*r+1}")
            E(0); E(1)
            if not first: mfma(O, vr(Vo+4,4), vr(P1,4), O)
            if 0 in extra: extra[0]()
            E(2); E(3); E(4)
            I("s_waitcnt lgkmcnt(0)")
            E(5)
            if not noqk: mfma(Sn, vr(KB,4), vr(Q,4), None if ENV("C0") else NEG)
            E(6)
            if not nokread: I(f"ds_read_b128 {vr(KB,4)}, v{AK} offset:{(u+2)*1024}")
            E(7)
            if not novread: I(f"ds_read_b128 {vr(Vo,4)}, v{AV} offset:{(u+1)*1024}")
            for r in range(4): Cv(P0, r, 0)
            E(8)
            if not novread: I(f"ds_read_b128 {vr(Vo+4,4)}, v{AV} offset:{(u+1)*1024+512}")
            E(9)
            mfma(O, vr(Vc,4), vr(P0,4), None if first else O)
            if 1 in extra: extra[1]()
            for r in range(10, 16): E(r)
            for r in range(4): Cv(P1, r, 8)
        def bump():
            I(f"v_add_u32 v{AK}, 0x2000, v{AK}")
            I(f"v_add_u32 v{AV}, v{AVS}, v{AV}")
        prime()
        k.stamp(name=f"x{n}_setup")
        I("s_setprio 3")
        def publish_kv():
            vm.drain()
            I("s_barrier")
            I(f"s_cmp_lg_u32 s{WAVE}, 0")
            I(f"s_cbranch_scc1 {lab(n+'_noflag')}")
            I(f"v_mov_b32 v14, s{TAG}")
            I("s_mov_b64 exec, 1")
            I(f"global_store_dword v9, v14, {sp(WSP)} sc1")
            exec_all()
            k.L(lab(n + "_noflag"))
        pl = f"global_load_dword v14, v8, {sp(WSP)} sc1"
        def poll_issue():
            I("s_mov_b64 exec, 0xff"); I(pl); exec_all()
        def poll_check():
            I("s_mov_b64 exec, 0xff")
            if L == 1:
                I(f"s_lshr_b32 s{A0}, s{IDX}, 8")
                I(f"s_bitset0_b32 exec_lo, s{A0}")
            poll(n + "_pk", [pl], [14], first_issued=True)
            exec_all()
        def stg(sl): return ARS + 8*(sl-1) if L == 0 else 64 + 8*((sl-1) % 6)
        def rload(sl):
            if L == 1:
                I(f"s_lshr_b32 s{A0+1}, s{IDX}, 8")
                I(f"s_sub_u32 s{A0+1}, s{A0+1}, s{QB}")
                I(f"s_and_b32 s{A0+1}, s{A0+1}, 7")
                if sl == 7:
                    I(f"s_cmp_eq_u32 s{A0+1}, 0")
                    I(f"s_cselect_b32 s{A0}, 7, s{A0+1}")
                    I("s_mov_b64 exec, 0xff")
                    poll(n + "_pk7", [pl], [14], first_issued=True)
                    exec_all()
                else:
                    I(f"s_sub_u32 s{A0+1}, s{A0+1}, 1")
                    I(f"s_cmp_lt_u32 s{A0+1}, {sl}")
                    I(f"s_cselect_b32 s{A0}, {sl+1}, {sl}")
                I(f"s_add_u32 s{A0}, s{QB}, s{A0}")
            else:
                I(f"s_add_u32 s{A0}, s{QB}, {sl}")
            I(f"s_and_b32 s{A0}, s{A0}, 7")
            I(f"s_sub_u32 s{A0}, s{A0}, s{QB}")
            I(f"s_lshl_b32 s{A0}, s{A0}, 13")
            I(f"v_add_u32 v13, s{A0}, v4")
            vm.issue(f"global_load_dwordx4 {ar(stg(sl),4)}, v13, {sp(KB_)} sc1", f"r{sl}")
            vm.issue(f"global_load_dwordx4 {ar(stg(sl)+4,4)}, v13, {sp(VB_)} sc1", f"r{sl}")
        def rwrite(sl):
            if f"r{sl}" in vm.q: vm.wait(f"r{sl}")
            I(f"ds_write_b128 v15, {ar(stg(sl),4)} offset:{sl*8192}")
            I(f"ds_write_b128 v5, {ar(stg(sl)+4,4)} offset:{sl*8192}")
        PUB, PI, PC = [int(x) for x in ENV("POLL", "1,4,5").split(",")]
        PR = {}
        if ENV("PBAL", "1") == "1":
            PR = {4: 2, 6: 1, 7: 0, 8: 3, 11: 2, 12: 1, 13: 0, 14: 3, 18: 2, 20: 1, 21: 0, 22: 3, 30: 2, 34: 1, 36: 0, 38: 3}
        for u in range(8):
            ex = {}
            if u == PUB: ex[0] = publish_kv
            if u == PI: ex[0] = poll_issue
            if u == PC: ex[0] = lambda: (poll_check(), rload(1), rload(2))
            if u in PR: ex["p"] = PR[u]
            tile(u, ex, nokread=(u >= 6), noqk=(u == 7), novread=(u == 7), first=(u == 0))
        bump()
        k.stamp(name=f"x{n}_ch0a")
        rwrite(1)
        B2 = ENV("B2", "0") == "1"
        if B2: rwrite(2)
        bar()
        k.stamp(name=n + "_c0")
        prime()
        def wo_addr():
            I(f"s_lshl_b32 s{A0}, s{WAVE}, 16")
            I(f"s_lshl_b32 s{A0+1}, s{CG}, 7")
            I(f"s_add_u32 s{A0}, s{A0}, s{A0+1}")
            I("v_lshrrev_b32 v2, 3, v1")
            I(f"v_lshl_add_u32 v2, v2, 10, s{A0}")
            I("v_and_b32 v14, 7, v1")
            I("v_lshl_add_u32 v2, v14, 4, v2")
        def wo_load(i):
            vm.issue(f"global_load_dwordx4 {ar(AWO+4*i,4)}, v2, {sp(WOP)}", "wo")
            if i < 7: I("v_add_u32 v2, 0x2000, v2")
        def misc_loads():
            I(f"s_lshl_b32 s{A0}, s{KG}, 9")
            I(f"s_lshl_b32 s{A0+1}, s{OT}, 15")
            I(f"s_add_u32 s{A0}, s{A0}, s{A0+1}")
            I("v_and_b32 v10, 15, v1")
            I(f"v_lshl_add_u32 v{VXO}, v10, 4, s{A0}")
            I("v_lshrrev_b32 v10, 5, v1")
            I(f"v_lshl_add_u32 v{VXO}, v10, 8, v{VXO}")
            I("v_bfe_u32 v10, v1, 4, 1")
            I(f"v_lshl_add_u32 v{VXO}, v10, 14, v{VXO}")
            I("v_and_b32 v10, 31, v1")
            I(f"s_lshl_b32 s{A0}, s{OT}, 5")
            I(f"v_add_u32 v{VTK}, s{A0}, v10")
            I("v_lshrrev_b32 v10, 5, v1")
            I(f"s_lshl_b32 s{A0}, s{KG}, 5")
            I(f"v_lshl_add_u32 v14, v10, 3, s{A0}")
            vm.issue(f"global_load_dwordx2 {vr(WR,2)}, v14, {sp(WRP)}")
            vm.issue(f"global_load_dwordx2 {vr(WR+2,2)}, v14, {sp(WRP)} offset:16")
            I(f"v_lshl_add_u32 v14, v{VTK}, 10, v14")
            vm.issue(f"global_load_dwordx2 {vr(XG,2)}, v14, {sp(X0P)}")
            vm.issue(f"global_load_dwordx2 {vr(XG+2,2)}, v14, {sp(X0P)} offset:16")
        sched = {
            1: {(0,0): lambda: rload(3), (3,0): lambda: rload(4), (4,0): lambda: rwrite(2), (6,0): bar},
            2: {(0,0): lambda: rload(5), (3,0): lambda: rload(6), (4,0): lambda: rwrite(3), (5,0): lambda: rwrite(4), (6,0): bar},
            3: {(0,0): lambda: rload(7)},
            4: {(0,0): lambda: rwrite(5), (1,0): lambda: rwrite(6), (2,0): lambda: rwrite(7), (6,0): bar},
        }
        def touches():
            I(f"s_cmp_ge_u32 s{WAVE}, 5")
            I(f"s_cbranch_scc1 {lab('t_done')}")
            I(f"s_cmp_ge_u32 s{WAVE}, 2")
            I(f"s_cbranch_scc1 {lab('t_lin')}")
            I(f"s_mul_i32 s{A0}, s{QB}, 7")
            I(f"s_lshr_b32 s{A0}, s{A0}, 1")
            I(f"s_lshl_b32 s{A0}, s{A0}, 7")
            I(f"s_mul_i32 s{A0+1}, s{HEAD}, {16*3584}")
            I(f"s_add_u32 s{A0}, s{A0}, s{A0+1}")
            I("v_lshrrev_b32 v14, 2, v1")
            I("v_mul_u32_u24 v14, 3584, v14")
            I("v_and_b32 v10, 3, v1")
            I("v_lshl_add_u32 v14, v10, 7, v14")
            I(f"v_add_u32 v14, s{A0}, v14")
            I(f"s_cmp_eq_u32 s{WAVE}, 0")
            I(f"s_cselect_b32 s{T0}, s{WGP}, s{WUP}")
            I(f"s_cselect_b32 s{T0+1}, s{WGP+1}, s{WUP+1}")
            I(f"s_branch {lab('t_go')}")
            k.L(lab("t_lin"))
            I(f"s_lshl_b32 s{A0}, s{CGP}, 13")
            I(f"s_lshl_b32 s{A0+1}, s{HEAD}, 14")
            I(f"s_and_b32 s{A0+2}, s{WAVE}, 1")
            I(f"s_lshl_b32 s{A0+2}, s{A0+2}, 13")
            I(f"s_add_u32 s{A0+1}, s{A0+1}, s{A0+2}")
            I(f"s_cmp_eq_u32 s{WAVE}, 2")
            I(f"s_cselect_b32 s{A0}, s{A0}, s{A0+1}")
            I(f"s_cselect_b32 s{T0}, s{WDP}, s{WOP}")
            I(f"s_cselect_b32 s{T0+1}, s{WDP+1}, s{WOP+1}")
            I(f"v_lshl_add_u32 v14, v1, 7, s{A0}")
            k.L(lab("t_go"))
            I(f"global_load_dword v9, v14, {sp(T0)}")
            k.L(lab("t_done"))
        NU = 5
        if B2:
            del sched[1][(4,0)]; del sched[1][(6,0)]
            for t_ in (11, 12, 13, 14, 18, 20, 21): PR.pop(t_, None)
            PR.update({15: 2, 19: 1, 21: 0})
        if L == 0:
            NU = 6
            def pretouch():
                if ENV("PT") == "1":
                    I(f"s_cmp_lg_u32 s{WAVE}, 6")
                    I(f"s_cbranch_scc1 {lab('pt_done')}")
                    I("v_mul_u32_u24 v14, 0x50000, v1")
                    I(f"global_load_dword v11, v14, {sp(WSP)}")
                    I("v_lshlrev_b32 v14, 15, v1")
                    I(f"global_load_dword v11, v14, {sp(OUTP)}")
                    k.L(lab("pt_done"))
                else:
                    I("v_mul_u32_u24 v14, 0xa000, v0")
                    I(f"global_load_dword v11, v14, {sp(WSP)}")
                    I("v_lshlrev_b32 v14, 12, v0")
                    I(f"global_load_dword v11, v14, {sp(OUTP)}")
            if ENV("PT"): sched[2][(7,0)] = pretouch
            if ENV("TL", "1") == "0":
                sched[2][(6,1)] = touches
                sched[3][(3,0)] = wo_addr
                for i in range(4): sched[3][(4 + i, 0)] = (lambda i=i: wo_load(i))
                for i, u in enumerate((3, 4, 5, 7)): sched[4][(u, 0)] = (lambda i=i: wo_load(4 + i))
                sched[5] = {(0,0): lambda: ffn_gu(0), (2,0): misc_loads, (4,0): lambda: ffn_gu(1), (6,0): ffn_dn}
            else:
                sched[3][(0,1)] = touches
                sched[4][(3,0)] = wo_addr
                for i, u in enumerate((4, 5, 7)): sched[4][(u, 0)] = (lambda i=i: wo_load(i))
                sched[5] = {(i, 0): (lambda i=i: wo_load(3 + i)) for i in range(5)}
                sched[5][(5,0)] = lambda: ffn_gu(0)
                sched[5][(6,0)] = lambda: ffn_gu(1)
                sched[5][(7,0)] = ffn_dn
                sched[5][(7,1)] = misc_loads
            PR[40] = 3
        else:
            sched[2][(7,0)] = poll_issue
        for c in range(1, NU):
            for u in range(8):
                ex = {sl: f for (uu, sl), f in sched[c].items() if uu == u}
                if 8*c + u in PR: ex["p"] = PR[8*c + u]
                tile(u, ex)
            bump()
            k.stamp(name=f"x{n}_ch{c}")
        I(f"s_mov_b32 s{CTR}, {NU}")
        k.lines.append(".p2align 6")
        k.L(lab(n + "_loop"))
        if ENV("PEND", "1") == "0":
            I(f"s_cmp_lt_u32 s{CTR}, 5"); I(f"s_cbranch_scc1 {lab(n+'_pd')}")
            I("s_setprio 2")
            I(f"s_cmp_lt_u32 s{CTR}, 6"); I(f"s_cbranch_scc1 {lab(n+'_pd')}")
            I("s_setprio 1")
            I(f"s_cmp_lt_u32 s{CTR}, 7"); I(f"s_cbranch_scc1 {lab(n+'_pd')}")
            I("s_setprio 0")
            k.L(lab(n + "_pd"))
            for u in range(8): tile(u)
        else:
            I(f"s_cmp_lt_u32 s{CTR}, 6"); I(f"s_cbranch_scc1 {lab(n+'_pd')}")
            I("s_setprio 2")
            I(f"s_cmp_lt_u32 s{CTR}, 7"); I(f"s_cbranch_scc1 {lab(n+'_pd')}")
            I("s_setprio 1")
            k.L(lab(n + "_pd"))
            for u in range(8):
                if u == 5:
                    I(f"s_cmp_lt_u32 s{CTR}, 7"); I(f"s_cbranch_scc1 {lab(n+'_pe')}")
                    I("s_setprio 0")
                    k.L(lab(n + "_pe"))
                tile(u)
        bump()
        I(f"s_add_u32 s{CTR}, s{CTR}, 1")
        I(f"s_cmp_lt_u32 s{CTR}, 8")
        I(f"s_cbranch_scc1 {lab(n+'_loop')}")
        mfma(O, vr(VA[1]+4,4), vr(P1,4), O)
        I("s_waitcnt lgkmcnt(0)")
        k.stamp(name=n + "_attn")
        k.nop(12)
        I(f"s_cmp_lg_u32 s{PASS}, 0")
        I(f"s_cbranch_scc1 {lab(n+'_fin')}")
        I(f"v_cmp_nge_f32 vcc, s{THR}, v{O+8}")
        k.nop(2)
        I(f"s_cbranch_vccz {lab(n+'_fin')}")
        I(f"s_mov_b32 s{PASS}, 1")
        I(f"v_mov_b32 v{AK}, v3")
        I("v_mov_b32 v2, 0xff800000")
        I(f"s_mov_b32 s{CTR}, 0")
        k.L(lab(n + "_maxloop"))
        I(f"ds_read_b128 {vr(KB,4)}, v{AK}")
        I("s_waitcnt lgkmcnt(0)")
        mfma(S0, vr(KB,4), vr(Q,4), None)
        I(f"v_add_u32 v{AK}, 0x400, v{AK}")
        k.nop(12)
        max16(2, S0, False)
        I(f"s_add_u32 s{CTR}, s{CTR}, 1")
        I(f"s_cmp_lt_u32 s{CTR}, 64")
        I(f"s_cbranch_scc1 {lab(n+'_maxloop')}")
        setup()
        I(f"s_mov_b32 s{CTR}, 0")
        I(f"s_branch {lab(n+'_loop')}")
        k.L(lab(n + "_fin"))
        I(f"v_rcp_f32 v2, v{O+8}")
        I("s_nop 0")
        for r in range(8): I(f"v_mul_f32 v{O+r}, v{O+r}, v2")
        for r in range(4): I(f"v_cvt_pk_bf16_f32 v{P0+r}, v{O+2*r}, v{O+2*r+1}")
        I(f"global_store_dwordx4 v4, {vr(P0,4)}, {sp(OB_)} sc1")

    def oproj(L):
        n = f"l{L}"
        OBf, AC, X, Y = 64, 32, 96, 16
        lane_terms()
        I(f"s_lshl_b32 s{A0}, s{KQ}, 19")
        I(f"s_lshl_b32 s{A0+1}, s{OT}, 10")
        I(f"s_add_u32 s{A0}, s{A0}, s{A0+1}")
        I(f"v_add_u32 v10, s{A0}, v3")
        I(f"s_lshl_b32 s{A0}, s{WAVE}, 13")
        I(f"s_add_u32 s{A0}, s{A0}, 0x10000")
        I(f"v_add_u32 v12, s{A0}, v3")
        I(f"s_lshl_b32 s{A0}, s{TT}, 12")
        I(f"s_lshl_b32 s{A0+1}, s{HEAD}, 7")
        I(f"s_add_u32 s{A0}, s{A0}, s{A0+1}")
        I(f"s_add_u32 s{A0}, s{A0}, {hex(FLO[L])}")
        I(f"v_mov_b32 v13, s{A0}")
        I(f"v_mov_b32 v14, s{TAG}")
        I(f"s_lshl_b32 s{A0}, s{OT}, 12")
        I(f"s_lshl_b32 s{A0+1}, s{KQ}, 10")
        I(f"s_add_u32 s{A0}, s{A0}, s{A0+1}")
        I(f"s_add_u32 s{A0}, s{A0}, {hex(FLO[L])}")
        I(f"v_lshl_add_u32 v31, v1, 7, s{A0}")
        FLW = ENV("FLW", "0") == "1"
        if not FLW:
            I(f"s_lshl_b32 s{A0}, s{QB}, 15")
            I(f"s_add_u32 s{A0}, s{A0}, {hex(FLO[L])}")
            I(f"v_lshl_add_u32 v31, v6, 7, s{A0}")
        vm.drain()
        if not FLW:
            I("s_barrier")
            I(f"s_cmp_lg_u32 s{WAVE}, 0")
            I(f"s_cbranch_scc1 {lab(n+'_nof')}")
        I("s_mov_b64 exec, 1")
        I(f"global_store_dword v13, v14, {sp(WSP)} sc1")
        exec_all()
        if not FLW: k.L(lab(n + "_nof"))
        if L == 0 and FLW: I("s_barrier")
        k.stamp(name=n + "_odrain")
        if L == 0:
            for i in range(8): I(f"ds_write_b128 v12, {ar(AWO+4*i,4)} offset:{1024*i}")
            I(f"global_load_dwordx4 v[16:19], v3, {sp(WRP)}")
            I(f"s_lshl_b32 s{A0}, s{WAVE}, 11")
            I(f"v_lshl_add_u32 v13, v1, 5, s{A0}")
            I(f"ds_write_b128 v13, {ar(AGU,4)}")
            I(f"ds_write_b128 v13, {ar(AGU+4,4)} offset:16")
            I(f"v_add_u32 v13, s{W1K}, v3")
            I(f"ds_write_b128 v13, {ar(ADN,4)} offset:16384")
            I("v_bfe_u32 v13, v1, 2, 2")
            I("v_and_b32 v14, 3, v1")
            I("v_lshl_add_u32 v12, v7, 2, v13")
            I("v_lshlrev_b32 v12, 7, v12")
            I("v_lshl_add_u32 v12, v14, 3, v12")
            I("v_bfe_u32 v15, v1, 4, 1")
            I("v_lshl_add_u32 v12, v15, 5, v12")
            I(f"s_lshl_b32 s{A0+1}, s{KQ}, 5")
            I(f"v_xor_b32 v12, s{A0+1}, v12")
            I(f"s_lshl_b32 s{A0+1}, s{KQ}, 14")
            I(f"s_add_u32 s{A0+1}, s{A0+1}, 0x10000")
            I(f"v_add_u32 v12, s{A0+1}, v12")
            I("v_xor_b32 v15, 64, v12")
            bar()
            for i in range(8):
                for b in range(2):
                    I(f"ds_read_b64_tr_b16 {ar(AWO+8*i+4*b,2)}, v{15 if b else 12} offset:{2048*i}")
                    I(f"ds_read_b64_tr_b16 {ar(AWO+8*i+4*b+2,2)}, v{15 if b else 12} offset:{2048*i+1024}")
                if i % 2 == 1: I("s_waitcnt lgkmcnt(0)")
            I("v_lshrrev_b32 v15, 4, v1")
            I("v_lshl_add_u32 v13, v15, 3, v13")
            I("v_lshlrev_b32 v13, 5, v13")
            I("v_lshl_add_u32 v13, v14, 3, v13")
            I(f"v_add_u32 v13, s{A0}, v13")
            for i in range(2):
                I(f"ds_read_b64_tr_b16 {ar(AGU+4*i,2)}, v13 offset:{1024*i}")
                I(f"ds_read_b64_tr_b16 {ar(AGU+4*i+2,2)}, v13 offset:{1024*i+128}")
            I("v_lshlrev_b32 v13, 1, v0")
            for f in range(8): I(f"ds_read_u16 a{ADN+f}, v13 offset:{16384+1024*f}")
            I("v_mov_b32 v20, 0")
            I("s_waitcnt vmcnt(0)")
            for r in range(4): I(f"v_dot2_f32_bf16 v20, v{16+r}, s{ONES}, v20")
            k.nop(1)
            allreduce("v_add_f32", 20, 21)
            I("s_nop 0")
            I(f"v_readfirstlane_b32 s{WSUM}, v20")
        NF = 0
        I(f"s_lshl_b32 s{A0}, s{OA}, 15")
        for g in range(4):
            I(f"s_xor_b32 s{A0+1}, s{KQ}, {g}")
            I(f"s_lshl_b32 s{A0+1}, s{A0+1}, 13")
            I(f"s_add_u32 s{A0+1}, s{A0+1}, s{A0}")
            I(f"v_add_u32 v{27+g}, s{A0+1}, v3")
        for i in range(4): unpack(X + 2*i, X + 2*i + 1, XG + i)
        if L == 1:
            for r in range(8): I(f"v_sub_f32 v{Y+r}, v{X+r}, v{RESM}")
            for r in range(8): I(f"v_mul_f32 v{Y+r}, v{Y+r}, v{RESR}")
            for i in range(4): I(f"v_cvt_pk_bf16_f32 v{XG+i}, v{Y+2*i}, v{Y+2*i+1}")
            for i in range(4): unpack(Y + 2*i, Y + 2*i + 1, XG + i)
            for r in range(8): I(f"v_add_f32 v{X+r}, v{X+r}, v{Y+r}")
            for i in range(4): I(f"v_cvt_pk_bf16_f32 v{XG+i}, v{X+2*i}, v{X+2*i+1}")
            for i in range(4): unpack(X + 2*i, X + 2*i + 1, XG + i)
        if L == 1:
            I("v_lshlrev_b32 v13, 2, v6")
            I(f"v_add_u32 v13, {LKY}, v13")
            I("ds_read_b32 v16, v13")
            I("s_waitcnt lgkmcnt(0)")
            for rnd in range(3):
                I("v_mov_b32 v17, v16")
                dppred("v_max_u32", 17, Q4 + ("row_half_mirror", "row_mirror"))
                swapop("v_permlane16_swap_b32", "v_max_u32", 17, 18)
                I("v_cmp_ne_u32 vcc, v17, v16")
                if rnd: I(f"v_readfirstlane_b32 s{(CA, CB_)[rnd-1]}, v17")
                else: I("s_nop 0")
                I("s_nop 0")
                I("v_cndmask_b32 v16, 0, v16, vcc")
            for c_ in (CA, CB_):
                I(f"s_and_b32 s{c_}, s{c_}, 0x7ff")
                I(f"s_sub_u32 s{c_}, 2047, s{c_}")
        if FLW:
            I("s_mov_b64 exec, 0xff")
        else:
            I(f"s_cmp_lg_u32 s{WAVE}, 0")
            I(f"s_cbranch_scc1 {lab(n+'_owait')}")
            exec_lo(-1)
        poll(n + "_po", [f"global_load_dword v14, v31, {sp(WSP)} sc1"], [14])
        exec_all()
        if not FLW:
            k.L(lab(n + "_owait"))
            bar()
        k.stamp(name=n + "_opoll")
        for i in range(8):
            I(f"global_load_dwordx4 {vr(OBf+4*i,4)}, v10, {sp(OB_)} sc1")
            if i < 7: I("v_add_u32 v10, 0x10000, v10")
        for i in range(8):
            I(f"s_waitcnt vmcnt({7-i+NF})")
            for b in range(2): mfma(AC + 16*b, ar(AWO+8*i+4*b,4), vr(OBf+4*i,4), AC + 16*b if i else None)
        if FLW: bar()
        k.stamp(name=n + "_omm")
        I(f"s_lshl_b32 s{A0}, s{OA}, 12")
        I(f"s_lshl_b32 s{A0+1}, s{KQ}, 10")
        I(f"s_add_u32 s{A0}, s{A0}, s{A0+1}")
        I(f"s_add_u32 s{A0}, s{A0}, {LSA}")
        I(f"v_add_u32 v13, s{A0}, v3")
        sadd64(XB_, WSP, XF[L])
        k.nop(5)
        for g in range(1, 4):
            for hf in range(2): I(f"ds_write_b128 v{27+g}, {vr(AC+8*g+4*hf,4)} offset:{2048*g+1024*hf}")
        for r in range(8): I(f"v_add_f32 v{AC+r}, v{AC+r}, v{X+r}")
        bar()
        k.stamp(name="x" + n + "_red")
        for g in range(1, 4):
            for hf in range(2): I(f"ds_read_b128 {vr(AC+8*g+4*hf,4)}, v27 offset:{2048*g+1024*hf}")
        I("s_waitcnt lgkmcnt(4)")
        for r in range(8): I(f"v_add_f32 v{AC+r}, v{AC+r}, v{AC+8+r}")
        I("s_waitcnt lgkmcnt(0)")
        for r in range(8): I(f"v_add_f32 v{AC+16+r}, v{AC+16+r}, v{AC+24+r}")
        for r in range(8): I(f"v_add_f32 v{AC+r}, v{AC+r}, v{AC+16+r}")
        for i in range(4): I(f"v_cvt_pk_bf16_f32 v{24+i}, v{AC+2*i}, v{AC+2*i+1}")
        for i in range(4): I(f"v_mov_b32 v{XG+i}, v{24+i}")
        I("v_permlane32_swap_b32 v24, v26")
        I("v_permlane32_swap_b32 v25, v27")
        I(f"global_store_dwordx4 v{VXO}, v[24:27], {sp(XB_)} sc1")
        for i in range(4):
            I(f"v_dot2_f32_bf16 v16, v{XG+i}, s{ONES}, {'v16' if i else 0}")
            I(f"v_dot2_f32_bf16 v17, v{XG+i}, v{XG+i}, {'v17' if i else 0}")
            I(f"v_dot2_f32_bf16 v18, v{XG+i}, v{WR+i}, {'v18' if i else 0}")
        k.nop(3)
        I("ds_write_b96 v13, v[16:18]")
        k.stamp(name="x" + n + "_epi")
        I("s_waitcnt vmcnt(0) lgkmcnt(0)")
        k.stamp(name="x" + n + "_xdrain")
        I("s_waitcnt vmcnt(0) lgkmcnt(0)")
        I("s_barrier")
        I(f"s_cmp_lg_u32 s{WAVE}, 0")
        I(f"s_cbranch_scc1 {lab(n+'_nost')}")
        I("v_lshlrev_b32 v13, 4, v6")
        I("v_lshl_add_u32 v13, v7, 12, v13")
        I(f"v_add_u32 v13, {LSA}, v13")
        for j in range(8): I(f"ds_read_b96 {vr(32+4*j,3)}, v13 offset:{512*j}")
        I(f"s_lshl_b32 s{A0}, s{TB}, 3")
        I(f"s_add_u32 s{A0}, s{A0}, s{CG}")
        I(f"s_lshl_b32 s{A0}, s{A0}, 10")
        I(f"s_add_u32 s{A0}, s{A0}, {hex(ST[L])}")
        I(f"v_add_u32 v13, s{A0}, v3")
        I(f"v_mov_b32 v35, s{TAG}")
        I("s_waitcnt lgkmcnt(0)")
        for j in range(1, 8):
            for c in range(3): I(f"v_add_f32 v{32+c}, v{32+c}, v{32+4*j+c}")
        I(f"global_store_dwordx4 v13, v[32:35], {sp(WSP)} sc1")
        k.L(lab(n + "_nost"))
        k.stamp(name=n + "_stpub")

    def hop_a(L, after_poll=None, before_poll=None, after_bar=None):
        n = f"l{L}"
        I(f"s_lshl_b32 s{A0}, s{TB}, 13")
        I(f"s_add_u32 s{A0}, s{A0}, {hex(ST[L])}")
        I(f"v_lshl_add_u32 v12, v0, 4, s{A0}")
        loads = [f"global_load_dwordx4 v[32:35], v12, {sp(WSP)} sc1"]; tags = [35]
        if ENV("HA2", "1") == "1":
            I(f"s_cmp_lg_u32 s{WAVE}, 0")
            I(f"s_cbranch_scc1 {lab(n+'_a1')}")
            if L == 0:
                I(f"s_lshl_b32 s{A0}, s{QB}, 15")
                I(f"s_add_u32 s{A0}, s{A0}, {hex(ST[L])}")
            I(f"s_add_u32 s{A0}, s{A0}, 1020")
            I(f"v_lshl_add_u32 v13, v1, 10, s{A0}")
            exec_lo(-1 if L == 0 else "0xff")
            poll(n + "_p1", [f"global_load_dword v36, v13, {sp(WSP)} sc1"], [36])
            exec_all()
            k.L(lab(n + "_a1"))
            I("s_barrier")
        else:
            if L == 0:
                I(f"s_lshr_b32 s{A0}, s{TT}, 1")
                I(f"s_lshl_b32 s{A0}, s{A0}, 13")
                I(f"s_add_u32 s{A0}, s{A0}, {hex(ST[L] + 12)}")
                I("v_and_b32 v13, 7, v1")
                I(f"v_lshl_add_u32 v13, v13, 10, s{A0}")
                loads.append(f"global_load_dword v36, v13, {sp(WSP)} sc1"); tags.append(36)
        if before_poll: before_poll()
        poll(n + "_pa", loads, tags)
        I("v_lshlrev_b32 v13, 4, v0")
        I("ds_write_b96 v13, v[32:34]")
        if after_poll: after_poll()
        bar()
        k.stamp(name=n + "_hopa")
        if after_bar: after_bar()
        for c in range(8): I(f"ds_read_b96 {vr(16+4*c,3)}, v3 offset:{1024*c}")
        I("s_waitcnt lgkmcnt(0)")
        for a_, b_ in ((0,1),(2,3),(4,5),(6,7),(0,2),(4,6),(0,4)):
            for c in range(3): I(f"v_add_f32 v{16+4*a_+c}, v{16+4*a_+c}, v{16+4*b_+c}")
        rowstats(16, 17, RESM, 20, RESR)
        I(f"s_or_b32 s{A0}, s{CG}, s{WAVE}")
        I(f"s_cmp_lg_u32 s{A0}, 0")
        I(f"s_cbranch_scc1 {lab(n+'_nokey')}")
        I(f"v_fma_f32 v18, -v{RESM}, s{WSUM}, v18")
        I(f"v_mul_f32 v18, v18, v{RESR}")
        bf16r(18)
        I("v_ashrrev_i32 v19, 31, v18")
        I("v_or_b32 v19, 0x80000000, v19")
        I("v_xor_b32 v19, v19, v18")
        I("v_and_b32 v19, 0xffff0000, v19")
        I(f"s_lshl_b32 s{A0}, s{TB}, 6")
        I(f"s_sub_u32 s{A0}, 2047, s{A0}")
        I(f"v_sub_u32 v20, s{A0}, v1")
        I("v_or_b32 v20, v19, v20")
        I("v_mov_b32 v24, v20")
        allreduce("v_max_u32", 24, 25)
        I("v_cmp_eq_u32 vcc, v24, v20")
        I(f"s_lshl_b32 s{A0}, s{TB}, 7")
        I(f"s_add_u32 s{A0}, s{A0}, {hex(KEY[L])}")
        I(f"s_ff1_i32_b64 s{A0+1}, vcc")
        I(f"v_lshl_add_u32 v13, v1, 12, s{A0}")
        I(f"v_mov_b32 v27, s{TAG}")
        I(f"v_readlane_b32 s{A0+2}, v{RESM}, s{A0+1}")
        I(f"v_readlane_b32 s{A0+3}, v{RESR}, s{A0+1}")
        I("s_mov_b64 exec, 0xff")
        I("s_nop 0")
        I(f"v_mov_b32 v25, s{A0+2}")
        I(f"v_mov_b32 v26, s{A0+3}")
        I(f"global_store_dwordx4 v13, v[24:27], {sp(WSP)} sc1")
        exec_all()
        k.L(lab(n + "_nokey"))
        I(f"v_mov_b32 v16, v{RESM}")
        I(f"v_mov_b32 v17, v{RESR}")
        I(f"s_cmp_eq_u32 s{OA}, 1")
        I("s_cselect_b64 vcc, -1, 0")
        I(f"v_permlane32_swap_b32 v{RESM}, v16")
        I(f"v_permlane32_swap_b32 v{RESR}, v17")
        I(f"v_cndmask_b32 v{RESM}, v{RESM}, v16, vcc")
        I(f"v_cndmask_b32 v{RESR}, v{RESR}, v17, vcc")
        k.stamp(name="x" + n + "_key")

    FT = 76
    SR = 96
    stat_loads = [f"global_load_dwordx4 {vr(SR+4*i,4)}, v11, {sp(WSP)} offset:{1024*i} sc1" for i in range(4)]
    stat_tags = [SR + 4*i + 3 for i in range(4)]
    def own_stats():
        for i in range(1, 4):
            for c in range(2): I(f"v_add_f32 v{SR+c}, v{SR+c}, v{SR+4*i+c}")
        halfsum("v_add_f32", SR, SR + 2)
        halfsum("v_add_f32", SR + 1, SR + 2)
        rowstats(SR, SR + 1, MT[0], SR + 2, SR + 3)
        I(f"v_mov_b32 v{AT[0]}, s{CEPS}")
        I(f"v_add_f32 v{SR+3}, 1.0, v{SR+3}")
        I(f"v_mul_f32 v{SR+2}, v{SR+2}, v{SR+3}")
        I(f"v_fmac_f32 v{AT[0]}, v{SR+2}, v{SR+3}")
        I(f"v_rsq_f32 v{AT[0]}, v{AT[0]}")
        I(f"v_mov_b32 v{MT[1]}, v{MT[0]}")
        I(f"v_mul_f32 v{AT[0]}, v{AT[0]}, v{SR+3}")
        I(f"v_mov_b32 v{AT[1]}, v{AT[0]}")
        I(f"v_permlane16_swap_b32 v{MT[0]}, v{MT[1]}")
        I("s_nop 0")
        I(f"v_permlane16_swap_b32 v{AT[0]}, v{AT[1]}")
    def key_load(L):
        return f"global_load_dwordx4 {vr(FT,4)}, v{FT+4}, {sp(WSP)} sc1"
    def hop_b_issue(L, sfx=""):
        I(f"s_lshl_b32 s{A0}, s{QB}, 12")
        I(f"s_add_u32 s{A0}, s{A0}, {hex(KEY[L])}")
        I(f"v_lshl_add_u32 v{FT+4}, v6, 7, s{A0}")
        I(f"s_cmp_lg_u32 s{WAVE}, 0")
        I(f"s_cbranch_scc1 {lab(f'l{L}_nki{sfx}')}")
        I(key_load(L))
        k.L(lab(f"l{L}_nki{sfx}"))
    def hop_b(L, role=""):
        n = f"l{L}{role}"
        I(f"v_mov_b32 v{FT+6}, {LFF}")
        I(f"s_cmp_lg_u32 s{WAVE}, 0")
        I(f"s_cbranch_scc1 {lab(n+'_kw')}")
        keepq = list(vm.q)
        poll(n + "_pb", [key_load(L)], [FT + 3], first_issued=True)
        vm.q = keepq
        if L == 0:
            I(f"v_lshlrev_b32 v{FT+5}, 2, v6")
            I(f"v_add_u32 v{FT+5}, {LKY}, v{FT+5}")
            I(f"ds_write_b32 v{FT+5}, v{FT}")
        I(f"v_mov_b32 v{FT+5}, v{FT}")
        dppred("v_max_u32", FT + 5, Q4 + ("row_half_mirror", "row_mirror"))
        swapop("v_permlane16_swap_b32", "v_max_u32", FT + 5, FT + 7)
        I(f"v_cmp_eq_u32 vcc, v{FT+5}, v{FT}")
        I("s_mov_b64 exec, vcc")
        I(f"ds_write_b96 v{FT+6}, {vr(FT,3)}")
        exec_all()
        k.L(lab(n + "_kw"))
        bar()
        I(f"ds_read_b96 {vr(FT,3)}, v{FT+6}")
        I("s_waitcnt lgkmcnt(0)")
        I(f"v_readfirstlane_b32 s{IDX}, v{FT}")
        I(f"v_readfirstlane_b32 s{RM}, v{FT+1}")
        I(f"v_readfirstlane_b32 s{RR}, v{FT+2}")
        I(f"s_and_b32 s{RS_}, s{IDX}, 0xffff0000")
        I(f"s_and_b32 s{IDX}, s{IDX}, 0x7ff")
        I(f"s_sub_u32 s{IDX}, 2047, s{IDX}")
        I(f"s_ashr_i32 s{A0}, s{RS_}, 31")
        I(f"s_not_b32 s{A0}, s{A0}")
        I(f"s_or_b32 s{A0}, s{A0}, 0x80000000")
        I(f"s_xor_b32 s{RS_}, s{RS_}, s{A0}")
        I(f"s_and_b32 s{RS_}, s{RS_}, 0xffff0000")
        if L == 1:
            I(f"s_cmp_eq_u32 s{IDX}, s{CA}")
            I(f"s_cselect_b32 s{YSEL}, 1, 0")
            I(f"s_cmp_eq_u32 s{IDX}, s{CB_}")
            I(f"s_cselect_b32 s{YSEL}, 2, s{YSEL}")
            I(f"s_cmp_lg_u32 s{YSEL}, 0")
            I(f"s_cbranch_scc1 {lab('hit')}")
        I(f"s_lshr_b32 s{A0}, s{IDX}, 4")
        I(f"s_lshl_b32 s{A0}, s{A0}, 14")
        I(f"s_and_b32 s{A0+1}, s{IDX}, 15")
        I(f"s_lshl_b32 s{A0+1}, s{A0+1}, 4")
        I(f"s_add_u32 s{A0}, s{A0}, s{A0+1}")
        I("s_cmp_ge_u32 s2, 224")
        I(f"s_cbranch_scc1 {lab(n+'_frow')}")
        I(f"s_lshl_b32 s{A0+1}, s{WAVE}, 11")
        I(f"s_add_u32 s{A0}, s{A0}, s{A0+1}")
        I(f"v_and_b32 v{FT+4}, 48, v1")
        I(f"v_lshl_add_u32 v{FT+4}, v{FT+4}, 4, s{A0}")
        I(f"v_add_u32 v{FT+5}, 0x400, v{FT+4}")
        I(f"s_branch {lab(n+'_rowld')}")
        k.L(lab(n + "_frow"))
        I(f"s_sub_u32 s{A0+1}, s2, 224")
        I(f"s_lshl_b32 s{A0+1}, s{A0+1}, 9")
        I(f"s_add_u32 s{A0}, s{A0}, s{A0+1}")
        I(f"v_bfe_u32 v{FT+4}, v1, 3, 1")
        I(f"v_lshl_add_u32 v{FT+4}, v{FT+4}, 8, s{A0}")
        I(f"v_mov_b32 v{FT+5}, v{FT+4}")
        k.L(lab(n + "_rowld"))
        vm.issue(f"global_load_dwordx4 {vr(FT+8,4)}, v{FT+4}, {sp(XB_)} sc1", "row")
        vm.issue(f"global_load_dwordx4 {vr(FT+12,4)}, v{FT+5}, {sp(XB_)} sc1", "row")
    def slice1(L):
        n = f"l{L}"
        XR = FT + 8
        I(f"v_mov_b32 v{FT+2}, s{RM}")
        I(f"v_mul_f32 v{FT+2}, s{RR}, v{FT+2}")
        I(f"v_and_b32 v{FT+4}, 48, v1")
        I(f"s_lshl_b32 s{A0}, s{WAVE}, 6")
        I(f"s_add_u32 s{A0}, s{A0}, {LFF + 256}")
        I(f"v_add_u32 v{FT+4}, s{A0}, v{FT+4}")
        yp_addr(FT + 5, L)
        I(f"v_and_b32 v{FT+6}, 15, v1")
        I(f"v_lshlrev_b32 v{FT+6}, 2, v{FT+6}")
        I(f"v_add_u32 v{FT+6}, {LFF + 256}, v{FT+6}")
        for f in range(8): I(f"v_accvgpr_read_b32 v{FT+20+f}, a{ADN+f}")
        for f in range(8): I(f"v_lshlrev_b32 v{FT+20+f}, 16, v{FT+20+f}")
        vm.wait("row")
        k.stamp(name="x" + n + "_row")
        I("s_cmp_ge_u32 s2, 224")
        I(f"s_cbranch_scc1 {lab(n+'_s1skip')}")
        for i in range(8):
            t0 = FT + 16 + 2*(i & 1)
            unpack(t0, t0 + 1, XR + i)
            I(f"v_fma_f32 v{t0}, v{t0}, s{RR}, -v{FT+2}")
            I(f"v_fma_f32 v{t0+1}, v{t0+1}, s{RR}, -v{FT+2}")
            I(f"v_cvt_pk_bf16_f32 v{XR+i}, v{t0}, v{t0+1}")
        k.nop(2)
        I(f"v_mfma_f32_16x16x32_bf16 {vr(FT+16,4)}, {ar(AGU,4)}, {vr(XR,4)}, 0")
        I(f"v_mfma_f32_16x16x32_bf16 {vr(FT+16,4)}, {ar(AGU+4,4)}, {vr(XR+4,4)}, {vr(FT+16,4)}")
        I("s_mov_b32 exec_lo, 0x00010001")
        I("s_mov_b32 exec_hi, 0x00010001")
        k.nop(6)
        I(f"ds_write_b128 v{FT+4}, {vr(FT+16,4)}")
        exec_all()
        bar()
        k.L(lab(n + "_s1skip"))
    def slice2(L):
        n = f"l{L}"
        I("s_cmp_ge_u32 s2, 224")
        I(f"s_cbranch_scc1 {lab(n+'_s2skip')}")
        for i in range(8): I(f"ds_read_b32 v{FT+8+i}, v{FT+6} offset:{64*i}")
        I("s_waitcnt lgkmcnt(0)")
        g = FT + 8
        for a_, b_ in ((0,1),(2,3),(4,5),(6,7),(0,2),(4,6),(0,4)): I(f"v_add_f32 v{g+a_}, v{g+a_}, v{g+b_}")
        bf16r(g)
        t = FT
        I(f"v_mul_f32 v{t}, {hex(f2u(-LOG2E))}, v{g}")
        I(f"v_exp_f32 v{t}, v{t}")
        I("s_nop 0")
        I(f"v_add_f32 v{t}, 1.0, v{t}")
        I(f"v_rcp_f32 v{t}, v{t}")
        I("s_nop 0")
        I(f"v_mul_f32 v{t}, v{t}, v{g}")
        bf16r(t)
        k.nop(2)
        I(f"v_mul_f32_dpp v{t}, v{g}, v{t} row_ror:8 row_mask:0xf bank_mask:0xf")
        bf16r(t)
        k.nop(1)
        for f in range(8): I(f"v_readlane_b32 s{A0+f}, v{t}, {f}")
        I(f"v_mul_f32 v{FT+2}, s{A0}, v{FT+20}")
        I(f"v_mul_f32 v{FT+3}, s{A0+1}, v{FT+21}")
        for f in range(2, 8): I(f"v_fmac_f32 v{FT+2+(f&1)}, s{A0+f}, v{FT+20+f}")
        I(f"v_add_f32 v{FT+2}, v{FT+2}, v{FT+3}")
        I(f"v_min_u32 v{FT+2}, 0xfffffffe, v{FT+2}")
        I(f"global_store_dword v{FT+5}, v{FT+2}, {sp(WSP)} sc1")
        k.L(lab(n + "_s2skip"))
    def x_elem(XR, t6):
        I(f"v_bfe_u32 v{t6}, v1, 1, 1")
        I(f"v_cmp_eq_u32 vcc, 1, v{t6}")
        I(f"v_bfe_u32 v{t6}, v1, 2, 1")
        I("s_nop 0")
        I(f"v_cndmask_b32 v{XR}, v{XR}, v{XR+1}, vcc")
        I(f"v_cndmask_b32 v{XR+2}, v{XR+2}, v{XR+3}, vcc")
        I(f"v_cmp_eq_u32 vcc, 1, v{t6}")
        I(f"v_and_b32 v{t6}, 1, v1")
        I("s_nop 0")
        I(f"v_cndmask_b32 v{XR}, v{XR}, v{XR+2}, vcc")
        I(f"v_cmp_eq_u32 vcc, 1, v{t6}")
        unpack(XR + 1, XR + 2, XR)
        I(f"v_cndmask_b32 v{XR}, v{XR+1}, v{XR+2}, vcc")
    def gather(name, bufs, B, ldsoff, light=True):
        I(f"s_sub_u32 s{A0}, s2, 224")
        I(f"s_mul_i32 s{A0+1}, s{A0}, {224*64}")
        I(f"s_add_u32 s{A0+1}, s{A0+1}, {hex(bufs[0]) if isinstance(bufs[0], int) else bufs[0]}")
        I(f"v_min_u32 v{B}, 447, v0")
        I(f"v_lshl_add_u32 v{B}, v{B}, 4, s{A0+1}")
        I(f"v_add_u32 v{B+1}, {448*16}, v{B}")
        for j in range(1, len(bufs)):
            I(f"v_add_u32 v{B+2*j}, {hex(bufs[j] - bufs[0])}, v{B}")
            I(f"v_add_u32 v{B+2*j+1}, {hex(bufs[j] - bufs[0])}, v{B+1}")
        Y_ = B + 8; nb = len(bufs)
        keepq = list(vm.q)
        def ychk():
            I(f"v_max3_u32 v{B+4}, v{Y_}, v{Y_+1}, v{Y_+2}")
            for r in range(3, 8*nb - 1, 2): I(f"v_max3_u32 v{B+4}, v{B+4}, v{Y_+r}, v{Y_+r+1}")
            I(f"v_max_u32 v{B+4}, v{B+4}, v{Y_+8*nb-1}")
            I(f"v_cmp_eq_u32 vcc, -1, v{B+4}")
        if light:
            I("s_mov_b64 exec, 1")
            poll(name + "_pl", [f"global_load_dword v{Y_}, v{B+2*nb-1}, {sp(WSP)} sc1"], [0], check=lambda: I(f"v_cmp_eq_u32 vcc, -1, v{Y_}"))
            exec_all()
        poll(name + "_pf", [f"global_load_dwordx4 {vr(Y_+4*j,4)}, v{B+j}, {sp(WSP)} sc1" for j in range(2*nb)], [0], check=ychk)
        vm.q = keepq
        for j in range(nb):
            for c in range(4): I(f"v_add_f32 v{Y_+8*j+c}, v{Y_+8*j+c}, v{Y_+8*j+4+c}")
        for m in ("row_shr:4", "row_shr:8"):
            k.nop(1)
            for j in range(nb):
                for c in range(4): I(f"v_add_f32_dpp v{Y_+8*j+c}, v{Y_+8*j+c}, v{Y_+8*j+c} {m} row_mask:0xf bank_mask:0xf bound_ctrl:0")
        for sw in ("v_permlane16_swap_b32", "v_permlane32_swap_b32"):
            for j in range(nb):
                for c in range(4): I(f"v_mov_b32 v{Y_+8*j+4+c}, v{Y_+8*j+c}")
            k.nop(1)
            for j in range(nb):
                for c in range(4): I(f"{sw} v{Y_+8*j+c}, v{Y_+8*j+4+c}")
            for j in range(nb):
                for c in range(4): I(f"v_add_f32 v{Y_+8*j+c}, v{Y_+8*j+c}, v{Y_+8*j+4+c}")
        I(f"v_and_b32 v{B+4}, 3, v1")
        I(f"s_lshl_b32 s{A0+1}, s{WAVE}, 6")
        I(f"s_add_u32 s{A0+1}, s{A0+1}, {ldsoff}")
        I(f"v_lshl_add_u32 v{B+4}, v{B+4}, 4, s{A0+1}")
        exec_lo("0xf000")
        for j in range(nb): I(f"ds_write_b128 v{B+4}, {vr(Y_+8*j,4)} offset:{512*j}")
        exec_all()
    def finish_row(L, XR, rd):
        n = f"l{L}"
        Y_ = FT + 16
        for i in range(7): I(f"ds_read_b32 v{Y_+i}, v{rd} offset:{64*i}")
        t = FT
        I(f"v_mov_b32 v{t}, {hex(f2u(-LOG2E))}")
        I(f"v_mul_f32 v{t}, s{RS_}, v{t}")
        I(f"v_exp_f32 v{t}, v{t}")
        I(f"v_subrev_f32 v{t+1}, s{RM}, v{XR}")
        I(f"v_add_f32 v{t}, 1.0, v{t}")
        I(f"v_rcp_f32 v{t}, v{t}")
        I(f"v_mul_f32 v{t+1}, s{RR}, v{t+1}")
        bf16r(t); bf16r(t + 1)
        I("s_waitcnt lgkmcnt(0)")
        for a_, b_ in ((0,1),(2,3),(4,5),(0,2),(4,6),(0,4)): I(f"v_add_f32 v{Y_+a_}, v{Y_+a_}, v{Y_+b_}")
        bf16r(Y_)
        I(f"v_mul_f32 v{Y_}, v{Y_}, v{t}")
        bf16r(Y_)
        I(f"v_add_f32 v{Y_}, v{Y_}, v{t+1}")
        bf16r(Y_)
        I(f"v_add_f32 v{Y_}, v{Y_}, v{XR}")
        I(f"v_cvt_pk_bf16_f32 v{Y_}, v{Y_}, v{Y_}")
        I(f"s_sub_u32 s{A0}, s2, 224")
        if L == 1:
            I(f"s_lshl_b32 s{A0+1}, s{IDX}, 10")
            I(f"s_lshl_b32 s{A0}, s{A0}, 5")
            I(f"s_add_u32 s{A0}, s{A0}, s{A0+1}")
            I(f"v_lshl_add_u32 v{FT+4}, v1, 1, s{A0}")
            exec_lo("0xffff")
            I(f"global_store_short v{FT+4}, v{Y_}, {sp(OUTP)}")
        else:
            I(f"v_and_b32 v{Y_}, 0xffff, v{Y_}")
            k.nop(2)
            for j, qp in ((1, 1), (2, 2), (3, 3)):
                I(f"v_mov_b32_dpp v{Y_+j}, v{Y_} quad_perm:[{qp},{qp},{qp},{qp}] row_mask:0xf bank_mask:0xf")
            I(f"v_lshl_or_b32 v{Y_}, v{Y_+1}, 16, v{Y_}")
            I(f"v_lshl_or_b32 v{Y_+1}, v{Y_+3}, 16, v{Y_+2}")
            I(f"v_mov_b32 v{Y_+2}, s{TAG}")
            I(f"s_lshl_b32 s{A0}, s{A0}, 7")
            I(f"s_add_u32 s{A0}, s{A0}, {hex(X2R)}")
            I(f"v_lshl_add_u32 v{FT+4}, v1, 2, s{A0}")
            exec_lo("0x1111")
            I(f"global_store_dwordx4 v{FT+4}, {vr(Y_,4)}, {sp(WSP)} sc1")
        exec_all()
    def finalize(L):
        n = f"l{L}"
        I("s_cmp_lt_u32 s2, 224")
        I(f"s_cbranch_scc1 {lab(n+'_fskip')}")
        x_elem(FT + 8, FT + 6)
        gather(n, [YP[L]], FT + 12, LFF + 256, light=(L == 1 or ENV('F0L', '1') == '1'))
        I(f"v_and_b32 v{FT+5}, 15, v1")
        I(f"v_lshlrev_b32 v{FT+5}, 2, v{FT+5}")
        I(f"v_add_u32 v{FT+5}, {LFF + 256}, v{FT+5}")
        bar()
        I(f"s_cmp_lg_u32 s{WAVE}, 0")
        I(f"s_cbranch_scc1 {lab(n+'_fskip')}")
        finish_row(L, FT + 8, FT + 5)
        k.L(lab(n + "_fskip"))

    q_epilogue(0)
    k.stamp(name="l0_qepi")
    attention(0)
    oproj(0)
    I(f"s_mul_i32 s{A0}, s{WAVE}, 6144")
    I(f"s_add_u32 s{A0}, s{A0}, {LWQ}")
    I(f"v_add_u32 v12, s{A0}, v3")
    for i in range(6): I(f"ds_write_b128 v12, {ar(AWS+4*i,4)} offset:{1024*i}")
    I(f"s_lshl_b32 s{A0}, s{TT}, 15")
    I(f"v_add_u32 v8, s{A0}, v3")
    I("v_add_u32 v9, 0x4000, v8")
    I(f"s_lshr_b32 s{A0}, s{TT}, 1")
    I(f"s_lshl_b32 s{A0}, s{A0}, 13")
    I(f"s_and_b32 s{A0+1}, s{TT}, 1")
    I(f"s_lshl_b32 s{A0+1}, s{A0+1}, 9")
    I(f"s_add_u32 s{A0}, s{A0}, s{A0+1}")
    I(f"s_add_u32 s{A0}, s{A0}, {hex(ST[0])}")
    I(f"v_lshl_add_u32 v11, v6, 4, s{A0}")
    I("v_lshl_add_u32 v11, v7, 12, v11")
    RING = 6
    LOOK = int(ENV("LOOK", "4"))
    ROT1 = 67 if not PROFILE else 101
    I(f"s_lshr_b32 s{ROT1}, s{HEAD}, 1")
    def xload(ks):
        I(f"s_add_u32 s{T0}, s{ROT1}, {ks}")
        I(f"s_and_b32 s{T0}, s{T0}, 15")
        I(f"s_lshl_b32 s{T0}, s{T0}, 10")
        I(f"s_add_u32 s{T0}, s{XB_}, s{T0}")
        I(f"s_addc_u32 s{T0+1}, s{XB_+1}, 0")
        for t in range(2):
            vm.issue(f"global_load_dwordx4 {ar(64+8*(ks % RING)+4*t,4)}, v{8+t}, {sp(T0)} sc1", f"x{ks}")
    def wbase1(ks):
        I(f"s_add_u32 s{T0}, s{ROT1}, {ks}")
        I(f"s_and_b32 s{T0}, s{T0}, 15")
        I(f"s_lshl_b32 s{T0}, s{T0}, 10")
        I(f"v_add_u32 v12, s{T0}, v10")
    def first_x():
        for ks in range(LOOK): xload(ks)
    hop_a(0)
    w_addr()
    def bg_loads():
        first_x()
        for l in stat_loads: vm.issue(l, "st")
    MID = int(ENV("MID", "6"))
    RES = ENV("RES", "c")
    for ks in range(min(MID, RING)): xload(ks)
    F0, FX = 76, 64
    pxl = [f"global_load_dwordx3 {vr(F0+4*i,3)}, v2, {sp(WSP)} offset:{256*(i>>1)+16*(i&1)} sc1" for i in range(4)]
    def px_issue():
        I(f"s_lshl_b32 s{A0}, s{WAVE}, 9")
        I(f"s_add_u32 s{A0}, s{A0}, {hex(X2R)}")
        I(f"v_lshl_add_u32 v2, v7, 7, s{A0}")
        I("v_bfe_u32 v4, v1, 4, 1")
        I("v_lshl_add_u32 v2, v4, 5, v2")
        for l in pxl: I(l)
    wbase1(0)
    wreads(WB, 12, 0)
    wbase1(1)
    wreads(WB + 12, 12, 0)
    for ks in range(16):
        QP1 = eval(ENV("QP1", "{0: 3, 6: 2, 11: 1, 14: 0}"))
        if ks in QP1: I(f"s_setprio {QP1[ks]}")
        if ks == MID:
            def resume():
                for q_ in range(MID, min(16, MID + LOOK)): xload(q_)
                for l in stat_loads: vm.issue(l, "st")
            I("s_cmp_ge_u32 s2, 224")
            I(f"s_cbranch_scc1 {lab('fin_a')}")
            hop_b_issue(0)
            hop_b(0, role="s")
            slice1(0)
            slice2(0)
            resume()
            I(f"s_branch {lab('q1_go')}")
            k.L(lab("fin_a"))
            vm.q = []
            resume()
            k.L(lab("q1_go"))
            k.stamp(name="q1_ffn")
        if ks >= MID and ks + LOOK < 16: xload(ks + LOOK)
        if 1 <= ks < MID and ks - 1 + RING < MID: xload(ks - 1 + RING)
        if ks == int(ENV("STE", "12")):
            vm.wait("st")
            keep_ = list(vm.q)
            poll("ps", stat_loads, stat_tags, chk_label="ps_c")
            vm.q = keep_
            own_stats()
            bounce_params()
        if ks == int(ENV("PXE", "14")):
            I("s_cmp_ge_u32 s2, 224")
            I(f"s_cbranch_scc1 {lab('px_e')}")
            I(f"s_lshr_b32 s{A0}, s{IDX}, 8")
            I(f"s_cmp_lg_u32 s{A0}, s{QB}")
            I(f"s_cbranch_scc1 {lab('px_e')}")
            px_issue()
            k.L(lab("px_e"))
        if ks < 14:
            wbase1(ks + 2)
            wreads(WB + 12*((ks+2)%3), 12, 0)
        vm.wait(f"x{ks}", f" lgkmcnt({12 if ks < 14 else 6 if ks == 14 else 0})")
        qmfmas(WB + 12*(ks%3), ar(64+8*(ks % RING),4), ar(64+8*(ks % RING)+4,4), ks == 0)
    k.stamp(name="q1_loop")
    I("s_cmp_lt_u32 s2, 224")
    I(f"s_cbranch_scc1 {lab('fin_b')}")
    hop_b_issue(0, "f")
    hop_b(0, role="f")
    vm.drain()
    finalize(0)
    k.L(lab("fin_b"))
    k.stamp(name="q1_fin")
    I(f"s_lshr_b32 s{A0}, s{IDX}, 8")
    I(f"s_cmp_eq_u32 s{A0}, s{QB}")
    I(f"s_cbranch_scc1 {lab('dofix')}")
    I("s_cmp_lt_u32 s2, 224")
    I(f"s_cbranch_scc1 {lab('nofix')}")
    I(f"s_branch {lab('rebounce')}")
    k.L(lab("dofix"))
    I(f"s_lshl_b32 s{A0}, s{WAVE}, 11")
    I(f"v_add_u32 v12, s{A0}, v10")
    for q in range(2): wreads(WB + 12*q, 12, q)
    for r in range(4): I(f"v_mov_b32 v{72+r}, s{ONES}")
    I(f"s_lshl_b32 s{A0}, s{WAVE}, 8")
    I(f"s_add_u32 s{A0}, s{A0}, {LRD}")
    I("v_and_b32 v12, 48, v1")
    I(f"v_add_u32 v12, s{A0}, v12")
    I(f"v_mov_b32 v13, s{A0}")
    I("s_cmp_lt_u32 s2, 224")
    I(f"s_cbranch_scc1 {lab('px_go')}")
    px_issue()
    k.L(lab("px_go"))
    poll("px", pxl, [F0 + 4*i + 2 for i in range(4)], first_issued=True)
    for i in range(4):
        I(f"v_mov_b32 v{FX+2*i}, v{F0+4*i}")
        I(f"v_mov_b32 v{FX+2*i+1}, v{F0+4*i+1}")
    I("s_waitcnt lgkmcnt(0)")
    for q in range(2):
        for sec in range(3): mfma16(F0 + 4*sec, vr(WB+12*q+4*sec,4), vr(FX+4*q,4), q == 0)
        mfma16(F0 + 12, vr(72,4), vr(FX+4*q,4), q == 0)
        mfma16(F0 + 16, vr(FX+4*q,4), vr(FX+4*q,4), q == 0)
    I("s_mov_b32 exec_lo, 0x00010001"); I("s_mov_b32 exec_hi, 0x00010001")
    k.nop(6)
    for sec in range(3): I(f"ds_write_b128 v12, {vr(F0+4*sec,4)} offset:{64*sec}")
    I(f"ds_write_b32 v13, v{F0+12} offset:192")
    I(f"ds_write_b32 v13, v{F0+16} offset:196")
    exec_all()
    I(f"s_and_b32 s{A0}, s{IDX}, 31")
    I("v_and_b32 v15, 15, v1")
    I("v_lshrrev_b32 v14, 4, v1")
    I("v_lshlrev_b32 v14, 2, v14")
    I(f"v_sub_u32 v66, s{A0}, v14")
    I(f"v_sub_u32 v67, s{A0}, v15")
    I("v_lshlrev_b32 v15, 2, v15")
    I(f"v_add_u32 v15, {LFX + 128}, v15")
    I("v_and_b32 v12, 48, v1")
    I(f"v_add_u32 v12, {LFX}, v12")
    bar()
    I(f"s_lshr_b32 s{A0}, s{IDX}, 5")
    I(f"s_cmp_lg_u32 s{A0}, s{OT}")
    I(f"s_cbranch_scc1 {lab('nores')}")
    I(f"s_lshl_b32 s{A0}, s{KG}, 7")
    I(f"s_add_u32 s{A0}, s{A0}, {hex(X2R)}")
    I(f"v_lshl_add_u32 v14, v7, 4, s{A0}")
    I(f"v_cmp_eq_u32 vcc, s{IDX}, v{VTK}")
    I(f"s_and_saveexec_b64 {sp(T2)}, vcc")
    I(f"global_load_dwordx2 {vr(XG,2)}, v14, {sp(WSP)} sc1")
    I(f"global_load_dwordx2 {vr(XG+2,2)}, v14, {sp(WSP)} offset:32 sc1")
    I(f"v_mov_b32 v{RESR}, 0")
    exec_all()
    k.L(lab("nores"))
    I(f"s_lshr_b32 s{A0}, s{IDX}, 5")
    I(f"s_cmp_lg_u32 s{A0}, s{TT}")
    I(f"s_cbranch_scc1 {lab('rebounce')}")
    sum8(LRD, LFX)
    I(f"v_mov_b32 v13, {LFX + 192}")
    for sec in range(2): I(f"ds_read_b128 {vr(F0+4*sec,4)}, v12 offset:{64*sec}")
    I("ds_read_b64 v[64:65], v13")
    I("ds_read_b32 v68, v15")
    MK = [T0, T2, A0, A0 + 2, A0 + 4, A0 + 6]
    for t in range(2):
        I(f"v_cmp_eq_u32 {sp(MK[0])}, {16*t}, v67")
        for r in range(4): I(f"v_cmp_eq_u32 {sp(MK[1+r])}, {16*t+r}, v66")
        if t == 0:
            I("s_waitcnt lgkmcnt(0)")
            rowstats(64, 65, 69, 70, 71)
        else: k.nop(1)
        for sec in range(2):
            for r in range(4): I(f"v_cndmask_b32 v{ACC+8*sec+4*t+r}, v{ACC+8*sec+4*t+r}, v{F0+4*sec+r}, {sp(MK[0])}")
        I(f"v_cndmask_b32 v{MT[t]}, v{MT[t]}, v69, {sp(MK[0])}")
        I(f"v_cndmask_b32 v{AT[t]}, v{AT[t]}, v71, {sp(MK[0])}")
        for r in range(4): I(f"v_cndmask_b32 v{ACC+16+4*t+r}, v{ACC+16+4*t+r}, v68, {sp(MK[1+r])}")
    k.L(lab("rebounce"))
    bounce_params()
    k.L(lab("nofix"))
    vm.drain()
    k.stamp(name="q1_fix")
    q_epilogue(1)
    k.stamp(name="l1_qepi")
    attention(1)
    oproj(1)
    def cand_stats():
        I(f"s_cmp_lg_u32 s{WAVE}, 1")
        I(f"s_cbranch_scc1 {lab('cs_skip0')}")
        I(f"v_mov_b32 v40, s{CA}")
        I(f"v_mov_b32 v41, s{CB_}")
        I("v_cmp_gt_u32 vcc, 8, v1")
        I("v_and_b32 v42, 7, v1")
        I("s_nop 0")
        I("v_cndmask_b32 v40, v41, v40, vcc")
        I("v_lshrrev_b32 v41, 6, v40")
        I("v_lshl_add_u32 v41, v41, 3, v42")
        I("v_and_b32 v40, 63, v40")
        I("v_lshlrev_b32 v40, 4, v40")
        I("v_lshl_add_u32 v40, v41, 10, v40")
        I(f"v_add_u32 v40, {hex(ST[1])}, v40")
        exec_lo("0xffff")
        I(f"global_load_dwordx4 v[44:47], v40, {sp(WSP)} sc1")
        exec_all()
        k.L(lab("cs_skip0"))
    def cand_stats2():
        I(f"s_cmp_lg_u32 s{WAVE}, 1")
        I(f"s_cbranch_scc1 {lab('cs_skip')}")
        exec_lo("0xffff")
        poll("pc", [f"global_load_dwordx4 v[44:47], v40, {sp(WSP)} sc1"], [47], first_issued=True)
        for m in Q4 + ("row_half_mirror",):
            k.nop(1)
            for c in range(2): I(f"v_add_f32_dpp v{44+c}, v{44+c}, v{44+c} {m} row_mask:0xf bank_mask:0xf")
        rowstats(44, 45, 46, 47, 45)
        I("v_and_b32 v40, 8, v1")
        I(f"v_add_u32 v40, {LCS}, v40")
        I("v_mul_f32 v44, v46, v45")
        I("ds_write_b64 v40, v[44:45]")
        exec_all()
        k.L(lab("cs_skip"))
    SX, SD = 56, 64
    def cand_addr():
        I(f"v_mov_b32 v50, s{CA}")
        I(f"v_mov_b32 v51, s{CB_}")
        I("v_and_b32 v52, 1, v1")
        I("v_cmp_eq_u32 vcc, 1, v52")
        I("v_lshlrev_b32 v52, 3, v52")
        I(f"v_add_u32 v52, {LCS}, v52")
        I("v_cndmask_b32 v50, v50, v51, vcc")
        I("v_lshrrev_b32 v51, 4, v50")
        I("v_and_b32 v50, 15, v50")
        I("v_lshlrev_b32 v50, 4, v50")
        I("v_lshl_add_u32 v50, v51, 14, v50")
        I("v_and_b32 v51, 48, v1")
        I("v_lshl_add_u32 v50, v51, 4, v50")
        I(f"s_lshl_b32 s{A0}, s{WAVE}, 11")
        I(f"v_add_u32 v50, s{A0}, v50")
        I("s_cmp_lt_u32 s2, 224")
        I(f"s_cbranch_scc1 {lab('ca_done')}")
        I(f"v_mov_b32 v50, s{CA}")
        I(f"v_mov_b32 v51, s{CB_}")
        I("v_and_b32 v53, 16, v1")
        I("v_cmp_eq_u32 vcc, 16, v53")
        I(f"s_sub_u32 s{A0}, s2, 224")
        I(f"s_lshl_b32 s{A0}, s{A0}, 9")
        I("v_cndmask_b32 v50, v50, v51, vcc")
        I("v_lshrrev_b32 v51, 4, v50")
        I("v_and_b32 v50, 15, v50")
        I("v_lshlrev_b32 v50, 4, v50")
        I("v_lshl_add_u32 v50, v51, 14, v50")
        I("v_bfe_u32 v51, v1, 3, 1")
        I("v_lshl_add_u32 v50, v51, 8, v50")
        I(f"v_add_u32 v50, s{A0}, v50")
        k.L(lab("ca_done"))
        for f in range(8): I(f"v_accvgpr_read_b32 v{SD+f}, a{ADN+f}")
        for f in range(8): I(f"v_lshlrev_b32 v{SD+f}, 16, v{SD+f}")
    def cand_rows():
        I(f"global_load_dwordx4 {vr(SX,4)}, v50, {sp(XB_)} sc1")
        I(f"global_load_dwordx4 {vr(SX+4,4)}, v50, {sp(XB_)} offset:1024 sc1")
        I("ds_read_b64 v[54:55], v52")
    cand_addr()
    hop_a(1, cand_stats2, cand_stats, cand_rows)
    I("s_cmp_ge_u32 s2, 224")
    I(f"s_cbranch_scc1 {lab('sp_skip')}")
    I("v_and_b32 v17, 48, v1")
    I(f"s_lshl_b32 s{A0}, s{WAVE}, 7")
    I(f"s_add_u32 s{A0}, s{A0}, {LRD}")
    I("v_and_b32 v18, 1, v1")
    I("v_lshl_add_u32 v17, v18, 6, v17")
    I(f"v_add_u32 v17, s{A0}, v17")
    I("v_and_b32 v18, 31, v1")
    I("v_lshlrev_b32 v18, 2, v18")
    I(f"v_add_u32 v18, {LRD}, v18")
    yp_addr(22, 2)
    I(f"v_add_u32 v23, {hex(YP[3] - YP[2])}, v22")
    I(f"s_or_b32 s{A0}, s{CG}, s{WAVE}")
    I(f"s_cmp_eq_u32 s{A0}, 0")
    I("s_waitcnt vmcnt(1)")
    I(f"s_cbranch_scc1 {lab('sp_go')}")
    I("s_waitcnt vmcnt(0)")
    k.L(lab("sp_go"))
    for i in range(8):
        t0 = 24 + 2*(i & 1)
        unpack(t0, t0 + 1, SX + i)
        I(f"v_fma_f32 v{t0}, v{t0}, v55, -v54")
        I(f"v_fma_f32 v{t0+1}, v{t0+1}, v55, -v54")
        I(f"v_cvt_pk_bf16_f32 v{SX+i}, v{t0}, v{t0+1}")
    k.nop(2)
    I(f"v_mfma_f32_16x16x32_bf16 v[24:27], {ar(AGU,4)}, {vr(SX,4)}, 0")
    I(f"v_mfma_f32_16x16x32_bf16 v[24:27], {ar(AGU+4,4)}, {vr(SX+4,4)}, v[24:27]")
    I("s_mov_b32 exec_lo, 0x00030003")
    I("s_mov_b32 exec_hi, 0x00030003")
    k.nop(6)
    I("ds_write_b128 v17, v[24:27]")
    exec_all()
    bar()
    for i in range(8): I(f"ds_read_b32 v{SX+i}, v18 offset:{128*i}")
    I("s_waitcnt lgkmcnt(0)")
    for a_, b_ in ((0,1),(2,3),(4,5),(6,7),(0,2),(4,6),(0,4)): I(f"v_add_f32 v{SX+a_}, v{SX+a_}, v{SX+b_}")
    bf16r(SX)
    I(f"v_mul_f32 v16, {hex(f2u(-LOG2E))}, v{SX}")
    I("v_exp_f32 v16, v16")
    I("s_nop 0")
    I("v_add_f32 v16, 1.0, v16")
    I("v_rcp_f32 v16, v16")
    I("s_nop 0")
    I(f"v_mul_f32 v16, v16, v{SX}")
    bf16r(16)
    k.nop(2)
    I(f"v_mul_f32_dpp v16, v{SX}, v16 row_ror:8 row_mask:0xf bank_mask:0xf")
    bf16r(16)
    k.nop(1)
    for c_ in range(2):
        for f in range(8): I(f"v_readlane_b32 s{A0+f}, v16, {16*c_+f}")
        I(f"v_mul_f32 v{24+2*c_}, s{A0}, v{SD}")
        I(f"v_mul_f32 v{25+2*c_}, s{A0+1}, v{SD+1}")
        for f in range(2, 8): I(f"v_fmac_f32 v{24+2*c_+(f&1)}, s{A0+f}, v{SD+f}")
        I(f"v_add_f32 v{24+2*c_}, v{24+2*c_}, v{25+2*c_}")
        I(f"v_min_u32 v{24+2*c_}, 0xfffffffe, v{24+2*c_}")
        I(f"global_store_dword v{22+c_}, v{24+2*c_}, {sp(WSP)} sc1")
    I(f"s_branch {lab('sp_done')}")
    k.L(lab("sp_skip"))
    I("s_waitcnt vmcnt(0)")
    x_elem(SX, 16)
    k.L(lab("sp_done"))
    hop_b_issue(1)
    k.stamp(name="t_spec")
    X, Y = 96, 16
    for i in range(4): unpack(X + 2*i, X + 2*i + 1, XG + i)
    for r in range(8): I(f"v_sub_f32 v{Y+r}, v{X+r}, v{RESM}")
    for r in range(8): I(f"v_mul_f32 v{Y+r}, v{Y+r}, v{RESR}")
    for i in range(4): I(f"v_cvt_pk_bf16_f32 v{XG+i}, v{Y+2*i}, v{Y+2*i+1}")
    for i in range(4): unpack(Y + 2*i, Y + 2*i + 1, XG + i)
    for r in range(8): I(f"v_add_f32 v{X+r}, v{X+r}, v{Y+r}")
    for i in range(4): I(f"v_cvt_pk_bf16_f32 v{XG+i}, v{X+2*i}, v{X+2*i+1}")
    I(f"s_lshl_b32 s{A0}, s{KG}, 5")
    I(f"v_lshl_add_u32 v12, v7, 4, s{A0}")
    I(f"v_lshl_add_u32 v12, v{VTK}, 10, v12")
    I(f"v_permlane32_swap_b32 v{XG}, v{XG+2}")
    I(f"v_permlane32_swap_b32 v{XG+1}, v{XG+3}")
    hop_b(1)
    k.stamp(name="t_hopb")
    def out_store():
        I(f"v_cmp_ne_u32 vcc, s{IDX}, v{VTK}")
        I(f"s_and_saveexec_b64 {sp(T2)}, vcc")
        vm.issue(f"global_store_dwordx4 v12, {vr(XG,4)}, {sp(OUTP)} {ENV('OUTF', '')}")
        exec_all()
    out_store()
    slice1(1)
    slice2(1)
    k.stamp(name="t_slice")
    finalize(1)
    I(f"s_branch {lab('fdone')}")
    k.L(lab("hit"))
    I("s_cmp_lt_u32 s2, 224")
    I(f"s_cbranch_scc1 {lab('hit_out')}")
    I(f"s_cmp_eq_u32 s{YSEL}, 2")
    I(f"s_mov_b32 s{T0}, {hex(YP[2])}")
    I(f"s_cselect_b32 s{T0}, {hex(YP[3])}, s{T0}")
    gather("sg", [f"s{T0}"], 20, LRD, light=(ENV("SGL", "0") == "1"))
    I("v_and_b32 v16, 15, v1")
    I("v_lshlrev_b32 v16, 2, v16")
    I(f"v_add_u32 v16, {LRD}, v16")
    bar()
    I(f"s_cmp_lg_u32 s{WAVE}, 0")
    I(f"s_cbranch_scc1 {lab('hit_out')}")
    I(f"v_mov_b32 v17, v{SX}")
    I(f"s_cmp_eq_u32 s{YSEL}, 2")
    I("s_cselect_b64 vcc, -1, 0")
    I(f"v_permlane16_swap_b32 v{SX}, v17")
    I("s_nop 0")
    I(f"v_cndmask_b32 v{SX}, v{SX}, v17, vcc")
    finish_row(1, SX, 16)
    k.L(lab("hit_out"))
    out_store()
    k.L(lab("fdone"))
    I("s_cmp_lg_u32 s2, 0")
    I(f"s_cbranch_scc1 {lab('end')}")
    I(f"v_mov_b32 v12, {hex(NONCE)}")
    I(f"v_mov_b32 v13, s{TAG}")
    I("v_cmp_eq_u32 vcc, 0, v0")
    I(f"s_and_saveexec_b64 {sp(T2)}, vcc")
    I(f"s_cbranch_execz {lab('end')}")
    I(f"global_store_dword v12, v13, {sp(WSP)} sc1")
    k.L(lab("end"))
    k.stamp_end(0)
    if ENV("DBGT"):
        I("s_cmp_lt_u32 s2, 224")
        I(f"s_cbranch_scc1 {lab('exit')}")
        I(f"s_cmp_lg_u32 s{WAVE}, 0")
        I(f"s_cbranch_scc1 {lab('exit')}")
        I("s_load_dwordx2 s[4:5], s[0:1], 72")
        I("s_memrealtime s[6:7]")
        I("s_memtime s[8:9]")
        I("s_waitcnt lgkmcnt(0)")
        I("s_mov_b64 exec, 1")
        I("s_not_b32 s96, s96")
        I("s_sub_u32 s8, s8, s98")
        I("v_mov_b32 v1, 0"); I("v_mov_b32 v2, s96"); I("v_mov_b32 v3, s6"); I("v_mov_b32 v4, s8")
        I("global_atomic_umax v1, v2, s[4:5]")
        I("global_atomic_umax v1, v3, s[4:5] offset:4")
        I("global_atomic_umax v1, v4, s[4:5] offset:8")
    k.L(lab("exit"))
    I("s_endpgm")
    return k

if __name__ == "__main__":
    k = build_kernel()
    bad = check_hazards(k)
    for b in bad: print("HAZARD", b, file=sys.stderr)
    out = sys.argv[1] if len(sys.argv) > 1 else "cdna_kernels/" + NAME + ".s"
    NOTES = """; One persistent kernel, 256 workgroups (one per CU, all co-resident) x 8 waves; workgroup = (q-block id&7, head id>>3).
"""
    txt = emit_file(HEADER + NOTES, [k], single=(ENV("SINGLE", "0") == "1"))
    open(out, "w").write(txt)
    print("written", out, len(txt), "bytes; hazards:", len(bad))
```

```python
import sys, struct, os
from asmlib import *

NAME = "interleave_layers__softmax_full_mha__moe_arch_mod__prompt"
HEADER = open("cdna_kernels/" + NAME + ".s.ref").read().split("; Override launch")[0]
ENV = os.environ.get

XF = [0x000000, 0x200000]
KF = [0x400000, 0x800000]
VF = [0x600000, 0xA00000]
OF = [0xC00000, 0xE00000]
ST = [0x1000000, 0x1040000]
YP = [0x1080000, 0x1100000, 0x1180000, 0x1400000]
FLK = [0x1280000, 0x1288000]
FLO = [0x1300000, 0x1340000]
KEY = [0x12C0000, 0x12C8000]
X2R = 0x12A0000
NONCE = 0x12A2000
EPS = 1e-5
def f2u(x): return struct.unpack("<I", struct.pack("<f", x))[0]
QSCALE = 0.25 * 1.4426950408889634
LOG2E = 1.4426950408889634
SPIN_MAX = 1 << 18

CB, CBN = 131072, 20
LWQ = 8192
LST = CB + CBN * 512
LSA = LST
LPC = LST + 8192
LFX = LST + 8448
LVB = LST + 8704
LRD = LST + 10752
LFF = LST + 14848
LKY = LFF + 128
LCS = LFF + 768
LDS_BYTES = LFF + 1024

X0P, WQP, WOP, WSP, WRP, WGP, WUP, WDP, OUTP = 4, 6, 8, 10, 12, 14, 16, 18, 20
HEAD, QB, WAVE, TT, W1K, THR, CTR, SPIN, PASS, TAG, CG, TB, OA, KQ, OT, KG, IDX, WSUM = range(22, 40)
T0, T2 = 40, 42
A0 = 44
KB_, VB_, OB_, XB_ = 52, 54, 56, 58
RM, RR, RS_, ONES, C512, CEPS = 60, 61, 62, 63, 64, 65
CGP = 3
CA, CB_, YSEL = 100, 101, 30

def sp(i): return f"s[{i}:{i+1}]"

class VM:
    def __init__(self, k): self.k = k; self.q = []
    def issue(self, txt, tag=None):
        self.k.I(txt); self.q.append(tag)
    def wait(self, tag, extra=""):
        i = max(j for j, t in enumerate(self.q) if t == tag)
        n = len(self.q) - 1 - i
        assert n <= 63
        self.k.I(f"s_waitcnt vmcnt({n}){extra}")
    def drain(self, extra=""):
        self.k.I(f"s_waitcnt vmcnt(0){extra}"); self.q = []

def build_kernel():
    k = Kern(NAME + "_kernel", 256, 512, LDS_BYTES, 128, nagpr=128)
    I = k.I
    vm = VM(k)
    def lab(x): return f"L_{x}"
    def sadd64(d, b, const):
        I(f"s_add_u32 s{d}, s{b}, {hex(const)}"); I(f"s_addc_u32 s{d+1}, s{b+1}, 0")
    def swapop(sw, op, x, t):
        I(f"v_mov_b32 v{t}, v{x}"); k.nop(2); I(f"{sw} v{x}, v{t}"); I(f"{op} v{x}, v{x}, v{t}")
    def halfsum(op, x, t): swapop("v_permlane32_swap_b32", op, x, t)
    def rowreduce(op, x, t):
        swapop("v_permlane16_swap_b32", op, x, t); swapop("v_permlane32_swap_b32", op, x, t)
    def dppred(op, x, modes):
        for m in modes:
            k.nop(2); I(f"{op}_dpp v{x}, v{x}, v{x} {m} row_mask:0xf bank_mask:0xf")
    Q4 = ("quad_perm:[1,0,3,2]", "quad_perm:[2,3,0,1]")
    def allreduce(op, x, t):
        dppred(op, x, Q4 + ("row_half_mirror", "row_mirror")); rowreduce(op, x, t)
    def unpack(dlo, dhi, src):
        I(f"v_lshlrev_b32 v{dlo}, 16, v{src}"); I(f"v_and_b32 v{dhi}, 0xffff0000, v{src}")
    def bf16r(x):
        I(f"v_cvt_pk_bf16_f32 v{x}, v{x}, v{x}"); I(f"v_and_b32 v{x}, 0xffff0000, v{x}")
    def exec_lo(mask):
        I(f"s_mov_b32 exec_lo, {mask}"); I("s_mov_b32 exec_hi, 0")
    def exec_all(): I("s_mov_b64 exec, -1")
    def bar(lg=True):
        if lg: I("s_waitcnt lgkmcnt(0)")
        I("s_barrier")
    def poll(name, loads, tagregs, first_issued=False, check=None, chk_label=None):
        I(f"s_mov_b32 s{SPIN}, {SPIN_MAX}")
        SL = int(ENV("SLEEP", "0"))
        import re as _re
        if ENV("SLRE") and not _re.search(ENV("SLRE"), name): SL = 0
        if chk_label: I(f"s_branch {lab(chk_label)}")
        elif first_issued: I(f"s_branch {lab(name+'_w')}")
        elif SL: I(f"s_branch {lab(name+'_l')}")
        k.L(lab(name))
        if SL: I(f"s_sleep {SL}")
        k.L(lab(name + "_l"))
        for l in loads: I(l)
        k.L(lab(name + "_w"))
        I("s_waitcnt vmcnt(0)")
        if chk_label: k.L(lab(chk_label))
        if check: check()
        else: I(f"v_cmp_ne_u32 vcc, s{TAG}, v{tagregs[0]}")
        for r in tagregs[1:]:
            I(f"v_cmp_ne_u32 {sp(T2)}, s{TAG}, v{r}")
            I(f"s_or_b64 vcc, vcc, {sp(T2)}")
        I(f"s_sub_u32 s{SPIN}, s{SPIN}, 1")
        I(f"s_cbranch_vccz {lab(name+'_ok')}")
        I(f"s_cbranch_scc0 {lab(name)}")
        k.L(lab(name + "_ok"))
        k.stampval(SPIN, "x" + name + "_spin")
        k.stamp(name="x" + name + "_ok")
        vm.q = []
    def ppoll(name, mk, width, tagoff, regs, gap):
        D = len(regs)
        I(f"s_mov_b32 s{SPIN}, {SPIN_MAX}")
        for j in range(D - 1):
            I(mk(regs[j])); I(f"s_sleep {gap}")
        k.L(lab(name))
        for j in range(D):
            I(mk(regs[(j + D - 1) % D]))
            I(f"s_waitcnt vmcnt({D-1})")
            I(f"v_cmp_ne_u32 vcc, s{TAG}, v{regs[j]+tagoff}")
            I(f"s_cbranch_vccz {lab(name + f'_g{j}')}")
            I(f"s_sleep {gap}")
        I(f"s_sub_u32 s{SPIN}, s{SPIN}, 1")
        I(f"s_cbranch_scc0 {lab(name)}")
        for j in range(D - 1, 0, -1):
            k.L(lab(name + f"_g{j}"))
            if width:
                if j == 1 or True:
                    I("s_waitcnt vmcnt(0)")
                    I(f"s_branch {lab(name + '_g0')}") if False else None
        k.L(lab(name + "_g0"))
        if width: I("s_waitcnt vmcnt(0)")
        k.stamp(name="x" + name + "_ok")
    def mfma(d, a_, b_, c): I(f"v_mfma_f32_32x32x16_bf16 {vr(d,16)}, {a_}, {b_}, {vr(c,16) if c is not None else 0}")
    def rowstats(s1, s2, m, var, rstd):
        I(f"v_mul_f32 v{m}, s{C512}, v{s1}")
        I(f"v_mul_f32 v{var}, s{C512}, v{s2}")
        I(f"v_fma_f32 v{var}, -v{m}, v{m}, v{var}")
        I(f"v_max_f32 v{var}, 0, v{var}")
        I(f"v_add_f32 v{rstd}, s{CEPS}, v{var}")
        I(f"v_rsq_f32 v{rstd}, v{rstd}")

    ACC, WB = 16, 40
    CQ, CV, MV, AL = 96, 108, 76, 84
    MT, AT = [112, 114], [113, 115]
    S0, S1, P0, P1, VA, NEG, O, Q, KB = 16, 32, 48, 52, [56, 64], 72, 88, 104, 108
    AK, AV, AVS, VBASE = 112, 113, 114, 115
    XG, WR, VXO, VTK, RESM, RESR = 116, 120, 124, 125, 126, 127
    TK, TV = 64, 68
    def mfma16(d, a_, b_, first): I(f"v_mfma_f32_16x16x32_bf16 {vr(d,4)}, {a_}, {b_}, {0 if first else vr(d,4)}")
    AWO, ARS, AWS, AGU, ADN = 0, 32, 88, 112, 120

    I("s_cmp_ge_u32 s2, 256")
    I(f"s_cbranch_scc1 {lab('exit')}")
    k.stamp_begin()
    if ENV("DBGT"):
        I("s_memrealtime s[96:97]")
        I("s_memtime s[98:99]")
    I(f"s_load_dwordx4 s[4:7], s[0:1], 0")
    I(f"s_load_dwordx2 s[8:9], s[0:1], 16")
    I(f"s_load_dwordx2 s[10:11], s[0:1], 80")
    I(f"s_load_dwordx8 s[12:19], s[0:1], 32")
    I(f"s_load_dwordx2 s[20:21], s[0:1], 64")
    I("v_and_b32 v1, 63, v0")
    I("v_lshrrev_b32 v2, 6, v0")
    I("v_lshlrev_b32 v3, 4, v1")
    I(f"v_readfirstlane_b32 s{WAVE}, v2")
    I(f"s_and_b32 s{QB}, s2, 7")
    I(f"s_lshr_b32 s{HEAD}, s2, 3")
    if ENV("HX"):
        I(f"s_cmp_lt_u32 s{HEAD}, 16")
        I(f"s_cselect_b32 s{A0}, 8, 0")
        I(f"s_xor_b32 s{HEAD}, s{HEAD}, s{A0}")
    I(f"s_lshl_b32 s{TT}, s{QB}, 3")
    I(f"s_add_u32 s{TT}, s{TT}, s{WAVE}")
    I(f"s_lshl_b32 s{W1K}, s{WAVE}, 10")
    I("v_bfe_u32 v5, v1, 1, 2")
    I("v_bfe_u32 v6, v1, 3, 1")
    I("v_lshl_add_u32 v5, v6, 3, v5")
    I("v_bfe_u32 v6, v1, 4, 1")
    I("v_lshl_add_u32 v5, v6, 2, v5")
    I("v_bfe_u32 v6, v1, 5, 1")
    I("v_lshl_add_u32 v5, v6, 4, v5")
    I("v_mul_u32_u24 v5, 3072, v5")
    I("v_and_b32 v6, 1, v1")
    I("v_lshl_add_u32 v5, v6, 4, v5")
    I(f"s_lshl_b32 s{A0+1}, s{HEAD}, 5")
    I(f"v_add_u32 v5, s{A0+1}, v5")
    I("v_lshrrev_b32 v8, 4, v1")
    I("v_and_b32 v9, 7, v1")
    I("v_xor_b32 v8, v8, v9")
    I("v_lshlrev_b32 v8, 4, v8")
    I("v_lshrrev_b32 v9, 3, v1")
    I("v_lshl_add_u32 v8, v9, 10, v8")
    I(f"s_lshl_b32 s{A0}, s{TT}, 15")
    I(f"v_add_u32 v8, s{A0}, v8")
    I("v_xor_b32 v9, 64, v8")
    I("v_add_u32 v9, 0x2000, v9")
    XB3 = [A0 + 3, A0 + 4, A0 + 5]
    for b_ in range(3):
        I(f"s_mul_i32 s{XB3[b_]}, s{WAVE}, 12288")
        I(f"s_add_u32 s{XB3[b_]}, s{XB3[b_]}, {56*1024 + 4096*b_}")
        if b_:
            I(f"s_cmp_eq_u32 s{WAVE}, 7")
            I(f"s_cselect_b32 s{XB3[b_]}, {4096*(b_-1)}, s{XB3[b_]}")
    ROT = A0 + 6
    I(f"s_and_b32 s{ROT}, s{HEAD}, 3")
    I("s_waitcnt lgkmcnt(0)")
    def xstage(st):
        I(f"s_add_u32 s{A0}, s{ROT}, {st//2}")
        I(f"s_and_b32 s{A0}, s{A0}, 3")
        I(f"s_lshl_b32 s{A0}, s{A0}, 8")
        if st & 1: I(f"s_add_u32 s{A0}, s{A0}, 128")
        I(f"s_add_u32 s{T0}, s{X0P}, s{A0}")
        I(f"s_addc_u32 s{T0+1}, s{X0P+1}, 0")
        for i in range(4):
            if i == 2: sadd64(T0, T0, 16384)
            I(f"s_add_u32 m0, s{XB3[st % 3]}, {i*1024}")
            I("s_nop 0")
            vm.issue(f"global_load_lds_dwordx4 v{8 + (i&1)}, {sp(T0)}", f"x{st}")
    def wdma(j):
        I(f"s_mul_i32 s{A0}, s{ROT}, 12")
        I(f"s_add_u32 s{A0}, s{A0}, s{WAVE}")
        I(f"s_add_u32 s{A0}, s{A0}, {8*j}")
        I(f"s_sub_u32 s{A0+1}, s{A0}, 48")
        I(f"s_cmp_ge_u32 s{A0}, 48")
        I(f"s_cselect_b32 s{A0}, s{A0+1}, s{A0}")
        I(f"s_mul_i32 s{A0+1}, s{A0}, 21846")
        I(f"s_lshr_b32 s{A0+1}, s{A0+1}, 16")
        I(f"s_mul_i32 s{A0+2}, s{A0+1}, 3")
        I(f"s_sub_u32 s{A0}, s{A0}, s{A0+2}")
        I(f"s_mul_i32 s{A0+2}, s{A0+1}, {32*3072}")
        I(f"s_lshl_b32 s{T0}, s{A0}, 10")
        I(f"s_add_u32 s{A0+2}, s{A0+2}, s{T0}")
        I(f"s_add_u32 s{T0}, s{WQP}, s{A0+2}")
        I(f"s_addc_u32 s{T0+1}, s{WQP+1}, 0")
        I(f"s_lshl_b32 s{A0}, s{A0}, 14")
        I(f"s_lshl_b32 s{A0+1}, s{A0+1}, 10")
        I(f"s_add_u32 s{A0}, s{A0}, s{A0+1}")
        I(f"s_add_u32 m0, s{A0}, {LWQ}")
        I("s_nop 0")
        vm.issue(f"global_load_lds_dwordx4 v5, {sp(T0)}", f"W{j}")
    if ENV("CPF", "0") == "1":
        I(f"s_cmp_lg_u32 s{WAVE}, 7")
        I(f"s_cbranch_scc1 {lab('nocpf')}")
        I(f"s_lshl_b32 s{A0}, s{HEAD}, 13")
        I(f"v_lshl_add_u32 v12, v1, 7, s{A0}")
        I(f"v_cmp_gt_u32 vcc, {lab('exit')}-{lab('pc0')}, v12")
        I(f"s_getpc_b64 {sp(T0)}")
        k.L(lab("pc0"))
        I(f"s_and_saveexec_b64 {sp(T2)}, vcc")
        I(f"s_cbranch_execz {lab('cpf2')}")
        I(f"global_load_dword v127, v12, {sp(T0)}")
        k.L(lab("cpf2"))
        exec_all()
        k.L(lab("nocpf"))
    if ENV("ALLUP"):
        for j in range(8):
            if j < 6 and ENV("ALLUP") != "x": wdma(j)
            if ENV("ALLUP") != "w": xstage(j)
        k.stamp(name="a_issue")
        I("s_waitcnt vmcnt(0)")
        k.stamp(name="a_done")
        I("s_barrier")
        k.stamp(name="a_bar")
        I(f"s_branch {lab('end')}")
    UPW = int(ENV("UPW", "4"))
    UPX = int(ENV("UPX", "3"))
    I(f"v_mov_b32 v12, {hex(NONCE)}")
    vm.issue(f"global_load_dword v126, v12, {sp(WSP)} sc1", "nonce")
    wdma(0); xstage(0); wdma(1); xstage(1)
    if UPW > 2: wdma(2)
    if UPX > 2: xstage(2)
    for j in range(3, UPW): wdma(j)
    I(f"s_lshr_b32 s{CG}, s{HEAD}, 2")
    I(f"s_and_b32 s{TB}, s{HEAD}, 3")
    I(f"s_lshl_b32 s{A0}, s{QB}, 2")
    I(f"s_add_u32 s{TB}, s{TB}, s{A0}")
    I(f"s_and_b32 s{OA}, s{WAVE}, 1")
    I(f"s_lshr_b32 s{KQ}, s{WAVE}, 1")
    I(f"s_lshl_b32 s{OT}, s{TB}, 1")
    I(f"s_add_u32 s{OT}, s{OT}, s{OA}")
    I(f"s_lshl_b32 s{KG}, s{CG}, 2")
    I(f"s_add_u32 s{KG}, s{KG}, s{KQ}")
    I(f"s_mul_i32 s{CGP}, s{QB}, 28")
    I(f"s_min_u32 s{A0}, s{HEAD}, 27")
    I(f"s_add_u32 s{CGP}, s{CGP}, s{A0}")
    I(f"s_mov_b32 s{THR}, {hex(f2u(2.0**30)) if not ENV('THRZ') else 0}")
    I(f"s_mov_b32 s{ONES}, 0x3f803f80")
    I(f"s_mov_b32 s{C512}, {hex(f2u(1/512))}")
    I(f"s_mov_b32 s{CEPS}, {hex(f2u(EPS))}")
    def lane_terms():
        I("v_and_b32 v6, 31, v1")
        I("v_lshrrev_b32 v7, 5, v1")
    lane_terms()
    def w_addr(t0=12, t1=13):
        I(f"v_bfe_u32 v{t0}, v1, 2, 2")
        I(f"v_lshl_add_u32 v{t0}, v7, 4, v{t0}")
        I(f"v_bfe_u32 v{t1}, v1, 4, 1")
        I(f"v_lshl_add_u32 v{t0}, v{t1}, 2, v{t0}")
        I(f"v_and_b32 v{t1}, 3, v1")
        I(f"v_lshlrev_b32 v{t1}, 3, v{t1}")
        I(f"v_lshl_add_u32 v10, v{t0}, 5, v{t1}")
        I(f"v_add_u32 v10, {LWQ}, v10")
    w_addr()
    def wreads(dst, ad, ks):
        for sec in range(3):
            I(f"ds_read_b64_tr_b16 {vr(dst+4*sec,2)}, v{ad} offset:{sec*16384+ks*1024}")
            I(f"ds_read_b64_tr_b16 {vr(dst+4*sec+2,2)}, v{ad} offset:{sec*16384+ks*1024+256}")
    def qmfmas(wb, xa, xb, first, between=None):
        for i, (d, A_, B_) in enumerate(((ACC, vr(wb,4), xa), (ACC+4, vr(wb,4), xb), (ACC+8, vr(wb+4,4), xa),
                                         (ACC+12, vr(wb+4,4), xb), (ACC+16, xa, vr(wb+8,4)), (ACC+20, xb, vr(wb+8,4)))):
            mfma16(d, A_, B_, first)
            if between: between(i)
    I("v_bfe_u32 v12, v1, 1, 3")
    I("v_and_b32 v13, 15, v1")
    I("v_lshlrev_b32 v13, 7, v13")
    I("v_lshrrev_b32 v14, 4, v1")
    I("v_xor_b32 v14, v14, v12")
    I("v_lshl_add_u32 v2, v14, 4, v13")
    I("v_xor_b32 v4, 64, v2")
    def xfrags(st):
        I(f"v_add_u32 v14, s{XB3[st % 3]}, v2")
        I(f"v_add_u32 v15, s{XB3[st % 3]}, v4")
        vm.wait(f"x{st}")
        for h in range(2):
            for t in range(2): I(f"ds_read_b128 {ar(16*st+8*h+4*t,4)}, v{14+h} offset:{2048*t}")
    k.stamp(name="q0_issue")
    GU, ON = 76, 92
    for r in range(4): I(f"v_mov_b32 v{ON+r}, s{ONES}")
    xfrags(0)
    vm.wait("W1")
    I(f"v_readfirstlane_b32 s{TAG}, v126")
    I(f"s_mul_i32 s{TAG}, s{TAG}, 0x9E3779B1")
    I(f"s_add_u32 s{TAG}, s{TAG}, 0x7F4A7C15")
    I("s_barrier")
    k.stamp(name="q0_W")
    def capture(f):
        n0 = len(k.lines); f(); out = k.lines[n0:]; del k.lines[n0:]; return out
    def weave(main, fill):
        atoms = []; masked = False
        for l in fill:
            opens = ("exec" in l.split(",")[0] or "saveexec" in l) and "exec, -1" not in l
            if masked: atoms[-1].append(l)
            else: atoms.append([l])
            if opens: masked = True
            if "exec, -1" in l: masked = False
        per = -(-len(atoms) // len(main))
        for i, l in enumerate(main):
            k.lines.append(l)
            for at in atoms[i*per:(i+1)*per]: k.lines.extend(at)
    CSA = 96
    def colsum_reads():
        I(f"v_add_u32 v13, s{W1K}, v10")
        wreads(100, 13, 0)
    def colsum_mm(i):
        for sec in range(2): mfma16(CS3[sec], vr(100+4*sec,4), vr(ON,4), i == 0)
        mfma16(CS3[2], vr(ON,4), vr(108,4), i == 0)
    CS3 = [96, 116, 120]
    def colsum_write():
        I(f"s_lshl_b32 s{A0}, s{WAVE}, 8")
        I(f"s_add_u32 s{A0}, s{A0}, {LRD}")
        I("v_and_b32 v13, 48, v1")
        I(f"v_add_u32 v13, s{A0}, v13")
        I("v_and_b32 v14, 15, v1")
        I(f"v_lshl_add_u32 v14, v14, 2, s{A0}")
        I(f"ds_write_b32 v14, v{CS3[2]} offset:128")
        I("s_mov_b32 exec_lo, 0x00010001"); I("s_mov_b32 exec_hi, 0x00010001")
        for sec in range(2): I(f"ds_write_b128 v13, {vr(CS3[sec],4)} offset:{64*sec}")
        exec_all()
    def sum8(src, dst):
        I("v_lshlrev_b32 v13, 2, v1")
        I(f"v_add_u32 v14, {src}, v13")
        for w in range(8): I(f"ds_read_b32 v{104+w}, v14 offset:{256*w}")
        I(f"v_add_u32 v13, {dst}, v13")
        I("s_waitcnt lgkmcnt(0)")
        for a_, b_ in ((0,1),(2,3),(4,5),(6,7),(0,2),(4,6),(0,4)): I(f"v_add_f32 v{104+a_}, v{104+a_}, v{104+b_}")
        I("ds_write_b32 v13, v104")
    def wsave():
        I(f"s_mul_i32 s{A0}, s{WAVE}, 6144")
        I(f"s_add_u32 s{A0}, s{A0}, {LWQ}")
        I(f"v_add_u32 v13, s{A0}, v3")
        for i in range(6): I(f"ds_read_b128 {ar(AWS+4*i,4)}, v13 offset:{1024*i}")
    def wbase(q):
        I(f"s_add_u32 s{A0}, s{ROT}, {q}")
        I(f"s_and_b32 s{A0}, s{A0}, 3")
        I(f"s_lshl_b32 s{A0}, s{A0}, 12")
        I(f"v_add_u32 v11, s{A0}, v10")
    wbase(0)
    wreads(WB, 11, 0)
    wreads(WB + 12, 11, 1)
    ready = {2: 1, 5: 2, 8: 3, 10: 4, 13: 5}
    def const_area():
        I("v_and_b32 v13, 11, v0")
        I(f"v_mov_b32 v14, s{ONES}")
        I("v_cmp_eq_u32 vcc, 0, v13")
        I("v_lshlrev_b32 v13, 4, v0")
        I(f"v_add_u32 v13, {CB}, v13")
        I("v_cndmask_b32 v100, 0, v14, vcc")
        for r in range(1, 4): I(f"v_mov_b32 v{100+r}, v100")
        I("ds_write_b128 v13, v[100:103]")
        I(f"v_cmp_gt_u32 vcc, {(CBN*512 - 8192)//16}, v0")
        I(f"s_and_saveexec_b64 {sp(T2)}, vcc")
        I("ds_write_b128 v13, v[100:103] offset:8192")
        exec_all()
    def stats0():
        I("v_lshrrev_b32 v12, 4, v1")
        I("v_lshlrev_b32 v12, 2, v12")
        I("v_and_b32 v13, 15, v1")
        I("v_sub_u32 v12, v13, v12")
        for t in range(2): I(f"v_mov_b32 v{ON+t}, 0")
        for r in range(4):
            I(f"v_cmp_eq_u32 vcc, {r}, v12")
            k.nop(2)
            for t in range(2): I(f"v_cndmask_b32 v{ON+t}, v{ON+t}, v{GU+4*t+r}, vcc")
        for t in range(2): rowreduce("v_add_f32", ON + t, 12)
        for t in range(2): rowstats(GU + 8 + 4*t, ON + t, MT[t], 12, AT[t])
    ready = {5: 3, 10: 5}
    def smf(q_, half):
        ya, yb = ar(8*q_,4), ar(8*q_+4,4)
        if half == 0: mfma16(GU, ya, ya, q_ == 0); mfma16(GU + 4, yb, yb, q_ == 0)
        else: mfma16(GU + 8, vr(ON,4), ya, q_ == 0); mfma16(GU + 12, vr(ON,4), yb, q_ == 0)
    for ks in range(16):
        st = ks // 2
        pre = 0
        QP0 = eval(ENV("QP0", "{0: 3, 1: 2, 2: 1, 3: 3, 5: 2, 6: 1, 7: 0, 8: 3, 10: 2, 11: 1, 12: 0, 13: 3, 14: 2, 15: 1}"))
        if ks in QP0: I(f"s_setprio {QP0[ks]}")
        if ks % 2 == 0 and st + 1 < 8:
            xfrags(st + 1); pre = 4
        if ks + 2 in ready:
            vm.wait(f"W{ready[ks+2]}")
            I("s_barrier")
        if ks == 13: bar()
        if ks < 14:
            if (ks + 2) % 4 == 0: wbase((ks + 2)//4)
            wreads(WB + 12*((ks+2)%3), 11, (ks + 2) % 4)
            I(f"s_waitcnt lgkmcnt({min(15, 12 + pre) if ks % 2 == 0 else 12})")
        elif ks == 14: I("s_waitcnt lgkmcnt(0)")
        def loads():
            if UPW + ks < 6 and ENV("WFAST"): wdma(UPW + ks)
            if ks == 0 and UPX == 2: xstage(2)
            if ks == 0: xstage(3)
            if ks % 2 == 1 and st + 4 < 8: xstage(st + 4)
            if ks % 2 == 0 and UPW + ks//2 < 6 and not ENV("WFAST"): wdma(UPW + ks//2)
        def mm():
            xa, xb = ar(8*ks,4), ar(8*ks+4,4)
            if ks < 14: smf(ks, 0)
            if ks == 13:
                smf(13, 1)
                for q_ in (14, 15): smf(q_, 0); smf(q_, 1)
            qmfmas(WB + 12*(ks%3), xa, xb, ks == 0)
            if ks < 13: smf(ks, 1)
            if ks == 10: I("s_waitcnt lgkmcnt(10)"); colsum_mm(0)
            if ks == 11: I("s_waitcnt lgkmcnt(6)"); colsum_mm(1)
        fill = capture(loads)
        if ks == 9: fill += capture(colsum_reads)
        if ks == 12: fill += capture(colsum_write)
        if ks == 13: fill += capture(lambda: sum8(LRD, LPC)) + capture(const_area)
        if ks == 14: fill += capture(wsave) + capture(stats0)
        weave(capture(mm), fill)
        if ks == 10: wreads(100, 13, 8)
        k.stamp(name=f"xq0k{ks}")
    k.stamp(name="q0_loop")
    def bounce_params():
        I(f"s_lshl_b32 s{A0}, s{WAVE}, 8")
        I(f"s_add_u32 s{A0}, s{A0}, {LVB}")
        I("v_and_b32 v13, 15, v1")
        I(f"v_lshl_add_u32 v12, v13, 2, s{A0}")
        for t in range(2):
            I(f"ds_write_b32 v12, v{MT[t]} offset:{64*t}")
            I(f"ds_write_b32 v12, v{AT[t]} offset:{128+64*t}")
        I("v_and_b32 v14, 48, v1")
        I(f"v_add_u32 v12, s{A0}, v14")
        for t in range(2):
            I(f"ds_read_b128 {vr(MV+4*t,4)}, v12 offset:{64*t}")
            I(f"ds_read_b128 {vr(AL+4*t,4)}, v12 offset:{128+64*t}")
        I(f"v_add_u32 v12, {LPC}, v14")
        for sec in range(2): I(f"ds_read_b128 {vr(CQ+4*sec,4)}, v12 offset:{64*sec}")
        I("v_lshlrev_b32 v12, 2, v13")
        I(f"v_add_u32 v12, {LPC + 128}, v12")
        I(f"ds_read_b32 v{CV}, v12")
    bounce_params()

    def yp_addr(d, L):
        I(f"v_lshrrev_b32 v{d}, 4, v0")
        I(f"v_mul_u32_u24 v{d}, {224*64}, v{d}")
        I(f"v_and_b32 v{d+1}, 15, v0")
        I(f"v_lshl_add_u32 v{d}, v{d+1}, 2, v{d}")
        I(f"s_lshl_b32 s{T2}, s{CGP}, 6")
        I(f"s_add_u32 s{T2}, s{T2}, {hex(YP[L])}")
        I(f"v_add_u32 v{d}, s{T2}, v{d}")

    def q_epilogue(L):
        n = f"l{L}"
        sadd64(KB_, WSP, KF[L]); sadd64(VB_, WSP, VF[L]); sadd64(OB_, WSP, OF[L])
        for t in range(2): I(f"v_mul_f32 v{13+t}, {hex(f2u(QSCALE))}, v{AT[t]}")
        I(f"s_lshl_b32 s{A0}, s{HEAD}, 16")
        I(f"s_lshl_b32 s{A0+1}, s{TT}, 10")
        I(f"s_add_u32 s{A0}, s{A0}, s{A0+1}")
        I(f"v_add_u32 v4, s{A0}, v3")
        I(f"v_add_u32 v15, s{W1K}, v3")
        I("v_add_u32 v5, 0x10000, v15")
        I("s_waitcnt lgkmcnt(0)")
        for sec in (1, 0):
            for t in range(2):
                for r in range(4): I(f"v_fma_f32 v{ACC+8*sec+4*t+r}, -v{MT[t]}, v{CQ+4*sec+r}, v{ACC+8*sec+4*t+r}")
            for t in range(2):
                for r in range(4): I(f"v_mul_f32 v{ACC+8*sec+4*t+r}, v{AT[t] if sec else 13+t}, v{ACC+8*sec+4*t+r}")
            d = TK if sec else Q
            for i in range(4): I(f"v_cvt_pk_bf16_f32 v{d+i}, v{ACC+8*sec+2*i}, v{ACC+8*sec+2*i+1}")
        I(f"v_fma_f32 v{ACC+16}, -v{MV}, v{CV}, v{ACC+16}")
        I(f"v_permlane16_swap_b32 v{TK}, v{TK+2}")
        I(f"v_permlane16_swap_b32 v{TK+1}, v{TK+3}")
        I(f"v_permlane16_swap_b32 v{Q}, v{Q+2}")
        I(f"v_permlane16_swap_b32 v{Q+1}, v{Q+3}")
        vm.issue(f"global_store_dwordx4 v4, {vr(TK,4)}, {sp(KB_)} sc1")
        I(f"ds_write_b128 v15, {vr(TK,4)}")
        mfma(S0, vr(TK,4), vr(Q,4), None)
        for r in range(1, 8): I(f"v_fma_f32 v{ACC+16+r}, -v{MV+r}, v{CV}, v{ACC+16+r}")
        for r in range(8): I(f"v_mul_f32 v{ACC+16+r}, v{AL+r}, v{ACC+16+r}")
        for i in range(4): I(f"v_cvt_pk_bf16_f32 v{TV+i}, v{ACC+16+2*i}, v{ACC+16+2*i+1}")
        I(f"v_max3_f32 v2, v{S0}, v{S0+1}, v{S0+2}")
        I(f"v_max3_f32 v13, v{S0+3}, v{S0+4}, v{S0+5}")
        I(f"v_permlane32_swap_b32 v{TV}, v{TV+2}")
        I(f"v_permlane32_swap_b32 v{TV+1}, v{TV+3}")
        vm.issue(f"global_store_dwordx4 v4, {vr(TV,4)}, {sp(VB_)} sc1")
        I(f"ds_write_b128 v5, {vr(TV,4)}")
        if L == 0:
            I("s_cmp_ge_u32 s2, 224")
            I(f"s_cbranch_scc1 {lab('nomark')}")
            yp_addr(10, 0)
            I("v_mov_b32 v12, -1")
            I(f"global_store_dword v10, v12, {sp(WSP)} sc1")
            for b_ in range(1, 4):
                I(f"v_add_u32 v11, {hex(YP[b_] - YP[0])}, v10")
                I(f"global_store_dword v11, v12, {sp(WSP)} sc1")
            k.L(lab("nomark"))
        for r in range(6, 16, 4): I(f"v_max3_f32 v2, v2, v{S0+r}, v{S0+r+1}")
        for r in range(8, 16, 4): I(f"v_max3_f32 v13, v13, v{S0+r}, v{S0+r+1}")
        I("v_max_f32 v2, v2, v13")
        halfsum("v_max_f32", 2, 13)
        for r in range(16): I(f"v_sub_f32 v{NEG+r}, 0, v2")
        I("v_and_b32 v8, 15, v1")
        I("v_bfe_u32 v9, v1, 4, 1")
        I("v_lshlrev_b32 v10, 4, v8")
        I("v_lshl_add_u32 v10, v7, 8, v10")
        I(f"v_lshl_add_u32 v{VBASE}, v9, 16, v10")
        I(f"v_add_u32 v{VBASE}, 0x10000, v{VBASE}")
        I("v_xor_b32 v9, 1, v9")
        I(f"v_lshlrev_b32 v{AVS}, 13, v9")
        I(f"v_mov_b32 v{AK}, v3")
        I(f"v_mov_b32 v{AV}, v{VBASE}")
        I(f"s_mov_b32 s{PASS}, 0")
        I(f"s_lshl_b32 s{A0}, s{HEAD}, 10")
        I(f"s_add_u32 s{A0}, s{A0}, {hex(FLK[L])}")
        I(f"v_lshl_add_u32 v8, v1, 7, s{A0}")
        I(f"s_lshl_b32 s{A0+1}, s{QB}, 7")
        I(f"s_add_u32 s{A0}, s{A0}, s{A0+1}")
        I(f"v_mov_b32 v9, s{A0}")
        bar()

    def ffn_gu(m_):
        I(f"s_lshl_b32 s{A0+1}, s{CGP}, 4")
        I(f"v_mul_u32_u24 v14, 3584, v0")
        I(f"v_add_u32 v14, s{A0+1}, v14")
        vm.issue(f"global_load_dwordx4 {ar(AGU+4*m_,4)}, v14, {sp(WUP if m_ else WGP)}")
    def ffn_dn():
        I(f"s_lshl_b32 s{A0+1}, s{CGP}, 13")
        I(f"s_add_u32 s{A0+1}, s{A0+1}, s{W1K}")
        I(f"v_add_u32 v14, s{A0+1}, v3")
        vm.issue(f"global_load_dwordx4 {ar(ADN,4)}, v14, {sp(WDP)}")
    def attention(L):
        n = f"l{L}"
        def max16(dst, S, first):
            if first:
                I(f"v_max3_f32 v{dst}, v{S}, v{S+1}, v{S+2}"); rest = list(range(3, 16))
            else: rest = list(range(16))
            while rest:
                if len(rest) >= 2:
                    I(f"v_max3_f32 v{dst}, v{dst}, v{S+rest[0]}, v{S+rest[1]}"); rest = rest[2:]
                else:
                    I(f"v_max_f32 v{dst}, v{dst}, v{S+rest[0]}"); rest = rest[1:]
        def prime():
            I(f"ds_read_b128 {vr(KB,4)}, v{AK}")
            I(f"ds_read_b128 {vr(VA[0],4)}, v{AV}")
            I(f"ds_read_b128 {vr(VA[0]+4,4)}, v{AV} offset:512")
            I("s_waitcnt lgkmcnt(0)")
            mfma(S0, vr(KB,4), vr(Q,4), None if ENV("C0") else NEG)
            I(f"ds_read_b128 {vr(KB,4)}, v{AK} offset:1024")
            k.nop(11)
        def setup():
            halfsum("v_max_f32", 2, 7)
            for r in range(16): I(f"v_sub_f32 v{NEG+r}, 0, v2")
            I(f"v_mov_b32 v{AK}, v3")
            I(f"v_mov_b32 v{AV}, v{VBASE}")
            for r in range(16): I(f"v_mov_b32 v{O+r}, 0")
            for r in range(4): I(f"v_mov_b32 v{P1+r}, 0")
            for r in range(4): I(f"v_mov_b32 v{VA[1]+4+r}, 0")
            prime()
        def tile(u, extra=None, nokread=False, noqk=False, novread=False, first=False):
            extra = extra or {}
            if "p" in extra: I(f"s_setprio {extra['p']}")
            Sc, Sn = (S0, S1) if u % 2 == 0 else (S1, S0)
            Vc, Vo = VA[u % 2], VA[1 - u % 2]
            E = lambda r: I(f"v_exp_f32 v{Sc+r}, v{Sc+r}")
            Cv = lambda P, r, b: I(f"v_cvt_pk_bf16_f32 v{P+r}, v{Sc+b+2*r}, v{Sc+b+2*r+1}")
            E(0); E(1)
            if not first: mfma(O, vr(Vo+4,4), vr(P1,4), O)
            if 0 in extra: extra[0]()
            E(2); E(3); E(4)
            I("s_waitcnt lgkmcnt(0)")
            E(5)
            if not noqk: mfma(Sn, vr(KB,4), vr(Q,4), None if ENV("C0") else NEG)
            E(6)
            if not nokread: I(f"ds_read_b128 {vr(KB,4)}, v{AK} offset:{(u+2)*1024}")
            E(7)
            if not novread: I(f"ds_read_b128 {vr(Vo,4)}, v{AV} offset:{(u+1)*1024}")
            for r in range(4): Cv(P0, r, 0)
            E(8)
            if not novread: I(f"ds_read_b128 {vr(Vo+4,4)}, v{AV} offset:{(u+1)*1024+512}")
            E(9)
            mfma(O, vr(Vc,4), vr(P0,4), None if first else O)
            if 1 in extra: extra[1]()
            for r in range(10, 16): E(r)
            for r in range(4): Cv(P1, r, 8)
        def bump():
            I(f"v_add_u32 v{AK}, 0x2000, v{AK}")
            I(f"v_add_u32 v{AV}, v{AVS}, v{AV}")
        prime()
        k.stamp(name=f"x{n}_setup")
        I("s_setprio 3")
        def publish_kv():
            vm.drain()
            I("s_barrier")
            I(f"s_cmp_lg_u32 s{WAVE}, 0")
            I(f"s_cbranch_scc1 {lab(n+'_noflag')}")
            I(f"v_mov_b32 v14, s{TAG}")
            I("s_mov_b64 exec, 1")
            I(f"global_store_dword v9, v14, {sp(WSP)} sc1")
            exec_all()
            k.L(lab(n + "_noflag"))
        pl = f"global_load_dword v14, v8, {sp(WSP)} sc1"
        def poll_issue():
            I("s_mov_b64 exec, 0xff"); I(pl); exec_all()
        def poll_check():
            I("s_mov_b64 exec, 0xff")
            if L == 1:
                I(f"s_lshr_b32 s{A0}, s{IDX}, 8")
                I(f"s_bitset0_b32 exec_lo, s{A0}")
            poll(n + "_pk", [pl], [14], first_issued=True)
            exec_all()
        def stg(sl): return ARS + 8*(sl-1) if L == 0 else 64 + 8*((sl-1) % 6)
        def rload(sl):
            if L == 1:
                I(f"s_lshr_b32 s{A0+1}, s{IDX}, 8")
                I(f"s_sub_u32 s{A0+1}, s{A0+1}, s{QB}")
                I(f"s_and_b32 s{A0+1}, s{A0+1}, 7")
                if sl == 7:
                    I(f"s_cmp_eq_u32 s{A0+1}, 0")
                    I(f"s_cselect_b32 s{A0}, 7, s{A0+1}")
                    I("s_mov_b64 exec, 0xff")
                    poll(n + "_pk7", [pl], [14], first_issued=True)
                    exec_all()
                else:
                    I(f"s_sub_u32 s{A0+1}, s{A0+1}, 1")
                    I(f"s_cmp_lt_u32 s{A0+1}, {sl}")
                    I(f"s_cselect_b32 s{A0}, {sl+1}, {sl}")
                I(f"s_add_u32 s{A0}, s{QB}, s{A0}")
            else:
                I(f"s_add_u32 s{A0}, s{QB}, {sl}")
            I(f"s_and_b32 s{A0}, s{A0}, 7")
            I(f"s_sub_u32 s{A0}, s{A0}, s{QB}")
            I(f"s_lshl_b32 s{A0}, s{A0}, 13")
            I(f"v_add_u32 v13, s{A0}, v4")
            vm.issue(f"global_load_dwordx4 {ar(stg(sl),4)}, v13, {sp(KB_)} sc1", f"r{sl}")
            vm.issue(f"global_load_dwordx4 {ar(stg(sl)+4,4)}, v13, {sp(VB_)} sc1", f"r{sl}")
        def rwrite(sl):
            if f"r{sl}" in vm.q: vm.wait(f"r{sl}")
            I(f"ds_write_b128 v15, {ar(stg(sl),4)} offset:{sl*8192}")
            I(f"ds_write_b128 v5, {ar(stg(sl)+4,4)} offset:{sl*8192}")
        PUB, PI, PC = [int(x) for x in ENV("POLL", "1,4,5").split(",")]
        PR = {}
        if ENV("PBAL", "1") == "1":
            PR = {4: 2, 6: 1, 7: 0, 8: 3, 11: 2, 12: 1, 13: 0, 14: 3, 18: 2, 20: 1, 21: 0, 22: 3, 30: 2, 34: 1, 36: 0, 38: 3}
        for u in range(8):
            ex = {}
            if u == PUB: ex[0] = publish_kv
            if u == PI: ex[0] = poll_issue
            if u == PC: ex[0] = lambda: (poll_check(), rload(1), rload(2))
            if u in PR: ex["p"] = PR[u]
            tile(u, ex, nokread=(u >= 6), noqk=(u == 7), novread=(u == 7), first=(u == 0))
        bump()
        k.stamp(name=f"x{n}_ch0a")
        rwrite(1)
        B2 = ENV("B2", "0") == "1"
        if B2: rwrite(2)
        bar()
        k.stamp(name=n + "_c0")
        prime()
        def wo_addr():
            I(f"s_lshl_b32 s{A0}, s{WAVE}, 16")
            I(f"s_lshl_b32 s{A0+1}, s{CG}, 7")
            I(f"s_add_u32 s{A0}, s{A0}, s{A0+1}")
            I("v_lshrrev_b32 v2, 3, v1")
            I(f"v_lshl_add_u32 v2, v2, 10, s{A0}")
            I("v_and_b32 v14, 7, v1")
            I("v_lshl_add_u32 v2, v14, 4, v2")
        def wo_load(i):
            vm.issue(f"global_load_dwordx4 {ar(AWO+4*i,4)}, v2, {sp(WOP)}", "wo")
            if i < 7: I("v_add_u32 v2, 0x2000, v2")
        def misc_loads():
            I(f"s_lshl_b32 s{A0}, s{KG}, 9")
            I(f"s_lshl_b32 s{A0+1}, s{OT}, 15")
            I(f"s_add_u32 s{A0}, s{A0}, s{A0+1}")
            I("v_and_b32 v10, 15, v1")
            I(f"v_lshl_add_u32 v{VXO}, v10, 4, s{A0}")
            I("v_lshrrev_b32 v10, 5, v1")
            I(f"v_lshl_add_u32 v{VXO}, v10, 8, v{VXO}")
            I("v_bfe_u32 v10, v1, 4, 1")
            I(f"v_lshl_add_u32 v{VXO}, v10, 14, v{VXO}")
            I("v_and_b32 v10, 31, v1")
            I(f"s_lshl_b32 s{A0}, s{OT}, 5")
            I(f"v_add_u32 v{VTK}, s{A0}, v10")
            I("v_lshrrev_b32 v10, 5, v1")
            I(f"s_lshl_b32 s{A0}, s{KG}, 5")
            I(f"v_lshl_add_u32 v14, v10, 3, s{A0}")
            vm.issue(f"global_load_dwordx2 {vr(WR,2)}, v14, {sp(WRP)}")
            vm.issue(f"global_load_dwordx2 {vr(WR+2,2)}, v14, {sp(WRP)} offset:16")
            I(f"v_lshl_add_u32 v14, v{VTK}, 10, v14")
            vm.issue(f"global_load_dwordx2 {vr(XG,2)}, v14, {sp(X0P)}")
            vm.issue(f"global_load_dwordx2 {vr(XG+2,2)}, v14, {sp(X0P)} offset:16")
        sched = {
            1: {(0,0): lambda: rload(3), (3,0): lambda: rload(4), (4,0): lambda: rwrite(2), (6,0): bar},
            2: {(0,0): lambda: rload(5), (3,0): lambda: rload(6), (4,0): lambda: rwrite(3), (5,0): lambda: rwrite(4), (6,0): bar},
            3: {(0,0): lambda: rload(7)},
            4: {(0,0): lambda: rwrite(5), (1,0): lambda: rwrite(6), (2,0): lambda: rwrite(7), (6,0): bar},
        }
        def touches():
            I(f"s_cmp_ge_u32 s{WAVE}, 5")
            I(f"s_cbranch_scc1 {lab('t_done')}")
            I(f"s_cmp_ge_u32 s{WAVE}, 2")
            I(f"s_cbranch_scc1 {lab('t_lin')}")
            I(f"s_mul_i32 s{A0}, s{QB}, 7")
            I(f"s_lshr_b32 s{A0}, s{A0}, 1")
            I(f"s_lshl_b32 s{A0}, s{A0}, 7")
            I(f"s_mul_i32 s{A0+1}, s{HEAD}, {16*3584}")
            I(f"s_add_u32 s{A0}, s{A0}, s{A0+1}")
            I("v_lshrrev_b32 v14, 2, v1")
            I("v_mul_u32_u24 v14, 3584, v14")
            I("v_and_b32 v10, 3, v1")
            I("v_lshl_add_u32 v14, v10, 7, v14")
            I(f"v_add_u32 v14, s{A0}, v14")
            I(f"s_cmp_eq_u32 s{WAVE}, 0")
            I(f"s_cselect_b32 s{T0}, s{WGP}, s{WUP}")
            I(f"s_cselect_b32 s{T0+1}, s{WGP+1}, s{WUP+1}")
            I(f"s_branch {lab('t_go')}")
            k.L(lab("t_lin"))
            I(f"s_lshl_b32 s{A0}, s{CGP}, 13")
            I(f"s_lshl_b32 s{A0+1}, s{HEAD}, 14")
            I(f"s_and_b32 s{A0+2}, s{WAVE}, 1")
            I(f"s_lshl_b32 s{A0+2}, s{A0+2}, 13")
            I(f"s_add_u32 s{A0+1}, s{A0+1}, s{A0+2}")
            I(f"s_cmp_eq_u32 s{WAVE}, 2")
            I(f"s_cselect_b32 s{A0}, s{A0}, s{A0+1}")
            I(f"s_cselect_b32 s{T0}, s{WDP}, s{WOP}")
            I(f"s_cselect_b32 s{T0+1}, s{WDP+1}, s{WOP+1}")
            I(f"v_lshl_add_u32 v14, v1, 7, s{A0}")
            k.L(lab("t_go"))
            I(f"global_load_dword v9, v14, {sp(T0)}")
            k.L(lab("t_done"))
        NU = 5
        if B2:
            del sched[1][(4,0)]; del sched[1][(6,0)]
            for t_ in (11, 12, 13, 14, 18, 20, 21): PR.pop(t_, None)
            PR.update({15: 2, 19: 1, 21: 0})
        if L == 0:
            NU = 6
            def pretouch():
                if ENV("PT") == "1":
                    I(f"s_cmp_lg_u32 s{WAVE}, 6")
                    I(f"s_cbranch_scc1 {lab('pt_done')}")
                    I("v_mul_u32_u24 v14, 0x50000, v1")
                    I(f"global_load_dword v11, v14, {sp(WSP)}")
                    I("v_lshlrev_b32 v14, 15, v1")
                    I(f"global_load_dword v11, v14, {sp(OUTP)}")
                    k.L(lab("pt_done"))
                else:
                    I("v_mul_u32_u24 v14, 0xa000, v0")
                    I(f"global_load_dword v11, v14, {sp(WSP)}")
                    I("v_lshlrev_b32 v14, 12, v0")
                    I(f"global_load_dword v11, v14, {sp(OUTP)}")
            if ENV("PT"): sched[2][(7,0)] = pretouch
            if ENV("TL", "1") == "0":
                sched[2][(6,1)] = touches
                sched[3][(3,0)] = wo_addr
                for i in range(4): sched[3][(4 + i, 0)] = (lambda i=i: wo_load(i))
                for i, u in enumerate((3, 4, 5, 7)): sched[4][(u, 0)] = (lambda i=i: wo_load(4 + i))
                sched[5] = {(0,0): lambda: ffn_gu(0), (2,0): misc_loads, (4,0): lambda: ffn_gu(1), (6,0): ffn_dn}
            else:
                sched[3][(0,1)] = touches
                sched[4][(3,0)] = wo_addr
                for i, u in enumerate((4, 5, 7)): sched[4][(u, 0)] = (lambda i=i: wo_load(i))
                sched[5] = {(i, 0): (lambda i=i: wo_load(3 + i)) for i in range(5)}
                sched[5][(5,0)] = lambda: ffn_gu(0)
                sched[5][(6,0)] = lambda: ffn_gu(1)
                sched[5][(7,0)] = ffn_dn
                sched[5][(7,1)] = misc_loads
            PR[40] = 3
        else:
            sched[2][(7,0)] = poll_issue
        for c in range(1, NU):
            for u in range(8):
                ex = {sl: f for (uu, sl), f in sched[c].items() if uu == u}
                if 8*c + u in PR: ex["p"] = PR[8*c + u]
                tile(u, ex)
            bump()
            k.stamp(name=f"x{n}_ch{c}")
        I(f"s_mov_b32 s{CTR}, {NU}")
        k.lines.append(".p2align 6")
        k.L(lab(n + "_loop"))
        if ENV("PEND", "1") == "0":
            I(f"s_cmp_lt_u32 s{CTR}, 5"); I(f"s_cbranch_scc1 {lab(n+'_pd')}")
            I("s_setprio 2")
            I(f"s_cmp_lt_u32 s{CTR}, 6"); I(f"s_cbranch_scc1 {lab(n+'_pd')}")
            I("s_setprio 1")
            I(f"s_cmp_lt_u32 s{CTR}, 7"); I(f"s_cbranch_scc1 {lab(n+'_pd')}")
            I("s_setprio 0")
            k.L(lab(n + "_pd"))
            for u in range(8): tile(u)
        else:
            I(f"s_cmp_lt_u32 s{CTR}, 6"); I(f"s_cbranch_scc1 {lab(n+'_pd')}")
            I("s_setprio 2")
            I(f"s_cmp_lt_u32 s{CTR}, 7"); I(f"s_cbranch_scc1 {lab(n+'_pd')}")
            I("s_setprio 1")
            k.L(lab(n + "_pd"))
            for u in range(8):
                if u == 5:
                    I(f"s_cmp_lt_u32 s{CTR}, 7"); I(f"s_cbranch_scc1 {lab(n+'_pe')}")
                    I("s_setprio 0")
                    k.L(lab(n + "_pe"))
                tile(u)
        bump()
        I(f"s_add_u32 s{CTR}, s{CTR}, 1")
        I(f"s_cmp_lt_u32 s{CTR}, 8")
        I(f"s_cbranch_scc1 {lab(n+'_loop')}")
        mfma(O, vr(VA[1]+4,4), vr(P1,4), O)
        I("s_waitcnt lgkmcnt(0)")
        k.stamp(name=n + "_attn")
        k.nop(12)
        I(f"s_cmp_lg_u32 s{PASS}, 0")
        I(f"s_cbranch_scc1 {lab(n+'_fin')}")
        I(f"v_cmp_nge_f32 vcc, s{THR}, v{O+8}")
        k.nop(2)
        I(f"s_cbranch_vccz {lab(n+'_fin')}")
        I(f"s_mov_b32 s{PASS}, 1")
        I(f"v_mov_b32 v{AK}, v3")
        I("v_mov_b32 v2, 0xff800000")
        I(f"s_mov_b32 s{CTR}, 0")
        k.L(lab(n + "_maxloop"))
        I(f"ds_read_b128 {vr(KB,4)}, v{AK}")
        I("s_waitcnt lgkmcnt(0)")
        mfma(S0, vr(KB,4), vr(Q,4), None)
        I(f"v_add_u32 v{AK}, 0x400, v{AK}")
        k.nop(12)
        max16(2, S0, False)
        I(f"s_add_u32 s{CTR}, s{CTR}, 1")
        I(f"s_cmp_lt_u32 s{CTR}, 64")
        I(f"s_cbranch_scc1 {lab(n+'_maxloop')}")
        setup()
        I(f"s_mov_b32 s{CTR}, 0")
        I(f"s_branch {lab(n+'_loop')}")
        k.L(lab(n + "_fin"))
        I(f"v_rcp_f32 v2, v{O+8}")
        I("s_nop 0")
        for r in range(8): I(f"v_mul_f32 v{O+r}, v{O+r}, v2")
        for r in range(4): I(f"v_cvt_pk_bf16_f32 v{P0+r}, v{O+2*r}, v{O+2*r+1}")
        I(f"global_store_dwordx4 v4, {vr(P0,4)}, {sp(OB_)} sc1")

    def oproj(L):
        n = f"l{L}"
        OBf, AC, X, Y = 64, 32, 96, 16
        lane_terms()
        I(f"s_lshl_b32 s{A0}, s{KQ}, 19")
        I(f"s_lshl_b32 s{A0+1}, s{OT}, 10")
        I(f"s_add_u32 s{A0}, s{A0}, s{A0+1}")
        I(f"v_add_u32 v10, s{A0}, v3")
        I(f"s_lshl_b32 s{A0}, s{WAVE}, 13")
        I(f"s_add_u32 s{A0}, s{A0}, 0x10000")
        I(f"v_add_u32 v12, s{A0}, v3")
        I(f"s_lshl_b32 s{A0}, s{TT}, 12")
        I(f"s_lshl_b32 s{A0+1}, s{HEAD}, 7")
        I(f"s_add_u32 s{A0}, s{A0}, s{A0+1}")
        I(f"s_add_u32 s{A0}, s{A0}, {hex(FLO[L])}")
        I(f"v_mov_b32 v13, s{A0}")
        I(f"v_mov_b32 v14, s{TAG}")
        I(f"s_lshl_b32 s{A0}, s{OT}, 12")
        I(f"s_lshl_b32 s{A0+1}, s{KQ}, 10")
        I(f"s_add_u32 s{A0}, s{A0}, s{A0+1}")
        I(f"s_add_u32 s{A0}, s{A0}, {hex(FLO[L])}")
        I(f"v_lshl_add_u32 v31, v1, 7, s{A0}")
        FLW = ENV("FLW", "0") == "1"
        if not FLW:
            I(f"s_lshl_b32 s{A0}, s{QB}, 15")
            I(f"s_add_u32 s{A0}, s{A0}, {hex(FLO[L])}")
            I(f"v_lshl_add_u32 v31, v6, 7, s{A0}")
        vm.drain()
        if not FLW:
            I("s_barrier")
            I(f"s_cmp_lg_u32 s{WAVE}, 0")
            I(f"s_cbranch_scc1 {lab(n+'_nof')}")
        I("s_mov_b64 exec, 1")
        I(f"global_store_dword v13, v14, {sp(WSP)} sc1")
        exec_all()
        if not FLW: k.L(lab(n + "_nof"))
        if L == 0 and FLW: I("s_barrier")
        k.stamp(name=n + "_odrain")
        if L == 0:
            for i in range(8): I(f"ds_write_b128 v12, {ar(AWO+4*i,4)} offset:{1024*i}")
            I(f"global_load_dwordx4 v[16:19], v3, {sp(WRP)}")
            I(f"s_lshl_b32 s{A0}, s{WAVE}, 11")
            I(f"v_lshl_add_u32 v13, v1, 5, s{A0}")
            I(f"ds_write_b128 v13, {ar(AGU,4)}")
            I(f"ds_write_b128 v13, {ar(AGU+4,4)} offset:16")
            I(f"v_add_u32 v13, s{W1K}, v3")
            I(f"ds_write_b128 v13, {ar(ADN,4)} offset:16384")
            I("v_bfe_u32 v13, v1, 2, 2")
            I("v_and_b32 v14, 3, v1")
            I("v_lshl_add_u32 v12, v7, 2, v13")
            I("v_lshlrev_b32 v12, 7, v12")
            I("v_lshl_add_u32 v12, v14, 3, v12")
            I("v_bfe_u32 v15, v1, 4, 1")
            I("v_lshl_add_u32 v12, v15, 5, v12")
            I(f"s_lshl_b32 s{A0+1}, s{KQ}, 5")
            I(f"v_xor_b32 v12, s{A0+1}, v12")
            I(f"s_lshl_b32 s{A0+1}, s{KQ}, 14")
            I(f"s_add_u32 s{A0+1}, s{A0+1}, 0x10000")
            I(f"v_add_u32 v12, s{A0+1}, v12")
            I("v_xor_b32 v15, 64, v12")
            bar()
            for i in range(8):
                for b in range(2):
                    I(f"ds_read_b64_tr_b16 {ar(AWO+8*i+4*b,2)}, v{15 if b else 12} offset:{2048*i}")
                    I(f"ds_read_b64_tr_b16 {ar(AWO+8*i+4*b+2,2)}, v{15 if b else 12} offset:{2048*i+1024}")
                if i % 2 == 1: I("s_waitcnt lgkmcnt(0)")
            I("v_lshrrev_b32 v15, 4, v1")
            I("v_lshl_add_u32 v13, v15, 3, v13")
            I("v_lshlrev_b32 v13, 5, v13")
            I("v_lshl_add_u32 v13, v14, 3, v13")
            I(f"v_add_u32 v13, s{A0}, v13")
            for i in range(2):
                I(f"ds_read_b64_tr_b16 {ar(AGU+4*i,2)}, v13 offset:{1024*i}")
                I(f"ds_read_b64_tr_b16 {ar(AGU+4*i+2,2)}, v13 offset:{1024*i+128}")
            I("v_lshlrev_b32 v13, 1, v0")
            for f in range(8): I(f"ds_read_u16 a{ADN+f}, v13 offset:{16384+1024*f}")
            I("v_mov_b32 v20, 0")
            I("s_waitcnt vmcnt(0)")
            for r in range(4): I(f"v_dot2_f32_bf16 v20, v{16+r}, s{ONES}, v20")
            k.nop(1)
            allreduce("v_add_f32", 20, 21)
            I("s_nop 0")
            I(f"v_readfirstlane_b32 s{WSUM}, v20")
        NF = 0
        I(f"s_lshl_b32 s{A0}, s{OA}, 15")
        for g in range(4):
            I(f"s_xor_b32 s{A0+1}, s{KQ}, {g}")
            I(f"s_lshl_b32 s{A0+1}, s{A0+1}, 13")
            I(f"s_add_u32 s{A0+1}, s{A0+1}, s{A0}")
            I(f"v_add_u32 v{27+g}, s{A0+1}, v3")
        for i in range(4): unpack(X + 2*i, X + 2*i + 1, XG + i)
        if L == 1:
            for r in range(8): I(f"v_sub_f32 v{Y+r}, v{X+r}, v{RESM}")
            for r in range(8): I(f"v_mul_f32 v{Y+r}, v{Y+r}, v{RESR}")
            for i in range(4): I(f"v_cvt_pk_bf16_f32 v{XG+i}, v{Y+2*i}, v{Y+2*i+1}")
            for i in range(4): unpack(Y + 2*i, Y + 2*i + 1, XG + i)
            for r in range(8): I(f"v_add_f32 v{X+r}, v{X+r}, v{Y+r}")
            for i in range(4): I(f"v_cvt_pk_bf16_f32 v{XG+i}, v{X+2*i}, v{X+2*i+1}")
            for i in range(4): unpack(X + 2*i, X + 2*i + 1, XG + i)
        if L == 1:
            I("v_lshlrev_b32 v13, 2, v6")
            I(f"v_add_u32 v13, {LKY}, v13")
            I("ds_read_b32 v16, v13")
            I("s_waitcnt lgkmcnt(0)")
            for rnd in range(3):
                I("v_mov_b32 v17, v16")
                dppred("v_max_u32", 17, Q4 + ("row_half_mirror", "row_mirror"))
                swapop("v_permlane16_swap_b32", "v_max_u32", 17, 18)
                I("v_cmp_ne_u32 vcc, v17, v16")
                if rnd: I(f"v_readfirstlane_b32 s{(CA, CB_)[rnd-1]}, v17")
                else: I("s_nop 0")
                I("s_nop 0")
                I("v_cndmask_b32 v16, 0, v16, vcc")
            for c_ in (CA, CB_):
                I(f"s_and_b32 s{c_}, s{c_}, 0x7ff")
                I(f"s_sub_u32 s{c_}, 2047, s{c_}")
        if FLW:
            I("s_mov_b64 exec, 0xff")
        else:
            I(f"s_cmp_lg_u32 s{WAVE}, 0")
            I(f"s_cbranch_scc1 {lab(n+'_owait')}")
            exec_lo(-1)
            if ENV("OACK"): I("s_waitcnt vmcnt(0)")
        if ENV("PP") and not FLW:
            ppoll(n + "_po", lambda r: f"global_load_dword v{r}, v31, {sp(WSP)} sc1", 1, 0, [14, 15, 13], int(ENV("PP")))
        else:
            poll(n + "_po", [f"global_load_dword v14, v31, {sp(WSP)} sc1"], [14])
        exec_all()
        if not FLW:
            k.L(lab(n + "_owait"))
            bar()
        k.stamp(name=n + "_opoll")
        for i in range(8):
            I(f"global_load_dwordx4 {vr(OBf+4*i,4)}, v10, {sp(OB_)} sc1")
            if i < 7: I("v_add_u32 v10, 0x10000, v10")
        for i in range(8):
            I(f"s_waitcnt vmcnt({7-i+NF})")
            for b in range(2): mfma(AC + 16*b, ar(AWO+8*i+4*b,4), vr(OBf+4*i,4), AC + 16*b if i else None)
        if FLW: bar()
        k.stamp(name=n + "_omm")
        I(f"s_lshl_b32 s{A0}, s{OA}, 12")
        I(f"s_lshl_b32 s{A0+1}, s{KQ}, 10")
        I(f"s_add_u32 s{A0}, s{A0}, s{A0+1}")
        I(f"s_add_u32 s{A0}, s{A0}, {LSA}")
        I(f"v_add_u32 v13, s{A0}, v3")
        sadd64(XB_, WSP, XF[L])
        k.nop(5)
        for g in range(1, 4):
            for hf in range(2): I(f"ds_write_b128 v{27+g}, {vr(AC+8*g+4*hf,4)} offset:{2048*g+1024*hf}")
        for r in range(8): I(f"v_add_f32 v{AC+r}, v{AC+r}, v{X+r}")
        bar()
        k.stamp(name="x" + n + "_red")
        for g in range(1, 4):
            for hf in range(2): I(f"ds_read_b128 {vr(AC+8*g+4*hf,4)}, v27 offset:{2048*g+1024*hf}")
        I("s_waitcnt lgkmcnt(4)")
        for r in range(8): I(f"v_add_f32 v{AC+r}, v{AC+r}, v{AC+8+r}")
        I("s_waitcnt lgkmcnt(0)")
        for r in range(8): I(f"v_add_f32 v{AC+16+r}, v{AC+16+r}, v{AC+24+r}")
        for r in range(8): I(f"v_add_f32 v{AC+r}, v{AC+r}, v{AC+16+r}")
        for i in range(4): I(f"v_cvt_pk_bf16_f32 v{24+i}, v{AC+2*i}, v{AC+2*i+1}")
        for i in range(4): I(f"v_mov_b32 v{XG+i}, v{24+i}")
        I("v_permlane32_swap_b32 v24, v26")
        I("v_permlane32_swap_b32 v25, v27")
        I(f"global_store_dwordx4 v{VXO}, v[24:27], {sp(XB_)} sc1")
        for i in range(4):
            I(f"v_dot2_f32_bf16 v16, v{XG+i}, s{ONES}, {'v16' if i else 0}")
            I(f"v_dot2_f32_bf16 v17, v{XG+i}, v{XG+i}, {'v17' if i else 0}")
            I(f"v_dot2_f32_bf16 v18, v{XG+i}, v{WR+i}, {'v18' if i else 0}")
        k.nop(3)
        I("ds_write_b96 v13, v[16:18]")
        k.stamp(name="x" + n + "_epi")
        I("s_waitcnt vmcnt(0) lgkmcnt(0)")
        k.stamp(name="x" + n + "_xdrain")
        I("s_waitcnt vmcnt(0) lgkmcnt(0)")
        I("s_barrier")
        I(f"s_cmp_lg_u32 s{WAVE}, 0")
        I(f"s_cbranch_scc1 {lab(n+'_nost')}")
        I("v_lshlrev_b32 v13, 4, v6")
        I("v_lshl_add_u32 v13, v7, 12, v13")
        I(f"v_add_u32 v13, {LSA}, v13")
        for j in range(8): I(f"ds_read_b96 {vr(32+4*j,3)}, v13 offset:{512*j}")
        I(f"s_lshl_b32 s{A0}, s{TB}, 3")
        I(f"s_add_u32 s{A0}, s{A0}, s{CG}")
        I(f"s_lshl_b32 s{A0}, s{A0}, 10")
        I(f"s_add_u32 s{A0}, s{A0}, {hex(ST[L])}")
        I(f"v_add_u32 v13, s{A0}, v3")
        I(f"v_mov_b32 v35, s{TAG}")
        I("s_waitcnt lgkmcnt(0)")
        for j in range(1, 8):
            for c in range(3): I(f"v_add_f32 v{32+c}, v{32+c}, v{32+4*j+c}")
        I(f"global_store_dwordx4 v13, v[32:35], {sp(WSP)} sc1")
        k.L(lab(n + "_nost"))
        k.stamp(name=n + "_stpub")

    def hop_a(L, after_poll=None, before_poll=None, after_bar=None, shadow=None):
        n = f"l{L}"
        I(f"s_lshl_b32 s{A0}, s{TB}, 13")
        I(f"s_add_u32 s{A0}, s{A0}, {hex(ST[L])}")
        I(f"v_lshl_add_u32 v12, v0, 4, s{A0}")
        loads = [f"global_load_dwordx4 v[32:35], v12, {sp(WSP)} sc1"]; tags = [35]
        if ENV("HA2", "1") == "1":
            I(f"s_cmp_lg_u32 s{WAVE}, 0")
            I(f"s_cbranch_scc1 {lab(n+'_a1')}")
            if ENV("P1", "ack") == "ack":
                I("s_waitcnt vmcnt(0)")
            else:
                I(f"s_lshl_b32 s{A0+1}, s{CG}, 10")
                I(f"s_add_u32 s{A0}, s{A0}, s{A0+1}")
                I(f"s_add_u32 s{A0}, s{A0}, 1020")
                I(f"v_mov_b32 v13, s{A0}")
                exec_lo(1)
                poll(n + "_p1", [f"global_load_dword v36, v13, {sp(WSP)} sc1"], [36])
                exec_all()
            k.L(lab(n + "_a1"))
            I("s_barrier")
        if True:
            if L == 0:
                I(f"s_lshr_b32 s{A0}, s{TT}, 1")
                I(f"s_lshl_b32 s{A0}, s{A0}, 13")
                I(f"s_add_u32 s{A0}, s{A0}, {hex(ST[L] + 12)}")
                I("v_and_b32 v13, 7, v1")
                I(f"v_lshl_add_u32 v13, v13, 10, s{A0}")
                loads.append(f"global_load_dword v36, v13, {sp(WSP)} sc1"); tags.append(36)
        if before_poll: before_poll()
        for l in loads: I(l)
        if shadow: shadow()
        poll(n + "_pa", loads, tags, first_issued=True)
        I("v_lshlrev_b32 v13, 4, v0")
        I("ds_write_b96 v13, v[32:34]")
        if after_poll: after_poll()
        bar()
        k.stamp(name=n + "_hopa")
        if after_bar: after_bar()
        for c in range(8): I(f"ds_read_b96 {vr(16+4*c,3)}, v3 offset:{1024*c}")
        I("s_waitcnt lgkmcnt(0)")
        for a_, b_ in ((0,1),(2,3),(4,5),(6,7),(0,2),(4,6),(0,4)):
            for c in range(3): I(f"v_add_f32 v{16+4*a_+c}, v{16+4*a_+c}, v{16+4*b_+c}")
        rowstats(16, 17, RESM, 20, RESR)
        I(f"s_or_b32 s{A0}, s{CG}, s{WAVE}")
        I(f"s_cmp_lg_u32 s{A0}, 0")
        I(f"s_cbranch_scc1 {lab(n+'_nokey')}")
        I(f"v_fma_f32 v18, -v{RESM}, s{WSUM}, v18")
        I(f"v_mul_f32 v18, v18, v{RESR}")
        bf16r(18)
        I("v_ashrrev_i32 v19, 31, v18")
        I("v_or_b32 v19, 0x80000000, v19")
        I("v_xor_b32 v19, v19, v18")
        I("v_and_b32 v19, 0xffff0000, v19")
        I(f"s_lshl_b32 s{A0}, s{TB}, 6")
        I(f"s_sub_u32 s{A0}, 2047, s{A0}")
        I(f"v_sub_u32 v20, s{A0}, v1")
        I("v_or_b32 v20, v19, v20")
        I("v_mov_b32 v24, v20")
        allreduce("v_max_u32", 24, 25)
        I("v_cmp_eq_u32 vcc, v24, v20")
        I(f"s_lshl_b32 s{A0}, s{TB}, 7")
        I(f"s_add_u32 s{A0}, s{A0}, {hex(KEY[L])}")
        I(f"s_ff1_i32_b64 s{A0+1}, vcc")
        I(f"v_lshl_add_u32 v13, v1, 12, s{A0}")
        I(f"v_mov_b32 v27, s{TAG}")
        I(f"v_readlane_b32 s{A0+2}, v{RESM}, s{A0+1}")
        I(f"v_readlane_b32 s{A0+3}, v{RESR}, s{A0+1}")
        I("s_mov_b64 exec, 0xff")
        I("s_nop 0")
        I(f"v_mov_b32 v25, s{A0+2}")
        I(f"v_mov_b32 v26, s{A0+3}")
        I(f"global_store_dwordx4 v13, v[24:27], {sp(WSP)} sc1")
        exec_all()
        k.L(lab(n + "_nokey"))
        I(f"v_mov_b32 v16, v{RESM}")
        I(f"v_mov_b32 v17, v{RESR}")
        I(f"s_cmp_eq_u32 s{OA}, 1")
        I("s_cselect_b64 vcc, -1, 0")
        I(f"v_permlane32_swap_b32 v{RESM}, v16")
        I(f"v_permlane32_swap_b32 v{RESR}, v17")
        I(f"v_cndmask_b32 v{RESM}, v{RESM}, v16, vcc")
        I(f"v_cndmask_b32 v{RESR}, v{RESR}, v17, vcc")
        k.stamp(name="x" + n + "_key")

    FT = 76
    SR = 96
    stat_loads = [f"global_load_dwordx4 {vr(SR+4*i,4)}, v11, {sp(WSP)} offset:{1024*i} sc1" for i in range(4)]
    stat_tags = [SR + 4*i + 3 for i in range(4)]
    def own_stats():
        for i in range(1, 4):
            for c in range(2): I(f"v_add_f32 v{SR+c}, v{SR+c}, v{SR+4*i+c}")
        halfsum("v_add_f32", SR, SR + 2)
        halfsum("v_add_f32", SR + 1, SR + 2)
        rowstats(SR, SR + 1, MT[0], SR + 2, SR + 3)
        I(f"v_mov_b32 v{AT[0]}, s{CEPS}")
        I(f"v_add_f32 v{SR+3}, 1.0, v{SR+3}")
        I(f"v_mul_f32 v{SR+2}, v{SR+2}, v{SR+3}")
        I(f"v_fmac_f32 v{AT[0]}, v{SR+2}, v{SR+3}")
        I(f"v_rsq_f32 v{AT[0]}, v{AT[0]}")
        I(f"v_mov_b32 v{MT[1]}, v{MT[0]}")
        I(f"v_mul_f32 v{AT[0]}, v{AT[0]}, v{SR+3}")
        I(f"v_mov_b32 v{AT[1]}, v{AT[0]}")
        I(f"v_permlane16_swap_b32 v{MT[0]}, v{MT[1]}")
        I("s_nop 0")
        I(f"v_permlane16_swap_b32 v{AT[0]}, v{AT[1]}")
    def key_load(L):
        return f"global_load_dwordx4 {vr(FT,4)}, v{FT+4}, {sp(WSP)} sc1"
    def hop_b_issue(L, sfx=""):
        I(f"s_lshl_b32 s{A0}, s{QB}, 12")
        I(f"s_add_u32 s{A0}, s{A0}, {hex(KEY[L])}")
        I(f"v_lshl_add_u32 v{FT+4}, v6, 7, s{A0}")
        I(f"s_cmp_lg_u32 s{WAVE}, 0")
        I(f"s_cbranch_scc1 {lab(f'l{L}_nki{sfx}')}")
        I(key_load(L))
        k.L(lab(f"l{L}_nki{sfx}"))
    def hop_b(L, role=""):
        n = f"l{L}{role}"
        I(f"v_mov_b32 v{FT+6}, {LFF}")
        I(f"s_cmp_lg_u32 s{WAVE}, 0")
        I(f"s_cbranch_scc1 {lab(n+'_kw')}")
        keepq = list(vm.q)
        poll(n + "_pb", [key_load(L)], [FT + 3], first_issued=True)
        vm.q = keepq
        if L == 0:
            I(f"v_lshlrev_b32 v{FT+5}, 2, v6")
            I(f"v_add_u32 v{FT+5}, {LKY}, v{FT+5}")
            I(f"ds_write_b32 v{FT+5}, v{FT}")
        I(f"v_mov_b32 v{FT+5}, v{FT}")
        dppred("v_max_u32", FT + 5, Q4 + ("row_half_mirror", "row_mirror"))
        swapop("v_permlane16_swap_b32", "v_max_u32", FT + 5, FT + 7)
        I(f"v_cmp_eq_u32 vcc, v{FT+5}, v{FT}")
        I("s_mov_b64 exec, vcc")
        I(f"ds_write_b96 v{FT+6}, {vr(FT,3)}")
        exec_all()
        k.L(lab(n + "_kw"))
        bar()
        I(f"ds_read_b96 {vr(FT,3)}, v{FT+6}")
        I("s_waitcnt lgkmcnt(0)")
        I(f"v_readfirstlane_b32 s{IDX}, v{FT}")
        I(f"v_readfirstlane_b32 s{RM}, v{FT+1}")
        I(f"v_readfirstlane_b32 s{RR}, v{FT+2}")
        I(f"s_and_b32 s{RS_}, s{IDX}, 0xffff0000")
        I(f"s_and_b32 s{IDX}, s{IDX}, 0x7ff")
        I(f"s_sub_u32 s{IDX}, 2047, s{IDX}")
        I(f"s_ashr_i32 s{A0}, s{RS_}, 31")
        I(f"s_not_b32 s{A0}, s{A0}")
        I(f"s_or_b32 s{A0}, s{A0}, 0x80000000")
        I(f"s_xor_b32 s{RS_}, s{RS_}, s{A0}")
        I(f"s_and_b32 s{RS_}, s{RS_}, 0xffff0000")
        if L == 1:
            I(f"s_cmp_eq_u32 s{IDX}, s{CA}")
            I(f"s_cselect_b32 s{YSEL}, 1, 0")
            I(f"s_cmp_eq_u32 s{IDX}, s{CB_}")
            I(f"s_cselect_b32 s{YSEL}, 2, s{YSEL}")
            I(f"s_cmp_lg_u32 s{YSEL}, 0")
            I(f"s_cbranch_scc1 {lab('hit')}")
        I(f"s_lshr_b32 s{A0}, s{IDX}, 4")
        I(f"s_lshl_b32 s{A0}, s{A0}, 14")
        I(f"s_and_b32 s{A0+1}, s{IDX}, 15")
        I(f"s_lshl_b32 s{A0+1}, s{A0+1}, 4")
        I(f"s_add_u32 s{A0}, s{A0}, s{A0+1}")
        I("s_cmp_ge_u32 s2, 224")
        I(f"s_cbranch_scc1 {lab(n+'_frow')}")
        I(f"s_lshl_b32 s{A0+1}, s{WAVE}, 11")
        I(f"s_add_u32 s{A0}, s{A0}, s{A0+1}")
        I(f"v_and_b32 v{FT+4}, 48, v1")
        I(f"v_lshl_add_u32 v{FT+4}, v{FT+4}, 4, s{A0}")
        I(f"v_add_u32 v{FT+5}, 0x400, v{FT+4}")
        I(f"s_branch {lab(n+'_rowld')}")
        k.L(lab(n + "_frow"))
        I(f"s_sub_u32 s{A0+1}, s2, 224")
        I(f"s_lshl_b32 s{A0+1}, s{A0+1}, 9")
        I(f"s_add_u32 s{A0}, s{A0}, s{A0+1}")
        I(f"v_bfe_u32 v{FT+4}, v1, 3, 1")
        I(f"v_lshl_add_u32 v{FT+4}, v{FT+4}, 8, s{A0}")
        I(f"v_mov_b32 v{FT+5}, v{FT+4}")
        k.L(lab(n + "_rowld"))
        vm.issue(f"global_load_dwordx4 {vr(FT+8,4)}, v{FT+4}, {sp(XB_)} sc1", "row")
        vm.issue(f"global_load_dwordx4 {vr(FT+12,4)}, v{FT+5}, {sp(XB_)} sc1", "row")
    def slice1(L):
        n = f"l{L}"
        XR = FT + 8
        I(f"v_mov_b32 v{FT+2}, s{RM}")
        I(f"v_mul_f32 v{FT+2}, s{RR}, v{FT+2}")
        I(f"v_and_b32 v{FT+4}, 48, v1")
        I(f"s_lshl_b32 s{A0}, s{WAVE}, 6")
        I(f"s_add_u32 s{A0}, s{A0}, {LFF + 256}")
        I(f"v_add_u32 v{FT+4}, s{A0}, v{FT+4}")
        yp_addr(FT + 5, L)
        I(f"v_and_b32 v{FT+6}, 15, v1")
        I(f"v_lshlrev_b32 v{FT+6}, 2, v{FT+6}")
        I(f"v_add_u32 v{FT+6}, {LFF + 256}, v{FT+6}")
        for f in range(8): I(f"v_accvgpr_read_b32 v{FT+20+f}, a{ADN+f}")
        for f in range(8): I(f"v_lshlrev_b32 v{FT+20+f}, 16, v{FT+20+f}")
        vm.wait("row")
        k.stamp(name="x" + n + "_row")
        I("s_cmp_ge_u32 s2, 224")
        I(f"s_cbranch_scc1 {lab(n+'_s1skip')}")
        for i in range(8):
            t0 = FT + 16 + 2*(i & 1)
            unpack(t0, t0 + 1, XR + i)
            I(f"v_fma_f32 v{t0}, v{t0}, s{RR}, -v{FT+2}")
            I(f"v_fma_f32 v{t0+1}, v{t0+1}, s{RR}, -v{FT+2}")
            I(f"v_cvt_pk_bf16_f32 v{XR+i}, v{t0}, v{t0+1}")
        k.nop(2)
        I(f"v_mfma_f32_16x16x32_bf16 {vr(FT+16,4)}, {ar(AGU,4)}, {vr(XR,4)}, 0")
        I(f"v_mfma_f32_16x16x32_bf16 {vr(FT+16,4)}, {ar(AGU+4,4)}, {vr(XR+4,4)}, {vr(FT+16,4)}")
        I("s_mov_b32 exec_lo, 0x00010001")
        I("s_mov_b32 exec_hi, 0x00010001")
        k.nop(6)
        I(f"ds_write_b128 v{FT+4}, {vr(FT+16,4)}")
        exec_all()
        bar()
        k.L(lab(n + "_s1skip"))
    def slice2(L):
        n = f"l{L}"
        I("s_cmp_ge_u32 s2, 224")
        I(f"s_cbranch_scc1 {lab(n+'_s2skip')}")
        for i in range(8): I(f"ds_read_b32 v{FT+8+i}, v{FT+6} offset:{64*i}")
        I("s_waitcnt lgkmcnt(0)")
        g = FT + 8
        for a_, b_ in ((0,1),(2,3),(4,5),(6,7),(0,2),(4,6),(0,4)): I(f"v_add_f32 v{g+a_}, v{g+a_}, v{g+b_}")
        bf16r(g)
        t = FT
        I(f"v_mul_f32 v{t}, {hex(f2u(-LOG2E))}, v{g}")
        I(f"v_exp_f32 v{t}, v{t}")
        I("s_nop 0")
        I(f"v_add_f32 v{t}, 1.0, v{t}")
        I(f"v_rcp_f32 v{t}, v{t}")
        I("s_nop 0")
        I(f"v_mul_f32 v{t}, v{t}, v{g}")
        bf16r(t)
        k.nop(2)
        I(f"v_mul_f32_dpp v{t}, v{g}, v{t} row_ror:8 row_mask:0xf bank_mask:0xf")
        bf16r(t)
        k.nop(1)
        for f in range(8): I(f"v_readlane_b32 s{A0+f}, v{t}, {f}")
        I(f"v_mul_f32 v{FT+2}, s{A0}, v{FT+20}")
        I(f"v_mul_f32 v{FT+3}, s{A0+1}, v{FT+21}")
        for f in range(2, 8): I(f"v_fmac_f32 v{FT+2+(f&1)}, s{A0+f}, v{FT+20+f}")
        I(f"v_add_f32 v{FT+2}, v{FT+2}, v{FT+3}")
        I(f"v_min_u32 v{FT+2}, 0xfffffffe, v{FT+2}")
        I(f"global_store_dword v{FT+5}, v{FT+2}, {sp(WSP)} sc1")
        k.L(lab(n + "_s2skip"))
    def x_elem(XR, t6):
        I(f"v_bfe_u32 v{t6}, v1, 1, 1")
        I(f"v_cmp_eq_u32 vcc, 1, v{t6}")
        I(f"v_bfe_u32 v{t6}, v1, 2, 1")
        I("s_nop 0")
        I(f"v_cndmask_b32 v{XR}, v{XR}, v{XR+1}, vcc")
        I(f"v_cndmask_b32 v{XR+2}, v{XR+2}, v{XR+3}, vcc")
        I(f"v_cmp_eq_u32 vcc, 1, v{t6}")
        I(f"v_and_b32 v{t6}, 1, v1")
        I("s_nop 0")
        I(f"v_cndmask_b32 v{XR}, v{XR}, v{XR+2}, vcc")
        I(f"v_cmp_eq_u32 vcc, 1, v{t6}")
        unpack(XR + 1, XR + 2, XR)
        I(f"v_cndmask_b32 v{XR}, v{XR+1}, v{XR+2}, vcc")
    def gather(name, bufs, B, ldsoff, light=True):
        I(f"s_sub_u32 s{A0}, s2, 224")
        I(f"s_mul_i32 s{A0+1}, s{A0}, {224*64}")
        I(f"s_add_u32 s{A0+1}, s{A0+1}, {hex(bufs[0]) if isinstance(bufs[0], int) else bufs[0]}")
        I(f"v_min_u32 v{B}, 447, v0")
        I(f"v_lshl_add_u32 v{B}, v{B}, 4, s{A0+1}")
        I(f"v_add_u32 v{B+1}, {448*16}, v{B}")
        for j in range(1, len(bufs)):
            I(f"v_add_u32 v{B+2*j}, {hex(bufs[j] - bufs[0])}, v{B}")
            I(f"v_add_u32 v{B+2*j+1}, {hex(bufs[j] - bufs[0])}, v{B+1}")
        Y_ = B + 8; nb = len(bufs)
        keepq = list(vm.q)
        def ychk():
            I(f"v_max3_u32 v{B+4}, v{Y_}, v{Y_+1}, v{Y_+2}")
            for r in range(3, 8*nb - 1, 2): I(f"v_max3_u32 v{B+4}, v{B+4}, v{Y_+r}, v{Y_+r+1}")
            I(f"v_max_u32 v{B+4}, v{B+4}, v{Y_+8*nb-1}")
            I(f"v_cmp_eq_u32 vcc, -1, v{B+4}")
        if light:
            I("s_mov_b64 exec, 1")
            poll(name + "_pl", [f"global_load_dword v{Y_}, v{B+2*nb-1}, {sp(WSP)} sc1"], [0], check=lambda: I(f"v_cmp_eq_u32 vcc, -1, v{Y_}"))
            exec_all()
        poll(name + "_pf", [f"global_load_dwordx4 {vr(Y_+4*j,4)}, v{B+j}, {sp(WSP)} sc1" for j in range(2*nb)], [0], check=ychk)
        vm.q = keepq
        for j in range(nb):
            for c in range(4): I(f"v_add_f32 v{Y_+8*j+c}, v{Y_+8*j+c}, v{Y_+8*j+4+c}")
        for m in ("row_shr:4", "row_shr:8"):
            k.nop(1)
            for j in range(nb):
                for c in range(4): I(f"v_add_f32_dpp v{Y_+8*j+c}, v{Y_+8*j+c}, v{Y_+8*j+c} {m} row_mask:0xf bank_mask:0xf bound_ctrl:0")
        for sw in ("v_permlane16_swap_b32", "v_permlane32_swap_b32"):
            for j in range(nb):
                for c in range(4): I(f"v_mov_b32 v{Y_+8*j+4+c}, v{Y_+8*j+c}")
            k.nop(1)
            for j in range(nb):
                for c in range(4): I(f"{sw} v{Y_+8*j+c}, v{Y_+8*j+4+c}")
            for j in range(nb):
                for c in range(4): I(f"v_add_f32 v{Y_+8*j+c}, v{Y_+8*j+c}, v{Y_+8*j+4+c}")
        I(f"v_and_b32 v{B+4}, 3, v1")
        I(f"s_lshl_b32 s{A0+1}, s{WAVE}, 6")
        I(f"s_add_u32 s{A0+1}, s{A0+1}, {ldsoff}")
        I(f"v_lshl_add_u32 v{B+4}, v{B+4}, 4, s{A0+1}")
        exec_lo("0xf000")
        for j in range(nb): I(f"ds_write_b128 v{B+4}, {vr(Y_+8*j,4)} offset:{512*j}")
        exec_all()
    def finish_row(L, XR, rd):
        n = f"l{L}"
        Y_ = FT + 16
        for i in range(7): I(f"ds_read_b32 v{Y_+i}, v{rd} offset:{64*i}")
        t = FT
        I(f"v_mov_b32 v{t}, {hex(f2u(-LOG2E))}")
        I(f"v_mul_f32 v{t}, s{RS_}, v{t}")
        I(f"v_exp_f32 v{t}, v{t}")
        I(f"v_subrev_f32 v{t+1}, s{RM}, v{XR}")
        I(f"v_add_f32 v{t}, 1.0, v{t}")
        I(f"v_rcp_f32 v{t}, v{t}")
        I(f"v_mul_f32 v{t+1}, s{RR}, v{t+1}")
        bf16r(t); bf16r(t + 1)
        I("s_waitcnt lgkmcnt(0)")
        for a_, b_ in ((0,1),(2,3),(4,5),(0,2),(4,6),(0,4)): I(f"v_add_f32 v{Y_+a_}, v{Y_+a_}, v{Y_+b_}")
        bf16r(Y_)
        I(f"v_mul_f32 v{Y_}, v{Y_}, v{t}")
        bf16r(Y_)
        I(f"v_add_f32 v{Y_}, v{Y_}, v{t+1}")
        bf16r(Y_)
        I(f"v_add_f32 v{Y_}, v{Y_}, v{XR}")
        I(f"v_cvt_pk_bf16_f32 v{Y_}, v{Y_}, v{Y_}")
        I(f"s_sub_u32 s{A0}, s2, 224")
        if L == 1:
            I(f"s_lshl_b32 s{A0+1}, s{IDX}, 10")
            I(f"s_lshl_b32 s{A0}, s{A0}, 5")
            I(f"s_add_u32 s{A0}, s{A0}, s{A0+1}")
            I(f"v_lshl_add_u32 v{FT+4}, v1, 1, s{A0}")
            exec_lo("0xffff")
            I(f"global_store_short v{FT+4}, v{Y_}, {sp(OUTP)}")
        else:
            I(f"v_and_b32 v{Y_}, 0xffff, v{Y_}")
            k.nop(2)
            for j, qp in ((1, 1), (2, 2), (3, 3)):
                I(f"v_mov_b32_dpp v{Y_+j}, v{Y_} quad_perm:[{qp},{qp},{qp},{qp}] row_mask:0xf bank_mask:0xf")
            I(f"v_lshl_or_b32 v{Y_}, v{Y_+1}, 16, v{Y_}")
            I(f"v_lshl_or_b32 v{Y_+1}, v{Y_+3}, 16, v{Y_+2}")
            I(f"v_mov_b32 v{Y_+2}, s{TAG}")
            I(f"s_lshl_b32 s{A0}, s{A0}, 7")
            I(f"s_add_u32 s{A0}, s{A0}, {hex(X2R)}")
            I(f"v_lshl_add_u32 v{FT+4}, v1, 2, s{A0}")
            exec_lo("0x1111")
            I(f"global_store_dwordx4 v{FT+4}, {vr(Y_,4)}, {sp(WSP)} sc1")
        exec_all()
    def finalize(L):
        n = f"l{L}"
        I("s_cmp_lt_u32 s2, 224")
        I(f"s_cbranch_scc1 {lab(n+'_fskip')}")
        x_elem(FT + 8, FT + 6)
        gather(n, [YP[L]], FT + 12, LFF + 256, light=(L == 1 or ENV('F0L', '1') == '1'))
        I(f"v_and_b32 v{FT+5}, 15, v1")
        I(f"v_lshlrev_b32 v{FT+5}, 2, v{FT+5}")
        I(f"v_add_u32 v{FT+5}, {LFF + 256}, v{FT+5}")
        bar()
        I(f"s_cmp_lg_u32 s{WAVE}, 0")
        I(f"s_cbranch_scc1 {lab(n+'_fskip')}")
        finish_row(L, FT + 8, FT + 5)
        k.L(lab(n + "_fskip"))

    q_epilogue(0)
    k.stamp(name="l0_qepi")
    attention(0)
    oproj(0)
    def w_restore():
        I(f"s_mul_i32 s{A0}, s{WAVE}, 6144")
        I(f"s_add_u32 s{A0}, s{A0}, {LWQ}")
        I(f"v_add_u32 v14, s{A0}, v3")
        for i in range(6): I(f"ds_write_b128 v14, {ar(AWS+4*i,4)} offset:{1024*i}")
    I(f"s_lshl_b32 s{A0}, s{TT}, 15")
    I(f"v_add_u32 v8, s{A0}, v3")
    I("v_add_u32 v9, 0x4000, v8")
    I(f"s_lshr_b32 s{A0}, s{TT}, 1")
    I(f"s_lshl_b32 s{A0}, s{A0}, 13")
    I(f"s_and_b32 s{A0+1}, s{TT}, 1")
    I(f"s_lshl_b32 s{A0+1}, s{A0+1}, 9")
    I(f"s_add_u32 s{A0}, s{A0}, s{A0+1}")
    I(f"s_add_u32 s{A0}, s{A0}, {hex(ST[0])}")
    I(f"v_lshl_add_u32 v11, v6, 4, s{A0}")
    I("v_lshl_add_u32 v11, v7, 12, v11")
    RING = 6
    LOOK = int(ENV("LOOK", "4"))
    ROT1 = 67 if not PROFILE else 101
    I(f"s_lshr_b32 s{ROT1}, s{HEAD}, 1")
    def xload(ks):
        I(f"s_add_u32 s{T0}, s{ROT1}, {ks}")
        I(f"s_and_b32 s{T0}, s{T0}, 15")
        I(f"s_lshl_b32 s{T0}, s{T0}, 10")
        I(f"s_add_u32 s{T0}, s{XB_}, s{T0}")
        I(f"s_addc_u32 s{T0+1}, s{XB_+1}, 0")
        for t in range(2):
            vm.issue(f"global_load_dwordx4 {ar(64+8*(ks % RING)+4*t,4)}, v{8+t}, {sp(T0)} sc1", f"x{ks}")
    def wbase1(ks):
        I(f"s_add_u32 s{T0}, s{ROT1}, {ks}")
        I(f"s_and_b32 s{T0}, s{T0}, 15")
        I(f"s_lshl_b32 s{T0}, s{T0}, 10")
        I(f"v_add_u32 v12, s{T0}, v10")
    def first_x():
        for ks in range(LOOK): xload(ks)
    MID = int(ENV("MID", "8"))
    def x_first():
        for ks in range(min(MID, RING)): xload(ks)
    WRP_ = ENV("WRS", "pre")
    if WRP_ == "pre": w_restore()
    if WRP_ == "both": w_restore(); w_addr(15, 14)
    hop_a(0, after_bar=(x_first if ENV("XE", "0") == "1" else None),
          shadow={"pre": lambda: w_addr(15, 14), "shadow": lambda: (w_restore(), w_addr(15, 14)), "both": None}[WRP_])
    def bg_loads():
        first_x()
        for l in stat_loads: vm.issue(l, "st")
    MID = int(ENV("MID", "8"))
    RES = ENV("RES", "c")
    if ENV("XE", "0") == "0":
        for ks in range(min(MID, RING)): xload(ks)
    F0, FX = 76, 64
    pxl = [f"global_load_dwordx3 {vr(F0+4*i,3)}, v2, {sp(WSP)} offset:{256*(i>>1)+16*(i&1)} sc1" for i in range(4)]
    def px_issue():
        I(f"s_lshl_b32 s{A0}, s{WAVE}, 9")
        I(f"s_add_u32 s{A0}, s{A0}, {hex(X2R)}")
        I(f"v_lshl_add_u32 v2, v7, 7, s{A0}")
        I("v_bfe_u32 v4, v1, 4, 1")
        I("v_lshl_add_u32 v2, v4, 5, v2")
        for l in pxl: I(l)
    wbase1(0)
    wreads(WB, 12, 0)
    wbase1(1)
    wreads(WB + 12, 12, 0)
    for ks in range(16):
        QP1 = eval(ENV("QP1", "{0: 3, 6: 2, 11: 1, 14: 0}"))
        if ks in QP1: I(f"s_setprio {QP1[ks]}")
        if ks == MID:
            def resume():
                for q_ in range(MID, min(16, MID + LOOK)): xload(q_)
                for l in stat_loads: vm.issue(l, "st")
            I("s_cmp_ge_u32 s2, 224")
            I(f"s_cbranch_scc1 {lab('fin_a')}")
            hop_b_issue(0)
            hop_b(0, role="s")
            slice1(0)
            slice2(0)
            resume()
            I(f"s_branch {lab('q1_go')}")
            k.L(lab("fin_a"))
            vm.q = []
            resume()
            k.L(lab("q1_go"))
            k.stamp(name="q1_ffn")
        if ks >= MID and ks + LOOK < 16: xload(ks + LOOK)
        if 1 <= ks < MID and ks - 1 + RING < MID: xload(ks - 1 + RING)
        if ks == int(ENV("STE", "13")):
            vm.wait("st")
            keep_ = list(vm.q)
            poll("ps", stat_loads, stat_tags, chk_label="ps_c")
            vm.q = keep_
            own_stats()
            bounce_params()
        if ks == int(ENV("PXE", "14")):
            I("s_cmp_ge_u32 s2, 224")
            I(f"s_cbranch_scc1 {lab('px_e')}")
            I(f"s_lshr_b32 s{A0}, s{IDX}, 8")
            I(f"s_cmp_lg_u32 s{A0}, s{QB}")
            I(f"s_cbranch_scc1 {lab('px_e')}")
            px_issue()
            k.L(lab("px_e"))
        if ks < 14:
            wbase1(ks + 2)
            wreads(WB + 12*((ks+2)%3), 12, 0)
        vm.wait(f"x{ks}", f" lgkmcnt({12 if ks < 14 else 6 if ks == 14 else 0})")
        qmfmas(WB + 12*(ks%3), ar(64+8*(ks % RING),4), ar(64+8*(ks % RING)+4,4), ks == 0)
    k.stamp(name="q1_loop")
    I("s_cmp_lt_u32 s2, 224")
    I(f"s_cbranch_scc1 {lab('fin_b')}")
    hop_b_issue(0, "f")
    hop_b(0, role="f")
    vm.drain()
    finalize(0)
    k.L(lab("fin_b"))
    k.stamp(name="q1_fin")
    I(f"s_lshr_b32 s{A0}, s{IDX}, 8")
    I(f"s_cmp_eq_u32 s{A0}, s{QB}")
    I(f"s_cbranch_scc1 {lab('dofix')}")
    I("s_cmp_lt_u32 s2, 224")
    I(f"s_cbranch_scc1 {lab('nofix')}")
    I(f"s_branch {lab('rebounce')}")
    k.L(lab("dofix"))
    I(f"s_lshl_b32 s{A0}, s{WAVE}, 11")
    I(f"v_add_u32 v12, s{A0}, v10")
    for q in range(2): wreads(WB + 12*q, 12, q)
    for r in range(4): I(f"v_mov_b32 v{72+r}, s{ONES}")
    I(f"s_lshl_b32 s{A0}, s{WAVE}, 8")
    I(f"s_add_u32 s{A0}, s{A0}, {LRD}")
    I("v_and_b32 v12, 48, v1")
    I(f"v_add_u32 v12, s{A0}, v12")
    I(f"v_mov_b32 v13, s{A0}")
    if int(ENV("PXE", "14")) < 16:
        I("s_cmp_lt_u32 s2, 224")
        I(f"s_cbranch_scc1 {lab('px_go')}")
    px_issue()
    k.L(lab("px_go"))
    poll("px", pxl, [F0 + 4*i + 2 for i in range(4)], first_issued=True)
    for i in range(4):
        I(f"v_mov_b32 v{FX+2*i}, v{F0+4*i}")
        I(f"v_mov_b32 v{FX+2*i+1}, v{F0+4*i+1}")
    I("s_waitcnt lgkmcnt(0)")
    for q in range(2):
        for sec in range(3): mfma16(F0 + 4*sec, vr(WB+12*q+4*sec,4), vr(FX+4*q,4), q == 0)
        mfma16(F0 + 12, vr(72,4), vr(FX+4*q,4), q == 0)
        mfma16(F0 + 16, vr(FX+4*q,4), vr(FX+4*q,4), q == 0)
    I("s_mov_b32 exec_lo, 0x00010001"); I("s_mov_b32 exec_hi, 0x00010001")
    k.nop(6)
    for sec in range(3): I(f"ds_write_b128 v12, {vr(F0+4*sec,4)} offset:{64*sec}")
    I(f"ds_write_b32 v13, v{F0+12} offset:192")
    I(f"ds_write_b32 v13, v{F0+16} offset:196")
    exec_all()
    I(f"s_and_b32 s{A0}, s{IDX}, 31")
    I("v_and_b32 v15, 15, v1")
    I("v_lshrrev_b32 v14, 4, v1")
    I("v_lshlrev_b32 v14, 2, v14")
    I(f"v_sub_u32 v66, s{A0}, v14")
    I(f"v_sub_u32 v67, s{A0}, v15")
    I("v_lshlrev_b32 v15, 2, v15")
    I(f"v_add_u32 v15, {LFX + 128}, v15")
    I("v_and_b32 v12, 48, v1")
    I(f"v_add_u32 v12, {LFX}, v12")
    bar()
    I(f"s_lshr_b32 s{A0}, s{IDX}, 5")
    I(f"s_cmp_lg_u32 s{A0}, s{OT}")
    I(f"s_cbranch_scc1 {lab('nores')}")
    I(f"s_lshl_b32 s{A0}, s{KG}, 7")
    I(f"s_add_u32 s{A0}, s{A0}, {hex(X2R)}")
    I(f"v_lshl_add_u32 v14, v7, 4, s{A0}")
    I(f"v_cmp_eq_u32 vcc, s{IDX}, v{VTK}")
    I(f"s_and_saveexec_b64 {sp(T2)}, vcc")
    I(f"global_load_dwordx2 {vr(XG,2)}, v14, {sp(WSP)} sc1")
    I(f"global_load_dwordx2 {vr(XG+2,2)}, v14, {sp(WSP)} offset:32 sc1")
    I(f"v_mov_b32 v{RESR}, 0")
    exec_all()
    k.L(lab("nores"))
    I(f"s_lshr_b32 s{A0}, s{IDX}, 5")
    I(f"s_cmp_lg_u32 s{A0}, s{TT}")
    I(f"s_cbranch_scc1 {lab('rebounce')}")
    sum8(LRD, LFX)
    I(f"v_mov_b32 v13, {LFX + 192}")
    for sec in range(2): I(f"ds_read_b128 {vr(F0+4*sec,4)}, v12 offset:{64*sec}")
    I("ds_read_b64 v[64:65], v13")
    I("ds_read_b32 v68, v15")
    MK = [T0, T2, A0, A0 + 2, A0 + 4, A0 + 6]
    for t in range(2):
        I(f"v_cmp_eq_u32 {sp(MK[0])}, {16*t}, v67")
        for r in range(4): I(f"v_cmp_eq_u32 {sp(MK[1+r])}, {16*t+r}, v66")
        if t == 0:
            I("s_waitcnt lgkmcnt(0)")
            rowstats(64, 65, 69, 70, 71)
        else: k.nop(1)
        for sec in range(2):
            for r in range(4): I(f"v_cndmask_b32 v{ACC+8*sec+4*t+r}, v{ACC+8*sec+4*t+r}, v{F0+4*sec+r}, {sp(MK[0])}")
        I(f"v_cndmask_b32 v{MT[t]}, v{MT[t]}, v69, {sp(MK[0])}")
        I(f"v_cndmask_b32 v{AT[t]}, v{AT[t]}, v71, {sp(MK[0])}")
        for r in range(4): I(f"v_cndmask_b32 v{ACC+16+4*t+r}, v{ACC+16+4*t+r}, v68, {sp(MK[1+r])}")
    k.L(lab("rebounce"))
    bounce_params()
    k.L(lab("nofix"))
    vm.drain()
    k.stamp(name="q1_fix")
    q_epilogue(1)
    k.stamp(name="l1_qepi")
    attention(1)
    oproj(1)
    def cand_stats():
        I(f"s_cmp_lg_u32 s{WAVE}, 1")
        I(f"s_cbranch_scc1 {lab('cs_skip0')}")
        I(f"v_mov_b32 v40, s{CA}")
        I(f"v_mov_b32 v41, s{CB_}")
        I("v_cmp_gt_u32 vcc, 8, v1")
        I("v_and_b32 v42, 7, v1")
        I("s_nop 0")
        I("v_cndmask_b32 v40, v41, v40, vcc")
        I("v_lshrrev_b32 v41, 6, v40")
        I("v_lshl_add_u32 v41, v41, 3, v42")
        I("v_and_b32 v40, 63, v40")
        I("v_lshlrev_b32 v40, 4, v40")
        I("v_lshl_add_u32 v40, v41, 10, v40")
        I(f"v_add_u32 v40, {hex(ST[1])}, v40")
        exec_lo("0xffff")
        I(f"global_load_dwordx4 v[44:47], v40, {sp(WSP)} sc1")
        exec_all()
        k.L(lab("cs_skip0"))
    def cand_stats2():
        I(f"s_cmp_lg_u32 s{WAVE}, 1")
        I(f"s_cbranch_scc1 {lab('cs_skip')}")
        exec_lo("0xffff")
        poll("pc", [f"global_load_dwordx4 v[44:47], v40, {sp(WSP)} sc1"], [47], first_issued=True)
        for m in Q4 + ("row_half_mirror",):
            k.nop(1)
            for c in range(2): I(f"v_add_f32_dpp v{44+c}, v{44+c}, v{44+c} {m} row_mask:0xf bank_mask:0xf")
        rowstats(44, 45, 46, 47, 45)
        I("v_and_b32 v40, 8, v1")
        I(f"v_add_u32 v40, {LCS}, v40")
        I("v_mul_f32 v44, v46, v45")
        I("ds_write_b64 v40, v[44:45]")
        exec_all()
        k.L(lab("cs_skip"))
    SX, SD = 56, 64
    def cand_addr():
        I(f"v_mov_b32 v50, s{CA}")
        I(f"v_mov_b32 v51, s{CB_}")
        I("v_and_b32 v52, 1, v1")
        I("v_cmp_eq_u32 vcc, 1, v52")
        I("v_lshlrev_b32 v52, 3, v52")
        I(f"v_add_u32 v52, {LCS}, v52")
        I("v_cndmask_b32 v50, v50, v51, vcc")
        I("v_lshrrev_b32 v51, 4, v50")
        I("v_and_b32 v50, 15, v50")
        I("v_lshlrev_b32 v50, 4, v50")
        I("v_lshl_add_u32 v50, v51, 14, v50")
        I("v_and_b32 v51, 48, v1")
        I("v_lshl_add_u32 v50, v51, 4, v50")
        I(f"s_lshl_b32 s{A0}, s{WAVE}, 11")
        I(f"v_add_u32 v50, s{A0}, v50")
        I("s_cmp_lt_u32 s2, 224")
        I(f"s_cbranch_scc1 {lab('ca_done')}")
        I(f"v_mov_b32 v50, s{CA}")
        I(f"v_mov_b32 v51, s{CB_}")
        I("v_and_b32 v53, 16, v1")
        I("v_cmp_eq_u32 vcc, 16, v53")
        I(f"s_sub_u32 s{A0}, s2, 224")
        I(f"s_lshl_b32 s{A0}, s{A0}, 9")
        I("v_cndmask_b32 v50, v50, v51, vcc")
        I("v_lshrrev_b32 v51, 4, v50")
        I("v_and_b32 v50, 15, v50")
        I("v_lshlrev_b32 v50, 4, v50")
        I("v_lshl_add_u32 v50, v51, 14, v50")
        I("v_bfe_u32 v51, v1, 3, 1")
        I("v_lshl_add_u32 v50, v51, 8, v50")
        I(f"v_add_u32 v50, s{A0}, v50")
        k.L(lab("ca_done"))
        for f in range(8): I(f"v_accvgpr_read_b32 v{SD+f}, a{ADN+f}")
        for f in range(8): I(f"v_lshlrev_b32 v{SD+f}, 16, v{SD+f}")
    def cand_rows():
        I(f"global_load_dwordx4 {vr(SX,4)}, v50, {sp(XB_)} sc1")
        I(f"global_load_dwordx4 {vr(SX+4,4)}, v50, {sp(XB_)} offset:1024 sc1")
        I("ds_read_b64 v[54:55], v52")
    cand_addr()
    hop_a(1, cand_stats2, cand_stats, cand_rows)
    I("s_cmp_ge_u32 s2, 224")
    I(f"s_cbranch_scc1 {lab('sp_skip')}")
    I("v_and_b32 v17, 48, v1")
    I(f"s_lshl_b32 s{A0}, s{WAVE}, 7")
    I(f"s_add_u32 s{A0}, s{A0}, {LRD}")
    I("v_and_b32 v18, 1, v1")
    I("v_lshl_add_u32 v17, v18, 6, v17")
    I(f"v_add_u32 v17, s{A0}, v17")
    I("v_and_b32 v18, 31, v1")
    I("v_lshlrev_b32 v18, 2, v18")
    I(f"v_add_u32 v18, {LRD}, v18")
    yp_addr(22, 2)
    I(f"v_add_u32 v23, {hex(YP[3] - YP[2])}, v22")
    I(f"s_or_b32 s{A0}, s{CG}, s{WAVE}")
    I(f"s_cmp_eq_u32 s{A0}, 0")
    I("s_waitcnt vmcnt(1)")
    I(f"s_cbranch_scc1 {lab('sp_go')}")
    I("s_waitcnt vmcnt(0)")
    k.L(lab("sp_go"))
    for i in range(8):
        t0 = 24 + 2*(i & 1)
        unpack(t0, t0 + 1, SX + i)
        I(f"v_fma_f32 v{t0}, v{t0}, v55, -v54")
        I(f"v_fma_f32 v{t0+1}, v{t0+1}, v55, -v54")
        I(f"v_cvt_pk_bf16_f32 v{SX+i}, v{t0}, v{t0+1}")
    k.nop(2)
    I(f"v_mfma_f32_16x16x32_bf16 v[24:27], {ar(AGU,4)}, {vr(SX,4)}, 0")
    I(f"v_mfma_f32_16x16x32_bf16 v[24:27], {ar(AGU+4,4)}, {vr(SX+4,4)}, v[24:27]")
    I("s_mov_b32 exec_lo, 0x00030003")
    I("s_mov_b32 exec_hi, 0x00030003")
    k.nop(6)
    I("ds_write_b128 v17, v[24:27]")
    exec_all()
    bar()
    for i in range(8): I(f"ds_read_b32 v{SX+i}, v18 offset:{128*i}")
    I("s_waitcnt lgkmcnt(0)")
    for a_, b_ in ((0,1),(2,3),(4,5),(6,7),(0,2),(4,6),(0,4)): I(f"v_add_f32 v{SX+a_}, v{SX+a_}, v{SX+b_}")
    bf16r(SX)
    I(f"v_mul_f32 v16, {hex(f2u(-LOG2E))}, v{SX}")
    I("v_exp_f32 v16, v16")
    I("s_nop 0")
    I("v_add_f32 v16, 1.0, v16")
    I("v_rcp_f32 v16, v16")
    I("s_nop 0")
    I(f"v_mul_f32 v16, v16, v{SX}")
    bf16r(16)
    k.nop(2)
    I(f"v_mul_f32_dpp v16, v{SX}, v16 row_ror:8 row_mask:0xf bank_mask:0xf")
    bf16r(16)
    k.nop(1)
    for c_ in range(2):
        for f in range(8): I(f"v_readlane_b32 s{A0+f}, v16, {16*c_+f}")
        I(f"v_mul_f32 v{24+2*c_}, s{A0}, v{SD}")
        I(f"v_mul_f32 v{25+2*c_}, s{A0+1}, v{SD+1}")
        for f in range(2, 8): I(f"v_fmac_f32 v{24+2*c_+(f&1)}, s{A0+f}, v{SD+f}")
        I(f"v_add_f32 v{24+2*c_}, v{24+2*c_}, v{25+2*c_}")
        I(f"v_min_u32 v{24+2*c_}, 0xfffffffe, v{24+2*c_}")
        I(f"global_store_dword v{22+c_}, v{24+2*c_}, {sp(WSP)} sc1")
    I(f"s_branch {lab('sp_done')}")
    k.L(lab("sp_skip"))
    I("s_waitcnt vmcnt(0)")
    x_elem(SX, 16)
    k.L(lab("sp_done"))
    hop_b_issue(1)
    k.stamp(name="t_spec")
    X, Y = 96, 16
    for i in range(4): unpack(X + 2*i, X + 2*i + 1, XG + i)
    for r in range(8): I(f"v_sub_f32 v{Y+r}, v{X+r}, v{RESM}")
    for r in range(8): I(f"v_mul_f32 v{Y+r}, v{Y+r}, v{RESR}")
    for i in range(4): I(f"v_cvt_pk_bf16_f32 v{XG+i}, v{Y+2*i}, v{Y+2*i+1}")
    for i in range(4): unpack(Y + 2*i, Y + 2*i + 1, XG + i)
    for r in range(8): I(f"v_add_f32 v{X+r}, v{X+r}, v{Y+r}")
    for i in range(4): I(f"v_cvt_pk_bf16_f32 v{XG+i}, v{X+2*i}, v{X+2*i+1}")
    I(f"s_lshl_b32 s{A0}, s{KG}, 5")
    I(f"v_lshl_add_u32 v12, v7, 4, s{A0}")
    I(f"v_lshl_add_u32 v12, v{VTK}, 10, v12")
    I(f"v_permlane32_swap_b32 v{XG}, v{XG+2}")
    I(f"v_permlane32_swap_b32 v{XG+1}, v{XG+3}")
    hop_b(1)
    k.stamp(name="t_hopb")
    def out_store():
        I(f"v_cmp_ne_u32 vcc, s{IDX}, v{VTK}")
        I(f"s_and_saveexec_b64 {sp(T2)}, vcc")
        vm.issue(f"global_store_dwordx4 v12, {vr(XG,4)}, {sp(OUTP)} {ENV('OUTF', '')}")
        exec_all()
    out_store()
    slice1(1)
    slice2(1)
    k.stamp(name="t_slice")
    finalize(1)
    I(f"s_branch {lab('fdone')}")
    k.L(lab("hit"))
    I("s_cmp_lt_u32 s2, 224")
    I(f"s_cbranch_scc1 {lab('hit_out')}")
    I(f"s_cmp_eq_u32 s{YSEL}, 2")
    I(f"s_mov_b32 s{T0}, {hex(YP[2])}")
    I(f"s_cselect_b32 s{T0}, {hex(YP[3])}, s{T0}")
    gather("sg", [f"s{T0}"], 20, LRD, light=(ENV("SGL", "0") == "1"))
    I("v_and_b32 v16, 15, v1")
    I("v_lshlrev_b32 v16, 2, v16")
    I(f"v_add_u32 v16, {LRD}, v16")
    bar()
    I(f"s_cmp_lg_u32 s{WAVE}, 0")
    I(f"s_cbranch_scc1 {lab('hit_out')}")
    I(f"v_mov_b32 v17, v{SX}")
    I(f"s_cmp_eq_u32 s{YSEL}, 2")
    I("s_cselect_b64 vcc, -1, 0")
    I(f"v_permlane16_swap_b32 v{SX}, v17")
    I("s_nop 0")
    I(f"v_cndmask_b32 v{SX}, v{SX}, v17, vcc")
    finish_row(1, SX, 16)
    k.L(lab("hit_out"))
    out_store()
    k.L(lab("fdone"))
    I("s_cmp_lg_u32 s2, 0")
    I(f"s_cbranch_scc1 {lab('end')}")
    I(f"v_mov_b32 v12, {hex(NONCE)}")
    I(f"v_mov_b32 v13, s{TAG}")
    I("v_cmp_eq_u32 vcc, 0, v0")
    I(f"s_and_saveexec_b64 {sp(T2)}, vcc")
    I(f"s_cbranch_execz {lab('end')}")
    I(f"global_store_dword v12, v13, {sp(WSP)} sc1")
    k.L(lab("end"))
    k.stamp_end(0)
    if ENV("DBGT"):
        I("s_cmp_lt_u32 s2, 224")
        I(f"s_cbranch_scc1 {lab('exit')}")
        I(f"s_cmp_lg_u32 s{WAVE}, 0")
        I(f"s_cbranch_scc1 {lab('exit')}")
        I("s_load_dwordx2 s[4:5], s[0:1], 72")
        I("s_memrealtime s[6:7]")
        I("s_memtime s[8:9]")
        I("s_waitcnt lgkmcnt(0)")
        I("s_mov_b64 exec, 1")
        I("s_not_b32 s96, s96")
        I("s_sub_u32 s8, s8, s98")
        I("v_mov_b32 v1, 0"); I("v_mov_b32 v2, s96"); I("v_mov_b32 v3, s6"); I("v_mov_b32 v4, s8")
        I("global_atomic_umax v1, v2, s[4:5]")
        I("global_atomic_umax v1, v3, s[4:5] offset:4")
        I("global_atomic_umax v1, v4, s[4:5] offset:8")
    k.L(lab("exit"))
    I("s_endpgm")
    return k

if __name__ == "__main__":
    k = build_kernel()
    bad = check_hazards(k)
    for b in bad: print("HAZARD", b, file=sys.stderr)
    out = sys.argv[1] if len(sys.argv) > 1 else "cdna_kernels/" + NAME + ".s"
    NOTES = """; One persistent kernel, 256 workgroups (one per CU, all co-resident) x 8 waves; workgroup = (q-block id&7, head id>>3).
; SwiGLU FFN of the routed token spread over 224 workgroups, 32 workgroups sum its partials.
; the previous launch left in d_ws, so stale contents are never taken for this launch's data. All polls are bounded.
"""
    if ENV("POLLF", "sc0 sc1"):
        import re as _re
        k.lines = [_re.sub(r"(global_load_\w+ [^;]*s\[10:11\][^;]*) sc1", r"\1 " + ENV("POLLF", "sc0 sc1"), l) for l in k.lines]
    if ENV("STOREF", "sc0 sc1"):
        import re as _re
        k.lines = [_re.sub(r"(global_store_\w+ [^;]*s\[10:11\][^;]*) sc1", r"\1 " + ENV("STOREF", "sc0 sc1"), l) for l in k.lines]
    if ENV("ALLF"):
        import re as _re
        k.lines = [_re.sub(r"(?<!sc0) sc1", " " + ENV("ALLF"), l) for l in k.lines]
    txt = emit_file(HEADER + NOTES, [k], single=(ENV("SINGLE", "0") == "1"))
    open(out, "w").write(txt)
    print("written", out, len(txt), "bytes; hazards:", len(bad))
```

```python
import sys, struct, os
from asmlib import *

NAME = "interleave_layers__softmax_full_mha__moe_arch_mod__prompt"
HEADER = open("cdna_kernels/" + NAME + ".s.ref").read().split("; Override launch")[0]
ENV = os.environ.get

XF = [0x000000, 0x200000]
KF = [0x400000, 0x800000]
VF = [0x600000, 0xA00000]
OF = [0xC00000, 0xE00000]
ST = [0x1000000, 0x1040000]
YP = [0x1080000, 0x1100000, 0x1180000, 0x1400000]
FLK = [0x1280000, 0x1288000]
FLO = [0x1300000, 0x1340000]
KEY = [0x12C0000, 0x12C8000]
X2R = 0x12A0000
NONCE = 0x12A2000
EPS = 1e-5
def f2u(x): return struct.unpack("<I", struct.pack("<f", x))[0]
QSCALE = 0.25 * 1.4426950408889634
LOG2E = 1.4426950408889634
SPIN_MAX = 1 << 18

CB, CBN = 131072, 20
LWQ = 8192
LST = CB + CBN * 512
LSA = LST
LPC = LST + 8192
LFX = LST + 8448
LVB = LST + 8704
LRD = LST + 10752
LFF = LST + 14848
LKY = LFF + 128
LCS = LFF + 768
LDS_BYTES = LFF + 1024

X0P, WQP, WOP, WSP, WRP, WGP, WUP, WDP, OUTP = 4, 6, 8, 10, 12, 14, 16, 18, 20
HEAD, QB, WAVE, TT, W1K, THR, CTR, SPIN, PASS, TAG, CG, TB, OA, KQ, OT, KG, IDX, WSUM = range(22, 40)
T0, T2 = 40, 42
A0 = 44
KB_, VB_, OB_, XB_ = 52, 54, 56, 58
RM, RR, RS_, ONES, C512, CEPS = 60, 61, 62, 63, 64, 65
CGP = 3
CA, CB_, YSEL = 100, 101, 30

def sp(i): return f"s[{i}:{i+1}]"

class VM:
    def __init__(self, k): self.k = k; self.q = []
    def issue(self, txt, tag=None):
        self.k.I(txt); self.q.append(tag)
    def wait(self, tag, extra=""):
        i = max(j for j, t in enumerate(self.q) if t == tag)
        n = len(self.q) - 1 - i
        assert n <= 63
        self.k.I(f"s_waitcnt vmcnt({n}){extra}")
    def drain(self, extra=""):
        self.k.I(f"s_waitcnt vmcnt(0){extra}"); self.q = []

def build_kernel():
    k = Kern(NAME + "_kernel", 256, 512, LDS_BYTES, 128, nagpr=128)
    I = k.I
    vm = VM(k)
    def lab(x): return f"L_{x}"
    def sadd64(d, b, const):
        I(f"s_add_u32 s{d}, s{b}, {hex(const)}"); I(f"s_addc_u32 s{d+1}, s{b+1}, 0")
    def swapop(sw, op, x, t):
        I(f"v_mov_b32 v{t}, v{x}"); k.nop(2); I(f"{sw} v{x}, v{t}"); I(f"{op} v{x}, v{x}, v{t}")
    def halfsum(op, x, t): swapop("v_permlane32_swap_b32", op, x, t)
    def rowreduce(op, x, t):
        swapop("v_permlane16_swap_b32", op, x, t); swapop("v_permlane32_swap_b32", op, x, t)
    def dppred(op, x, modes):
        for m in modes:
            k.nop(2); I(f"{op}_dpp v{x}, v{x}, v{x} {m} row_mask:0xf bank_mask:0xf")
    Q4 = ("quad_perm:[1,0,3,2]", "quad_perm:[2,3,0,1]")
    def allreduce(op, x, t):
        dppred(op, x, Q4 + ("row_half_mirror", "row_mirror")); rowreduce(op, x, t)
    def unpack(dlo, dhi, src):
        I(f"v_lshlrev_b32 v{dlo}, 16, v{src}"); I(f"v_and_b32 v{dhi}, 0xffff0000, v{src}")
    def bf16r(x):
        I(f"v_cvt_pk_bf16_f32 v{x}, v{x}, v{x}"); I(f"v_and_b32 v{x}, 0xffff0000, v{x}")
    def exec_lo(mask):
        I(f"s_mov_b32 exec_lo, {mask}"); I("s_mov_b32 exec_hi, 0")
    def exec_all(): I("s_mov_b64 exec, -1")
    def bar(lg=True):
        if lg: I("s_waitcnt lgkmcnt(0)")
        I("s_barrier")
    def poll(name, loads, tagregs, first_issued=False, check=None, chk_label=None):
        I(f"s_mov_b32 s{SPIN}, {SPIN_MAX}")
        SL = int(ENV("SLEEP", "0"))
        import re as _re
        if ENV("SLRE") and not _re.search(ENV("SLRE"), name): SL = 0
        if chk_label: I(f"s_branch {lab(chk_label)}")
        elif first_issued: I(f"s_branch {lab(name+'_w')}")
        elif SL: I(f"s_branch {lab(name+'_l')}")
        k.L(lab(name))
        if SL: I(f"s_sleep {SL}")
        k.L(lab(name + "_l"))
        for l in loads: I(l)
        k.L(lab(name + "_w"))
        I("s_waitcnt vmcnt(0)")
        if chk_label: k.L(lab(chk_label))
        if check: check()
        else: I(f"v_cmp_ne_u32 vcc, s{TAG}, v{tagregs[0]}")
        for r in tagregs[1:]:
            I(f"v_cmp_ne_u32 {sp(T2)}, s{TAG}, v{r}")
            I(f"s_or_b64 vcc, vcc, {sp(T2)}")
        I(f"s_sub_u32 s{SPIN}, s{SPIN}, 1")
        I(f"s_cbranch_vccz {lab(name+'_ok')}")
        I(f"s_cbranch_scc0 {lab(name)}")
        k.L(lab(name + "_ok"))
        k.stampval(SPIN, "x" + name + "_spin")
        k.stamp(name="x" + name + "_ok")
        vm.q = []
    def ppoll(name, mk, width, tagoff, regs, gap):
        D = len(regs)
        I(f"s_mov_b32 s{SPIN}, {SPIN_MAX}")
        for j in range(D - 1):
            I(mk(regs[j])); I(f"s_sleep {gap}")
        k.L(lab(name))
        for j in range(D):
            I(mk(regs[(j + D - 1) % D]))
            I(f"s_waitcnt vmcnt({D-1})")
            I(f"v_cmp_ne_u32 vcc, s{TAG}, v{regs[j]+tagoff}")
            I(f"s_cbranch_vccz {lab(name + f'_g{j}')}")
            I(f"s_sleep {gap}")
        I(f"s_sub_u32 s{SPIN}, s{SPIN}, 1")
        I(f"s_cbranch_scc0 {lab(name)}")
        for j in range(D - 1, 0, -1):
            k.L(lab(name + f"_g{j}"))
            if width:
                if j == 1 or True:
                    I("s_waitcnt vmcnt(0)")
                    I(f"s_branch {lab(name + '_g0')}") if False else None
        k.L(lab(name + "_g0"))
        if width: I("s_waitcnt vmcnt(0)")
        k.stamp(name="x" + name + "_ok")
    def mfma(d, a_, b_, c): I(f"v_mfma_f32_32x32x16_bf16 {vr(d,16)}, {a_}, {b_}, {vr(c,16) if c is not None else 0}")
    def rowstats(s1, s2, m, var, rstd):
        I(f"v_mul_f32 v{m}, s{C512}, v{s1}")
        I(f"v_mul_f32 v{var}, s{C512}, v{s2}")
        I(f"v_fma_f32 v{var}, -v{m}, v{m}, v{var}")
        I(f"v_max_f32 v{var}, 0, v{var}")
        I(f"v_add_f32 v{rstd}, s{CEPS}, v{var}")
        I(f"v_rsq_f32 v{rstd}, v{rstd}")

    ACC, WB = 16, 40
    CQ, CV, MV, AL = 96, 108, 76, 84
    MT, AT = [112, 114], [113, 115]
    S0, S1, P0, P1, VA, NEG, O, Q, KB = 16, 32, 48, 52, [56, 64], 72, 88, 104, 108
    AK, AV, AVS, VBASE = 112, 113, 114, 115
    XG, WR, VXO, VTK, RESM, RESR = 116, 120, 124, 125, 126, 127
    TK, TV = 64, 68
    def mfma16(d, a_, b_, first): I(f"v_mfma_f32_16x16x32_bf16 {vr(d,4)}, {a_}, {b_}, {0 if first else vr(d,4)}")
    AWO, ARS, AWS, AGU, ADN = 0, 32, 88, 112, 120

    I("s_cmp_ge_u32 s2, 256")
    I(f"s_cbranch_scc1 {lab('exit')}")
    k.stamp_begin()
    if ENV("DBGT"):
        I("s_memrealtime s[96:97]")
        I("s_memtime s[98:99]")
    I(f"s_load_dwordx4 s[4:7], s[0:1], 0")
    I(f"s_load_dwordx2 s[8:9], s[0:1], 16")
    I(f"s_load_dwordx2 s[10:11], s[0:1], 80")
    I(f"s_load_dwordx8 s[12:19], s[0:1], 32")
    I(f"s_load_dwordx2 s[20:21], s[0:1], 64")
    I("v_and_b32 v1, 63, v0")
    I("v_lshrrev_b32 v2, 6, v0")
    I("v_lshlrev_b32 v3, 4, v1")
    I(f"v_readfirstlane_b32 s{WAVE}, v2")
    I(f"s_and_b32 s{QB}, s2, 7")
    I(f"s_lshr_b32 s{HEAD}, s2, 3")
    if ENV("HX"):
        I(f"s_cmp_lt_u32 s{HEAD}, 16")
        I(f"s_cselect_b32 s{A0}, 8, 0")
        I(f"s_xor_b32 s{HEAD}, s{HEAD}, s{A0}")
    I(f"s_lshl_b32 s{TT}, s{QB}, 3")
    I(f"s_add_u32 s{TT}, s{TT}, s{WAVE}")
    I(f"s_lshl_b32 s{W1K}, s{WAVE}, 10")
    I("v_bfe_u32 v5, v1, 1, 2")
    I("v_bfe_u32 v6, v1, 3, 1")
    I("v_lshl_add_u32 v5, v6, 3, v5")
    I("v_bfe_u32 v6, v1, 4, 1")
    I("v_lshl_add_u32 v5, v6, 2, v5")
    I("v_bfe_u32 v6, v1, 5, 1")
    I("v_lshl_add_u32 v5, v6, 4, v5")
    I("v_mul_u32_u24 v5, 3072, v5")
    I("v_and_b32 v6, 1, v1")
    I("v_lshl_add_u32 v5, v6, 4, v5")
    I(f"s_lshl_b32 s{A0+1}, s{HEAD}, 5")
    I(f"v_add_u32 v5, s{A0+1}, v5")
    I("v_lshrrev_b32 v8, 4, v1")
    I("v_and_b32 v9, 7, v1")
    I("v_xor_b32 v8, v8, v9")
    I("v_lshlrev_b32 v8, 4, v8")
    I("v_lshrrev_b32 v9, 3, v1")
    I("v_lshl_add_u32 v8, v9, 10, v8")
    I(f"s_lshl_b32 s{A0}, s{TT}, 15")
    I(f"v_add_u32 v8, s{A0}, v8")
    I("v_xor_b32 v9, 64, v8")
    I("v_add_u32 v9, 0x2000, v9")
    XB3 = [A0 + 3, A0 + 4, A0 + 5]
    for b_ in range(3):
        I(f"s_mul_i32 s{XB3[b_]}, s{WAVE}, 12288")
        I(f"s_add_u32 s{XB3[b_]}, s{XB3[b_]}, {56*1024 + 4096*b_}")
        if b_:
            I(f"s_cmp_eq_u32 s{WAVE}, 7")
            I(f"s_cselect_b32 s{XB3[b_]}, {4096*(b_-1)}, s{XB3[b_]}")
    ROT = A0 + 6
    I(f"s_and_b32 s{ROT}, s{HEAD}, 3")
    I("s_waitcnt lgkmcnt(0)")
    def xstage(st):
        I(f"s_add_u32 s{A0}, s{ROT}, {st//2}")
        I(f"s_and_b32 s{A0}, s{A0}, 3")
        I(f"s_lshl_b32 s{A0}, s{A0}, 8")
        if st & 1: I(f"s_add_u32 s{A0}, s{A0}, 128")
        I(f"s_add_u32 s{T0}, s{X0P}, s{A0}")
        I(f"s_addc_u32 s{T0+1}, s{X0P+1}, 0")
        for i in range(4):
            if i == 2: sadd64(T0, T0, 16384)
            I(f"s_add_u32 m0, s{XB3[st % 3]}, {i*1024}")
            I("s_nop 0")
            vm.issue(f"global_load_lds_dwordx4 v{8 + (i&1)}, {sp(T0)}", f"x{st}")
    def wdma(j):
        I(f"s_mul_i32 s{A0}, s{ROT}, 12")
        I(f"s_add_u32 s{A0}, s{A0}, s{WAVE}")
        I(f"s_add_u32 s{A0}, s{A0}, {8*j}")
        I(f"s_sub_u32 s{A0+1}, s{A0}, 48")
        I(f"s_cmp_ge_u32 s{A0}, 48")
        I(f"s_cselect_b32 s{A0}, s{A0+1}, s{A0}")
        I(f"s_mul_i32 s{A0+1}, s{A0}, 21846")
        I(f"s_lshr_b32 s{A0+1}, s{A0+1}, 16")
        I(f"s_mul_i32 s{A0+2}, s{A0+1}, 3")
        I(f"s_sub_u32 s{A0}, s{A0}, s{A0+2}")
        I(f"s_mul_i32 s{A0+2}, s{A0+1}, {32*3072}")
        I(f"s_lshl_b32 s{T0}, s{A0}, 10")
        I(f"s_add_u32 s{A0+2}, s{A0+2}, s{T0}")
        I(f"s_add_u32 s{T0}, s{WQP}, s{A0+2}")
        I(f"s_addc_u32 s{T0+1}, s{WQP+1}, 0")
        I(f"s_lshl_b32 s{A0}, s{A0}, 14")
        I(f"s_lshl_b32 s{A0+1}, s{A0+1}, 10")
        I(f"s_add_u32 s{A0}, s{A0}, s{A0+1}")
        I(f"s_add_u32 m0, s{A0}, {LWQ}")
        I("s_nop 0")
        vm.issue(f"global_load_lds_dwordx4 v5, {sp(T0)}", f"W{j}")
    if ENV("CPF", "0") == "1":
        I(f"s_cmp_lg_u32 s{WAVE}, 7")
        I(f"s_cbranch_scc1 {lab('nocpf')}")
        I(f"s_lshl_b32 s{A0}, s{HEAD}, 13")
        I(f"v_lshl_add_u32 v12, v1, 7, s{A0}")
        I(f"v_cmp_gt_u32 vcc, {lab('exit')}-{lab('pc0')}, v12")
        I(f"s_getpc_b64 {sp(T0)}")
        k.L(lab("pc0"))
        I(f"s_and_saveexec_b64 {sp(T2)}, vcc")
        I(f"s_cbranch_execz {lab('cpf2')}")
        I(f"global_load_dword v127, v12, {sp(T0)}")
        k.L(lab("cpf2"))
        exec_all()
        k.L(lab("nocpf"))
    if ENV("ALLUP"):
        for j in range(8):
            if j < 6 and ENV("ALLUP") != "x": wdma(j)
            if ENV("ALLUP") != "w": xstage(j)
        k.stamp(name="a_issue")
        I("s_waitcnt vmcnt(0)")
        k.stamp(name="a_done")
        I("s_barrier")
        k.stamp(name="a_bar")
        I(f"s_branch {lab('end')}")
    UPW = int(ENV("UPW", "4"))
    UPX = int(ENV("UPX", "3"))
    I(f"v_mov_b32 v12, {hex(NONCE)}")
    vm.issue(f"global_load_dword v126, v12, {sp(WSP)} sc1", "nonce")
    wdma(0); xstage(0); wdma(1)
    if ENV("IB"): I("s_barrier")
    xstage(1)
    if ENV("IB") == "2": I("s_barrier")
    if UPW > 2: wdma(2)
    if UPX > 2: xstage(2)
    for j in range(3, UPW): wdma(j)
    I(f"s_lshr_b32 s{CG}, s{HEAD}, 2")
    I(f"s_and_b32 s{TB}, s{HEAD}, 3")
    I(f"s_lshl_b32 s{A0}, s{QB}, 2")
    I(f"s_add_u32 s{TB}, s{TB}, s{A0}")
    I(f"s_and_b32 s{OA}, s{WAVE}, 1")
    I(f"s_lshr_b32 s{KQ}, s{WAVE}, 1")
    I(f"s_lshl_b32 s{OT}, s{TB}, 1")
    I(f"s_add_u32 s{OT}, s{OT}, s{OA}")
    I(f"s_lshl_b32 s{KG}, s{CG}, 2")
    I(f"s_add_u32 s{KG}, s{KG}, s{KQ}")
    I(f"s_mul_i32 s{CGP}, s{QB}, 28")
    I(f"s_min_u32 s{A0}, s{HEAD}, 27")
    I(f"s_add_u32 s{CGP}, s{CGP}, s{A0}")
    I(f"s_mov_b32 s{THR}, {hex(f2u(2.0**30)) if not ENV('THRZ') else 0}")
    I(f"s_mov_b32 s{ONES}, 0x3f803f80")
    I(f"s_mov_b32 s{C512}, {hex(f2u(1/512))}")
    I(f"s_mov_b32 s{CEPS}, {hex(f2u(EPS))}")
    def lane_terms():
        I("v_and_b32 v6, 31, v1")
        I("v_lshrrev_b32 v7, 5, v1")
    lane_terms()
    def w_addr(t0=12, t1=13):
        I(f"v_bfe_u32 v{t0}, v1, 2, 2")
        I(f"v_lshl_add_u32 v{t0}, v7, 4, v{t0}")
        I(f"v_bfe_u32 v{t1}, v1, 4, 1")
        I(f"v_lshl_add_u32 v{t0}, v{t1}, 2, v{t0}")
        I(f"v_and_b32 v{t1}, 3, v1")
        I(f"v_lshlrev_b32 v{t1}, 3, v{t1}")
        I(f"v_lshl_add_u32 v10, v{t0}, 5, v{t1}")
        I(f"v_add_u32 v10, {LWQ}, v10")
    w_addr()
    def wreads(dst, ad, ks):
        for sec in range(3):
            I(f"ds_read_b64_tr_b16 {vr(dst+4*sec,2)}, v{ad} offset:{sec*16384+ks*1024}")
            I(f"ds_read_b64_tr_b16 {vr(dst+4*sec+2,2)}, v{ad} offset:{sec*16384+ks*1024+256}")
    def qmfmas(wb, xa, xb, first, between=None):
        for i, (d, A_, B_) in enumerate(((ACC, vr(wb,4), xa), (ACC+4, vr(wb,4), xb), (ACC+8, vr(wb+4,4), xa),
                                         (ACC+12, vr(wb+4,4), xb), (ACC+16, xa, vr(wb+8,4)), (ACC+20, xb, vr(wb+8,4)))):
            mfma16(d, A_, B_, first)
            if between: between(i)
    I("v_bfe_u32 v12, v1, 1, 3")
    I("v_and_b32 v13, 15, v1")
    I("v_lshlrev_b32 v13, 7, v13")
    I("v_lshrrev_b32 v14, 4, v1")
    I("v_xor_b32 v14, v14, v12")
    I("v_lshl_add_u32 v2, v14, 4, v13")
    I("v_xor_b32 v4, 64, v2")
    def xfrags(st):
        I(f"v_add_u32 v14, s{XB3[st % 3]}, v2")
        I(f"v_add_u32 v15, s{XB3[st % 3]}, v4")
        vm.wait(f"x{st}")
        for h in range(2):
            for t in range(2): I(f"ds_read_b128 {ar(16*st+8*h+4*t,4)}, v{14+h} offset:{2048*t}")
    k.stamp(name="q0_issue")
    GU, ON = 76, 92
    for r in range(4): I(f"v_mov_b32 v{ON+r}, s{ONES}")
    xfrags(0)
    vm.wait("W1")
    I(f"v_readfirstlane_b32 s{TAG}, v126")
    I(f"s_mul_i32 s{TAG}, s{TAG}, 0x9E3779B1")
    I(f"s_add_u32 s{TAG}, s{TAG}, 0x7F4A7C15")
    I("s_barrier")
    k.stamp(name="q0_W")
    def capture(f):
        n0 = len(k.lines); f(); out = k.lines[n0:]; del k.lines[n0:]; return out
    def weave(main, fill):
        atoms = []; masked = False
        for l in fill:
            opens = ("exec" in l.split(",")[0] or "saveexec" in l) and "exec, -1" not in l
            if masked: atoms[-1].append(l)
            else: atoms.append([l])
            if opens: masked = True
            if "exec, -1" in l: masked = False
        per = -(-len(atoms) // len(main))
        for i, l in enumerate(main):
            k.lines.append(l)
            for at in atoms[i*per:(i+1)*per]: k.lines.extend(at)
    CSA = 96
    def colsum_reads():
        I(f"v_add_u32 v13, s{W1K}, v10")
        wreads(100, 13, 0)
    def colsum_mm(i):
        for sec in range(2): mfma16(CS3[sec], vr(100+4*sec,4), vr(ON,4), i == 0)
        mfma16(CS3[2], vr(ON,4), vr(108,4), i == 0)
    CS3 = [96, 116, 120]
    def colsum_write():
        I(f"s_lshl_b32 s{A0}, s{WAVE}, 8")
        I(f"s_add_u32 s{A0}, s{A0}, {LRD}")
        I("v_and_b32 v13, 48, v1")
        I(f"v_add_u32 v13, s{A0}, v13")
        I("v_and_b32 v14, 15, v1")
        I(f"v_lshl_add_u32 v14, v14, 2, s{A0}")
        I(f"ds_write_b32 v14, v{CS3[2]} offset:128")
        I("s_mov_b32 exec_lo, 0x00010001"); I("s_mov_b32 exec_hi, 0x00010001")
        for sec in range(2): I(f"ds_write_b128 v13, {vr(CS3[sec],4)} offset:{64*sec}")
        exec_all()
    def sum8(src, dst):
        I("v_lshlrev_b32 v13, 2, v1")
        I(f"v_add_u32 v14, {src}, v13")
        for w in range(8): I(f"ds_read_b32 v{104+w}, v14 offset:{256*w}")
        I(f"v_add_u32 v13, {dst}, v13")
        I("s_waitcnt lgkmcnt(0)")
        for a_, b_ in ((0,1),(2,3),(4,5),(6,7),(0,2),(4,6),(0,4)): I(f"v_add_f32 v{104+a_}, v{104+a_}, v{104+b_}")
        I("ds_write_b32 v13, v104")
    def wsave():
        I(f"s_mul_i32 s{A0}, s{WAVE}, 6144")
        I(f"s_add_u32 s{A0}, s{A0}, {LWQ}")
        I(f"v_add_u32 v13, s{A0}, v3")
        for i in range(6): I(f"ds_read_b128 {ar(AWS+4*i,4)}, v13 offset:{1024*i}")
    def wbase(q):
        I(f"s_add_u32 s{A0}, s{ROT}, {q}")
        I(f"s_and_b32 s{A0}, s{A0}, 3")
        I(f"s_lshl_b32 s{A0}, s{A0}, 12")
        I(f"v_add_u32 v11, s{A0}, v10")
    wbase(0)
    wreads(WB, 11, 0)
    wreads(WB + 12, 11, 1)
    ready = {2: 1, 5: 2, 8: 3, 10: 4, 13: 5}
    def const_area():
        I("v_and_b32 v13, 11, v0")
        I(f"v_mov_b32 v14, s{ONES}")
        I("v_cmp_eq_u32 vcc, 0, v13")
        I("v_lshlrev_b32 v13, 4, v0")
        I(f"v_add_u32 v13, {CB}, v13")
        I("v_cndmask_b32 v100, 0, v14, vcc")
        for r in range(1, 4): I(f"v_mov_b32 v{100+r}, v100")
        I("ds_write_b128 v13, v[100:103]")
        I(f"v_cmp_gt_u32 vcc, {(CBN*512 - 8192)//16}, v0")
        I(f"s_and_saveexec_b64 {sp(T2)}, vcc")
        I("ds_write_b128 v13, v[100:103] offset:8192")
        exec_all()
    def stats0():
        I("v_lshrrev_b32 v12, 4, v1")
        I("v_lshlrev_b32 v12, 2, v12")
        I("v_and_b32 v13, 15, v1")
        I("v_sub_u32 v12, v13, v12")
        for t in range(2): I(f"v_mov_b32 v{ON+t}, 0")
        for r in range(4):
            I(f"v_cmp_eq_u32 vcc, {r}, v12")
            k.nop(2)
            for t in range(2): I(f"v_cndmask_b32 v{ON+t}, v{ON+t}, v{GU+4*t+r}, vcc")
        for t in range(2): rowreduce("v_add_f32", ON + t, 12)
        for t in range(2): rowstats(GU + 8 + 4*t, ON + t, MT[t], 12, AT[t])
    ready = {5: 3, 10: 5}
    def smf(q_, half):
        ya, yb = ar(8*q_,4), ar(8*q_+4,4)
        if half == 0: mfma16(GU, ya, ya, q_ == 0); mfma16(GU + 4, yb, yb, q_ == 0)
        else: mfma16(GU + 8, vr(ON,4), ya, q_ == 0); mfma16(GU + 12, vr(ON,4), yb, q_ == 0)
    for ks in range(16):
        st = ks // 2
        pre = 0
        QP0 = eval(ENV("QP0", "{0: 3, 1: 2, 2: 1, 3: 3, 5: 2, 6: 1, 7: 0, 8: 3, 10: 2, 11: 1, 12: 0, 13: 3, 14: 2, 15: 1}"))
        if ks in QP0: I(f"s_setprio {QP0[ks]}")
        if ks % 2 == 0 and st + 1 < 8:
            xfrags(st + 1); pre = 4
        if ks + 2 in ready:
            vm.wait(f"W{ready[ks+2]}")
            I("s_barrier")
        if ks == 13: bar()
        if ks < 14:
            if (ks + 2) % 4 == 0: wbase((ks + 2)//4)
            wreads(WB + 12*((ks+2)%3), 11, (ks + 2) % 4)
            I(f"s_waitcnt lgkmcnt({min(15, 12 + pre) if ks % 2 == 0 else 12})")
        elif ks == 14: I("s_waitcnt lgkmcnt(0)")
        def loads():
            if UPW + ks < 6 and ENV("WFAST"): wdma(UPW + ks)
            if ks == 0 and UPX == 2: xstage(2)
            if ks == 0: xstage(3)
            if ks % 2 == 1 and st + 4 < 8: xstage(st + 4)
            if ks % 2 == 0 and UPW + ks//2 < 6 and not ENV("WFAST"): wdma(UPW + ks//2)
        def mm():
            xa, xb = ar(8*ks,4), ar(8*ks+4,4)
            if ks < 14: smf(ks, 0)
            if ks == 13:
                smf(13, 1)
                for q_ in (14, 15): smf(q_, 0); smf(q_, 1)
            qmfmas(WB + 12*(ks%3), xa, xb, ks == 0)
            if ks < 13: smf(ks, 1)
            if ks == 10: I("s_waitcnt lgkmcnt(10)"); colsum_mm(0)
            if ks == 11: I("s_waitcnt lgkmcnt(6)"); colsum_mm(1)
        fill = capture(loads)
        if ks == 9: fill += capture(colsum_reads)
        if ks == 12: fill += capture(colsum_write)
        if ks == 13: fill += capture(lambda: sum8(LRD, LPC)) + capture(const_area)
        if ks == 14: fill += capture(wsave) + capture(stats0)
        weave(capture(mm), fill)
        if ks == 10: wreads(100, 13, 8)
        k.stamp(name=f"xq0k{ks}")
    k.stamp(name="q0_loop")
    def bounce_params():
        I(f"s_lshl_b32 s{A0}, s{WAVE}, 8")
        I(f"s_add_u32 s{A0}, s{A0}, {LVB}")
        I("v_and_b32 v13, 15, v1")
        I(f"v_lshl_add_u32 v12, v13, 2, s{A0}")
        for t in range(2):
            I(f"ds_write_b32 v12, v{MT[t]} offset:{64*t}")
            I(f"ds_write_b32 v12, v{AT[t]} offset:{128+64*t}")
        I("v_and_b32 v14, 48, v1")
        I(f"v_add_u32 v12, s{A0}, v14")
        for t in range(2):
            I(f"ds_read_b128 {vr(MV+4*t,4)}, v12 offset:{64*t}")
            I(f"ds_read_b128 {vr(AL+4*t,4)}, v12 offset:{128+64*t}")
        I(f"v_add_u32 v12, {LPC}, v14")
        for sec in range(2): I(f"ds_read_b128 {vr(CQ+4*sec,4)}, v12 offset:{64*sec}")
        I("v_lshlrev_b32 v12, 2, v13")
        I(f"v_add_u32 v12, {LPC + 128}, v12")
        I(f"ds_read_b32 v{CV}, v12")
    bounce_params()

    def yp_addr(d, L):
        I(f"v_lshrrev_b32 v{d}, 4, v0")
        I(f"v_mul_u32_u24 v{d}, {224*64}, v{d}")
        I(f"v_and_b32 v{d+1}, 15, v0")
        I(f"v_lshl_add_u32 v{d}, v{d+1}, 2, v{d}")
        I(f"s_lshl_b32 s{T2}, s{CGP}, 6")
        I(f"s_add_u32 s{T2}, s{T2}, {hex(YP[L])}")
        I(f"v_add_u32 v{d}, s{T2}, v{d}")

    def q_epilogue(L):
        n = f"l{L}"
        sadd64(KB_, WSP, KF[L]); sadd64(VB_, WSP, VF[L]); sadd64(OB_, WSP, OF[L])
        for t in range(2): I(f"v_mul_f32 v{13+t}, {hex(f2u(QSCALE))}, v{AT[t]}")
        I(f"s_lshl_b32 s{A0}, s{HEAD}, 16")
        I(f"s_lshl_b32 s{A0+1}, s{TT}, 10")
        I(f"s_add_u32 s{A0}, s{A0}, s{A0+1}")
        I(f"v_add_u32 v4, s{A0}, v3")
        I(f"v_add_u32 v15, s{W1K}, v3")
        I("v_add_u32 v5, 0x10000, v15")
        I("s_waitcnt lgkmcnt(0)")
        for sec in (1, 0):
            for t in range(2):
                for r in range(4): I(f"v_fma_f32 v{ACC+8*sec+4*t+r}, -v{MT[t]}, v{CQ+4*sec+r}, v{ACC+8*sec+4*t+r}")
            for t in range(2):
                for r in range(4): I(f"v_mul_f32 v{ACC+8*sec+4*t+r}, v{AT[t] if sec else 13+t}, v{ACC+8*sec+4*t+r}")
            d = TK if sec else Q
            for i in range(4): I(f"v_cvt_pk_bf16_f32 v{d+i}, v{ACC+8*sec+2*i}, v{ACC+8*sec+2*i+1}")
        I(f"v_fma_f32 v{ACC+16}, -v{MV}, v{CV}, v{ACC+16}")
        I(f"v_permlane16_swap_b32 v{TK}, v{TK+2}")
        I(f"v_permlane16_swap_b32 v{TK+1}, v{TK+3}")
        I(f"v_permlane16_swap_b32 v{Q}, v{Q+2}")
        I(f"v_permlane16_swap_b32 v{Q+1}, v{Q+3}")
        vm.issue(f"global_store_dwordx4 v4, {vr(TK,4)}, {sp(KB_)} sc1")
        I(f"ds_write_b128 v15, {vr(TK,4)}")
        mfma(S0, vr(TK,4), vr(Q,4), None)
        for r in range(1, 8): I(f"v_fma_f32 v{ACC+16+r}, -v{MV+r}, v{CV}, v{ACC+16+r}")
        for r in range(8): I(f"v_mul_f32 v{ACC+16+r}, v{AL+r}, v{ACC+16+r}")
        for i in range(4): I(f"v_cvt_pk_bf16_f32 v{TV+i}, v{ACC+16+2*i}, v{ACC+16+2*i+1}")
        I(f"v_max3_f32 v2, v{S0}, v{S0+1}, v{S0+2}")
        I(f"v_max3_f32 v13, v{S0+3}, v{S0+4}, v{S0+5}")
        I(f"v_permlane32_swap_b32 v{TV}, v{TV+2}")
        I(f"v_permlane32_swap_b32 v{TV+1}, v{TV+3}")
        vm.issue(f"global_store_dwordx4 v4, {vr(TV,4)}, {sp(VB_)} sc1")
        I(f"ds_write_b128 v5, {vr(TV,4)}")
        if L == 0:
            I("s_cmp_ge_u32 s2, 224")
            I(f"s_cbranch_scc1 {lab('nomark')}")
            yp_addr(10, 0)
            I("v_mov_b32 v12, -1")
            I(f"global_store_dword v10, v12, {sp(WSP)} sc1")
            for b_ in range(1, 4):
                I(f"v_add_u32 v11, {hex(YP[b_] - YP[0])}, v10")
                I(f"global_store_dword v11, v12, {sp(WSP)} sc1")
            k.L(lab("nomark"))
        for r in range(6, 16, 4): I(f"v_max3_f32 v2, v2, v{S0+r}, v{S0+r+1}")
        for r in range(8, 16, 4): I(f"v_max3_f32 v13, v13, v{S0+r}, v{S0+r+1}")
        I("v_max_f32 v2, v2, v13")
        halfsum("v_max_f32", 2, 13)
        for r in range(16): I(f"v_sub_f32 v{NEG+r}, 0, v2")
        I("v_and_b32 v8, 15, v1")
        I("v_bfe_u32 v9, v1, 4, 1")
        I("v_lshlrev_b32 v10, 4, v8")
        I("v_lshl_add_u32 v10, v7, 8, v10")
        I(f"v_lshl_add_u32 v{VBASE}, v9, 16, v10")
        I(f"v_add_u32 v{VBASE}, 0x10000, v{VBASE}")
        I("v_xor_b32 v9, 1, v9")
        I(f"v_lshlrev_b32 v{AVS}, 13, v9")
        I(f"v_mov_b32 v{AK}, v3")
        I(f"v_mov_b32 v{AV}, v{VBASE}")
        I(f"s_mov_b32 s{PASS}, 0")
        I(f"s_lshl_b32 s{A0}, s{HEAD}, 10")
        I(f"s_add_u32 s{A0}, s{A0}, {hex(FLK[L])}")
        I(f"v_lshl_add_u32 v8, v1, 7, s{A0}")
        I(f"s_lshl_b32 s{A0+1}, s{QB}, 7")
        I(f"s_add_u32 s{A0}, s{A0}, s{A0+1}")
        I(f"v_mov_b32 v9, s{A0}")
        bar()

    def ffn_gu(m_):
        I(f"s_lshl_b32 s{A0+1}, s{CGP}, 4")
        I(f"v_mul_u32_u24 v14, 3584, v0")
        I(f"v_add_u32 v14, s{A0+1}, v14")
        vm.issue(f"global_load_dwordx4 {ar(AGU+4*m_,4)}, v14, {sp(WUP if m_ else WGP)}")
    def ffn_dn():
        I(f"s_lshl_b32 s{A0+1}, s{CGP}, 13")
        I(f"s_add_u32 s{A0+1}, s{A0+1}, s{W1K}")
        I(f"v_add_u32 v14, s{A0+1}, v3")
        vm.issue(f"global_load_dwordx4 {ar(ADN,4)}, v14, {sp(WDP)}")
    def attention(L):
        n = f"l{L}"
        def max16(dst, S, first):
            if first:
                I(f"v_max3_f32 v{dst}, v{S}, v{S+1}, v{S+2}"); rest = list(range(3, 16))
            else: rest = list(range(16))
            while rest:
                if len(rest) >= 2:
                    I(f"v_max3_f32 v{dst}, v{dst}, v{S+rest[0]}, v{S+rest[1]}"); rest = rest[2:]
                else:
                    I(f"v_max_f32 v{dst}, v{dst}, v{S+rest[0]}"); rest = rest[1:]
        def prime():
            I(f"ds_read_b128 {vr(KB,4)}, v{AK}")
            I(f"ds_read_b128 {vr(VA[0],4)}, v{AV}")
            I(f"ds_read_b128 {vr(VA[0]+4,4)}, v{AV} offset:512")
            I("s_waitcnt lgkmcnt(0)")
            mfma(S0, vr(KB,4), vr(Q,4), None if ENV("C0") else NEG)
            I(f"ds_read_b128 {vr(KB,4)}, v{AK} offset:1024")
            k.nop(11)
        def setup():
            halfsum("v_max_f32", 2, 7)
            for r in range(16): I(f"v_sub_f32 v{NEG+r}, 0, v2")
            I(f"v_mov_b32 v{AK}, v3")
            I(f"v_mov_b32 v{AV}, v{VBASE}")
            for r in range(16): I(f"v_mov_b32 v{O+r}, 0")
            for r in range(4): I(f"v_mov_b32 v{P1+r}, 0")
            for r in range(4): I(f"v_mov_b32 v{VA[1]+4+r}, 0")
            prime()
        def tile(u, extra=None, nokread=False, noqk=False, novread=False, first=False):
            extra = extra or {}
            if "p" in extra: I(f"s_setprio {extra['p']}")
            Sc, Sn = (S0, S1) if u % 2 == 0 else (S1, S0)
            Vc, Vo = VA[u % 2], VA[1 - u % 2]
            E = lambda r: I(f"v_exp_f32 v{Sc+r}, v{Sc+r}")
            Cv = lambda P, r, b: I(f"v_cvt_pk_bf16_f32 v{P+r}, v{Sc+b+2*r}, v{Sc+b+2*r+1}")
            E(0); E(1)
            if not first: mfma(O, vr(Vo+4,4), vr(P1,4), O)
            if 0 in extra: extra[0]()
            E(2); E(3); E(4)
            I("s_waitcnt lgkmcnt(0)")
            E(5)
            if not noqk: mfma(Sn, vr(KB,4), vr(Q,4), None if ENV("C0") else NEG)
            E(6)
            if not nokread: I(f"ds_read_b128 {vr(KB,4)}, v{AK} offset:{(u+2)*1024}")
            E(7)
            if not novread: I(f"ds_read_b128 {vr(Vo,4)}, v{AV} offset:{(u+1)*1024}")
            for r in range(4): Cv(P0, r, 0)
            E(8)
            if not novread: I(f"ds_read_b128 {vr(Vo+4,4)}, v{AV} offset:{(u+1)*1024+512}")
            E(9)
            mfma(O, vr(Vc,4), vr(P0,4), None if first else O)
            if 1 in extra: extra[1]()
            for r in range(10, 16): E(r)
            for r in range(4): Cv(P1, r, 8)
        def bump():
            I(f"v_add_u32 v{AK}, 0x2000, v{AK}")
            I(f"v_add_u32 v{AV}, v{AVS}, v{AV}")
        prime()
        k.stamp(name=f"x{n}_setup")
        I("s_setprio 3")
        def publish_kv():
            vm.drain()
            I("s_barrier")
            I(f"s_cmp_lg_u32 s{WAVE}, 0")
            I(f"s_cbranch_scc1 {lab(n+'_noflag')}")
            I(f"v_mov_b32 v14, s{TAG}")
            I("s_mov_b64 exec, 1")
            I(f"global_store_dword v9, v14, {sp(WSP)} sc1")
            exec_all()
            k.L(lab(n + "_noflag"))
        pl = f"global_load_dword v14, v8, {sp(WSP)} sc1"
        def poll_issue():
            I("s_mov_b64 exec, 0xff"); I(pl); exec_all()
        def poll_check():
            I("s_mov_b64 exec, 0xff")
            if L == 1:
                I(f"s_lshr_b32 s{A0}, s{IDX}, 8")
                I(f"s_bitset0_b32 exec_lo, s{A0}")
            poll(n + "_pk", [pl], [14], first_issued=True)
            exec_all()
        def stg(sl): return ARS + 8*(sl-1) if L == 0 else 64 + 8*((sl-1) % 6)
        def rload(sl):
            if L == 1:
                I(f"s_lshr_b32 s{A0+1}, s{IDX}, 8")
                I(f"s_sub_u32 s{A0+1}, s{A0+1}, s{QB}")
                I(f"s_and_b32 s{A0+1}, s{A0+1}, 7")
                if sl == 7:
                    I(f"s_cmp_eq_u32 s{A0+1}, 0")
                    I(f"s_cselect_b32 s{A0}, 7, s{A0+1}")
                    I("s_mov_b64 exec, 0xff")
                    poll(n + "_pk7", [pl], [14], first_issued=True)
                    exec_all()
                else:
                    I(f"s_sub_u32 s{A0+1}, s{A0+1}, 1")
                    I(f"s_cmp_lt_u32 s{A0+1}, {sl}")
                    I(f"s_cselect_b32 s{A0}, {sl+1}, {sl}")
                I(f"s_add_u32 s{A0}, s{QB}, s{A0}")
            else:
                I(f"s_add_u32 s{A0}, s{QB}, {sl}")
            I(f"s_and_b32 s{A0}, s{A0}, 7")
            I(f"s_sub_u32 s{A0}, s{A0}, s{QB}")
            I(f"s_lshl_b32 s{A0}, s{A0}, 13")
            I(f"v_add_u32 v13, s{A0}, v4")
            vm.issue(f"global_load_dwordx4 {ar(stg(sl),4)}, v13, {sp(KB_)} sc1", f"r{sl}")
            vm.issue(f"global_load_dwordx4 {ar(stg(sl)+4,4)}, v13, {sp(VB_)} sc1", f"r{sl}")
        def rwrite(sl):
            if f"r{sl}" in vm.q: vm.wait(f"r{sl}")
            I(f"ds_write_b128 v15, {ar(stg(sl),4)} offset:{sl*8192}")
            I(f"ds_write_b128 v5, {ar(stg(sl)+4,4)} offset:{sl*8192}")
        PUB, PI, PC = [int(x) for x in ENV("POLL", "1,4,5").split(",")]
        PR = {}
        if ENV("PBAL", "1") == "1":
            PR = eval(ENV('PRS', '{4: 2, 6: 1, 7: 0, 8: 3, 11: 2, 12: 1, 13: 0, 14: 3, 18: 2, 20: 1, 21: 0, 22: 3, 30: 2, 34: 1, 36: 0, 38: 3}'))
        for u in range(8):
            ex = {}
            if u == PUB: ex[0] = publish_kv
            if u == PI: ex[0] = poll_issue
            if u == PC: ex[0] = lambda: (poll_check(), rload(1), rload(2))
            if u in PR: ex["p"] = PR[u]
            tile(u, ex, nokread=(u >= 6), noqk=(u == 7), novread=(u == 7), first=(u == 0))
        bump()
        k.stamp(name=f"x{n}_ch0a")
        rwrite(1)
        B2 = ENV("B2", "0") == "1"
        if B2: rwrite(2)
        bar()
        k.stamp(name=n + "_c0")
        prime()
        def wo_addr():
            I(f"s_lshl_b32 s{A0}, s{WAVE}, 16")
            I(f"s_lshl_b32 s{A0+1}, s{CG}, 7")
            I(f"s_add_u32 s{A0}, s{A0}, s{A0+1}")
            I("v_lshrrev_b32 v2, 3, v1")
            I(f"v_lshl_add_u32 v2, v2, 10, s{A0}")
            I("v_and_b32 v14, 7, v1")
            I("v_lshl_add_u32 v2, v14, 4, v2")
        def wo_load(i):
            vm.issue(f"global_load_dwordx4 {ar(AWO+4*i,4)}, v2, {sp(WOP)}", "wo")
            if i < 7: I("v_add_u32 v2, 0x2000, v2")
        def misc_loads():
            I(f"s_lshl_b32 s{A0}, s{KG}, 9")
            I(f"s_lshl_b32 s{A0+1}, s{OT}, 15")
            I(f"s_add_u32 s{A0}, s{A0}, s{A0+1}")
            I("v_and_b32 v10, 15, v1")
            I(f"v_lshl_add_u32 v{VXO}, v10, 4, s{A0}")
            I("v_lshrrev_b32 v10, 5, v1")
            I(f"v_lshl_add_u32 v{VXO}, v10, 8, v{VXO}")
            I("v_bfe_u32 v10, v1, 4, 1")
            I(f"v_lshl_add_u32 v{VXO}, v10, 14, v{VXO}")
            I("v_and_b32 v10, 31, v1")
            I(f"s_lshl_b32 s{A0}, s{OT}, 5")
            I(f"v_add_u32 v{VTK}, s{A0}, v10")
            I("v_lshrrev_b32 v10, 5, v1")
            I(f"s_lshl_b32 s{A0}, s{KG}, 5")
            I(f"v_lshl_add_u32 v14, v10, 3, s{A0}")
            vm.issue(f"global_load_dwordx2 {vr(WR,2)}, v14, {sp(WRP)}")
            vm.issue(f"global_load_dwordx2 {vr(WR+2,2)}, v14, {sp(WRP)} offset:16")
            I(f"v_lshl_add_u32 v14, v{VTK}, 10, v14")
            vm.issue(f"global_load_dwordx2 {vr(XG,2)}, v14, {sp(X0P)}")
            vm.issue(f"global_load_dwordx2 {vr(XG+2,2)}, v14, {sp(X0P)} offset:16")
        sched = {
            1: {(0,0): lambda: rload(3), (3,0): lambda: rload(4), (4,0): lambda: rwrite(2), (6,0): bar},
            2: {(0,0): lambda: rload(5), (3,0): lambda: rload(6), (4,0): lambda: rwrite(3), (5,0): lambda: rwrite(4), (6,0): bar},
            3: {(0,0): lambda: rload(7)},
            4: {(0,0): lambda: rwrite(5), (1,0): lambda: rwrite(6), (2,0): lambda: rwrite(7), (6,0): bar},
        }
        def touches():
            I(f"s_cmp_ge_u32 s{WAVE}, 5")
            I(f"s_cbranch_scc1 {lab('t_done')}")
            I(f"s_cmp_ge_u32 s{WAVE}, 2")
            I(f"s_cbranch_scc1 {lab('t_lin')}")
            I(f"s_mul_i32 s{A0}, s{QB}, 7")
            I(f"s_lshr_b32 s{A0}, s{A0}, 1")
            I(f"s_lshl_b32 s{A0}, s{A0}, 7")
            I(f"s_mul_i32 s{A0+1}, s{HEAD}, {16*3584}")
            I(f"s_add_u32 s{A0}, s{A0}, s{A0+1}")
            I("v_lshrrev_b32 v14, 2, v1")
            I("v_mul_u32_u24 v14, 3584, v14")
            I("v_and_b32 v10, 3, v1")
            I("v_lshl_add_u32 v14, v10, 7, v14")
            I(f"v_add_u32 v14, s{A0}, v14")
            I(f"s_cmp_eq_u32 s{WAVE}, 0")
            I(f"s_cselect_b32 s{T0}, s{WGP}, s{WUP}")
            I(f"s_cselect_b32 s{T0+1}, s{WGP+1}, s{WUP+1}")
            I(f"s_branch {lab('t_go')}")
            k.L(lab("t_lin"))
            I(f"s_lshl_b32 s{A0}, s{CGP}, 13")
            I(f"s_lshl_b32 s{A0+1}, s{HEAD}, 14")
            I(f"s_and_b32 s{A0+2}, s{WAVE}, 1")
            I(f"s_lshl_b32 s{A0+2}, s{A0+2}, 13")
            I(f"s_add_u32 s{A0+1}, s{A0+1}, s{A0+2}")
            I(f"s_cmp_eq_u32 s{WAVE}, 2")
            I(f"s_cselect_b32 s{A0}, s{A0}, s{A0+1}")
            I(f"s_cselect_b32 s{T0}, s{WDP}, s{WOP}")
            I(f"s_cselect_b32 s{T0+1}, s{WDP+1}, s{WOP+1}")
            I(f"v_lshl_add_u32 v14, v1, 7, s{A0}")
            k.L(lab("t_go"))
            I(f"global_load_dword v9, v14, {sp(T0)}")
            k.L(lab("t_done"))
        NU = 5
        if B2:
            del sched[1][(4,0)]; del sched[1][(6,0)]
            for t_ in (11, 12, 13, 14, 18, 20, 21): PR.pop(t_, None)
            PR.update({15: 2, 19: 1, 21: 0})
        if L == 0:
            NU = 6
            def pretouch():
                if ENV("PT") == "1":
                    I(f"s_cmp_lg_u32 s{WAVE}, 6")
                    I(f"s_cbranch_scc1 {lab('pt_done')}")
                    I("v_mul_u32_u24 v14, 0x50000, v1")
                    I(f"global_load_dword v11, v14, {sp(WSP)}")
                    I("v_lshlrev_b32 v14, 15, v1")
                    I(f"global_load_dword v11, v14, {sp(OUTP)}")
                    k.L(lab("pt_done"))
                else:
                    I("v_mul_u32_u24 v14, 0xa000, v0")
                    I(f"global_load_dword v11, v14, {sp(WSP)}")
                    I("v_lshlrev_b32 v14, 12, v0")
                    I(f"global_load_dword v11, v14, {sp(OUTP)}")
            if ENV("PT"): sched[2][(7,0)] = pretouch
            if ENV("TL", "1") == "0":
                sched[2][(6,1)] = touches
                sched[3][(3,0)] = wo_addr
                for i in range(4): sched[3][(4 + i, 0)] = (lambda i=i: wo_load(i))
                for i, u in enumerate((3, 4, 5, 7)): sched[4][(u, 0)] = (lambda i=i: wo_load(4 + i))
                sched[5] = {(0,0): lambda: ffn_gu(0), (2,0): misc_loads, (4,0): lambda: ffn_gu(1), (6,0): ffn_dn}
            else:
                sched[3][(0,1)] = touches
                sched[4][(3,0)] = wo_addr
                for i, u in enumerate((4, 5, 7)): sched[4][(u, 0)] = (lambda i=i: wo_load(i))
                sched[5] = {(i, 0): (lambda i=i: wo_load(3 + i)) for i in range(5)}
                sched[5][(5,0)] = lambda: ffn_gu(0)
                sched[5][(6,0)] = lambda: ffn_gu(1)
                sched[5][(7,0)] = ffn_dn
                sched[5][(7,1)] = misc_loads
            PR[40] = 3
        else:
            sched[2][(7,0)] = poll_issue
        for c in range(1, NU):
            for u in range(8):
                ex = {sl: f for (uu, sl), f in sched[c].items() if uu == u}
                if 8*c + u in PR: ex["p"] = PR[8*c + u]
                tile(u, ex)
            bump()
            k.stamp(name=f"x{n}_ch{c}")
        I(f"s_mov_b32 s{CTR}, {NU}")
        k.lines.append(".p2align 6")
        k.L(lab(n + "_loop"))
        if ENV("PEND", "1") == "0":
            I(f"s_cmp_lt_u32 s{CTR}, 5"); I(f"s_cbranch_scc1 {lab(n+'_pd')}")
            I("s_setprio 2")
            I(f"s_cmp_lt_u32 s{CTR}, 6"); I(f"s_cbranch_scc1 {lab(n+'_pd')}")
            I("s_setprio 1")
            I(f"s_cmp_lt_u32 s{CTR}, 7"); I(f"s_cbranch_scc1 {lab(n+'_pd')}")
            I("s_setprio 0")
            k.L(lab(n + "_pd"))
            for u in range(8): tile(u)
        else:
            I(f"s_cmp_lt_u32 s{CTR}, 6"); I(f"s_cbranch_scc1 {lab(n+'_pd')}")
            I("s_setprio 2")
            I(f"s_cmp_lt_u32 s{CTR}, 7"); I(f"s_cbranch_scc1 {lab(n+'_pd')}")
            I("s_setprio 1")
            k.L(lab(n + "_pd"))
            for u in range(8):
                if u == 5:
                    I(f"s_cmp_lt_u32 s{CTR}, 7"); I(f"s_cbranch_scc1 {lab(n+'_pe')}")
                    I("s_setprio 0")
                    k.L(lab(n + "_pe"))
                tile(u)
        bump()
        I(f"s_add_u32 s{CTR}, s{CTR}, 1")
        I(f"s_cmp_lt_u32 s{CTR}, 8")
        I(f"s_cbranch_scc1 {lab(n+'_loop')}")
        mfma(O, vr(VA[1]+4,4), vr(P1,4), O)
        I("s_waitcnt lgkmcnt(0)")
        k.stamp(name=n + "_attn")
        k.nop(12)
        I(f"s_cmp_lg_u32 s{PASS}, 0")
        I(f"s_cbranch_scc1 {lab(n+'_fin')}")
        I(f"v_cmp_nge_f32 vcc, s{THR}, v{O+8}")
        k.nop(2)
        I(f"s_cbranch_vccz {lab(n+'_fin')}")
        I(f"s_mov_b32 s{PASS}, 1")
        I(f"v_mov_b32 v{AK}, v3")
        I("v_mov_b32 v2, 0xff800000")
        I(f"s_mov_b32 s{CTR}, 0")
        k.L(lab(n + "_maxloop"))
        I(f"ds_read_b128 {vr(KB,4)}, v{AK}")
        I("s_waitcnt lgkmcnt(0)")
        mfma(S0, vr(KB,4), vr(Q,4), None)
        I(f"v_add_u32 v{AK}, 0x400, v{AK}")
        k.nop(12)
        max16(2, S0, False)
        I(f"s_add_u32 s{CTR}, s{CTR}, 1")
        I(f"s_cmp_lt_u32 s{CTR}, 64")
        I(f"s_cbranch_scc1 {lab(n+'_maxloop')}")
        setup()
        I(f"s_mov_b32 s{CTR}, 0")
        I(f"s_branch {lab(n+'_loop')}")
        k.L(lab(n + "_fin"))
        I(f"v_rcp_f32 v2, v{O+8}")
        I("s_nop 0")
        for r in range(8): I(f"v_mul_f32 v{O+r}, v{O+r}, v2")
        for r in range(4): I(f"v_cvt_pk_bf16_f32 v{P0+r}, v{O+2*r}, v{O+2*r+1}")
        I(f"global_store_dwordx4 v4, {vr(P0,4)}, {sp(OB_)} sc1")

    def oproj(L):
        n = f"l{L}"
        OBf, AC, X, Y = 64, 32, 96, 16
        lane_terms()
        I(f"s_lshl_b32 s{A0}, s{KQ}, 19")
        I(f"s_lshl_b32 s{A0+1}, s{OT}, 10")
        I(f"s_add_u32 s{A0}, s{A0}, s{A0+1}")
        I(f"v_add_u32 v10, s{A0}, v3")
        I(f"s_lshl_b32 s{A0}, s{WAVE}, 13")
        I(f"s_add_u32 s{A0}, s{A0}, 0x10000")
        I(f"v_add_u32 v12, s{A0}, v3")
        I(f"s_lshl_b32 s{A0}, s{TT}, 12")
        I(f"s_lshl_b32 s{A0+1}, s{HEAD}, 7")
        I(f"s_add_u32 s{A0}, s{A0}, s{A0+1}")
        I(f"s_add_u32 s{A0}, s{A0}, {hex(FLO[L])}")
        I(f"v_mov_b32 v13, s{A0}")
        I(f"v_mov_b32 v14, s{TAG}")
        I(f"s_lshl_b32 s{A0}, s{OT}, 12")
        I(f"s_lshl_b32 s{A0+1}, s{KQ}, 10")
        I(f"s_add_u32 s{A0}, s{A0}, s{A0+1}")
        I(f"s_add_u32 s{A0}, s{A0}, {hex(FLO[L])}")
        I(f"v_lshl_add_u32 v31, v1, 7, s{A0}")
        FLW = ENV("FLW", "0") == "1"
        if not FLW:
            I(f"s_lshl_b32 s{A0}, s{QB}, 15")
            I(f"s_add_u32 s{A0}, s{A0}, {hex(FLO[L])}")
            I(f"v_lshl_add_u32 v31, v6, 7, s{A0}")
        vm.drain()
        if not FLW:
            I("s_barrier")
            I(f"s_cmp_lg_u32 s{WAVE}, 0")
            I(f"s_cbranch_scc1 {lab(n+'_nof')}")
        I("s_mov_b64 exec, 1")
        I(f"global_store_dword v13, v14, {sp(WSP)} sc1")
        exec_all()
        if not FLW: k.L(lab(n + "_nof"))
        if L == 0 and FLW: I("s_barrier")
        k.stamp(name=n + "_odrain")
        if L == 0:
            for i in range(8): I(f"ds_write_b128 v12, {ar(AWO+4*i,4)} offset:{1024*i}")
            I(f"global_load_dwordx4 v[16:19], v3, {sp(WRP)}")
            I(f"s_lshl_b32 s{A0}, s{WAVE}, 11")
            I(f"v_lshl_add_u32 v13, v1, 5, s{A0}")
            I(f"ds_write_b128 v13, {ar(AGU,4)}")
            I(f"ds_write_b128 v13, {ar(AGU+4,4)} offset:16")
            I(f"v_add_u32 v13, s{W1K}, v3")
            I(f"ds_write_b128 v13, {ar(ADN,4)} offset:16384")
            I("v_bfe_u32 v13, v1, 2, 2")
            I("v_and_b32 v14, 3, v1")
            I("v_lshl_add_u32 v12, v7, 2, v13")
            I("v_lshlrev_b32 v12, 7, v12")
            I("v_lshl_add_u32 v12, v14, 3, v12")
            I("v_bfe_u32 v15, v1, 4, 1")
            I("v_lshl_add_u32 v12, v15, 5, v12")
            I(f"s_lshl_b32 s{A0+1}, s{KQ}, 5")
            I(f"v_xor_b32 v12, s{A0+1}, v12")
            I(f"s_lshl_b32 s{A0+1}, s{KQ}, 14")
            I(f"s_add_u32 s{A0+1}, s{A0+1}, 0x10000")
            I(f"v_add_u32 v12, s{A0+1}, v12")
            I("v_xor_b32 v15, 64, v12")
            bar()
            for i in range(8):
                for b in range(2):
                    I(f"ds_read_b64_tr_b16 {ar(AWO+8*i+4*b,2)}, v{15 if b else 12} offset:{2048*i}")
                    I(f"ds_read_b64_tr_b16 {ar(AWO+8*i+4*b+2,2)}, v{15 if b else 12} offset:{2048*i+1024}")
                if i % 2 == 1: I("s_waitcnt lgkmcnt(0)")
            I("v_lshrrev_b32 v15, 4, v1")
            I("v_lshl_add_u32 v13, v15, 3, v13")
            I("v_lshlrev_b32 v13, 5, v13")
            I("v_lshl_add_u32 v13, v14, 3, v13")
            I(f"v_add_u32 v13, s{A0}, v13")
            for i in range(2):
                I(f"ds_read_b64_tr_b16 {ar(AGU+4*i,2)}, v13 offset:{1024*i}")
                I(f"ds_read_b64_tr_b16 {ar(AGU+4*i+2,2)}, v13 offset:{1024*i+128}")
            I("v_lshlrev_b32 v13, 1, v0")
            for f in range(8): I(f"ds_read_u16 a{ADN+f}, v13 offset:{16384+1024*f}")
            I("v_mov_b32 v20, 0")
            I("s_waitcnt vmcnt(0)")
            for r in range(4): I(f"v_dot2_f32_bf16 v20, v{16+r}, s{ONES}, v20")
            k.nop(1)
            allreduce("v_add_f32", 20, 21)
            I("s_nop 0")
            I(f"v_readfirstlane_b32 s{WSUM}, v20")
        NF = 0
        I(f"s_lshl_b32 s{A0}, s{OA}, 15")
        for g in range(4):
            I(f"s_xor_b32 s{A0+1}, s{KQ}, {g}")
            I(f"s_lshl_b32 s{A0+1}, s{A0+1}, 13")
            I(f"s_add_u32 s{A0+1}, s{A0+1}, s{A0}")
            I(f"v_add_u32 v{27+g}, s{A0+1}, v3")
        for i in range(4): unpack(X + 2*i, X + 2*i + 1, XG + i)
        if L == 1:
            for r in range(8): I(f"v_sub_f32 v{Y+r}, v{X+r}, v{RESM}")
            for r in range(8): I(f"v_mul_f32 v{Y+r}, v{Y+r}, v{RESR}")
            for i in range(4): I(f"v_cvt_pk_bf16_f32 v{XG+i}, v{Y+2*i}, v{Y+2*i+1}")
            for i in range(4): unpack(Y + 2*i, Y + 2*i + 1, XG + i)
            for r in range(8): I(f"v_add_f32 v{X+r}, v{X+r}, v{Y+r}")
            for i in range(4): I(f"v_cvt_pk_bf16_f32 v{XG+i}, v{X+2*i}, v{X+2*i+1}")
            for i in range(4): unpack(X + 2*i, X + 2*i + 1, XG + i)
        if L == 1:
            I("v_lshlrev_b32 v13, 2, v6")
            I(f"v_add_u32 v13, {LKY}, v13")
            I("ds_read_b32 v16, v13")
            I("s_waitcnt lgkmcnt(0)")
            for rnd in range(3):
                I("v_mov_b32 v17, v16")
                dppred("v_max_u32", 17, Q4 + ("row_half_mirror", "row_mirror"))
                swapop("v_permlane16_swap_b32", "v_max_u32", 17, 18)
                I("v_cmp_ne_u32 vcc, v17, v16")
                if rnd: I(f"v_readfirstlane_b32 s{(CA, CB_)[rnd-1]}, v17")
                else: I("s_nop 0")
                I("s_nop 0")
                I("v_cndmask_b32 v16, 0, v16, vcc")
            for c_ in (CA, CB_):
                I(f"s_and_b32 s{c_}, s{c_}, 0x7ff")
                I(f"s_sub_u32 s{c_}, 2047, s{c_}")
        if FLW:
            I("s_mov_b64 exec, 0xff")
        else:
            I(f"s_cmp_lg_u32 s{WAVE}, 0")
            I(f"s_cbranch_scc1 {lab(n+'_owait')}")
            exec_lo(-1)
            if ENV("OACK"): I("s_waitcnt vmcnt(0)")
        if ENV("PP") and not FLW:
            ppoll(n + "_po", lambda r: f"global_load_dword v{r}, v31, {sp(WSP)} sc1", 1, 0, [14, 15, 13], int(ENV("PP")))
        else:
            poll(n + "_po", [f"global_load_dword v14, v31, {sp(WSP)} sc1"], [14])
        exec_all()
        if not FLW:
            k.L(lab(n + "_owait"))
            bar()
        k.stamp(name=n + "_opoll")
        for i in range(8):
            I(f"global_load_dwordx4 {vr(OBf+4*i,4)}, v10, {sp(OB_)} sc1")
            if i < 7: I("v_add_u32 v10, 0x10000, v10")
        for i in range(8):
            I(f"s_waitcnt vmcnt({7-i+NF})")
            for b in range(2): mfma(AC + 16*b, ar(AWO+8*i+4*b,4), vr(OBf+4*i,4), AC + 16*b if i else None)
        if FLW: bar()
        k.stamp(name=n + "_omm")
        I(f"s_lshl_b32 s{A0}, s{OA}, 12")
        I(f"s_lshl_b32 s{A0+1}, s{KQ}, 10")
        I(f"s_add_u32 s{A0}, s{A0}, s{A0+1}")
        I(f"s_add_u32 s{A0}, s{A0}, {LSA}")
        I(f"v_add_u32 v13, s{A0}, v3")
        sadd64(XB_, WSP, XF[L])
        k.nop(5)
        for g in range(1, 4):
            for hf in range(2): I(f"ds_write_b128 v{27+g}, {vr(AC+8*g+4*hf,4)} offset:{2048*g+1024*hf}")
        for r in range(8): I(f"v_add_f32 v{AC+r}, v{AC+r}, v{X+r}")
        bar()
        k.stamp(name="x" + n + "_red")
        for g in range(1, 4):
            for hf in range(2): I(f"ds_read_b128 {vr(AC+8*g+4*hf,4)}, v27 offset:{2048*g+1024*hf}")
        I("s_waitcnt lgkmcnt(4)")
        for r in range(8): I(f"v_add_f32 v{AC+r}, v{AC+r}, v{AC+8+r}")
        I("s_waitcnt lgkmcnt(0)")
        for r in range(8): I(f"v_add_f32 v{AC+16+r}, v{AC+16+r}, v{AC+24+r}")
        for r in range(8): I(f"v_add_f32 v{AC+r}, v{AC+r}, v{AC+16+r}")
        for i in range(4): I(f"v_cvt_pk_bf16_f32 v{24+i}, v{AC+2*i}, v{AC+2*i+1}")
        for i in range(4): I(f"v_mov_b32 v{XG+i}, v{24+i}")
        I("v_permlane32_swap_b32 v24, v26")
        I("v_permlane32_swap_b32 v25, v27")
        I(f"global_store_dwordx4 v{VXO}, v[24:27], {sp(XB_)} sc1")
        for i in range(4):
            I(f"v_dot2_f32_bf16 v16, v{XG+i}, s{ONES}, {'v16' if i else 0}")
            I(f"v_dot2_f32_bf16 v17, v{XG+i}, v{XG+i}, {'v17' if i else 0}")
            I(f"v_dot2_f32_bf16 v18, v{XG+i}, v{WR+i}, {'v18' if i else 0}")
        k.nop(3)
        I("ds_write_b96 v13, v[16:18]")
        k.stamp(name="x" + n + "_epi")
        I("s_waitcnt vmcnt(0) lgkmcnt(0)")
        k.stamp(name="x" + n + "_xdrain")
        I("s_waitcnt vmcnt(0) lgkmcnt(0)")
        I("s_barrier")
        I(f"s_cmp_lg_u32 s{WAVE}, 0")
        I(f"s_cbranch_scc1 {lab(n+'_nost')}")
        I("v_lshlrev_b32 v13, 4, v6")
        I("v_lshl_add_u32 v13, v7, 12, v13")
        I(f"v_add_u32 v13, {LSA}, v13")
        for j in range(8): I(f"ds_read_b96 {vr(32+4*j,3)}, v13 offset:{512*j}")
        I(f"s_lshl_b32 s{A0}, s{TB}, 3")
        I(f"s_add_u32 s{A0}, s{A0}, s{CG}")
        I(f"s_lshl_b32 s{A0}, s{A0}, 10")
        I(f"s_add_u32 s{A0}, s{A0}, {hex(ST[L])}")
        I(f"v_add_u32 v13, s{A0}, v3")
        I(f"v_mov_b32 v35, s{TAG}")
        I("s_waitcnt lgkmcnt(0)")
        for j in range(1, 8):
            for c in range(3): I(f"v_add_f32 v{32+c}, v{32+c}, v{32+4*j+c}")
        I(f"global_store_dwordx4 v13, v[32:35], {sp(WSP)} sc1")
        k.L(lab(n + "_nost"))
        k.stamp(name=n + "_stpub")

    def hop_a(L, after_poll=None, before_poll=None, after_bar=None, shadow=None):
        n = f"l{L}"
        I(f"s_lshl_b32 s{A0}, s{TB}, 13")
        I(f"s_add_u32 s{A0}, s{A0}, {hex(ST[L])}")
        I(f"v_lshl_add_u32 v12, v0, 4, s{A0}")
        loads = [f"global_load_dwordx4 v[32:35], v12, {sp(WSP)} sc1"]; tags = [35]
        if ENV("HA2", "1") == "1":
            I(f"s_cmp_lg_u32 s{WAVE}, 0")
            I(f"s_cbranch_scc1 {lab(n+'_a1')}")
            if ENV("P1", "ack") == "ack":
                I("s_waitcnt vmcnt(0)")
            else:
                I(f"s_lshl_b32 s{A0+1}, s{CG}, 10")
                I(f"s_add_u32 s{A0}, s{A0}, s{A0+1}")
                I(f"s_add_u32 s{A0}, s{A0}, 1020")
                I(f"v_mov_b32 v13, s{A0}")
                exec_lo(1)
                poll(n + "_p1", [f"global_load_dword v36, v13, {sp(WSP)} sc1"], [36])
                exec_all()
            k.L(lab(n + "_a1"))
            I("s_barrier")
        if True:
            if L == 0:
                I(f"s_lshr_b32 s{A0}, s{TT}, 1")
                I(f"s_lshl_b32 s{A0}, s{A0}, 13")
                I(f"s_add_u32 s{A0}, s{A0}, {hex(ST[L] + 12)}")
                I("v_and_b32 v13, 7, v1")
                I(f"v_lshl_add_u32 v13, v13, 10, s{A0}")
                loads.append(f"global_load_dword v36, v13, {sp(WSP)} sc1"); tags.append(36)
        if before_poll: before_poll()
        for l in loads: I(l)
        if shadow: shadow()
        poll(n + "_pa", loads, tags, first_issued=True)
        I("v_lshlrev_b32 v13, 4, v0")
        I("ds_write_b96 v13, v[32:34]")
        if after_poll: after_poll()
        bar()
        k.stamp(name=n + "_hopa")
        if after_bar: after_bar()
        for c in range(8): I(f"ds_read_b96 {vr(16+4*c,3)}, v3 offset:{1024*c}")
        I("s_waitcnt lgkmcnt(0)")
        for a_, b_ in ((0,1),(2,3),(4,5),(6,7),(0,2),(4,6),(0,4)):
            for c in range(3): I(f"v_add_f32 v{16+4*a_+c}, v{16+4*a_+c}, v{16+4*b_+c}")
        rowstats(16, 17, RESM, 20, RESR)
        I(f"s_or_b32 s{A0}, s{CG}, s{WAVE}")
        I(f"s_cmp_lg_u32 s{A0}, 0")
        I(f"s_cbranch_scc1 {lab(n+'_nokey')}")
        I(f"v_fma_f32 v18, -v{RESM}, s{WSUM}, v18")
        I(f"v_mul_f32 v18, v18, v{RESR}")
        bf16r(18)
        I("v_ashrrev_i32 v19, 31, v18")
        I("v_or_b32 v19, 0x80000000, v19")
        I("v_xor_b32 v19, v19, v18")
        I("v_and_b32 v19, 0xffff0000, v19")
        I(f"s_lshl_b32 s{A0}, s{TB}, 6")
        I(f"s_sub_u32 s{A0}, 2047, s{A0}")
        I(f"v_sub_u32 v20, s{A0}, v1")
        I("v_or_b32 v20, v19, v20")
        I("v_mov_b32 v24, v20")
        allreduce("v_max_u32", 24, 25)
        I("v_cmp_eq_u32 vcc, v24, v20")
        I(f"s_lshl_b32 s{A0}, s{TB}, 7")
        I(f"s_add_u32 s{A0}, s{A0}, {hex(KEY[L])}")
        I(f"s_ff1_i32_b64 s{A0+1}, vcc")
        I(f"v_lshl_add_u32 v13, v1, 12, s{A0}")
        I(f"v_mov_b32 v27, s{TAG}")
        I(f"v_readlane_b32 s{A0+2}, v{RESM}, s{A0+1}")
        I(f"v_readlane_b32 s{A0+3}, v{RESR}, s{A0+1}")
        I("s_mov_b64 exec, 0xff")
        I("s_nop 0")
        I(f"v_mov_b32 v25, s{A0+2}")
        I(f"v_mov_b32 v26, s{A0+3}")
        I(f"global_store_dwordx4 v13, v[24:27], {sp(WSP)} sc1")
        exec_all()
        k.L(lab(n + "_nokey"))
        I(f"v_mov_b32 v16, v{RESM}")
        I(f"v_mov_b32 v17, v{RESR}")
        I(f"s_cmp_eq_u32 s{OA}, 1")
        I("s_cselect_b64 vcc, -1, 0")
        I(f"v_permlane32_swap_b32 v{RESM}, v16")
        I(f"v_permlane32_swap_b32 v{RESR}, v17")
        I(f"v_cndmask_b32 v{RESM}, v{RESM}, v16, vcc")
        I(f"v_cndmask_b32 v{RESR}, v{RESR}, v17, vcc")
        k.stamp(name="x" + n + "_key")

    FT = 76
    SR = 96
    stat_loads = [f"global_load_dwordx4 {vr(SR+4*i,4)}, v11, {sp(WSP)} offset:{1024*i} sc1" for i in range(4)]
    stat_tags = [SR + 4*i + 3 for i in range(4)]
    def own_stats():
        for i in range(1, 4):
            for c in range(2): I(f"v_add_f32 v{SR+c}, v{SR+c}, v{SR+4*i+c}")
        halfsum("v_add_f32", SR, SR + 2)
        halfsum("v_add_f32", SR + 1, SR + 2)
        rowstats(SR, SR + 1, MT[0], SR + 2, SR + 3)
        I(f"v_mov_b32 v{AT[0]}, s{CEPS}")
        I(f"v_add_f32 v{SR+3}, 1.0, v{SR+3}")
        I(f"v_mul_f32 v{SR+2}, v{SR+2}, v{SR+3}")
        I(f"v_fmac_f32 v{AT[0]}, v{SR+2}, v{SR+3}")
        I(f"v_rsq_f32 v{AT[0]}, v{AT[0]}")
        I(f"v_mov_b32 v{MT[1]}, v{MT[0]}")
        I(f"v_mul_f32 v{AT[0]}, v{AT[0]}, v{SR+3}")
        I(f"v_mov_b32 v{AT[1]}, v{AT[0]}")
        I(f"v_permlane16_swap_b32 v{MT[0]}, v{MT[1]}")
        I("s_nop 0")
        I(f"v_permlane16_swap_b32 v{AT[0]}, v{AT[1]}")
    def key_load(L):
        return f"global_load_dwordx4 {vr(FT,4)}, v{FT+4}, {sp(WSP)} sc1"
    def hop_b_issue(L, sfx=""):
        I(f"s_lshl_b32 s{A0}, s{QB}, 12")
        I(f"s_add_u32 s{A0}, s{A0}, {hex(KEY[L])}")
        I(f"v_lshl_add_u32 v{FT+4}, v6, 7, s{A0}")
        I(f"s_cmp_lg_u32 s{WAVE}, 0")
        I(f"s_cbranch_scc1 {lab(f'l{L}_nki{sfx}')}")
        I(key_load(L))
        k.L(lab(f"l{L}_nki{sfx}"))
    def hop_b(L, role=""):
        n = f"l{L}{role}"
        I(f"v_mov_b32 v{FT+6}, {LFF}")
        I(f"s_cmp_lg_u32 s{WAVE}, 0")
        I(f"s_cbranch_scc1 {lab(n+'_kw')}")
        keepq = list(vm.q)
        poll(n + "_pb", [key_load(L)], [FT + 3], first_issued=True)
        vm.q = keepq
        if L == 0:
            I(f"v_lshlrev_b32 v{FT+5}, 2, v6")
            I(f"v_add_u32 v{FT+5}, {LKY}, v{FT+5}")
            I(f"ds_write_b32 v{FT+5}, v{FT}")
        I(f"v_mov_b32 v{FT+5}, v{FT}")
        dppred("v_max_u32", FT + 5, Q4 + ("row_half_mirror", "row_mirror"))
        swapop("v_permlane16_swap_b32", "v_max_u32", FT + 5, FT + 7)
        I(f"v_cmp_eq_u32 vcc, v{FT+5}, v{FT}")
        I("s_mov_b64 exec, vcc")
        I(f"ds_write_b96 v{FT+6}, {vr(FT,3)}")
        exec_all()
        k.L(lab(n + "_kw"))
        bar()
        I(f"ds_read_b96 {vr(FT,3)}, v{FT+6}")
        I("s_waitcnt lgkmcnt(0)")
        I(f"v_readfirstlane_b32 s{IDX}, v{FT}")
        I(f"v_readfirstlane_b32 s{RM}, v{FT+1}")
        I(f"v_readfirstlane_b32 s{RR}, v{FT+2}")
        I(f"s_and_b32 s{RS_}, s{IDX}, 0xffff0000")
        I(f"s_and_b32 s{IDX}, s{IDX}, 0x7ff")
        I(f"s_sub_u32 s{IDX}, 2047, s{IDX}")
        I(f"s_ashr_i32 s{A0}, s{RS_}, 31")
        I(f"s_not_b32 s{A0}, s{A0}")
        I(f"s_or_b32 s{A0}, s{A0}, 0x80000000")
        I(f"s_xor_b32 s{RS_}, s{RS_}, s{A0}")
        I(f"s_and_b32 s{RS_}, s{RS_}, 0xffff0000")
        if L == 1:
            I(f"s_cmp_eq_u32 s{IDX}, s{CA}")
            I(f"s_cselect_b32 s{YSEL}, 1, 0")
            I(f"s_cmp_eq_u32 s{IDX}, s{CB_}")
            I(f"s_cselect_b32 s{YSEL}, 2, s{YSEL}")
            I(f"s_cmp_lg_u32 s{YSEL}, 0")
            I(f"s_cbranch_scc1 {lab('hit')}")
        I(f"s_lshr_b32 s{A0}, s{IDX}, 4")
        I(f"s_lshl_b32 s{A0}, s{A0}, 14")
        I(f"s_and_b32 s{A0+1}, s{IDX}, 15")
        I(f"s_lshl_b32 s{A0+1}, s{A0+1}, 4")
        I(f"s_add_u32 s{A0}, s{A0}, s{A0+1}")
        I("s_cmp_ge_u32 s2, 224")
        I(f"s_cbranch_scc1 {lab(n+'_frow')}")
        I(f"s_lshl_b32 s{A0+1}, s{WAVE}, 11")
        I(f"s_add_u32 s{A0}, s{A0}, s{A0+1}")
        I(f"v_and_b32 v{FT+4}, 48, v1")
        I(f"v_lshl_add_u32 v{FT+4}, v{FT+4}, 4, s{A0}")
        I(f"v_add_u32 v{FT+5}, 0x400, v{FT+4}")
        I(f"s_branch {lab(n+'_rowld')}")
        k.L(lab(n + "_frow"))
        I(f"s_sub_u32 s{A0+1}, s2, 224")
        I(f"s_lshl_b32 s{A0+1}, s{A0+1}, 9")
        I(f"s_add_u32 s{A0}, s{A0}, s{A0+1}")
        I(f"v_bfe_u32 v{FT+4}, v1, 3, 1")
        I(f"v_lshl_add_u32 v{FT+4}, v{FT+4}, 8, s{A0}")
        I(f"v_mov_b32 v{FT+5}, v{FT+4}")
        k.L(lab(n + "_rowld"))
        vm.issue(f"global_load_dwordx4 {vr(FT+8,4)}, v{FT+4}, {sp(XB_)} sc1", "row")
        vm.issue(f"global_load_dwordx4 {vr(FT+12,4)}, v{FT+5}, {sp(XB_)} sc1", "row")
    def slice1(L):
        n = f"l{L}"
        XR = FT + 8
        I(f"v_mov_b32 v{FT+2}, s{RM}")
        I(f"v_mul_f32 v{FT+2}, s{RR}, v{FT+2}")
        I(f"v_and_b32 v{FT+4}, 48, v1")
        I(f"s_lshl_b32 s{A0}, s{WAVE}, 6")
        I(f"s_add_u32 s{A0}, s{A0}, {LFF + 256}")
        I(f"v_add_u32 v{FT+4}, s{A0}, v{FT+4}")
        yp_addr(FT + 5, L)
        I(f"v_and_b32 v{FT+6}, 15, v1")
        I(f"v_lshlrev_b32 v{FT+6}, 2, v{FT+6}")
        I(f"v_add_u32 v{FT+6}, {LFF + 256}, v{FT+6}")
        for f in range(8): I(f"v_accvgpr_read_b32 v{FT+20+f}, a{ADN+f}")
        for f in range(8): I(f"v_lshlrev_b32 v{FT+20+f}, 16, v{FT+20+f}")
        vm.wait("row")
        k.stamp(name="x" + n + "_row")
        I("s_cmp_ge_u32 s2, 224")
        I(f"s_cbranch_scc1 {lab(n+'_s1skip')}")
        for i in range(8):
            t0 = FT + 16 + 2*(i & 1)
            unpack(t0, t0 + 1, XR + i)
            I(f"v_fma_f32 v{t0}, v{t0}, s{RR}, -v{FT+2}")
            I(f"v_fma_f32 v{t0+1}, v{t0+1}, s{RR}, -v{FT+2}")
            I(f"v_cvt_pk_bf16_f32 v{XR+i}, v{t0}, v{t0+1}")
        k.nop(2)
        I(f"v_mfma_f32_16x16x32_bf16 {vr(FT+16,4)}, {ar(AGU,4)}, {vr(XR,4)}, 0")
        I(f"v_mfma_f32_16x16x32_bf16 {vr(FT+16,4)}, {ar(AGU+4,4)}, {vr(XR+4,4)}, {vr(FT+16,4)}")
        I("s_mov_b32 exec_lo, 0x00010001")
        I("s_mov_b32 exec_hi, 0x00010001")
        k.nop(6)
        I(f"ds_write_b128 v{FT+4}, {vr(FT+16,4)}")
        exec_all()
        bar()
        k.L(lab(n + "_s1skip"))
    def slice2(L):
        n = f"l{L}"
        I("s_cmp_ge_u32 s2, 224")
        I(f"s_cbranch_scc1 {lab(n+'_s2skip')}")
        for i in range(8): I(f"ds_read_b32 v{FT+8+i}, v{FT+6} offset:{64*i}")
        I("s_waitcnt lgkmcnt(0)")
        g = FT + 8
        for a_, b_ in ((0,1),(2,3),(4,5),(6,7),(0,2),(4,6),(0,4)): I(f"v_add_f32 v{g+a_}, v{g+a_}, v{g+b_}")
        bf16r(g)
        t = FT
        I(f"v_mul_f32 v{t}, {hex(f2u(-LOG2E))}, v{g}")
        I(f"v_exp_f32 v{t}, v{t}")
        I("s_nop 0")
        I(f"v_add_f32 v{t}, 1.0, v{t}")
        I(f"v_rcp_f32 v{t}, v{t}")
        I("s_nop 0")
        I(f"v_mul_f32 v{t}, v{t}, v{g}")
        bf16r(t)
        k.nop(2)
        I(f"v_mul_f32_dpp v{t}, v{g}, v{t} row_ror:8 row_mask:0xf bank_mask:0xf")
        bf16r(t)
        k.nop(1)
        for f in range(8): I(f"v_readlane_b32 s{A0+f}, v{t}, {f}")
        I(f"v_mul_f32 v{FT+2}, s{A0}, v{FT+20}")
        I(f"v_mul_f32 v{FT+3}, s{A0+1}, v{FT+21}")
        for f in range(2, 8): I(f"v_fmac_f32 v{FT+2+(f&1)}, s{A0+f}, v{FT+20+f}")
        I(f"v_add_f32 v{FT+2}, v{FT+2}, v{FT+3}")
        I(f"v_min_u32 v{FT+2}, 0xfffffffe, v{FT+2}")
        I(f"global_store_dword v{FT+5}, v{FT+2}, {sp(WSP)} sc1")
        k.L(lab(n + "_s2skip"))
    def x_elem(XR, t6):
        I(f"v_bfe_u32 v{t6}, v1, 1, 1")
        I(f"v_cmp_eq_u32 vcc, 1, v{t6}")
        I(f"v_bfe_u32 v{t6}, v1, 2, 1")
        I("s_nop 0")
        I(f"v_cndmask_b32 v{XR}, v{XR}, v{XR+1}, vcc")
        I(f"v_cndmask_b32 v{XR+2}, v{XR+2}, v{XR+3}, vcc")
        I(f"v_cmp_eq_u32 vcc, 1, v{t6}")
        I(f"v_and_b32 v{t6}, 1, v1")
        I("s_nop 0")
        I(f"v_cndmask_b32 v{XR}, v{XR}, v{XR+2}, vcc")
        I(f"v_cmp_eq_u32 vcc, 1, v{t6}")
        unpack(XR + 1, XR + 2, XR)
        I(f"v_cndmask_b32 v{XR}, v{XR+1}, v{XR+2}, vcc")
    def gather(name, bufs, B, ldsoff, light=True):
        I(f"s_sub_u32 s{A0}, s2, 224")
        I(f"s_mul_i32 s{A0+1}, s{A0}, {224*64}")
        I(f"s_add_u32 s{A0+1}, s{A0+1}, {hex(bufs[0]) if isinstance(bufs[0], int) else bufs[0]}")
        I(f"v_min_u32 v{B}, 447, v0")
        I(f"v_lshl_add_u32 v{B}, v{B}, 4, s{A0+1}")
        I(f"v_add_u32 v{B+1}, {448*16}, v{B}")
        for j in range(1, len(bufs)):
            I(f"v_add_u32 v{B+2*j}, {hex(bufs[j] - bufs[0])}, v{B}")
            I(f"v_add_u32 v{B+2*j+1}, {hex(bufs[j] - bufs[0])}, v{B+1}")
        Y_ = B + 8; nb = len(bufs)
        keepq = list(vm.q)
        def ychk():
            I(f"v_max3_u32 v{B+4}, v{Y_}, v{Y_+1}, v{Y_+2}")
            for r in range(3, 8*nb - 1, 2): I(f"v_max3_u32 v{B+4}, v{B+4}, v{Y_+r}, v{Y_+r+1}")
            I(f"v_max_u32 v{B+4}, v{B+4}, v{Y_+8*nb-1}")
            I(f"v_cmp_eq_u32 vcc, -1, v{B+4}")
        if light:
            I("s_mov_b64 exec, 1")
            poll(name + "_pl", [f"global_load_dword v{Y_}, v{B+2*nb-1}, {sp(WSP)} sc1"], [0], check=lambda: I(f"v_cmp_eq_u32 vcc, -1, v{Y_}"))
            exec_all()
        poll(name + "_pf", [f"global_load_dwordx4 {vr(Y_+4*j,4)}, v{B+j}, {sp(WSP)} sc1" for j in range(2*nb)], [0], check=ychk)
        vm.q = keepq
        for j in range(nb):
            for c in range(4): I(f"v_add_f32 v{Y_+8*j+c}, v{Y_+8*j+c}, v{Y_+8*j+4+c}")
        for m in ("row_shr:4", "row_shr:8"):
            k.nop(1)
            for j in range(nb):
                for c in range(4): I(f"v_add_f32_dpp v{Y_+8*j+c}, v{Y_+8*j+c}, v{Y_+8*j+c} {m} row_mask:0xf bank_mask:0xf bound_ctrl:0")
        for sw in ("v_permlane16_swap_b32", "v_permlane32_swap_b32"):
            for j in range(nb):
                for c in range(4): I(f"v_mov_b32 v{Y_+8*j+4+c}, v{Y_+8*j+c}")
            k.nop(1)
            for j in range(nb):
                for c in range(4): I(f"{sw} v{Y_+8*j+c}, v{Y_+8*j+4+c}")
            for j in range(nb):
                for c in range(4): I(f"v_add_f32 v{Y_+8*j+c}, v{Y_+8*j+c}, v{Y_+8*j+4+c}")
        I(f"v_and_b32 v{B+4}, 3, v1")
        I(f"s_lshl_b32 s{A0+1}, s{WAVE}, 6")
        I(f"s_add_u32 s{A0+1}, s{A0+1}, {ldsoff}")
        I(f"v_lshl_add_u32 v{B+4}, v{B+4}, 4, s{A0+1}")
        exec_lo("0xf000")
        for j in range(nb): I(f"ds_write_b128 v{B+4}, {vr(Y_+8*j,4)} offset:{512*j}")
        exec_all()
    def finish_row(L, XR, rd):
        n = f"l{L}"
        Y_ = FT + 16
        for i in range(7): I(f"ds_read_b32 v{Y_+i}, v{rd} offset:{64*i}")
        t = FT
        I(f"v_mov_b32 v{t}, {hex(f2u(-LOG2E))}")
        I(f"v_mul_f32 v{t}, s{RS_}, v{t}")
        I(f"v_exp_f32 v{t}, v{t}")
        I(f"v_subrev_f32 v{t+1}, s{RM}, v{XR}")
        I(f"v_add_f32 v{t}, 1.0, v{t}")
        I(f"v_rcp_f32 v{t}, v{t}")
        I(f"v_mul_f32 v{t+1}, s{RR}, v{t+1}")
        bf16r(t); bf16r(t + 1)
        I("s_waitcnt lgkmcnt(0)")
        for a_, b_ in ((0,1),(2,3),(4,5),(0,2),(4,6),(0,4)): I(f"v_add_f32 v{Y_+a_}, v{Y_+a_}, v{Y_+b_}")
        bf16r(Y_)
        I(f"v_mul_f32 v{Y_}, v{Y_}, v{t}")
        bf16r(Y_)
        I(f"v_add_f32 v{Y_}, v{Y_}, v{t+1}")
        bf16r(Y_)
        I(f"v_add_f32 v{Y_}, v{Y_}, v{XR}")
        I(f"v_cvt_pk_bf16_f32 v{Y_}, v{Y_}, v{Y_}")
        I(f"s_sub_u32 s{A0}, s2, 224")
        if L == 1:
            I(f"s_lshl_b32 s{A0+1}, s{IDX}, 10")
            I(f"s_lshl_b32 s{A0}, s{A0}, 5")
            I(f"s_add_u32 s{A0}, s{A0}, s{A0+1}")
            I(f"v_lshl_add_u32 v{FT+4}, v1, 1, s{A0}")
            exec_lo("0xffff")
            I(f"global_store_short v{FT+4}, v{Y_}, {sp(OUTP)}")
        else:
            I(f"v_and_b32 v{Y_}, 0xffff, v{Y_}")
            k.nop(2)
            for j, qp in ((1, 1), (2, 2), (3, 3)):
                I(f"v_mov_b32_dpp v{Y_+j}, v{Y_} quad_perm:[{qp},{qp},{qp},{qp}] row_mask:0xf bank_mask:0xf")
            I(f"v_lshl_or_b32 v{Y_}, v{Y_+1}, 16, v{Y_}")
            I(f"v_lshl_or_b32 v{Y_+1}, v{Y_+3}, 16, v{Y_+2}")
            I(f"v_mov_b32 v{Y_+2}, s{TAG}")
            I(f"s_lshl_b32 s{A0}, s{A0}, 7")
            I(f"s_add_u32 s{A0}, s{A0}, {hex(X2R)}")
            I(f"v_lshl_add_u32 v{FT+4}, v1, 2, s{A0}")
            exec_lo("0x1111")
            I(f"global_store_dwordx4 v{FT+4}, {vr(Y_,4)}, {sp(WSP)} sc1")
        exec_all()
    def finalize(L):
        n = f"l{L}"
        I("s_cmp_lt_u32 s2, 224")
        I(f"s_cbranch_scc1 {lab(n+'_fskip')}")
        x_elem(FT + 8, FT + 6)
        gather(n, [YP[L]], FT + 12, LFF + 256, light=(L == 1 or ENV('F0L', '1') == '1'))
        I(f"v_and_b32 v{FT+5}, 15, v1")
        I(f"v_lshlrev_b32 v{FT+5}, 2, v{FT+5}")
        I(f"v_add_u32 v{FT+5}, {LFF + 256}, v{FT+5}")
        bar()
        I(f"s_cmp_lg_u32 s{WAVE}, 0")
        I(f"s_cbranch_scc1 {lab(n+'_fskip')}")
        finish_row(L, FT + 8, FT + 5)
        k.L(lab(n + "_fskip"))

    q_epilogue(0)
    k.stamp(name="l0_qepi")
    attention(0)
    oproj(0)
    def w_restore():
        I(f"s_mul_i32 s{A0}, s{WAVE}, 6144")
        I(f"s_add_u32 s{A0}, s{A0}, {LWQ}")
        I(f"v_add_u32 v14, s{A0}, v3")
        for i in range(6): I(f"ds_write_b128 v14, {ar(AWS+4*i,4)} offset:{1024*i}")
    I(f"s_lshl_b32 s{A0}, s{TT}, 15")
    I(f"v_add_u32 v8, s{A0}, v3")
    I("v_add_u32 v9, 0x4000, v8")
    I(f"s_lshr_b32 s{A0}, s{TT}, 1")
    I(f"s_lshl_b32 s{A0}, s{A0}, 13")
    I(f"s_and_b32 s{A0+1}, s{TT}, 1")
    I(f"s_lshl_b32 s{A0+1}, s{A0+1}, 9")
    I(f"s_add_u32 s{A0}, s{A0}, s{A0+1}")
    I(f"s_add_u32 s{A0}, s{A0}, {hex(ST[0])}")
    I(f"v_lshl_add_u32 v11, v6, 4, s{A0}")
    I("v_lshl_add_u32 v11, v7, 12, v11")
    RING = 6
    LOOK = int(ENV("LOOK", "4"))
    ROT1 = 67 if not PROFILE else 101
    I(f"s_lshr_b32 s{ROT1}, s{HEAD}, 1")
    def xload(ks):
        I(f"s_add_u32 s{T0}, s{ROT1}, {ks}")
        I(f"s_and_b32 s{T0}, s{T0}, 15")
        I(f"s_lshl_b32 s{T0}, s{T0}, 10")
        I(f"s_add_u32 s{T0}, s{XB_}, s{T0}")
        I(f"s_addc_u32 s{T0+1}, s{XB_+1}, 0")
        for t in range(2):
            vm.issue(f"global_load_dwordx4 {ar(64+8*(ks % RING)+4*t,4)}, v{8+t}, {sp(T0)} sc1", f"x{ks}")
    def wbase1(ks):
        I(f"s_add_u32 s{T0}, s{ROT1}, {ks}")
        I(f"s_and_b32 s{T0}, s{T0}, 15")
        I(f"s_lshl_b32 s{T0}, s{T0}, 10")
        I(f"v_add_u32 v12, s{T0}, v10")
    def first_x():
        for ks in range(LOOK): xload(ks)
    MID = int(ENV("MID", "8"))
    def x_first():
        for ks in range(min(MID, RING)): xload(ks)
    WRP_ = ENV("WRS", "pre")
    if WRP_ == "pre": w_restore()
    if WRP_ == "both": w_restore(); w_addr(15, 14)
    hop_a(0, after_bar=(x_first if ENV("XE", "0") == "1" else None),
          shadow={"pre": lambda: w_addr(15, 14), "shadow": lambda: (w_restore(), w_addr(15, 14)), "both": None}[WRP_])
    def bg_loads():
        first_x()
        for l in stat_loads: vm.issue(l, "st")
    MID = int(ENV("MID", "8"))
    RES = ENV("RES", "c")
    if ENV("XE", "0") == "0":
        for ks in range(min(MID, RING)): xload(ks)
    F0, FX = 76, 64
    pxl = [f"global_load_dwordx3 {vr(F0+4*i,3)}, v2, {sp(WSP)} offset:{256*(i>>1)+16*(i&1)} sc1" for i in range(4)]
    def px_issue():
        I(f"s_lshl_b32 s{A0}, s{WAVE}, 9")
        I(f"s_add_u32 s{A0}, s{A0}, {hex(X2R)}")
        I(f"v_lshl_add_u32 v2, v7, 7, s{A0}")
        I("v_bfe_u32 v4, v1, 4, 1")
        I("v_lshl_add_u32 v2, v4, 5, v2")
        for l in pxl: I(l)
    wbase1(0)
    wreads(WB, 12, 0)
    wbase1(1)
    wreads(WB + 12, 12, 0)
    for ks in range(16):
        QP1 = eval(ENV("QP1", "{0: 3, 6: 2, 11: 1, 14: 0}"))
        if ks in QP1: I(f"s_setprio {QP1[ks]}")
        if ks == MID:
            def resume():
                for q_ in range(MID, min(16, MID + LOOK)): xload(q_)
                for l in stat_loads: vm.issue(l, "st")
            I("s_cmp_ge_u32 s2, 224")
            I(f"s_cbranch_scc1 {lab('fin_a')}")
            hop_b_issue(0)
            hop_b(0, role="s")
            slice1(0)
            slice2(0)
            resume()
            I(f"s_branch {lab('q1_go')}")
            k.L(lab("fin_a"))
            vm.q = []
            resume()
            k.L(lab("q1_go"))
            k.stamp(name="q1_ffn")
        if ks >= MID and ks + LOOK < 16: xload(ks + LOOK)
        if 1 <= ks < MID and ks - 1 + RING < MID: xload(ks - 1 + RING)
        if ks == int(ENV("STE", "13")):
            vm.wait("st")
            keep_ = list(vm.q)
            poll("ps", stat_loads, stat_tags, chk_label="ps_c")
            vm.q = keep_
            own_stats()
            bounce_params()
        if ks == int(ENV("PXE", "14")):
            I("s_cmp_ge_u32 s2, 224")
            I(f"s_cbranch_scc1 {lab('px_e')}")
            I(f"s_lshr_b32 s{A0}, s{IDX}, 8")
            I(f"s_cmp_lg_u32 s{A0}, s{QB}")
            I(f"s_cbranch_scc1 {lab('px_e')}")
            px_issue()
            k.L(lab("px_e"))
        if ks < 14:
            wbase1(ks + 2)
            wreads(WB + 12*((ks+2)%3), 12, 0)
        vm.wait(f"x{ks}", f" lgkmcnt({12 if ks < 14 else 6 if ks == 14 else 0})")
        qmfmas(WB + 12*(ks%3), ar(64+8*(ks % RING),4), ar(64+8*(ks % RING)+4,4), ks == 0)
    k.stamp(name="q1_loop")
    I("s_cmp_lt_u32 s2, 224")
    I(f"s_cbranch_scc1 {lab('fin_b')}")
    hop_b_issue(0, "f")
    hop_b(0, role="f")
    vm.drain()
    finalize(0)
    k.L(lab("fin_b"))
    k.stamp(name="q1_fin")
    I(f"s_lshr_b32 s{A0}, s{IDX}, 8")
    I(f"s_cmp_eq_u32 s{A0}, s{QB}")
    I(f"s_cbranch_scc1 {lab('dofix')}")
    I("s_cmp_lt_u32 s2, 224")
    I(f"s_cbranch_scc1 {lab('nofix')}")
    I(f"s_branch {lab('rebounce')}")
    k.L(lab("dofix"))
    I(f"s_lshl_b32 s{A0}, s{WAVE}, 11")
    I(f"v_add_u32 v12, s{A0}, v10")
    for q in range(2): wreads(WB + 12*q, 12, q)
    for r in range(4): I(f"v_mov_b32 v{72+r}, s{ONES}")
    I(f"s_lshl_b32 s{A0}, s{WAVE}, 8")
    I(f"s_add_u32 s{A0}, s{A0}, {LRD}")
    I("v_and_b32 v12, 48, v1")
    I(f"v_add_u32 v12, s{A0}, v12")
    I(f"v_mov_b32 v13, s{A0}")
    if int(ENV("PXE", "14")) < 16:
        I("s_cmp_lt_u32 s2, 224")
        I(f"s_cbranch_scc1 {lab('px_go')}")
    px_issue()
    k.L(lab("px_go"))
    poll("px", pxl, [F0 + 4*i + 2 for i in range(4)], first_issued=True)
    for i in range(4):
        I(f"v_mov_b32 v{FX+2*i}, v{F0+4*i}")
        I(f"v_mov_b32 v{FX+2*i+1}, v{F0+4*i+1}")
    I("s_waitcnt lgkmcnt(0)")
    for q in range(2):
        for sec in range(3): mfma16(F0 + 4*sec, vr(WB+12*q+4*sec,4), vr(FX+4*q,4), q == 0)
        mfma16(F0 + 12, vr(72,4), vr(FX+4*q,4), q == 0)
        mfma16(F0 + 16, vr(FX+4*q,4), vr(FX+4*q,4), q == 0)
    I("s_mov_b32 exec_lo, 0x00010001"); I("s_mov_b32 exec_hi, 0x00010001")
    k.nop(6)
    for sec in range(3): I(f"ds_write_b128 v12, {vr(F0+4*sec,4)} offset:{64*sec}")
    I(f"ds_write_b32 v13, v{F0+12} offset:192")
    I(f"ds_write_b32 v13, v{F0+16} offset:196")
    exec_all()
    I(f"s_and_b32 s{A0}, s{IDX}, 31")
    I("v_and_b32 v15, 15, v1")
    I("v_lshrrev_b32 v14, 4, v1")
    I("v_lshlrev_b32 v14, 2, v14")
    I(f"v_sub_u32 v66, s{A0}, v14")
    I(f"v_sub_u32 v67, s{A0}, v15")
    I("v_lshlrev_b32 v15, 2, v15")
    I(f"v_add_u32 v15, {LFX + 128}, v15")
    I("v_and_b32 v12, 48, v1")
    I(f"v_add_u32 v12, {LFX}, v12")
    bar()
    I(f"s_lshr_b32 s{A0}, s{IDX}, 5")
    I(f"s_cmp_lg_u32 s{A0}, s{OT}")
    I(f"s_cbranch_scc1 {lab('nores')}")
    I(f"s_lshl_b32 s{A0}, s{KG}, 7")
    I(f"s_add_u32 s{A0}, s{A0}, {hex(X2R)}")
    I(f"v_lshl_add_u32 v14, v7, 4, s{A0}")
    I(f"v_cmp_eq_u32 vcc, s{IDX}, v{VTK}")
    I(f"s_and_saveexec_b64 {sp(T2)}, vcc")
    I(f"global_load_dwordx2 {vr(XG,2)}, v14, {sp(WSP)} sc1")
    I(f"global_load_dwordx2 {vr(XG+2,2)}, v14, {sp(WSP)} offset:32 sc1")
    I(f"v_mov_b32 v{RESR}, 0")
    exec_all()
    k.L(lab("nores"))
    I(f"s_lshr_b32 s{A0}, s{IDX}, 5")
    I(f"s_cmp_lg_u32 s{A0}, s{TT}")
    I(f"s_cbranch_scc1 {lab('rebounce')}")
    sum8(LRD, LFX)
    I(f"v_mov_b32 v13, {LFX + 192}")
    for sec in range(2): I(f"ds_read_b128 {vr(F0+4*sec,4)}, v12 offset:{64*sec}")
    I("ds_read_b64 v[64:65], v13")
    I("ds_read_b32 v68, v15")
    MK = [T0, T2, A0, A0 + 2, A0 + 4, A0 + 6]
    for t in range(2):
        I(f"v_cmp_eq_u32 {sp(MK[0])}, {16*t}, v67")
        for r in range(4): I(f"v_cmp_eq_u32 {sp(MK[1+r])}, {16*t+r}, v66")
        if t == 0:
            I("s_waitcnt lgkmcnt(0)")
            rowstats(64, 65, 69, 70, 71)
        else: k.nop(1)
        for sec in range(2):
            for r in range(4): I(f"v_cndmask_b32 v{ACC+8*sec+4*t+r}, v{ACC+8*sec+4*t+r}, v{F0+4*sec+r}, {sp(MK[0])}")
        I(f"v_cndmask_b32 v{MT[t]}, v{MT[t]}, v69, {sp(MK[0])}")
        I(f"v_cndmask_b32 v{AT[t]}, v{AT[t]}, v71, {sp(MK[0])}")
        for r in range(4): I(f"v_cndmask_b32 v{ACC+16+4*t+r}, v{ACC+16+4*t+r}, v68, {sp(MK[1+r])}")
    k.L(lab("rebounce"))
    bounce_params()
    k.L(lab("nofix"))
    vm.drain()
    k.stamp(name="q1_fix")
    q_epilogue(1)
    k.stamp(name="l1_qepi")
    attention(1)
    oproj(1)
    def cand_stats():
        I(f"s_cmp_lg_u32 s{WAVE}, 1")
        I(f"s_cbranch_scc1 {lab('cs_skip0')}")
        I(f"v_mov_b32 v40, s{CA}")
        I(f"v_mov_b32 v41, s{CB_}")
        I("v_cmp_gt_u32 vcc, 8, v1")
        I("v_and_b32 v42, 7, v1")
        I("s_nop 0")
        I("v_cndmask_b32 v40, v41, v40, vcc")
        I("v_lshrrev_b32 v41, 6, v40")
        I("v_lshl_add_u32 v41, v41, 3, v42")
        I("v_and_b32 v40, 63, v40")
        I("v_lshlrev_b32 v40, 4, v40")
        I("v_lshl_add_u32 v40, v41, 10, v40")
        I(f"v_add_u32 v40, {hex(ST[1])}, v40")
        exec_lo("0xffff")
        I(f"global_load_dwordx4 v[44:47], v40, {sp(WSP)} sc1")
        exec_all()
        k.L(lab("cs_skip0"))
    def cand_stats2():
        I(f"s_cmp_lg_u32 s{WAVE}, 1")
        I(f"s_cbranch_scc1 {lab('cs_skip')}")
        exec_lo("0xffff")
        poll("pc", [f"global_load_dwordx4 v[44:47], v40, {sp(WSP)} sc1"], [47], first_issued=True)
        for m in Q4 + ("row_half_mirror",):
            k.nop(1)
            for c in range(2): I(f"v_add_f32_dpp v{44+c}, v{44+c}, v{44+c} {m} row_mask:0xf bank_mask:0xf")
        rowstats(44, 45, 46, 47, 45)
        I("v_and_b32 v40, 8, v1")
        I(f"v_add_u32 v40, {LCS}, v40")
        I("v_mul_f32 v44, v46, v45")
        I("ds_write_b64 v40, v[44:45]")
        exec_all()
        k.L(lab("cs_skip"))
    SX, SD = 56, 64
    def cand_addr():
        I(f"v_mov_b32 v50, s{CA}")
        I(f"v_mov_b32 v51, s{CB_}")
        I("v_and_b32 v52, 1, v1")
        I("v_cmp_eq_u32 vcc, 1, v52")
        I("v_lshlrev_b32 v52, 3, v52")
        I(f"v_add_u32 v52, {LCS}, v52")
        I("v_cndmask_b32 v50, v50, v51, vcc")
        I("v_lshrrev_b32 v51, 4, v50")
        I("v_and_b32 v50, 15, v50")
        I("v_lshlrev_b32 v50, 4, v50")
        I("v_lshl_add_u32 v50, v51, 14, v50")
        I("v_and_b32 v51, 48, v1")
        I("v_lshl_add_u32 v50, v51, 4, v50")
        I(f"s_lshl_b32 s{A0}, s{WAVE}, 11")
        I(f"v_add_u32 v50, s{A0}, v50")
        I("s_cmp_lt_u32 s2, 224")
        I(f"s_cbranch_scc1 {lab('ca_done')}")
        I(f"v_mov_b32 v50, s{CA}")
        I(f"v_mov_b32 v51, s{CB_}")
        I("v_and_b32 v53, 16, v1")
        I("v_cmp_eq_u32 vcc, 16, v53")
        I(f"s_sub_u32 s{A0}, s2, 224")
        I(f"s_lshl_b32 s{A0}, s{A0}, 9")
        I("v_cndmask_b32 v50, v50, v51, vcc")
        I("v_lshrrev_b32 v51, 4, v50")
        I("v_and_b32 v50, 15, v50")
        I("v_lshlrev_b32 v50, 4, v50")
        I("v_lshl_add_u32 v50, v51, 14, v50")
        I("v_bfe_u32 v51, v1, 3, 1")
        I("v_lshl_add_u32 v50, v51, 8, v50")
        I(f"v_add_u32 v50, s{A0}, v50")
        k.L(lab("ca_done"))
        for f in range(8): I(f"v_accvgpr_read_b32 v{SD+f}, a{ADN+f}")
        for f in range(8): I(f"v_lshlrev_b32 v{SD+f}, 16, v{SD+f}")
    def cand_rows():
        I(f"global_load_dwordx4 {vr(SX,4)}, v50, {sp(XB_)} sc1")
        I(f"global_load_dwordx4 {vr(SX+4,4)}, v50, {sp(XB_)} offset:1024 sc1")
        I("ds_read_b64 v[54:55], v52")
    cand_addr()
    hop_a(1, cand_stats2, cand_stats, cand_rows)
    I("s_cmp_ge_u32 s2, 224")
    I(f"s_cbranch_scc1 {lab('sp_skip')}")
    I("v_and_b32 v17, 48, v1")
    I(f"s_lshl_b32 s{A0}, s{WAVE}, 7")
    I(f"s_add_u32 s{A0}, s{A0}, {LRD}")
    I("v_and_b32 v18, 1, v1")
    I("v_lshl_add_u32 v17, v18, 6, v17")
    I(f"v_add_u32 v17, s{A0}, v17")
    I("v_and_b32 v18, 31, v1")
    I("v_lshlrev_b32 v18, 2, v18")
    I(f"v_add_u32 v18, {LRD}, v18")
    yp_addr(22, 2)
    I(f"v_add_u32 v23, {hex(YP[3] - YP[2])}, v22")
    I(f"s_or_b32 s{A0}, s{CG}, s{WAVE}")
    I(f"s_cmp_eq_u32 s{A0}, 0")
    I("s_waitcnt vmcnt(1)")
    I(f"s_cbranch_scc1 {lab('sp_go')}")
    I("s_waitcnt vmcnt(0)")
    k.L(lab("sp_go"))
    for i in range(8):
        t0 = 24 + 2*(i & 1)
        unpack(t0, t0 + 1, SX + i)
        I(f"v_fma_f32 v{t0}, v{t0}, v55, -v54")
        I(f"v_fma_f32 v{t0+1}, v{t0+1}, v55, -v54")
        I(f"v_cvt_pk_bf16_f32 v{SX+i}, v{t0}, v{t0+1}")
    k.nop(2)
    I(f"v_mfma_f32_16x16x32_bf16 v[24:27], {ar(AGU,4)}, {vr(SX,4)}, 0")
    I(f"v_mfma_f32_16x16x32_bf16 v[24:27], {ar(AGU+4,4)}, {vr(SX+4,4)}, v[24:27]")
    I("s_mov_b32 exec_lo, 0x00030003")
    I("s_mov_b32 exec_hi, 0x00030003")
    k.nop(6)
    I("ds_write_b128 v17, v[24:27]")
    exec_all()
    bar()
    for i in range(8): I(f"ds_read_b32 v{SX+i}, v18 offset:{128*i}")
    I("s_waitcnt lgkmcnt(0)")
    for a_, b_ in ((0,1),(2,3),(4,5),(6,7),(0,2),(4,6),(0,4)): I(f"v_add_f32 v{SX+a_}, v{SX+a_}, v{SX+b_}")
    bf16r(SX)
    I(f"v_mul_f32 v16, {hex(f2u(-LOG2E))}, v{SX}")
    I("v_exp_f32 v16, v16")
    I("s_nop 0")
    I("v_add_f32 v16, 1.0, v16")
    I("v_rcp_f32 v16, v16")
    I("s_nop 0")
    I(f"v_mul_f32 v16, v16, v{SX}")
    bf16r(16)
    k.nop(2)
    I(f"v_mul_f32_dpp v16, v{SX}, v16 row_ror:8 row_mask:0xf bank_mask:0xf")
    bf16r(16)
    k.nop(1)
    for c_ in range(2):
        for f in range(8): I(f"v_readlane_b32 s{A0+f}, v16, {16*c_+f}")
        I(f"v_mul_f32 v{24+2*c_}, s{A0}, v{SD}")
        I(f"v_mul_f32 v{25+2*c_}, s{A0+1}, v{SD+1}")
        for f in range(2, 8): I(f"v_fmac_f32 v{24+2*c_+(f&1)}, s{A0+f}, v{SD+f}")
        I(f"v_add_f32 v{24+2*c_}, v{24+2*c_}, v{25+2*c_}")
        I(f"v_min_u32 v{24+2*c_}, 0xfffffffe, v{24+2*c_}")
        I(f"global_store_dword v{22+c_}, v{24+2*c_}, {sp(WSP)} sc1")
    I(f"s_branch {lab('sp_done')}")
    k.L(lab("sp_skip"))
    I("s_waitcnt vmcnt(0)")
    x_elem(SX, 16)
    k.L(lab("sp_done"))
    hop_b_issue(1)
    k.stamp(name="t_spec")
    X, Y = 96, 16
    for i in range(4): unpack(X + 2*i, X + 2*i + 1, XG + i)
    for r in range(8): I(f"v_sub_f32 v{Y+r}, v{X+r}, v{RESM}")
    for r in range(8): I(f"v_mul_f32 v{Y+r}, v{Y+r}, v{RESR}")
    for i in range(4): I(f"v_cvt_pk_bf16_f32 v{XG+i}, v{Y+2*i}, v{Y+2*i+1}")
    for i in range(4): unpack(Y + 2*i, Y + 2*i + 1, XG + i)
    for r in range(8): I(f"v_add_f32 v{X+r}, v{X+r}, v{Y+r}")
    for i in range(4): I(f"v_cvt_pk_bf16_f32 v{XG+i}, v{X+2*i}, v{X+2*i+1}")
    I(f"s_lshl_b32 s{A0}, s{KG}, 5")
    I(f"v_lshl_add_u32 v12, v7, 4, s{A0}")
    I(f"v_lshl_add_u32 v12, v{VTK}, 10, v12")
    I(f"v_permlane32_swap_b32 v{XG}, v{XG+2}")
    I(f"v_permlane32_swap_b32 v{XG+1}, v{XG+3}")
    hop_b(1)
    k.stamp(name="t_hopb")
    def out_store():
        I(f"v_cmp_ne_u32 vcc, s{IDX}, v{VTK}")
        I(f"s_and_saveexec_b64 {sp(T2)}, vcc")
        vm.issue(f"global_store_dwordx4 v12, {vr(XG,4)}, {sp(OUTP)} {ENV('OUTF', '')}")
        exec_all()
    out_store()
    slice1(1)
    slice2(1)
    k.stamp(name="t_slice")
    finalize(1)
    I(f"s_branch {lab('fdone')}")
    k.L(lab("hit"))
    I("s_cmp_lt_u32 s2, 224")
    I(f"s_cbranch_scc1 {lab('hit_out')}")
    I(f"s_cmp_eq_u32 s{YSEL}, 2")
    I(f"s_mov_b32 s{T0}, {hex(YP[2])}")
    I(f"s_cselect_b32 s{T0}, {hex(YP[3])}, s{T0}")
    gather("sg", [f"s{T0}"], 20, LRD, light=(ENV("SGL", "0") == "1"))
    I("v_and_b32 v16, 15, v1")
    I("v_lshlrev_b32 v16, 2, v16")
    I(f"v_add_u32 v16, {LRD}, v16")
    bar()
    I(f"s_cmp_lg_u32 s{WAVE}, 0")
    I(f"s_cbranch_scc1 {lab('hit_out')}")
    I(f"v_mov_b32 v17, v{SX}")
    I(f"s_cmp_eq_u32 s{YSEL}, 2")
    I("s_cselect_b64 vcc, -1, 0")
    I(f"v_permlane16_swap_b32 v{SX}, v17")
    I("s_nop 0")
    I(f"v_cndmask_b32 v{SX}, v{SX}, v17, vcc")
    finish_row(1, SX, 16)
    k.L(lab("hit_out"))
    out_store()
    k.L(lab("fdone"))
    I("s_cmp_lg_u32 s2, 0")
    I(f"s_cbranch_scc1 {lab('end')}")
    I(f"v_mov_b32 v12, {hex(NONCE)}")
    I(f"v_mov_b32 v13, s{TAG}")
    I("v_cmp_eq_u32 vcc, 0, v0")
    I(f"s_and_saveexec_b64 {sp(T2)}, vcc")
    I(f"s_cbranch_execz {lab('end')}")
    I(f"global_store_dword v12, v13, {sp(WSP)} sc1")
    k.L(lab("end"))
    k.stamp_end(0)
    if ENV("DBGT"):
        I("s_cmp_lt_u32 s2, 224")
        I(f"s_cbranch_scc1 {lab('exit')}")
        I(f"s_cmp_lg_u32 s{WAVE}, 0")
        I(f"s_cbranch_scc1 {lab('exit')}")
        I("s_load_dwordx2 s[4:5], s[0:1], 72")
        I("s_memrealtime s[6:7]")
        I("s_memtime s[8:9]")
        I("s_waitcnt lgkmcnt(0)")
        I("s_mov_b64 exec, 1")
        I("s_not_b32 s96, s96")
        I("s_sub_u32 s8, s8, s98")
        I("v_mov_b32 v1, 0"); I("v_mov_b32 v2, s96"); I("v_mov_b32 v3, s6"); I("v_mov_b32 v4, s8")
        I("global_atomic_umax v1, v2, s[4:5]")
        I("global_atomic_umax v1, v3, s[4:5] offset:4")
        I("global_atomic_umax v1, v4, s[4:5] offset:8")
    k.L(lab("exit"))
    I("s_endpgm")
    return k

if __name__ == "__main__":
    k = build_kernel()
    bad = check_hazards(k)
    for b in bad: print("HAZARD", b, file=sys.stderr)
    out = sys.argv[1] if len(sys.argv) > 1 else "cdna_kernels/" + NAME + ".s"
    NOTES = """; One persistent kernel, 256 workgroups (one per CU, all co-resident) x 8 waves; workgroup = (q-block id&7, head id>>3).
; SwiGLU FFN of the routed token spread over 224 workgroups, 32 workgroups sum its partials.
; the previous launch left in d_ws, so stale contents are never taken for this launch's data. All polls are bounded.
"""
    if ENV("POLLF", "sc0 sc1"):
        import re as _re
        k.lines = [_re.sub(r"(global_load_\w+ [^;]*s\[10:11\][^;]*) sc1", r"\1 " + ENV("POLLF", "sc0 sc1"), l) for l in k.lines]
    if ENV("STOREF", "sc0 sc1"):
        import re as _re
        k.lines = [_re.sub(r"(global_store_\w+ [^;]*s\[10:11\][^;]*) sc1", r"\1 " + ENV("STOREF", "sc0 sc1"), l) for l in k.lines]
    if ENV("ALLF"):
        import re as _re
        k.lines = [_re.sub(r"(?<!sc0) sc1", " " + ENV("ALLF"), l) for l in k.lines]
    txt = emit_file(HEADER + NOTES, [k], single=(ENV("SINGLE", "0") == "1"))
    open(out, "w").write(txt)
    print("written", out, len(txt), "bytes; hazards:", len(bad))
```

```python
import sys, struct, os
from asmlib import *

NAME = "interleave_layers__softmax_full_mha__moe_arch_mod__prompt"
HEADER = open("cdna_kernels/" + NAME + ".s.ref").read().split("; Override launch")[0]
ENV = os.environ.get

XF = [0x000000, 0x200000]
KF = [0x400000, 0x800000]
VF = [0x600000, 0xA00000]
OF = [0xC00000, 0xE00000]
ST = [0x1000000, 0x1040000]
YP = [0x1080000, 0x1100000, 0x1180000, 0x1200000]
FLK = [0x1280000, 0x1288000]
FLO = [0x1300000, 0x1340000]
KEY = [0x12C0000, 0x12C8000]
X2R = 0x12A0000
NONCE = 0x12A2000
EPS = 1e-5
def f2u(x): return struct.unpack("<I", struct.pack("<f", x))[0]
QSCALE = 0.25 * 1.4426950408889634
LOG2E = 1.4426950408889634
SPIN_MAX = 1 << 18

CB, CBN = 131072, 20
LWQ = 8192
LST = CB + CBN * 512
LSA = LST
LPC = LST + 8192
LFX = LST + 8448
LVB = LST + 8704
LRD = LST + 10752
LFF = LST + 14848
LKY = LFF + 128
LCS = LFF + 768
LDS_BYTES = LFF + 1024

X0P, WQP, WOP, WSP, WRP, WGP, WUP, WDP, OUTP = 4, 6, 8, 10, 12, 14, 16, 18, 20
HEAD, QB, WAVE, TT, W1K, THR, CTR, SPIN, PASS, TAG, CG, TB, OA, KQ, OT, KG, IDX, WSUM = range(22, 40)
T0, T2 = 40, 42
A0 = 44
KB_, VB_, OB_, XB_ = 52, 54, 56, 58
RM, RR, RS_, ONES, C512, CEPS = 60, 61, 62, 63, 64, 65
CGP = 3
CA, CB_, YSEL = 100, 101, 30

def sp(i): return f"s[{i}:{i+1}]"

class VM:
    def __init__(self, k): self.k = k; self.q = []
    def issue(self, txt, tag=None):
        self.k.I(txt); self.q.append(tag)
    def wait(self, tag, extra=""):
        i = max(j for j, t in enumerate(self.q) if t == tag)
        n = len(self.q) - 1 - i
        assert n <= 63
        self.k.I(f"s_waitcnt vmcnt({n}){extra}")
    def drain(self, extra=""):
        self.k.I(f"s_waitcnt vmcnt(0){extra}"); self.q = []

def build_kernel():
    k = Kern(NAME + "_kernel", 256, 512, LDS_BYTES, 128, nagpr=128)
    I = k.I
    vm = VM(k)
    def lab(x): return f"L_{x}"
    def sadd64(d, b, const):
        I(f"s_add_u32 s{d}, s{b}, {hex(const)}"); I(f"s_addc_u32 s{d+1}, s{b+1}, 0")
    def swapop(sw, op, x, t):
        I(f"v_mov_b32 v{t}, v{x}"); k.nop(2); I(f"{sw} v{x}, v{t}"); I(f"{op} v{x}, v{x}, v{t}")
    def halfsum(op, x, t): swapop("v_permlane32_swap_b32", op, x, t)
    def rowreduce(op, x, t):
        swapop("v_permlane16_swap_b32", op, x, t); swapop("v_permlane32_swap_b32", op, x, t)
    def dppred(op, x, modes):
        for m in modes:
            k.nop(2); I(f"{op}_dpp v{x}, v{x}, v{x} {m} row_mask:0xf bank_mask:0xf")
    Q4 = ("quad_perm:[1,0,3,2]", "quad_perm:[2,3,0,1]")
    def allreduce(op, x, t):
        dppred(op, x, Q4 + ("row_half_mirror", "row_mirror")); rowreduce(op, x, t)
    def unpack(dlo, dhi, src):
        I(f"v_lshlrev_b32 v{dlo}, 16, v{src}"); I(f"v_and_b32 v{dhi}, 0xffff0000, v{src}")
    def bf16r(x):
        I(f"v_cvt_pk_bf16_f32 v{x}, v{x}, v{x}"); I(f"v_and_b32 v{x}, 0xffff0000, v{x}")
    def exec_lo(mask):
        I(f"s_mov_b32 exec_lo, {mask}"); I("s_mov_b32 exec_hi, 0")
    def exec_all(): I("s_mov_b64 exec, -1")
    def bar(lg=True):
        if lg: I("s_waitcnt lgkmcnt(0)")
        I("s_barrier")
    def poll(name, loads, tagregs, first_issued=False, check=None, chk_label=None):
        I(f"s_mov_b32 s{SPIN}, {SPIN_MAX}")
        SL = int(ENV("SLEEP", "0"))
        import re as _re
        if ENV("SLRE") and not _re.search(ENV("SLRE"), name): SL = 0
        if chk_label: I(f"s_branch {lab(chk_label)}")
        elif first_issued: I(f"s_branch {lab(name+'_w')}")
        elif SL: I(f"s_branch {lab(name+'_l')}")
        k.L(lab(name))
        if SL: I(f"s_sleep {SL}")
        k.L(lab(name + "_l"))
        for l in loads: I(l)
        k.L(lab(name + "_w"))
        I("s_waitcnt vmcnt(0)")
        if chk_label: k.L(lab(chk_label))
        if check: check()
        else: I(f"v_cmp_ne_u32 vcc, s{TAG}, v{tagregs[0]}")
        for r in tagregs[1:]:
            I(f"v_cmp_ne_u32 {sp(T2)}, s{TAG}, v{r}")
            I(f"s_or_b64 vcc, vcc, {sp(T2)}")
        I(f"s_sub_u32 s{SPIN}, s{SPIN}, 1")
        I(f"s_cbranch_vccz {lab(name+'_ok')}")
        I(f"s_cbranch_scc0 {lab(name)}")
        k.L(lab(name + "_ok"))
        k.stampval(SPIN, "x" + name + "_spin")
        k.stamp(name="x" + name + "_ok")
        vm.q = []
    def ppoll(name, mk, width, tagoff, regs, gap):
        D = len(regs)
        I(f"s_mov_b32 s{SPIN}, {SPIN_MAX}")
        for j in range(D - 1):
            I(mk(regs[j])); I(f"s_sleep {gap}")
        k.L(lab(name))
        for j in range(D):
            I(mk(regs[(j + D - 1) % D]))
            I(f"s_waitcnt vmcnt({D-1})")
            I(f"v_cmp_ne_u32 vcc, s{TAG}, v{regs[j]+tagoff}")
            I(f"s_cbranch_vccz {lab(name + f'_g{j}')}")
            I(f"s_sleep {gap}")
        I(f"s_sub_u32 s{SPIN}, s{SPIN}, 1")
        I(f"s_cbranch_scc0 {lab(name)}")
        for j in range(D - 1, 0, -1):
            k.L(lab(name + f"_g{j}"))
            if width:
                if j == 1 or True:
                    I("s_waitcnt vmcnt(0)")
                    I(f"s_branch {lab(name + '_g0')}") if False else None
        k.L(lab(name + "_g0"))
        if width: I("s_waitcnt vmcnt(0)")
        k.stamp(name="x" + name + "_ok")
    def mfma(d, a_, b_, c): I(f"v_mfma_f32_32x32x16_bf16 {vr(d,16)}, {a_}, {b_}, {vr(c,16) if c is not None else 0}")
    def rowstats(s1, s2, m, var, rstd):
        I(f"v_mul_f32 v{m}, s{C512}, v{s1}")
        I(f"v_mul_f32 v{var}, s{C512}, v{s2}")
        I(f"v_fma_f32 v{var}, -v{m}, v{m}, v{var}")
        I(f"v_max_f32 v{var}, 0, v{var}")
        I(f"v_add_f32 v{rstd}, s{CEPS}, v{var}")
        I(f"v_rsq_f32 v{rstd}, v{rstd}")

    ACC, WB = 16, 40
    CQ, CV, MV, AL = 96, 108, 76, 84
    MT, AT = [112, 114], [113, 115]
    S0, S1, P0, P1, VA, NEG, O, Q, KB = 16, 32, 48, 52, [56, 64], 72, 88, 104, 108
    AK, AV, AVS, VBASE = 112, 113, 114, 115
    XG, WR, VXO, VTK, RESM, RESR = 116, 120, 124, 125, 126, 127
    TK, TV = 64, 68
    def mfma16(d, a_, b_, first): I(f"v_mfma_f32_16x16x32_bf16 {vr(d,4)}, {a_}, {b_}, {0 if first else vr(d,4)}")
    AWO, ARS, AWS, AGU, ADN = 0, 32, 88, 112, 120

    I("s_cmp_ge_u32 s2, 256")
    I(f"s_cbranch_scc1 {lab('exit')}")
    k.stamp_begin()
    if ENV("DBGT"):
        I("s_memrealtime s[96:97]")
        I("s_memtime s[98:99]")
    I(f"s_load_dwordx4 s[4:7], s[0:1], 0")
    I(f"s_load_dwordx2 s[8:9], s[0:1], 16")
    I(f"s_load_dwordx2 s[10:11], s[0:1], 80")
    I(f"s_load_dwordx8 s[12:19], s[0:1], 32")
    I(f"s_load_dwordx2 s[20:21], s[0:1], 64")
    I("v_and_b32 v1, 63, v0")
    I("v_lshrrev_b32 v2, 6, v0")
    I("v_lshlrev_b32 v3, 4, v1")
    I(f"v_readfirstlane_b32 s{WAVE}, v2")
    I(f"s_and_b32 s{QB}, s2, 7")
    I(f"s_lshr_b32 s{HEAD}, s2, 3")
    if ENV("HX"):
        I(f"s_cmp_lt_u32 s{HEAD}, 16")
        I(f"s_cselect_b32 s{A0}, 8, 0")
        I(f"s_xor_b32 s{HEAD}, s{HEAD}, s{A0}")
    I(f"s_lshl_b32 s{TT}, s{QB}, 3")
    I(f"s_add_u32 s{TT}, s{TT}, s{WAVE}")
    I(f"s_lshl_b32 s{W1K}, s{WAVE}, 10")
    I("v_bfe_u32 v5, v1, 1, 2")
    I("v_bfe_u32 v6, v1, 3, 1")
    I("v_lshl_add_u32 v5, v6, 3, v5")
    I("v_bfe_u32 v6, v1, 4, 1")
    I("v_lshl_add_u32 v5, v6, 2, v5")
    I("v_bfe_u32 v6, v1, 5, 1")
    I("v_lshl_add_u32 v5, v6, 4, v5")
    I("v_mul_u32_u24 v5, 3072, v5")
    I("v_and_b32 v6, 1, v1")
    I("v_lshl_add_u32 v5, v6, 4, v5")
    I(f"s_lshl_b32 s{A0+1}, s{HEAD}, 5")
    I(f"v_add_u32 v5, s{A0+1}, v5")
    I("v_lshrrev_b32 v8, 4, v1")
    I("v_and_b32 v9, 7, v1")
    I("v_xor_b32 v8, v8, v9")
    I("v_lshlrev_b32 v8, 4, v8")
    I("v_lshrrev_b32 v9, 3, v1")
    I("v_lshl_add_u32 v8, v9, 10, v8")
    I(f"s_lshl_b32 s{A0}, s{TT}, 15")
    I(f"v_add_u32 v8, s{A0}, v8")
    I("v_xor_b32 v9, 64, v8")
    I("v_add_u32 v9, 0x2000, v9")
    XB3 = [A0 + 3, A0 + 4, A0 + 5]
    for b_ in range(3):
        I(f"s_mul_i32 s{XB3[b_]}, s{WAVE}, 12288")
        I(f"s_add_u32 s{XB3[b_]}, s{XB3[b_]}, {56*1024 + 4096*b_}")
        if b_:
            I(f"s_cmp_eq_u32 s{WAVE}, 7")
            I(f"s_cselect_b32 s{XB3[b_]}, {4096*(b_-1)}, s{XB3[b_]}")
    ROT = A0 + 6
    I(f"s_and_b32 s{ROT}, s{HEAD}, 3")
    I("s_waitcnt lgkmcnt(0)")
    def xstage(st):
        I(f"s_add_u32 s{A0}, s{ROT}, {st//2}")
        I(f"s_and_b32 s{A0}, s{A0}, 3")
        I(f"s_lshl_b32 s{A0}, s{A0}, 8")
        if st & 1: I(f"s_add_u32 s{A0}, s{A0}, 128")
        I(f"s_add_u32 s{T0}, s{X0P}, s{A0}")
        I(f"s_addc_u32 s{T0+1}, s{X0P+1}, 0")
        for i in range(4):
            if i == 2: sadd64(T0, T0, 16384)
            I(f"s_add_u32 m0, s{XB3[st % 3]}, {i*1024}")
            I("s_nop 0")
            vm.issue(f"global_load_lds_dwordx4 v{8 + (i&1)}, {sp(T0)}", f"x{st}")
    def wdma(j):
        I(f"s_mul_i32 s{A0}, s{ROT}, 12")
        I(f"s_add_u32 s{A0}, s{A0}, s{WAVE}")
        I(f"s_add_u32 s{A0}, s{A0}, {8*j}")
        I(f"s_sub_u32 s{A0+1}, s{A0}, 48")
        I(f"s_cmp_ge_u32 s{A0}, 48")
        I(f"s_cselect_b32 s{A0}, s{A0+1}, s{A0}")
        I(f"s_mul_i32 s{A0+1}, s{A0}, 21846")
        I(f"s_lshr_b32 s{A0+1}, s{A0+1}, 16")
        I(f"s_mul_i32 s{A0+2}, s{A0+1}, 3")
        I(f"s_sub_u32 s{A0}, s{A0}, s{A0+2}")
        I(f"s_mul_i32 s{A0+2}, s{A0+1}, {32*3072}")
        I(f"s_lshl_b32 s{T0}, s{A0}, 10")
        I(f"s_add_u32 s{A0+2}, s{A0+2}, s{T0}")
        I(f"s_add_u32 s{T0}, s{WQP}, s{A0+2}")
        I(f"s_addc_u32 s{T0+1}, s{WQP+1}, 0")
        I(f"s_lshl_b32 s{A0}, s{A0}, 14")
        I(f"s_lshl_b32 s{A0+1}, s{A0+1}, 10")
        I(f"s_add_u32 s{A0}, s{A0}, s{A0+1}")
        I(f"s_add_u32 m0, s{A0}, {LWQ}")
        I("s_nop 0")
        vm.issue(f"global_load_lds_dwordx4 v5, {sp(T0)}", f"W{j}")
    if ENV("CPF", "0") == "1":
        I(f"s_cmp_lg_u32 s{WAVE}, 7")
        I(f"s_cbranch_scc1 {lab('nocpf')}")
        I(f"s_lshl_b32 s{A0}, s{HEAD}, 13")
        I(f"v_lshl_add_u32 v12, v1, 7, s{A0}")
        I(f"v_cmp_gt_u32 vcc, {lab('exit')}-{lab('pc0')}, v12")
        I(f"s_getpc_b64 {sp(T0)}")
        k.L(lab("pc0"))
        I(f"s_and_saveexec_b64 {sp(T2)}, vcc")
        I(f"s_cbranch_execz {lab('cpf2')}")
        I(f"global_load_dword v127, v12, {sp(T0)}")
        k.L(lab("cpf2"))
        exec_all()
        k.L(lab("nocpf"))
    if ENV("ALLUP"):
        for j in range(8):
            if j < 6 and ENV("ALLUP") != "x": wdma(j)
            if ENV("ALLUP") != "w": xstage(j)
        k.stamp(name="a_issue")
        I("s_waitcnt vmcnt(0)")
        k.stamp(name="a_done")
        I("s_barrier")
        k.stamp(name="a_bar")
        I(f"s_branch {lab('end')}")
    UPW = int(ENV("UPW", "4"))
    UPX = int(ENV("UPX", "3"))
    I(f"v_mov_b32 v12, {hex(NONCE)}")
    vm.issue(f"global_load_dword v126, v12, {sp(WSP)} sc1", "nonce")
    wdma(0); xstage(0); wdma(1)
    if ENV("IB"): I("s_barrier")
    xstage(1)
    if ENV("IB") == "2": I("s_barrier")
    if UPW > 2: wdma(2)
    if UPX > 2: xstage(2)
    for j in range(3, UPW): wdma(j)
    I(f"s_lshr_b32 s{CG}, s{HEAD}, 2")
    I(f"s_and_b32 s{TB}, s{HEAD}, 3")
    I(f"s_lshl_b32 s{A0}, s{QB}, 2")
    I(f"s_add_u32 s{TB}, s{TB}, s{A0}")
    I(f"s_and_b32 s{OA}, s{WAVE}, 1")
    I(f"s_lshr_b32 s{KQ}, s{WAVE}, 1")
    I(f"s_lshl_b32 s{OT}, s{TB}, 1")
    I(f"s_add_u32 s{OT}, s{OT}, s{OA}")
    I(f"s_lshl_b32 s{KG}, s{CG}, 2")
    I(f"s_add_u32 s{KG}, s{KG}, s{KQ}")
    I(f"s_mul_i32 s{CGP}, s{QB}, 28")
    I(f"s_min_u32 s{A0}, s{HEAD}, 27")
    I(f"s_add_u32 s{CGP}, s{CGP}, s{A0}")
    I(f"s_mov_b32 s{THR}, {hex(f2u(2.0**30)) if not ENV('THRZ') else 0}")
    I(f"s_mov_b32 s{ONES}, 0x3f803f80")
    I(f"s_mov_b32 s{C512}, {hex(f2u(1/512))}")
    I(f"s_mov_b32 s{CEPS}, {hex(f2u(EPS))}")
    def lane_terms():
        I("v_and_b32 v6, 31, v1")
        I("v_lshrrev_b32 v7, 5, v1")
    lane_terms()
    def w_addr(t0=12, t1=13):
        I(f"v_bfe_u32 v{t0}, v1, 2, 2")
        I(f"v_lshl_add_u32 v{t0}, v7, 4, v{t0}")
        I(f"v_bfe_u32 v{t1}, v1, 4, 1")
        I(f"v_lshl_add_u32 v{t0}, v{t1}, 2, v{t0}")
        I(f"v_and_b32 v{t1}, 3, v1")
        I(f"v_lshlrev_b32 v{t1}, 3, v{t1}")
        I(f"v_lshl_add_u32 v10, v{t0}, 5, v{t1}")
        I(f"v_add_u32 v10, {LWQ}, v10")
    w_addr()
    def wreads(dst, ad, ks):
        for sec in range(3):
            I(f"ds_read_b64_tr_b16 {vr(dst+4*sec,2)}, v{ad} offset:{sec*16384+ks*1024}")
            I(f"ds_read_b64_tr_b16 {vr(dst+4*sec+2,2)}, v{ad} offset:{sec*16384+ks*1024+256}")
    def qmfmas(wb, xa, xb, first, between=None):
        for i, (d, A_, B_) in enumerate(((ACC, vr(wb,4), xa), (ACC+4, vr(wb,4), xb), (ACC+8, vr(wb+4,4), xa),
                                         (ACC+12, vr(wb+4,4), xb), (ACC+16, xa, vr(wb+8,4)), (ACC+20, xb, vr(wb+8,4)))):
            mfma16(d, A_, B_, first)
            if between: between(i)
    I("v_bfe_u32 v12, v1, 1, 3")
    I("v_and_b32 v13, 15, v1")
    I("v_lshlrev_b32 v13, 7, v13")
    I("v_lshrrev_b32 v14, 4, v1")
    I("v_xor_b32 v14, v14, v12")
    I("v_lshl_add_u32 v2, v14, 4, v13")
    I("v_xor_b32 v4, 64, v2")
    def xfrags(st):
        I(f"v_add_u32 v14, s{XB3[st % 3]}, v2")
        I(f"v_add_u32 v15, s{XB3[st % 3]}, v4")
        vm.wait(f"x{st}")
        for h in range(2):
            for t in range(2): I(f"ds_read_b128 {ar(16*st+8*h+4*t,4)}, v{14+h} offset:{2048*t}")
    k.stamp(name="q0_issue")
    GU, ON = 76, 92
    for r in range(4): I(f"v_mov_b32 v{ON+r}, s{ONES}")
    xfrags(0)
    vm.wait("W1")
    I(f"v_readfirstlane_b32 s{TAG}, v126")
    I(f"s_mul_i32 s{TAG}, s{TAG}, 0x9E3779B1")
    I(f"s_add_u32 s{TAG}, s{TAG}, 0x7F4A7C15")
    I("s_barrier")
    k.stamp(name="q0_W")
    def capture(f):
        n0 = len(k.lines); f(); out = k.lines[n0:]; del k.lines[n0:]; return out
    def weave(main, fill):
        atoms = []; masked = False
        for l in fill:
            opens = ("exec" in l.split(",")[0] or "saveexec" in l) and "exec, -1" not in l
            if masked: atoms[-1].append(l)
            else: atoms.append([l])
            if opens: masked = True
            if "exec, -1" in l: masked = False
        per = -(-len(atoms) // len(main))
        for i, l in enumerate(main):
            k.lines.append(l)
            for at in atoms[i*per:(i+1)*per]: k.lines.extend(at)
    CSA = 96
    def colsum_reads():
        I(f"v_add_u32 v13, s{W1K}, v10")
        wreads(100, 13, 0)
    def colsum_mm(i):
        for sec in range(2): mfma16(CS3[sec], vr(100+4*sec,4), vr(ON,4), i == 0)
        mfma16(CS3[2], vr(ON,4), vr(108,4), i == 0)
    CS3 = [96, 116, 120]
    def colsum_write():
        I(f"s_lshl_b32 s{A0}, s{WAVE}, 8")
        I(f"s_add_u32 s{A0}, s{A0}, {LRD}")
        I("v_and_b32 v13, 48, v1")
        I(f"v_add_u32 v13, s{A0}, v13")
        I("v_and_b32 v14, 15, v1")
        I(f"v_lshl_add_u32 v14, v14, 2, s{A0}")
        I(f"ds_write_b32 v14, v{CS3[2]} offset:128")
        I("s_mov_b32 exec_lo, 0x00010001"); I("s_mov_b32 exec_hi, 0x00010001")
        for sec in range(2): I(f"ds_write_b128 v13, {vr(CS3[sec],4)} offset:{64*sec}")
        exec_all()
    def sum8(src, dst):
        I("v_lshlrev_b32 v13, 2, v1")
        I(f"v_add_u32 v14, {src}, v13")
        for w in range(8): I(f"ds_read_b32 v{104+w}, v14 offset:{256*w}")
        I(f"v_add_u32 v13, {dst}, v13")
        I("s_waitcnt lgkmcnt(0)")
        for a_, b_ in ((0,1),(2,3),(4,5),(6,7),(0,2),(4,6),(0,4)): I(f"v_add_f32 v{104+a_}, v{104+a_}, v{104+b_}")
        I("ds_write_b32 v13, v104")
    def wsave():
        I(f"s_mul_i32 s{A0}, s{WAVE}, 6144")
        I(f"s_add_u32 s{A0}, s{A0}, {LWQ}")
        I(f"v_add_u32 v13, s{A0}, v3")
        for i in range(6): I(f"ds_read_b128 {ar(AWS+4*i,4)}, v13 offset:{1024*i}")
    def wbase(q):
        I(f"s_add_u32 s{A0}, s{ROT}, {q}")
        I(f"s_and_b32 s{A0}, s{A0}, 3")
        I(f"s_lshl_b32 s{A0}, s{A0}, 12")
        I(f"v_add_u32 v11, s{A0}, v10")
    wbase(0)
    wreads(WB, 11, 0)
    wreads(WB + 12, 11, 1)
    ready = {2: 1, 5: 2, 8: 3, 10: 4, 13: 5}
    def const_area():
        I("v_and_b32 v13, 11, v0")
        I(f"v_mov_b32 v14, s{ONES}")
        I("v_cmp_eq_u32 vcc, 0, v13")
        I("v_lshlrev_b32 v13, 4, v0")
        I(f"v_add_u32 v13, {CB}, v13")
        I("v_cndmask_b32 v100, 0, v14, vcc")
        for r in range(1, 4): I(f"v_mov_b32 v{100+r}, v100")
        I("ds_write_b128 v13, v[100:103]")
        I(f"v_cmp_gt_u32 vcc, {(CBN*512 - 8192)//16}, v0")
        I(f"s_and_saveexec_b64 {sp(T2)}, vcc")
        I("ds_write_b128 v13, v[100:103] offset:8192")
        exec_all()
    def stats0():
        I("v_lshrrev_b32 v12, 4, v1")
        I("v_lshlrev_b32 v12, 2, v12")
        I("v_and_b32 v13, 15, v1")
        I("v_sub_u32 v12, v13, v12")
        for t in range(2): I(f"v_mov_b32 v{ON+t}, 0")
        for r in range(4):
            I(f"v_cmp_eq_u32 vcc, {r}, v12")
            k.nop(2)
            for t in range(2): I(f"v_cndmask_b32 v{ON+t}, v{ON+t}, v{GU+4*t+r}, vcc")
        for t in range(2): rowreduce("v_add_f32", ON + t, 12)
        for t in range(2): rowstats(GU + 8 + 4*t, ON + t, MT[t], 12, AT[t])
    ready = {5: 3, 10: 5}
    def smf(q_, half):
        ya, yb = ar(8*q_,4), ar(8*q_+4,4)
        if half == 0: mfma16(GU, ya, ya, q_ == 0); mfma16(GU + 4, yb, yb, q_ == 0)
        else: mfma16(GU + 8, vr(ON,4), ya, q_ == 0); mfma16(GU + 12, vr(ON,4), yb, q_ == 0)
    for ks in range(16):
        st = ks // 2
        pre = 0
        QP0 = eval(ENV("QP0", "{0: 3, 1: 2, 2: 1, 3: 3, 5: 2, 6: 1, 7: 0, 8: 3, 10: 2, 11: 1, 12: 0, 13: 3, 14: 2, 15: 1}"))
        if ks in QP0: I(f"s_setprio {QP0[ks]}")
        if ks % 2 == 0 and st + 1 < 8:
            xfrags(st + 1); pre = 4
        if ks + 2 in ready:
            vm.wait(f"W{ready[ks+2]}")
            I("s_barrier")
        if ks == 13: bar()
        if ks < 14:
            if (ks + 2) % 4 == 0: wbase((ks + 2)//4)
            wreads(WB + 12*((ks+2)%3), 11, (ks + 2) % 4)
            I(f"s_waitcnt lgkmcnt({min(15, 12 + pre) if ks % 2 == 0 else 12})")
        elif ks == 14: I("s_waitcnt lgkmcnt(0)")
        def loads():
            if UPW + ks < 6 and ENV("WFAST"): wdma(UPW + ks)
            if ks == 0 and UPX == 2: xstage(2)
            if ks == 0: xstage(3)
            if ks % 2 == 1 and st + 4 < 8: xstage(st + 4)
            if ks % 2 == 0 and UPW + ks//2 < 6 and not ENV("WFAST"): wdma(UPW + ks//2)
        def mm():
            xa, xb = ar(8*ks,4), ar(8*ks+4,4)
            if ks < 14: smf(ks, 0)
            if ks == 13:
                smf(13, 1)
                for q_ in (14, 15): smf(q_, 0); smf(q_, 1)
            qmfmas(WB + 12*(ks%3), xa, xb, ks == 0)
            if ks < 13: smf(ks, 1)
            if ks == 10: I("s_waitcnt lgkmcnt(10)"); colsum_mm(0)
            if ks == 11: I("s_waitcnt lgkmcnt(6)"); colsum_mm(1)
        fill = capture(loads)
        if ks == 9: fill += capture(colsum_reads)
        if ks == 12: fill += capture(colsum_write)
        if ks == 13: fill += capture(lambda: sum8(LRD, LPC)) + capture(const_area)
        if ks == 14: fill += capture(wsave) + capture(stats0)
        weave(capture(mm), fill)
        if ks == 10: wreads(100, 13, 8)
        k.stamp(name=f"xq0k{ks}")
    k.stamp(name="q0_loop")
    def bounce_params():
        I(f"s_lshl_b32 s{A0}, s{WAVE}, 8")
        I(f"s_add_u32 s{A0}, s{A0}, {LVB}")
        I("v_and_b32 v13, 15, v1")
        I(f"v_lshl_add_u32 v12, v13, 2, s{A0}")
        for t in range(2):
            I(f"ds_write_b32 v12, v{MT[t]} offset:{64*t}")
            I(f"ds_write_b32 v12, v{AT[t]} offset:{128+64*t}")
        I("v_and_b32 v14, 48, v1")
        I(f"v_add_u32 v12, s{A0}, v14")
        for t in range(2):
            I(f"ds_read_b128 {vr(MV+4*t,4)}, v12 offset:{64*t}")
            I(f"ds_read_b128 {vr(AL+4*t,4)}, v12 offset:{128+64*t}")
        I(f"v_add_u32 v12, {LPC}, v14")
        for sec in range(2): I(f"ds_read_b128 {vr(CQ+4*sec,4)}, v12 offset:{64*sec}")
        I("v_lshlrev_b32 v12, 2, v13")
        I(f"v_add_u32 v12, {LPC + 128}, v12")
        I(f"ds_read_b32 v{CV}, v12")
    bounce_params()

    def yp_addr(d, L):
        I(f"v_lshrrev_b32 v{d}, 4, v0")
        I(f"v_mul_u32_u24 v{d}, {224*64}, v{d}")
        I(f"v_and_b32 v{d+1}, 15, v0")
        I(f"v_lshl_add_u32 v{d}, v{d+1}, 2, v{d}")
        I(f"s_lshl_b32 s{T2}, s{CGP}, 6")
        I(f"s_add_u32 s{T2}, s{T2}, {hex(YP[L])}")
        I(f"v_add_u32 v{d}, s{T2}, v{d}")

    def q_epilogue(L):
        n = f"l{L}"
        sadd64(KB_, WSP, KF[L]); sadd64(VB_, WSP, VF[L]); sadd64(OB_, WSP, OF[L])
        for t in range(2): I(f"v_mul_f32 v{13+t}, {hex(f2u(QSCALE))}, v{AT[t]}")
        I(f"s_lshl_b32 s{A0}, s{HEAD}, 16")
        I(f"s_lshl_b32 s{A0+1}, s{TT}, 10")
        I(f"s_add_u32 s{A0}, s{A0}, s{A0+1}")
        I(f"v_add_u32 v4, s{A0}, v3")
        I(f"v_add_u32 v15, s{W1K}, v3")
        I("v_add_u32 v5, 0x10000, v15")
        I("s_waitcnt lgkmcnt(0)")
        for sec in (1, 0):
            for t in range(2):
                for r in range(4): I(f"v_fma_f32 v{ACC+8*sec+4*t+r}, -v{MT[t]}, v{CQ+4*sec+r}, v{ACC+8*sec+4*t+r}")
            for t in range(2):
                for r in range(4): I(f"v_mul_f32 v{ACC+8*sec+4*t+r}, v{AT[t] if sec else 13+t}, v{ACC+8*sec+4*t+r}")
            d = TK if sec else Q
            for i in range(4): I(f"v_cvt_pk_bf16_f32 v{d+i}, v{ACC+8*sec+2*i}, v{ACC+8*sec+2*i+1}")
        I(f"v_fma_f32 v{ACC+16}, -v{MV}, v{CV}, v{ACC+16}")
        I(f"v_permlane16_swap_b32 v{TK}, v{TK+2}")
        I(f"v_permlane16_swap_b32 v{TK+1}, v{TK+3}")
        I(f"v_permlane16_swap_b32 v{Q}, v{Q+2}")
        I(f"v_permlane16_swap_b32 v{Q+1}, v{Q+3}")
        vm.issue(f"global_store_dwordx4 v4, {vr(TK,4)}, {sp(KB_)} sc1")
        I(f"ds_write_b128 v15, {vr(TK,4)}")
        mfma(S0, vr(TK,4), vr(Q,4), None)
        for r in range(1, 8): I(f"v_fma_f32 v{ACC+16+r}, -v{MV+r}, v{CV}, v{ACC+16+r}")
        for r in range(8): I(f"v_mul_f32 v{ACC+16+r}, v{AL+r}, v{ACC+16+r}")
        for i in range(4): I(f"v_cvt_pk_bf16_f32 v{TV+i}, v{ACC+16+2*i}, v{ACC+16+2*i+1}")
        I(f"v_max3_f32 v2, v{S0}, v{S0+1}, v{S0+2}")
        I(f"v_max3_f32 v13, v{S0+3}, v{S0+4}, v{S0+5}")
        I(f"v_permlane32_swap_b32 v{TV}, v{TV+2}")
        I(f"v_permlane32_swap_b32 v{TV+1}, v{TV+3}")
        vm.issue(f"global_store_dwordx4 v4, {vr(TV,4)}, {sp(VB_)} sc1")
        I(f"ds_write_b128 v5, {vr(TV,4)}")
        if L == 0:
            I("s_cmp_ge_u32 s2, 224")
            I(f"s_cbranch_scc1 {lab('nomark')}")
            I(f"s_and_b32 s{A0}, s{WAVE}, 1")
            I(f"s_lshl_b32 s{A0}, s{A0}, 4")
            I("v_lshrrev_b32 v10, 2, v1")
            I(f"v_add_u32 v10, s{A0}, v10")
            I(f"v_mul_u32_u24 v10, {224*64}, v10")
            I("v_and_b32 v11, 3, v1")
            I("v_lshl_add_u32 v10, v11, 4, v10")
            I(f"s_lshr_b32 s{A0}, s{WAVE}, 1")
            I(f"s_lshl_b32 s{A0}, s{A0}, 19")
            I(f"s_lshl_b32 s{A0+1}, s{CGP}, 6")
            I(f"s_add_u32 s{A0}, s{A0}, s{A0+1}")
            I(f"s_add_u32 s{A0}, s{A0}, {hex(YP[0])}")
            I(f"v_add_u32 v10, s{A0}, v10")
            for r in range(4): I(f"v_mov_b32 v{32+r}, -1")
            I(f"global_store_dwordx4 v10, v[32:35], {sp(WSP)} sc1")
            k.L(lab("nomark"))
        for r in range(6, 16, 4): I(f"v_max3_f32 v2, v2, v{S0+r}, v{S0+r+1}")
        for r in range(8, 16, 4): I(f"v_max3_f32 v13, v13, v{S0+r}, v{S0+r+1}")
        I("v_max_f32 v2, v2, v13")
        halfsum("v_max_f32", 2, 13)
        for r in range(16): I(f"v_sub_f32 v{NEG+r}, 0, v2")
        I("v_and_b32 v8, 15, v1")
        I("v_bfe_u32 v9, v1, 4, 1")
        I("v_lshlrev_b32 v10, 4, v8")
        I("v_lshl_add_u32 v10, v7, 8, v10")
        I(f"v_lshl_add_u32 v{VBASE}, v9, 16, v10")
        I(f"v_add_u32 v{VBASE}, 0x10000, v{VBASE}")
        I("v_xor_b32 v9, 1, v9")
        I(f"v_lshlrev_b32 v{AVS}, 13, v9")
        I(f"v_mov_b32 v{AK}, v3")
        I(f"v_mov_b32 v{AV}, v{VBASE}")
        I(f"s_mov_b32 s{PASS}, 0")
        I(f"s_lshl_b32 s{A0}, s{HEAD}, 10")
        I(f"s_add_u32 s{A0}, s{A0}, {hex(FLK[L])}")
        I(f"v_lshl_add_u32 v8, v1, 7, s{A0}")
        I(f"s_lshl_b32 s{A0+1}, s{QB}, 7")
        I(f"s_add_u32 s{A0}, s{A0}, s{A0+1}")
        I(f"v_mov_b32 v9, s{A0}")
        bar()

    def ffn_gu(m_):
        I(f"s_lshl_b32 s{A0+1}, s{CGP}, 4")
        I(f"v_mul_u32_u24 v14, 3584, v0")
        I(f"v_add_u32 v14, s{A0+1}, v14")
        vm.issue(f"global_load_dwordx4 {ar(AGU+4*m_,4)}, v14, {sp(WUP if m_ else WGP)}")
    def ffn_dn():
        I(f"s_lshl_b32 s{A0+1}, s{CGP}, 13")
        I(f"s_add_u32 s{A0+1}, s{A0+1}, s{W1K}")
        I(f"v_add_u32 v14, s{A0+1}, v3")
        vm.issue(f"global_load_dwordx4 {ar(ADN,4)}, v14, {sp(WDP)}")
    def attention(L):
        n = f"l{L}"
        def max16(dst, S, first):
            if first:
                I(f"v_max3_f32 v{dst}, v{S}, v{S+1}, v{S+2}"); rest = list(range(3, 16))
            else: rest = list(range(16))
            while rest:
                if len(rest) >= 2:
                    I(f"v_max3_f32 v{dst}, v{dst}, v{S+rest[0]}, v{S+rest[1]}"); rest = rest[2:]
                else:
                    I(f"v_max_f32 v{dst}, v{dst}, v{S+rest[0]}"); rest = rest[1:]
        def prime():
            I(f"ds_read_b128 {vr(KB,4)}, v{AK}")
            I(f"ds_read_b128 {vr(VA[0],4)}, v{AV}")
            I(f"ds_read_b128 {vr(VA[0]+4,4)}, v{AV} offset:512")
            I("s_waitcnt lgkmcnt(0)")
            mfma(S0, vr(KB,4), vr(Q,4), None if ENV("C0") else NEG)
            I(f"ds_read_b128 {vr(KB,4)}, v{AK} offset:1024")
            k.nop(11)
        def setup():
            halfsum("v_max_f32", 2, 7)
            for r in range(16): I(f"v_sub_f32 v{NEG+r}, 0, v2")
            I(f"v_mov_b32 v{AK}, v3")
            I(f"v_mov_b32 v{AV}, v{VBASE}")
            for r in range(16): I(f"v_mov_b32 v{O+r}, 0")
            for r in range(4): I(f"v_mov_b32 v{P1+r}, 0")
            for r in range(4): I(f"v_mov_b32 v{VA[1]+4+r}, 0")
            prime()
        def tile(u, extra=None, nokread=False, noqk=False, novread=False, first=False):
            extra = extra or {}
            if "p" in extra: I(f"s_setprio {extra['p']}")
            Sc, Sn = (S0, S1) if u % 2 == 0 else (S1, S0)
            Vc, Vo = VA[u % 2], VA[1 - u % 2]
            E = lambda r: I(f"v_exp_f32 v{Sc+r}, v{Sc+r}")
            Cv = lambda P, r, b: I(f"v_cvt_pk_bf16_f32 v{P+r}, v{Sc+b+2*r}, v{Sc+b+2*r+1}")
            E(0); E(1)
            if not first: mfma(O, vr(Vo+4,4), vr(P1,4), O)
            if 0 in extra: extra[0]()
            E(2); E(3); E(4)
            I("s_waitcnt lgkmcnt(0)")
            E(5)
            if not noqk: mfma(Sn, vr(KB,4), vr(Q,4), None if ENV("C0") else NEG)
            E(6)
            if not nokread: I(f"ds_read_b128 {vr(KB,4)}, v{AK} offset:{(u+2)*1024}")
            E(7)
            if not novread: I(f"ds_read_b128 {vr(Vo,4)}, v{AV} offset:{(u+1)*1024}")
            for r in range(4): Cv(P0, r, 0)
            E(8)
            if not novread: I(f"ds_read_b128 {vr(Vo+4,4)}, v{AV} offset:{(u+1)*1024+512}")
            E(9)
            mfma(O, vr(Vc,4), vr(P0,4), None if first else O)
            if 1 in extra: extra[1]()
            for r in range(10, 16): E(r)
            for r in range(4): Cv(P1, r, 8)
        def bump():
            I(f"v_add_u32 v{AK}, 0x2000, v{AK}")
            I(f"v_add_u32 v{AV}, v{AVS}, v{AV}")
        prime()
        k.stamp(name=f"x{n}_setup")
        I("s_setprio 3")
        def publish_kv():
            vm.drain()
            I("s_barrier")
            I(f"s_cmp_lg_u32 s{WAVE}, 0")
            I(f"s_cbranch_scc1 {lab(n+'_noflag')}")
            I(f"v_mov_b32 v14, s{TAG}")
            I("s_mov_b64 exec, 1")
            I(f"global_store_dword v9, v14, {sp(WSP)} sc1")
            exec_all()
            k.L(lab(n + "_noflag"))
        pl = f"global_load_dword v14, v8, {sp(WSP)} sc1"
        def poll_issue():
            I("s_mov_b64 exec, 0xff"); I(pl); exec_all()
        def poll_check():
            I("s_mov_b64 exec, 0xff")
            if L == 1:
                I(f"s_lshr_b32 s{A0}, s{IDX}, 8")
                I(f"s_bitset0_b32 exec_lo, s{A0}")
            poll(n + "_pk", [pl], [14], first_issued=True)
            exec_all()
        def stg(sl): return ARS + 8*(sl-1) if L == 0 else 64 + 8*((sl-1) % 6)
        def rload(sl):
            if L == 1:
                I(f"s_lshr_b32 s{A0+1}, s{IDX}, 8")
                I(f"s_sub_u32 s{A0+1}, s{A0+1}, s{QB}")
                I(f"s_and_b32 s{A0+1}, s{A0+1}, 7")
                if sl == 7:
                    I(f"s_cmp_eq_u32 s{A0+1}, 0")
                    I(f"s_cselect_b32 s{A0}, 7, s{A0+1}")
                    I("s_mov_b64 exec, 0xff")
                    poll(n + "_pk7", [pl], [14], first_issued=True)
                    exec_all()
                else:
                    I(f"s_sub_u32 s{A0+1}, s{A0+1}, 1")
                    I(f"s_cmp_lt_u32 s{A0+1}, {sl}")
                    I(f"s_cselect_b32 s{A0}, {sl+1}, {sl}")
                I(f"s_add_u32 s{A0}, s{QB}, s{A0}")
            else:
                I(f"s_add_u32 s{A0}, s{QB}, {sl}")
            I(f"s_and_b32 s{A0}, s{A0}, 7")
            I(f"s_sub_u32 s{A0}, s{A0}, s{QB}")
            I(f"s_lshl_b32 s{A0}, s{A0}, 13")
            I(f"v_add_u32 v13, s{A0}, v4")
            vm.issue(f"global_load_dwordx4 {ar(stg(sl),4)}, v13, {sp(KB_)} sc1", f"r{sl}")
            vm.issue(f"global_load_dwordx4 {ar(stg(sl)+4,4)}, v13, {sp(VB_)} sc1", f"r{sl}")
        def rwrite(sl):
            if f"r{sl}" in vm.q: vm.wait(f"r{sl}")
            I(f"ds_write_b128 v15, {ar(stg(sl),4)} offset:{sl*8192}")
            I(f"ds_write_b128 v5, {ar(stg(sl)+4,4)} offset:{sl*8192}")
        PUB, PI, PC = [int(x) for x in ENV("POLL", "1,4,5").split(",")]
        PR = {}
        if ENV("PBAL", "1") == "1":
            PR = eval(ENV('PRS', '{4: 2, 6: 1, 7: 0, 8: 3, 11: 2, 12: 1, 13: 0, 14: 3, 18: 2, 20: 1, 21: 0, 22: 3, 30: 2, 34: 1, 36: 0, 38: 3}'))
        for u in range(8):
            ex = {}
            if u == PUB: ex[0] = publish_kv
            if u == PI: ex[0] = poll_issue
            if u == PC: ex[0] = lambda: (poll_check(), rload(1), rload(2))
            if u in PR: ex["p"] = PR[u]
            tile(u, ex, nokread=(u >= 6), noqk=(u == 7), novread=(u == 7), first=(u == 0))
        bump()
        k.stamp(name=f"x{n}_ch0a")
        rwrite(1)
        B2 = ENV("B2", "0") == "1"
        if B2: rwrite(2)
        bar()
        k.stamp(name=n + "_c0")
        prime()
        def wo_addr():
            I(f"s_lshl_b32 s{A0}, s{WAVE}, 16")
            I(f"s_lshl_b32 s{A0+1}, s{CG}, 7")
            I(f"s_add_u32 s{A0}, s{A0}, s{A0+1}")
            I("v_lshrrev_b32 v2, 3, v1")
            I(f"v_lshl_add_u32 v2, v2, 10, s{A0}")
            I("v_and_b32 v14, 7, v1")
            I("v_lshl_add_u32 v2, v14, 4, v2")
        def wo_load(i):
            vm.issue(f"global_load_dwordx4 {ar(AWO+4*i,4)}, v2, {sp(WOP)}", "wo")
            if i < 7: I("v_add_u32 v2, 0x2000, v2")
        def misc_loads():
            I(f"s_lshl_b32 s{A0}, s{KG}, 9")
            I(f"s_lshl_b32 s{A0+1}, s{OT}, 15")
            I(f"s_add_u32 s{A0}, s{A0}, s{A0+1}")
            I("v_and_b32 v10, 15, v1")
            I(f"v_lshl_add_u32 v{VXO}, v10, 4, s{A0}")
            I("v_lshrrev_b32 v10, 5, v1")
            I(f"v_lshl_add_u32 v{VXO}, v10, 8, v{VXO}")
            I("v_bfe_u32 v10, v1, 4, 1")
            I(f"v_lshl_add_u32 v{VXO}, v10, 14, v{VXO}")
            I("v_and_b32 v10, 31, v1")
            I(f"s_lshl_b32 s{A0}, s{OT}, 5")
            I(f"v_add_u32 v{VTK}, s{A0}, v10")
            I("v_lshrrev_b32 v10, 5, v1")
            I(f"s_lshl_b32 s{A0}, s{KG}, 5")
            I(f"v_lshl_add_u32 v14, v10, 3, s{A0}")
            vm.issue(f"global_load_dwordx2 {vr(WR,2)}, v14, {sp(WRP)}")
            vm.issue(f"global_load_dwordx2 {vr(WR+2,2)}, v14, {sp(WRP)} offset:16")
            I(f"v_lshl_add_u32 v14, v{VTK}, 10, v14")
            vm.issue(f"global_load_dwordx2 {vr(XG,2)}, v14, {sp(X0P)}")
            vm.issue(f"global_load_dwordx2 {vr(XG+2,2)}, v14, {sp(X0P)} offset:16")
        sched = {
            1: {(0,0): lambda: rload(3), (3,0): lambda: rload(4), (4,0): lambda: rwrite(2), (6,0): bar},
            2: {(0,0): lambda: rload(5), (3,0): lambda: rload(6), (4,0): lambda: rwrite(3), (5,0): lambda: rwrite(4), (6,0): bar},
            3: {(0,0): lambda: rload(7)},
            4: {(0,0): lambda: rwrite(5), (1,0): lambda: rwrite(6), (2,0): lambda: rwrite(7), (6,0): bar},
        }
        def touches():
            I(f"s_cmp_ge_u32 s{WAVE}, 5")
            I(f"s_cbranch_scc1 {lab('t_done')}")
            I(f"s_cmp_ge_u32 s{WAVE}, 2")
            I(f"s_cbranch_scc1 {lab('t_lin')}")
            I(f"s_mul_i32 s{A0}, s{QB}, 7")
            I(f"s_lshr_b32 s{A0}, s{A0}, 1")
            I(f"s_lshl_b32 s{A0}, s{A0}, 7")
            I(f"s_mul_i32 s{A0+1}, s{HEAD}, {16*3584}")
            I(f"s_add_u32 s{A0}, s{A0}, s{A0+1}")
            I("v_lshrrev_b32 v14, 2, v1")
            I("v_mul_u32_u24 v14, 3584, v14")
            I("v_and_b32 v10, 3, v1")
            I("v_lshl_add_u32 v14, v10, 7, v14")
            I(f"v_add_u32 v14, s{A0}, v14")
            I(f"s_cmp_eq_u32 s{WAVE}, 0")
            I(f"s_cselect_b32 s{T0}, s{WGP}, s{WUP}")
            I(f"s_cselect_b32 s{T0+1}, s{WGP+1}, s{WUP+1}")
            I(f"s_branch {lab('t_go')}")
            k.L(lab("t_lin"))
            I(f"s_lshl_b32 s{A0}, s{CGP}, 13")
            I(f"s_lshl_b32 s{A0+1}, s{HEAD}, 14")
            I(f"s_and_b32 s{A0+2}, s{WAVE}, 1")
            I(f"s_lshl_b32 s{A0+2}, s{A0+2}, 13")
            I(f"s_add_u32 s{A0+1}, s{A0+1}, s{A0+2}")
            I(f"s_cmp_eq_u32 s{WAVE}, 2")
            I(f"s_cselect_b32 s{A0}, s{A0}, s{A0+1}")
            I(f"s_cselect_b32 s{T0}, s{WDP}, s{WOP}")
            I(f"s_cselect_b32 s{T0+1}, s{WDP+1}, s{WOP+1}")
            I(f"v_lshl_add_u32 v14, v1, 7, s{A0}")
            k.L(lab("t_go"))
            I(f"global_load_dword v9, v14, {sp(T0)}")
            k.L(lab("t_done"))
        NU = 5
        if B2:
            del sched[1][(4,0)]; del sched[1][(6,0)]
            for t_ in (11, 12, 13, 14, 18, 20, 21): PR.pop(t_, None)
            PR.update({15: 2, 19: 1, 21: 0})
        if L == 0:
            NU = 6
            def pretouch():
                if ENV("PT") == "1":
                    I(f"s_cmp_lg_u32 s{WAVE}, 6")
                    I(f"s_cbranch_scc1 {lab('pt_done')}")
                    I("v_mul_u32_u24 v14, 0x50000, v1")
                    I(f"global_load_dword v11, v14, {sp(WSP)}")
                    I("v_lshlrev_b32 v14, 15, v1")
                    I(f"global_load_dword v11, v14, {sp(OUTP)}")
                    k.L(lab("pt_done"))
                else:
                    I("v_mul_u32_u24 v14, 0xa000, v0")
                    I(f"global_load_dword v11, v14, {sp(WSP)}")
                    I("v_lshlrev_b32 v14, 12, v0")
                    I(f"global_load_dword v11, v14, {sp(OUTP)}")
            if ENV("PT"): sched[2][(7,0)] = pretouch
            if ENV("TL", "1") == "0":
                sched[2][(6,1)] = touches
                sched[3][(3,0)] = wo_addr
                for i in range(4): sched[3][(4 + i, 0)] = (lambda i=i: wo_load(i))
                for i, u in enumerate((3, 4, 5, 7)): sched[4][(u, 0)] = (lambda i=i: wo_load(4 + i))
                sched[5] = {(0,0): lambda: ffn_gu(0), (2,0): misc_loads, (4,0): lambda: ffn_gu(1), (6,0): ffn_dn}
            else:
                sched[3][(0,1)] = touches
                sched[4][(3,0)] = wo_addr
                for i, u in enumerate((4, 5, 7)): sched[4][(u, 0)] = (lambda i=i: wo_load(i))
                sched[5] = {(i, 0): (lambda i=i: wo_load(3 + i)) for i in range(5)}
                sched[5][(5,0)] = lambda: ffn_gu(0)
                sched[5][(6,0)] = lambda: ffn_gu(1)
                sched[5][(7,0)] = ffn_dn
                sched[5][(7,1)] = misc_loads
            PR[40] = 3
        else:
            sched[2][(7,0)] = poll_issue
        for c in range(1, NU):
            for u in range(8):
                ex = {sl: f for (uu, sl), f in sched[c].items() if uu == u}
                if 8*c + u in PR: ex["p"] = PR[8*c + u]
                tile(u, ex)
            bump()
            k.stamp(name=f"x{n}_ch{c}")
        I(f"s_mov_b32 s{CTR}, {NU}")
        k.lines.append(".p2align 6")
        k.L(lab(n + "_loop"))
        if ENV("PEND", "1") == "0":
            I(f"s_cmp_lt_u32 s{CTR}, 5"); I(f"s_cbranch_scc1 {lab(n+'_pd')}")
            I("s_setprio 2")
            I(f"s_cmp_lt_u32 s{CTR}, 6"); I(f"s_cbranch_scc1 {lab(n+'_pd')}")
            I("s_setprio 1")
            I(f"s_cmp_lt_u32 s{CTR}, 7"); I(f"s_cbranch_scc1 {lab(n+'_pd')}")
            I("s_setprio 0")
            k.L(lab(n + "_pd"))
            for u in range(8): tile(u)
        else:
            I(f"s_cmp_lt_u32 s{CTR}, 6"); I(f"s_cbranch_scc1 {lab(n+'_pd')}")
            I("s_setprio 2")
            I(f"s_cmp_lt_u32 s{CTR}, 7"); I(f"s_cbranch_scc1 {lab(n+'_pd')}")
            I("s_setprio 1")
            k.L(lab(n + "_pd"))
            for u in range(8):
                if u == 5:
                    I(f"s_cmp_lt_u32 s{CTR}, 7"); I(f"s_cbranch_scc1 {lab(n+'_pe')}")
                    I("s_setprio 0")
                    k.L(lab(n + "_pe"))
                tile(u)
        bump()
        I(f"s_add_u32 s{CTR}, s{CTR}, 1")
        I(f"s_cmp_lt_u32 s{CTR}, 8")
        I(f"s_cbranch_scc1 {lab(n+'_loop')}")
        mfma(O, vr(VA[1]+4,4), vr(P1,4), O)
        I("s_waitcnt lgkmcnt(0)")
        k.stamp(name=n + "_attn")
        k.nop(12)
        I(f"s_cmp_lg_u32 s{PASS}, 0")
        I(f"s_cbranch_scc1 {lab(n+'_fin')}")
        I(f"v_cmp_nge_f32 vcc, s{THR}, v{O+8}")
        k.nop(2)
        I(f"s_cbranch_vccz {lab(n+'_fin')}")
        I(f"s_mov_b32 s{PASS}, 1")
        I(f"v_mov_b32 v{AK}, v3")
        I("v_mov_b32 v2, 0xff800000")
        I(f"s_mov_b32 s{CTR}, 0")
        k.L(lab(n + "_maxloop"))
        I(f"ds_read_b128 {vr(KB,4)}, v{AK}")
        I("s_waitcnt lgkmcnt(0)")
        mfma(S0, vr(KB,4), vr(Q,4), None)
        I(f"v_add_u32 v{AK}, 0x400, v{AK}")
        k.nop(12)
        max16(2, S0, False)
        I(f"s_add_u32 s{CTR}, s{CTR}, 1")
        I(f"s_cmp_lt_u32 s{CTR}, 64")
        I(f"s_cbranch_scc1 {lab(n+'_maxloop')}")
        setup()
        I(f"s_mov_b32 s{CTR}, 0")
        I(f"s_branch {lab(n+'_loop')}")
        k.L(lab(n + "_fin"))
        I(f"v_rcp_f32 v2, v{O+8}")
        I("s_nop 0")
        for r in range(8): I(f"v_mul_f32 v{O+r}, v{O+r}, v2")
        for r in range(4): I(f"v_cvt_pk_bf16_f32 v{P0+r}, v{O+2*r}, v{O+2*r+1}")
        I(f"global_store_dwordx4 v4, {vr(P0,4)}, {sp(OB_)} sc1")

    def oproj(L):
        n = f"l{L}"
        OBf, AC, X, Y = 64, 32, 96, 16
        lane_terms()
        I(f"s_lshl_b32 s{A0}, s{KQ}, 19")
        I(f"s_lshl_b32 s{A0+1}, s{OT}, 10")
        I(f"s_add_u32 s{A0}, s{A0}, s{A0+1}")
        I(f"v_add_u32 v10, s{A0}, v3")
        I(f"s_lshl_b32 s{A0}, s{WAVE}, 13")
        I(f"s_add_u32 s{A0}, s{A0}, 0x10000")
        I(f"v_add_u32 v12, s{A0}, v3")
        I(f"s_lshl_b32 s{A0}, s{TT}, 12")
        I(f"s_lshl_b32 s{A0+1}, s{HEAD}, 7")
        I(f"s_add_u32 s{A0}, s{A0}, s{A0+1}")
        I(f"s_add_u32 s{A0}, s{A0}, {hex(FLO[L])}")
        I(f"v_mov_b32 v13, s{A0}")
        I(f"v_mov_b32 v14, s{TAG}")
        I(f"s_lshl_b32 s{A0}, s{OT}, 12")
        I(f"s_lshl_b32 s{A0+1}, s{KQ}, 10")
        I(f"s_add_u32 s{A0}, s{A0}, s{A0+1}")
        I(f"s_add_u32 s{A0}, s{A0}, {hex(FLO[L])}")
        I(f"v_lshl_add_u32 v31, v1, 7, s{A0}")
        FLW = ENV("FLW", "0") == "1"
        if not FLW:
            I(f"s_lshl_b32 s{A0}, s{QB}, 15")
            I(f"s_add_u32 s{A0}, s{A0}, {hex(FLO[L])}")
            I(f"v_lshl_add_u32 v31, v6, 7, s{A0}")
        vm.drain()
        if not FLW:
            I("s_barrier")
            I(f"s_cmp_lg_u32 s{WAVE}, 0")
            I(f"s_cbranch_scc1 {lab(n+'_nof')}")
        I("s_mov_b64 exec, 1")
        I(f"global_store_dword v13, v14, {sp(WSP)} sc1")
        exec_all()
        if not FLW: k.L(lab(n + "_nof"))
        if L == 0 and FLW: I("s_barrier")
        k.stamp(name=n + "_odrain")
        if L == 0:
            for i in range(8): I(f"ds_write_b128 v12, {ar(AWO+4*i,4)} offset:{1024*i}")
            I(f"global_load_dwordx4 v[16:19], v3, {sp(WRP)}")
            I(f"s_lshl_b32 s{A0}, s{WAVE}, 11")
            I(f"v_lshl_add_u32 v13, v1, 5, s{A0}")
            I(f"ds_write_b128 v13, {ar(AGU,4)}")
            I(f"ds_write_b128 v13, {ar(AGU+4,4)} offset:16")
            I(f"v_add_u32 v13, s{W1K}, v3")
            I(f"ds_write_b128 v13, {ar(ADN,4)} offset:16384")
            I("v_bfe_u32 v13, v1, 2, 2")
            I("v_and_b32 v14, 3, v1")
            I("v_lshl_add_u32 v12, v7, 2, v13")
            I("v_lshlrev_b32 v12, 7, v12")
            I("v_lshl_add_u32 v12, v14, 3, v12")
            I("v_bfe_u32 v15, v1, 4, 1")
            I("v_lshl_add_u32 v12, v15, 5, v12")
            I(f"s_lshl_b32 s{A0+1}, s{KQ}, 5")
            I(f"v_xor_b32 v12, s{A0+1}, v12")
            I(f"s_lshl_b32 s{A0+1}, s{KQ}, 14")
            I(f"s_add_u32 s{A0+1}, s{A0+1}, 0x10000")
            I(f"v_add_u32 v12, s{A0+1}, v12")
            I("v_xor_b32 v15, 64, v12")
            bar()
            for i in range(8):
                for b in range(2):
                    I(f"ds_read_b64_tr_b16 {ar(AWO+8*i+4*b,2)}, v{15 if b else 12} offset:{2048*i}")
                    I(f"ds_read_b64_tr_b16 {ar(AWO+8*i+4*b+2,2)}, v{15 if b else 12} offset:{2048*i+1024}")
                if i % 2 == 1: I("s_waitcnt lgkmcnt(0)")
            I("v_lshrrev_b32 v15, 4, v1")
            I("v_lshl_add_u32 v13, v15, 3, v13")
            I("v_lshlrev_b32 v13, 5, v13")
            I("v_lshl_add_u32 v13, v14, 3, v13")
            I(f"v_add_u32 v13, s{A0}, v13")
            for i in range(2):
                I(f"ds_read_b64_tr_b16 {ar(AGU+4*i,2)}, v13 offset:{1024*i}")
                I(f"ds_read_b64_tr_b16 {ar(AGU+4*i+2,2)}, v13 offset:{1024*i+128}")
            I("v_lshlrev_b32 v13, 1, v0")
            for f in range(8): I(f"ds_read_u16 a{ADN+f}, v13 offset:{16384+1024*f}")
            I("v_mov_b32 v20, 0")
            I("s_waitcnt vmcnt(0)")
            for r in range(4): I(f"v_dot2_f32_bf16 v20, v{16+r}, s{ONES}, v20")
            k.nop(1)
            allreduce("v_add_f32", 20, 21)
            I("s_nop 0")
            I(f"v_readfirstlane_b32 s{WSUM}, v20")
        NF = 0
        I(f"s_lshl_b32 s{A0}, s{OA}, 15")
        for g in range(4):
            I(f"s_xor_b32 s{A0+1}, s{KQ}, {g}")
            I(f"s_lshl_b32 s{A0+1}, s{A0+1}, 13")
            I(f"s_add_u32 s{A0+1}, s{A0+1}, s{A0}")
            I(f"v_add_u32 v{27+g}, s{A0+1}, v3")
        for i in range(4): unpack(X + 2*i, X + 2*i + 1, XG + i)
        if L == 1:
            for r in range(8): I(f"v_sub_f32 v{Y+r}, v{X+r}, v{RESM}")
            for r in range(8): I(f"v_mul_f32 v{Y+r}, v{Y+r}, v{RESR}")
            for i in range(4): I(f"v_cvt_pk_bf16_f32 v{XG+i}, v{Y+2*i}, v{Y+2*i+1}")
            for i in range(4): unpack(Y + 2*i, Y + 2*i + 1, XG + i)
            for r in range(8): I(f"v_add_f32 v{X+r}, v{X+r}, v{Y+r}")
            for i in range(4): I(f"v_cvt_pk_bf16_f32 v{XG+i}, v{X+2*i}, v{X+2*i+1}")
            for i in range(4): unpack(X + 2*i, X + 2*i + 1, XG + i)
        if L == 1:
            I("v_lshlrev_b32 v13, 2, v6")
            I(f"v_add_u32 v13, {LKY}, v13")
            I("ds_read_b32 v16, v13")
            I("s_waitcnt lgkmcnt(0)")
            for rnd in range(3):
                I("v_mov_b32 v17, v16")
                dppred("v_max_u32", 17, Q4 + ("row_half_mirror", "row_mirror"))
                swapop("v_permlane16_swap_b32", "v_max_u32", 17, 18)
                I("v_cmp_ne_u32 vcc, v17, v16")
                if rnd: I(f"v_readfirstlane_b32 s{(CA, CB_)[rnd-1]}, v17")
                else: I("s_nop 0")
                I("s_nop 0")
                I("v_cndmask_b32 v16, 0, v16, vcc")
            for c_ in (CA, CB_):
                I(f"s_and_b32 s{c_}, s{c_}, 0x7ff")
                I(f"s_sub_u32 s{c_}, 2047, s{c_}")
        if FLW:
            I("s_mov_b64 exec, 0xff")
        else:
            I(f"s_cmp_lg_u32 s{WAVE}, 0")
            I(f"s_cbranch_scc1 {lab(n+'_owait')}")
            exec_lo(-1)
            if ENV("OACK"): I("s_waitcnt vmcnt(0)")
        if ENV("PP") and not FLW:
            ppoll(n + "_po", lambda r: f"global_load_dword v{r}, v31, {sp(WSP)} sc1", 1, 0, [14, 15, 13], int(ENV("PP")))
        else:
            poll(n + "_po", [f"global_load_dword v14, v31, {sp(WSP)} sc1"], [14])
        exec_all()
        if not FLW:
            k.L(lab(n + "_owait"))
            bar()
        k.stamp(name=n + "_opoll")
        for i in range(8):
            I(f"global_load_dwordx4 {vr(OBf+4*i,4)}, v10, {sp(OB_)} sc1")
            if i < 7: I("v_add_u32 v10, 0x10000, v10")
        for i in range(8):
            I(f"s_waitcnt vmcnt({7-i+NF})")
            for b in range(2): mfma(AC + 16*b, ar(AWO+8*i+4*b,4), vr(OBf+4*i,4), AC + 16*b if i else None)
        if FLW: bar()
        k.stamp(name=n + "_omm")
        I(f"s_lshl_b32 s{A0}, s{OA}, 12")
        I(f"s_lshl_b32 s{A0+1}, s{KQ}, 10")
        I(f"s_add_u32 s{A0}, s{A0}, s{A0+1}")
        I(f"s_add_u32 s{A0}, s{A0}, {LSA}")
        I(f"v_add_u32 v13, s{A0}, v3")
        sadd64(XB_, WSP, XF[L])
        k.nop(5)
        for g in range(1, 4):
            for hf in range(2): I(f"ds_write_b128 v{27+g}, {vr(AC+8*g+4*hf,4)} offset:{2048*g+1024*hf}")
        for r in range(8): I(f"v_add_f32 v{AC+r}, v{AC+r}, v{X+r}")
        bar()
        k.stamp(name="x" + n + "_red")
        for g in range(1, 4):
            for hf in range(2): I(f"ds_read_b128 {vr(AC+8*g+4*hf,4)}, v27 offset:{2048*g+1024*hf}")
        I("s_waitcnt lgkmcnt(4)")
        for r in range(8): I(f"v_add_f32 v{AC+r}, v{AC+r}, v{AC+8+r}")
        I("s_waitcnt lgkmcnt(0)")
        for r in range(8): I(f"v_add_f32 v{AC+16+r}, v{AC+16+r}, v{AC+24+r}")
        for r in range(8): I(f"v_add_f32 v{AC+r}, v{AC+r}, v{AC+16+r}")
        for i in range(4): I(f"v_cvt_pk_bf16_f32 v{24+i}, v{AC+2*i}, v{AC+2*i+1}")
        for i in range(4): I(f"v_mov_b32 v{XG+i}, v{24+i}")
        I("v_permlane32_swap_b32 v24, v26")
        I("v_permlane32_swap_b32 v25, v27")
        I(f"global_store_dwordx4 v{VXO}, v[24:27], {sp(XB_)} sc1")
        for i in range(4):
            I(f"v_dot2_f32_bf16 v16, v{XG+i}, s{ONES}, {'v16' if i else 0}")
            I(f"v_dot2_f32_bf16 v17, v{XG+i}, v{XG+i}, {'v17' if i else 0}")
            I(f"v_dot2_f32_bf16 v18, v{XG+i}, v{WR+i}, {'v18' if i else 0}")
        k.nop(3)
        I("ds_write_b96 v13, v[16:18]")
        k.stamp(name="x" + n + "_epi")
        I("s_waitcnt vmcnt(0) lgkmcnt(0)")
        k.stamp(name="x" + n + "_xdrain")
        I("s_waitcnt vmcnt(0) lgkmcnt(0)")
        I("s_barrier")
        I(f"s_cmp_lg_u32 s{WAVE}, 0")
        I(f"s_cbranch_scc1 {lab(n+'_nost')}")
        I("v_lshlrev_b32 v13, 4, v6")
        I("v_lshl_add_u32 v13, v7, 12, v13")
        I(f"v_add_u32 v13, {LSA}, v13")
        for j in range(8): I(f"ds_read_b96 {vr(32+4*j,3)}, v13 offset:{512*j}")
        I(f"s_lshl_b32 s{A0}, s{TB}, 3")
        I(f"s_add_u32 s{A0}, s{A0}, s{CG}")
        I(f"s_lshl_b32 s{A0}, s{A0}, 10")
        I(f"s_add_u32 s{A0}, s{A0}, {hex(ST[L])}")
        I(f"v_add_u32 v13, s{A0}, v3")
        I(f"v_mov_b32 v35, s{TAG}")
        I("s_waitcnt lgkmcnt(0)")
        for j in range(1, 8):
            for c in range(3): I(f"v_add_f32 v{32+c}, v{32+c}, v{32+4*j+c}")
        I(f"global_store_dwordx4 v13, v[32:35], {sp(WSP)} sc1")
        k.L(lab(n + "_nost"))
        k.stamp(name=n + "_stpub")

    def hop_a(L, after_poll=None, before_poll=None, after_bar=None, shadow=None):
        n = f"l{L}"
        I(f"s_lshl_b32 s{A0}, s{TB}, 13")
        I(f"s_add_u32 s{A0}, s{A0}, {hex(ST[L])}")
        I(f"v_lshl_add_u32 v12, v0, 4, s{A0}")
        loads = [f"global_load_dwordx4 v[32:35], v12, {sp(WSP)} sc1"]; tags = [35]
        if ENV("HA2", "1") == "1":
            I(f"s_cmp_lg_u32 s{WAVE}, 0")
            I(f"s_cbranch_scc1 {lab(n+'_a1')}")
            if ENV("P1", "ack") == "ack":
                I("s_waitcnt vmcnt(0)")
            else:
                I(f"s_lshl_b32 s{A0+1}, s{CG}, 10")
                I(f"s_add_u32 s{A0}, s{A0}, s{A0+1}")
                I(f"s_add_u32 s{A0}, s{A0}, 1020")
                I(f"v_mov_b32 v13, s{A0}")
                exec_lo(1)
                poll(n + "_p1", [f"global_load_dword v36, v13, {sp(WSP)} sc1"], [36])
                exec_all()
            k.L(lab(n + "_a1"))
            I("s_barrier")
        if True:
            if L == 0:
                I(f"s_lshr_b32 s{A0}, s{TT}, 1")
                I(f"s_lshl_b32 s{A0}, s{A0}, 13")
                I(f"s_add_u32 s{A0}, s{A0}, {hex(ST[L] + 12)}")
                I("v_and_b32 v13, 7, v1")
                I(f"v_lshl_add_u32 v13, v13, 10, s{A0}")
                loads.append(f"global_load_dword v36, v13, {sp(WSP)} sc1"); tags.append(36)
        if before_poll: before_poll()
        for l in loads: I(l)
        if shadow: shadow()
        poll(n + "_pa", loads, tags, first_issued=True)
        I("v_lshlrev_b32 v13, 4, v0")
        I("ds_write_b96 v13, v[32:34]")
        if after_poll: after_poll()
        bar()
        k.stamp(name=n + "_hopa")
        if after_bar: after_bar()
        for c in range(8): I(f"ds_read_b96 {vr(16+4*c,3)}, v3 offset:{1024*c}")
        I("s_waitcnt lgkmcnt(0)")
        for a_, b_ in ((0,1),(2,3),(4,5),(6,7),(0,2),(4,6),(0,4)):
            for c in range(3): I(f"v_add_f32 v{16+4*a_+c}, v{16+4*a_+c}, v{16+4*b_+c}")
        rowstats(16, 17, RESM, 20, RESR)
        I(f"s_or_b32 s{A0}, s{CG}, s{WAVE}")
        I(f"s_cmp_lg_u32 s{A0}, 0")
        I(f"s_cbranch_scc1 {lab(n+'_nokey')}")
        I(f"v_fma_f32 v18, -v{RESM}, s{WSUM}, v18")
        I(f"v_mul_f32 v18, v18, v{RESR}")
        bf16r(18)
        I("v_ashrrev_i32 v19, 31, v18")
        I("v_or_b32 v19, 0x80000000, v19")
        I("v_xor_b32 v19, v19, v18")
        I("v_and_b32 v19, 0xffff0000, v19")
        I(f"s_lshl_b32 s{A0}, s{TB}, 6")
        I(f"s_sub_u32 s{A0}, 2047, s{A0}")
        I(f"v_sub_u32 v20, s{A0}, v1")
        I("v_or_b32 v20, v19, v20")
        I("v_mov_b32 v24, v20")
        allreduce("v_max_u32", 24, 25)
        I("v_cmp_eq_u32 vcc, v24, v20")
        I(f"s_lshl_b32 s{A0}, s{TB}, 7")
        I(f"s_add_u32 s{A0}, s{A0}, {hex(KEY[L])}")
        I(f"s_ff1_i32_b64 s{A0+1}, vcc")
        I(f"v_lshl_add_u32 v13, v1, 12, s{A0}")
        I(f"v_mov_b32 v27, s{TAG}")
        I(f"v_readlane_b32 s{A0+2}, v{RESM}, s{A0+1}")
        I(f"v_readlane_b32 s{A0+3}, v{RESR}, s{A0+1}")
        I("s_mov_b64 exec, 0xff")
        I("s_nop 0")
        I(f"v_mov_b32 v25, s{A0+2}")
        I(f"v_mov_b32 v26, s{A0+3}")
        I(f"global_store_dwordx4 v13, v[24:27], {sp(WSP)} sc1")
        exec_all()
        k.L(lab(n + "_nokey"))
        I(f"v_mov_b32 v16, v{RESM}")
        I(f"v_mov_b32 v17, v{RESR}")
        I(f"s_cmp_eq_u32 s{OA}, 1")
        I("s_cselect_b64 vcc, -1, 0")
        I(f"v_permlane32_swap_b32 v{RESM}, v16")
        I(f"v_permlane32_swap_b32 v{RESR}, v17")
        I(f"v_cndmask_b32 v{RESM}, v{RESM}, v16, vcc")
        I(f"v_cndmask_b32 v{RESR}, v{RESR}, v17, vcc")
        k.stamp(name="x" + n + "_key")

    FT = 76
    SR = 96
    stat_loads = [f"global_load_dwordx4 {vr(SR+4*i,4)}, v11, {sp(WSP)} offset:{1024*i} sc1" for i in range(4)]
    stat_tags = [SR + 4*i + 3 for i in range(4)]
    def own_stats():
        for i in range(1, 4):
            for c in range(2): I(f"v_add_f32 v{SR+c}, v{SR+c}, v{SR+4*i+c}")
        halfsum("v_add_f32", SR, SR + 2)
        halfsum("v_add_f32", SR + 1, SR + 2)
        rowstats(SR, SR + 1, MT[0], SR + 2, SR + 3)
        I(f"v_mov_b32 v{AT[0]}, s{CEPS}")
        I(f"v_add_f32 v{SR+3}, 1.0, v{SR+3}")
        I(f"v_mul_f32 v{SR+2}, v{SR+2}, v{SR+3}")
        I(f"v_fmac_f32 v{AT[0]}, v{SR+2}, v{SR+3}")
        I(f"v_rsq_f32 v{AT[0]}, v{AT[0]}")
        I(f"v_mov_b32 v{MT[1]}, v{MT[0]}")
        I(f"v_mul_f32 v{AT[0]}, v{AT[0]}, v{SR+3}")
        I(f"v_mov_b32 v{AT[1]}, v{AT[0]}")
        I(f"v_permlane16_swap_b32 v{MT[0]}, v{MT[1]}")
        I("s_nop 0")
        I(f"v_permlane16_swap_b32 v{AT[0]}, v{AT[1]}")
    def key_load(L):
        return f"global_load_dwordx4 {vr(FT,4)}, v{FT+4}, {sp(WSP)} sc1"
    def hop_b_issue(L, sfx=""):
        I(f"s_lshl_b32 s{A0}, s{QB}, 12")
        I(f"s_add_u32 s{A0}, s{A0}, {hex(KEY[L])}")
        I(f"v_lshl_add_u32 v{FT+4}, v6, 7, s{A0}")
        I(f"s_cmp_lg_u32 s{WAVE}, 0")
        I(f"s_cbranch_scc1 {lab(f'l{L}_nki{sfx}')}")
        I(key_load(L))
        k.L(lab(f"l{L}_nki{sfx}"))
    def hop_b(L, role=""):
        n = f"l{L}{role}"
        I(f"v_mov_b32 v{FT+6}, {LFF}")
        I(f"s_cmp_lg_u32 s{WAVE}, 0")
        I(f"s_cbranch_scc1 {lab(n+'_kw')}")
        keepq = list(vm.q)
        poll(n + "_pb", [key_load(L)], [FT + 3], first_issued=True)
        vm.q = keepq
        if L == 0:
            I(f"v_lshlrev_b32 v{FT+5}, 2, v6")
            I(f"v_add_u32 v{FT+5}, {LKY}, v{FT+5}")
            I(f"ds_write_b32 v{FT+5}, v{FT}")
        I(f"v_mov_b32 v{FT+5}, v{FT}")
        dppred("v_max_u32", FT + 5, Q4 + ("row_half_mirror", "row_mirror"))
        swapop("v_permlane16_swap_b32", "v_max_u32", FT + 5, FT + 7)
        I(f"v_cmp_eq_u32 vcc, v{FT+5}, v{FT}")
        I("s_mov_b64 exec, vcc")
        I(f"ds_write_b96 v{FT+6}, {vr(FT,3)}")
        exec_all()
        k.L(lab(n + "_kw"))
        bar()
        I(f"ds_read_b96 {vr(FT,3)}, v{FT+6}")
        I("s_waitcnt lgkmcnt(0)")
        I(f"v_readfirstlane_b32 s{IDX}, v{FT}")
        I(f"v_readfirstlane_b32 s{RM}, v{FT+1}")
        I(f"v_readfirstlane_b32 s{RR}, v{FT+2}")
        I(f"s_and_b32 s{RS_}, s{IDX}, 0xffff0000")
        I(f"s_and_b32 s{IDX}, s{IDX}, 0x7ff")
        I(f"s_sub_u32 s{IDX}, 2047, s{IDX}")
        I(f"s_ashr_i32 s{A0}, s{RS_}, 31")
        I(f"s_not_b32 s{A0}, s{A0}")
        I(f"s_or_b32 s{A0}, s{A0}, 0x80000000")
        I(f"s_xor_b32 s{RS_}, s{RS_}, s{A0}")
        I(f"s_and_b32 s{RS_}, s{RS_}, 0xffff0000")
        if L == 1:
            I(f"s_cmp_eq_u32 s{IDX}, s{CA}")
            I(f"s_cselect_b32 s{YSEL}, 1, 0")
            I(f"s_cmp_eq_u32 s{IDX}, s{CB_}")
            I(f"s_cselect_b32 s{YSEL}, 2, s{YSEL}")
            I(f"s_cmp_lg_u32 s{YSEL}, 0")
            I(f"s_cbranch_scc1 {lab('hit')}")
        I(f"s_lshr_b32 s{A0}, s{IDX}, 4")
        I(f"s_lshl_b32 s{A0}, s{A0}, 14")
        I(f"s_and_b32 s{A0+1}, s{IDX}, 15")
        I(f"s_lshl_b32 s{A0+1}, s{A0+1}, 4")
        I(f"s_add_u32 s{A0}, s{A0}, s{A0+1}")
        I("s_cmp_ge_u32 s2, 224")
        I(f"s_cbranch_scc1 {lab(n+'_frow')}")
        I(f"s_lshl_b32 s{A0+1}, s{WAVE}, 11")
        I(f"s_add_u32 s{A0}, s{A0}, s{A0+1}")
        I(f"v_and_b32 v{FT+4}, 48, v1")
        I(f"v_lshl_add_u32 v{FT+4}, v{FT+4}, 4, s{A0}")
        I(f"v_add_u32 v{FT+5}, 0x400, v{FT+4}")
        I(f"s_branch {lab(n+'_rowld')}")
        k.L(lab(n + "_frow"))
        I(f"s_sub_u32 s{A0+1}, s2, 224")
        I(f"s_lshl_b32 s{A0+1}, s{A0+1}, 9")
        I(f"s_add_u32 s{A0}, s{A0}, s{A0+1}")
        I(f"v_bfe_u32 v{FT+4}, v1, 3, 1")
        I(f"v_lshl_add_u32 v{FT+4}, v{FT+4}, 8, s{A0}")
        I(f"v_mov_b32 v{FT+5}, v{FT+4}")
        k.L(lab(n + "_rowld"))
        vm.issue(f"global_load_dwordx4 {vr(FT+8,4)}, v{FT+4}, {sp(XB_)} sc1", "row")
        vm.issue(f"global_load_dwordx4 {vr(FT+12,4)}, v{FT+5}, {sp(XB_)} sc1", "row")
    def slice1(L):
        n = f"l{L}"
        XR = FT + 8
        I(f"v_mov_b32 v{FT+2}, s{RM}")
        I(f"v_mul_f32 v{FT+2}, s{RR}, v{FT+2}")
        I(f"v_and_b32 v{FT+4}, 48, v1")
        I(f"s_lshl_b32 s{A0}, s{WAVE}, 6")
        I(f"s_add_u32 s{A0}, s{A0}, {LFF + 256}")
        I(f"v_add_u32 v{FT+4}, s{A0}, v{FT+4}")
        yp_addr(FT + 5, L)
        I(f"v_and_b32 v{FT+6}, 15, v1")
        I(f"v_lshlrev_b32 v{FT+6}, 2, v{FT+6}")
        I(f"v_add_u32 v{FT+6}, {LFF + 256}, v{FT+6}")
        for f in range(8): I(f"v_accvgpr_read_b32 v{FT+20+f}, a{ADN+f}")
        for f in range(8): I(f"v_lshlrev_b32 v{FT+20+f}, 16, v{FT+20+f}")
        vm.wait("row")
        k.stamp(name="x" + n + "_row")
        I("s_cmp_ge_u32 s2, 224")
        I(f"s_cbranch_scc1 {lab(n+'_s1skip')}")
        for i in range(8):
            t0 = FT + 16 + 2*(i & 1)
            unpack(t0, t0 + 1, XR + i)
            I(f"v_fma_f32 v{t0}, v{t0}, s{RR}, -v{FT+2}")
            I(f"v_fma_f32 v{t0+1}, v{t0+1}, s{RR}, -v{FT+2}")
            I(f"v_cvt_pk_bf16_f32 v{XR+i}, v{t0}, v{t0+1}")
        k.nop(2)
        I(f"v_mfma_f32_16x16x32_bf16 {vr(FT+16,4)}, {ar(AGU,4)}, {vr(XR,4)}, 0")
        I(f"v_mfma_f32_16x16x32_bf16 {vr(FT+16,4)}, {ar(AGU+4,4)}, {vr(XR+4,4)}, {vr(FT+16,4)}")
        I("s_mov_b32 exec_lo, 0x00010001")
        I("s_mov_b32 exec_hi, 0x00010001")
        k.nop(6)
        I(f"ds_write_b128 v{FT+4}, {vr(FT+16,4)}")
        exec_all()
        bar()
        k.L(lab(n + "_s1skip"))
    def slice2(L):
        n = f"l{L}"
        I("s_cmp_ge_u32 s2, 224")
        I(f"s_cbranch_scc1 {lab(n+'_s2skip')}")
        for i in range(8): I(f"ds_read_b32 v{FT+8+i}, v{FT+6} offset:{64*i}")
        I("s_waitcnt lgkmcnt(0)")
        g = FT + 8
        for a_, b_ in ((0,1),(2,3),(4,5),(6,7),(0,2),(4,6),(0,4)): I(f"v_add_f32 v{g+a_}, v{g+a_}, v{g+b_}")
        bf16r(g)
        t = FT
        I(f"v_mul_f32 v{t}, {hex(f2u(-LOG2E))}, v{g}")
        I(f"v_exp_f32 v{t}, v{t}")
        I("s_nop 0")
        I(f"v_add_f32 v{t}, 1.0, v{t}")
        I(f"v_rcp_f32 v{t}, v{t}")
        I("s_nop 0")
        I(f"v_mul_f32 v{t}, v{t}, v{g}")
        bf16r(t)
        k.nop(2)
        I(f"v_mul_f32_dpp v{t}, v{g}, v{t} row_ror:8 row_mask:0xf bank_mask:0xf")
        bf16r(t)
        k.nop(1)
        for f in range(8): I(f"v_readlane_b32 s{A0+f}, v{t}, {f}")
        I(f"v_mul_f32 v{FT+2}, s{A0}, v{FT+20}")
        I(f"v_mul_f32 v{FT+3}, s{A0+1}, v{FT+21}")
        for f in range(2, 8): I(f"v_fmac_f32 v{FT+2+(f&1)}, s{A0+f}, v{FT+20+f}")
        I(f"v_add_f32 v{FT+2}, v{FT+2}, v{FT+3}")
        I(f"v_min_u32 v{FT+8}, 0xfffffffe, v{FT+2}")
        I("s_nop 0")
        k.nop(1)
        for j in range(1, 4): I(f"v_mov_b32_dpp v{FT+8+j}, v{FT+8} quad_perm:[{j},{j},{j},{j}] row_mask:0xf bank_mask:0xf")
        I("s_mov_b32 exec_lo, 0x11111111"); I("s_mov_b32 exec_hi, 0x11111111")
        I(f"global_store_dwordx4 v{FT+5}, {vr(FT+8,4)}, {sp(WSP)} sc1")
        exec_all()
        k.L(lab(n + "_s2skip"))
    def x_elem(XR, t6):
        I(f"v_bfe_u32 v{t6}, v1, 1, 1")
        I(f"v_cmp_eq_u32 vcc, 1, v{t6}")
        I(f"v_bfe_u32 v{t6}, v1, 2, 1")
        I("s_nop 0")
        I(f"v_cndmask_b32 v{XR}, v{XR}, v{XR+1}, vcc")
        I(f"v_cndmask_b32 v{XR+2}, v{XR+2}, v{XR+3}, vcc")
        I(f"v_cmp_eq_u32 vcc, 1, v{t6}")
        I(f"v_and_b32 v{t6}, 1, v1")
        I("s_nop 0")
        I(f"v_cndmask_b32 v{XR}, v{XR}, v{XR+2}, vcc")
        I(f"v_cmp_eq_u32 vcc, 1, v{t6}")
        unpack(XR + 1, XR + 2, XR)
        I(f"v_cndmask_b32 v{XR}, v{XR+1}, v{XR+2}, vcc")
    def gather(name, bufs, B, ldsoff, light=True):
        I(f"s_sub_u32 s{A0}, s2, 224")
        I(f"s_mul_i32 s{A0+1}, s{A0}, {224*64}")
        I(f"s_add_u32 s{A0+1}, s{A0+1}, {hex(bufs[0]) if isinstance(bufs[0], int) else bufs[0]}")
        I(f"v_min_u32 v{B}, 447, v0")
        I(f"v_lshl_add_u32 v{B}, v{B}, 4, s{A0+1}")
        I(f"v_add_u32 v{B+1}, {448*16}, v{B}")
        for j in range(1, len(bufs)):
            I(f"v_add_u32 v{B+2*j}, {hex(bufs[j] - bufs[0])}, v{B}")
            I(f"v_add_u32 v{B+2*j+1}, {hex(bufs[j] - bufs[0])}, v{B+1}")
        Y_ = B + 8; nb = len(bufs)
        keepq = list(vm.q)
        def ychk():
            I(f"v_max3_u32 v{B+4}, v{Y_}, v{Y_+1}, v{Y_+2}")
            for r in range(3, 8*nb - 1, 2): I(f"v_max3_u32 v{B+4}, v{B+4}, v{Y_+r}, v{Y_+r+1}")
            I(f"v_max_u32 v{B+4}, v{B+4}, v{Y_+8*nb-1}")
            I(f"v_cmp_eq_u32 vcc, -1, v{B+4}")
        if light:
            I("s_mov_b64 exec, 1")
            poll(name + "_pl", [f"global_load_dword v{Y_}, v{B+2*nb-1}, {sp(WSP)} sc1"], [0], check=lambda: I(f"v_cmp_eq_u32 vcc, -1, v{Y_}"))
            exec_all()
        poll(name + "_pf", [f"global_load_dwordx4 {vr(Y_+4*j,4)}, v{B+j}, {sp(WSP)} sc1" for j in range(2*nb)], [0], check=ychk)
        vm.q = keepq
        for j in range(nb):
            for c in range(4): I(f"v_add_f32 v{Y_+8*j+c}, v{Y_+8*j+c}, v{Y_+8*j+4+c}")
        for m in ("row_shr:4", "row_shr:8"):
            k.nop(1)
            for j in range(nb):
                for c in range(4): I(f"v_add_f32_dpp v{Y_+8*j+c}, v{Y_+8*j+c}, v{Y_+8*j+c} {m} row_mask:0xf bank_mask:0xf bound_ctrl:0")
        for sw in ("v_permlane16_swap_b32", "v_permlane32_swap_b32"):
            for j in range(nb):
                for c in range(4): I(f"v_mov_b32 v{Y_+8*j+4+c}, v{Y_+8*j+c}")
            k.nop(1)
            for j in range(nb):
                for c in range(4): I(f"{sw} v{Y_+8*j+c}, v{Y_+8*j+4+c}")
            for j in range(nb):
                for c in range(4): I(f"v_add_f32 v{Y_+8*j+c}, v{Y_+8*j+c}, v{Y_+8*j+4+c}")
        I(f"v_and_b32 v{B+4}, 3, v1")
        I(f"s_lshl_b32 s{A0+1}, s{WAVE}, 6")
        I(f"s_add_u32 s{A0+1}, s{A0+1}, {ldsoff}")
        I(f"v_lshl_add_u32 v{B+4}, v{B+4}, 4, s{A0+1}")
        exec_lo("0xf000")
        for j in range(nb): I(f"ds_write_b128 v{B+4}, {vr(Y_+8*j,4)} offset:{512*j}")
        exec_all()
    def finish_row(L, XR, rd):
        n = f"l{L}"
        Y_ = FT + 16
        for i in range(7): I(f"ds_read_b32 v{Y_+i}, v{rd} offset:{64*i}")
        t = FT
        I(f"v_mov_b32 v{t}, {hex(f2u(-LOG2E))}")
        I(f"v_mul_f32 v{t}, s{RS_}, v{t}")
        I(f"v_exp_f32 v{t}, v{t}")
        I(f"v_subrev_f32 v{t+1}, s{RM}, v{XR}")
        I(f"v_add_f32 v{t}, 1.0, v{t}")
        I(f"v_rcp_f32 v{t}, v{t}")
        I(f"v_mul_f32 v{t+1}, s{RR}, v{t+1}")
        bf16r(t); bf16r(t + 1)
        I("s_waitcnt lgkmcnt(0)")
        for a_, b_ in ((0,1),(2,3),(4,5),(0,2),(4,6),(0,4)): I(f"v_add_f32 v{Y_+a_}, v{Y_+a_}, v{Y_+b_}")
        bf16r(Y_)
        I(f"v_mul_f32 v{Y_}, v{Y_}, v{t}")
        bf16r(Y_)
        I(f"v_add_f32 v{Y_}, v{Y_}, v{t+1}")
        bf16r(Y_)
        I(f"v_add_f32 v{Y_}, v{Y_}, v{XR}")
        I(f"v_cvt_pk_bf16_f32 v{Y_}, v{Y_}, v{Y_}")
        I(f"s_sub_u32 s{A0}, s2, 224")
        if L == 1:
            I(f"s_lshl_b32 s{A0+1}, s{IDX}, 10")
            I(f"s_lshl_b32 s{A0}, s{A0}, 5")
            I(f"s_add_u32 s{A0}, s{A0}, s{A0+1}")
            I(f"v_lshl_add_u32 v{FT+4}, v1, 1, s{A0}")
            exec_lo("0xffff")
            I(f"global_store_short v{FT+4}, v{Y_}, {sp(OUTP)}")
        else:
            I(f"v_and_b32 v{Y_}, 0xffff, v{Y_}")
            k.nop(2)
            for j, qp in ((1, 1), (2, 2), (3, 3)):
                I(f"v_mov_b32_dpp v{Y_+j}, v{Y_} quad_perm:[{qp},{qp},{qp},{qp}] row_mask:0xf bank_mask:0xf")
            I(f"v_lshl_or_b32 v{Y_}, v{Y_+1}, 16, v{Y_}")
            I(f"v_lshl_or_b32 v{Y_+1}, v{Y_+3}, 16, v{Y_+2}")
            I(f"v_mov_b32 v{Y_+2}, s{TAG}")
            I(f"s_lshl_b32 s{A0}, s{A0}, 7")
            I(f"s_add_u32 s{A0}, s{A0}, {hex(X2R)}")
            I(f"v_lshl_add_u32 v{FT+4}, v1, 2, s{A0}")
            exec_lo("0x1111")
            I(f"global_store_dwordx4 v{FT+4}, {vr(Y_,4)}, {sp(WSP)} sc1")
        exec_all()
    def finalize(L):
        n = f"l{L}"
        I("s_cmp_lt_u32 s2, 224")
        I(f"s_cbranch_scc1 {lab(n+'_fskip')}")
        x_elem(FT + 8, FT + 6)
        gather(n, [YP[L]], FT + 12, LFF + 256, light=(L == 1 or ENV('F0L', '1') == '1'))
        I(f"v_and_b32 v{FT+5}, 15, v1")
        I(f"v_lshlrev_b32 v{FT+5}, 2, v{FT+5}")
        I(f"v_add_u32 v{FT+5}, {LFF + 256}, v{FT+5}")
        bar()
        I(f"s_cmp_lg_u32 s{WAVE}, 0")
        I(f"s_cbranch_scc1 {lab(n+'_fskip')}")
        finish_row(L, FT + 8, FT + 5)
        k.L(lab(n + "_fskip"))

    q_epilogue(0)
    k.stamp(name="l0_qepi")
    attention(0)
    oproj(0)
    def w_restore():
        I(f"s_mul_i32 s{A0}, s{WAVE}, 6144")
        I(f"s_add_u32 s{A0}, s{A0}, {LWQ}")
        I(f"v_add_u32 v14, s{A0}, v3")
        for i in range(6): I(f"ds_write_b128 v14, {ar(AWS+4*i,4)} offset:{1024*i}")
    I(f"s_lshl_b32 s{A0}, s{TT}, 15")
    I(f"v_add_u32 v8, s{A0}, v3")
    I("v_add_u32 v9, 0x4000, v8")
    I(f"s_lshr_b32 s{A0}, s{TT}, 1")
    I(f"s_lshl_b32 s{A0}, s{A0}, 13")
    I(f"s_and_b32 s{A0+1}, s{TT}, 1")
    I(f"s_lshl_b32 s{A0+1}, s{A0+1}, 9")
    I(f"s_add_u32 s{A0}, s{A0}, s{A0+1}")
    I(f"s_add_u32 s{A0}, s{A0}, {hex(ST[0])}")
    I(f"v_lshl_add_u32 v11, v6, 4, s{A0}")
    I("v_lshl_add_u32 v11, v7, 12, v11")
    RING = 6
    LOOK = int(ENV("LOOK", "4"))
    ROT1 = 67 if not PROFILE else 101
    I(f"s_lshr_b32 s{ROT1}, s{HEAD}, 1")
    def xload(ks):
        I(f"s_add_u32 s{T0}, s{ROT1}, {ks}")
        I(f"s_and_b32 s{T0}, s{T0}, 15")
        I(f"s_lshl_b32 s{T0}, s{T0}, 10")
        I(f"s_add_u32 s{T0}, s{XB_}, s{T0}")
        I(f"s_addc_u32 s{T0+1}, s{XB_+1}, 0")
        for t in range(2):
            vm.issue(f"global_load_dwordx4 {ar(64+8*(ks % RING)+4*t,4)}, v{8+t}, {sp(T0)} sc1", f"x{ks}")
    def wbase1(ks):
        I(f"s_add_u32 s{T0}, s{ROT1}, {ks}")
        I(f"s_and_b32 s{T0}, s{T0}, 15")
        I(f"s_lshl_b32 s{T0}, s{T0}, 10")
        I(f"v_add_u32 v12, s{T0}, v10")
    def first_x():
        for ks in range(LOOK): xload(ks)
    MID = int(ENV("MID", "8"))
    def x_first():
        for ks in range(min(MID, RING)): xload(ks)
    WRP_ = ENV("WRS", "pre")
    if WRP_ == "pre": w_restore()
    if WRP_ == "both": w_restore(); w_addr(15, 14)
    hop_a(0, after_bar=(x_first if ENV("XE", "0") == "1" else None),
          shadow={"pre": lambda: w_addr(15, 14), "shadow": lambda: (w_restore(), w_addr(15, 14)), "both": None}[WRP_])
    def bg_loads():
        first_x()
        for l in stat_loads: vm.issue(l, "st")
    MID = int(ENV("MID", "8"))
    RES = ENV("RES", "c")
    if ENV("XE", "0") == "0":
        for ks in range(min(MID, RING)): xload(ks)
    F0, FX = 76, 64
    pxl = [f"global_load_dwordx3 {vr(F0+4*i,3)}, v2, {sp(WSP)} offset:{256*(i>>1)+16*(i&1)} sc1" for i in range(4)]
    def px_issue():
        I(f"s_lshl_b32 s{A0}, s{WAVE}, 9")
        I(f"s_add_u32 s{A0}, s{A0}, {hex(X2R)}")
        I(f"v_lshl_add_u32 v2, v7, 7, s{A0}")
        I("v_bfe_u32 v4, v1, 4, 1")
        I("v_lshl_add_u32 v2, v4, 5, v2")
        for l in pxl: I(l)
    wbase1(0)
    wreads(WB, 12, 0)
    wbase1(1)
    wreads(WB + 12, 12, 0)
    for ks in range(16):
        QP1 = eval(ENV("QP1", "{0: 3, 6: 2, 11: 1, 14: 0}"))
        if ks in QP1: I(f"s_setprio {QP1[ks]}")
        if ks == MID:
            def resume():
                for q_ in range(MID, min(16, MID + LOOK)): xload(q_)
                for l in stat_loads: vm.issue(l, "st")
            I("s_cmp_ge_u32 s2, 224")
            I(f"s_cbranch_scc1 {lab('fin_a')}")
            hop_b_issue(0)
            hop_b(0, role="s")
            slice1(0)
            slice2(0)
            resume()
            I(f"s_branch {lab('q1_go')}")
            k.L(lab("fin_a"))
            vm.q = []
            resume()
            k.L(lab("q1_go"))
            k.stamp(name="q1_ffn")
        if ks >= MID and ks + LOOK < 16: xload(ks + LOOK)
        if 1 <= ks < MID and ks - 1 + RING < MID: xload(ks - 1 + RING)
        if ks == int(ENV("STE", "13")):
            vm.wait("st")
            keep_ = list(vm.q)
            poll("ps", stat_loads, stat_tags, chk_label="ps_c")
            vm.q = keep_
            own_stats()
            bounce_params()
        if ks == int(ENV("PXE", "14")):
            I("s_cmp_ge_u32 s2, 224")
            I(f"s_cbranch_scc1 {lab('px_e')}")
            I(f"s_lshr_b32 s{A0}, s{IDX}, 8")
            I(f"s_cmp_lg_u32 s{A0}, s{QB}")
            I(f"s_cbranch_scc1 {lab('px_e')}")
            px_issue()
            k.L(lab("px_e"))
        if ks < 14:
            wbase1(ks + 2)
            wreads(WB + 12*((ks+2)%3), 12, 0)
        vm.wait(f"x{ks}", f" lgkmcnt({12 if ks < 14 else 6 if ks == 14 else 0})")
        qmfmas(WB + 12*(ks%3), ar(64+8*(ks % RING),4), ar(64+8*(ks % RING)+4,4), ks == 0)
    k.stamp(name="q1_loop")
    I("s_cmp_lt_u32 s2, 224")
    I(f"s_cbranch_scc1 {lab('fin_b')}")
    hop_b_issue(0, "f")
    hop_b(0, role="f")
    vm.drain()
    finalize(0)
    k.L(lab("fin_b"))
    k.stamp(name="q1_fin")
    I(f"s_lshr_b32 s{A0}, s{IDX}, 8")
    I(f"s_cmp_eq_u32 s{A0}, s{QB}")
    I(f"s_cbranch_scc1 {lab('dofix')}")
    I("s_cmp_lt_u32 s2, 224")
    I(f"s_cbranch_scc1 {lab('nofix')}")
    I(f"s_branch {lab('rebounce')}")
    k.L(lab("dofix"))
    I(f"s_lshl_b32 s{A0}, s{WAVE}, 11")
    I(f"v_add_u32 v12, s{A0}, v10")
    for q in range(2): wreads(WB + 12*q, 12, q)
    for r in range(4): I(f"v_mov_b32 v{72+r}, s{ONES}")
    I(f"s_lshl_b32 s{A0}, s{WAVE}, 8")
    I(f"s_add_u32 s{A0}, s{A0}, {LRD}")
    I("v_and_b32 v12, 48, v1")
    I(f"v_add_u32 v12, s{A0}, v12")
    I(f"v_mov_b32 v13, s{A0}")
    if int(ENV("PXE", "14")) < 16:
        I("s_cmp_lt_u32 s2, 224")
        I(f"s_cbranch_scc1 {lab('px_go')}")
    px_issue()
    k.L(lab("px_go"))
    poll("px", pxl, [F0 + 4*i + 2 for i in range(4)], first_issued=True)
    for i in range(4):
        I(f"v_mov_b32 v{FX+2*i}, v{F0+4*i}")
        I(f"v_mov_b32 v{FX+2*i+1}, v{F0+4*i+1}")
    I("s_waitcnt lgkmcnt(0)")
    for q in range(2):
        for sec in range(3): mfma16(F0 + 4*sec, vr(WB+12*q+4*sec,4), vr(FX+4*q,4), q == 0)
        mfma16(F0 + 12, vr(72,4), vr(FX+4*q,4), q == 0)
        mfma16(F0 + 16, vr(FX+4*q,4), vr(FX+4*q,4), q == 0)
    I("s_mov_b32 exec_lo, 0x00010001"); I("s_mov_b32 exec_hi, 0x00010001")
    k.nop(6)
    for sec in range(3): I(f"ds_write_b128 v12, {vr(F0+4*sec,4)} offset:{64*sec}")
    I(f"ds_write_b32 v13, v{F0+12} offset:192")
    I(f"ds_write_b32 v13, v{F0+16} offset:196")
    exec_all()
    I(f"s_and_b32 s{A0}, s{IDX}, 31")
    I("v_and_b32 v15, 15, v1")
    I("v_lshrrev_b32 v14, 4, v1")
    I("v_lshlrev_b32 v14, 2, v14")
    I(f"v_sub_u32 v66, s{A0}, v14")
    I(f"v_sub_u32 v67, s{A0}, v15")
    I("v_lshlrev_b32 v15, 2, v15")
    I(f"v_add_u32 v15, {LFX + 128}, v15")
    I("v_and_b32 v12, 48, v1")
    I(f"v_add_u32 v12, {LFX}, v12")
    bar()
    I(f"s_lshr_b32 s{A0}, s{IDX}, 5")
    I(f"s_cmp_lg_u32 s{A0}, s{OT}")
    I(f"s_cbranch_scc1 {lab('nores')}")
    I(f"s_lshl_b32 s{A0}, s{KG}, 7")
    I(f"s_add_u32 s{A0}, s{A0}, {hex(X2R)}")
    I(f"v_lshl_add_u32 v14, v7, 4, s{A0}")
    I(f"v_cmp_eq_u32 vcc, s{IDX}, v{VTK}")
    I(f"s_and_saveexec_b64 {sp(T2)}, vcc")
    I(f"global_load_dwordx2 {vr(XG,2)}, v14, {sp(WSP)} sc1")
    I(f"global_load_dwordx2 {vr(XG+2,2)}, v14, {sp(WSP)} offset:32 sc1")
    I(f"v_mov_b32 v{RESR}, 0")
    exec_all()
    k.L(lab("nores"))
    I(f"s_lshr_b32 s{A0}, s{IDX}, 5")
    I(f"s_cmp_lg_u32 s{A0}, s{TT}")
    I(f"s_cbranch_scc1 {lab('rebounce')}")
    sum8(LRD, LFX)
    I(f"v_mov_b32 v13, {LFX + 192}")
    for sec in range(2): I(f"ds_read_b128 {vr(F0+4*sec,4)}, v12 offset:{64*sec}")
    I("ds_read_b64 v[64:65], v13")
    I("ds_read_b32 v68, v15")
    MK = [T0, T2, A0, A0 + 2, A0 + 4, A0 + 6]
    for t in range(2):
        I(f"v_cmp_eq_u32 {sp(MK[0])}, {16*t}, v67")
        for r in range(4): I(f"v_cmp_eq_u32 {sp(MK[1+r])}, {16*t+r}, v66")
        if t == 0:
            I("s_waitcnt lgkmcnt(0)")
            rowstats(64, 65, 69, 70, 71)
        else: k.nop(1)
        for sec in range(2):
            for r in range(4): I(f"v_cndmask_b32 v{ACC+8*sec+4*t+r}, v{ACC+8*sec+4*t+r}, v{F0+4*sec+r}, {sp(MK[0])}")
        I(f"v_cndmask_b32 v{MT[t]}, v{MT[t]}, v69, {sp(MK[0])}")
        I(f"v_cndmask_b32 v{AT[t]}, v{AT[t]}, v71, {sp(MK[0])}")
        for r in range(4): I(f"v_cndmask_b32 v{ACC+16+4*t+r}, v{ACC+16+4*t+r}, v68, {sp(MK[1+r])}")
    k.L(lab("rebounce"))
    bounce_params()
    k.L(lab("nofix"))
    vm.drain()
    k.stamp(name="q1_fix")
    q_epilogue(1)
    k.stamp(name="l1_qepi")
    attention(1)
    oproj(1)
    def cand_stats():
        I(f"s_cmp_lg_u32 s{WAVE}, 1")
        I(f"s_cbranch_scc1 {lab('cs_skip0')}")
        I(f"v_mov_b32 v40, s{CA}")
        I(f"v_mov_b32 v41, s{CB_}")
        I("v_cmp_gt_u32 vcc, 8, v1")
        I("v_and_b32 v42, 7, v1")
        I("s_nop 0")
        I("v_cndmask_b32 v40, v41, v40, vcc")
        I("v_lshrrev_b32 v41, 6, v40")
        I("v_lshl_add_u32 v41, v41, 3, v42")
        I("v_and_b32 v40, 63, v40")
        I("v_lshlrev_b32 v40, 4, v40")
        I("v_lshl_add_u32 v40, v41, 10, v40")
        I(f"v_add_u32 v40, {hex(ST[1])}, v40")
        exec_lo("0xffff")
        I(f"global_load_dwordx4 v[44:47], v40, {sp(WSP)} sc1")
        exec_all()
        k.L(lab("cs_skip0"))
    def cand_stats2():
        I(f"s_cmp_lg_u32 s{WAVE}, 1")
        I(f"s_cbranch_scc1 {lab('cs_skip')}")
        exec_lo("0xffff")
        poll("pc", [f"global_load_dwordx4 v[44:47], v40, {sp(WSP)} sc1"], [47], first_issued=True)
        for m in Q4 + ("row_half_mirror",):
            k.nop(1)
            for c in range(2): I(f"v_add_f32_dpp v{44+c}, v{44+c}, v{44+c} {m} row_mask:0xf bank_mask:0xf")
        rowstats(44, 45, 46, 47, 45)
        I("v_and_b32 v40, 8, v1")
        I(f"v_add_u32 v40, {LCS}, v40")
        I("v_mul_f32 v44, v46, v45")
        I("ds_write_b64 v40, v[44:45]")
        exec_all()
        k.L(lab("cs_skip"))
    SX, SD = 56, 64
    def cand_addr():
        I(f"v_mov_b32 v50, s{CA}")
        I(f"v_mov_b32 v51, s{CB_}")
        I("v_and_b32 v52, 1, v1")
        I("v_cmp_eq_u32 vcc, 1, v52")
        I("v_lshlrev_b32 v52, 3, v52")
        I(f"v_add_u32 v52, {LCS}, v52")
        I("v_cndmask_b32 v50, v50, v51, vcc")
        I("v_lshrrev_b32 v51, 4, v50")
        I("v_and_b32 v50, 15, v50")
        I("v_lshlrev_b32 v50, 4, v50")
        I("v_lshl_add_u32 v50, v51, 14, v50")
        I("v_and_b32 v51, 48, v1")
        I("v_lshl_add_u32 v50, v51, 4, v50")
        I(f"s_lshl_b32 s{A0}, s{WAVE}, 11")
        I(f"v_add_u32 v50, s{A0}, v50")
        I("s_cmp_lt_u32 s2, 224")
        I(f"s_cbranch_scc1 {lab('ca_done')}")
        I(f"v_mov_b32 v50, s{CA}")
        I(f"v_mov_b32 v51, s{CB_}")
        I("v_and_b32 v53, 16, v1")
        I("v_cmp_eq_u32 vcc, 16, v53")
        I(f"s_sub_u32 s{A0}, s2, 224")
        I(f"s_lshl_b32 s{A0}, s{A0}, 9")
        I("v_cndmask_b32 v50, v50, v51, vcc")
        I("v_lshrrev_b32 v51, 4, v50")
        I("v_and_b32 v50, 15, v50")
        I("v_lshlrev_b32 v50, 4, v50")
        I("v_lshl_add_u32 v50, v51, 14, v50")
        I("v_bfe_u32 v51, v1, 3, 1")
        I("v_lshl_add_u32 v50, v51, 8, v50")
        I(f"v_add_u32 v50, s{A0}, v50")
        k.L(lab("ca_done"))
        for f in range(8): I(f"v_accvgpr_read_b32 v{SD+f}, a{ADN+f}")
        for f in range(8): I(f"v_lshlrev_b32 v{SD+f}, 16, v{SD+f}")
    def cand_rows():
        I(f"global_load_dwordx4 {vr(SX,4)}, v50, {sp(XB_)} sc1")
        I(f"global_load_dwordx4 {vr(SX+4,4)}, v50, {sp(XB_)} offset:1024 sc1")
        I("ds_read_b64 v[54:55], v52")
    cand_addr()
    hop_a(1, cand_stats2, cand_stats, cand_rows)
    I("s_cmp_ge_u32 s2, 224")
    I(f"s_cbranch_scc1 {lab('sp_skip')}")
    I("v_and_b32 v17, 48, v1")
    I(f"s_lshl_b32 s{A0}, s{WAVE}, 7")
    I(f"s_add_u32 s{A0}, s{A0}, {LRD}")
    I("v_and_b32 v18, 1, v1")
    I("v_lshl_add_u32 v17, v18, 6, v17")
    I(f"v_add_u32 v17, s{A0}, v17")
    I("v_and_b32 v18, 31, v1")
    I("v_lshlrev_b32 v18, 2, v18")
    I(f"v_add_u32 v18, {LRD}, v18")
    yp_addr(22, 2)
    I(f"v_add_u32 v23, {hex(YP[3] - YP[2])}, v22")
    I(f"s_or_b32 s{A0}, s{CG}, s{WAVE}")
    I(f"s_cmp_eq_u32 s{A0}, 0")
    I("s_waitcnt vmcnt(1)")
    I(f"s_cbranch_scc1 {lab('sp_go')}")
    I("s_waitcnt vmcnt(0)")
    k.L(lab("sp_go"))
    for i in range(8):
        t0 = 24 + 2*(i & 1)
        unpack(t0, t0 + 1, SX + i)
        I(f"v_fma_f32 v{t0}, v{t0}, v55, -v54")
        I(f"v_fma_f32 v{t0+1}, v{t0+1}, v55, -v54")
        I(f"v_cvt_pk_bf16_f32 v{SX+i}, v{t0}, v{t0+1}")
    k.nop(2)
    I(f"v_mfma_f32_16x16x32_bf16 v[24:27], {ar(AGU,4)}, {vr(SX,4)}, 0")
    I(f"v_mfma_f32_16x16x32_bf16 v[24:27], {ar(AGU+4,4)}, {vr(SX+4,4)}, v[24:27]")
    I("s_mov_b32 exec_lo, 0x00030003")
    I("s_mov_b32 exec_hi, 0x00030003")
    k.nop(6)
    I("ds_write_b128 v17, v[24:27]")
    exec_all()
    bar()
    for i in range(8): I(f"ds_read_b32 v{SX+i}, v18 offset:{128*i}")
    I("s_waitcnt lgkmcnt(0)")
    for a_, b_ in ((0,1),(2,3),(4,5),(6,7),(0,2),(4,6),(0,4)): I(f"v_add_f32 v{SX+a_}, v{SX+a_}, v{SX+b_}")
    bf16r(SX)
    I(f"v_mul_f32 v16, {hex(f2u(-LOG2E))}, v{SX}")
    I("v_exp_f32 v16, v16")
    I("s_nop 0")
    I("v_add_f32 v16, 1.0, v16")
    I("v_rcp_f32 v16, v16")
    I("s_nop 0")
    I(f"v_mul_f32 v16, v16, v{SX}")
    bf16r(16)
    k.nop(2)
    I(f"v_mul_f32_dpp v16, v{SX}, v16 row_ror:8 row_mask:0xf bank_mask:0xf")
    bf16r(16)
    k.nop(1)
    for c_ in range(2):
        for f in range(8): I(f"v_readlane_b32 s{A0+f}, v16, {16*c_+f}")
        I(f"v_mul_f32 v{24+2*c_}, s{A0}, v{SD}")
        I(f"v_mul_f32 v{25+2*c_}, s{A0+1}, v{SD+1}")
        for f in range(2, 8): I(f"v_fmac_f32 v{24+2*c_+(f&1)}, s{A0+f}, v{SD+f}")
        I(f"v_add_f32 v{24+2*c_}, v{24+2*c_}, v{25+2*c_}")
        I(f"v_min_u32 v{28+4*c_}, 0xfffffffe, v{24+2*c_}")
        I("s_nop 0")
        k.nop(1)
        for j in range(1, 4): I(f"v_mov_b32_dpp v{28+4*c_+j}, v{28+4*c_} quad_perm:[{j},{j},{j},{j}] row_mask:0xf bank_mask:0xf")
        I("s_mov_b32 exec_lo, 0x11111111"); I("s_mov_b32 exec_hi, 0x11111111")
        I(f"global_store_dwordx4 v{22+c_}, {vr(28+4*c_,4)}, {sp(WSP)} sc1")
        exec_all()
    I(f"s_branch {lab('sp_done')}")
    k.L(lab("sp_skip"))
    I("s_waitcnt vmcnt(0)")
    x_elem(SX, 16)
    k.L(lab("sp_done"))
    hop_b_issue(1)
    k.stamp(name="t_spec")
    X, Y = 96, 16
    for i in range(4): unpack(X + 2*i, X + 2*i + 1, XG + i)
    for r in range(8): I(f"v_sub_f32 v{Y+r}, v{X+r}, v{RESM}")
    for r in range(8): I(f"v_mul_f32 v{Y+r}, v{Y+r}, v{RESR}")
    for i in range(4): I(f"v_cvt_pk_bf16_f32 v{XG+i}, v{Y+2*i}, v{Y+2*i+1}")
    for i in range(4): unpack(Y + 2*i, Y + 2*i + 1, XG + i)
    for r in range(8): I(f"v_add_f32 v{X+r}, v{X+r}, v{Y+r}")
    for i in range(4): I(f"v_cvt_pk_bf16_f32 v{XG+i}, v{X+2*i}, v{X+2*i+1}")
    I(f"s_lshl_b32 s{A0}, s{KG}, 5")
    I(f"v_lshl_add_u32 v12, v7, 4, s{A0}")
    I(f"v_lshl_add_u32 v12, v{VTK}, 10, v12")
    I(f"v_permlane32_swap_b32 v{XG}, v{XG+2}")
    I(f"v_permlane32_swap_b32 v{XG+1}, v{XG+3}")
    hop_b(1)
    k.stamp(name="t_hopb")
    def out_store():
        I(f"v_cmp_ne_u32 vcc, s{IDX}, v{VTK}")
        I(f"s_and_saveexec_b64 {sp(T2)}, vcc")
        vm.issue(f"global_store_dwordx4 v12, {vr(XG,4)}, {sp(OUTP)} {ENV('OUTF', '')}")
        exec_all()
    out_store()
    slice1(1)
    slice2(1)
    k.stamp(name="t_slice")
    finalize(1)
    I(f"s_branch {lab('fdone')}")
    k.L(lab("hit"))
    I("s_cmp_lt_u32 s2, 224")
    I(f"s_cbranch_scc1 {lab('hit_out')}")
    I(f"s_cmp_eq_u32 s{YSEL}, 2")
    I(f"s_mov_b32 s{T0}, {hex(YP[2])}")
    I(f"s_cselect_b32 s{T0}, {hex(YP[3])}, s{T0}")
    gather("sg", [f"s{T0}"], 20, LRD, light=(ENV("SGL", "0") == "1"))
    I("v_and_b32 v16, 15, v1")
    I("v_lshlrev_b32 v16, 2, v16")
    I(f"v_add_u32 v16, {LRD}, v16")
    bar()
    I(f"s_cmp_lg_u32 s{WAVE}, 0")
    I(f"s_cbranch_scc1 {lab('hit_out')}")
    I(f"v_mov_b32 v17, v{SX}")
    I(f"s_cmp_eq_u32 s{YSEL}, 2")
    I("s_cselect_b64 vcc, -1, 0")
    I(f"v_permlane16_swap_b32 v{SX}, v17")
    I("s_nop 0")
    I(f"v_cndmask_b32 v{SX}, v{SX}, v17, vcc")
    finish_row(1, SX, 16)
    k.L(lab("hit_out"))
    out_store()
    k.L(lab("fdone"))
    I("s_cmp_lg_u32 s2, 0")
    I(f"s_cbranch_scc1 {lab('end')}")
    I(f"v_mov_b32 v12, {hex(NONCE)}")
    I(f"v_mov_b32 v13, s{TAG}")
    I("v_cmp_eq_u32 vcc, 0, v0")
    I(f"s_and_saveexec_b64 {sp(T2)}, vcc")
    I(f"s_cbranch_execz {lab('end')}")
    I(f"global_store_dword v12, v13, {sp(WSP)} sc1")
    k.L(lab("end"))
    k.stamp_end(0)
    if ENV("DBGT"):
        I("s_cmp_lt_u32 s2, 224")
        I(f"s_cbranch_scc1 {lab('exit')}")
        I(f"s_cmp_lg_u32 s{WAVE}, 0")
        I(f"s_cbranch_scc1 {lab('exit')}")
        I("s_load_dwordx2 s[4:5], s[0:1], 72")
        I("s_memrealtime s[6:7]")
        I("s_memtime s[8:9]")
        I("s_waitcnt lgkmcnt(0)")
        I("s_mov_b64 exec, 1")
        I("s_not_b32 s96, s96")
        I("s_sub_u32 s8, s8, s98")
        I("v_mov_b32 v1, 0"); I("v_mov_b32 v2, s96"); I("v_mov_b32 v3, s6"); I("v_mov_b32 v4, s8")
        I("global_atomic_umax v1, v2, s[4:5]")
        I("global_atomic_umax v1, v3, s[4:5] offset:4")
        I("global_atomic_umax v1, v4, s[4:5] offset:8")
    k.L(lab("exit"))
    I("s_endpgm")
    return k

if __name__ == "__main__":
    k = build_kernel()
    bad = check_hazards(k)
    for b in bad: print("HAZARD", b, file=sys.stderr)
    out = sys.argv[1] if len(sys.argv) > 1 else "cdna_kernels/" + NAME + ".s"
    NOTES = """; One persistent kernel, 256 workgroups (one per CU, all co-resident) x 8 waves; workgroup = (q-block id&7, head id>>3).
; SwiGLU FFN of the routed token spread over 224 workgroups, 32 workgroups sum its partials.
; the previous launch left in d_ws, so stale contents are never taken for this launch's data. All polls are bounded.
"""
    if ENV("POLLF", "sc0 sc1"):
        import re as _re
        k.lines = [_re.sub(r"(global_load_\w+ [^;]*s\[10:11\][^;]*) sc1", r"\1 " + ENV("POLLF", "sc0 sc1"), l) for l in k.lines]
    if ENV("STOREF", "sc0 sc1"):
        import re as _re
        k.lines = [_re.sub(r"(global_store_\w+ [^;]*s\[10:11\][^;]*) sc1", r"\1 " + ENV("STOREF", "sc0 sc1"), l) for l in k.lines]
    if ENV("ALLF"):
        import re as _re
        k.lines = [_re.sub(r"(?<!sc0) sc1", " " + ENV("ALLF"), l) for l in k.lines]
    txt = emit_file(HEADER + NOTES, [k], single=(ENV("SINGLE", "0") == "1"))
    open(out, "w").write(txt)
    print("written", out, len(txt), "bytes; hazards:", len(bad))
```
